```python
import torch

def _softmax(x, axis=-1):
    return torch.softmax(x, dim=axis)
def _gelu(x):
    return torch.nn.functional.gelu(x, approximate="tanh")
def _silu(x):
    return torch.nn.functional.silu(x)
def _sigmoid(x):
    return torch.sigmoid(x)
def _layernorm(x, axis=-1, eps=1e-5):
    m = x.mean(dim=axis, keepdim=True)
    v = x.var(dim=axis, keepdim=True, unbiased=False)
    return (x - m) / torch.sqrt(v + eps)
def _scatter_add(tgt, idx, src, axis=0):
    return tgt.clone().index_add_(axis, idx, src)
def _segment_sum(src, seg, n):
    out = torch.zeros((n,) + src.shape[1:], dtype=src.dtype)
    return out.index_add_(0, seg, src)
def _pad(x, pw):
    flat = tuple(v for pair in reversed(pw) for v in pair)
    return torch.nn.functional.pad(x, flat)

kernel_name = 'recurrent_scan__softmax_full_mha__mixer_channel_mlp__prompt'

def setup_inputs():

    _w = (lambda a: (lambda t: t.to(torch.bfloat16) if t.is_floating_point() else t)(torch.as_tensor(a)))
    def _A_setup():
        B, S, D = 1, 2048, 512
        return {
            "x": _w((lambda *s: torch.randn(*s, dtype=torch.bfloat16) * 0.05)(B, S, D)),
            "wqkv": _w((lambda *s: torch.randn(*s, dtype=torch.bfloat16) * 0.1)(D, 3 * D)),
            "wo": _w((lambda *s: torch.randn(*s, dtype=torch.bfloat16) * 0.05)(D, D)),
        }
    _A_in = _A_setup()

    def _B_setup():
        B, S, D, F = 1, 2048, 512, 1792
        return {
            "x": _w((lambda *s: torch.randn(*s, dtype=torch.bfloat16) * 0.05)(B, S, D)),
            "w1": _w((lambda *s: torch.randn(*s, dtype=torch.bfloat16) * 3.2)(D, F) * (D ** -0.5)),
            "b1": _w((lambda *s: torch.randn(*s, dtype=torch.bfloat16) * 1.6)(F)),
            "w2": _w((lambda *s: torch.randn(*s, dtype=torch.bfloat16) * 0.8)(F, D) * (F ** -0.5)),
            "b2": _w((lambda *s: torch.randn(*s, dtype=torch.bfloat16) * 0.8)(D)),
        }
    _B_in = _B_setup()

    return {
        "A_x": _A_in["x"],
        "A_wqkv": _A_in["wqkv"],
        "A_wo": _A_in["wo"],
        "B_x": _B_in["x"],
        "B_w1": _B_in["w1"],
        "B_b1": _B_in["b1"],
        "B_w2": _B_in["w2"],
        "B_b2": _B_in["b2"],
    }

def reference(A_x, A_wqkv, A_wo, B_x, B_w1, B_b1, B_w2, B_b2):
    def _A_ref(x, wqkv, wo):
        B, S, D = x.shape
        H = 32; Dh = D // H
        qkv = (lambda x, *d: x.permute(*d))((x @ wqkv).reshape(B, S, 3, H, Dh), 2, 0, 3, 1, 4)
        q, k, v = qkv[0], qkv[1], qkv[2]
        scale = Dh ** -0.5
        scores = torch.einsum("bhqd,bhkd->bhqk", q, k) * scale
        p = _softmax(scores, axis=-1)
        o = torch.einsum("bhqk,bhkd->bhqd", p, v)
        return (lambda x, *d: x.permute(*d))(o, 0, 2, 1, 3).reshape(B, S, D) @ wo

    def _B_ref(x, w1, b1, w2, b2):
        y = _layernorm(x, axis=-1)
        h = _gelu(torch.einsum("bsd,df->bsf", y, w1) + b1)
        return torch.einsum("bsf,fd->bsd", h, w2) + b2

    x = A_x
    xn = _layernorm(x, axis=-1)
    s = _A_ref(xn, A_wqkv, A_wo)
    g = _silu(_B_ref(xn, B_w1, B_b1, B_w2, B_b2))
    return x + s * g
```

```python
import re

_REG = re.compile(r'^(-?)(\|?)([vsa])(\d+)\|?$')
_RNG = re.compile(r'^(-?)([vsa])\[(\d+):(\d+)\]$')


def regs_of(tok):
    tok = tok.strip()
    if tok.startswith('abs(') and tok.endswith(')'):
        tok = tok[4:-1]
    if tok.startswith('-abs(') and tok.endswith(')'):
        tok = tok[5:-1]
    m = _REG.match(tok)
    if m:
        return [(m.group(3), int(m.group(4)))]
    m = _RNG.match(tok)
    if m:
        return [(m.group(2), i) for i in range(int(m.group(3)), int(m.group(4)) + 1)]
    t = tok.lstrip('-')
    if t == 'vcc':
        return [('x', 'vcc')]
    if t in ('vcc_lo', 'vcc_hi'):
        return [('x', 'vcc')]
    if t in ('exec', 'exec_lo', 'exec_hi'):
        return [('x', 'exec')]
    if t == 'm0':
        return [('x', 'm0')]
    return []


TRANS = ('v_exp_f32', 'v_log_f32', 'v_rcp_f32', 'v_rsq_f32', 'v_sqrt_f32', 'v_sin_f32', 'v_cos_f32',
         'v_rcp_iflag_f32')
RMW_DST = ('v_fmac_f32', 'v_dot2c_f32_bf16', 'v_pk_fmac_f16', 'v_mac_f32', 'v_writelane_b32')
NO_DST_S = ('s_cmp', 's_waitcnt', 's_barrier', 's_nop', 's_cbranch', 's_branch', 's_setprio', 's_sleep',
            's_endpgm', 's_bitcmp', 's_setreg', 's_sethalt', 's_trap')


class Ins:
    __slots__ = ('text', 'op', 'kind', 'dst', 'src', 'srcc', 'passes', 'nop', 'label')

    def __init__(self, text):
        self.text = text
        self.label = None
        self.dst = []
        self.src = []
        self.srcc = []
        self.passes = 0
        self.nop = 1
        t = text.split(';')[0].strip()
        if t.endswith(':'):
            self.kind = 'label'
            self.op = ''
            self.label = t[:-1]
            return
        if not t or t.startswith('.'):
            self.kind = 'dir'
            self.op = ''
            self.nop = 0
            return
        parts = t.split(None, 1)
        op = parts[0]
        for sfx in ('_e32', '_e64'):
            if op.endswith(sfx):
                op = op[:-4]
        self.op = op
        rest = parts[1] if len(parts) > 1 else ''
        ops = [o.strip() for o in rest.split(',')] if rest else []
        mods = ''
        if ops:
            joined = []
            depth = 0
            cur = ''
            for ch in rest:
                if ch == '[':
                    depth += 1
                if ch == ']':
                    depth -= 1
                if ch == ',' and depth == 0:
                    joined.append(cur.strip())
                    cur = ''
                else:
                    cur += ch
            joined.append(cur.strip())
            ops = joined
            last = ops[-1].split(None, 1)
            if len(last) > 1:
                ops[-1] = last[0]
                mods = last[1]
        R = [regs_of(o) for o in ops]
        flat = lambda l: [r for x in l for r in x]
        if op.startswith('v_mfma'):
            self.kind = 'mfma'
            self.dst = R[0]
            self.src = R[1] + R[2]
            self.srcc = R[3]
            self.passes = 8 if '32x32' in op else 4
        elif op.startswith('v_'):
            self.kind = 'trans' if op in TRANS else 'valu'
            if op.startswith('v_permlane') and 'swap' in op:
                self.dst = R[0] + R[1]
                self.src = R[0] + R[1]
            elif op.startswith('v_cmpx'):
                self.dst = R[0] + [('x', 'exec')]
                self.src = flat(R[1:])
            elif op in ('v_add_co_u32', 'v_sub_co_u32', 'v_addc_co_u32', 'v_subb_co_u32', 'v_div_scale_f32'):
                self.dst = R[0] + R[1]
                self.src = flat(R[2:])
            else:
                self.dst = R[0]
                self.src = flat(R[1:])
                if op in RMW_DST:
                    self.src = self.src + R[0]
                if op in ('v_cndmask_b32',) and len(R) == 3:
                    self.src = self.src + [('x', 'vcc')]
        elif op.startswith('ds_'):
            self.kind = 'ds'
            if op.startswith('ds_read') or op.startswith('ds_bpermute') or op.startswith('ds_permute') \
                    or op.startswith('ds_swizzle') or '_rtn' in op:
                self.dst = R[0]
                self.src = flat(R[1:])
            else:
                self.src = flat(R)
        elif op.startswith('buffer_') or op.startswith('global_'):
            self.kind = 'vmem'
            modl = mods.split()
            if op.startswith('buffer_load') and 'lds' in modl:
                self.src = flat(R) + [('x', 'm0')]
            elif 'load' in op:
                self.dst = R[0]
                self.src = flat(R[1:])
            elif 'atomic' in op and 'sc0' in modl:
                self.dst = R[0]
                self.src = flat(R)
            else:
                self.src = flat(R)
        elif op.startswith('s_'):
            self.kind = 'salu'
            if op == 's_nop':
                self.nop = int(ops[0], 0) + 1
            elif any(op.startswith(p) for p in NO_DST_S):
                self.src = flat(R)
            elif op.startswith('s_load') or op.startswith('s_memtime') or op.startswith('s_memrealtime'):
                self.kind = 'smem'
                self.dst = R[0]
                self.src = flat(R[1:])
            else:
                self.dst = R[0]
                self.src = flat(R[1:])
                if 'saveexec' in op:
                    self.dst = self.dst + [('x', 'exec')]
        else:
            raise ValueError('unknown instruction: ' + text)

    def is_store_wide(self):
        return self.kind == 'vmem' and 'store' in self.op and (self.op.endswith('x4') or self.op.endswith('x3'))


def need_wait(p, c):
    n = 0
    pd = set(p.dst)
    if p.kind in ('valu', 'trans'):
        vd = {r for r in pd if r[0] in 'va'}
        sd = {r for r in pd if r[0] == 's' or r == ('x', 'vcc')}
        cs = set(c.src) | set(c.srcc)
        if c.kind == 'mfma' and vd & cs:
            n = max(n, 2)
        if c.kind == 'mfma' and ('x', 'exec') in pd:
            n = max(n, 4)
        if c.kind == 'vmem' and sd & cs:
            n = max(n, 5)
        if c.kind in ('valu', 'trans') and sd & cs:
            n = max(n, 2)
            if c.op in ('v_readlane_b32', 'v_writelane_b32'):
                n = max(n, 4)
        if c.op in ('v_readlane_b32', 'v_readfirstlane_b32') and vd & cs:
            n = max(n, 1)
        if c.op.startswith('v_permlane') and vd & cs:
            n = max(n, 2)
        if c.kind in ('valu', 'trans') and ('dpp' in c.text or 'row_' in c.text or 'quad_perm' in c.text) and vd & cs:
            n = max(n, 2)
        if p.kind == 'trans' and c.kind in ('valu', 'mfma') and vd & cs:
            n = max(n, 1 if c.kind == 'valu' else 2)
        if ('x', 'exec') in pd and c.op in ('v_readlane_b32', 'v_readfirstlane_b32', 'v_writelane_b32'):
            n = max(n, 4)
        if ('x', 'exec') in pd and c.op.startswith('v_permlane'):
            n = max(n, 4)
        if c.kind == 'salu' and sd & cs:
            n = max(n, 4)
    if p.kind == 'mfma':
        ps = p.passes
        if c.kind == 'mfma':
            if pd & set(c.src):
                n = max(n, 12 if ps == 8 else 8)
            if pd & set(c.srcc):
                if not (c.srcc == p.dst and c.passes == ps):
                    n = max(n, 10 if ps == 8 else 6)
            elif pd & set(c.dst):
                n = max(n, 10 if ps == 8 else 6)
        elif c.kind in ('valu', 'trans', 'ds', 'vmem'):
            if pd & (set(c.src) | set(c.dst)):
                n = max(n, 12 if ps == 8 else 8)
        if c.kind in ('valu', 'trans') and set(p.srcc) & set(c.dst):
            n = max(n, 7 if ps == 8 else 3)
        if c.kind in ('ds', 'vmem') and set(p.srcc) & set(c.dst):
            n = max(n, 7 if ps == 8 else 3)
    if p.op.startswith('v_dot2') and c.kind in ('valu', 'trans', 'mfma', 'ds', 'vmem'):
        if set(p.dst) & (set(c.src) | set(c.dst) | set(c.srcc)):
            if not (c.op == p.op and not (set(p.dst) & set(c.src[:-len(c.dst)] if c.op in RMW_DST else c.src[:-1]))):
                n = max(n, 3)
    if p.is_store_wide() and c.kind in ('valu', 'trans', 'mfma'):
        data = set(p.src[:4] if p.op.endswith('x4') else p.src[:3])
        if data & set(c.dst):
            n = max(n, 2)
    if p.kind == 'ds' and p.op in ('ds_write_b128', 'ds_write_b96') and c.kind in ('valu', 'trans', 'mfma'):
        if set(p.src[1:]) & set(c.dst):
            n = max(n, 2)
    if p.kind == 'salu' and ('x', 'm0') in pd and ('x', 'm0') in set(c.src):
        n = max(n, 1)
    return n


MAXWIN = 20


class Asm:
    def __init__(self):
        self.ins = []
        self.vm = []
        self.lg = []
        self.uid = 0

    def __call__(self, text):
        for line in text.split('\n'):
            line = line.strip()
            if not line or line.startswith(';'):
                continue
            i = Ins(line)
            self.ins.append(i)
        return self

    def comment(self, s):
        i = Ins('.x')
        i.text = '; ' + s
        self.ins.append(i)

    def label(self, name):
        self(name + ':')

    def newlabel(self, base):
        self.uid += 1
        return f'{base}_{self.uid}'

    def vmem(self, text, tag=None):
        self(text)
        self.vm.append(tag)
        assert len(self.vm) <= 63, 'vmcnt overflow (%d outstanding) at %s' % (len(self.vm), text)

    def ds(self, text, tag=None):
        self(text)
        self.lg.append(tag)

    def wait_vm(self, tag=None, extra=''):
        if tag is None:
            n = 0
        else:
            tags = tag if isinstance(tag, (set, list, tuple)) and not isinstance(tag, str) else [tag]
            idx = [k for k, t in enumerate(self.vm) if t in tags]
            if not idx:
                return
            n = len(self.vm) - 1 - max(idx)
        self.vm = self.vm[len(self.vm) - n:] if n else []
        self(f's_waitcnt vmcnt({n})')

    def wait_lg(self, tag=None):
        if tag is None:
            n = 0
        else:
            tags = tag if isinstance(tag, (set, list)) else [tag]
            idx = [k for k, t in enumerate(self.lg) if t in tags]
            if not idx:
                return
            n = len(self.lg) - 1 - max(idx)
        n = min(n, 15)
        self.lg = self.lg[len(self.lg) - n:] if n else []
        self(f's_waitcnt lgkmcnt({n})')

    def wait_all(self):
        self.vm = []
        self.lg = []
        self('s_waitcnt vmcnt(0) lgkmcnt(0)')

    def snapshot(self):
        return (list(self.vm), list(self.lg))

    def restore(self, snap):
        self.vm, self.lg = list(snap[0]), list(snap[1])

    def finalize(self):
        out = []
        window = []
        nops = 0

        def pending_max():
            m = 0
            for p, d in window:
                w = 0
                if p.kind == 'mfma':
                    w = 12 if p.passes == 8 else 8
                elif p.kind in ('valu', 'trans'):
                    if any(r[0] == 's' or r[0] == 'x' for r in p.dst):
                        w = 5
                    elif p.op.startswith('v_dot2'):
                        w = 3
                    else:
                        w = 2
                elif p.is_store_wide() or (p.kind == 'ds' and p.op in ('ds_write_b128',)):
                    w = 2
                elif p.kind == 'salu' and ('x', 'm0') in p.dst:
                    w = 1
                m = max(m, w - d)
            return m

        def emit_nop(n):
            nonlocal nops
            while n > 0:
                k = min(n, 16)
                out.append(f's_nop {k - 1}')
                nops += 1
                for w in window:
                    w[1] += k
                n -= k

        for i in self.ins:
            if i.kind == 'dir':
                out.append(i.text)
                continue
            is_branch = i.op.startswith('s_cbranch') or i.op == 's_branch'
            if i.kind == 'label' or is_branch:
                emit_nop(max(0, pending_max() - (1 if is_branch else 0)))
                out.append(i.text)
                window = []
                continue
            need = 0
            for p, d in window:
                w = need_wait(p, i)
                need = max(need, w - d)
            emit_nop(need)
            out.append('  ' + i.text)
            for w in window:
                w[1] += i.nop
            window = [w for w in window if w[1] < MAXWIN]
            window.append([i, 0])
        self.nops_inserted = nops
        return '\n'.join(out) + '\n'


def v(i, n=1):
    return f'v{i}' if n == 1 else f'v[{i}:{i + n - 1}]'


def s(i, n=1):
    return f's{i}' if n == 1 else f's[{i}:{i + n - 1}]'
```

```python
from asmb import *

NAME = "recurrent_scan__softmax_full_mha__mixer_channel_mlp__prompt"

QF = 0
KV = 2 << 20
HF = 6 << 20
WF = 13 << 20
OF = 16 << 20
FL = 18 << 20
WS_BYTES = 20 << 20

S_X, S_WQ, S_W1, S_WS, S_W2, S_WO, S_B1, S_B2, S_OUT, S_DBG = 4, 8, 12, 16, 20, 24, 28, 32, 36, 40
sW, sTT, sG, sXCD, sSLOT = 44, 45, 46, 47, 48
KA = 68


def srd(n):
    return f's[{n}:{n + 3}]'


def mfma32(d, a_, b, c=None):
    cs = f'v[{d}:{d + 15}]' if c is None else (c if isinstance(c, str) else f'v[{c}:{c + 15}]')
    return f'v_mfma_f32_32x32x16_bf16 v[{d}:{d + 15}], v[{a_}:{a_ + 3}], v[{b}:{b + 3}], {cs}'


def mfma16(d, a_, b, c=None):
    cs = f'v[{d}:{d + 3}]' if c is None else (c if isinstance(c, str) else f'v[{c}:{c + 3}]')
    return f'v_mfma_f32_16x16x32_bf16 v[{d}:{d + 3}], v[{a_}:{a_ + 3}], v[{b}:{b + 3}], {cs}'


def emit(a, x):
    if callable(x):
        x()
    else:
        a(x)


def weave(a, mains, fillers, lead=0):
    fillers = list(fillers)
    n = len(mains)
    done = 0
    for _ in range(min(lead, len(fillers))):
        emit(a, fillers[done])
        done += 1
    rest = len(fillers) - done
    base = done
    for i, m in enumerate(mains):
        emit(a, m)
        upto = base + (rest * (i + 1)) // n
        while done < upto:
            emit(a, fillers[done])
            done += 1
    while done < len(fillers):
        emit(a, fillers[done])
        done += 1


def prologue(a, end_label, srds):
    a(f'''
s_load_dwordx16 s[{KA}:{KA + 15}], s[0:1], 0
s_load_dwordx4 s[{KA + 16}:{KA + 19}], s[0:1], 64
s_load_dwordx2 s[{KA + 20}:{KA + 21}], s[0:1], 80
s_cmp_ge_u32 s2, 256
s_cbranch_scc1 {end_label}
v_lshrrev_b32 v1, 6, v0
v_and_b32 v0, 63, v0
v_readfirstlane_b32 s{sW}, v1
s_and_b32 s{sXCD}, s2, 7
s_lshr_b32 s{sSLOT}, s2, 3
''')
    a(f's_and_b32 s{sTT}, s{sW}, 3')
    a(f's_lshr_b32 s{sG}, s{sW}, 2')


SRD_INFO = {
    'x': (S_X, 0, 2048 * 512 * 2),
    'wq': (S_WQ, 2, 512 * 1536 * 2),
    'wo': (S_WO, 4, 512 * 512 * 2),
    'w1': (S_W1, 8, 512 * 1792 * 2),
    'b1': (S_B1, 10, 1792 * 2),
    'w2': (S_W2, 12, 1792 * 512 * 2),
    'b2': (S_B2, 14, 512 * 2),
    'out': (S_OUT, 16, 2048 * 512 * 2),
    'dbg': (S_DBG, 18, 256),
    'ws': (S_WS, 20, WS_BYTES),
}


def build_srds(a, names):
    for n in names:
        r, o, b = SRD_INFO[n]
        a(f's_mov_b32 s{r + 2}, {hex(b)}')
        a(f's_mov_b32 s{r + 3}, 0x20000')
    a('s_waitcnt lgkmcnt(0)')
    for n in names:
        r, o, b = SRD_INFO[n]
        a(f's_mov_b32 s{r}, s{KA + o}')
        a(f's_mov_b32 s{r + 1}, s{KA + o + 1}')


def kernel_text(label, body, nvgpr=256):
    head = f'''.globl {label}
.p2align 8
.type {label},@function
{label}:
'''
    return head + body


def descriptor(label, nvgpr=256):
    acc = (nvgpr + 3) // 4 * 4
    return f'''.p2align 6
.amdhsa_kernel {label}
  .amdhsa_next_free_vgpr {nvgpr}
  .amdhsa_next_free_sgpr 102
  .amdhsa_accum_offset {acc}
  .amdhsa_group_segment_fixed_size 0
  .amdhsa_kernarg_size 88
  .amdhsa_user_sgpr_count 2
  .amdhsa_user_sgpr_kernarg_segment_ptr 1
  .amdhsa_system_sgpr_workgroup_id_x 1
.end_amdhsa_kernel
'''


HEADER_COMMENT = open('cdna_kernels/' + NAME + '.s.ref').read().split('; Override launch')[0]
```

```python
from common import *

XR = 0
WR = 81920
ST = 143360
CSP = ST + 4096
SCR = CSP + 3584
K1_LDS = SCR + 2048

sTB, sHP, sF0 = 49, 50, 51
sT0, sT1, sT2, sT3 = 52, 53, 54, 55
sMASK = 60
sMX, sMW, sM2 = 61, 62, 63
sPB = 64
sT = 65
sQO, sKO, sHO = 66, 67, 56
sPF, sPS = 57, 58

vXD = 4
vWD, vW1D = 6, 7
aX = 8
aW = 12
vSX0, vSQ0, vSX1, vSQ1 = 16, 17, 18, 19
vU = 20
vCS0, vCS1 = 24, 28
vCSA, vCSB = 32, 36
vSEL = 40
vTMP = 44
AC_A = 48
AC_Q, AC_K = 64, 80
AC_B = 64
BUFA, BUFB = 96, 112
XF = 128
vL16 = 1
vM, vR = 2, 3
vRR, vMRR = 4, 5
vB1A, vB1B = 16, 17

C_Q = 0.25 * 1.4426950408889634
C1 = -2.302208198144325
C2 = C1 * 0.044715


def X(c, j):
    return XF + 16 * c + 4 * j


def fl(x):
    import struct
    return hex(struct.unpack('<I', struct.pack('<f', x))[0])


def setup(a):
    a.comment('--- K1 ids and lane constants')
    a(f'''
s_and_b32 s{sT0}, s{sXCD}, 1
s_lshl_b32 s{sT0}, s{sT0}, 3
s_and_b32 s{sT1}, s{sSLOT}, 7
s_add_u32 s{sTB}, s{sT0}, s{sT1}
s_lshr_b32 s{sT0}, s{sXCD}, 1
s_lshl_b32 s{sT0}, s{sT0}, 2
s_lshr_b32 s{sT1}, s{sSLOT}, 3
s_add_u32 s{sHP}, s{sT0}, s{sT1}
s_mul_i32 s{sT0}, s{sHP}, 7
s_and_b32 s{sT1}, s{sHP}, 1
s_add_u32 s{sT0}, s{sT0}, s{sT1}
s_lshr_b32 s{sF0}, s{sT0}, 1
s_and_b32 s{sT1}, s{sT1}, s{sG}
s_lshl_b32 s{sT1}, s{sT1}, 6
s_sub_u32 s{sPB}, 64, s{sT1}
s_lshl_b32 s{sT}, s{sTB}, 2
s_add_u32 s{sT}, s{sT}, s{sTT}
s_mov_b32 s{sMASK}, 0xffff0000
s_lshl_b32 s{sMX}, s{sW}, 11
s_lshl_b32 s{sMW}, s{sTT}, 10
s_add_u32 s{sMW}, s{sMW}, {WR}
s_lshl_b32 s{sM2}, s{sG}, 13
s_lshl_b32 s{sT0}, s{sTT}, 11
s_add_u32 s{sM2}, s{sM2}, s{sT0}
''')
    a(f'''
v_lshrrev_b32 v1, 3, v0
v_lshrrev_b32 v2, 4, v0
v_and_b32 v3, 7, v0
v_xor_b32 v2, v2, v3
s_lshl_b32 s{sT0}, s{sTB}, 7
s_lshl_b32 s{sT1}, s{sW}, 4
s_add_u32 s{sT0}, s{sT0}, s{sT1}
v_add_u32 v1, s{sT0}, v1
v_lshlrev_b32 v1, 10, v1
v_lshlrev_b32 v2, 4, v2
v_add_u32 v{vXD}, v1, v2
v_xor_b32 v2, 64, v2
v_add_u32 v1, 0x2000, v1
v_add_u32 v{vXD + 1}, v1, v2
''')
    a(f'''
v_lshrrev_b32 v1, 2, v0
v_and_b32 v2, 3, v0
v_lshlrev_b32 v2, 4, v2
s_lshl_b32 s{sT0}, s{sTT}, 4
v_add_u32 v3, s{sT0}, v1
v_mul_u32_u24 v3, 0xc00, v3
s_lshl_b32 s{sT0}, s{sHP}, 6
s_sub_u32 s{sT1}, 1, s{sG}
s_lshl_b32 s{sT1}, s{sT1}, 11
s_add_u32 s{sT0}, s{sT0}, s{sT1}
v_add3_u32 v{vWD}, v3, v2, s{sT0}
s_lshl_b32 s{sT0}, s{sTT}, 5
v_add_u32 v3, s{sT0}, v1
v_mul_u32_u24 v3, 0xe00, v3
s_lshl_b32 s{sT0}, s{sG}, 1
s_add_u32 s{sT0}, s{sT0}, s{sF0}
s_lshl_b32 s{sT0}, s{sT0}, 6
v_add3_u32 v{vW1D}, v3, v2, s{sT0}
''')


def setup2(a):
    a.comment('--- LDS read addresses')
    a(f'''
v_and_b32 v1, 31, v0
v_lshrrev_b32 v2, 5, v0
v_bfe_u32 v3, v0, 1, 3
v_xor_b32 v2, v2, v3
v_lshlrev_b32 v2, 4, v2
s_lshl_b32 s{sT0}, s{sTT}, 5
v_add_u32 v1, s{sT0}, v1
v_lshlrev_b32 v1, 7, v1
''')
    for j in range(4):
        a(f's_xor_b32 s{sT0}, s{sTT}, {j}')
        a(f's_lshl_b32 s{sT0}, s{sT0}, 5')
        a(f'v_xor_b32 v3, s{sT0}, v2')
        a(f'v_add_u32 v{aX + j}, v1, v3')
    a(f'''
v_lshrrev_b32 v1, 5, v0
v_lshlrev_b32 v1, 9, v1
v_bfe_u32 v2, v0, 2, 2
v_lshlrev_b32 v2, 6, v2
v_add_u32 v1, v1, v2
v_bfe_u32 v2, v0, 4, 1
v_lshlrev_b32 v2, 5, v2
v_add_u32 v1, v1, v2
v_and_b32 v2, 1, v0
v_lshlrev_b32 v2, 4, v2
v_add_u32 v1, v1, v2
v_and_b32 v2, 2, v0
v_lshlrev_b32 v2, 2, v2
v_add_u32 v1, v1, v2
''')
    for j in range(4):
        a(f's_xor_b32 s{sT0}, s{sTT}, {j}')
        a(f's_lshl_b32 s{sT0}, s{sT0}, 10')
        a(f's_add_u32 s{sT0}, s{sT0}, {WR}')
        a(f'v_add_u32 v{aW + j}, s{sT0}, v1')
    a(f'''
v_and_b32 v1, 15, v0
v_bfe_u32 v2, v0, 4, 1
v_cmp_eq_u32 vcc, v1, v2
v_mov_b32 v1, 0x3f803f80
v_cndmask_b32 v{vSEL}, 0, v1, vcc
v_cndmask_b32 v{vSEL + 1}, 0, v1, vcc
v_cndmask_b32 v{vSEL + 2}, 0, v1, vcc
v_cndmask_b32 v{vSEL + 3}, 0, v1, vcc
v_mov_b32 v{vSX0}, 0
v_mov_b32 v{vSQ0}, 0
v_mov_b32 v{vSX1}, 0
v_mov_b32 v{vSQ1}, 0
v_lshlrev_b32 v{vL16}, 4, v0
''')


def xslot(n):
    return (n % 5) * 16384


def dma_ops(a, n, g):
    ops = []
    tag = f'c{n}'

    def one(srdn, voff, m0_s, m0_imm, soff_fn):
        def f():
            a(f's_add_u32 m0, s{m0_s}, {m0_imm}')
            so = soff_fn()
            a.vmem(f'buffer_load_dwordx4 v{voff}, {srd(srdn)}, {so} offen lds', tag)
        return f

    def const_soff(val):
        def f():
            a(f's_mov_b32 s{sT2}, {val}')
            return f's{sT2}'
        return f

    if n < 8:
        for q in range(2):
            ops.append(one(S_X, vXD + q, sMX, xslot(n) + q * 1024, const_soff(n * 128)))
        wb = (n % 5) * 12288
        if g == 0:
            ops.append(one(S_WQ, vWD, sMW, wb + 2 * 4096, const_soff(n * 196608)))
        else:
            ops.append(one(S_WQ, vWD, sMW, wb, const_soff(n * 196608)))
            ops.append(one(S_WQ, vWD, sMW, wb + 4096, const_soff(n * 196608 + 1024)))
    elif n < 16:
        ps, C = (n - 8) // 4, (n - 8) % 4
        for q in range(2):
            val = C * 458752 + q * 57344
            if ps == 0:
                sf = const_soff(val)
            else:
                def sf(val=val):
                    a(f's_add_u32 s{sT2}, s{sPB}, {val}')
                    return f's{sT2}'
            ops.append(one(S_W1, vW1D, sM2, xslot(n) + q * 1024, sf))
    return ops


def tr_pair(a, d, areg, off, tag):
    a.ds(f'ds_read_b64_tr_b16 v[{d}:{d + 1}], v{areg} offset:{off}', tag)
    a.ds(f'ds_read_b64_tr_b16 v[{d + 2}:{d + 3}], v{areg} offset:{off + 256}', tag)


def stat_ops(xreg, k):
    t = vU + 2 * (k % 2)
    return [f'v_and_b32 v{t}, s{sMASK}, v{xreg}',
            f'v_lshlrev_b32 v{t + 1}, 16, v{xreg}',
            f'v_fmac_f32 v{vSQ0}, v{t}, v{t}',
            f'v_fmac_f32 v{vSQ1}, v{t + 1}, v{t + 1}',
            f'v_add_f32 v{vSX0}, v{t}, v{vSX0}',
            f'v_add_f32 v{vSX1}, v{t + 1}, v{vSX1}']


def p1_frag(g, j, p):
    base = BUFA if j < 2 else BUFB
    return base + 8 * (j % 2) + 4 * p


def p1_reads(a, n, g, js, tag):
    xo = xslot(n) if n % 5 < 4 else 0
    for j in js:
        a.ds(f'ds_read_b128 v[{X(n, j)}:{X(n, j) + 3}], v{aX + j} offset:{xo}', tag)
        wb = (n % 5) * 12288
        panels = (0, 1) if g == 0 else (2,)
        for pi, p in enumerate(panels):
            tr_pair(a, p1_frag(g, j, pi), aW + j, wb + p * 4096, tag)


def p1_mfmas(n, g, js):
    out = []
    for j in js:
        first = (n == 0 and j == 0)
        if g == 0:
            out.append(mfma32(AC_Q, p1_frag(0, j, 0), X(n, j), '0' if first else None))
            out.append(mfma32(AC_K, p1_frag(0, j, 1), X(n, j), '0' if first else None))
            if j == 0:
                out.append(mfma16(vCS0, p1_frag(0, 0, 0), vSEL, '0' if n == 0 else None))
                out.append(mfma16(vCS1, p1_frag(0, 0, 1), vSEL, '0' if n == 0 else None))
        else:
            out.append(mfma32(AC_Q, X(n, j), p1_frag(1, j, 0), '0' if first else None))
            if j == 0:
                out.append(mfma16(vCS0, p1_frag(1, 0, 0), vSEL, '0' if n == 0 else None))
    return out


def p1_stats(n, g, js):
    ops = []
    k = 0
    for j in js:
        for r in ((0, 1) if g == 0 else (2, 3)):
            ops += stat_ops(X(n, j) + r, k)
            k += 1
    return ops


def rebase(a, regs, n, delta=65536):
    if n % 5 == 4:
        for r in regs:
            a(f'v_add_u32 v{r}, {hex(delta)}, v{r}')
    if n % 5 == 0 and n > 0:
        for r in regs:
            a(f'v_subrev_u32 v{r}, {hex(delta)}, v{r}')


def p1_stage(a, n, g):
    a.comment(f'--- P1 stage {n} g={g}')
    a.wait_vm(f'c{n}')
    a.wait_lg()
    a('s_barrier')
    rebase(a, [aX + j for j in range(4)], n)
    p1_reads(a, n, g, (0, 1), 'A')
    dm = dma_ops(a, n + 4, g)
    if n > 0:
        weave(a, p1_mfmas(n - 1, g, (2, 3)), dm + p1_stats(n - 1, g, (2, 3)))
    else:
        for d in dm:
            d()
    p1_reads(a, n, g, (2, 3), 'B')
    a.wait_lg('A')
    weave(a, p1_mfmas(n, g, (0, 1)), p1_stats(n, g, (0, 1)))


def write_cs_partials(a, accs_panels):
    a(f'''
v_and_b32 v{vTMP}, 15, v0
v_lshlrev_b32 v{vTMP}, 8, v{vTMP}
v_lshrrev_b32 v{vTMP + 1}, 4, v0
v_lshlrev_b32 v{vTMP + 1}, 6, v{vTMP + 1}
s_lshl_b32 s{sT0}, s{sTT}, 2
s_add_u32 s{sT0}, s{sT0}, {CSP}
v_add3_u32 v{vTMP}, v{vTMP}, v{vTMP + 1}, s{sT0}
s_mov_b32 s{sT0}, 0x00030003
s_mov_b32 s{sT1}, 0x00030003
s_mov_b64 exec, s[{sT0}:{sT1}]
''')
    for acc, off in accs_panels:
        for r in range(4):
            a.ds(f'ds_write_b32 v{vTMP}, v{acc + r} offset:{off + r * 16}', 'w')
    a('s_mov_b64 exec, -1')


def p1_epilogue(a, g):
    a.comment(f'--- P1 epilogue g={g}')
    a.wait_lg()
    weave(a, p1_mfmas(7, g, (2, 3)), p1_stats(7, g, (2, 3)))
    a(f'''
v_add_f32 v{vSX0}, v{vSX0}, v{vSX1}
v_add_f32 v{vSQ0}, v{vSQ0}, v{vSQ1}
v_and_b32 v{vU}, 31, v0
v_lshlrev_b32 v{vU}, 5, v{vU}
s_lshl_b32 s{sT0}, s{sTT}, 10
s_add_u32 s{sT0}, s{sT0}, {ST}
v_add_u32 v{vU}, s{sT0}, v{vU}
v_lshrrev_b32 v{vU + 1}, 5, v0
v_lshlrev_b32 v{vU + 1}, 3, v{vU + 1}
v_add3_u32 v{vU + 1}, v{vU + 1}, v{vU}, {16 * g}
''')
    a.ds(f'ds_write_b64 v{vU + 1}, v[{vSX0}:{vSQ0}]', 'w')
    write_cs_partials(a, [(vCS0, 0), (vCS1, 512)] if g == 0 else [(vCS0, 1024)])
    a.wait_lg()
    a('s_barrier')
    prep_issue(a)
    a(f'''
v_and_b32 v{vTMP + 2}, 31, v0
v_and_b32 v{vTMP + 3}, 19, v{vTMP + 2}
v_bfe_u32 v{vCS0}, v0, 2, 1
v_lshlrev_b32 v{vCS0}, 3, v{vCS0}
v_bfe_u32 v{vCS0 + 1}, v0, 3, 1
v_lshlrev_b32 v{vCS0 + 1}, 2, v{vCS0 + 1}
v_add3_u32 v{vTMP + 3}, v{vTMP + 3}, v{vCS0}, v{vCS0 + 1}
v_lshlrev_b32 v{vTMP + 3}, 1, v{vTMP + 3}
s_lshl_b32 s{sT0}, s{sG}, 1
s_add_u32 s{sT0}, s{sT0}, s{sF0}
s_lshl_b32 s{sT0}, s{sT0}, 6
s_add_u32 s{sT1}, s{sT0}, s{sPB}
''')
    a.vmem(f'buffer_load_ushort v{vB1A}, v{vTMP + 3}, {srd(S_B1)}, s{sT0} offen', 'b1')
    a.vmem(f'buffer_load_ushort v{vB1B}, v{vTMP + 3}, {srd(S_B1)}, s{sT1} offen', 'b1')
    t = BUFA
    a.ds(f'ds_read_b128 v[{t}:{t + 3}], v{vU}', 's')
    a.ds(f'ds_read_b128 v[{t + 4}:{t + 7}], v{vU} offset:16', 's')
    a(f'''
v_and_b32 v{vU + 2}, 31, v0
v_lshlrev_b32 v{vU + 2}, 4, v{vU + 2}
''')
    if g == 0:
        a(f'''
v_lshrrev_b32 v{vU + 3}, 5, v0
v_lshlrev_b32 v{vU + 3}, 9, v{vU + 3}
v_add_u32 v{vU + 2}, v{vU + 2}, v{vU + 3}
v_add_u32 v{vU + 2}, {CSP}, v{vU + 2}
''')
        a.ds(f'ds_read_b128 v[{t + 8}:{t + 11}], v{vU + 2}', 'c')
    else:
        a(f'v_add_u32 v{vU + 2}, {CSP}, v{vU + 2}')
        a.ds(f'ds_read_b128 v[{t + 8}:{t + 11}], v{vU + 2} offset:1024', 'c')
    a.wait_lg('s')
    a(f'''
v_add_f32 v{t}, v{t}, v{t + 2}
v_add_f32 v{t + 1}, v{t + 1}, v{t + 3}
v_add_f32 v{t + 4}, v{t + 4}, v{t + 6}
v_add_f32 v{t + 5}, v{t + 5}, v{t + 7}
v_add_f32 v{t}, v{t}, v{t + 4}
v_add_f32 v{t + 1}, v{t + 1}, v{t + 5}
v_mul_f32 v{vM}, {fl(1 / 512)}, v{t}
v_mul_f32 v{t + 1}, {fl(1 / 512)}, v{t + 1}
v_fma_f32 v{t + 1}, -v{vM}, v{vM}, v{t + 1}
v_max_f32 v{t + 1}, 0, v{t + 1}
v_add_f32 v{t + 2}, {fl(1e-5)}, v{t + 1}
v_rsq_f32 v{vR}, v{t + 2}
''')
    a.wait_lg('c')
    a(f'''
v_add_f32 v{t + 8}, v{t + 8}, v{t + 9}
v_add_f32 v{t + 10}, v{t + 10}, v{t + 11}
v_mul_f32 v{t + 2}, v{vR}, v{vR}
v_mul_f32 v{t + 2}, v{t + 2}, v{t + 1}
v_add_f32 v{t + 2}, {fl(1e-5)}, v{t + 2}
v_rsq_f32 v{t + 2}, v{t + 2}
v_add_f32 v{t + 8}, v{t + 8}, v{t + 10}
v_mul_f32 v{vRR}, v{vR}, v{t + 2}
v_mul_f32 v{vMRR}, v{vM}, v{vRR}
''')
    a(f'''
s_lshl_b32 s{sT0}, s{sW}, 8
s_add_u32 s{sT0}, s{sT0}, {SCR}
v_lshlrev_b32 v{vU}, 2, v0
v_add_u32 v{vU}, s{sT0}, v{vU}
v_lshrrev_b32 v{vU + 1}, 5, v0
v_lshlrev_b32 v{vU + 1}, 4, v{vU + 1}
v_add_u32 v{vU + 1}, s{sT0}, v{vU + 1}
''')
    a(f'''
s_lshl_b32 s{sT0}, s{sHP}, 17
s_lshl_b32 s{sT1}, s{sT}, 10
s_add_u32 s{sQO}, s{sT0}, s{sT1}
s_lshl_b32 s{sT0}, s{sHP}, 18
s_lshl_b32 s{sT1}, s{sT}, 11
s_add_u32 s{sKO}, s{sT0}, s{sT1}
s_add_u32 s{sKO}, s{sKO}, {KV}
''')
    if g == 0:
        a.ds(f'ds_write_b32 v{vU}, v{t + 8}', 'w')
        for p in range(2):
            for qd in range(4):
                d = BUFA + 16 * p + 4 * qd
                a.ds(f'ds_read_b128 v[{d}:{d + 3}], v{vU + 1} offset:{p * 128 + qd * 32}', f'q{p}')
        a(f'v_mul_f32 v{vU + 2}, {fl(C_Q)}, v{vR}')
        for p, acc in ((0, AC_Q), (1, AC_K)):
            a.wait_lg(f'q{p}')
            sc = vU + 2 if p == 0 else vR
            for r in range(16):
                a(f'v_fma_f32 v{acc + r}, -v{vM}, v{BUFA + 16 * p + r}, v{acc + r}')
            for r in range(16):
                a(f'v_mul_f32 v{acc + r}, v{sc}, v{acc + r}')
            for r in range(8):
                a(f'v_cvt_pk_bf16_f32 v{acc + r}, v{acc + 2 * r}, v{acc + 2 * r + 1}')
            if p == 0:
                a.vmem(f'buffer_store_dwordx4 v[{acc}:{acc + 3}], v{vL16}, {srd(S_WS)}, s{sQO} offen', 'st')
                a(f's_add_u32 s{sT0}, s{sQO}, 65536')
                a.vmem(f'buffer_store_dwordx4 v[{acc + 4}:{acc + 7}], v{vL16}, {srd(S_WS)}, s{sT0} offen', 'st')
            else:
                a.vmem(f'buffer_store_dwordx4 v[{acc}:{acc + 3}], v{vL16}, {srd(S_WS)}, s{sKO} offen', 'st')
                a(f's_add_u32 s{sT0}, s{sKO}, 131072')
                a.vmem(f'buffer_store_dwordx4 v[{acc + 4}:{acc + 7}], v{vL16}, {srd(S_WS)}, s{sT0} offen', 'st')
    else:
        a(f'''
v_mul_f32 v{t + 9}, v{vM}, v{vR}
v_cmp_gt_u32 vcc, 32, v0
v_cndmask_b32 v{t + 9}, v{t + 9}, v{vR}, vcc
''')
        a.ds(f'ds_write_b32 v{vU}, v{t + 9}', 'w')
        a(f'v_mov_b32 v{vU + 2}, v{t + 8}')
        for qd in range(4):
            d = BUFA + 4 * qd
            a.ds(f'ds_read_b128 v[{d}:{d + 3}], v{vU + 1} offset:{qd * 32}', 'q0')
        for qd in range(4):
            d = BUFB + 4 * qd
            a.ds(f'ds_read_b128 v[{d}:{d + 3}], v{vU + 1} offset:{128 + qd * 32}', 'q0')
        a(f'''
v_bfe_u32 v{vU}, v0, 4, 1
v_lshlrev_b32 v{vU}, 17, v{vU}
v_and_b32 v{vU + 3}, 15, v0
v_lshlrev_b32 v{vU + 3}, 4, v{vU + 3}
v_add_u32 v{vU}, v{vU}, v{vU + 3}
v_lshrrev_b32 v{vU + 3}, 5, v0
v_lshlrev_b32 v{vU + 3}, 8, v{vU + 3}
v_add_u32 v{vU}, v{vU}, v{vU + 3}
''')
        a.wait_lg('q0')
        acc = AC_Q
        for r in range(16):
            a(f'v_mul_f32 v{BUFB + r}, v{vU + 2}, v{BUFB + r}')
        for r in range(16):
            a(f'v_fma_f32 v{acc + r}, v{acc + r}, v{BUFA + r}, -v{BUFB + r}')
        for r in range(8):
            a(f'v_cvt_pk_bf16_f32 v{acc + r}, v{acc + 2 * r}, v{acc + 2 * r + 1}')
        a.vmem(f'buffer_store_dwordx4 v[{acc}:{acc + 3}], v{vU}, {srd(S_WS)}, s{sKO} offen offset:1024', 'st')
        a.vmem(f'buffer_store_dwordx4 v[{acc + 4}:{acc + 7}], v{vU}, {srd(S_WS)}, s{sKO} offen offset:1536', 'st')
    a(f's_lshl_b32 s{sT0}, s{sG}, 13')
    a(f's_sub_u32 s{sT0}, s{sT0}, {WR}')
    for j in range(4):
        a(f'v_add_u32 v{aW + j}, s{sT0}, v{aW + j}')


def prep_issue(a):
    a.comment('prep DMA')
    lbl = a.newlabel('prep_wo')
    lbl2 = a.newlabel('prep_j')
    lbl3 = a.newlabel('prep_n2')
    a(f'''
v_lshrrev_b32 v{vTMP}, 2, v0
v_lshlrev_b32 v{vTMP}, 10, v{vTMP}
v_and_b32 v{vTMP + 1}, 3, v0
v_lshlrev_b32 v{vTMP + 1}, 4, v{vTMP + 1}
s_and_b32 s{sT0}, s2, 1
s_lshl_b32 s{sT0}, s{sT0}, 3
s_add_u32 s{sT0}, s{sT0}, s{sW}
s_lshl_b32 s{sT0}, s{sT0}, 6
v_add3_u32 v{vTMP}, v{vTMP}, v{vTMP + 1}, s{sT0}
s_lshr_b32 s{sPS}, s2, 1
s_lshl_b32 s{sT1}, s{sW}, 10
s_add_u32 m0, s{sT1}, {WR}
s_lshl_b32 s{sT2}, s{sPS}, 14
s_cmp_ge_u32 s2, 224
s_cbranch_scc1 {lbl}
''')
    snap = a.snapshot()
    a.vmem(f'buffer_load_dwordx4 v{vTMP}, {srd(S_W2)}, s{sT2} offen lds', 'prep')
    a(f's_branch {lbl2}')
    a.label(lbl)
    a(f's_sub_u32 s{sT2}, s{sT2}, {112 * 16384}')
    a(f'buffer_load_dwordx4 v{vTMP}, {srd(S_WO)}, s{sT2} offen lds')
    a.label(lbl2)
    a(f'''
s_cmp_ge_u32 s2, 32
s_cbranch_scc1 {lbl3}
s_add_u32 m0, s{sT1}, {WR + 8192}
s_add_u32 s{sT2}, s{sT2}, {16 * 16384}
''')
    a(f'buffer_load_dwordx4 v{vTMP}, {srd(S_WO)}, s{sT2} offen lds')
    a.label(lbl3)


def prep_finish(a):
    a.comment('prep: transpose + store')
    lbl3 = a.newlabel('prep_f2')
    t = 80
    a(f'''
v_lshrrev_b32 v{t}, 5, v0
v_lshlrev_b32 v{t}, 9, v{t}
v_bfe_u32 v{t + 1}, v0, 2, 2
v_lshlrev_b32 v{t + 1}, 6, v{t + 1}
v_add_u32 v{t}, v{t}, v{t + 1}
v_bfe_u32 v{t + 1}, v0, 4, 1
v_lshlrev_b32 v{t + 1}, 5, v{t + 1}
v_add_u32 v{t}, v{t}, v{t + 1}
v_and_b32 v{t + 1}, 3, v0
v_lshlrev_b32 v{t + 1}, 3, v{t + 1}
s_lshl_b32 s{sT0}, s{sW}, 10
s_add_u32 s{sT0}, s{sT0}, {WR}
v_add3_u32 v{t}, v{t}, v{t + 1}, s{sT0}
s_lshl_b32 s{sT0}, s2, 3
s_add_u32 s{sT0}, s{sT0}, s{sW}
s_lshl_b32 s{sT0}, s{sT0}, 10
s_add_u32 s{sT0}, s{sT0}, {WF}
''')
    tr_pair(a, t + 4, t, 0, 'pp')
    a.wait_lg('pp')
    a.vmem(f'buffer_store_dwordx4 v[{t + 4}:{t + 7}], v{vL16}, {srd(S_WS)}, s{sT0} offen', 'st')
    a(f'''
s_cmp_ge_u32 s2, 32
s_cbranch_scc1 {lbl3}
''')
    a(f'ds_read_b64_tr_b16 v[{t + 8}:{t + 9}], v{t} offset:8192')
    a(f'ds_read_b64_tr_b16 v[{t + 10}:{t + 11}], v{t} offset:{8192 + 256}')
    a(f's_add_u32 s{sT0}, s{sT0}, {2048 * 1024}')
    a('s_waitcnt lgkmcnt(0)')
    a(f'buffer_store_dwordx4 v[{t + 8}:{t + 11}], v{vL16}, {srd(S_WS)}, s{sT0} offen')
    a.label(lbl3)


def p2_frag(p):
    return (BUFA if p < 4 else BUFB) + 4 * (p % 4)


def p2_reads(a, n, ps, tag):
    so = xslot(n) if n % 5 < 4 else 0
    for p in ps:
        tr_pair(a, p2_frag(p), aW + p % 4, so + (p // 4) * 4096, tag)


def p2_mfmas(n, ps):
    pas, C = (n - 8) // 4, (n - 8) % 4
    acc = AC_A if pas == 0 else AC_B
    out = []
    for p in ps:
        first = (C == 0 and p == 0)
        out.append(mfma32(acc, p2_frag(p), X(2 * C + p // 4, p % 4), '0' if first else None))
    return out


def p2_m16(n, p):
    pas, C = (n - 8) // 4, (n - 8) % 4
    cs = vCSA if pas == 0 else vCSB
    return mfma16(cs, p2_frag(p), vSEL, '0' if (C == 0 and p == 0) else None)


def gelu_prep_ops(a, g, pas):
    pi = 3 + 2 * g + pas
    b1 = vB1A if pas == 0 else vB1B
    t = vCS0
    a(f'''
v_and_b32 v{vU + 2}, 31, v0
v_lshlrev_b32 v{vU + 2}, 4, v{vU + 2}
v_add_u32 v{vU + 2}, {CSP}, v{vU + 2}
''')
    a.ds(f'ds_read_b128 v[{t}:{t + 3}], v{vU + 2} offset:{pi * 512}', 'gc')
    a(f'''
s_lshl_b32 s{sT0}, s{sW}, 8
s_add_u32 s{sT0}, s{sT0}, {SCR}
v_lshlrev_b32 v{vU}, 2, v0
v_add_u32 v{vU}, s{sT0}, v{vU}
v_lshrrev_b32 v{vU + 1}, 5, v0
v_lshlrev_b32 v{vU + 1}, 4, v{vU + 1}
v_add_u32 v{vU + 1}, s{sT0}, v{vU + 1}
v_lshlrev_b32 v{t + 4}, 16, v{b1}
''')
    a.wait_lg('gc')
    a(f'''
v_add_f32 v{t}, v{t}, v{t + 1}
v_add_f32 v{t + 2}, v{t + 2}, v{t + 3}
v_cmp_gt_u32 vcc, 32, v0
v_add_f32 v{t}, v{t}, v{t + 2}
v_cndmask_b32 v{t}, v{t + 4}, v{t}, vcc
''')
    a.ds(f'ds_write_b32 v{vU}, v{t}', 'w')


def gelu_ops(a, acc, csb, b1b, tmp):
    ops = []
    for q in range(4):
        R = [acc + 4 * q + e for e in range(4)]
        cs = [csb + 4 * q + e for e in range(4)]
        b = [b1b + 4 * q + e for e in range(4)]
        u = [tmp + e for e in range(4)]
        w = [tmp + 4 + e for e in range(4)]
        for e in range(4):
            ops.append(f'v_fma_f32 v{b[e]}, -v{vMRR}, v{cs[e]}, v{b[e]}')
        for e in range(4):
            ops.append(f'v_fma_f32 v{R[e]}, v{vRR}, v{R[e]}, v{b[e]}')
        for e in range(4):
            ops.append(f'v_mul_f32 v{u[e]}, v{R[e]}, v{R[e]}')
        for e in range(4):
            ops.append(f'v_fma_f32 v{u[e]}, v{u[e]}, s{sT3}, v{vTMP + 2}')
        for e in range(4):
            ops.append(f'v_mul_f32 v{u[e]}, v{u[e]}, v{R[e]}')
        for e in range(4):
            ops.append(f'v_exp_f32 v{w[e]}, v{u[e]}')
        for e in range(4):
            ops.append(f'v_add_f32 v{w[e]}, 1.0, v{w[e]}')
        for e in range(4):
            ops.append(f'v_rcp_f32 v{w[e]}, v{w[e]}')
        for e in range(4):
            ops.append(f'v_mul_f32 v{R[e]}, v{R[e]}, v{w[e]}')
        ops.append(f'v_cvt_pk_bf16_f32 v{acc + 2 * q}, v{R[0]}, v{R[1]}')
        ops.append(f'v_cvt_pk_bf16_f32 v{acc + 2 * q + 1}, v{R[2]}, v{R[3]}')
    return ops


def gelu_simple(a, g, pas):
    acc = AC_A if pas == 0 else AC_B
    gelu_prep_ops(a, g, pas)
    csb, b1b = BUFA, BUFA + 16
    for qd in range(4):
        a.ds(f'ds_read_b128 v[{csb + 4 * qd}:{csb + 4 * qd + 3}], v{vU + 1} offset:{qd * 32}', 'gq')
        a.ds(f'ds_read_b128 v[{b1b + 4 * qd}:{b1b + 4 * qd + 3}], v{vU + 1} offset:{128 + qd * 32}', 'gq')
    a(f's_mov_b32 s{sT3}, {fl(C2)}')
    a(f'v_mov_b32 v{vTMP + 2}, {fl(C1)}')
    a(f'''
s_mul_i32 s{sHO}, s{sT}, 112
s_lshl_b32 s{sT0}, s{sG}, 1
s_add_u32 s{sT0}, s{sT0}, s{sF0}
s_add_u32 s{sT0}, s{sT0}, {pas}
s_lshl_b32 s{sT0}, s{sT0}, 1
s_add_u32 s{sHO}, s{sHO}, s{sT0}
s_lshl_b32 s{sHO}, s{sHO}, 10
s_add_u32 s{sHO}, s{sHO}, {HF}
''')
    a.wait_lg('gq')
    for op in gelu_ops(a, acc, csb, b1b, 80):
        a(op)
    a.vmem(f'buffer_store_dwordx4 v[{acc}:{acc + 3}], v{vL16}, {srd(S_WS)}, s{sHO} offen', 'st')
    a.vmem(f'buffer_store_dwordx4 v[{acc + 4}:{acc + 7}], v{vL16}, {srd(S_WS)}, s{sHO} offen offset:1024', 'st')


def p2_stage(a, n, g):
    a.comment(f'--- P2 stage {n} g={g}')
    a.wait_vm(f'c{n}')
    a.wait_lg()
    a('s_barrier')
    rebase(a, [aW + j for j in range(4)], n)
    p2_reads(a, n, range(4), 'A')
    dm = dma_ops(a, n + 4, g)
    if n > 8:
        weave(a, p2_mfmas(n - 1, range(4, 8)), dm)
    else:
        for d in dm:
            d()
    p2_reads(a, n, range(4, 8), 'B')
    a.wait_lg('A')
    m = p2_mfmas(n, range(4))
    m.insert(1, p2_m16(n, 0))
    for x in m:
        a(x)
    a.wait_lg('B')
    a(p2_m16(n, 4))
    if n == 11:
        write_cs_partials(a, [(vCSA, (3 + 2 * g) * 512)])


def gen_k1(label):
    a = Asm()
    end = label + '_end'
    prologue(a, end, None)
    build_srds(a, ['x', 'wq', 'w1', 'ws', 'w2', 'wo', 'b1'])
    setup(a)
    g1 = label + '_g1'
    a(f's_cmp_eq_u32 s{sG}, 1')
    a(f's_cbranch_scc1 {g1}')
    for g in (0, 1):
        if g == 1:
            a.label(g1)
            a.vm, a.lg = [], []
        for n in range(4):
            for d in dma_ops(a, n, g):
                d()
        setup2(a)
        for n in range(8):
            p1_stage(a, n, g)
        p1_epilogue(a, g)
        for n in range(8, 16):
            p2_stage(a, n, g)
        for x in p2_mfmas(15, range(4, 8)):
            a(x)
        write_cs_partials(a, [(vCSB, (3 + 2 * g + 1) * 512)])
        a.wait_all()
        a('s_barrier')
        prep_finish(a)
        gelu_simple(a, g, 0)
        skip = a.newlabel('skipb')
        if g == 1:
            a(f's_cmp_eq_u32 s{sPB}, 0')
            a(f's_cbranch_scc1 {skip}')
        gelu_simple(a, g, 1)
        if g == 1:
            a.label(skip)
        a('s_endpgm')
    a.label(end)
    a('s_endpgm')
    return a
```

```python
from common import *

K2_LDS = 131072

sH, sQB, sTQ = 49, 50, 51
sT0, sT1, sT2, sT3 = 52, 53, 54, 55
sVM = 58
sMD = 60
sSRC = 61

vL16 = 1
aK0, aK1, aV0, aV1 = 2, 3, 4, 5
vT = 6
RQ = 12
RK = 16
RV0, RV1 = 20, 24
RP = 28
NEGM = 36
RS = (52, 68)
RO = 84


def k_read(a, t):
    ar, off = (aK0, t * 2048) if t < 32 else (aK1, (t - 32) * 2048)
    a.ds(f'ds_read_b128 v[{RK}:{RK + 3}], v{ar} offset:{off}', f'K{t}')


def v_reads(a, items):
    a(f's_mov_b64 exec, s[{sVM}:{sVM + 1}]')
    for part, t in items:
        ar, off = (aV0, t * 2048) if t < 32 else (aV1, (t - 32) * 2048)
        r = RV0 if part == 0 else RV1
        a.ds(f'ds_read_b128 v[{r}:{r + 3}], v{ar} offset:{off + part * 512}', f'V{part}_{t}')
    a('s_mov_b64 exec, -1')


def need_tiles(a, t, state):
    for first, rounds in state['plan']:
        if t >= first and first not in state['done']:
            tags = [f'kv{i}' for i in range(rounds)]
            a.wait_vm(tags)
            a('s_barrier')
            state['done'].add(first)


def attn_step(a, t, nt, state, extra=None):
    S, Sn = RS[t % 2], RS[(t + 1) % 2]
    ex = [f'v_exp_f32 v{S + i}, v{S + i}' for i in range(16)]
    cv = [f'v_cvt_pk_bf16_f32 v{RP + i}, v{S + 2 * i}, v{S + 2 * i + 1}' for i in range(8)]
    if t + 1 < nt:
        a.wait_lg(f'K{t + 1}')
        a(mfma32(Sn, RK, RQ, NEGM))
        if t + 2 < nt:
            need_tiles(a, t + 2, state)
            k_read(a, t + 2)
    for x in (ex[0], ex[1], ex[2], ex[3], cv[0], ex[4], ex[5], cv[1]):
        a(x)
    if t > 0:
        a.wait_lg(f'V1_{t - 1}')
        a(mfma32(RO, RV1, RP + 4, RO))
    for x in (ex[6], ex[7], cv[2], ex[8], ex[9], cv[3], ex[10], ex[11]):
        a(x)
    a.wait_lg(f'V0_{t}')
    a(mfma32(RO, RV0, RP, '0' if t == 0 else RO))
    items = [(1, t)]
    if t + 1 < nt:
        items.append((0, t + 1))
    v_reads(a, items)
    for x in (cv[4], ex[12], ex[13], cv[5], ex[14], ex[15], cv[6], cv[7]):
        a(x)


def row_max(a, S, dst, tmp):
    a(f'v_max3_f32 v{dst}, v{S}, v{S + 1}, v{S + 2}')
    a(f'v_max3_f32 v{tmp}, v{S + 3}, v{S + 4}, v{S + 5}')
    a(f'v_max3_f32 v{dst}, v{dst}, v{S + 6}, v{S + 7}')
    a(f'v_max3_f32 v{tmp}, v{tmp}, v{S + 8}, v{S + 9}')
    a(f'v_max3_f32 v{dst}, v{dst}, v{S + 10}, v{S + 11}')
    a(f'v_max3_f32 v{tmp}, v{tmp}, v{S + 12}, v{S + 13}')
    a(f'v_max3_f32 v{dst}, v{dst}, v{S + 14}, v{S + 15}')
    a(f'v_max_f32 v{dst}, v{dst}, v{tmp}')
    a(f'v_mov_b32 v{tmp}, v{dst}')
    a(f'v_permlane32_swap_b32 v{dst}, v{tmp}')
    a(f'v_max_f32 v{dst}, v{dst}, v{tmp}')


def fallback(a, done_label):
    a.comment('--- fallback: online softmax with the running true maximum')
    loop = a.newlabel('fb_loop')
    S = RS[0]
    vm, vmn, val, va, vb = vT, vT + 1, vT + 2, vT + 3, vT + 4
    a(f'v_mov_b32 v{vm}, 0xff800000')
    for i in range(16):
        a(f'v_mov_b32 v{RO + i}, 0')
    a(f'v_mov_b32 v{va}, v{aK0}')
    a(f'v_mov_b32 v{vb}, v{aV0}')
    a(f's_mov_b32 s{sT0}, 64')
    a.label(loop)
    a(f'ds_read_b128 v[{RK}:{RK + 3}], v{va}')
    a(f's_mov_b64 exec, s[{sVM}:{sVM + 1}]')
    a(f'ds_read_b128 v[{RV0}:{RV0 + 3}], v{vb}')
    a(f'ds_read_b128 v[{RV1}:{RV1 + 3}], v{vb} offset:512')
    a('s_mov_b64 exec, -1')
    a('s_waitcnt lgkmcnt(0)')
    a(mfma32(S, RK, RQ, '0'))
    a(f'v_add_u32 v{va}, 0x800, v{va}')
    a(f'v_add_u32 v{vb}, 0x800, v{vb}')
    row_max(a, S, vmn, val)
    a(f'v_max_f32 v{vmn}, v{vmn}, v{vm}')
    a(f'v_sub_f32 v{val}, v{vm}, v{vmn}')
    a(f'v_exp_f32 v{val}, v{val}')
    a(f'v_mov_b32 v{vm}, v{vmn}')
    for i in range(16):
        a(f'v_sub_f32 v{S + i}, v{S + i}, v{vmn}')
    for i in range(16):
        a(f'v_exp_f32 v{S + i}, v{S + i}')
    for i in range(16):
        a(f'v_mul_f32 v{RO + i}, v{val}, v{RO + i}')
    for i in range(8):
        a(f'v_cvt_pk_bf16_f32 v{RP + i}, v{S + 2 * i}, v{S + 2 * i + 1}')
    a(mfma32(RO, RV0, RP, RO))
    a(mfma32(RO, RV1, RP + 4, RO))
    a(f's_sub_u32 s{sT0}, s{sT0}, 1')
    a(f's_cmp_lg_u32 s{sT0}, 0')
    a(f's_cbranch_scc1 {loop}')
    a(f's_branch {done_label}')


def gen_k2(label, force_fallback=False):
    a = Asm()
    end = label + '_end'
    prologue(a, end, None)
    build_srds(a, ['ws'])
    a(f'''
s_lshl_b32 s{sT0}, s{sXCD}, 2
s_lshr_b32 s{sT1}, s{sSLOT}, 3
s_add_u32 s{sH}, s{sT0}, s{sT1}
s_and_b32 s{sQB}, s{sSLOT}, 7
s_lshl_b32 s{sTQ}, s{sQB}, 3
s_add_u32 s{sTQ}, s{sTQ}, s{sW}
v_lshlrev_b32 v{vL16}, 4, v0
s_lshl_b32 s{sSRC}, s{sH}, 17
s_add_u32 s{sSRC}, s{sSRC}, {KV}
s_lshl_b32 s{sMD}, s{sW}, 10
s_add_u32 s{sSRC}, s{sSRC}, s{sMD}
''')
    a(f'''
s_lshl_b32 s{sT0}, s{sH}, 6
s_add_u32 s{sT0}, s{sT0}, s{sTQ}
s_lshl_b32 s{sT0}, s{sT0}, 10
''')
    a.vmem(f'buffer_load_dwordx4 v[{RQ}:{RQ + 3}], v{vL16}, {srd(S_WS)}, s{sT0} offen', 'kv0')
    for i in range(16):
        a(f's_add_u32 m0, s{sMD}, {i * 8192}')
        a(f's_add_u32 s{sT2}, s{sSRC}, {i * 8192}')
        a.vmem(f'buffer_load_dwordx4 v{vL16}, {srd(S_WS)}, s{sT2} offen lds', f'kv{i}')
    a(f'''
v_mov_b32 v{aK0}, v{vL16}
v_add_u32 v{aK1}, 0x10000, v{vL16}
v_and_b32 v{vT}, 15, v0
v_lshrrev_b32 v{vT + 1}, 5, v0
v_lshlrev_b32 v{vT + 1}, 4, v{vT + 1}
v_add_u32 v{vT}, v{vT}, v{vT + 1}
v_lshlrev_b32 v{vT}, 4, v{vT}
v_add_u32 v{aV0}, 0x400, v{vT}
v_add_u32 v{aV1}, 0x10400, v{vT}
s_mov_b32 s{sVM}, 0xffff
s_mov_b32 s{sVM + 1}, 0xffff
''')
    for i in range(4):
        a(f'v_mov_b32 v{RV0 + i}, 0x3f803f80')
        a(f'v_mov_b32 v{RV1 + i}, 0x3f803f80')
    state = {'plan': [(0, 1), (4, 4), (16, 16)], 'done': set()}
    need_tiles(a, 0, state)
    k_read(a, 0)
    v_reads(a, [(0, 0)])
    a.wait_lg('K0')
    a(mfma32(RS[0], RK, RQ, '0'))
    row_max(a, RS[0], vT, vT + 1)
    for i in range(16):
        a(f'v_sub_f32 v{NEGM + i}, 0, v{vT}')
    a(mfma32(RS[0], RK, RQ, NEGM))
    k_read(a, 1)
    for t in range(64):
        attn_step(a, t, 64, state)
    a.wait_lg()
    a(mfma32(RO, RV1, RP + 4, RO))
    fb = label + '_fb'
    fin = label + '_fin'
    a(f'v_mul_f32 v{vT}, 0, v{RO + 8}')
    for i in range(8):
        a(f'v_fma_f32 v{vT}, v{RO + i}, 0, v{vT}')
    a(f'v_cmp_u_f32 vcc, v{vT}, v{vT}')
    if force_fallback:
        a(f's_branch {fb}')
    else:
        a(f's_cbranch_vccnz {fb}')
    a.label(fin)
    a(f'v_rcp_f32 v{vT}, v{RO + 8}')
    a(f'''
s_lshl_b32 s{sT0}, s{sTQ}, 5
s_add_u32 s{sT0}, s{sT0}, s{sH}
s_lshl_b32 s{sT0}, s{sT0}, 10
s_add_u32 s{sT0}, s{sT0}, {OF}
''')
    for i in range(8):
        a(f'v_mul_f32 v{RO + i}, v{vT}, v{RO + i}')
    for i in range(4):
        a(f'v_cvt_pk_bf16_f32 v{RO + i}, v{RO + 2 * i}, v{RO + 2 * i + 1}')
    a.vmem(f'buffer_store_dwordx4 v[{RO}:{RO + 3}], v{vL16}, {srd(S_WS)}, s{sT0} offen', 'st')
    a('s_endpgm')
    a.label(fb)
    fallback(a, fin)
    a.label(end)
    a('s_endpgm')
    return a
```

```python
from common import *

RED = 0
OB = 131072
K3_LDS = 163840

sTILE, sCG, sCT, sKH = 49, 50, 51, 56
sT0, sT1, sT2, sT3 = 52, 53, 54, 55
sHS, sWSRC = 60, 61
sPART = 62

vL16 = 1
vT = 2
vG = 12
vX = 20
vB2 = 24
vS = 28
vXO = 36
ACC = 64
FB = 128
NBUF = 5
LOG2E = 1.4426950408889634


def fl(x):
    import struct
    return hex(struct.unpack('<I', struct.pack('<f', x))[0])


def ffn2_loads(a, s):
    b = FB + 20 * (s % NBUF)
    a(f's_add_u32 s{sT2}, s{sHS}, {s * 1024}')
    a.vmem(f'buffer_load_dwordx4 v[{b}:{b + 3}], v{vL16}, {srd(S_WS)}, s{sT2} offen', f'f{s}')
    a(f's_add_u32 s{sT2}, s{sWSRC}, {s * 16384}')
    for j in range(4):
        d = b + 4 + 4 * j
        a.vmem(f'buffer_load_dwordx4 v[{d}:{d + 3}], v{vL16}, {srd(S_WS)}, s{sT2} offen offset:{j * 1024}', f'f{s}')


def ffn2_mfmas(s):
    b = FB + 20 * (s % NBUF)
    return [mfma32(ACC + 16 * j, b + 4 + 4 * j, b, '0' if s == 0 else None) for j in range(4)]


def side_loads(a):
    a(f'''
s_lshl_b32 s{sT0}, s{sCG}, 8
s_lshl_b32 s{sT1}, s{sCT}, 6
s_add_u32 s{sT0}, s{sT0}, s{sT1}
s_lshl_b32 s{sT1}, s{sKH}, 5
s_add_u32 s{sT0}, s{sT0}, s{sT1}
v_lshrrev_b32 v{vT}, 5, v0
v_lshlrev_b32 v{vT}, 3, v{vT}
v_add_u32 v{vT}, s{sT0}, v{vT}
v_and_b32 v{vT + 1}, 31, v0
v_lshlrev_b32 v{vT + 1}, 10, v{vT + 1}
s_lshl_b32 s{sT1}, s{sTILE}, 15
v_add3_u32 v{vT + 1}, v{vT + 1}, v{vT}, s{sT1}
''')
    a.vmem(f'buffer_load_dwordx2 v[{vB2}:{vB2 + 1}], v{vT}, {srd(S_B2)}, 0 offen', 'side')
    a.vmem(f'buffer_load_dwordx2 v[{vB2 + 2}:{vB2 + 3}], v{vT}, {srd(S_B2)}, 0 offen offset:16', 'side')
    a.vmem(f'buffer_load_dwordx2 v[{vX}:{vX + 1}], v{vT + 1}, {srd(S_X)}, 0 offen', 'side')
    a.vmem(f'buffer_load_dwordx2 v[{vX + 2}:{vX + 3}], v{vT + 1}, {srd(S_X)}, 0 offen offset:16', 'side')
    a(f'''
v_lshrrev_b32 v{vT + 2}, 5, v0
v_lshlrev_b32 v{vT + 2}, 4, v{vT + 2}
v_and_b32 v{vXO}, 31, v0
v_lshlrev_b32 v{vXO}, 10, v{vXO}
s_add_u32 s{sT0}, s{sT0}, s{sT1}
v_add3_u32 v{vXO}, v{vXO}, v{vT + 2}, s{sT0}
''')


def wo_loads(a):
    a(f'''
s_lshl_b32 s{sT0}, s{sKH}, 4
s_add_u32 s{sT0}, s{sT0}, 112
s_lshl_b32 s{sT0}, s{sT0}, 4
s_lshl_b32 s{sT1}, s{sCG}, 2
s_add_u32 s{sT0}, s{sT0}, s{sT1}
s_add_u32 s{sT0}, s{sT0}, s{sCT}
s_lshl_b32 s{sT0}, s{sT0}, 10
s_add_u32 s{sT0}, s{sT0}, {WF}
''')
    for i in range(16):
        d = FB + 4 * i
        a(f's_add_u32 s{sT2}, s{sT0}, {i * 16384}')
        a.vmem(f'buffer_load_dwordx4 v[{d}:{d + 3}], v{vL16}, {srd(S_WS)}, s{sT2} offen', 'wo')


def o_dma(a, extra=''):
    a(f'''
s_lshl_b32 s{sT0}, s{sTILE}, 15
s_lshl_b32 s{sT1}, s{sW}, 12
s_add_u32 s{sT0}, s{sT0}, s{sT1}
s_add_u32 s{sT0}, s{sT0}, {OF}
''')
    for i in range(4):
        a(f's_add_u32 m0, s{sT1}, {OB + i * 1024}')
        a(f's_add_u32 s{sT2}, s{sT0}, {i * 1024}')
        a.vmem(f'buffer_load_dwordx4 v{vL16}, {srd(S_WS)}, s{sT2} offen lds {extra}'.rstrip(), 'ob')


def reduce_write(a):
    a(f's_lshl_b32 s{sT0}, s{sW}, 14')
    a(f'v_add_u32 v{vT}, s{sT0}, v{vL16}')
    for k in range(16):
        a.ds(f'ds_write_b128 v{vT}, v[{ACC + 4 * k}:{ACC + 4 * k + 3}] offset:{k * 1024}', 'rw')


def reduce_read_gate(a):
    a(f'''
s_lshl_b32 s{sT0}, s{sCT}, 12
s_lshl_b32 s{sT1}, s{sKH}, 11
s_add_u32 s{sT0}, s{sT0}, s{sT1}
v_add_u32 v{vT}, s{sT0}, v{vL16}
v_add_u32 v{vT + 1}, 0x10000, v{vT}
''')
    t = ACC
    for w in range(8):
        for e in range(2):
            ar = vT if w < 4 else vT + 1
            d = t + 8 * w + 4 * e
            a.ds(f'ds_read_b128 v[{d}:{d + 3}], v{ar} offset:{(w % 4) * 16384 + e * 1024}', f'r{w}')
    a.wait_vm('side')
    for e in range(2):
        for h in range(2):
            a(f'v_lshlrev_b32 v{vG + 4 * e + 2 * h}, 16, v{vB2 + 2 * e + h}')
            a(f'v_and_b32 v{vG + 4 * e + 2 * h + 1}, 0xffff0000, v{vB2 + 2 * e + h}')
    for w in range(8):
        a.wait_lg(f'r{w}')
        for k in range(8):
            a(f'v_add_f32 v{vG + k}, v{vG + k}, v{t + 8 * w + k}')
    for k in range(8):
        a(f'v_mul_f32 v{t + k}, {fl(-LOG2E)}, v{vG + k}')
    for k in range(8):
        a(f'v_exp_f32 v{t + k}, v{t + k}')
    for k in range(8):
        a(f'v_add_f32 v{t + k}, 1.0, v{t + k}')
    for k in range(8):
        a(f'v_rcp_f32 v{t + k}, v{t + k}')
    for k in range(8):
        a(f'v_mul_f32 v{vG + k}, v{vG + k}, v{t + k}')


def wo_gemm(a):
    a(f's_lshl_b32 s{sT0}, s{sKH}, 14')
    a(f's_add_u32 s{sT0}, s{sT0}, {OB}')
    a(f'v_add_u32 v{vT}, s{sT0}, v{vL16}')
    bb = 192
    for i in range(16):
        a.ds(f'ds_read_b128 v[{bb + 4 * i}:{bb + 4 * i + 3}], v{vT} offset:{i * 1024}', f'o{i}')
    a.wait_vm('wo')
    for i in range(16):
        a.wait_lg(f'o{i}')
        a(mfma32(ACC, FB + 4 * i, bb + 4 * i, '0' if i == 0 else None))


def exchange(a, label):
    k1 = label + '_kh1'
    j = label + '_khj'
    a(f'''
s_lshl_b32 s{sT0}, s{sW}, 11
v_add_u32 v{vT}, s{sT0}, v{vL16}
s_xor_b32 s{sT0}, s{sW}, 4
s_lshl_b32 s{sT0}, s{sT0}, 11
v_add_u32 v{vT + 1}, s{sT0}, v{vL16}
s_cmp_eq_u32 s{sKH}, 1
s_cbranch_scc1 {k1}
''')
    for kh in (0, 1):
        if kh == 1:
            a.label(k1)
        send = ACC + (8 if kh == 0 else 0)
        keep = ACC + (0 if kh == 0 else 8)
        a(f'ds_write_b128 v{vT}, v[{send}:{send + 3}]')
        a(f'ds_write_b128 v{vT}, v[{send + 4}:{send + 7}] offset:1024')
        for k in range(8):
            a(f'v_mov_b32 v{vS + k}, v{keep + k}')
        if kh == 0:
            a(f's_branch {j}')
    a.label(j)
    a('s_waitcnt lgkmcnt(0)')
    a('s_barrier')
    t = ACC + 16
    a(f'ds_read_b128 v[{t}:{t + 3}], v{vT + 1}')
    a(f'ds_read_b128 v[{t + 4}:{t + 7}], v{vT + 1} offset:1024')
    return t


def final(a, t):
    u = ACC + 32
    for k in range(4):
        a(f'v_lshlrev_b32 v{u + 2 * k}, 16, v{vX + k}')
        a(f'v_and_b32 v{u + 2 * k + 1}, 0xffff0000, v{vX + k}')
    a('s_waitcnt lgkmcnt(0)')
    for k in range(8):
        a(f'v_add_f32 v{vS + k}, v{vS + k}, v{t + k}')
    for k in range(8):
        a(f'v_fma_f32 v{vS + k}, v{vS + k}, v{vG + k}, v{u + k}')
    for k in range(4):
        a(f'v_cvt_pk_bf16_f32 v{vS + k}, v{vS + 2 * k}, v{vS + 2 * k + 1}')
    a(f'v_permlane32_swap_b32 v{vS}, v{vS + 2}')
    a(f'v_permlane32_swap_b32 v{vS + 1}, v{vS + 3}')
    a.vmem(f'buffer_store_dwordx4 v[{vS}:{vS + 3}], v{vXO}, {srd(S_OUT)}, 0 offen', 'st')


def ids(a):
    a(f'''
s_lshl_b32 s{sT0}, s{sXCD}, 3
s_and_b32 s{sT1}, s{sSLOT}, 7
s_add_u32 s{sTILE}, s{sT0}, s{sT1}
s_lshr_b32 s{sCG}, s{sSLOT}, 3
s_and_b32 s{sCT}, s{sW}, 3
s_lshr_b32 s{sKH}, s{sW}, 2
s_mul_i32 s{sT0}, s{sW}, 14
s_mul_i32 s{sHS}, s{sTILE}, 112
s_add_u32 s{sHS}, s{sHS}, s{sT0}
s_lshl_b32 s{sHS}, s{sHS}, 10
s_add_u32 s{sHS}, s{sHS}, {HF}
s_lshl_b32 s{sWSRC}, s{sT0}, 4
s_lshl_b32 s{sT1}, s{sCG}, 2
s_add_u32 s{sWSRC}, s{sWSRC}, s{sT1}
s_lshl_b32 s{sWSRC}, s{sWSRC}, 10
s_add_u32 s{sWSRC}, s{sWSRC}, {WF}
''')


def gen_k3(label):
    a = Asm()
    end = label + '_end'
    prologue(a, end, None)
    build_srds(a, ['ws', 'x', 'b2', 'out'])
    a(f'v_lshlrev_b32 v{vL16}, 4, v0')
    ids(a)
    for s in range(NBUF):
        ffn2_loads(a, s)
    o_dma(a)
    side_loads(a)
    for s in range(14):
        a.wait_vm(f'f{s}')
        for m in ffn2_mfmas(s):
            a(m)
        if s + NBUF < 14:
            ffn2_loads(a, s + NBUF)
    wo_loads(a)
    reduce_write(a)
    a.wait_vm('ob')
    a.wait_lg()
    a('s_barrier')
    reduce_read_gate(a)
    wo_gemm(a)
    a.wait_lg()
    a('s_barrier')
    t = exchange(a, label)
    final(a, t)
    a('s_endpgm')
    a.label(end)
    a('s_endpgm')
    return a
```

```python
import sys
from common import *
import k1

def build(kernels, out):
    t = HEADER_COMMENT
    for label, a, lds, block in kernels:
        t += f'; @launch kernel={label} grid=(256,1,1) block=({block},1,1) lds={lds}\n'
    t += '.amdgcn_target "amdgcn-amd-amdhsa--gfx950"\n.text\n'
    for label, a, lds, block in kernels:
        t += kernel_text(label, a.finalize())
        print(label, 'instructions', len(a.ins), 'nops inserted', a.nops_inserted, file=sys.stderr)
    t += '.section .rodata,"a"\n'
    for label, a, lds, block in kernels:
        t += descriptor(label)
    open(out, 'w').write(t)

if __name__ == '__main__':
    which = sys.argv[1]
    out = sys.argv[2]
    ks = []
    if '1' in which:
        ks.append(('k1_kernel', k1.gen_k1('k1_kernel'), k1.K1_LDS, 512))
    if '2' in which:
        import k2
        ks.append(('k2_kernel', k2.gen_k2('k2_kernel'), k2.K2_LDS, 512))
    if '3' in which:
        import k3
        ks.append(('k3_kernel', k3.gen_k3('k3_kernel'), k3.K3_LDS, 512))
    build(ks, out)
```

```python
from asmb import *

NAME = "recurrent_scan__softmax_full_mha__mixer_channel_mlp__prompt"

QF = 0
KV = 2 << 20
HF = 6 << 20
WF = 13 << 20
OF = 16 << 20
FL = 18 << 20
WS_BYTES = 20 << 20

S_X, S_WQ, S_W1, S_WS, S_W2, S_WO, S_B1, S_B2, S_OUT, S_DBG = 4, 8, 12, 16, 20, 24, 28, 32, 36, 40
sW, sTT, sG, sXCD, sSLOT = 44, 45, 46, 47, 48
KA = 68


def srd(n):
    return f's[{n}:{n + 3}]'


def mfma32(d, a_, b, c=None):
    cs = f'v[{d}:{d + 15}]' if c is None else (c if isinstance(c, str) else f'v[{c}:{c + 15}]')
    return f'v_mfma_f32_32x32x16_bf16 v[{d}:{d + 15}], v[{a_}:{a_ + 3}], v[{b}:{b + 3}], {cs}'


def mfma16(d, a_, b, c=None):
    cs = f'v[{d}:{d + 3}]' if c is None else (c if isinstance(c, str) else f'v[{c}:{c + 3}]')
    return f'v_mfma_f32_16x16x32_bf16 v[{d}:{d + 3}], v[{a_}:{a_ + 3}], v[{b}:{b + 3}], {cs}'


def emit(a, x):
    if callable(x):
        x()
    else:
        a(x)


def weave(a, mains, fillers, lead=0):
    fillers = list(fillers)
    n = len(mains)
    done = 0
    for _ in range(min(lead, len(fillers))):
        emit(a, fillers[done])
        done += 1
    rest = len(fillers) - done
    base = done
    for i, m in enumerate(mains):
        emit(a, m)
        upto = base + (rest * (i + 1)) // n
        while done < upto:
            emit(a, fillers[done])
            done += 1
    while done < len(fillers):
        emit(a, fillers[done])
        done += 1


def prologue(a, end_label, srds):
    a(f'''
s_load_dwordx16 s[{KA}:{KA + 15}], s[0:1], 0
s_load_dwordx4 s[{KA + 16}:{KA + 19}], s[0:1], 64
s_load_dwordx2 s[{KA + 20}:{KA + 21}], s[0:1], 80
s_cmp_ge_u32 s2, 256
s_cbranch_scc1 {end_label}
v_lshrrev_b32 v1, 6, v0
v_and_b32 v0, 63, v0
v_readfirstlane_b32 s{sW}, v1
s_and_b32 s{sXCD}, s2, 7
s_lshr_b32 s{sSLOT}, s2, 3
''')
    a(f's_and_b32 s{sTT}, s{sW}, 3')
    a(f's_lshr_b32 s{sG}, s{sW}, 2')


SRD_INFO = {
    'x': (S_X, 0, 2048 * 512 * 2),
    'wq': (S_WQ, 2, 512 * 1536 * 2),
    'wo': (S_WO, 4, 512 * 512 * 2),
    'w1': (S_W1, 8, 512 * 1792 * 2),
    'b1': (S_B1, 10, 1792 * 2),
    'w2': (S_W2, 12, 1792 * 512 * 2),
    'b2': (S_B2, 14, 512 * 2),
    'out': (S_OUT, 16, 2048 * 512 * 2),
    'dbg': (S_DBG, 18, 256),
    'ws': (S_WS, 20, WS_BYTES),
}


def build_srds(a, names):
    for n in names:
        r, o, b = SRD_INFO[n]
        a(f's_mov_b32 s{r + 2}, {hex(b)}')
        a(f's_mov_b32 s{r + 3}, 0x20000')
    a('s_waitcnt lgkmcnt(0)')
    for n in names:
        r, o, b = SRD_INFO[n]
        a(f's_mov_b32 s{r}, s{KA + o}')
        a(f's_mov_b32 s{r + 1}, s{KA + o + 1}')


def kernel_text(label, body, nvgpr=256):
    head = f'''.globl {label}
.p2align 8
.type {label},@function
{label}:
'''
    return head + body


def descriptor(label, nvgpr=256):
    acc = (nvgpr + 3) // 4 * 4
    return f'''.p2align 6
.amdhsa_kernel {label}
  .amdhsa_next_free_vgpr {nvgpr}
  .amdhsa_next_free_sgpr 102
  .amdhsa_accum_offset {acc}
  .amdhsa_group_segment_fixed_size 0
  .amdhsa_kernarg_size 88
  .amdhsa_user_sgpr_count 2
  .amdhsa_user_sgpr_kernarg_segment_ptr 1
  .amdhsa_system_sgpr_workgroup_id_x 1
.end_amdhsa_kernel
'''


HEADER_COMMENT = open('cdna_kernels/' + NAME + '.s.ref').read().split('; Override launch')[0]


TS_BASE = 19 << 20
STAMP = False
NSLOT = 10


def stamp(a, slot, cyc=None):
    if not STAMP:
        return
    if STAMP == 'cyc':
        a(f's_memtime s[{68 + 2 * slot}:{69 + 2 * slot}]')
        if cyc is not None:
            a(f's_memrealtime s[{88 + 2 * cyc}:{89 + 2 * cyc}]')
    else:
        a(f's_memrealtime s[{68 + 2 * slot}:{69 + 2 * slot}]')
        if cyc is not None:
            a(f's_memtime s[{88 + 2 * cyc}:{89 + 2 * cyc}]')
    a('s_waitcnt lgkmcnt(0)')
    a.lg = []


def stamp_flush(a, kidx):
    if not STAMP:
        return
    a('s_waitcnt vmcnt(0)')
    a(f's_lshl_b32 s92, s2, 3')
    a(f's_add_u32 s92, s92, s{sW}')
    a(f's_lshl_b32 s92, s92, 7')
    a(f's_add_u32 s92, s92, {TS_BASE + kidx * 256 * 8 * 128}')
    for k in range(NSLOT):
        a(f'v_mov_b32 v2, s{68 + 2 * k}')
        a(f'v_mov_b32 v3, 0')
        a(f'buffer_store_dword v2, v3, {srd(S_WS)}, s92 offen offset:{4 * k}')
    for k in range(2):
        a(f'v_mov_b32 v2, s{88 + 2 * k}')
        a(f'buffer_store_dword v2, v3, {srd(S_WS)}, s92 offen offset:{4 * (NSLOT + k)}')
```

```python
from common import *

XR = 0
WR = 81920
ST = 143360
CSP = ST + 4096
SCR = CSP + 3584
K1_LDS = SCR + 2048

sTB, sHP, sF0 = 49, 50, 51
sT0, sT1, sT2, sT3 = 52, 53, 54, 55
sMASK = 60
sMX, sMW, sM2 = 61, 62, 63
sPB = 64
sT = 65
sQO, sKO, sHO = 66, 67, 56
sPF, sPS = 57, 58

vXD = 4
vWD, vW1D = 6, 7
aX = 8
aW = 12
vSX0, vSQ0, vSX1, vSQ1 = 16, 17, 18, 19
vU = 20
vCS0, vCS1 = 24, 28
vCSA, vCSB = 32, 36
vSEL = 40
vTMP = 44
AC_A = 48
AC_Q, AC_K = 64, 80
AC_B = 64
BUFA, BUFB = 96, 112
XF = 128
vL16 = 1
vM, vR = 2, 3
vRR, vMRR = 4, 5
vB1A, vB1B = 16, 17

C_Q = 0.25 * 1.4426950408889634
C1 = -2.302208198144325
C2 = C1 * 0.044715


EXP = set()
HPX = 0
SC = ''
HOOKS = {}
PREBAR = {}


def X(c, j):
    return XF + 16 * c + 4 * j


def fl(x):
    import struct
    return hex(struct.unpack('<I', struct.pack('<f', x))[0])


def setup(a):
    a.comment('--- K1 ids and lane constants')
    a(f'''
s_and_b32 s{sT0}, s{sXCD}, 1
s_lshl_b32 s{sT0}, s{sT0}, 3
s_and_b32 s{sT1}, s{sSLOT}, 7
s_add_u32 s{sTB}, s{sT0}, s{sT1}
s_lshr_b32 s{sT0}, s{sXCD}, 1
s_lshl_b32 s{sT0}, s{sT0}, 2
s_lshr_b32 s{sT1}, s{sSLOT}, 3
s_add_u32 s{sHP}, s{sT0}, s{sT1}
s_xor_b32 s{sHP}, s{sHP}, {HPX}
s_mul_i32 s{sT0}, s{sHP}, 7
s_and_b32 s{sT1}, s{sHP}, 1
s_add_u32 s{sT0}, s{sT0}, s{sT1}
s_lshr_b32 s{sF0}, s{sT0}, 1
s_and_b32 s{sT1}, s{sT1}, s{sG}
s_lshl_b32 s{sT1}, s{sT1}, 6
s_sub_u32 s{sPB}, 64, s{sT1}
s_lshl_b32 s{sT}, s{sTB}, 2
s_add_u32 s{sT}, s{sT}, s{sTT}
s_mov_b32 s{sMASK}, 0xffff0000
s_lshl_b32 s{sMX}, s{sW}, 11
s_lshl_b32 s{sMW}, s{sTT}, 10
s_add_u32 s{sMW}, s{sMW}, {WR}
s_lshl_b32 s{sM2}, s{sG}, 13
s_lshl_b32 s{sT0}, s{sTT}, 11
s_add_u32 s{sM2}, s{sM2}, s{sT0}
''')
    a(f'''
v_lshrrev_b32 v1, 3, v0
v_lshrrev_b32 v2, 4, v0
v_and_b32 v3, 7, v0
v_xor_b32 v2, v2, v3
s_lshl_b32 s{sT0}, s{sTB}, 7
s_lshl_b32 s{sT1}, s{sW}, 4
s_add_u32 s{sT0}, s{sT0}, s{sT1}
v_add_u32 v1, s{sT0}, v1
v_lshlrev_b32 v1, 10, v1
v_lshlrev_b32 v2, 4, v2
v_add_u32 v{vXD}, v1, v2
v_xor_b32 v2, 64, v2
v_add_u32 v1, 0x2000, v1
v_add_u32 v{vXD + 1}, v1, v2
''')
    a(f'''
v_lshrrev_b32 v1, 2, v0
v_and_b32 v2, 3, v0
v_lshlrev_b32 v2, 4, v2
s_lshl_b32 s{sT0}, s{sTT}, 4
v_add_u32 v3, s{sT0}, v1
v_mul_u32_u24 v3, 0xc00, v3
s_lshl_b32 s{sT0}, s{sHP}, 6
s_sub_u32 s{sT1}, 1, s{sG}
s_lshl_b32 s{sT1}, s{sT1}, 11
s_add_u32 s{sT0}, s{sT0}, s{sT1}
v_add3_u32 v{vWD}, v3, v2, s{sT0}
s_lshl_b32 s{sT0}, s{sTT}, 5
v_add_u32 v3, s{sT0}, v1
v_mul_u32_u24 v3, 0xe00, v3
s_lshl_b32 s{sT0}, s{sG}, 1
s_add_u32 s{sT0}, s{sT0}, s{sF0}
s_lshl_b32 s{sT0}, s{sT0}, 6
v_add3_u32 v{vW1D}, v3, v2, s{sT0}
''')


def setup2(a):
    a.comment('--- LDS read addresses')
    a(f'''
v_and_b32 v1, 31, v0
v_lshrrev_b32 v2, 5, v0
v_bfe_u32 v3, v0, 1, 3
v_xor_b32 v2, v2, v3
v_lshlrev_b32 v2, 4, v2
s_lshl_b32 s{sT0}, s{sTT}, 5
v_add_u32 v1, s{sT0}, v1
v_lshlrev_b32 v1, 7, v1
''')
    for j in range(4):
        a(f's_xor_b32 s{sT0}, s{sTT}, {j}')
        a(f's_lshl_b32 s{sT0}, s{sT0}, 5')
        a(f'v_xor_b32 v3, s{sT0}, v2')
        a(f'v_add_u32 v{aX + j}, v1, v3')
    a(f'''
v_lshrrev_b32 v1, 5, v0
v_lshlrev_b32 v1, 9, v1
v_bfe_u32 v2, v0, 2, 2
v_lshlrev_b32 v2, 6, v2
v_add_u32 v1, v1, v2
v_bfe_u32 v2, v0, 4, 1
v_lshlrev_b32 v2, 5, v2
v_add_u32 v1, v1, v2
v_and_b32 v2, 1, v0
v_lshlrev_b32 v2, 4, v2
v_add_u32 v1, v1, v2
v_and_b32 v2, 2, v0
v_lshlrev_b32 v2, 2, v2
v_add_u32 v1, v1, v2
''')
    for j in range(4):
        a(f's_xor_b32 s{sT0}, s{sTT}, {j}')
        a(f's_lshl_b32 s{sT0}, s{sT0}, 10')
        a(f's_add_u32 s{sT0}, s{sT0}, {WR}')
        a(f'v_add_u32 v{aW + j}, s{sT0}, v1')
    a(f'''
v_and_b32 v1, 15, v0
v_bfe_u32 v2, v0, 4, 1
v_cmp_eq_u32 vcc, v1, v2
v_mov_b32 v1, 0x3f803f80
v_cndmask_b32 v{vSEL}, 0, v1, vcc
v_cndmask_b32 v{vSEL + 1}, 0, v1, vcc
v_cndmask_b32 v{vSEL + 2}, 0, v1, vcc
v_cndmask_b32 v{vSEL + 3}, 0, v1, vcc
v_mov_b32 v{vSX0}, 0
v_mov_b32 v{vSQ0}, 0
v_mov_b32 v{vSX1}, 0
v_mov_b32 v{vSQ1}, 0
v_lshlrev_b32 v{vL16}, 4, v0
''')


def xslot(n):
    return (n % 5) * 16384


def dma_ops(a, n, g):
    ops = []
    tag = f'c{n}'
    if 'nodma' in EXP and n >= 5:
        return ops

    def one(srdn, voff, m0_s, m0_imm, soff_fn):
        def f():
            a(f's_add_u32 m0, s{m0_s}, {m0_imm}')
            so = soff_fn()
            a.vmem(f'buffer_load_dwordx4 v{voff}, {srd(srdn)}, {so} offen lds', tag)
        return f

    def const_soff(val):
        def f():
            a(f's_mov_b32 s{sT2}, {val}')
            return f's{sT2}'
        return f

    if n < 8:
        for q in range(2):
            ops.append(one(S_X, vXD + q, sMX, xslot(n) + q * 1024, const_soff(n * 128)))
        wb = (n % 5) * 12288
        if g == 0:
            ops.append(one(S_WQ, vWD, sMW, wb + 2 * 4096, const_soff(n * 196608)))
        else:
            ops.append(one(S_WQ, vWD, sMW, wb, const_soff(n * 196608)))
            ops.append(one(S_WQ, vWD, sMW, wb + 4096, const_soff(n * 196608 + 1024)))
    elif n < 16:
        ps, C = (n - 8) // 4, (n - 8) % 4
        for q in range(2):
            val = C * 458752 + q * 57344
            if ps == 0:
                sf = const_soff(val)
            else:
                def sf(val=val):
                    a(f's_add_u32 s{sT2}, s{sPB}, {val}')
                    return f's{sT2}'
            ops.append(one(S_W1, vW1D, sM2, xslot(n) + q * 1024, sf))
    return ops


def tr_pair(a, d, areg, off, tag):
    if 'notr' in EXP:
        return
    a.ds(f'ds_read_b64_tr_b16 v[{d}:{d + 1}], v{areg} offset:{off}', tag)
    a.ds(f'ds_read_b64_tr_b16 v[{d + 2}:{d + 3}], v{areg} offset:{off + 256}', tag)


def stat_ops(xreg, k):
    t = vU + 2 * (k % 2)
    return [f'v_and_b32 v{t}, s{sMASK}, v{xreg}',
            f'v_lshlrev_b32 v{t + 1}, 16, v{xreg}',
            f'v_fmac_f32 v{vSQ0}, v{t}, v{t}',
            f'v_fmac_f32 v{vSQ1}, v{t + 1}, v{t + 1}',
            f'v_add_f32 v{vSX0}, v{t}, v{vSX0}',
            f'v_add_f32 v{vSX1}, v{t + 1}, v{vSX1}']


def p1_frag(g, j, p):
    base = BUFA if j < 2 else BUFB
    return base + 8 * (j % 2) + 4 * p


def p1_reads(a, n, g, js, tag):
    xo = xslot(n) if n % 5 < 4 else 0
    for j in js:
        a.ds(f'ds_read_b128 v[{X(n, j)}:{X(n, j) + 3}], v{aX + j} offset:{xo}', tag)
        wb = (n % 5) * 12288
        panels = (0, 1) if g == 0 else (2,)
        for pi, p in enumerate(panels):
            tr_pair(a, p1_frag(g, j, pi), aW + j, wb + p * 4096, tag)


def p1_mfmas(n, g, js):
    out = []
    for j in js:
        first = (n == 0 and j == 0)
        if g == 0:
            out.append(mfma32(AC_Q, p1_frag(0, j, 0), X(n, j), '0' if first else None))
            out.append(mfma32(AC_K, p1_frag(0, j, 1), X(n, j), '0' if first else None))
            if j == 0 and 'nom16' not in EXP:
                out.append(mfma16(vCS0, p1_frag(0, 0, 0), vSEL, '0' if n == 0 else None))
                out.append(mfma16(vCS1, p1_frag(0, 0, 1), vSEL, '0' if n == 0 else None))
        else:
            out.append(mfma32(AC_Q, X(n, j), p1_frag(1, j, 0), '0' if first else None))
            if j == 0 and 'nom16' not in EXP:
                out.append(mfma16(vCS0, p1_frag(1, 0, 0), vSEL, '0' if n == 0 else None))
    return out


def p1_stats(n, g, js):
    ops = []
    k = 0
    if 'nostat' in EXP:
        return ops
    for j in js:
        for r in ((0, 1) if g == 0 else (2, 3)):
            ops += stat_ops(X(n, j) + r, k)
            k += 1
    return ops


def rebase(a, regs, n, delta=65536):
    if n % 5 == 4:
        for r in regs:
            a(f'v_add_u32 v{r}, {hex(delta)}, v{r}')
    if n % 5 == 0 and n > 0:
        for r in regs:
            a(f'v_subrev_u32 v{r}, {hex(delta)}, v{r}')


def p1_read_ops(a, n, g, j):
    xo = xslot(n) if n % 5 < 4 else 0
    tag = f'P{n}_{j}'
    ops = [lambda: a.ds(f'ds_read_b128 v[{X(n, j)}:{X(n, j) + 3}], v{aX + j} offset:{xo}', tag)]
    wb = (n % 5) * 12288
    panels = (0, 1) if g == 0 else (2,)
    for pi, p in enumerate(panels):
        d = p1_frag(g, j, pi)
        off = wb + p * 4096
        if 'notr' in EXP:
            continue
        ops.append(lambda d=d, off=off: a.ds(f'ds_read_b64_tr_b16 v[{d}:{d + 1}], v{aW + j} offset:{off}', tag))
        ops.append(lambda d=d, off=off: a.ds(f'ds_read_b64_tr_b16 v[{d + 2}:{d + 3}], v{aW + j} offset:{off + 256}', tag))
    return ops


def p1_stat_reg(n, g, j, k):
    if 'nostat' in EXP:
        return []
    r = (0, 1)[k] if g == 0 else (2, 3)[k]
    return stat_ops(X(n, j) + r, k)


def run_gaps(a, items):
    for it in items:
        if isinstance(it, (list, tuple)):
            for x in it:
                emit(a, x)
        else:
            emit(a, it)


def p1_b_phase(a, n, g, ra, dm):
    w = lambda j: (lambda: a.wait_lg(f'P{n}_{j}'))
    S = lambda j, k: p1_stat_reg(n, g, j, k)
    d = list(dm) + [[]] * 4
    if g == 0:
        q = lambda j: mfma32(AC_Q, p1_frag(0, j, 0), X(n, j))
        k_ = lambda j: mfma32(AC_K, p1_frag(0, j, 1), X(n, j))
        run_gaps(a, [w(2), q(2), ra[0][:3], S(2, 0),
                     k_(2), ra[0][3:], d[0], S(2, 1),
                     w(3), q(3), ra[1][:3], S(3, 0),
                     k_(3), ra[1][3:], S(3, 1)])
    else:
        v_ = lambda j: mfma32(AC_Q, X(n, j), p1_frag(1, j, 0))
        run_gaps(a, [w(2), v_(2), ra[0], S(2, 0), d[0], S(2, 1),
                     w(3), v_(3), ra[1], S(3, 0), d[1], S(3, 1)])


def p1_a_phase(a, n, g, rb, dm):
    w = lambda j: (lambda: a.wait_lg(f'P{n}_{j}'))
    S = lambda j, k: p1_stat_reg(n, g, j, k)
    d = list(dm) + [[]] * 4
    z = lambda first: '0' if first else None
    m16 = 'nom16' not in EXP
    if g == 0:
        q = lambda j: mfma32(AC_Q, p1_frag(0, j, 0), X(n, j), z(n == 0 and j == 0))
        k_ = lambda j: mfma32(AC_K, p1_frag(0, j, 1), X(n, j), z(n == 0 and j == 0))
        run_gaps(a, [w(0), q(0), rb[0][:3], S(0, 0),
                     k_(0), rb[0][3:], S(0, 1),
                     [mfma16(vCS0, p1_frag(0, 0, 0), vSEL, z(n == 0))] if m16 else [], d[0],
                     [mfma16(vCS1, p1_frag(0, 0, 1), vSEL, z(n == 0))] if m16 else [], rb[1][:3],
                     w(1), q(1), rb[1][3:], S(1, 0),
                     k_(1), d[1], S(1, 1)])
    else:
        v_ = lambda j: mfma32(AC_Q, X(n, j), p1_frag(1, j, 0), z(n == 0 and j == 0))
        run_gaps(a, [w(0), v_(0), rb[0], S(0, 0),
                     [mfma16(vCS0, p1_frag(1, 0, 0), vSEL, z(n == 0))] if m16 else [], d[0], S(0, 1),
                     w(1), v_(1), rb[1], S(1, 0), d[1], S(1, 1)])


def split_dma(dm, g, p1type):
    h = len(dm) // 2 if not (g == 0 and len(dm) == 3) else 1
    return dm[:h], dm[h:]


def chunk_for_stage(n):
    return n + 3 if n >= 2 else None


def p1_stage(a, n, g):
    a.comment(f'--- P1 stage {n} g={g}')
    a.wait_vm(f'c{n}')
    if n in PREBAR:
        PREBAR[n](a, g)
    if 'nobar' not in EXP:
        a('s_barrier')
    if n in HOOKS:
        HOOKS[n](a, g)
    rebase(a, [aX + j for j in range(4)], n)
    c = chunk_for_stage(n)
    dm = dma_ops(a, c, g) if c is not None else []
    db, da = split_dma(dm, g, True)
    ra = [p1_read_ops(a, n, g, 0), p1_read_ops(a, n, g, 1)]
    if n > 0:
        p1_b_phase(a, n - 1, g, ra, db)
    else:
        run_gaps(a, ra)
    rb = [p1_read_ops(a, n, g, 2), p1_read_ops(a, n, g, 3)]
    p1_a_phase(a, n, g, rb, da)


def write_cs_partials(a, accs_panels):
    a(f'''
v_and_b32 v{vTMP}, 15, v0
v_lshlrev_b32 v{vTMP}, 8, v{vTMP}
v_lshrrev_b32 v{vTMP + 1}, 4, v0
v_lshlrev_b32 v{vTMP + 1}, 6, v{vTMP + 1}
s_lshl_b32 s{sT0}, s{sTT}, 2
s_add_u32 s{sT0}, s{sT0}, {CSP}
v_add3_u32 v{vTMP}, v{vTMP}, v{vTMP + 1}, s{sT0}
s_mov_b32 s{sT0}, 0x00030003
s_mov_b32 s{sT1}, 0x00030003
s_mov_b64 exec, s[{sT0}:{sT1}]
''')
    for acc, off in accs_panels:
        for r in range(4):
            a.ds(f'ds_write_b32 v{vTMP}, v{acc + r} offset:{off + r * 16}', 'w')
    a('s_mov_b64 exec, -1')


def p1_epilogue(a, g):
    a.comment(f'--- P1 epilogue g={g}')
    p1_b_phase(a, 7, g, [[], []], [])
    a(f'''
v_add_f32 v{vSX0}, v{vSX0}, v{vSX1}
v_add_f32 v{vSQ0}, v{vSQ0}, v{vSQ1}
v_and_b32 v{vU}, 31, v0
v_lshlrev_b32 v{vU}, 5, v{vU}
s_lshl_b32 s{sT0}, s{sTT}, 10
s_add_u32 s{sT0}, s{sT0}, {ST}
v_add_u32 v{vU}, s{sT0}, v{vU}
v_lshrrev_b32 v{vU + 1}, 5, v0
v_lshlrev_b32 v{vU + 1}, 3, v{vU + 1}
v_add3_u32 v{vU + 1}, v{vU + 1}, v{vU}, {16 * g}
''')
    a.ds(f'ds_write_b64 v{vU + 1}, v[{vSX0}:{vSQ0}]', 'w')
    write_cs_partials(a, [(vCS0, 0), (vCS1, 512)] if g == 0 else [(vCS0, 1024)])
    a.wait_lg()
    a('s_barrier')
    prep_issue(a)
    a(f'''
v_and_b32 v{vTMP + 2}, 31, v0
v_and_b32 v{vTMP + 3}, 19, v{vTMP + 2}
v_bfe_u32 v{vCS0}, v0, 2, 1
v_lshlrev_b32 v{vCS0}, 3, v{vCS0}
v_bfe_u32 v{vCS0 + 1}, v0, 3, 1
v_lshlrev_b32 v{vCS0 + 1}, 2, v{vCS0 + 1}
v_add3_u32 v{vTMP + 3}, v{vTMP + 3}, v{vCS0}, v{vCS0 + 1}
v_lshlrev_b32 v{vTMP + 3}, 1, v{vTMP + 3}
s_lshl_b32 s{sT0}, s{sG}, 1
s_add_u32 s{sT0}, s{sT0}, s{sF0}
s_lshl_b32 s{sT0}, s{sT0}, 6
s_add_u32 s{sT1}, s{sT0}, s{sPB}
''')
    a.vmem(f'buffer_load_ushort v{vB1A}, v{vTMP + 3}, {srd(S_B1)}, s{sT0} offen', 'b1')
    a.vmem(f'buffer_load_ushort v{vB1B}, v{vTMP + 3}, {srd(S_B1)}, s{sT1} offen', 'b1')
    t = BUFA
    a.ds(f'ds_read_b128 v[{t}:{t + 3}], v{vU}', 's')
    a.ds(f'ds_read_b128 v[{t + 4}:{t + 7}], v{vU} offset:16', 's')
    a(f'''
v_and_b32 v{vU + 2}, 31, v0
v_lshlrev_b32 v{vU + 2}, 4, v{vU + 2}
''')
    if g == 0:
        a(f'''
v_lshrrev_b32 v{vU + 3}, 5, v0
v_lshlrev_b32 v{vU + 3}, 9, v{vU + 3}
v_add_u32 v{vU + 2}, v{vU + 2}, v{vU + 3}
v_add_u32 v{vU + 2}, {CSP}, v{vU + 2}
''')
        a.ds(f'ds_read_b128 v[{t + 8}:{t + 11}], v{vU + 2}', 'c')
    else:
        a(f'v_add_u32 v{vU + 2}, {CSP}, v{vU + 2}')
        a.ds(f'ds_read_b128 v[{t + 8}:{t + 11}], v{vU + 2} offset:1024', 'c')
    a.wait_lg('s')
    a(f'''
v_add_f32 v{t}, v{t}, v{t + 2}
v_add_f32 v{t + 1}, v{t + 1}, v{t + 3}
v_add_f32 v{t + 4}, v{t + 4}, v{t + 6}
v_add_f32 v{t + 5}, v{t + 5}, v{t + 7}
v_add_f32 v{t}, v{t}, v{t + 4}
v_add_f32 v{t + 1}, v{t + 1}, v{t + 5}
v_mul_f32 v{vM}, {fl(1 / 512)}, v{t}
v_mul_f32 v{t + 1}, {fl(1 / 512)}, v{t + 1}
v_fma_f32 v{t + 1}, -v{vM}, v{vM}, v{t + 1}
v_max_f32 v{t + 1}, 0, v{t + 1}
v_add_f32 v{t + 2}, {fl(1e-5)}, v{t + 1}
v_rsq_f32 v{vR}, v{t + 2}
''')
    a.wait_lg('c')
    a(f'''
v_add_f32 v{t + 8}, v{t + 8}, v{t + 9}
v_add_f32 v{t + 10}, v{t + 10}, v{t + 11}
v_mul_f32 v{t + 2}, v{vR}, v{vR}
v_mul_f32 v{t + 2}, v{t + 2}, v{t + 1}
v_add_f32 v{t + 2}, {fl(1e-5)}, v{t + 2}
v_rsq_f32 v{t + 2}, v{t + 2}
v_add_f32 v{t + 8}, v{t + 8}, v{t + 10}
v_mul_f32 v{vRR}, v{vR}, v{t + 2}
v_mul_f32 v{vMRR}, v{vM}, v{vRR}
''')
    a(f'''
s_lshl_b32 s{sT0}, s{sW}, 8
s_add_u32 s{sT0}, s{sT0}, {SCR}
v_lshlrev_b32 v{vU}, 2, v0
v_add_u32 v{vU}, s{sT0}, v{vU}
v_lshrrev_b32 v{vU + 1}, 5, v0
v_lshlrev_b32 v{vU + 1}, 4, v{vU + 1}
v_add_u32 v{vU + 1}, s{sT0}, v{vU + 1}
''')
    a(f'''
s_lshl_b32 s{sT0}, s{sHP}, 17
s_lshl_b32 s{sT1}, s{sT}, 10
s_add_u32 s{sQO}, s{sT0}, s{sT1}
s_lshl_b32 s{sT0}, s{sHP}, 18
s_lshl_b32 s{sT1}, s{sT}, 11
s_add_u32 s{sKO}, s{sT0}, s{sT1}
s_add_u32 s{sKO}, s{sKO}, {KV}
''')
    if g == 0:
        a.ds(f'ds_write_b32 v{vU}, v{t + 8}', 'w')
        for p in range(2):
            for qd in range(4):
                d = BUFA + 16 * p + 4 * qd
                a.ds(f'ds_read_b128 v[{d}:{d + 3}], v{vU + 1} offset:{p * 128 + qd * 32}', f'q{p}')
        a(f'v_mul_f32 v{vU + 2}, {fl(C_Q)}, v{vR}')
        for p, acc in ((0, AC_Q), (1, AC_K)):
            a.wait_lg(f'q{p}')
            sc = vU + 2 if p == 0 else vR
            for r in range(16):
                a(f'v_fma_f32 v{acc + r}, -v{vM}, v{BUFA + 16 * p + r}, v{acc + r}')
            for r in range(16):
                a(f'v_mul_f32 v{acc + r}, v{sc}, v{acc + r}')
            for r in range(8):
                a(f'v_cvt_pk_bf16_f32 v{acc + r}, v{acc + 2 * r}, v{acc + 2 * r + 1}')
            if p == 0:
                a.vmem(f'buffer_store_dwordx4 v[{acc}:{acc + 3}], v{vL16}, {srd(S_WS)}, s{sQO} offen{SC}', 'st')
                a(f's_add_u32 s{sT0}, s{sQO}, 65536')
                a.vmem(f'buffer_store_dwordx4 v[{acc + 4}:{acc + 7}], v{vL16}, {srd(S_WS)}, s{sT0} offen{SC}', 'st')
            else:
                a.vmem(f'buffer_store_dwordx4 v[{acc}:{acc + 3}], v{vL16}, {srd(S_WS)}, s{sKO} offen{SC}', 'st')
                a(f's_add_u32 s{sT0}, s{sKO}, 131072')
                a.vmem(f'buffer_store_dwordx4 v[{acc + 4}:{acc + 7}], v{vL16}, {srd(S_WS)}, s{sT0} offen{SC}', 'st')
    else:
        a(f'''
v_mul_f32 v{t + 9}, v{vM}, v{vR}
v_cmp_gt_u32 vcc, 32, v0
v_cndmask_b32 v{t + 9}, v{t + 9}, v{vR}, vcc
''')
        a.ds(f'ds_write_b32 v{vU}, v{t + 9}', 'w')
        a(f'v_mov_b32 v{vU + 2}, v{t + 8}')
        for qd in range(4):
            d = BUFA + 4 * qd
            a.ds(f'ds_read_b128 v[{d}:{d + 3}], v{vU + 1} offset:{qd * 32}', 'q0')
        for qd in range(4):
            d = BUFB + 4 * qd
            a.ds(f'ds_read_b128 v[{d}:{d + 3}], v{vU + 1} offset:{128 + qd * 32}', 'q0')
        a(f'''
v_bfe_u32 v{vU}, v0, 4, 1
v_lshlrev_b32 v{vU}, 17, v{vU}
v_and_b32 v{vU + 3}, 15, v0
v_lshlrev_b32 v{vU + 3}, 4, v{vU + 3}
v_add_u32 v{vU}, v{vU}, v{vU + 3}
v_lshrrev_b32 v{vU + 3}, 5, v0
v_lshlrev_b32 v{vU + 3}, 8, v{vU + 3}
v_add_u32 v{vU}, v{vU}, v{vU + 3}
''')
        a.wait_lg('q0')
        acc = AC_Q
        for r in range(16):
            a(f'v_mul_f32 v{BUFB + r}, v{vU + 2}, v{BUFB + r}')
        for r in range(16):
            a(f'v_fma_f32 v{acc + r}, v{acc + r}, v{BUFA + r}, -v{BUFB + r}')
        for r in range(8):
            a(f'v_cvt_pk_bf16_f32 v{acc + r}, v{acc + 2 * r}, v{acc + 2 * r + 1}')
        a.vmem(f'buffer_store_dwordx4 v[{acc}:{acc + 3}], v{vU}, {srd(S_WS)}, s{sKO} offen offset:1024{SC}', 'st')
        a.vmem(f'buffer_store_dwordx4 v[{acc + 4}:{acc + 7}], v{vU}, {srd(S_WS)}, s{sKO} offen offset:1536{SC}', 'st')
    a(f's_lshl_b32 s{sT0}, s{sG}, 13')
    a(f's_sub_u32 s{sT0}, s{sT0}, {WR}')
    for j in range(4):
        a(f'v_add_u32 v{aW + j}, s{sT0}, v{aW + j}')


def prep_issue(a):
    a.comment('prep DMA')
    lbl = a.newlabel('prep_wo')
    lbl2 = a.newlabel('prep_j')
    lbl3 = a.newlabel('prep_n2')
    a(f'''
v_lshrrev_b32 v{vTMP}, 2, v0
v_lshlrev_b32 v{vTMP}, 10, v{vTMP}
v_and_b32 v{vTMP + 1}, 3, v0
v_lshlrev_b32 v{vTMP + 1}, 4, v{vTMP + 1}
s_and_b32 s{sT0}, s2, 1
s_lshl_b32 s{sT0}, s{sT0}, 3
s_add_u32 s{sT0}, s{sT0}, s{sW}
s_lshl_b32 s{sT0}, s{sT0}, 6
v_add3_u32 v{vTMP}, v{vTMP}, v{vTMP + 1}, s{sT0}
s_lshr_b32 s{sPS}, s2, 1
s_lshl_b32 s{sT1}, s{sW}, 10
s_add_u32 m0, s{sT1}, {WR}
s_lshl_b32 s{sT2}, s{sPS}, 14
s_cmp_ge_u32 s2, 224
s_cbranch_scc1 {lbl}
''')
    snap = a.snapshot()
    a.vmem(f'buffer_load_dwordx4 v{vTMP}, {srd(S_W2)}, s{sT2} offen lds', 'prep')
    a(f's_branch {lbl2}')
    a.label(lbl)
    a(f's_sub_u32 s{sT2}, s{sT2}, {112 * 16384}')
    a(f'buffer_load_dwordx4 v{vTMP}, {srd(S_WO)}, s{sT2} offen lds')
    a.label(lbl2)
    a(f'''
s_cmp_ge_u32 s2, 32
s_cbranch_scc1 {lbl3}
s_add_u32 m0, s{sT1}, {WR + 8192}
s_add_u32 s{sT2}, s{sT2}, {16 * 16384}
''')
    a(f'buffer_load_dwordx4 v{vTMP}, {srd(S_WO)}, s{sT2} offen lds')
    a.label(lbl3)


def prep_finish(a):
    a.comment('prep: transpose + store')
    lbl3 = a.newlabel('prep_f2')
    t = 80
    a(f'''
v_lshrrev_b32 v{t}, 5, v0
v_lshlrev_b32 v{t}, 9, v{t}
v_bfe_u32 v{t + 1}, v0, 2, 2
v_lshlrev_b32 v{t + 1}, 6, v{t + 1}
v_add_u32 v{t}, v{t}, v{t + 1}
v_bfe_u32 v{t + 1}, v0, 4, 1
v_lshlrev_b32 v{t + 1}, 5, v{t + 1}
v_add_u32 v{t}, v{t}, v{t + 1}
v_and_b32 v{t + 1}, 3, v0
v_lshlrev_b32 v{t + 1}, 3, v{t + 1}
s_lshl_b32 s{sT0}, s{sW}, 10
s_add_u32 s{sT0}, s{sT0}, {WR}
v_add3_u32 v{t}, v{t}, v{t + 1}, s{sT0}
s_lshl_b32 s{sT0}, s2, 3
s_add_u32 s{sT0}, s{sT0}, s{sW}
s_lshl_b32 s{sT0}, s{sT0}, 10
s_add_u32 s{sT0}, s{sT0}, {WF}
''')
    tr_pair(a, t + 4, t, 0, 'pp')
    a.wait_lg('pp')
    a.vmem(f'buffer_store_dwordx4 v[{t + 4}:{t + 7}], v{vL16}, {srd(S_WS)}, s{sT0} offen{SC}', 'st')
    a(f'''
s_cmp_ge_u32 s2, 32
s_cbranch_scc1 {lbl3}
''')
    a(f'ds_read_b64_tr_b16 v[{t + 8}:{t + 9}], v{t} offset:8192')
    a(f'ds_read_b64_tr_b16 v[{t + 10}:{t + 11}], v{t} offset:{8192 + 256}')
    a(f's_add_u32 s{sT0}, s{sT0}, {2048 * 1024}')
    a('s_waitcnt lgkmcnt(0)')
    a(f'buffer_store_dwordx4 v[{t + 8}:{t + 11}], v{vL16}, {srd(S_WS)}, s{sT0} offen{SC}')
    a.label(lbl3)


P2A, P2B = (0, 4, 1, 5), (2, 6, 3, 7)


def p2_frag(p):
    return BUFA + 4 * P2A.index(p) if p in P2A else BUFB + 4 * P2B.index(p)


def p2_read_ops(a, n, p):
    so = xslot(n) if n % 5 < 4 else 0
    off = so + (p // 4) * 4096
    d = p2_frag(p)
    tag = f'P{n}_{p}'
    if 'notr' in EXP:
        return []
    return [lambda: a.ds(f'ds_read_b64_tr_b16 v[{d}:{d + 1}], v{aW + p % 4} offset:{off}', tag),
            lambda: a.ds(f'ds_read_b64_tr_b16 v[{d + 2}:{d + 3}], v{aW + p % 4} offset:{off + 256}', tag)]


def p2_mfma(n, p):
    pas, C = (n - 8) // 4, (n - 8) % 4
    acc = AC_A if pas == 0 else AC_B
    first = (C == 0 and p == 0)
    return mfma32(acc, p2_frag(p), X(2 * C + p // 4, p % 4), '0' if first else None)


def p2_m16(n, p):
    pas, C = (n - 8) // 4, (n - 8) % 4
    cs = vCSA if pas == 0 else vCSB
    return mfma16(cs, p2_frag(p), vSEL, '0' if (C == 0 and p == 0) else None)


def p2_b_phase(a, n, ra, dm, fill=None):
    w = lambda p: (lambda: a.wait_lg(f'P{n}_{p}'))
    d = list(dm) + [[]] * 4
    f = fill or (lambda k: [])
    for i, p in enumerate(P2B):
        run_gaps(a, [w(p), p2_mfma(n, p), ra[i], d[0] if i == 1 else [], f(i)])


def p2_a_phase(a, n, rb, dm, fill=None):
    w = lambda p: (lambda: a.wait_lg(f'P{n}_{p}'))
    d = list(dm) + [[]] * 4
    f = fill or (lambda k: [])
    m16 = 'nom16' not in EXP
    for i, p in enumerate(P2A):
        run_gaps(a, [w(p), p2_mfma(n, p), rb[i], d[0] if i == 2 else [], f(4 + i)])
        if m16 and p in (0, 4):
            a(p2_m16(n, p))


def gelu_prep_ops(a, g, pas):
    pi = 3 + 2 * g + pas
    b1 = vB1A if pas == 0 else vB1B
    t = vCS0
    a(f'''
v_and_b32 v{vU + 2}, 31, v0
v_lshlrev_b32 v{vU + 2}, 4, v{vU + 2}
v_add_u32 v{vU + 2}, {CSP}, v{vU + 2}
''')
    a.ds(f'ds_read_b128 v[{t}:{t + 3}], v{vU + 2} offset:{pi * 512}', 'gc')
    a(f'''
s_lshl_b32 s{sT0}, s{sW}, 8
s_add_u32 s{sT0}, s{sT0}, {SCR}
v_lshlrev_b32 v{vU}, 2, v0
v_add_u32 v{vU}, s{sT0}, v{vU}
v_lshrrev_b32 v{vU + 1}, 5, v0
v_lshlrev_b32 v{vU + 1}, 4, v{vU + 1}
v_add_u32 v{vU + 1}, s{sT0}, v{vU + 1}
v_lshlrev_b32 v{t + 4}, 16, v{b1}
''')
    a.wait_lg('gc')
    a(f'''
v_add_f32 v{t}, v{t}, v{t + 1}
v_add_f32 v{t + 2}, v{t + 2}, v{t + 3}
v_cmp_gt_u32 vcc, 32, v0
v_add_f32 v{t}, v{t}, v{t + 2}
v_cndmask_b32 v{t}, v{t + 4}, v{t}, vcc
''')
    a.ds(f'ds_write_b32 v{vU}, v{t}', 'w')


def gelu_ops(a, acc, csb, b1b, tmp):
    ops = []
    for q in range(4):
        R = [acc + 4 * q + e for e in range(4)]
        cs = [csb + 4 * q + e for e in range(4)]
        b = [b1b + 4 * q + e for e in range(4)]
        u = [tmp + e for e in range(4)]
        w = [tmp + 4 + e for e in range(4)]
        for e in range(4):
            ops.append(f'v_fma_f32 v{b[e]}, -v{vMRR}, v{cs[e]}, v{b[e]}')
        for e in range(4):
            ops.append(f'v_fma_f32 v{R[e]}, v{vRR}, v{R[e]}, v{b[e]}')
        for e in range(4):
            ops.append(f'v_mul_f32 v{u[e]}, v{R[e]}, v{R[e]}')
        for e in range(4):
            ops.append(f'v_fma_f32 v{u[e]}, v{u[e]}, s{sT3}, v{vTMP + 2}')
        for e in range(4):
            ops.append(f'v_mul_f32 v{u[e]}, v{u[e]}, v{R[e]}')
        for e in range(4):
            ops.append(f'v_exp_f32 v{w[e]}, v{u[e]}')
        for e in range(4):
            ops.append(f'v_add_f32 v{w[e]}, 1.0, v{w[e]}')
        for e in range(4):
            ops.append(f'v_rcp_f32 v{w[e]}, v{w[e]}')
        for e in range(4):
            ops.append(f'v_mul_f32 v{R[e]}, v{R[e]}, v{w[e]}')
        ops.append(f'v_cvt_pk_bf16_f32 v{acc + 2 * q}, v{R[0]}, v{R[1]}')
        ops.append(f'v_cvt_pk_bf16_f32 v{acc + 2 * q + 1}, v{R[2]}, v{R[3]}')
    return ops


def gelu_simple(a, g, pas, extras=(), sttag='st'):
    acc = AC_A if pas == 0 else AC_B
    gelu_prep_ops(a, g, pas)
    csb, b1b = BUFA, BUFA + 16
    for qd in range(4):
        a.ds(f'ds_read_b128 v[{csb + 4 * qd}:{csb + 4 * qd + 3}], v{vU + 1} offset:{qd * 32}', 'gq')
        a.ds(f'ds_read_b128 v[{b1b + 4 * qd}:{b1b + 4 * qd + 3}], v{vU + 1} offset:{128 + qd * 32}', 'gq')
    a(f's_mov_b32 s{sT3}, {fl(C2)}')
    a(f'v_mov_b32 v{vTMP + 2}, {fl(C1)}')
    a(f'''
s_mul_i32 s{sHO}, s{sT}, 112
s_lshl_b32 s{sT0}, s{sG}, 1
s_add_u32 s{sT0}, s{sT0}, s{sF0}
s_add_u32 s{sT0}, s{sT0}, {pas}
s_lshl_b32 s{sT0}, s{sT0}, 1
s_add_u32 s{sHO}, s{sHO}, s{sT0}
s_lshl_b32 s{sHO}, s{sHO}, 10
s_add_u32 s{sHO}, s{sHO}, {HF}
''')
    a.wait_lg('gq')
    gops = gelu_ops(a, acc, csb, b1b, 80)
    extras = list(extras)
    ne = len(extras)
    done = 0
    for i, op in enumerate(gops):
        while done < ne and done * len(gops) <= i * ne:
            emit(a, extras[done])
            done += 1
        a(op)
    while done < ne:
        emit(a, extras[done])
        done += 1
    a.vmem(f'buffer_store_dwordx4 v[{acc}:{acc + 3}], v{vL16}, {srd(S_WS)}, s{sHO} offen{SC}', sttag)
    a.vmem(f'buffer_store_dwordx4 v[{acc + 4}:{acc + 7}], v{vL16}, {srd(S_WS)}, s{sHO} offen offset:1024{SC}', sttag)


def p2_stage(a, n, g):
    a.comment(f'--- P2 stage {n} g={g}')
    a.wait_vm(f'c{n}')
    if n == 12:
        a.wait_lg('w')
    if n in PREBAR:
        PREBAR[n](a, g)
    if 'nobar' not in EXP:
        a('s_barrier')
    if n in HOOKS:
        HOOKS[n](a, g)
    rebase(a, [aW + j for j in range(4)], n)
    c = chunk_for_stage(n)
    dm = dma_ops(a, c, g)
    db, da = dm[:1], dm[1:]
    ra = [p2_read_ops(a, n, p) for p in P2A]
    if n > 8:
        p2_b_phase(a, n - 1, ra, db)
    else:
        run_gaps(a, ra + [db])
    rb = [p2_read_ops(a, n, p) for p in P2B]
    p2_a_phase(a, n, rb, da)
    if n == 11:
        write_cs_partials(a, [(vCSA, (3 + 2 * g) * 512)])


STAMPS = {'p1_0': 1, 'p1_7': 2, 'e1': 3, 'p2_11': 4, 'p2_15': 5, 'tail': 6, 'gelu': 7}


def st(a, name):
    if name in STAMPS:
        stamp(a, STAMPS[name])


def gen_k1(label):
    a = Asm()
    end = label + '_end'
    prologue(a, end, None)
    build_srds(a, ['x', 'wq', 'w1', 'ws', 'w2', 'wo', 'b1'])
    stamp(a, 0, 0)
    setup(a)
    g1 = label + '_g1'
    a(f's_cmp_eq_u32 s{sG}, 1')
    a(f's_cbranch_scc1 {g1}')
    for g in (0, 1):
        if g == 1:
            a.label(g1)
            a.vm, a.lg = [], []
        for n in range(5):
            for d in dma_ops(a, n, g):
                d()
        setup2(a)
        for n in range(8):
            p1_stage(a, n, g)
            st(a, f'p1_{n}')
        p1_epilogue(a, g)
        st(a, 'e1')
        for n in range(8, 16):
            p2_stage(a, n, g)
            st(a, f'p2_{n}')
        p2_b_phase(a, 15, [[], [], [], []], [])
        write_cs_partials(a, [(vCSB, (3 + 2 * g + 1) * 512)])
        a.wait_all()
        a('s_barrier')
        st(a, 'tail')
        prep_finish(a)
        gelu_simple(a, g, 0)
        skip = a.newlabel('skipb')
        if g == 1:
            a(f's_cmp_eq_u32 s{sPB}, 0')
            a(f's_cbranch_scc1 {skip}')
        gelu_simple(a, g, 1)
        if g == 1:
            a.label(skip)
        st(a, 'gelu')
        a('s_waitcnt vmcnt(0)')
        stamp(a, 9, 1)
        stamp_flush(a, 0)
        a('s_endpgm')
    a.label(end)
    a('s_endpgm')
    return a
```

```python
from common import *

K2_LDS = 131072

sH, sQB, sTQ = 49, 50, 51
sT0, sT1, sT2, sT3 = 52, 53, 54, 55
sVM = 58
sMD = 60
sSRC = 61

vL16 = 1
aK0, aK1, aV0, aV1 = 2, 3, 4, 5
vT = 6
RQ = 12
RK = 16
RV0, RV1 = 20, 24
RP = 28
NEGM = 36
RS = (52, 68)
RO = 84


def k_read(a, t):
    ar, off = (aK0, t * 2048) if t < 32 else (aK1, (t - 32) * 2048)
    a.ds(f'ds_read_b128 v[{RK}:{RK + 3}], v{ar} offset:{off}', f'K{t}')


def v_reads(a, items):
    a(f's_mov_b64 exec, s[{sVM}:{sVM + 1}]')
    for part, t in items:
        ar, off = (aV0, t * 2048) if t < 32 else (aV1, (t - 32) * 2048)
        r = RV0 if part == 0 else RV1
        a.ds(f'ds_read_b128 v[{r}:{r + 3}], v{ar} offset:{off + part * 512}', f'V{part}_{t}')
    a('s_mov_b64 exec, -1')


def need_tiles(a, t, state):
    for first, rounds in state['plan']:
        if t >= first and first not in state['done']:
            tags = [f'kv{i}' for i in range(rounds)]
            a.wait_vm(tags)
            a('s_barrier')
            state['done'].add(first)


def attn_step(a, t, nt, state, extra=None):
    S, Sn = RS[t % 2], RS[(t + 1) % 2]
    ex = [f'v_exp_f32 v{S + i}, v{S + i}' for i in range(16)]
    cv = [f'v_cvt_pk_bf16_f32 v{RP + i}, v{S + 2 * i}, v{S + 2 * i + 1}' for i in range(8)]
    if t + 1 < nt:
        a.wait_lg(f'K{t + 1}')
        a(mfma32(Sn, RK, RQ, NEGM))
        if t + 2 < nt:
            need_tiles(a, t + 2, state)
            k_read(a, t + 2)
    for x in (ex[0], ex[1], ex[2], ex[3], cv[0], ex[4], ex[5], cv[1]):
        a(x)
    if t > 0:
        a.wait_lg(f'V1_{t - 1}')
        a(mfma32(RO, RV1, RP + 4, RO))
    for x in (ex[6], ex[7], cv[2], ex[8], ex[9], cv[3], ex[10], ex[11]):
        a(x)
    a.wait_lg(f'V0_{t}')
    a(mfma32(RO, RV0, RP, '0' if t == 0 else RO))
    items = [(1, t)]
    if t + 1 < nt:
        items.append((0, t + 1))
    v_reads(a, items)
    for x in (cv[4], ex[12], ex[13], cv[5], ex[14], ex[15], cv[6], cv[7]):
        a(x)


def row_max(a, S, dst, tmp):
    a(f'v_max3_f32 v{dst}, v{S}, v{S + 1}, v{S + 2}')
    a(f'v_max3_f32 v{tmp}, v{S + 3}, v{S + 4}, v{S + 5}')
    a(f'v_max3_f32 v{dst}, v{dst}, v{S + 6}, v{S + 7}')
    a(f'v_max3_f32 v{tmp}, v{tmp}, v{S + 8}, v{S + 9}')
    a(f'v_max3_f32 v{dst}, v{dst}, v{S + 10}, v{S + 11}')
    a(f'v_max3_f32 v{tmp}, v{tmp}, v{S + 12}, v{S + 13}')
    a(f'v_max3_f32 v{dst}, v{dst}, v{S + 14}, v{S + 15}')
    a(f'v_max_f32 v{dst}, v{dst}, v{tmp}')
    a(f'v_mov_b32 v{tmp}, v{dst}')
    a(f'v_permlane32_swap_b32 v{dst}, v{tmp}')
    a(f'v_max_f32 v{dst}, v{dst}, v{tmp}')


def fallback(a, done_label):
    a.comment('--- fallback: online softmax with the running true maximum')
    loop = a.newlabel('fb_loop')
    S = RS[0]
    vm, vmn, val, va, vb = vT, vT + 1, vT + 2, vT + 3, vT + 4
    a(f'v_mov_b32 v{vm}, 0xff800000')
    for i in range(16):
        a(f'v_mov_b32 v{RO + i}, 0')
    a(f'v_mov_b32 v{va}, v{aK0}')
    a(f'v_mov_b32 v{vb}, v{aV0}')
    a(f's_mov_b32 s{sT0}, 64')
    a.label(loop)
    a(f'ds_read_b128 v[{RK}:{RK + 3}], v{va}')
    a(f's_mov_b64 exec, s[{sVM}:{sVM + 1}]')
    a(f'ds_read_b128 v[{RV0}:{RV0 + 3}], v{vb}')
    a(f'ds_read_b128 v[{RV1}:{RV1 + 3}], v{vb} offset:512')
    a('s_mov_b64 exec, -1')
    a('s_waitcnt lgkmcnt(0)')
    a(mfma32(S, RK, RQ, '0'))
    a(f'v_add_u32 v{va}, 0x800, v{va}')
    a(f'v_add_u32 v{vb}, 0x800, v{vb}')
    row_max(a, S, vmn, val)
    a(f'v_max_f32 v{vmn}, v{vmn}, v{vm}')
    a(f'v_sub_f32 v{val}, v{vm}, v{vmn}')
    a(f'v_exp_f32 v{val}, v{val}')
    a(f'v_mov_b32 v{vm}, v{vmn}')
    for i in range(16):
        a(f'v_sub_f32 v{S + i}, v{S + i}, v{vmn}')
    for i in range(16):
        a(f'v_exp_f32 v{S + i}, v{S + i}')
    for i in range(16):
        a(f'v_mul_f32 v{RO + i}, v{val}, v{RO + i}')
    for i in range(8):
        a(f'v_cvt_pk_bf16_f32 v{RP + i}, v{S + 2 * i}, v{S + 2 * i + 1}')
    a(mfma32(RO, RV0, RP, RO))
    a(mfma32(RO, RV1, RP + 4, RO))
    a(f's_sub_u32 s{sT0}, s{sT0}, 1')
    a(f's_cmp_lg_u32 s{sT0}, 0')
    a(f's_cbranch_scc1 {loop}')
    a(f's_branch {done_label}')


def gen_k2(label, force_fallback=False):
    a = Asm()
    end = label + '_end'
    prologue(a, end, None)
    build_srds(a, ['ws'])
    stamp(a, 0, 0)
    a(f'''
s_lshl_b32 s{sT0}, s{sXCD}, 2
s_lshr_b32 s{sT1}, s{sSLOT}, 3
s_add_u32 s{sH}, s{sT0}, s{sT1}
s_and_b32 s{sQB}, s{sSLOT}, 7
s_lshl_b32 s{sTQ}, s{sQB}, 3
s_add_u32 s{sTQ}, s{sTQ}, s{sW}
v_lshlrev_b32 v{vL16}, 4, v0
s_lshl_b32 s{sSRC}, s{sH}, 17
s_add_u32 s{sSRC}, s{sSRC}, {KV}
s_lshl_b32 s{sMD}, s{sW}, 10
s_add_u32 s{sSRC}, s{sSRC}, s{sMD}
''')
    a(f'''
s_lshl_b32 s{sT0}, s{sH}, 6
s_add_u32 s{sT0}, s{sT0}, s{sTQ}
s_lshl_b32 s{sT0}, s{sT0}, 10
''')
    a.vmem(f'buffer_load_dwordx4 v[{RQ}:{RQ + 3}], v{vL16}, {srd(S_WS)}, s{sT0} offen', 'kv0')
    for i in range(16):
        a(f's_add_u32 m0, s{sMD}, {i * 8192}')
        a(f's_add_u32 s{sT2}, s{sSRC}, {i * 8192}')
        a.vmem(f'buffer_load_dwordx4 v{vL16}, {srd(S_WS)}, s{sT2} offen lds', f'kv{i}')
    a(f'''
v_mov_b32 v{aK0}, v{vL16}
v_add_u32 v{aK1}, 0x10000, v{vL16}
v_and_b32 v{vT}, 15, v0
v_lshrrev_b32 v{vT + 1}, 5, v0
v_lshlrev_b32 v{vT + 1}, 4, v{vT + 1}
v_add_u32 v{vT}, v{vT}, v{vT + 1}
v_lshlrev_b32 v{vT}, 4, v{vT}
v_add_u32 v{aV0}, 0x400, v{vT}
v_add_u32 v{aV1}, 0x10400, v{vT}
s_mov_b32 s{sVM}, 0xffff
s_mov_b32 s{sVM + 1}, 0xffff
''')
    for i in range(4):
        a(f'v_mov_b32 v{RV0 + i}, 0x3f803f80')
        a(f'v_mov_b32 v{RV1 + i}, 0x3f803f80')
    state = {'plan': [(0, 1), (4, 4), (16, 16)], 'done': set()}
    need_tiles(a, 0, state)
    stamp(a, 1)
    k_read(a, 0)
    v_reads(a, [(0, 0)])
    a.wait_lg('K0')
    a(mfma32(RS[0], RK, RQ, '0'))
    row_max(a, RS[0], vT, vT + 1)
    for i in range(16):
        a(f'v_sub_f32 v{NEGM + i}, 0, v{vT}')
    a(mfma32(RS[0], RK, RQ, NEGM))
    k_read(a, 1)
    stamp(a, 2)
    for t in range(64):
        attn_step(a, t, 64, state)
        if t in (3, 15, 31):
            stamp(a, {3: 3, 15: 4, 31: 5}[t])
    stamp(a, 6)
    a.wait_lg()
    a(mfma32(RO, RV1, RP + 4, RO))
    fb = label + '_fb'
    fin = label + '_fin'
    a(f'v_mul_f32 v{vT}, 0, v{RO + 8}')
    for i in range(8):
        a(f'v_fma_f32 v{vT}, v{RO + i}, 0, v{vT}')
    a(f'v_cmp_u_f32 vcc, v{vT}, v{vT}')
    if force_fallback:
        a(f's_branch {fb}')
    else:
        a(f's_cbranch_vccnz {fb}')
    a.label(fin)
    a(f'v_rcp_f32 v{vT}, v{RO + 8}')
    a(f'''
s_lshl_b32 s{sT0}, s{sTQ}, 5
s_add_u32 s{sT0}, s{sT0}, s{sH}
s_lshl_b32 s{sT0}, s{sT0}, 10
s_add_u32 s{sT0}, s{sT0}, {OF}
''')
    for i in range(8):
        a(f'v_mul_f32 v{RO + i}, v{vT}, v{RO + i}')
    for i in range(4):
        a(f'v_cvt_pk_bf16_f32 v{RO + i}, v{RO + 2 * i}, v{RO + 2 * i + 1}')
    a.vmem(f'buffer_store_dwordx4 v[{RO}:{RO + 3}], v{vL16}, {srd(S_WS)}, s{sT0} offen', 'st')
    stamp(a, 7)
    a('s_waitcnt vmcnt(0)')
    stamp(a, 8, 1)
    stamp_flush(a, 1)
    a('s_endpgm')
    a.label(fb)
    fallback(a, fin)
    a.label(end)
    a('s_endpgm')
    return a
```

```python
from common import *

RED = 0
OB = 131072
K3_LDS = 163840

sTILE, sCG, sCT, sKH = 49, 50, 51, 56
sT0, sT1, sT2, sT3 = 52, 53, 54, 55
sHS, sWSRC = 60, 61
sPART = 62

vL16 = 1
vT = 2
vG = 12
vX = 20
vB2 = 24
vS = 28
vXO = 36
ACC = 64
FB = 128
NBUF = 5
LOG2E = 1.4426950408889634


def fl(x):
    import struct
    return hex(struct.unpack('<I', struct.pack('<f', x))[0])


def ffn2_loads(a, s):
    b = FB + 20 * (s % NBUF)
    a(f's_add_u32 s{sT2}, s{sHS}, {s * 1024}')
    a.vmem(f'buffer_load_dwordx4 v[{b}:{b + 3}], v{vL16}, {srd(S_WS)}, s{sT2} offen', f'f{s}')
    a(f's_add_u32 s{sT2}, s{sWSRC}, {s * 16384}')
    for j in range(4):
        d = b + 4 + 4 * j
        a.vmem(f'buffer_load_dwordx4 v[{d}:{d + 3}], v{vL16}, {srd(S_WS)}, s{sT2} offen offset:{j * 1024}', f'f{s}')


def ffn2_mfmas(s):
    b = FB + 20 * (s % NBUF)
    return [mfma32(ACC + 16 * j, b + 4 + 4 * j, b, '0' if s == 0 else None) for j in range(4)]


def side_loads(a):
    a(f'''
s_lshl_b32 s{sT0}, s{sCG}, 8
s_lshl_b32 s{sT1}, s{sCT}, 6
s_add_u32 s{sT0}, s{sT0}, s{sT1}
s_lshl_b32 s{sT1}, s{sKH}, 5
s_add_u32 s{sT0}, s{sT0}, s{sT1}
v_lshrrev_b32 v{vT}, 5, v0
v_lshlrev_b32 v{vT}, 3, v{vT}
v_add_u32 v{vT}, s{sT0}, v{vT}
v_and_b32 v{vT + 1}, 31, v0
v_lshlrev_b32 v{vT + 1}, 10, v{vT + 1}
s_lshl_b32 s{sT1}, s{sTILE}, 15
v_add3_u32 v{vT + 1}, v{vT + 1}, v{vT}, s{sT1}
''')
    a.vmem(f'buffer_load_dwordx2 v[{vB2}:{vB2 + 1}], v{vT}, {srd(S_B2)}, 0 offen', 'side')
    a.vmem(f'buffer_load_dwordx2 v[{vB2 + 2}:{vB2 + 3}], v{vT}, {srd(S_B2)}, 0 offen offset:16', 'side')
    a.vmem(f'buffer_load_dwordx2 v[{vX}:{vX + 1}], v{vT + 1}, {srd(S_X)}, 0 offen', 'side')
    a.vmem(f'buffer_load_dwordx2 v[{vX + 2}:{vX + 3}], v{vT + 1}, {srd(S_X)}, 0 offen offset:16', 'side')
    a(f'''
v_lshrrev_b32 v{vT + 2}, 5, v0
v_lshlrev_b32 v{vT + 2}, 4, v{vT + 2}
v_and_b32 v{vXO}, 31, v0
v_lshlrev_b32 v{vXO}, 10, v{vXO}
s_add_u32 s{sT0}, s{sT0}, s{sT1}
v_add3_u32 v{vXO}, v{vXO}, v{vT + 2}, s{sT0}
''')


def wo_loads(a):
    a(f'''
s_lshl_b32 s{sT0}, s{sKH}, 4
s_add_u32 s{sT0}, s{sT0}, 112
s_lshl_b32 s{sT0}, s{sT0}, 4
s_lshl_b32 s{sT1}, s{sCG}, 2
s_add_u32 s{sT0}, s{sT0}, s{sT1}
s_add_u32 s{sT0}, s{sT0}, s{sCT}
s_lshl_b32 s{sT0}, s{sT0}, 10
s_add_u32 s{sT0}, s{sT0}, {WF}
''')
    for i in range(16):
        d = FB + 4 * i
        a(f's_add_u32 s{sT2}, s{sT0}, {i * 16384}')
        a.vmem(f'buffer_load_dwordx4 v[{d}:{d + 3}], v{vL16}, {srd(S_WS)}, s{sT2} offen', 'wo')


def o_dma(a, extra=''):
    a(f'''
s_lshl_b32 s{sT0}, s{sTILE}, 15
s_lshl_b32 s{sT1}, s{sW}, 12
s_add_u32 s{sT0}, s{sT0}, s{sT1}
s_add_u32 s{sT0}, s{sT0}, {OF}
''')
    for i in range(4):
        a(f's_add_u32 m0, s{sT1}, {OB + i * 1024}')
        a(f's_add_u32 s{sT2}, s{sT0}, {i * 1024}')
        a.vmem(f'buffer_load_dwordx4 v{vL16}, {srd(S_WS)}, s{sT2} offen lds {extra}'.rstrip(), 'ob')


def reduce_write(a):
    a(f's_lshl_b32 s{sT0}, s{sW}, 14')
    a(f'v_add_u32 v{vT}, s{sT0}, v{vL16}')
    for k in range(16):
        a.ds(f'ds_write_b128 v{vT}, v[{ACC + 4 * k}:{ACC + 4 * k + 3}] offset:{k * 1024}', 'rw')


def reduce_read_gate(a):
    a(f'''
s_lshl_b32 s{sT0}, s{sCT}, 12
s_lshl_b32 s{sT1}, s{sKH}, 11
s_add_u32 s{sT0}, s{sT0}, s{sT1}
v_add_u32 v{vT}, s{sT0}, v{vL16}
v_add_u32 v{vT + 1}, 0x10000, v{vT}
''')
    t = ACC
    for w in range(8):
        for e in range(2):
            ar = vT if w < 4 else vT + 1
            d = t + 8 * w + 4 * e
            a.ds(f'ds_read_b128 v[{d}:{d + 3}], v{ar} offset:{(w % 4) * 16384 + e * 1024}', f'r{w}')
    a.wait_vm('side')
    for e in range(2):
        for h in range(2):
            a(f'v_lshlrev_b32 v{vG + 4 * e + 2 * h}, 16, v{vB2 + 2 * e + h}')
            a(f'v_and_b32 v{vG + 4 * e + 2 * h + 1}, 0xffff0000, v{vB2 + 2 * e + h}')
    for w in range(8):
        a.wait_lg(f'r{w}')
        for k in range(8):
            a(f'v_add_f32 v{vG + k}, v{vG + k}, v{t + 8 * w + k}')
    for k in range(8):
        a(f'v_mul_f32 v{t + k}, {fl(-LOG2E)}, v{vG + k}')
    for k in range(8):
        a(f'v_exp_f32 v{t + k}, v{t + k}')
    for k in range(8):
        a(f'v_add_f32 v{t + k}, 1.0, v{t + k}')
    for k in range(8):
        a(f'v_rcp_f32 v{t + k}, v{t + k}')
    for k in range(8):
        a(f'v_mul_f32 v{vG + k}, v{vG + k}, v{t + k}')


def wo_gemm(a):
    a(f's_lshl_b32 s{sT0}, s{sKH}, 14')
    a(f's_add_u32 s{sT0}, s{sT0}, {OB}')
    a(f'v_add_u32 v{vT}, s{sT0}, v{vL16}')
    bb = 192
    for i in range(16):
        a.ds(f'ds_read_b128 v[{bb + 4 * i}:{bb + 4 * i + 3}], v{vT} offset:{i * 1024}', f'o{i}')
    a.wait_vm('wo')
    for i in range(16):
        a.wait_lg(f'o{i}')
        a(mfma32(ACC, FB + 4 * i, bb + 4 * i, '0' if i == 0 else None))


def exchange(a, label):
    k1 = label + '_kh1'
    j = label + '_khj'
    a(f'''
s_lshl_b32 s{sT0}, s{sW}, 11
v_add_u32 v{vT}, s{sT0}, v{vL16}
s_xor_b32 s{sT0}, s{sW}, 4
s_lshl_b32 s{sT0}, s{sT0}, 11
v_add_u32 v{vT + 1}, s{sT0}, v{vL16}
s_cmp_eq_u32 s{sKH}, 1
s_cbranch_scc1 {k1}
''')
    for kh in (0, 1):
        if kh == 1:
            a.label(k1)
        send = ACC + (8 if kh == 0 else 0)
        keep = ACC + (0 if kh == 0 else 8)
        a(f'ds_write_b128 v{vT}, v[{send}:{send + 3}]')
        a(f'ds_write_b128 v{vT}, v[{send + 4}:{send + 7}] offset:1024')
        for k in range(8):
            a(f'v_mov_b32 v{vS + k}, v{keep + k}')
        if kh == 0:
            a(f's_branch {j}')
    a.label(j)
    a('s_waitcnt lgkmcnt(0)')
    a('s_barrier')
    t = ACC + 16
    a(f'ds_read_b128 v[{t}:{t + 3}], v{vT + 1}')
    a(f'ds_read_b128 v[{t + 4}:{t + 7}], v{vT + 1} offset:1024')
    return t


def final(a, t):
    u = ACC + 32
    for k in range(4):
        a(f'v_lshlrev_b32 v{u + 2 * k}, 16, v{vX + k}')
        a(f'v_and_b32 v{u + 2 * k + 1}, 0xffff0000, v{vX + k}')
    a('s_waitcnt lgkmcnt(0)')
    for k in range(8):
        a(f'v_add_f32 v{vS + k}, v{vS + k}, v{t + k}')
    for k in range(8):
        a(f'v_fma_f32 v{vS + k}, v{vS + k}, v{vG + k}, v{u + k}')
    for k in range(4):
        a(f'v_cvt_pk_bf16_f32 v{vS + k}, v{vS + 2 * k}, v{vS + 2 * k + 1}')
    a(f'v_permlane32_swap_b32 v{vS}, v{vS + 2}')
    a(f'v_permlane32_swap_b32 v{vS + 1}, v{vS + 3}')
    a.vmem(f'buffer_store_dwordx4 v[{vS}:{vS + 3}], v{vXO}, {srd(S_OUT)}, 0 offen', 'st')


def ids(a):
    a(f'''
s_lshl_b32 s{sT0}, s{sXCD}, 3
s_and_b32 s{sT1}, s{sSLOT}, 7
s_add_u32 s{sTILE}, s{sT0}, s{sT1}
s_lshr_b32 s{sCG}, s{sSLOT}, 3
s_and_b32 s{sCT}, s{sW}, 3
s_lshr_b32 s{sKH}, s{sW}, 2
s_mul_i32 s{sT0}, s{sW}, 14
s_mul_i32 s{sHS}, s{sTILE}, 112
s_add_u32 s{sHS}, s{sHS}, s{sT0}
s_lshl_b32 s{sHS}, s{sHS}, 10
s_add_u32 s{sHS}, s{sHS}, {HF}
s_lshl_b32 s{sWSRC}, s{sT0}, 4
s_lshl_b32 s{sT1}, s{sCG}, 2
s_add_u32 s{sWSRC}, s{sWSRC}, s{sT1}
s_lshl_b32 s{sWSRC}, s{sWSRC}, 10
s_add_u32 s{sWSRC}, s{sWSRC}, {WF}
''')


def gen_k3(label):
    a = Asm()
    end = label + '_end'
    prologue(a, end, None)
    build_srds(a, ['ws', 'x', 'b2', 'out'])
    stamp(a, 0, 0)
    a(f'v_lshlrev_b32 v{vL16}, 4, v0')
    ids(a)
    for s in range(NBUF):
        ffn2_loads(a, s)
    o_dma(a)
    side_loads(a)
    for s in range(14):
        a.wait_vm(f'f{s}')
        for m in ffn2_mfmas(s):
            a(m)
        if s + NBUF < 14:
            ffn2_loads(a, s + NBUF)
    stamp(a, 1)
    wo_loads(a)
    reduce_write(a)
    a.wait_vm('ob')
    a.wait_lg()
    a('s_barrier')
    stamp(a, 2)
    reduce_read_gate(a)
    stamp(a, 3)
    wo_gemm(a)
    stamp(a, 4)
    a.wait_lg()
    a('s_barrier')
    t = exchange(a, label)
    final(a, t)
    stamp(a, 5)
    a('s_waitcnt vmcnt(0)')
    stamp(a, 8, 1)
    stamp_flush(a, 2)
    a('s_endpgm')
    a.label(end)
    a('s_endpgm')
    return a
```

```python
from common import *
import k1
from k1 import fl

KM_LDS = 163840
LCNT = 163824
RED = 0
OB = 131072
FA = FL
FB = FL + 4096
LOG2E = 1.4426950408889634
SPIN = 20000

sT0, sT1, sT2, sT3 = 52, 53, 54, 55
sH, sTQ, sSRC, sMD = 20, 21, 22, 23
sTILE, sCG, sOF, sOP = 24, 25, 26, 27
sHS, sWSRC, sWO, sSPIN = 8, 9, 10, 11
sVM = 94
sCT, sKH = sTT, sG

vL16 = 1
aK0, aK1, aV0, aV1 = 2, 3, 4, 5
vT = 6
RQ, RK, RV0, RV1, RP = 12, 16, 20, 24, 28
NEGM = 36
RS = (52, 68)
RO = 84
ACC = 100
RING = 164
vX, vB2, vXO = 228, 232, 236
vG, vS = 240, 248
OP = 52

OPT = dict(u0=28, D=11, fbsig=5, prio=None, b2=24, kvpre=8, nofb=False)


def spin(a, site, load, check_ok):
    ok = a.newlabel('ok')
    lp = a.newlabel('spin')
    check_ok(ok)
    a(f's_mov_b32 s{sSPIN}, {SPIN}')
    a.label(lp)
    a('s_sleep 1')
    load()
    a('s_waitcnt vmcnt(0)')
    check_ok(ok)
    a(f's_sub_u32 s{sSPIN}, s{sSPIN}, 1')
    a(f's_cmp_lg_u32 s{sSPIN}, 0')
    a(f's_cbranch_scc1 {lp}')
    a(f'v_mov_b32 v{vT}, {site}')
    a(f'buffer_store_dword v{vT}, off, {srd(S_DBG)}, 0 offset:{4 * site}')
    a.label(ok)


def one_lane_store(a, reg, srdn, soff, val=1):
    a('s_mov_b64 exec, 1')
    a(f'v_mov_b32 v{reg}, {val}')
    a(f'buffer_store_dword v{reg}, off, {srd(srdn)}, {soff} sc1')
    a('s_mov_b64 exec, -1')


def start_extra(a):
    lbl = a.newlabel('noinit')
    a(f'''
v_mov_b32 v20, 0
v_mov_b32 v21, 0
v_mov_b32 v22, 0
v_mov_b32 v23, 0
v_mov_b32 v24, {LCNT}
''')
    a.ds('ds_write_b32 v24, v20', 'w')
    a(f'''
s_or_b32 s{sT0}, s2, s{sW}
s_cmp_lg_u32 s{sT0}, 0
s_cbranch_scc1 {lbl}
v_lshrrev_b32 v1, 2, v0
v_lshlrev_b32 v1, 8, v1
v_and_b32 v2, 3, v0
v_lshlrev_b32 v2, 4, v2
v_add_u32 v1, v1, v2
s_mov_b32 s{sT0}, {FA}
s_mov_b32 s{sT1}, {FB}
buffer_store_dwordx4 v[20:23], v1, {srd(S_WS)}, s{sT0} offen sc1
buffer_store_dwordx4 v[20:23], v1, {srd(S_WS)}, s{sT1} offen sc1
''')
    a.label(lbl)


def hook0(a, g):
    if g != 0:
        return
    lbl = a.newlabel('noinit2')
    a(f'''
s_or_b32 s{sT0}, s2, s{sW}
s_cmp_lg_u32 s{sT0}, 0
s_cbranch_scc1 {lbl}
''')
    one_lane_store(a, 20, S_DBG, 0)
    a.label(lbl)


def hook8(a, g):
    a(f'''
s_lshl_b32 s{sT0}, s{sXCD}, 2
s_lshr_b32 s{sCG}, s{sSLOT}, 3
s_add_u32 s{sH}, s{sT0}, s{sCG}
s_and_b32 s{sT1}, s{sSLOT}, 7
s_lshl_b32 s{sTQ}, s{sT1}, 3
s_add_u32 s{sTQ}, s{sTQ}, s{sW}
s_lshl_b32 s{sMD}, s{sW}, 10
s_lshl_b32 s{sSRC}, s{sH}, 17
s_add_u32 s{sSRC}, s{sSRC}, {KV}
s_add_u32 s{sSRC}, s{sSRC}, s{sMD}
s_lshl_b32 s{sOF}, s{sTQ}, 5
s_add_u32 s{sOF}, s{sOF}, s{sH}
s_lshl_b32 s{sOF}, s{sOF}, 10
s_add_u32 s{sOF}, s{sOF}, {OF}
s_lshl_b32 s{sT0}, s{sXCD}, 3
s_add_u32 s{sTILE}, s{sT0}, s{sT1}
s_lshl_b32 s{sOP}, s{sTILE}, 3
s_add_u32 s{sOP}, s{sOP}, s{sW}
s_lshl_b32 s{sOP}, s{sOP}, 12
s_add_u32 s{sOP}, s{sOP}, {OF}
s_mul_i32 s{sT0}, s{sW}, 14
s_mul_i32 s{sHS}, s{sTILE}, 112
s_add_u32 s{sHS}, s{sHS}, s{sT0}
s_lshl_b32 s{sHS}, s{sHS}, 10
s_add_u32 s{sHS}, s{sHS}, {HF}
s_lshl_b32 s{sWSRC}, s{sT0}, 4
s_lshl_b32 s{sT1}, s{sCG}, 2
s_add_u32 s{sWSRC}, s{sWSRC}, s{sT1}
s_lshl_b32 s{sWSRC}, s{sWSRC}, 10
s_add_u32 s{sWSRC}, s{sWSRC}, {WF}
s_lshl_b32 s{sWO}, s{sKH}, 4
s_add_u32 s{sWO}, s{sWO}, 112
s_lshl_b32 s{sWO}, s{sWO}, 4
s_add_u32 s{sWO}, s{sWO}, s{sT1}
s_add_u32 s{sWO}, s{sWO}, s{sCT}
s_lshl_b32 s{sWO}, s{sWO}, 10
s_add_u32 s{sWO}, s{sWO}, {WF}
v_mov_b32 v92, -1
v_mov_b32 v93, -1
v_mov_b32 v94, -1
v_mov_b32 v95, -1
''')
    a.vmem(f'buffer_store_dwordx4 v[92:95], v{vL16}, {srd(S_WS)}, s{sOF} offen sc1', 'st')


def ini_load(a):
    return f'buffer_load_dword v92, off, {srd(S_DBG)}, 0 sc1'


def hook9(a, g):
    a.vmem(ini_load(a), 'ini')


def prebar11(a, g):
    a.wait_vm('ini')

    def chk(ok):
        a('v_cmp_eq_u32 vcc, 1, v92')
        a(f's_cbranch_vccnz {ok}')
    spin(a, 1, lambda: a(ini_load(a)), chk)


def hook11(a, g):
    if g == 0:
        lbl = a.newlabel('nofa')
        a(f'''
s_cmp_lg_u32 s{sW}, 0
s_cbranch_scc1 {lbl}
s_lshl_b32 s{sT0}, s{k1.sHP}, 8
s_lshl_b32 s{sT1}, s{k1.sTB}, 2
s_add_u32 s{sT0}, s{sT0}, s{sT1}
s_add_u32 s{sT0}, s{sT0}, {FA}
''')
        one_lane_store(a, 92, S_WS, f's{sT0}')
        a.label(lbl)
    k1.prep_finish(a)


def fa_load():
    return f'buffer_load_dword v93, v94, {srd(S_WS)}, s{sSPIN - 0 if False else sT1} offen sc1'


def fa_addr(a):
    a(f'''
s_lshr_b32 s{sT1}, s{sH}, 1
s_lshl_b32 s{sT1}, s{sT1}, 8
s_add_u32 s{sT1}, s{sT1}, {FA}
''')


def hook15(a, g):
    a('v_and_b32 v94, 15, v0')
    a('v_lshlrev_b32 v94, 2, v94')
    fa_addr(a)
    a.vmem(fa_load(), 'fa')


def fa_check(a):
    def chk(ok):
        a('v_cmp_ne_u32 vcc, 1, v93')
        a(f's_cbranch_vccz {ok}')

    def ld():
        fa_addr(a)
        a(fa_load())
    spin(a, 2, ld, chk)


def kv_dma(a, i):
    def f():
        a(f's_add_u32 m0, s{sMD}, {i * 8192}')
        a(f's_add_u32 s{sT2}, s{sSRC}, {i * 8192}')
        a.vmem(f'buffer_load_dwordx4 v{vL16}, {srd(S_WS)}, s{sT2} offen sc1 lds', f'kv{i}')
    return f


def q_load(a):
    def f():
        a(f'''
s_lshl_b32 s{sT2}, s{sH}, 6
s_add_u32 s{sT2}, s{sT2}, s{sTQ}
s_lshl_b32 s{sT2}, s{sT2}, 10
''')
        a.vmem(f'buffer_load_dwordx4 v[{RQ}:{RQ + 3}], v{vL16}, {srd(S_WS)}, s{sT2} offen sc1', 'q')
    return f


def k_read(a, t):
    ar, off = (aK0, t * 2048) if t < 32 else (aK1, (t - 32) * 2048)
    a.ds(f'ds_read_b128 v[{RK}:{RK + 3}], v{ar} offset:{off}', f'K{t}')


def v_reads(a, items):
    a(f's_mov_b64 exec, s[{sVM}:{sVM + 1}]')
    for part, t in items:
        ar, off = (aV0, t * 2048) if t < 32 else (aV1, (t - 32) * 2048)
        r = RV0 if part == 0 else RV1
        a.ds(f'ds_read_b128 v[{r}:{r + 3}], v{ar} offset:{off + part * 512}', f'V{part}_{t}')
    a('s_mov_b64 exec, -1')


def run(a, items):
    for it in items:
        emit(a, it)


def attn_step(a, t, nt, ev, mf, pre):
    S, Sn = RS[t % 2], RS[(t + 1) % 2]
    ex = [f'v_exp_f32 v{S + i}, v{S + i}' for i in range(16)]
    cv = [f'v_cvt_pk_bf16_f32 v{RP + i}, v{S + 2 * i}, v{S + 2 * i + 1}' for i in range(8)]
    run(a, pre.get(t, []))
    if t + 1 < nt:
        a.wait_lg(f'K{t + 1}')
        a(mfma32(Sn, RK, RQ, NEGM))
        if t + 2 < nt:
            k_read(a, t + 2)
    run(a, ev.get(2 * t, []))
    run(a, (ex[0], ex[1], ex[2], ex[3]))
    run(a, mf.get(2 * t, []))
    run(a, (cv[0], ex[4], ex[5], cv[1]))
    if t > 0:
        a.wait_lg(f'V1_{t - 1}')
        a(mfma32(RO, RV1, RP + 4, RO))
    run(a, (ex[6], ex[7], cv[2], ex[8], ex[9], cv[3], ex[10], ex[11]))
    a.wait_lg(f'V0_{t}')
    a(mfma32(RO, RV0, RP, '0' if t == 0 else RO))
    items = [(1, t)]
    if t + 1 < nt:
        items.append((0, t + 1))
    v_reads(a, items)
    run(a, ev.get(2 * t + 1, []))
    run(a, (cv[4], ex[12], ex[13], cv[5]))
    run(a, mf.get(2 * t + 1, []))
    run(a, (ex[14], ex[15], cv[6], cv[7]))


def row_max(a, S, dst, tmp):
    a(f'v_max3_f32 v{dst}, v{S}, v{S + 1}, v{S + 2}')
    a(f'v_max3_f32 v{tmp}, v{S + 3}, v{S + 4}, v{S + 5}')
    a(f'v_max3_f32 v{dst}, v{dst}, v{S + 6}, v{S + 7}')
    a(f'v_max3_f32 v{tmp}, v{tmp}, v{S + 8}, v{S + 9}')
    a(f'v_max3_f32 v{dst}, v{dst}, v{S + 10}, v{S + 11}')
    a(f'v_max3_f32 v{tmp}, v{tmp}, v{S + 12}, v{S + 13}')
    a(f'v_max3_f32 v{dst}, v{dst}, v{S + 14}, v{S + 15}')
    a(f'v_max_f32 v{dst}, v{dst}, v{tmp}')
    a(f'v_mov_b32 v{tmp}, v{dst}')
    a(f'v_permlane32_swap_b32 v{dst}, v{tmp}')
    a(f'v_max_f32 v{dst}, v{dst}, v{tmp}')


def fallback(a, done_label):
    a.comment('--- fallback: online softmax with the running true maximum')
    loop = a.newlabel('fb_loop')
    S = RS[0]
    vm, vmn, val, va, vb = vT, vT + 1, vT + 2, vT + 3, vT + 4
    a(f'v_mov_b32 v{vm}, 0xff800000')
    for i in range(16):
        a(f'v_mov_b32 v{RO + i}, 0')
    a(f'v_mov_b32 v{va}, v{aK0}')
    a(f'v_mov_b32 v{vb}, v{aV0}')
    a(f's_mov_b32 s{sT0}, 64')
    a.label(loop)
    a(f'ds_read_b128 v[{RK}:{RK + 3}], v{va}')
    a(f's_mov_b64 exec, s[{sVM}:{sVM + 1}]')
    a(f'ds_read_b128 v[{RV0}:{RV0 + 3}], v{vb}')
    a(f'ds_read_b128 v[{RV1}:{RV1 + 3}], v{vb} offset:512')
    a('s_mov_b64 exec, -1')
    a('s_waitcnt lgkmcnt(0)')
    a(mfma32(S, RK, RQ, '0'))
    a(f'v_add_u32 v{va}, 0x800, v{va}')
    a(f'v_add_u32 v{vb}, 0x800, v{vb}')
    row_max(a, S, vmn, val)
    a(f'v_max_f32 v{vmn}, v{vmn}, v{vm}')
    a(f'v_sub_f32 v{val}, v{vm}, v{vmn}')
    a(f'v_exp_f32 v{val}, v{val}')
    a(f'v_mov_b32 v{vm}, v{vmn}')
    for i in range(16):
        a(f'v_sub_f32 v{S + i}, v{S + i}, v{vmn}')
    for i in range(16):
        a(f'v_exp_f32 v{S + i}, v{S + i}')
    for i in range(16):
        a(f'v_mul_f32 v{RO + i}, v{val}, v{RO + i}')
    for i in range(8):
        a(f'v_cvt_pk_bf16_f32 v{RP + i}, v{S + 2 * i}, v{S + 2 * i + 1}')
    a(mfma32(RO, RV0, RP, RO))
    a(mfma32(RO, RV1, RP + 4, RO))
    a(f's_sub_u32 s{sT0}, s{sT0}, 1')
    a(f's_cmp_lg_u32 s{sT0}, 0')
    a(f's_cbranch_scc1 {loop}')
    a(f's_branch {done_label}')


def slot(i):
    return RING + 4 * (i % 16)


def stream_load(a, i):
    def f():
        if i < 70:
            s, j = divmod(i, 5)
            if j == 0:
                a(f's_add_u32 s{sT2}, s{sHS}, {s * 1024}')
                a.vmem(f'buffer_load_dwordx4 v[{slot(i)}:{slot(i) + 3}], v{vL16}, {srd(S_WS)}, s{sT2} offen sc1', f'f{i}')
            else:
                if j == 1:
                    a(f's_add_u32 s{sT3}, s{sWSRC}, {s * 16384}')
                a.vmem(f'buffer_load_dwordx4 v[{slot(i)}:{slot(i) + 3}], v{vL16}, {srd(S_WS)}, s{sT3} offen '
                       f'offset:{(j - 1) * 1024} sc1', f'f{i}')
        else:
            k = i - 70
            a(f's_add_u32 s{sT2}, s{sWO}, {k * 16384}')
            a.vmem(f'buffer_load_dwordx4 v[{slot(i)}:{slot(i) + 3}], v{vL16}, {srd(S_WS)}, s{sT2} offen sc1', 'wo')
    return f


def stream_mfma(a, s, j):
    def f():
        iw, ih = 5 * s + 1 + j, 5 * s
        a.wait_vm(f'f{iw}')
        a(mfma32(ACC + 16 * j, slot(iw), slot(ih), '0' if s == 0 else None))
    return f


def side_loads(a):
    a(f'''
s_lshl_b32 s{sT0}, s{sCG}, 8
s_lshl_b32 s{sT1}, s{sCT}, 6
s_add_u32 s{sT0}, s{sT0}, s{sT1}
s_lshl_b32 s{sT1}, s{sKH}, 5
s_add_u32 s{sT0}, s{sT0}, s{sT1}
v_lshrrev_b32 v{vT}, 5, v0
v_lshlrev_b32 v{vT}, 3, v{vT}
v_add_u32 v{vT}, s{sT0}, v{vT}
v_and_b32 v{vT + 1}, 31, v0
v_lshlrev_b32 v{vT + 1}, 10, v{vT + 1}
s_lshl_b32 s{sT1}, s{sTILE}, 15
v_add3_u32 v{vT + 1}, v{vT + 1}, v{vT}, s{sT1}
''')
    a.vmem(f'buffer_load_dwordx2 v[{vB2}:{vB2 + 1}], v{vT}, {srd(S_B2)}, 0 offen', 'side')
    a.vmem(f'buffer_load_dwordx2 v[{vB2 + 2}:{vB2 + 3}], v{vT}, {srd(S_B2)}, 0 offen offset:16', 'side')
    a.vmem(f'buffer_load_dwordx2 v[{vX}:{vX + 1}], v{vT + 1}, {srd(S_X)}, 0 offen', 'side')
    a.vmem(f'buffer_load_dwordx2 v[{vX + 2}:{vX + 3}], v{vT + 1}, {srd(S_X)}, 0 offen offset:16', 'side')
    a(f'''
v_lshrrev_b32 v{vT + 2}, 5, v0
v_lshlrev_b32 v{vT + 2}, 4, v{vT + 2}
v_and_b32 v{vXO}, 31, v0
v_lshlrev_b32 v{vXO}, 10, v{vXO}
s_add_u32 s{sT0}, s{sT0}, s{sT1}
v_add3_u32 v{vXO}, v{vXO}, v{vT + 2}, s{sT0}
''')


def fb_signal_1(a):
    a.wait_vm('hb')
    a(f'''
v_mov_b32 v{vT}, {LCNT}
v_mov_b32 v{vT + 1}, 1
s_mov_b64 exec, 1
''')
    a.ds(f'ds_add_rtn_u32 v{vT + 1}, v{vT}, v{vT + 1}', 'cnt')
    a('s_mov_b64 exec, -1')


def fb_signal_2(a):
    lbl = a.newlabel('nofb')
    a.wait_lg('cnt')
    a(f'''
v_readfirstlane_b32 s{sT0}, v{vT + 1}
s_cmp_lg_u32 s{sT0}, 7
s_cbranch_scc1 {lbl}
s_lshr_b32 s{sT0}, s2, 4
s_lshl_b32 s{sT0}, s{sT0}, 8
s_and_b32 s{sT1}, s2, 15
s_lshl_b32 s{sT1}, s{sT1}, 2
s_add_u32 s{sT0}, s{sT0}, s{sT1}
s_add_u32 s{sT0}, s{sT0}, {FB}
''')
    one_lane_store(a, vT + 1, S_WS, f's{sT0}')
    a.label(lbl)


def fb_load(a):
    return f'buffer_load_dwordx4 v[8:11], v{vT}, {srd(S_WS)}, s{sT1} offen sc1'


def fb_poll(a):
    a(f'''
v_lshrrev_b32 v{vT}, 2, v0
v_lshlrev_b32 v{vT}, 8, v{vT}
v_and_b32 v{vT + 1}, 3, v0
v_lshlrev_b32 v{vT + 1}, 4, v{vT + 1}
v_add_u32 v{vT}, v{vT}, v{vT + 1}
s_mov_b32 s{sT1}, {FB}
''')
    a.vmem(fb_load(a), 'fb')


def fb_check(a):
    a.wait_vm('fb')

    def chk(ok):
        a('v_and_b32 v8, v8, v9')
        a('v_and_b32 v10, v10, v11')
        a('v_and_b32 v8, v8, v10')
        a('v_cmp_ne_u32 vcc, 1, v8')
        a(f's_cbranch_vccz {ok}')

    def ld():
        a(f's_mov_b32 s{sT1}, {FB}')
        a(fb_load(a))
    spin(a, 3, ld, chk)


def o_loads(a, tracked):
    for i in range(4):
        t = f'buffer_load_dwordx4 v[{OP + 4 * i}:{OP + 4 * i + 3}], v{vL16}, {srd(S_WS)}, s{sOP} offen offset:{1024 * i} sc1'
        if tracked:
            a.vmem(t, 'op')
        else:
            a(t)


def o_check(a):
    a.wait_vm('op')

    def chk(ok):
        for i in range(4):
            r = OP + 4 * i
            a(f'v_max3_u32 v{vT + i}, v{r}, v{r + 1}, v{r + 2}')
            a(f'v_max_u32 v{vT + i}, v{vT + i}, v{r + 3}')
        a(f'v_max3_u32 v{vT}, v{vT}, v{vT + 1}, v{vT + 2}')
        a(f'v_max_u32 v{vT}, v{vT}, v{vT + 3}')
        a(f'v_cmp_eq_u32 vcc, -1, v{vT}')
        a(f's_cbranch_vccz {ok}')
    spin(a, 4, lambda: o_loads(a, False), chk)


def reduce_write(a):
    a(f's_lshl_b32 s{sT0}, s{sW}, 14')
    a(f'v_add_u32 v{vT}, s{sT0}, v{vL16}')
    for k in range(16):
        a.ds(f'ds_write_b128 v{vT}, v[{ACC + 4 * k}:{ACC + 4 * k + 3}] offset:{k * 1024}', 'rw')


def reduce_read_gate(a):
    a(f'''
s_lshl_b32 s{sT0}, s{sCT}, 12
s_lshl_b32 s{sT1}, s{sKH}, 11
s_add_u32 s{sT0}, s{sT0}, s{sT1}
v_add_u32 v{vT}, s{sT0}, v{vL16}
v_add_u32 v{vT + 1}, 0x10000, v{vT}
''')
    t = ACC
    for w in range(8):
        for e in range(2):
            ar = vT if w < 4 else vT + 1
            d = t + 8 * w + 4 * e
            a.ds(f'ds_read_b128 v[{d}:{d + 3}], v{ar} offset:{(w % 4) * 16384 + e * 1024}', f'r{w}')
    a.wait_vm('side')
    for e in range(2):
        for h in range(2):
            a(f'v_lshlrev_b32 v{vG + 4 * e + 2 * h}, 16, v{vB2 + 2 * e + h}')
            a(f'v_and_b32 v{vG + 4 * e + 2 * h + 1}, 0xffff0000, v{vB2 + 2 * e + h}')
    for w in range(8):
        a.wait_lg(f'r{w}')
        for k in range(8):
            a(f'v_add_f32 v{vG + k}, v{vG + k}, v{t + 8 * w + k}')
    for k in range(8):
        a(f'v_mul_f32 v{t + k}, {fl(-LOG2E)}, v{vG + k}')
    for k in range(8):
        a(f'v_exp_f32 v{t + k}, v{t + k}')
    for k in range(8):
        a(f'v_add_f32 v{t + k}, 1.0, v{t + k}')
    for k in range(8):
        a(f'v_rcp_f32 v{t + k}, v{t + k}')
    for k in range(8):
        a(f'v_mul_f32 v{vG + k}, v{vG + k}, v{t + k}')


def ob_write(a):
    a(f's_lshl_b32 s{sT0}, s{sW}, 12')
    a(f's_add_u32 s{sT0}, s{sT0}, {OB}')
    a(f'v_add_u32 v{vT}, s{sT0}, v{vL16}')
    for i in range(4):
        a.ds(f'ds_write_b128 v{vT}, v[{OP + 4 * i}:{OP + 4 * i + 3}] offset:{i * 1024}', 'ow')


def wo_gemm(a):
    a(f's_lshl_b32 s{sT0}, s{sKH}, 14')
    a(f's_add_u32 s{sT0}, s{sT0}, {OB}')
    a(f'v_add_u32 v{vT}, s{sT0}, v{vL16}')
    bb = ACC
    for i in range(16):
        a.ds(f'ds_read_b128 v[{bb + 4 * i}:{bb + 4 * i + 3}], v{vT} offset:{i * 1024}', f'o{i}')
    a.wait_vm('wo')
    for i in range(16):
        a.wait_lg(f'o{i}')
        a(mfma32(RO, slot(70 + i), bb + 4 * i, '0' if i == 0 else None))


def exchange(a, label):
    k1l = label + '_kh1'
    j = label + '_khj'
    a(f'''
s_lshl_b32 s{sT0}, s{sW}, 11
v_add_u32 v{vT}, s{sT0}, v{vL16}
s_xor_b32 s{sT0}, s{sW}, 4
s_lshl_b32 s{sT0}, s{sT0}, 11
v_add_u32 v{vT + 1}, s{sT0}, v{vL16}
s_cmp_eq_u32 s{sKH}, 1
s_cbranch_scc1 {k1l}
''')
    for kh in (0, 1):
        if kh == 1:
            a.label(k1l)
        send = RO + (8 if kh == 0 else 0)
        keep = RO + (0 if kh == 0 else 8)
        a(f'ds_write_b128 v{vT}, v[{send}:{send + 3}]')
        a(f'ds_write_b128 v{vT}, v[{send + 4}:{send + 7}] offset:1024')
        for k in range(8):
            a(f'v_mov_b32 v{vS + k}, v{keep + k}')
        if kh == 0:
            a(f's_branch {j}')
    a.label(j)
    a('s_waitcnt lgkmcnt(0)')
    a('s_barrier')
    t = ACC
    a(f'ds_read_b128 v[{t}:{t + 3}], v{vT + 1}')
    a(f'ds_read_b128 v[{t + 4}:{t + 7}], v{vT + 1} offset:1024')
    return t


def final(a, t):
    u = ACC + 32
    for k in range(4):
        a(f'v_lshlrev_b32 v{u + 2 * k}, 16, v{vX + k}')
        a(f'v_and_b32 v{u + 2 * k + 1}, 0xffff0000, v{vX + k}')
    a('s_waitcnt lgkmcnt(0)')
    for k in range(8):
        a(f'v_add_f32 v{vS + k}, v{vS + k}, v{t + k}')
    for k in range(8):
        a(f'v_fma_f32 v{vS + k}, v{vS + k}, v{vG + k}, v{u + k}')
    for k in range(4):
        a(f'v_cvt_pk_bf16_f32 v{vS + k}, v{vS + 2 * k}, v{vS + 2 * k + 1}')
    a(f'v_permlane32_swap_b32 v{vS}, v{vS + 2}')
    a(f'v_permlane32_swap_b32 v{vS + 1}, v{vS + 3}')
    a.vmem(f'buffer_store_dwordx4 v[{vS}:{vS + 3}], v{vXO}, {srd(S_OUT)}, 0 offen', 'st')


STAMPS = {}


def st(a, name):
    if name in STAMPS:
        stamp(a, STAMPS[name])


def gen_km(label, force_fallback=False):
    k1.SC = ' sc1'
    k1.HOOKS = {0: hook0, 8: hook8, 9: hook9, 11: hook11, 15: hook15}
    k1.PREBAR = {11: prebar11}
    a = Asm()
    end = label + '_end'
    att = label + '_att'
    prologue(a, end, None)
    build_srds(a, ['x', 'wq', 'w1', 'ws', 'w2', 'wo', 'b1', 'b2', 'out', 'dbg'])
    stamp(a, 0, 0)
    start_extra(a)
    k1.setup(a)
    g1 = label + '_g1'
    a(f's_cmp_eq_u32 s{sG}, 1')
    a(f's_cbranch_scc1 {g1}')
    snap0 = a.snapshot()
    joinsnap = None
    pre_n = OPT['kvpre']
    for g in (0, 1):
        if g == 1:
            a.label(g1)
            a.restore(snap0)
        for n in range(5):
            for d in k1.dma_ops(a, n, g):
                d()
        k1.setup2(a)
        for n in range(8):
            k1.p1_stage(a, n, g)
            st(a, f'p1_{n}')
        k1.p1_epilogue(a, g)
        st(a, 'e1')
        for n in range(8, 16):
            k1.p2_stage(a, n, g)
            st(a, f'p2_{n}')
        k1.p2_b_phase(a, 15, [[], [], [], []], [])
        k1.write_cs_partials(a, [(k1.vCSB, (3 + 2 * g + 1) * 512)])
        a.wait_all()
        a('s_barrier')
        fa_check(a)
        st(a, 'tail')
        k1.gelu_simple(a, g, 0, [q_load(a)] + [kv_dma(a, i) for i in range(pre_n)], 'ha')
        if g == 1:
            skip = a.newlabel('skipb')
            a(f's_cmp_eq_u32 s{k1.sPB}, 0')
            a(f's_cbranch_scc1 {skip}')
        k1.gelu_simple(a, g, 1, [], 'hb')
        if g == 1:
            jn = a.newlabel('joinb')
            a(f's_branch {jn}')
            a.label(skip)
            a(f'buffer_load_dword v10, v{vL16}, {srd(S_WS)}, s{sSRC} offen')
            a(f'buffer_load_dword v11, v{vL16}, {srd(S_WS)}, s{sSRC} offen')
            a.label(jn)
        a.wait_lg()
        st(a, 'gelu')
        if g == 0:
            a(f's_branch {att}')
            joinsnap = a.snapshot()
        else:
            assert a.snapshot() == joinsnap, (a.snapshot(), joinsnap)
    a.label(att)
    a(f'''
v_mov_b32 v{aK0}, v{vL16}
v_add_u32 v{aK1}, 0x10000, v{vL16}
v_and_b32 v{vT}, 15, v0
v_lshrrev_b32 v{vT + 1}, 5, v0
v_lshlrev_b32 v{vT + 1}, 4, v{vT + 1}
v_add_u32 v{vT}, v{vT}, v{vT + 1}
v_lshlrev_b32 v{vT}, 4, v{vT}
v_add_u32 v{aV0}, 0x400, v{vT}
v_add_u32 v{aV1}, 0x10400, v{vT}
s_mov_b32 s{sVM}, 0xffff
s_mov_b32 s{sVM + 1}, 0xffff
''')
    for i in range(4):
        a(f'v_mov_b32 v{RV0 + i}, 0x3f803f80')
        a(f'v_mov_b32 v{RV1 + i}, 0x3f803f80')
    b1 = OPT.get('b1', pre_n)
    a.wait_vm(['q'] + [f'kv{i}' for i in range(b1)])
    a('s_barrier')
    st(a, 'b1')
    ev, mf, pre = {}, {}, {}
    add = lambda d, k, x: d.setdefault(k, []).append(x)
    k_read(a, 0)
    v_reads(a, [(0, 0)])
    a.wait_lg('K0')
    a(mfma32(RS[0], RK, RQ, '0'))
    row_max(a, RS[0], vT, vT + 1)
    for i in range(16):
        a(f'v_sub_f32 v{NEGM + i}, 0, v{vT}')
    a(mfma32(RS[0], RK, RQ, NEGM))
    k_read(a, 1)
    for i in range(pre_n, 16):
        add(ev, 2 * (i - pre_n), kv_dma(a, i))
    if b1 < pre_n:
        tb = 4 * b1 - 2
        add(pre, tb, lambda: (a.wait_vm([f'kv{i}' for i in range(pre_n)]), a('s_barrier')))
    tb2 = OPT['b2']
    assert tb2 <= 4 * pre_n - 2
    add(pre, tb2, lambda: (a.wait_vm([f'kv{i}' for i in range(16)]), a('s_barrier')))
    fs = OPT['fbsig']
    add(pre, fs, lambda: fb_signal_1(a))
    add(pre, fs + 1, lambda: fb_signal_2(a))
    u0, D = OPT['u0'], OPT['D']
    add(ev, u0 - 5, lambda: fb_poll(a))
    add(pre, u0 // 2, lambda: fb_check(a))
    for i in range(86):
        add(ev, u0 + i, stream_load(a, i))
    for s in range(14):
        for j in range(4):
            add(mf, u0 + 5 * s + 1 + j + D, stream_mfma(a, s, j))
    add(ev, u0 + 87, lambda: side_loads(a))
    assert u0 + 87 < 128
    if OPT['prio']:
        OPT['prio'](a, add, pre, ev)
    for t in range(64):
        attn_step(a, t, 64, ev, mf, pre)
        st(a, f'a{t}')
    a.wait_lg()
    a(mfma32(RO, RV1, RP + 4, RO))
    fb = label + '_fb'
    fin = label + '_fin'
    a(f'v_mul_f32 v{vT}, 0, v{RO + 8}')
    for i in range(8):
        a(f'v_fma_f32 v{vT}, v{RO + i}, 0, v{vT}')
    a(f'v_cmp_u_f32 vcc, v{vT}, v{vT}')
    if force_fallback:
        a(f's_branch {fb}')
    else:
        a(f's_cbranch_vccnz {fb}')
    a.label(fin)
    a(f'v_rcp_f32 v{vT}, v{RO + 8}')
    for i in range(8):
        a(f'v_mul_f32 v{RO + i}, v{vT}, v{RO + i}')
    for i in range(4):
        a(f'v_cvt_pk_bf16_f32 v{RO + i}, v{RO + 2 * i}, v{RO + 2 * i + 1}')
    for i in range(4):
        a(f'v_min_u32 v{RO + i}, -2, v{RO + i}')
    a.vmem(f'buffer_store_dwordx4 v[{RO}:{RO + 3}], v{vL16}, {srd(S_WS)}, s{sOF} offen sc1', 'ost')
    st(a, 'oend')
    a('s_barrier')
    st(a, 'ba')
    reduce_write(a)
    o_loads(a, True)
    a.wait_lg()
    a('s_barrier')
    st(a, 'bb')
    reduce_read_gate(a)
    st(a, 'gate')
    o_check(a)
    st(a, 'opoll')
    ob_write(a)
    a.wait_lg()
    a('s_barrier')
    st(a, 'bc')
    wo_gemm(a)
    st(a, 'wog')
    a.wait_lg()
    t = exchange(a, label)
    final(a, t)
    st(a, 'fin')
    a('s_waitcnt vmcnt(0)')
    stamp(a, 9, 1)
    stamp_flush(a, 0)
    a('s_endpgm')
    a.label(fb)
    fallback(a, fin)
    a.label(end)
    a('s_endpgm')
    return a
```

```python
import sys
from common import *
import k1

def build(kernels, out):
    t = HEADER_COMMENT
    for label, a, lds, block in kernels:
        t += f'; @launch kernel={label} grid=(256,1,1) block=({block},1,1) lds={lds}\n'
    t += '.amdgcn_target "amdgcn-amd-amdhsa--gfx950"\n.text\n'
    for label, a, lds, block in kernels:
        t += kernel_text(label, a.finalize())
        print(label, 'instructions', len(a.ins), 'nops inserted', a.nops_inserted, file=sys.stderr)
    t += '.section .rodata,"a"\n'
    for label, a, lds, block in kernels:
        t += descriptor(label)
    open(out, 'w').write(t)

def build_single(a, lds, out):
    label = NAME + '_kernel'
    t = HEADER_COMMENT
    t += f'; @launch grid=(256,1,1) block=(512,1,1) lds={lds}\n'
    t += '.amdgcn_target "amdgcn-amd-amdhsa--gfx950"\n.text\n'
    t += kernel_text(label, a.finalize())
    print(label, 'instructions', len(a.ins), 'nops inserted', a.nops_inserted, file=sys.stderr)
    t += '.section .rodata,"a"\n'
    t += descriptor(label)
    open(out, 'w').write(t)

if __name__ == '__main__':
    import common
    if '--stamp' in sys.argv:
        common.STAMP = True
    if '--cyc' in sys.argv:
        common.STAMP = 'cyc'
    for arg in sys.argv:
        if arg.startswith('--k1st='):
            k1.STAMPS = {n: i + 1 for i, n in enumerate(arg[7:].split(','))}
    for arg in sys.argv:
        if arg.startswith('--exp='):
            k1.EXP = set(arg[6:].split(','))
    for arg in sys.argv:
        if arg.startswith('--hpx='):
            k1.HPX = int(arg[6:])
    which = sys.argv[1]
    out = sys.argv[2]
    ks = []
    if 'm' in which:
        import km
        for arg in sys.argv:
            if arg.startswith('--st='):
                km.STAMPS = {n: i + 1 for i, n in enumerate(arg[5:].split(','))}
            if arg.startswith('--opt='):
                for kv in arg[6:].split(','):
                    k, v_ = kv.split(':')
                    km.OPT[k] = int(v_)
        a = km.gen_km(NAME + '_kernel', force_fallback='--fb' in sys.argv)
        build_single(a, km.KM_LDS, out)
        sys.exit(0)
    if '1' in which:
        ks.append(('k1_kernel', k1.gen_k1('k1_kernel'), k1.K1_LDS, 512))
    if '2' in which:
        import k2
        ks.append(('k2_kernel', k2.gen_k2('k2_kernel'), k2.K2_LDS, 512))
    if '3' in which:
        import k3
        ks.append(('k3_kernel', k3.gen_k3('k3_kernel'), k3.K3_LDS, 512))
    build(ks, out)
```

```python
from common import *
import k1
from k1 import fl

KM_LDS = 163840
LCNT = 163824
RED = 0
OB = 131072
FA = FL
FB = FL + 4096
FH = FL + 8192
LOG2E = 1.4426950408889634
SPIN = 20000

sT0, sT1, sT2, sT3 = 52, 53, 54, 55
sH, sTQ, sSRC, sMD = 20, 21, 22, 23
sTILE, sCG, sOF, sOP = 24, 25, 26, 27
sHS, sWSRC, sWO, sSPIN = 8, 9, 10, 11
sVM = 94
sCT, sKH = sTT, sG

vL16 = 1
aK0, aK1, aV0, aV1 = 2, 3, 4, 5
vT = 6
RQ, RK, RV0, RV1, RP = 12, 16, 20, 24, 28
NEGM = 36
RS = (52, 68)
RO = 84
ACC = 100
RING = 164
vX, vB2, vXO = 228, 232, 236
vG, vS = 240, 248
OP = 52

OPT = dict(u0=28, D=11, fbsig=5, prio=None, b2=24, kvpre=8, nofb=False)


def spin(a, site, load, check_ok):
    ok = a.newlabel('ok')
    lp = a.newlabel('spin')
    check_ok(ok)
    a(f's_mov_b32 s{sSPIN}, {SPIN}')
    a.label(lp)
    a('s_sleep 1')
    load()
    a('s_waitcnt vmcnt(0)')
    check_ok(ok)
    a(f's_sub_u32 s{sSPIN}, s{sSPIN}, 1')
    a(f's_cmp_lg_u32 s{sSPIN}, 0')
    a(f's_cbranch_scc1 {lp}')
    a(f'v_mov_b32 v{vT}, {site}')
    a(f'buffer_store_dword v{vT}, off, {srd(S_DBG)}, 0 offset:{4 * site}')
    a.label(ok)


def one_lane_store(a, reg, srdn, soff, val=1):
    a('s_mov_b64 exec, 1')
    a(f'v_mov_b32 v{reg}, {val}')
    a(f'buffer_store_dword v{reg}, off, {srd(srdn)}, {soff} sc1')
    a('s_mov_b64 exec, -1')


def start_extra(a):
    lbl = a.newlabel('noinit')
    a(f'''
v_mov_b32 v20, 0
v_mov_b32 v21, 0
v_mov_b32 v22, 0
v_mov_b32 v23, 0
v_mov_b32 v24, {LCNT}
''')
    a.ds('ds_write_b32 v24, v20', 'w')
    a(f'''
s_or_b32 s{sT0}, s2, s{sW}
s_cmp_lg_u32 s{sT0}, 0
s_cbranch_scc1 {lbl}
v_lshrrev_b32 v1, 2, v0
v_lshlrev_b32 v1, 8, v1
v_and_b32 v2, 3, v0
v_lshlrev_b32 v2, 4, v2
v_add_u32 v1, v1, v2
s_mov_b32 s{sT0}, {FA}
s_mov_b32 s{sT1}, {FB}
s_mov_b32 s{sT2}, {FH}
buffer_store_dwordx4 v[20:23], v1, {srd(S_WS)}, s{sT0} offen sc1
buffer_store_dwordx4 v[20:23], v1, {srd(S_WS)}, s{sT1} offen sc1
buffer_store_dwordx4 v[20:23], v1, {srd(S_WS)}, s{sT2} offen sc1
''')
    a.label(lbl)


def prefetch(a):
    pf = OPT['pf']
    a(f'''
s_lshl_b32 s{sT0}, s2, 3
s_add_u32 s{sT0}, s{sT0}, s{sW}
v_lshlrev_b32 v48, 4, v0
''')
    if pf & 1:
        a(f's_mul_i32 s{sT1}, s{sT0}, 768')
        a.vmem(f'buffer_load_dwordx4 v[52:55], v48, {srd(S_WQ)}, s{sT1} offen', 'pf')
    if pf & 2:
        a(f's_mul_i32 s{sT1}, s{sT0}, 896')
        a.vmem(f'buffer_load_dwordx4 v[56:59], v48, {srd(S_W1)}, s{sT1} offen', 'pf')
    if pf & 4:
        a(f's_lshl_b32 s{sT1}, s{sT0}, 10')
        a.vmem(f'buffer_load_dwordx4 v[60:63], v48, {srd(S_X)}, s{sT1} offen', 'pf')
    if pf & 8:
        a(f's_mul_i32 s{sT1}, s{sT0}, 896')
        a.vmem(f'buffer_load_dwordx4 v[56:59], v48, {srd(S_W2)}, s{sT1} offen', 'pf')
        a(f's_lshl_b32 s{sT1}, s{sT0}, 8')
        a.vmem(f'buffer_load_dword v60, v48, {srd(S_WO)}, s{sT1} offen', 'pf')


def hook0(a, g):
    if g != 0:
        return
    lbl = a.newlabel('noinit2')
    a(f'''
s_or_b32 s{sT0}, s2, s{sW}
s_cmp_lg_u32 s{sT0}, 0
s_cbranch_scc1 {lbl}
''')
    one_lane_store(a, 20, S_DBG, 0)
    a.label(lbl)


def hook8(a, g):
    a(f'''
s_lshl_b32 s{sT0}, s{sXCD}, 2
s_lshr_b32 s{sCG}, s{sSLOT}, 3
s_add_u32 s{sH}, s{sT0}, s{sCG}
s_and_b32 s{sT1}, s{sSLOT}, 7
s_lshl_b32 s{sTQ}, s{sT1}, 3
s_add_u32 s{sTQ}, s{sTQ}, s{sW}
s_lshl_b32 s{sMD}, s{sW}, 10
s_lshl_b32 s{sSRC}, s{sH}, 17
s_add_u32 s{sSRC}, s{sSRC}, {KV}
s_add_u32 s{sSRC}, s{sSRC}, s{sMD}
s_lshl_b32 s{sOF}, s{sTQ}, 5
s_add_u32 s{sOF}, s{sOF}, s{sH}
s_lshl_b32 s{sOF}, s{sOF}, 10
s_add_u32 s{sOF}, s{sOF}, {OF}
s_lshl_b32 s{sT0}, s{sXCD}, 3
s_add_u32 s{sTILE}, s{sT0}, s{sT1}
s_lshl_b32 s{sOP}, s{sTILE}, 3
s_add_u32 s{sOP}, s{sOP}, s{sW}
s_lshl_b32 s{sOP}, s{sOP}, 12
s_add_u32 s{sOP}, s{sOP}, {OF}
s_mul_i32 s{sT0}, s{sW}, 14
s_mul_i32 s{sHS}, s{sTILE}, 112
s_add_u32 s{sHS}, s{sHS}, s{sT0}
s_lshl_b32 s{sHS}, s{sHS}, 10
s_add_u32 s{sHS}, s{sHS}, {HF}
s_lshl_b32 s{sWSRC}, s{sT0}, 4
s_lshl_b32 s{sT1}, s{sCG}, 2
s_add_u32 s{sWSRC}, s{sWSRC}, s{sT1}
s_lshl_b32 s{sWSRC}, s{sWSRC}, 10
s_add_u32 s{sWSRC}, s{sWSRC}, {WF}
s_lshl_b32 s{sWO}, s{sKH}, 4
s_add_u32 s{sWO}, s{sWO}, 112
s_lshl_b32 s{sWO}, s{sWO}, 4
s_add_u32 s{sWO}, s{sWO}, s{sT1}
s_add_u32 s{sWO}, s{sWO}, s{sCT}
s_lshl_b32 s{sWO}, s{sWO}, 10
s_add_u32 s{sWO}, s{sWO}, {WF}
v_mov_b32 v92, -1
v_mov_b32 v93, -1
v_mov_b32 v94, -1
v_mov_b32 v95, -1
''')
    a.vmem(f'buffer_store_dwordx4 v[92:95], v{vL16}, {srd(S_WS)}, s{sOF} offen sc1', 'st')


def ini_load(a):
    return f'buffer_load_dword v92, off, {srd(S_DBG)}, 0 sc1'


def hook9(a, g):
    a.vmem(ini_load(a), 'ini')


def prebar11(a, g):
    a.wait_vm('ini')

    def chk(ok):
        a('v_cmp_eq_u32 vcc, 1, v92')
        a(f's_cbranch_vccnz {ok}')
    spin(a, 1, lambda: a(ini_load(a)), chk)


def hook11(a, g):
    if g == 0:
        lbl = a.newlabel('nofa')
        a(f'''
s_cmp_lg_u32 s{sW}, 0
s_cbranch_scc1 {lbl}
s_lshl_b32 s{sT0}, s{k1.sHP}, 8
s_lshl_b32 s{sT1}, s{k1.sTB}, 2
s_add_u32 s{sT0}, s{sT0}, s{sT1}
s_add_u32 s{sT0}, s{sT0}, {FA}
''')
        one_lane_store(a, 92, S_WS, f's{sT0}')
        a.label(lbl)
    k1.prep_finish(a)


def hook14(a, g):
    if g == 0:
        lbl = a.newlabel('nofw')
        a(f'''
s_cmp_lg_u32 s{sW}, 0
s_cbranch_scc1 {lbl}
s_lshr_b32 s{sT0}, s2, 4
s_lshl_b32 s{sT0}, s{sT0}, 8
s_and_b32 s{sT1}, s2, 15
s_lshl_b32 s{sT1}, s{sT1}, 2
s_add_u32 s{sT0}, s{sT0}, s{sT1}
s_add_u32 s{sT0}, s{sT0}, {FB}
''')
        one_lane_store(a, 92, S_WS, f's{sT0}')
        a.label(lbl)


def fa_load():
    return f'buffer_load_dword v93, v94, {srd(S_WS)}, s{sSPIN - 0 if False else sT1} offen sc1'


def fa_addr(a):
    a(f'''
s_lshr_b32 s{sT1}, s{sH}, 1
s_lshl_b32 s{sT1}, s{sT1}, 8
s_add_u32 s{sT1}, s{sT1}, {FA}
''')


def hook15(a, g):
    a('v_and_b32 v94, 15, v0')
    a('v_lshlrev_b32 v94, 2, v94')
    fa_addr(a)
    a.vmem(fa_load(), 'fa')


def fa_check(a):
    def chk(ok):
        a('v_cmp_ne_u32 vcc, 1, v93')
        a(f's_cbranch_vccz {ok}')

    def ld():
        fa_addr(a)
        a(fa_load())
    spin(a, 2, ld, chk)


def kv_dma(a, i):
    def f():
        a(f's_add_u32 m0, s{sMD}, {i * 8192}')
        a(f's_add_u32 s{sT2}, s{sSRC}, {i * 8192}')
        a.vmem(f'buffer_load_dwordx4 v{vL16}, {srd(S_WS)}, s{sT2} offen sc1 lds', f'kv{i}')
    return f


def q_load(a):
    def f():
        a(f'''
s_lshl_b32 s{sT2}, s{sH}, 6
s_add_u32 s{sT2}, s{sT2}, s{sTQ}
s_lshl_b32 s{sT2}, s{sT2}, 10
''')
        a.vmem(f'buffer_load_dwordx4 v[{RQ}:{RQ + 3}], v{vL16}, {srd(S_WS)}, s{sT2} offen sc1', 'q')
    return f


def k_read(a, t):
    ar, off = (aK0, t * 2048) if t < 32 else (aK1, (t - 32) * 2048)
    a.ds(f'ds_read_b128 v[{RK}:{RK + 3}], v{ar} offset:{off}', f'K{t}')


def v_reads(a, items):
    a(f's_mov_b64 exec, s[{sVM}:{sVM + 1}]')
    for part, t in items:
        ar, off = (aV0, t * 2048) if t < 32 else (aV1, (t - 32) * 2048)
        r = RV0 if part == 0 else RV1
        a.ds(f'ds_read_b128 v[{r}:{r + 3}], v{ar} offset:{off + part * 512}', f'V{part}_{t}')
    a('s_mov_b64 exec, -1')


def run(a, items):
    for it in items:
        emit(a, it)


def attn_step(a, t, nt, ev, mf, pre):
    S, Sn = RS[t % 2], RS[(t + 1) % 2]
    ex = [f'v_exp_f32 v{S + i}, v{S + i}' for i in range(16)]
    cv = [f'v_cvt_pk_bf16_f32 v{RP + i}, v{S + 2 * i}, v{S + 2 * i + 1}' for i in range(8)]
    run(a, pre.get(t, []))
    if t + 1 < nt:
        a.wait_lg(f'K{t + 1}')
        a(mfma32(Sn, RK, RQ, NEGM))
        if t + 2 < nt:
            k_read(a, t + 2)
    run(a, ev.get(2 * t, []))
    run(a, (ex[0], ex[1], ex[2], ex[3]))
    run(a, mf.get(2 * t, []))
    run(a, (cv[0], ex[4], ex[5], cv[1]))
    if t > 0:
        a.wait_lg(f'V1_{t - 1}')
        a(mfma32(RO, RV1, RP + 4, RO))
    run(a, (ex[6], ex[7], cv[2], ex[8], ex[9], cv[3], ex[10], ex[11]))
    a.wait_lg(f'V0_{t}')
    a(mfma32(RO, RV0, RP, '0' if t == 0 else RO))
    items = [(1, t)]
    if t + 1 < nt:
        items.append((0, t + 1))
    v_reads(a, items)
    run(a, ev.get(2 * t + 1, []))
    run(a, (cv[4], ex[12], ex[13], cv[5]))
    run(a, mf.get(2 * t + 1, []))
    run(a, (ex[14], ex[15], cv[6], cv[7]))


def row_max(a, S, dst, tmp):
    a(f'v_max3_f32 v{dst}, v{S}, v{S + 1}, v{S + 2}')
    a(f'v_max3_f32 v{tmp}, v{S + 3}, v{S + 4}, v{S + 5}')
    a(f'v_max3_f32 v{dst}, v{dst}, v{S + 6}, v{S + 7}')
    a(f'v_max3_f32 v{tmp}, v{tmp}, v{S + 8}, v{S + 9}')
    a(f'v_max3_f32 v{dst}, v{dst}, v{S + 10}, v{S + 11}')
    a(f'v_max3_f32 v{tmp}, v{tmp}, v{S + 12}, v{S + 13}')
    a(f'v_max3_f32 v{dst}, v{dst}, v{S + 14}, v{S + 15}')
    a(f'v_max_f32 v{dst}, v{dst}, v{tmp}')
    a(f'v_mov_b32 v{tmp}, v{dst}')
    a(f'v_permlane32_swap_b32 v{dst}, v{tmp}')
    a(f'v_max_f32 v{dst}, v{dst}, v{tmp}')


def fallback(a, done_label):
    a.comment('--- fallback: online softmax with the running true maximum')
    loop = a.newlabel('fb_loop')
    S = RS[0]
    vm, vmn, val, va, vb = vT, vT + 1, vT + 2, vT + 3, vT + 4
    a(f'v_mov_b32 v{vm}, 0xff800000')
    for i in range(16):
        a(f'v_mov_b32 v{RO + i}, 0')
    a(f'v_mov_b32 v{va}, v{aK0}')
    a(f'v_mov_b32 v{vb}, v{aV0}')
    a(f's_mov_b32 s{sT0}, 64')
    a.label(loop)
    a(f'ds_read_b128 v[{RK}:{RK + 3}], v{va}')
    a(f's_mov_b64 exec, s[{sVM}:{sVM + 1}]')
    a(f'ds_read_b128 v[{RV0}:{RV0 + 3}], v{vb}')
    a(f'ds_read_b128 v[{RV1}:{RV1 + 3}], v{vb} offset:512')
    a('s_mov_b64 exec, -1')
    a('s_waitcnt lgkmcnt(0)')
    a(mfma32(S, RK, RQ, '0'))
    a(f'v_add_u32 v{va}, 0x800, v{va}')
    a(f'v_add_u32 v{vb}, 0x800, v{vb}')
    row_max(a, S, vmn, val)
    a(f'v_max_f32 v{vmn}, v{vmn}, v{vm}')
    a(f'v_sub_f32 v{val}, v{vm}, v{vmn}')
    a(f'v_exp_f32 v{val}, v{val}')
    a(f'v_mov_b32 v{vm}, v{vmn}')
    for i in range(16):
        a(f'v_sub_f32 v{S + i}, v{S + i}, v{vmn}')
    for i in range(16):
        a(f'v_exp_f32 v{S + i}, v{S + i}')
    for i in range(16):
        a(f'v_mul_f32 v{RO + i}, v{val}, v{RO + i}')
    for i in range(8):
        a(f'v_cvt_pk_bf16_f32 v{RP + i}, v{S + 2 * i}, v{S + 2 * i + 1}')
    a(mfma32(RO, RV0, RP, RO))
    a(mfma32(RO, RV1, RP + 4, RO))
    a(f's_sub_u32 s{sT0}, s{sT0}, 1')
    a(f's_cmp_lg_u32 s{sT0}, 0')
    a(f's_cbranch_scc1 {loop}')
    a(f's_branch {done_label}')


def slot(i):
    return RING + 4 * (i % 16)


def stream_load(a, i):
    def f():
        if OPT.get('xnl') and i < 70:
            return
        if i < 70:
            s, j = divmod(i, 5)
            if j == 0:
                a(f's_add_u32 s{sT2}, s{sHS}, {s * 1024}')
                a.vmem(f'buffer_load_dwordx4 v[{slot(i)}:{slot(i) + 3}], v{vL16}, {srd(S_WS)}, s{sT2} offen sc1', f'f{i}')
            else:
                if j == 1:
                    a(f's_add_u32 s{sT3}, s{sWSRC}, {s * 16384}')
                a.vmem(f'buffer_load_dwordx4 v[{slot(i)}:{slot(i) + 3}], v{vL16}, {srd(S_WS)}, s{sT3} offen '
                       f'offset:{(j - 1) * 1024} sc1', f'f{i}')
        else:
            k = i - 70
            a(f's_add_u32 s{sT2}, s{sWO}, {k * 16384}')
            a.vmem(f'buffer_load_dwordx4 v[{slot(i)}:{slot(i) + 3}], v{vL16}, {srd(S_WS)}, s{sT2} offen sc1', 'wo')
    return f


def stream_mfma(a, s, j):
    def f():
        iw, ih = 5 * s + 1 + j, 5 * s
        if not OPT.get('xnw'):
            a.wait_vm(f'f{iw}')
        else:
            a.vm = [t for t in a.vm if t != f'f{iw}' and t != f'f{ih}']
        if OPT.get('xnm'):
            return
        a(mfma32(ACC + 16 * j, slot(iw), slot(ih), '0' if s == 0 else None))
    return f


def side_loads(a):
    a(f'''
s_lshl_b32 s{sT0}, s{sCG}, 8
s_lshl_b32 s{sT1}, s{sCT}, 6
s_add_u32 s{sT0}, s{sT0}, s{sT1}
s_lshl_b32 s{sT1}, s{sKH}, 5
s_add_u32 s{sT0}, s{sT0}, s{sT1}
v_lshrrev_b32 v{vT}, 5, v0
v_lshlrev_b32 v{vT}, 3, v{vT}
v_add_u32 v{vT}, s{sT0}, v{vT}
v_and_b32 v{vT + 1}, 31, v0
v_lshlrev_b32 v{vT + 1}, 10, v{vT + 1}
s_lshl_b32 s{sT1}, s{sTILE}, 15
v_add3_u32 v{vT + 1}, v{vT + 1}, v{vT}, s{sT1}
''')
    a.vmem(f'buffer_load_dwordx2 v[{vB2}:{vB2 + 1}], v{vT}, {srd(S_B2)}, 0 offen', 'side')
    a.vmem(f'buffer_load_dwordx2 v[{vB2 + 2}:{vB2 + 3}], v{vT}, {srd(S_B2)}, 0 offen offset:16', 'side')
    a.vmem(f'buffer_load_dwordx2 v[{vX}:{vX + 1}], v{vT + 1}, {srd(S_X)}, 0 offen', 'side')
    a.vmem(f'buffer_load_dwordx2 v[{vX + 2}:{vX + 3}], v{vT + 1}, {srd(S_X)}, 0 offen offset:16', 'side')
    a(f'''
v_lshrrev_b32 v{vT + 2}, 5, v0
v_lshlrev_b32 v{vT + 2}, 4, v{vT + 2}
v_and_b32 v{vXO}, 31, v0
v_lshlrev_b32 v{vXO}, 10, v{vXO}
s_add_u32 s{sT0}, s{sT0}, s{sT1}
v_add3_u32 v{vXO}, v{vXO}, v{vT + 2}, s{sT0}
''')


def fb_signal_1(a):
    a.wait_vm('hb')
    a(f'''
v_mov_b32 v{vT}, {LCNT}
v_mov_b32 v{vT + 1}, 1
s_mov_b64 exec, 1
''')
    a.ds(f'ds_add_rtn_u32 v{vT + 1}, v{vT}, v{vT + 1}', 'cnt')
    a('s_mov_b64 exec, -1')


def fb_signal_2(a):
    lbl = a.newlabel('nofb')
    a.wait_lg('cnt')
    a(f'''
v_readfirstlane_b32 s{sT0}, v{vT + 1}
s_cmp_lg_u32 s{sT0}, 7
s_cbranch_scc1 {lbl}
s_lshl_b32 s{sT0}, s{k1.sTB}, 8
s_lshl_b32 s{sT1}, s{k1.sHP}, 2
s_add_u32 s{sT0}, s{sT0}, s{sT1}
s_add_u32 s{sT0}, s{sT0}, {FH}
''')
    one_lane_store(a, vT + 1, S_WS, f's{sT0}')
    a.label(lbl)


def fb_load(a):
    return [f'buffer_load_dwordx4 v[8:11], v{vT}, {srd(S_WS)}, s{sT1} offen sc1',
            f'buffer_load_dword v{vX}, v{vT + 1}, {srd(S_WS)}, s{sT0} offen sc1']


def fb_addr(a):
    a(f'''
s_mov_b32 s{sT1}, {FB}
s_lshr_b32 s{sT0}, s{sTILE}, 2
s_lshl_b32 s{sT0}, s{sT0}, 8
s_add_u32 s{sT0}, s{sT0}, {FH}
''')


def fb_poll(a):
    a(f'''
v_lshrrev_b32 v{vT}, 2, v0
v_lshlrev_b32 v{vT}, 8, v{vT}
v_and_b32 v{vT + 1}, 3, v0
v_lshlrev_b32 v{vT + 1}, 4, v{vT + 1}
v_add_u32 v{vT}, v{vT}, v{vT + 1}
v_and_b32 v{vT + 1}, 15, v0
v_lshlrev_b32 v{vT + 1}, 2, v{vT + 1}
''')
    fb_addr(a)
    for x in fb_load(a):
        a.vmem(x, 'fb')


def fb_check(a):
    a.wait_vm('fb')

    def chk(ok):
        a('v_and_b32 v8, v8, v9')
        a('v_and_b32 v10, v10, v11')
        a('v_and_b32 v8, v8, v10')
        a(f'v_and_b32 v8, v8, v{vX}')
        a('v_cmp_ne_u32 vcc, 1, v8')
        a(f's_cbranch_vccz {ok}')

    def ld():
        fb_addr(a)
        for x in fb_load(a):
            a(x)
    spin(a, 3, ld, chk)


def o_loads(a, tracked):
    for i in range(4):
        t = f'buffer_load_dwordx4 v[{OP + 4 * i}:{OP + 4 * i + 3}], v{vL16}, {srd(S_WS)}, s{sOP} offen offset:{1024 * i} sc1'
        if tracked:
            a.vmem(t, 'op')
        else:
            a(t)


def o_check(a):
    a.wait_vm('op')

    def chk(ok):
        for i in range(4):
            r = OP + 4 * i
            a(f'v_max3_u32 v{vT + i}, v{r}, v{r + 1}, v{r + 2}')
            a(f'v_max_u32 v{vT + i}, v{vT + i}, v{r + 3}')
        a(f'v_max3_u32 v{vT}, v{vT}, v{vT + 1}, v{vT + 2}')
        a(f'v_max_u32 v{vT}, v{vT}, v{vT + 3}')
        a(f'v_cmp_eq_u32 vcc, -1, v{vT}')
        a(f's_cbranch_vccz {ok}')
    spin(a, 4, lambda: o_loads(a, False), chk)


def reduce_write(a):
    a(f's_lshl_b32 s{sT0}, s{sW}, 14')
    a(f'v_add_u32 v{vT}, s{sT0}, v{vL16}')
    for k in range(16):
        a.ds(f'ds_write_b128 v{vT}, v[{ACC + 4 * k}:{ACC + 4 * k + 3}] offset:{k * 1024}', 'rw')


def reduce_read_gate(a):
    a(f'''
s_lshl_b32 s{sT0}, s{sCT}, 12
s_lshl_b32 s{sT1}, s{sKH}, 11
s_add_u32 s{sT0}, s{sT0}, s{sT1}
v_add_u32 v{vT}, s{sT0}, v{vL16}
v_add_u32 v{vT + 1}, 0x10000, v{vT}
''')
    t = ACC
    for w in range(8):
        for e in range(2):
            ar = vT if w < 4 else vT + 1
            d = t + 8 * w + 4 * e
            a.ds(f'ds_read_b128 v[{d}:{d + 3}], v{ar} offset:{(w % 4) * 16384 + e * 1024}', f'r{w}')
    a.wait_vm('side')
    for e in range(2):
        for h in range(2):
            a(f'v_lshlrev_b32 v{vG + 4 * e + 2 * h}, 16, v{vB2 + 2 * e + h}')
            a(f'v_and_b32 v{vG + 4 * e + 2 * h + 1}, 0xffff0000, v{vB2 + 2 * e + h}')
    for w in range(8):
        a.wait_lg(f'r{w}')
        for k in range(8):
            a(f'v_add_f32 v{vG + k}, v{vG + k}, v{t + 8 * w + k}')
    for k in range(8):
        a(f'v_mul_f32 v{t + k}, {fl(-LOG2E)}, v{vG + k}')
    for k in range(8):
        a(f'v_exp_f32 v{t + k}, v{t + k}')
    for k in range(8):
        a(f'v_add_f32 v{t + k}, 1.0, v{t + k}')
    for k in range(8):
        a(f'v_rcp_f32 v{t + k}, v{t + k}')
    for k in range(8):
        a(f'v_mul_f32 v{vG + k}, v{vG + k}, v{t + k}')


def ob_write(a):
    a(f's_lshl_b32 s{sT0}, s{sW}, 12')
    a(f's_add_u32 s{sT0}, s{sT0}, {OB}')
    a(f'v_add_u32 v{vT}, s{sT0}, v{vL16}')
    for i in range(4):
        a.ds(f'ds_write_b128 v{vT}, v[{OP + 4 * i}:{OP + 4 * i + 3}] offset:{i * 1024}', 'ow')


def wo_gemm(a):
    a(f's_lshl_b32 s{sT0}, s{sKH}, 14')
    a(f's_add_u32 s{sT0}, s{sT0}, {OB}')
    a(f'v_add_u32 v{vT}, s{sT0}, v{vL16}')
    bb = ACC
    for i in range(16):
        a.ds(f'ds_read_b128 v[{bb + 4 * i}:{bb + 4 * i + 3}], v{vT} offset:{i * 1024}', f'o{i}')
    a.wait_vm('wo')
    for i in range(16):
        a.wait_lg(f'o{i}')
        a(mfma32(RO, slot(70 + i), bb + 4 * i, '0' if i == 0 else None))


def exchange(a, label):
    k1l = label + '_kh1'
    j = label + '_khj'
    a(f'''
s_lshl_b32 s{sT0}, s{sW}, 11
v_add_u32 v{vT}, s{sT0}, v{vL16}
s_xor_b32 s{sT0}, s{sW}, 4
s_lshl_b32 s{sT0}, s{sT0}, 11
v_add_u32 v{vT + 1}, s{sT0}, v{vL16}
s_cmp_eq_u32 s{sKH}, 1
s_cbranch_scc1 {k1l}
''')
    for kh in (0, 1):
        if kh == 1:
            a.label(k1l)
        send = RO + (8 if kh == 0 else 0)
        keep = RO + (0 if kh == 0 else 8)
        a(f'ds_write_b128 v{vT}, v[{send}:{send + 3}]')
        a(f'ds_write_b128 v{vT}, v[{send + 4}:{send + 7}] offset:1024')
        for k in range(8):
            a(f'v_mov_b32 v{vS + k}, v{keep + k}')
        if kh == 0:
            a(f's_branch {j}')
    a.label(j)
    a('s_waitcnt lgkmcnt(0)')
    a('s_barrier')
    t = ACC
    a(f'ds_read_b128 v[{t}:{t + 3}], v{vT + 1}')
    a(f'ds_read_b128 v[{t + 4}:{t + 7}], v{vT + 1} offset:1024')
    return t


def final(a, t):
    u = ACC + 32
    for k in range(4):
        a(f'v_lshlrev_b32 v{u + 2 * k}, 16, v{vX + k}')
        a(f'v_and_b32 v{u + 2 * k + 1}, 0xffff0000, v{vX + k}')
    a('s_waitcnt lgkmcnt(0)')
    for k in range(8):
        a(f'v_add_f32 v{vS + k}, v{vS + k}, v{t + k}')
    for k in range(8):
        a(f'v_fma_f32 v{vS + k}, v{vS + k}, v{vG + k}, v{u + k}')
    for k in range(4):
        a(f'v_cvt_pk_bf16_f32 v{vS + k}, v{vS + 2 * k}, v{vS + 2 * k + 1}')
    a(f'v_permlane32_swap_b32 v{vS}, v{vS + 2}')
    a(f'v_permlane32_swap_b32 v{vS + 1}, v{vS + 3}')
    a.vmem(f'buffer_store_dwordx4 v[{vS}:{vS + 3}], v{vXO}, {srd(S_OUT)}, 0 offen', 'st')


def prio_plan(g):
    p = OPT.get('pr', 0)
    if p == 0:
        return lambda t: None
    if g == 1:
        return lambda t: 1 if t == 0 else None
    pat = {1: [2, 2, 2, 0], 2: [2, 2, 0], 3: [2, 0], 4: [2, 2, 2, 2, 0], 5: [2, 2, 2, 2, 2, 0, 0], 6: [0],
           7: [2, 2, 2, 0, 0]}[p]
    return lambda t: pat[t % len(pat)] if (t == 0 or pat[t % len(pat)] != pat[(t - 1) % len(pat)]) else None


def attention(a, g):
    pre_n = OPT['kvpre']
    a(f'''
v_mov_b32 v{aK0}, v{vL16}
v_add_u32 v{aK1}, 0x10000, v{vL16}
v_and_b32 v{vT}, 15, v0
v_lshrrev_b32 v{vT + 1}, 5, v0
v_lshlrev_b32 v{vT + 1}, 4, v{vT + 1}
v_add_u32 v{vT}, v{vT}, v{vT + 1}
v_lshlrev_b32 v{vT}, 4, v{vT}
v_add_u32 v{aV0}, 0x400, v{vT}
v_add_u32 v{aV1}, 0x10400, v{vT}
s_mov_b32 s{sVM}, 0xffff
s_mov_b32 s{sVM + 1}, 0xffff
''')
    for i in range(4):
        a(f'v_mov_b32 v{RV0 + i}, 0x3f803f80')
        a(f'v_mov_b32 v{RV1 + i}, 0x3f803f80')
    b1 = OPT.get('b1', pre_n)
    a.wait_vm(['q'] + [f'kv{i}' for i in range(b1)])
    a('s_barrier')
    st(a, 'b1')
    ev, mf, pre = {}, {}, {}
    add = lambda d, k, x: d.setdefault(k, []).append(x)
    k_read(a, 0)
    v_reads(a, [(0, 0)])
    a.wait_lg('K0')
    a(mfma32(RS[0], RK, RQ, '0'))
    row_max(a, RS[0], vT, vT + 1)
    for i in range(16):
        a(f'v_sub_f32 v{NEGM + i}, 0, v{vT}')
    a(mfma32(RS[0], RK, RQ, NEGM))
    k_read(a, 1)
    for i in range(pre_n, 16):
        add(ev, 2 * (i - pre_n), kv_dma(a, i))
    if b1 < pre_n:
        tb = 4 * b1 - 2
        add(pre, tb, lambda: (a.wait_vm([f'kv{i}' for i in range(pre_n)]), a('s_barrier')))
    tb2 = OPT['b2']
    assert tb2 <= 4 * pre_n - 2
    add(pre, tb2, lambda: (a.wait_vm([f'kv{i}' for i in range(16)]), a('s_barrier')))
    fs = OPT['fbsig']
    add(pre, fs, lambda: fb_signal_1(a))
    add(pre, fs + 1, lambda: fb_signal_2(a))
    u0, D = OPT['u0'], OPT['D']
    add(ev, u0 - 5, lambda: fb_poll(a))
    add(pre, u0 // 2, lambda: fb_check(a))
    for i in range(86):
        add(ev, u0 + i, stream_load(a, i))
    for s in range(14):
        for j in range(4):
            add(mf, u0 + 5 * s + 1 + j + D, stream_mfma(a, s, j))
    add(ev, u0 + 87, lambda: side_loads(a))
    assert u0 + 87 < 128
    pp = prio_plan(g)
    for t in range(64):
        if pp(t) is not None:
            pre.setdefault(t, []).insert(0, f's_setprio {pp(t)}')
    for t in range(64):
        attn_step(a, t, 64, ev, mf, pre)
        st(a, f'a{t}')
    if OPT.get('pr', 0):
        a('s_setprio 0')


STAMPS = {}


def st(a, name):
    if name in STAMPS:
        stamp(a, STAMPS[name])


def gen_km(label, force_fallback=False):
    k1.SC = ' sc1'
    k1.HOOKS = {0: hook0, 8: hook8, 9: hook9, 11: hook11, 14: hook14, 15: hook15}
    k1.PREBAR = {11: prebar11}
    a = Asm()
    end = label + '_end'
    att = label + '_att'
    prologue(a, end, None)
    build_srds(a, ['x', 'wq', 'w1', 'ws', 'w2', 'wo', 'b1', 'b2', 'out', 'dbg'])
    stamp(a, 0, 0)
    start_extra(a)
    k1.setup(a)
    g1 = label + '_g1'
    a(f's_cmp_eq_u32 s{sG}, 1')
    a(f's_cbranch_scc1 {g1}')
    snap0 = a.snapshot()
    joinsnap = None
    pre_n = OPT['kvpre']
    for g in (0, 1):
        if g == 1:
            a.label(g1)
            a.restore(snap0)
        for n in range(5):
            for d in k1.dma_ops(a, n, g):
                d()
        if OPT.get('pf'):
            prefetch(a)
        k1.setup2(a)
        for n in range(8):
            k1.p1_stage(a, n, g)
            st(a, f'p1_{n}')
        k1.p1_epilogue(a, g)
        st(a, 'e1')
        for n in range(8, 16):
            k1.p2_stage(a, n, g)
            st(a, f'p2_{n}')
        k1.p2_b_phase(a, 15, [[], [], [], []], [])
        k1.write_cs_partials(a, [(k1.vCSB, (3 + 2 * g + 1) * 512)])
        a.wait_all()
        a('s_barrier')
        fa_check(a)
        st(a, 'tail')
        k1.gelu_simple(a, g, 0, [q_load(a)] + [kv_dma(a, i) for i in range(pre_n)], 'ha')
        if g == 1:
            skip = a.newlabel('skipb')
            a(f's_cmp_eq_u32 s{k1.sPB}, 0')
            a(f's_cbranch_scc1 {skip}')
        k1.gelu_simple(a, g, 1, [], 'hb')
        if g == 1:
            jn = a.newlabel('joinb')
            a(f's_branch {jn}')
            a.label(skip)
            a(f'buffer_load_dword v10, v{vL16}, {srd(S_WS)}, s{sSRC} offen')
            a(f'buffer_load_dword v11, v{vL16}, {srd(S_WS)}, s{sSRC} offen')
            a.label(jn)
        a.wait_lg()
        st(a, 'gelu')
        attention(a, g)
        if g == 0:
            a(f's_branch {att}')
            joinsnap = a.snapshot()
        else:
            assert a.snapshot() == joinsnap, (a.snapshot(), joinsnap)
    a.label(att)
    a.wait_lg()
    a(mfma32(RO, RV1, RP + 4, RO))
    fb = label + '_fb'
    fin = label + '_fin'
    a(f'v_mul_f32 v{vT}, 0, v{RO + 8}')
    for i in range(8):
        a(f'v_fma_f32 v{vT}, v{RO + i}, 0, v{vT}')
    a(f'v_cmp_u_f32 vcc, v{vT}, v{vT}')
    if force_fallback:
        a(f's_branch {fb}')
    else:
        a(f's_cbranch_vccnz {fb}')
    a.label(fin)
    a(f'v_rcp_f32 v{vT}, v{RO + 8}')
    for i in range(8):
        a(f'v_mul_f32 v{RO + i}, v{vT}, v{RO + i}')
    for i in range(4):
        a(f'v_cvt_pk_bf16_f32 v{RO + i}, v{RO + 2 * i}, v{RO + 2 * i + 1}')
    for i in range(4):
        a(f'v_min_u32 v{RO + i}, -2, v{RO + i}')
    a.vmem(f'buffer_store_dwordx4 v[{RO}:{RO + 3}], v{vL16}, {srd(S_WS)}, s{sOF} offen sc1', 'ost')
    st(a, 'oend')
    a('s_barrier')
    st(a, 'ba')
    reduce_write(a)
    o_loads(a, True)
    a.wait_lg()
    a('s_barrier')
    st(a, 'bb')
    reduce_read_gate(a)
    st(a, 'gate')
    o_check(a)
    st(a, 'opoll')
    ob_write(a)
    a.wait_lg()
    a('s_barrier')
    st(a, 'bc')
    wo_gemm(a)
    st(a, 'wog')
    a.wait_lg()
    t = exchange(a, label)
    final(a, t)
    st(a, 'fin')
    a('s_waitcnt vmcnt(0)')
    stamp(a, 9, 1)
    stamp_flush(a, 0)
    a('s_endpgm')
    a.label(fb)
    fallback(a, fin)
    a.label(end)
    a('s_endpgm')
    return a
```

```python
from common import *
import k1
from k1 import fl

KM_LDS = 163840
LCNT = 163824
RED = 0
OB = 131072
FA = FL
FB = FL + 4096
FH = FL + 8192
LOG2E = 1.4426950408889634
SPIN = 20000

sT0, sT1, sT2, sT3 = 52, 53, 54, 55
sH, sTQ, sSRC, sMD = 20, 21, 22, 23
sTILE, sCG, sOF, sOP = 24, 25, 26, 27
sHS, sWSRC, sWO, sSPIN = 8, 9, 10, 11
sVM = 94
sCT, sKH = sTT, sG

vL16 = 1
aK0, aK1, aV0, aV1 = 2, 3, 4, 5
vT = 6
RQ, RK, RV0, RV1, RP = 12, 16, 20, 24, 28
NEGM = 36
RS = (52, 68)
RO = 84
ACC = 100
RING = 164
vX, vB2, vXO = 228, 232, 236
vG, vS = 240, 248
OP = 52

OPT = dict(u0=28, D=11, fbsig=5, prio=None, b2=24, kvpre=8, nofb=False)


def spin(a, site, load, check_ok):
    ok = a.newlabel('ok')
    lp = a.newlabel('spin')
    check_ok(ok)
    a(f's_mov_b32 s{sSPIN}, {SPIN}')
    a.label(lp)
    a('s_sleep 1')
    load()
    a('s_waitcnt vmcnt(0)')
    check_ok(ok)
    a(f's_sub_u32 s{sSPIN}, s{sSPIN}, 1')
    a(f's_cmp_lg_u32 s{sSPIN}, 0')
    a(f's_cbranch_scc1 {lp}')
    a(f'v_mov_b32 v{vT}, {site}')
    a(f'buffer_store_dword v{vT}, off, {srd(S_DBG)}, 0 offset:{4 * site}')
    a.label(ok)


def one_lane_store(a, reg, srdn, soff, val=1):
    a('s_mov_b64 exec, 1')
    a(f'v_mov_b32 v{reg}, {val}')
    a(f'buffer_store_dword v{reg}, off, {srd(srdn)}, {soff} sc1')
    a('s_mov_b64 exec, -1')


def start_extra(a):
    lbl = a.newlabel('noinit')
    a(f'''
v_mov_b32 v20, 0
v_mov_b32 v21, 0
v_mov_b32 v22, 0
v_mov_b32 v23, 0
v_mov_b32 v24, {LCNT}
''')
    a.ds('ds_write_b32 v24, v20', 'w')
    a(f'''
s_or_b32 s{sT0}, s2, s{sW}
s_cmp_lg_u32 s{sT0}, 0
s_cbranch_scc1 {lbl}
v_lshrrev_b32 v1, 2, v0
v_lshlrev_b32 v1, 8, v1
v_and_b32 v2, 3, v0
v_lshlrev_b32 v2, 4, v2
v_add_u32 v1, v1, v2
s_mov_b32 s{sT0}, {FA}
s_mov_b32 s{sT1}, {FB}
s_mov_b32 s{sT2}, {FH}
buffer_store_dwordx4 v[20:23], v1, {srd(S_WS)}, s{sT0} offen sc1
buffer_store_dwordx4 v[20:23], v1, {srd(S_WS)}, s{sT1} offen sc1
buffer_store_dwordx4 v[20:23], v1, {srd(S_WS)}, s{sT2} offen sc1
''')
    a.label(lbl)


def prefetch(a):
    pf = OPT['pf']
    a(f'''
s_lshl_b32 s{sT0}, s2, 3
s_add_u32 s{sT0}, s{sT0}, s{sW}
v_lshlrev_b32 v48, 4, v0
''')
    if pf & 1:
        a(f's_mul_i32 s{sT1}, s{sT0}, 768')
        a.vmem(f'buffer_load_dwordx4 v[52:55], v48, {srd(S_WQ)}, s{sT1} offen', 'pf')
    if pf & 2:
        a(f's_mul_i32 s{sT1}, s{sT0}, 896')
        a.vmem(f'buffer_load_dwordx4 v[56:59], v48, {srd(S_W1)}, s{sT1} offen', 'pf')
    if pf & 4:
        a(f's_lshl_b32 s{sT1}, s{sT0}, 10')
        a.vmem(f'buffer_load_dwordx4 v[60:63], v48, {srd(S_X)}, s{sT1} offen', 'pf')
    if pf & 8:
        a(f's_mul_i32 s{sT1}, s{sT0}, 896')
        a.vmem(f'buffer_load_dwordx4 v[56:59], v48, {srd(S_W2)}, s{sT1} offen', 'pf')
        a(f's_lshl_b32 s{sT1}, s{sT0}, 8')
        a.vmem(f'buffer_load_dword v60, v48, {srd(S_WO)}, s{sT1} offen', 'pf')


def hook0(a, g):
    if g != 0:
        return
    lbl = a.newlabel('noinit2')
    a(f'''
s_or_b32 s{sT0}, s2, s{sW}
s_cmp_lg_u32 s{sT0}, 0
s_cbranch_scc1 {lbl}
''')
    one_lane_store(a, 20, S_DBG, 0)
    a.label(lbl)


def hook8(a, g):
    a(f'''
s_lshl_b32 s{sT0}, s{sXCD}, 2
s_lshr_b32 s{sCG}, s{sSLOT}, 3
s_add_u32 s{sH}, s{sT0}, s{sCG}
s_and_b32 s{sT1}, s{sSLOT}, 7
s_lshl_b32 s{sTQ}, s{sT1}, 3
s_add_u32 s{sTQ}, s{sTQ}, s{sW}
s_lshl_b32 s{sMD}, s{sW}, 10
s_lshl_b32 s{sSRC}, s{sH}, 17
s_add_u32 s{sSRC}, s{sSRC}, {KV}
s_add_u32 s{sSRC}, s{sSRC}, s{sMD}
s_lshl_b32 s{sOF}, s{sTQ}, 5
s_add_u32 s{sOF}, s{sOF}, s{sH}
s_lshl_b32 s{sOF}, s{sOF}, 10
s_add_u32 s{sOF}, s{sOF}, {OF}
s_lshl_b32 s{sT0}, s{sXCD}, 3
s_add_u32 s{sTILE}, s{sT0}, s{sT1}
s_lshl_b32 s{sOP}, s{sTILE}, 3
s_add_u32 s{sOP}, s{sOP}, s{sW}
s_lshl_b32 s{sOP}, s{sOP}, 12
s_add_u32 s{sOP}, s{sOP}, {OF}
s_mul_i32 s{sT0}, s{sW}, 14
s_mul_i32 s{sHS}, s{sTILE}, 112
s_add_u32 s{sHS}, s{sHS}, s{sT0}
s_lshl_b32 s{sHS}, s{sHS}, 10
s_add_u32 s{sHS}, s{sHS}, {HF}
s_lshl_b32 s{sWSRC}, s{sT0}, 4
s_lshl_b32 s{sT1}, s{sCG}, 2
s_add_u32 s{sWSRC}, s{sWSRC}, s{sT1}
s_lshl_b32 s{sWSRC}, s{sWSRC}, 10
s_add_u32 s{sWSRC}, s{sWSRC}, {WF}
s_lshl_b32 s{sWO}, s{sKH}, 4
s_add_u32 s{sWO}, s{sWO}, 112
s_lshl_b32 s{sWO}, s{sWO}, 4
s_add_u32 s{sWO}, s{sWO}, s{sT1}
s_add_u32 s{sWO}, s{sWO}, s{sCT}
s_lshl_b32 s{sWO}, s{sWO}, 10
s_add_u32 s{sWO}, s{sWO}, {WF}
v_mov_b32 v92, -1
v_mov_b32 v93, -1
v_mov_b32 v94, -1
v_mov_b32 v95, -1
''')
    a.vmem(f'buffer_store_dwordx4 v[92:95], v{vL16}, {srd(S_WS)}, s{sOF} offen sc1', 'st')


def ini_load(a):
    return f'buffer_load_dword v92, off, {srd(S_DBG)}, 0 sc1'


def hook9(a, g):
    a.vmem(ini_load(a), 'ini')


def prebar11(a, g):
    a.wait_vm('ini')

    def chk(ok):
        a('v_cmp_eq_u32 vcc, 1, v92')
        a(f's_cbranch_vccnz {ok}')
    spin(a, 1, lambda: a(ini_load(a)), chk)


def hook11(a, g):
    if g == 0:
        lbl = a.newlabel('nofa')
        a(f'''
s_cmp_lg_u32 s{sW}, 0
s_cbranch_scc1 {lbl}
s_lshl_b32 s{sT0}, s{k1.sHP}, 8
s_lshl_b32 s{sT1}, s{k1.sTB}, 2
s_add_u32 s{sT0}, s{sT0}, s{sT1}
s_add_u32 s{sT0}, s{sT0}, {FA}
''')
        one_lane_store(a, 92, S_WS, f's{sT0}')
        a.label(lbl)
    k1.prep_finish(a)


def hook14(a, g):
    if g == 0:
        lbl = a.newlabel('nofw')
        a(f'''
s_cmp_lg_u32 s{sW}, 0
s_cbranch_scc1 {lbl}
s_lshr_b32 s{sT0}, s2, 4
s_lshl_b32 s{sT0}, s{sT0}, 8
s_and_b32 s{sT1}, s2, 15
s_lshl_b32 s{sT1}, s{sT1}, 2
s_add_u32 s{sT0}, s{sT0}, s{sT1}
s_add_u32 s{sT0}, s{sT0}, {FB}
''')
        one_lane_store(a, 92, S_WS, f's{sT0}')
        a.label(lbl)


def fa_load():
    return f'buffer_load_dword v93, v94, {srd(S_WS)}, s{sSPIN - 0 if False else sT1} offen sc1'


def fa_addr(a):
    a(f'''
s_lshr_b32 s{sT1}, s{sH}, 1
s_lshl_b32 s{sT1}, s{sT1}, 8
s_add_u32 s{sT1}, s{sT1}, {FA}
''')


def hook15(a, g):
    a('v_and_b32 v94, 15, v0')
    a('v_lshlrev_b32 v94, 2, v94')
    fa_addr(a)
    a.vmem(fa_load(), 'fa')


def fa_check(a):
    def chk(ok):
        a('v_cmp_ne_u32 vcc, 1, v93')
        a(f's_cbranch_vccz {ok}')

    def ld():
        fa_addr(a)
        a(fa_load())
    spin(a, 2, ld, chk)


def kv_dma(a, i):
    def f():
        a(f's_add_u32 m0, s{sMD}, {i * 8192}')
        a(f's_add_u32 s{sT2}, s{sSRC}, {i * 8192}')
        a.vmem(f'buffer_load_dwordx4 v{vL16}, {srd(S_WS)}, s{sT2} offen sc1 lds', f'kv{i}')
    return f


def q_load(a):
    def f():
        a(f'''
s_lshl_b32 s{sT2}, s{sH}, 6
s_add_u32 s{sT2}, s{sT2}, s{sTQ}
s_lshl_b32 s{sT2}, s{sT2}, 10
''')
        a.vmem(f'buffer_load_dwordx4 v[{RQ}:{RQ + 3}], v{vL16}, {srd(S_WS)}, s{sT2} offen sc1', 'q')
    return f


def k_read(a, t):
    ar, off = (aK0, t * 2048) if t < 32 else (aK1, (t - 32) * 2048)
    a.ds(f'ds_read_b128 v[{RK}:{RK + 3}], v{ar} offset:{off}', f'K{t}')


def v_reads(a, items):
    a(f's_mov_b64 exec, s[{sVM}:{sVM + 1}]')
    for part, t in items:
        ar, off = (aV0, t * 2048) if t < 32 else (aV1, (t - 32) * 2048)
        r = RV0 if part == 0 else RV1
        a.ds(f'ds_read_b128 v[{r}:{r + 3}], v{ar} offset:{off + part * 512}', f'V{part}_{t}')
    a('s_mov_b64 exec, -1')


def run(a, items):
    for it in items:
        emit(a, it)


def attn_step(a, t, nt, ev, mf, pre):
    S, Sn = RS[t % 2], RS[(t + 1) % 2]
    ex = [f'v_exp_f32 v{S + i}, v{S + i}' for i in range(16)]
    cv = [f'v_cvt_pk_bf16_f32 v{RP + i}, v{S + 2 * i}, v{S + 2 * i + 1}' for i in range(8)]
    run(a, pre.get(t, []))
    if t + 1 < nt:
        a.wait_lg(f'K{t + 1}')
        a(mfma32(Sn, RK, RQ, NEGM))
        if t + 2 < nt:
            k_read(a, t + 2)
    run(a, ev.get(2 * t, []))
    run(a, (ex[0], ex[1], ex[2], ex[3]))
    run(a, mf.get(2 * t, []))
    run(a, (cv[0], ex[4], ex[5], cv[1]))
    if t > 0:
        a.wait_lg(f'V1_{t - 1}')
        a(mfma32(RO, RV1, RP + 4, RO))
    run(a, (ex[6], ex[7], cv[2], ex[8], ex[9], cv[3], ex[10], ex[11]))
    a.wait_lg(f'V0_{t}')
    a(mfma32(RO, RV0, RP, '0' if t == 0 else RO))
    items = [(1, t)]
    if t + 1 < nt:
        items.append((0, t + 1))
    v_reads(a, items)
    run(a, ev.get(2 * t + 1, []))
    run(a, (cv[4], ex[12], ex[13], cv[5]))
    run(a, mf.get(2 * t + 1, []))
    run(a, (ex[14], ex[15], cv[6], cv[7]))


def row_max(a, S, dst, tmp):
    a(f'v_max3_f32 v{dst}, v{S}, v{S + 1}, v{S + 2}')
    a(f'v_max3_f32 v{tmp}, v{S + 3}, v{S + 4}, v{S + 5}')
    a(f'v_max3_f32 v{dst}, v{dst}, v{S + 6}, v{S + 7}')
    a(f'v_max3_f32 v{tmp}, v{tmp}, v{S + 8}, v{S + 9}')
    a(f'v_max3_f32 v{dst}, v{dst}, v{S + 10}, v{S + 11}')
    a(f'v_max3_f32 v{tmp}, v{tmp}, v{S + 12}, v{S + 13}')
    a(f'v_max3_f32 v{dst}, v{dst}, v{S + 14}, v{S + 15}')
    a(f'v_max_f32 v{dst}, v{dst}, v{tmp}')
    a(f'v_mov_b32 v{tmp}, v{dst}')
    a(f'v_permlane32_swap_b32 v{dst}, v{tmp}')
    a(f'v_max_f32 v{dst}, v{dst}, v{tmp}')


def fallback(a, done_label):
    a.comment('--- fallback: online softmax with the running true maximum')
    loop = a.newlabel('fb_loop')
    S = RS[0]
    vm, vmn, val, va, vb = vT, vT + 1, vT + 2, vT + 3, vT + 4
    a(f'v_mov_b32 v{vm}, 0xff800000')
    for i in range(16):
        a(f'v_mov_b32 v{RO + i}, 0')
    a(f'v_mov_b32 v{va}, v{aK0}')
    a(f'v_mov_b32 v{vb}, v{aV0}')
    a(f's_mov_b32 s{sT0}, 64')
    a.label(loop)
    a(f'ds_read_b128 v[{RK}:{RK + 3}], v{va}')
    a(f's_mov_b64 exec, s[{sVM}:{sVM + 1}]')
    a(f'ds_read_b128 v[{RV0}:{RV0 + 3}], v{vb}')
    a(f'ds_read_b128 v[{RV1}:{RV1 + 3}], v{vb} offset:512')
    a('s_mov_b64 exec, -1')
    a('s_waitcnt lgkmcnt(0)')
    a(mfma32(S, RK, RQ, '0'))
    a(f'v_add_u32 v{va}, 0x800, v{va}')
    a(f'v_add_u32 v{vb}, 0x800, v{vb}')
    row_max(a, S, vmn, val)
    a(f'v_max_f32 v{vmn}, v{vmn}, v{vm}')
    a(f'v_sub_f32 v{val}, v{vm}, v{vmn}')
    a(f'v_exp_f32 v{val}, v{val}')
    a(f'v_mov_b32 v{vm}, v{vmn}')
    for i in range(16):
        a(f'v_sub_f32 v{S + i}, v{S + i}, v{vmn}')
    for i in range(16):
        a(f'v_exp_f32 v{S + i}, v{S + i}')
    for i in range(16):
        a(f'v_mul_f32 v{RO + i}, v{val}, v{RO + i}')
    for i in range(8):
        a(f'v_cvt_pk_bf16_f32 v{RP + i}, v{S + 2 * i}, v{S + 2 * i + 1}')
    a(mfma32(RO, RV0, RP, RO))
    a(mfma32(RO, RV1, RP + 4, RO))
    a(f's_sub_u32 s{sT0}, s{sT0}, 1')
    a(f's_cmp_lg_u32 s{sT0}, 0')
    a(f's_cbranch_scc1 {loop}')
    a(f's_branch {done_label}')


def slot(i):
    return RING + 4 * (i % 16)


def stream_load(a, i):
    def f():
        if OPT.get('xnl') and i < 70:
            return
        if i < 70:
            s, j = divmod(i, 5)
            if j == 0:
                a(f's_add_u32 s{sT2}, s{sHS}, {s * 1024}')
                a.vmem(f'buffer_load_dwordx4 v[{slot(i)}:{slot(i) + 3}], v{vL16}, {srd(S_WS)}, s{sT2} offen sc1', f'f{i}')
            else:
                if j == 1:
                    a(f's_add_u32 s{sT3}, s{sWSRC}, {s * 16384}')
                a.vmem(f'buffer_load_dwordx4 v[{slot(i)}:{slot(i) + 3}], v{vL16}, {srd(S_WS)}, s{sT3} offen '
                       f'offset:{(j - 1) * 1024} sc1', f'f{i}')
        else:
            k = i - 70
            a(f's_add_u32 s{sT2}, s{sWO}, {k * 16384}')
            a.vmem(f'buffer_load_dwordx4 v[{slot(i)}:{slot(i) + 3}], v{vL16}, {srd(S_WS)}, s{sT2} offen sc1', 'wo')
    return f


def stream_mfma(a, s, j):
    def f():
        iw, ih = 5 * s + 1 + j, 5 * s
        if not OPT.get('xnw'):
            a.wait_vm(f'f{iw}')
        else:
            a.vm = [t for t in a.vm if t != f'f{iw}' and t != f'f{ih}']
        if OPT.get('xnm'):
            return
        a(mfma32(ACC + 16 * j, slot(iw), slot(ih), '0' if s == 0 else None))
    return f


def side_loads(a):
    a(f'''
s_lshl_b32 s{sT0}, s{sCG}, 8
s_lshl_b32 s{sT1}, s{sCT}, 6
s_add_u32 s{sT0}, s{sT0}, s{sT1}
s_lshl_b32 s{sT1}, s{sKH}, 5
s_add_u32 s{sT0}, s{sT0}, s{sT1}
v_lshrrev_b32 v{vT}, 5, v0
v_lshlrev_b32 v{vT}, 3, v{vT}
v_add_u32 v{vT}, s{sT0}, v{vT}
v_and_b32 v{vT + 1}, 31, v0
v_lshlrev_b32 v{vT + 1}, 10, v{vT + 1}
s_lshl_b32 s{sT1}, s{sTILE}, 15
v_add3_u32 v{vT + 1}, v{vT + 1}, v{vT}, s{sT1}
''')
    a.vmem(f'buffer_load_dwordx2 v[{vB2}:{vB2 + 1}], v{vT}, {srd(S_B2)}, 0 offen', 'side')
    a.vmem(f'buffer_load_dwordx2 v[{vB2 + 2}:{vB2 + 3}], v{vT}, {srd(S_B2)}, 0 offen offset:16', 'side')
    a.vmem(f'buffer_load_dwordx2 v[{vX}:{vX + 1}], v{vT + 1}, {srd(S_X)}, 0 offen', 'side')
    a.vmem(f'buffer_load_dwordx2 v[{vX + 2}:{vX + 3}], v{vT + 1}, {srd(S_X)}, 0 offen offset:16', 'side')
    a(f'''
v_lshrrev_b32 v{vT + 2}, 5, v0
v_lshlrev_b32 v{vT + 2}, 4, v{vT + 2}
v_and_b32 v{vXO}, 31, v0
v_lshlrev_b32 v{vXO}, 10, v{vXO}
s_add_u32 s{sT0}, s{sT0}, s{sT1}
v_add3_u32 v{vXO}, v{vXO}, v{vT + 2}, s{sT0}
''')


def fb_signal_1(a):
    a.wait_vm('hb')
    a(f'''
v_mov_b32 v{vT}, {LCNT}
v_mov_b32 v{vT + 1}, 1
s_mov_b64 exec, 1
''')
    a.ds(f'ds_add_rtn_u32 v{vT + 1}, v{vT}, v{vT + 1}', 'cnt')
    a('s_mov_b64 exec, -1')


def fb_signal_2(a):
    lbl = a.newlabel('nofb')
    a.wait_lg('cnt')
    a(f'''
v_readfirstlane_b32 s{sT0}, v{vT + 1}
s_cmp_lg_u32 s{sT0}, 7
s_cbranch_scc1 {lbl}
s_lshl_b32 s{sT0}, s{k1.sTB}, 8
s_lshl_b32 s{sT1}, s{k1.sHP}, 2
s_add_u32 s{sT0}, s{sT0}, s{sT1}
s_add_u32 s{sT0}, s{sT0}, {FH}
''')
    one_lane_store(a, vT + 1, S_WS, f's{sT0}')
    a.label(lbl)


def fb_load(a):
    return [f'buffer_load_dwordx4 v[8:11], v{vT}, {srd(S_WS)}, s{sT1} offen sc1',
            f'buffer_load_dword v{vX}, v{vT + 1}, {srd(S_WS)}, s{sT0} offen sc1']


def fb_addr(a):
    a(f'''
s_mov_b32 s{sT1}, {FB}
s_lshr_b32 s{sT0}, s{sTILE}, 2
s_lshl_b32 s{sT0}, s{sT0}, 8
s_add_u32 s{sT0}, s{sT0}, {FH}
''')


def fb_poll(a):
    a(f'''
v_lshrrev_b32 v{vT}, 2, v0
v_lshlrev_b32 v{vT}, 8, v{vT}
v_and_b32 v{vT + 1}, 3, v0
v_lshlrev_b32 v{vT + 1}, 4, v{vT + 1}
v_add_u32 v{vT}, v{vT}, v{vT + 1}
v_and_b32 v{vT + 1}, 15, v0
v_lshlrev_b32 v{vT + 1}, 2, v{vT + 1}
''')
    fb_addr(a)
    for x in fb_load(a):
        a.vmem(x, 'fb')


def fb_check(a):
    a.wait_vm('fb')

    def chk(ok):
        a('v_and_b32 v8, v8, v9')
        a('v_and_b32 v10, v10, v11')
        a('v_and_b32 v8, v8, v10')
        a(f'v_and_b32 v8, v8, v{vX}')
        a('v_cmp_ne_u32 vcc, 1, v8')
        a(f's_cbranch_vccz {ok}')

    def ld():
        fb_addr(a)
        for x in fb_load(a):
            a(x)
    spin(a, 3, ld, chk)


def o_loads(a, tracked):
    for i in range(4):
        t = f'buffer_load_dwordx4 v[{OP + 4 * i}:{OP + 4 * i + 3}], v{vL16}, {srd(S_WS)}, s{sOP} offen offset:{1024 * i} sc1'
        if tracked:
            a.vmem(t, 'op')
        else:
            a(t)


def o_check(a):
    a.wait_vm('op')

    def chk(ok):
        for i in range(4):
            r = OP + 4 * i
            a(f'v_max3_u32 v{vT + i}, v{r}, v{r + 1}, v{r + 2}')
            a(f'v_max_u32 v{vT + i}, v{vT + i}, v{r + 3}')
        a(f'v_max3_u32 v{vT}, v{vT}, v{vT + 1}, v{vT + 2}')
        a(f'v_max_u32 v{vT}, v{vT}, v{vT + 3}')
        a(f'v_cmp_eq_u32 vcc, -1, v{vT}')
        a(f's_cbranch_vccz {ok}')
    spin(a, 4, lambda: o_loads(a, False), chk)


def reduce_write(a):
    a(f's_lshl_b32 s{sT0}, s{sW}, 14')
    a(f'v_add_u32 v{vT}, s{sT0}, v{vL16}')
    for k in range(16):
        a.ds(f'ds_write_b128 v{vT}, v[{ACC + 4 * k}:{ACC + 4 * k + 3}] offset:{k * 1024}', 'rw')


def reduce_read_gate(a):
    a(f'''
s_lshl_b32 s{sT0}, s{sCT}, 12
s_lshl_b32 s{sT1}, s{sKH}, 11
s_add_u32 s{sT0}, s{sT0}, s{sT1}
v_add_u32 v{vT}, s{sT0}, v{vL16}
v_add_u32 v{vT + 1}, 0x10000, v{vT}
''')
    t = ACC
    for w in range(8):
        for e in range(2):
            ar = vT if w < 4 else vT + 1
            d = t + 8 * w + 4 * e
            a.ds(f'ds_read_b128 v[{d}:{d + 3}], v{ar} offset:{(w % 4) * 16384 + e * 1024}', f'r{w}')
    a.wait_vm('side')
    for e in range(2):
        for h in range(2):
            a(f'v_lshlrev_b32 v{vG + 4 * e + 2 * h}, 16, v{vB2 + 2 * e + h}')
            a(f'v_and_b32 v{vG + 4 * e + 2 * h + 1}, 0xffff0000, v{vB2 + 2 * e + h}')
    for w in range(8):
        a.wait_lg(f'r{w}')
        for k in range(8):
            a(f'v_add_f32 v{vG + k}, v{vG + k}, v{t + 8 * w + k}')
    for k in range(8):
        a(f'v_mul_f32 v{t + k}, {fl(-LOG2E)}, v{vG + k}')
    for k in range(8):
        a(f'v_exp_f32 v{t + k}, v{t + k}')
    for k in range(8):
        a(f'v_add_f32 v{t + k}, 1.0, v{t + k}')
    for k in range(8):
        a(f'v_rcp_f32 v{t + k}, v{t + k}')
    for k in range(8):
        a(f'v_mul_f32 v{vG + k}, v{vG + k}, v{t + k}')


def ob_write(a):
    a(f's_lshl_b32 s{sT0}, s{sW}, 12')
    a(f's_add_u32 s{sT0}, s{sT0}, {OB}')
    a(f'v_add_u32 v{vT}, s{sT0}, v{vL16}')
    for i in range(4):
        a.ds(f'ds_write_b128 v{vT}, v[{OP + 4 * i}:{OP + 4 * i + 3}] offset:{i * 1024}', 'ow')


def wo_gemm(a):
    a(f's_lshl_b32 s{sT0}, s{sKH}, 14')
    a(f's_add_u32 s{sT0}, s{sT0}, {OB}')
    a(f'v_add_u32 v{vT}, s{sT0}, v{vL16}')
    bb = ACC
    for i in range(16):
        a.ds(f'ds_read_b128 v[{bb + 4 * i}:{bb + 4 * i + 3}], v{vT} offset:{i * 1024}', f'o{i}')
    a.wait_vm('wo')
    for i in range(16):
        a.wait_lg(f'o{i}')
        a(mfma32(RO, slot(70 + i), bb + 4 * i, '0' if i == 0 else None))


def exchange(a, label):
    k1l = label + '_kh1'
    j = label + '_khj'
    a(f'''
s_lshl_b32 s{sT0}, s{sW}, 11
v_add_u32 v{vT}, s{sT0}, v{vL16}
s_xor_b32 s{sT0}, s{sW}, 4
s_lshl_b32 s{sT0}, s{sT0}, 11
v_add_u32 v{vT + 1}, s{sT0}, v{vL16}
s_cmp_eq_u32 s{sKH}, 1
s_cbranch_scc1 {k1l}
''')
    for kh in (0, 1):
        if kh == 1:
            a.label(k1l)
        send = RO + (8 if kh == 0 else 0)
        keep = RO + (0 if kh == 0 else 8)
        a(f'ds_write_b128 v{vT}, v[{send}:{send + 3}]')
        a(f'ds_write_b128 v{vT}, v[{send + 4}:{send + 7}] offset:1024')
        for k in range(8):
            a(f'v_mov_b32 v{vS + k}, v{keep + k}')
        if kh == 0:
            a(f's_branch {j}')
    a.label(j)
    a('s_waitcnt lgkmcnt(0)')
    a('s_barrier')
    t = ACC
    a(f'ds_read_b128 v[{t}:{t + 3}], v{vT + 1}')
    a(f'ds_read_b128 v[{t + 4}:{t + 7}], v{vT + 1} offset:1024')
    return t


def final(a, t):
    u = ACC + 32
    for k in range(4):
        a(f'v_lshlrev_b32 v{u + 2 * k}, 16, v{vX + k}')
        a(f'v_and_b32 v{u + 2 * k + 1}, 0xffff0000, v{vX + k}')
    a('s_waitcnt lgkmcnt(0)')
    for k in range(8):
        a(f'v_add_f32 v{vS + k}, v{vS + k}, v{t + k}')
    for k in range(8):
        a(f'v_fma_f32 v{vS + k}, v{vS + k}, v{vG + k}, v{u + k}')
    for k in range(4):
        a(f'v_cvt_pk_bf16_f32 v{vS + k}, v{vS + 2 * k}, v{vS + 2 * k + 1}')
    a(f'v_permlane32_swap_b32 v{vS}, v{vS + 2}')
    a(f'v_permlane32_swap_b32 v{vS + 1}, v{vS + 3}')
    a.vmem(f'buffer_store_dwordx4 v[{vS}:{vS + 3}], v{vXO}, {srd(S_OUT)}, 0 offen', 'st')


def prio_plan(g):
    p = OPT.get('pr', 0)
    if p == 0:
        return lambda t: None
    if g == 1:
        return lambda t: 1 if t == 0 else None
    pat = {1: [2, 2, 2, 0], 2: [2, 2, 0], 3: [2, 0], 4: [2, 2, 2, 2, 0], 5: [2, 2, 2, 2, 2, 0, 0], 6: [0],
           7: [2, 2, 2, 0, 0]}[p]
    return lambda t: pat[t % len(pat)] if (t == 0 or pat[t % len(pat)] != pat[(t - 1) % len(pat)]) else None


def attention(a, g):
    pre_n = OPT['kvpre']
    a(f'''
v_mov_b32 v{aK0}, v{vL16}
v_add_u32 v{aK1}, 0x10000, v{vL16}
v_and_b32 v{vT}, 15, v0
v_lshrrev_b32 v{vT + 1}, 5, v0
v_lshlrev_b32 v{vT + 1}, 4, v{vT + 1}
v_add_u32 v{vT}, v{vT}, v{vT + 1}
v_lshlrev_b32 v{vT}, 4, v{vT}
v_add_u32 v{aV0}, 0x400, v{vT}
v_add_u32 v{aV1}, 0x10400, v{vT}
s_mov_b32 s{sVM}, 0xffff
s_mov_b32 s{sVM + 1}, 0xffff
''')
    for i in range(4):
        a(f'v_mov_b32 v{RV0 + i}, 0x3f803f80')
        a(f'v_mov_b32 v{RV1 + i}, 0x3f803f80')
    b1 = OPT.get('b1', pre_n)
    a.wait_vm(['q'] + [f'kv{i}' for i in range(b1)])
    a('s_barrier')
    st(a, 'b1')
    ev, mf, pre = {}, {}, {}
    add = lambda d, k, x: d.setdefault(k, []).append(x)
    k_read(a, 0)
    v_reads(a, [(0, 0)])
    a.wait_lg('K0')
    a(mfma32(RS[0], RK, RQ, '0'))
    row_max(a, RS[0], vT, vT + 1)
    for i in range(16):
        a(f'v_sub_f32 v{NEGM + i}, 0, v{vT}')
    a(mfma32(RS[0], RK, RQ, NEGM))
    k_read(a, 1)
    for i in range(pre_n, 16):
        add(ev, 2 * (i - pre_n), kv_dma(a, i))
    if b1 < pre_n:
        tb = 4 * b1 - 2
        add(pre, tb, lambda: (a.wait_vm([f'kv{i}' for i in range(pre_n)]), a('s_barrier')))
    tb2 = OPT['b2']
    assert tb2 <= 4 * pre_n - 2
    add(pre, tb2, lambda: (a.wait_vm([f'kv{i}' for i in range(16)]), a('s_barrier')))
    fs = OPT['fbsig']
    add(pre, fs, lambda: fb_signal_1(a))
    add(pre, fs + 1, lambda: fb_signal_2(a))
    u0, D = OPT['u0'], OPT['D']
    add(ev, u0 - 5, lambda: fb_poll(a))
    add(pre, u0 // 2, lambda: fb_check(a))
    for i in range(86):
        add(ev, u0 + i, stream_load(a, i))
    for s in range(14):
        for j in range(4):
            add(mf, u0 + 5 * s + 1 + j + D, stream_mfma(a, s, j))
    add(ev, u0 + 87, lambda: side_loads(a))
    assert u0 + 87 < 128
    pp = prio_plan(g)
    for t in range(64):
        if pp(t) is not None:
            pre.setdefault(t, []).insert(0, f's_setprio {pp(t)}')
    for t in range(64):
        attn_step(a, t, 64, ev, mf, pre)
        st(a, f'a{t}')
    if OPT.get('pr', 0):
        a('s_setprio 0')


STAMPS = {}


def st(a, name):
    if name in STAMPS:
        stamp(a, STAMPS[name])


def gen_km(label, force_fallback=False):
    k1.SC = ' sc1'
    k1.HOOKS = {0: hook0, 8: hook8, 9: hook9, 11: hook11, 14: hook14, 15: hook15}
    k1.PREBAR = {11: prebar11}
    a = Asm()
    end = label + '_end'
    att = label + '_att'
    prologue(a, end, None)
    build_srds(a, ['x', 'wq', 'w1', 'ws', 'w2', 'wo', 'b1', 'b2', 'out', 'dbg'])
    stamp(a, 0, 0)
    start_extra(a)
    k1.setup(a)
    g1 = label + '_g1'
    a(f's_cmp_eq_u32 s{sG}, 1')
    a(f's_cbranch_scc1 {g1}')
    snap0 = a.snapshot()
    joinsnap = None
    pre_n = OPT['kvpre']
    for g in (0, 1):
        if g == 1:
            a.label(g1)
            a.restore(snap0)
        for n in range(5):
            for d in k1.dma_ops(a, n, g):
                d()
        if OPT.get('pf'):
            prefetch(a)
        k1.setup2(a)
        for n in range(8):
            k1.p1_stage(a, n, g)
            st(a, f'p1_{n}')
        k1.p1_epilogue(a, g)
        st(a, 'e1')
        for n in range(8, 16):
            k1.p2_stage(a, n, g)
            st(a, f'p2_{n}')
        k1.p2_b_phase(a, 15, [[], [], [], []], [])
        k1.write_cs_partials(a, [(k1.vCSB, (3 + 2 * g + 1) * 512)])
        a.wait_all()
        a('s_barrier')
        fa_check(a)
        st(a, 'tail')
        k1.gelu_simple(a, g, 0, [q_load(a)] + [kv_dma(a, i) for i in range(pre_n)], 'ha')
        if g == 1:
            skip = a.newlabel('skipb')
            a(f's_cmp_eq_u32 s{k1.sPB}, 0')
            a(f's_cbranch_scc1 {skip}')
        k1.gelu_simple(a, g, 1, [], 'hb')
        if g == 1:
            jn = a.newlabel('joinb')
            a(f's_branch {jn}')
            a.label(skip)
            a(f'buffer_load_dword v10, v{vL16}, {srd(S_WS)}, s{sSRC} offen')
            a(f'buffer_load_dword v11, v{vL16}, {srd(S_WS)}, s{sSRC} offen')
            a.label(jn)
        a.wait_lg()
        st(a, 'gelu')
        attention(a, g)
        if g == 0:
            a(f's_branch {att}')
            joinsnap = a.snapshot()
        else:
            assert a.snapshot() == joinsnap, (a.snapshot(), joinsnap)
    a.label(att)
    a.wait_lg()
    a(mfma32(RO, RV1, RP + 4, RO))
    fb = label + '_fb'
    fin = label + '_fin'
    a(f'v_mul_f32 v{vT}, 0, v{RO + 8}')
    for i in range(8):
        a(f'v_fma_f32 v{vT}, v{RO + i}, 0, v{vT}')
    a(f'v_cmp_u_f32 vcc, v{vT}, v{vT}')
    if force_fallback:
        a(f's_branch {fb}')
    else:
        a(f's_cbranch_vccnz {fb}')
    a.label(fin)
    a(f'v_rcp_f32 v{vT}, v{RO + 8}')
    for i in range(8):
        a(f'v_mul_f32 v{RO + i}, v{vT}, v{RO + i}')
    for i in range(4):
        a(f'v_cvt_pk_bf16_f32 v{RO + i}, v{RO + 2 * i}, v{RO + 2 * i + 1}')
    for i in range(4):
        a(f'v_min_u32 v{RO + i}, -2, v{RO + i}')
    a.vmem(f'buffer_store_dwordx4 v[{RO}:{RO + 3}], v{vL16}, {srd(S_WS)}, s{sOF} offen sc1', 'ost')
    st(a, 'oend')
    a('s_barrier')
    st(a, 'ba')
    reduce_write(a)
    o_loads(a, True)
    a.wait_lg()
    a('s_barrier')
    st(a, 'bb')
    reduce_read_gate(a)
    st(a, 'gate')
    o_check(a)
    st(a, 'opoll')
    ob_write(a)
    a.wait_lg()
    a('s_barrier')
    st(a, 'bc')
    wo_gemm(a)
    st(a, 'wog')
    a.wait_lg()
    t = exchange(a, label)
    final(a, t)
    st(a, 'fin')
    a('s_waitcnt vmcnt(0)')
    stamp(a, 9, 1)
    if OPT.get('dbgst'):
        lbl = a.newlabel('nodbg')
        a(f's_cmp_lg_u32 s{sW}, {OPT["dbgst"] - 1}')
        a(f's_cbranch_scc1 {lbl}')
        a('s_mov_b64 exec, 1')
        a('v_not_b32 v2, s68')
        a(f'buffer_atomic_umax v2, off, {srd(S_DBG)}, 0 offset:20 sc1')
        for k in range(1, 10):
            a(f'v_mov_b32 v{2 + k}, s{68 + 2 * k}')
            a(f'buffer_atomic_umax v{2 + k}, off, {srd(S_DBG)}, 0 offset:{20 + 4 * k} sc1')
        a('s_waitcnt vmcnt(0)')
        a.label(lbl)
    else:
        stamp_flush(a, 0)
    a('s_endpgm')
    a.label(fb)
    fallback(a, fin)
    a.label(end)
    a('s_endpgm')
    return a
```

```python
from common import *
import k1
from k1 import fl

KM_LDS = 163840
LCNT = 163824
RED = 0
OB = 131072
FA = FL
FB = FL + 4096
FH = FL + 8192
LOG2E = 1.4426950408889634
SPIN = 20000

sT0, sT1, sT2, sT3 = 52, 53, 54, 55
sH, sTQ, sSRC, sMD = 20, 21, 22, 23
sTILE, sCG, sOF, sOP = 24, 25, 26, 27
sHS, sWSRC, sWO, sSPIN = 8, 9, 10, 11
sVM = 94
sCT, sKH = sTT, sG

vL16 = 1
aK0, aK1, aV0, aV1 = 2, 3, 4, 5
vT = 6
RQ, RK, RV0, RV1, RP = 12, 16, 20, 24, 28
NEGM = 36
RS = (52, 68)
RO = 84
ACC = 100
RING = 164
vX, vB2, vXO = 228, 232, 236
vG, vS = 240, 248
OP = 52

OPT = dict(u0=28, D=11, fbsig=5, prio=None, b2=24, kvpre=8, nofb=False)


def spin(a, site, load, check_ok):
    ok = a.newlabel('ok')
    lp = a.newlabel('spin')
    check_ok(ok)
    a(f's_mov_b32 s{sSPIN}, {SPIN}')
    a.label(lp)
    a('s_sleep 1')
    load()
    a('s_waitcnt vmcnt(0)')
    check_ok(ok)
    a(f's_sub_u32 s{sSPIN}, s{sSPIN}, 1')
    a(f's_cmp_lg_u32 s{sSPIN}, 0')
    a(f's_cbranch_scc1 {lp}')
    a(f'v_mov_b32 v{vT}, {site}')
    a(f'buffer_store_dword v{vT}, off, {srd(S_DBG)}, 0 offset:{4 * site}')
    a.label(ok)


def one_lane_store(a, reg, srdn, soff, val=1):
    a('s_mov_b64 exec, 1')
    a(f'v_mov_b32 v{reg}, {val}')
    a(f'buffer_store_dword v{reg}, off, {srd(srdn)}, {soff} sc1')
    a('s_mov_b64 exec, -1')


def start_extra(a):
    lbl = a.newlabel('noinit')
    a(f'''
v_mov_b32 v20, 0
v_mov_b32 v21, 0
v_mov_b32 v22, 0
v_mov_b32 v23, 0
v_mov_b32 v24, {LCNT}
''')
    a.ds('ds_write_b32 v24, v20', 'w')
    a(f'''
s_or_b32 s{sT0}, s2, s{sW}
s_cmp_lg_u32 s{sT0}, 0
s_cbranch_scc1 {lbl}
v_lshrrev_b32 v1, 2, v0
v_lshlrev_b32 v1, 8, v1
v_and_b32 v2, 3, v0
v_lshlrev_b32 v2, 4, v2
v_add_u32 v1, v1, v2
s_mov_b32 s{sT0}, {FA}
s_mov_b32 s{sT1}, {FB}
s_mov_b32 s{sT2}, {FH}
buffer_store_dwordx4 v[20:23], v1, {srd(S_WS)}, s{sT0} offen sc1
buffer_store_dwordx4 v[20:23], v1, {srd(S_WS)}, s{sT1} offen sc1
buffer_store_dwordx4 v[20:23], v1, {srd(S_WS)}, s{sT2} offen sc1
''')
    a.label(lbl)


def prefetch(a):
    pf = OPT['pf']
    a(f'''
s_lshl_b32 s{sT0}, s2, 3
s_add_u32 s{sT0}, s{sT0}, s{sW}
v_lshlrev_b32 v48, 4, v0
''')
    if pf & 1:
        a(f's_mul_i32 s{sT1}, s{sT0}, 768')
        a.vmem(f'buffer_load_dwordx4 v[52:55], v48, {srd(S_WQ)}, s{sT1} offen', 'pf')
    if pf & 2:
        a(f's_mul_i32 s{sT1}, s{sT0}, 896')
        a.vmem(f'buffer_load_dwordx4 v[56:59], v48, {srd(S_W1)}, s{sT1} offen', 'pf')
    if pf & 4:
        a(f's_lshl_b32 s{sT1}, s{sT0}, 10')
        a.vmem(f'buffer_load_dwordx4 v[60:63], v48, {srd(S_X)}, s{sT1} offen', 'pf')
    if pf & 8:
        a(f's_mul_i32 s{sT1}, s{sT0}, 896')
        a.vmem(f'buffer_load_dwordx4 v[56:59], v48, {srd(S_W2)}, s{sT1} offen', 'pf')
        a(f's_lshl_b32 s{sT1}, s{sT0}, 8')
        a.vmem(f'buffer_load_dword v60, v48, {srd(S_WO)}, s{sT1} offen', 'pf')


def hook0(a, g):
    if g != 0:
        return
    lbl = a.newlabel('noinit2')
    a(f'''
s_or_b32 s{sT0}, s2, s{sW}
s_cmp_lg_u32 s{sT0}, 0
s_cbranch_scc1 {lbl}
''')
    one_lane_store(a, 20, S_DBG, 0)
    a.label(lbl)


def hook8(a, g):
    a(f'''
s_lshl_b32 s{sT0}, s{sXCD}, 2
s_lshr_b32 s{sCG}, s{sSLOT}, 3
s_add_u32 s{sH}, s{sT0}, s{sCG}
s_and_b32 s{sT1}, s{sSLOT}, 7
s_lshl_b32 s{sTQ}, s{sT1}, 3
s_add_u32 s{sTQ}, s{sTQ}, s{sW}
s_lshl_b32 s{sMD}, s{sW}, 10
s_lshl_b32 s{sSRC}, s{sH}, 17
s_add_u32 s{sSRC}, s{sSRC}, {KV}
s_add_u32 s{sSRC}, s{sSRC}, s{sMD}
s_lshl_b32 s{sOF}, s{sTQ}, 5
s_add_u32 s{sOF}, s{sOF}, s{sH}
s_lshl_b32 s{sOF}, s{sOF}, 10
s_add_u32 s{sOF}, s{sOF}, {OF}
s_lshl_b32 s{sT0}, s{sXCD}, 3
s_add_u32 s{sTILE}, s{sT0}, s{sT1}
s_lshl_b32 s{sOP}, s{sTILE}, 3
s_add_u32 s{sOP}, s{sOP}, s{sW}
s_lshl_b32 s{sOP}, s{sOP}, 12
s_add_u32 s{sOP}, s{sOP}, {OF}
s_mul_i32 s{sT0}, s{sW}, 14
s_mul_i32 s{sHS}, s{sTILE}, 112
s_add_u32 s{sHS}, s{sHS}, s{sT0}
s_lshl_b32 s{sHS}, s{sHS}, 10
s_add_u32 s{sHS}, s{sHS}, {HF}
s_lshl_b32 s{sWSRC}, s{sT0}, 4
s_lshl_b32 s{sT1}, s{sCG}, 2
s_add_u32 s{sWSRC}, s{sWSRC}, s{sT1}
s_lshl_b32 s{sWSRC}, s{sWSRC}, 10
s_add_u32 s{sWSRC}, s{sWSRC}, {WF}
s_lshl_b32 s{sWO}, s{sKH}, 4
s_add_u32 s{sWO}, s{sWO}, 112
s_lshl_b32 s{sWO}, s{sWO}, 4
s_add_u32 s{sWO}, s{sWO}, s{sT1}
s_add_u32 s{sWO}, s{sWO}, s{sCT}
s_lshl_b32 s{sWO}, s{sWO}, 10
s_add_u32 s{sWO}, s{sWO}, {WF}
v_mov_b32 v92, -1
v_mov_b32 v93, -1
v_mov_b32 v94, -1
v_mov_b32 v95, -1
''')
    a.vmem(f'buffer_store_dwordx4 v[92:95], v{vL16}, {srd(S_WS)}, s{sOF} offen sc1', 'st')


def ini_load(a):
    return f'buffer_load_dword v92, off, {srd(S_DBG)}, 0 sc1'


def hook9(a, g):
    a.vmem(ini_load(a), 'ini')


def prebar11(a, g):
    a.wait_vm('ini')

    def chk(ok):
        a('v_cmp_eq_u32 vcc, 1, v92')
        a(f's_cbranch_vccnz {ok}')
    spin(a, 1, lambda: a(ini_load(a)), chk)


def hook11(a, g):
    if g == 0:
        lbl = a.newlabel('nofa')
        a(f'''
s_cmp_lg_u32 s{sW}, 0
s_cbranch_scc1 {lbl}
s_lshl_b32 s{sT0}, s{k1.sHP}, 8
s_lshl_b32 s{sT1}, s{k1.sTB}, 2
s_add_u32 s{sT0}, s{sT0}, s{sT1}
s_add_u32 s{sT0}, s{sT0}, {FA}
''')
        one_lane_store(a, 92, S_WS, f's{sT0}')
        a.label(lbl)
    k1.prep_finish(a)


def hook14(a, g):
    if g == 0:
        lbl = a.newlabel('nofw')
        a(f'''
s_cmp_lg_u32 s{sW}, 0
s_cbranch_scc1 {lbl}
s_lshr_b32 s{sT0}, s2, 4
s_lshl_b32 s{sT0}, s{sT0}, 8
s_and_b32 s{sT1}, s2, 15
s_lshl_b32 s{sT1}, s{sT1}, 2
s_add_u32 s{sT0}, s{sT0}, s{sT1}
s_add_u32 s{sT0}, s{sT0}, {FB}
''')
        one_lane_store(a, 92, S_WS, f's{sT0}')
        a.label(lbl)


def fa_load():
    return f'buffer_load_dword v93, v94, {srd(S_WS)}, s{sSPIN - 0 if False else sT1} offen sc1'


def fa_addr(a):
    a(f'''
s_lshr_b32 s{sT1}, s{sH}, 1
s_lshl_b32 s{sT1}, s{sT1}, 8
s_add_u32 s{sT1}, s{sT1}, {FA}
''')


def hook15(a, g):
    a('v_and_b32 v94, 15, v0')
    a('v_lshlrev_b32 v94, 2, v94')
    fa_addr(a)
    a.vmem(fa_load(), 'fa')


def fa_check(a):
    def chk(ok):
        a('v_cmp_ne_u32 vcc, 1, v93')
        a(f's_cbranch_vccz {ok}')

    def ld():
        fa_addr(a)
        a(fa_load())
    spin(a, 2, ld, chk)


def kv_dma(a, i):
    def f():
        a(f's_add_u32 m0, s{sMD}, {i * 8192}')
        a(f's_add_u32 s{sT2}, s{sSRC}, {i * 8192}')
        a.vmem(f'buffer_load_dwordx4 v{vL16}, {srd(S_WS)}, s{sT2} offen sc1 lds', f'kv{i}')
    return f


def q_load(a):
    def f():
        a(f'''
s_lshl_b32 s{sT2}, s{sH}, 6
s_add_u32 s{sT2}, s{sT2}, s{sTQ}
s_lshl_b32 s{sT2}, s{sT2}, 10
''')
        a.vmem(f'buffer_load_dwordx4 v[{RQ}:{RQ + 3}], v{vL16}, {srd(S_WS)}, s{sT2} offen sc1', 'q')
    return f


def k_read(a, t):
    ar, off = (aK0, t * 2048) if t < 32 else (aK1, (t - 32) * 2048)
    a.ds(f'ds_read_b128 v[{RK}:{RK + 3}], v{ar} offset:{off}', f'K{t}')


def v_reads(a, items):
    a(f's_mov_b64 exec, s[{sVM}:{sVM + 1}]')
    for part, t in items:
        ar, off = (aV0, t * 2048) if t < 32 else (aV1, (t - 32) * 2048)
        r = RV0 if part == 0 else RV1
        a.ds(f'ds_read_b128 v[{r}:{r + 3}], v{ar} offset:{off + part * 512}', f'V{part}_{t}')
    a('s_mov_b64 exec, -1')


def run(a, items):
    for it in items:
        emit(a, it)


def attn_step(a, t, nt, ev, mf, pre):
    S, Sn = RS[t % 2], RS[(t + 1) % 2]
    ex = [f'v_exp_f32 v{S + i}, v{S + i}' for i in range(16)]
    cv = [f'v_cvt_pk_bf16_f32 v{RP + i}, v{S + 2 * i}, v{S + 2 * i + 1}' for i in range(8)]
    run(a, pre.get(t, []))
    if t + 1 < nt:
        a.wait_lg(f'K{t + 1}')
        a(mfma32(Sn, RK, RQ, NEGM))
        if t + 2 < nt:
            k_read(a, t + 2)
    run(a, ev.get(2 * t, []))
    run(a, (ex[0], ex[1], ex[2], ex[3]))
    run(a, mf.get(2 * t, []))
    run(a, (cv[0], ex[4], ex[5], cv[1]))
    if t > 0:
        a.wait_lg(f'V1_{t - 1}')
        a(mfma32(RO, RV1, RP + 4, RO))
    run(a, (ex[6], ex[7], cv[2], ex[8], ex[9], cv[3], ex[10], ex[11]))
    a.wait_lg(f'V0_{t}')
    a(mfma32(RO, RV0, RP, '0' if t == 0 else RO))
    items = [(1, t)]
    if t + 1 < nt:
        items.append((0, t + 1))
    v_reads(a, items)
    run(a, ev.get(2 * t + 1, []))
    run(a, (cv[4], ex[12], ex[13], cv[5]))
    run(a, mf.get(2 * t + 1, []))
    run(a, (ex[14], ex[15], cv[6], cv[7]))


def row_max(a, S, dst, tmp):
    a(f'v_max3_f32 v{dst}, v{S}, v{S + 1}, v{S + 2}')
    a(f'v_max3_f32 v{tmp}, v{S + 3}, v{S + 4}, v{S + 5}')
    a(f'v_max3_f32 v{dst}, v{dst}, v{S + 6}, v{S + 7}')
    a(f'v_max3_f32 v{tmp}, v{tmp}, v{S + 8}, v{S + 9}')
    a(f'v_max3_f32 v{dst}, v{dst}, v{S + 10}, v{S + 11}')
    a(f'v_max3_f32 v{tmp}, v{tmp}, v{S + 12}, v{S + 13}')
    a(f'v_max3_f32 v{dst}, v{dst}, v{S + 14}, v{S + 15}')
    a(f'v_max_f32 v{dst}, v{dst}, v{tmp}')
    a(f'v_mov_b32 v{tmp}, v{dst}')
    a(f'v_permlane32_swap_b32 v{dst}, v{tmp}')
    a(f'v_max_f32 v{dst}, v{dst}, v{tmp}')


def fallback(a, done_label):
    a.comment('--- fallback: online softmax with the running true maximum')
    loop = a.newlabel('fb_loop')
    S = RS[0]
    vm, vmn, val, va, vb = vT, vT + 1, vT + 2, vT + 3, vT + 4
    a(f'v_mov_b32 v{vm}, 0xff800000')
    for i in range(16):
        a(f'v_mov_b32 v{RO + i}, 0')
    a(f'v_mov_b32 v{va}, v{aK0}')
    a(f'v_mov_b32 v{vb}, v{aV0}')
    a(f's_mov_b32 s{sT0}, 64')
    a.label(loop)
    a(f'ds_read_b128 v[{RK}:{RK + 3}], v{va}')
    a(f's_mov_b64 exec, s[{sVM}:{sVM + 1}]')
    a(f'ds_read_b128 v[{RV0}:{RV0 + 3}], v{vb}')
    a(f'ds_read_b128 v[{RV1}:{RV1 + 3}], v{vb} offset:512')
    a('s_mov_b64 exec, -1')
    a('s_waitcnt lgkmcnt(0)')
    a(mfma32(S, RK, RQ, '0'))
    a(f'v_add_u32 v{va}, 0x800, v{va}')
    a(f'v_add_u32 v{vb}, 0x800, v{vb}')
    row_max(a, S, vmn, val)
    a(f'v_max_f32 v{vmn}, v{vmn}, v{vm}')
    a(f'v_sub_f32 v{val}, v{vm}, v{vmn}')
    a(f'v_exp_f32 v{val}, v{val}')
    a(f'v_mov_b32 v{vm}, v{vmn}')
    for i in range(16):
        a(f'v_sub_f32 v{S + i}, v{S + i}, v{vmn}')
    for i in range(16):
        a(f'v_exp_f32 v{S + i}, v{S + i}')
    for i in range(16):
        a(f'v_mul_f32 v{RO + i}, v{val}, v{RO + i}')
    for i in range(8):
        a(f'v_cvt_pk_bf16_f32 v{RP + i}, v{S + 2 * i}, v{S + 2 * i + 1}')
    a(mfma32(RO, RV0, RP, RO))
    a(mfma32(RO, RV1, RP + 4, RO))
    a(f's_sub_u32 s{sT0}, s{sT0}, 1')
    a(f's_cmp_lg_u32 s{sT0}, 0')
    a(f's_cbranch_scc1 {loop}')
    a(f's_branch {done_label}')


def slot(i):
    return RING + 4 * (i % 16)


def stream_load(a, i):
    def f():
        if OPT.get('xnl') and i < 70:
            return
        if i < 70:
            s, j = divmod(i, 5)
            if j == 0:
                a(f's_add_u32 s{sT2}, s{sHS}, {s * 1024}')
                a.vmem(f'buffer_load_dwordx4 v[{slot(i)}:{slot(i) + 3}], v{vL16}, {srd(S_WS)}, s{sT2} offen sc1', f'f{i}')
            else:
                if j == 1:
                    a(f's_add_u32 s{sT3}, s{sWSRC}, {s * 16384}')
                a.vmem(f'buffer_load_dwordx4 v[{slot(i)}:{slot(i) + 3}], v{vL16}, {srd(S_WS)}, s{sT3} offen '
                       f'offset:{(j - 1) * 1024} sc1', f'f{i}')
        else:
            k = i - 70
            a(f's_add_u32 s{sT2}, s{sWO}, {k * 16384}')
            a.vmem(f'buffer_load_dwordx4 v[{slot(i)}:{slot(i) + 3}], v{vL16}, {srd(S_WS)}, s{sT2} offen sc1', 'wo')
    return f


def stream_mfma(a, s, j):
    def f():
        iw, ih = 5 * s + 1 + j, 5 * s
        if not OPT.get('xnw'):
            a.wait_vm(f'f{iw}')
        else:
            a.vm = [t for t in a.vm if t != f'f{iw}' and t != f'f{ih}']
        if OPT.get('xnm'):
            return
        a(mfma32(ACC + 16 * j, slot(iw), slot(ih), '0' if s == 0 else None))
    return f


def side_loads(a):
    a(f'''
s_lshl_b32 s{sT0}, s{sCG}, 8
s_lshl_b32 s{sT1}, s{sCT}, 6
s_add_u32 s{sT0}, s{sT0}, s{sT1}
s_lshl_b32 s{sT1}, s{sKH}, 5
s_add_u32 s{sT0}, s{sT0}, s{sT1}
v_lshrrev_b32 v{vT}, 5, v0
v_lshlrev_b32 v{vT}, 3, v{vT}
v_add_u32 v{vT}, s{sT0}, v{vT}
v_and_b32 v{vT + 1}, 31, v0
v_lshlrev_b32 v{vT + 1}, 10, v{vT + 1}
s_lshl_b32 s{sT1}, s{sTILE}, 15
v_add3_u32 v{vT + 1}, v{vT + 1}, v{vT}, s{sT1}
''')
    a.vmem(f'buffer_load_dwordx2 v[{vB2}:{vB2 + 1}], v{vT}, {srd(S_B2)}, 0 offen', 'side')
    a.vmem(f'buffer_load_dwordx2 v[{vB2 + 2}:{vB2 + 3}], v{vT}, {srd(S_B2)}, 0 offen offset:16', 'side')
    a.vmem(f'buffer_load_dwordx2 v[{vX}:{vX + 1}], v{vT + 1}, {srd(S_X)}, 0 offen', 'side')
    a.vmem(f'buffer_load_dwordx2 v[{vX + 2}:{vX + 3}], v{vT + 1}, {srd(S_X)}, 0 offen offset:16', 'side')
    a(f'''
v_lshrrev_b32 v{vT + 2}, 5, v0
v_lshlrev_b32 v{vT + 2}, 4, v{vT + 2}
v_and_b32 v{vXO}, 31, v0
v_lshlrev_b32 v{vXO}, 10, v{vXO}
s_add_u32 s{sT0}, s{sT0}, s{sT1}
v_add3_u32 v{vXO}, v{vXO}, v{vT + 2}, s{sT0}
''')
    if OPT.get('otouch'):
        a.vmem(f'buffer_load_dword v{vXO + 1}, v{vXO}, {srd(S_OUT)}, 0 offen', 'side')


def fb_signal_1(a):
    a.wait_vm('hb')
    a(f'''
v_mov_b32 v{vT}, {LCNT}
v_mov_b32 v{vT + 1}, 1
s_mov_b64 exec, 1
''')
    a.ds(f'ds_add_rtn_u32 v{vT + 1}, v{vT}, v{vT + 1}', 'cnt')
    a('s_mov_b64 exec, -1')


def fb_signal_2(a):
    lbl = a.newlabel('nofb')
    a.wait_lg('cnt')
    a(f'''
v_readfirstlane_b32 s{sT0}, v{vT + 1}
s_cmp_lg_u32 s{sT0}, 7
s_cbranch_scc1 {lbl}
s_lshl_b32 s{sT0}, s{k1.sTB}, 8
s_lshl_b32 s{sT1}, s{k1.sHP}, 2
s_add_u32 s{sT0}, s{sT0}, s{sT1}
s_add_u32 s{sT0}, s{sT0}, {FH}
''')
    one_lane_store(a, vT + 1, S_WS, f's{sT0}')
    a.label(lbl)


def fb_load(a):
    return [f'buffer_load_dwordx4 v[8:11], v{vT}, {srd(S_WS)}, s{sT1} offen sc1',
            f'buffer_load_dword v{vX}, v{vT + 1}, {srd(S_WS)}, s{sT0} offen sc1']


def fb_addr(a):
    a(f'''
s_mov_b32 s{sT1}, {FB}
s_lshr_b32 s{sT0}, s{sTILE}, 2
s_lshl_b32 s{sT0}, s{sT0}, 8
s_add_u32 s{sT0}, s{sT0}, {FH}
''')


def fb_poll(a):
    a(f'''
v_lshrrev_b32 v{vT}, 2, v0
v_lshlrev_b32 v{vT}, 8, v{vT}
v_and_b32 v{vT + 1}, 3, v0
v_lshlrev_b32 v{vT + 1}, 4, v{vT + 1}
v_add_u32 v{vT}, v{vT}, v{vT + 1}
v_and_b32 v{vT + 1}, 15, v0
v_lshlrev_b32 v{vT + 1}, 2, v{vT + 1}
''')
    fb_addr(a)
    for x in fb_load(a):
        a.vmem(x, 'fb')


def fb_check(a):
    a.wait_vm('fb')

    def chk(ok):
        a('v_and_b32 v8, v8, v9')
        a('v_and_b32 v10, v10, v11')
        a('v_and_b32 v8, v8, v10')
        a(f'v_and_b32 v8, v8, v{vX}')
        a('v_cmp_ne_u32 vcc, 1, v8')
        a(f's_cbranch_vccz {ok}')

    def ld():
        fb_addr(a)
        for x in fb_load(a):
            a(x)
    spin(a, 3, ld, chk)


def o_loads(a, tracked):
    for i in range(4):
        t = f'buffer_load_dwordx4 v[{OP + 4 * i}:{OP + 4 * i + 3}], v{vL16}, {srd(S_WS)}, s{sOP} offen offset:{1024 * i} sc1'
        if tracked:
            a.vmem(t, 'op')
        else:
            a(t)


def o_check(a):
    a.wait_vm('op')

    def chk(ok):
        for i in range(4):
            r = OP + 4 * i
            a(f'v_max3_u32 v{vT + i}, v{r}, v{r + 1}, v{r + 2}')
            a(f'v_max_u32 v{vT + i}, v{vT + i}, v{r + 3}')
        a(f'v_max3_u32 v{vT}, v{vT}, v{vT + 1}, v{vT + 2}')
        a(f'v_max_u32 v{vT}, v{vT}, v{vT + 3}')
        a(f'v_cmp_eq_u32 vcc, -1, v{vT}')
        a(f's_cbranch_vccz {ok}')
    spin(a, 4, lambda: o_loads(a, False), chk)


def reduce_write(a):
    a(f's_lshl_b32 s{sT0}, s{sW}, 14')
    a(f'v_add_u32 v{vT}, s{sT0}, v{vL16}')
    for k in range(16):
        a.ds(f'ds_write_b128 v{vT}, v[{ACC + 4 * k}:{ACC + 4 * k + 3}] offset:{k * 1024}', 'rw')


def reduce_read_gate(a):
    a(f'''
s_lshl_b32 s{sT0}, s{sCT}, 12
s_lshl_b32 s{sT1}, s{sKH}, 11
s_add_u32 s{sT0}, s{sT0}, s{sT1}
v_add_u32 v{vT}, s{sT0}, v{vL16}
v_add_u32 v{vT + 1}, 0x10000, v{vT}
''')
    t = ACC
    for w in range(8):
        for e in range(2):
            ar = vT if w < 4 else vT + 1
            d = t + 8 * w + 4 * e
            a.ds(f'ds_read_b128 v[{d}:{d + 3}], v{ar} offset:{(w % 4) * 16384 + e * 1024}', f'r{w}')
    a.wait_vm('side')
    for e in range(2):
        for h in range(2):
            a(f'v_lshlrev_b32 v{vG + 4 * e + 2 * h}, 16, v{vB2 + 2 * e + h}')
            a(f'v_and_b32 v{vG + 4 * e + 2 * h + 1}, 0xffff0000, v{vB2 + 2 * e + h}')
    for w in range(8):
        a.wait_lg(f'r{w}')
        for k in range(8):
            a(f'v_add_f32 v{vG + k}, v{vG + k}, v{t + 8 * w + k}')
    for k in range(8):
        a(f'v_mul_f32 v{t + k}, {fl(-LOG2E)}, v{vG + k}')
    for k in range(8):
        a(f'v_exp_f32 v{t + k}, v{t + k}')
    for k in range(8):
        a(f'v_add_f32 v{t + k}, 1.0, v{t + k}')
    for k in range(8):
        a(f'v_rcp_f32 v{t + k}, v{t + k}')
    for k in range(8):
        a(f'v_mul_f32 v{vG + k}, v{vG + k}, v{t + k}')


def ob_write(a):
    a(f's_lshl_b32 s{sT0}, s{sW}, 12')
    a(f's_add_u32 s{sT0}, s{sT0}, {OB}')
    a(f'v_add_u32 v{vT}, s{sT0}, v{vL16}')
    for i in range(4):
        a.ds(f'ds_write_b128 v{vT}, v[{OP + 4 * i}:{OP + 4 * i + 3}] offset:{i * 1024}', 'ow')


def wo_gemm(a):
    a(f's_lshl_b32 s{sT0}, s{sKH}, 14')
    a(f's_add_u32 s{sT0}, s{sT0}, {OB}')
    a(f'v_add_u32 v{vT}, s{sT0}, v{vL16}')
    bb = ACC
    for i in range(16):
        a.ds(f'ds_read_b128 v[{bb + 4 * i}:{bb + 4 * i + 3}], v{vT} offset:{i * 1024}', f'o{i}')
    a.wait_vm('wo')
    for i in range(16):
        a.wait_lg(f'o{i}')
        a(mfma32(RO, slot(70 + i), bb + 4 * i, '0' if i == 0 else None))


def exchange(a, label):
    k1l = label + '_kh1'
    j = label + '_khj'
    a(f'''
s_lshl_b32 s{sT0}, s{sW}, 11
v_add_u32 v{vT}, s{sT0}, v{vL16}
s_xor_b32 s{sT0}, s{sW}, 4
s_lshl_b32 s{sT0}, s{sT0}, 11
v_add_u32 v{vT + 1}, s{sT0}, v{vL16}
s_cmp_eq_u32 s{sKH}, 1
s_cbranch_scc1 {k1l}
''')
    for kh in (0, 1):
        if kh == 1:
            a.label(k1l)
        send = RO + (8 if kh == 0 else 0)
        keep = RO + (0 if kh == 0 else 8)
        a(f'ds_write_b128 v{vT}, v[{send}:{send + 3}]')
        a(f'ds_write_b128 v{vT}, v[{send + 4}:{send + 7}] offset:1024')
        for k in range(8):
            a(f'v_mov_b32 v{vS + k}, v{keep + k}')
        if kh == 0:
            a(f's_branch {j}')
    a.label(j)
    a('s_waitcnt lgkmcnt(0)')
    a('s_barrier')
    t = ACC
    a(f'ds_read_b128 v[{t}:{t + 3}], v{vT + 1}')
    a(f'ds_read_b128 v[{t + 4}:{t + 7}], v{vT + 1} offset:1024')
    return t


def final(a, t):
    u = ACC + 32
    for k in range(4):
        a(f'v_lshlrev_b32 v{u + 2 * k}, 16, v{vX + k}')
        a(f'v_and_b32 v{u + 2 * k + 1}, 0xffff0000, v{vX + k}')
    a('s_waitcnt lgkmcnt(0)')
    for k in range(8):
        a(f'v_add_f32 v{vS + k}, v{vS + k}, v{t + k}')
    for k in range(8):
        a(f'v_fma_f32 v{vS + k}, v{vS + k}, v{vG + k}, v{u + k}')
    for k in range(4):
        a(f'v_cvt_pk_bf16_f32 v{vS + k}, v{vS + 2 * k}, v{vS + 2 * k + 1}')
    a(f'v_permlane32_swap_b32 v{vS}, v{vS + 2}')
    a(f'v_permlane32_swap_b32 v{vS + 1}, v{vS + 3}')
    a.vmem(f'buffer_store_dwordx4 v[{vS}:{vS + 3}], v{vXO}, {srd(S_OUT)}, 0 offen', 'st')


def prio_plan(g):
    p = OPT.get('pr', 0)
    if p == 0:
        return lambda t: None
    if g == 1:
        return lambda t: 1 if t == 0 else None
    pat = {1: [2, 2, 2, 0], 2: [2, 2, 0], 3: [2, 0], 4: [2, 2, 2, 2, 0], 5: [2, 2, 2, 2, 2, 0, 0], 6: [0],
           7: [2, 2, 2, 0, 0]}[p]
    return lambda t: pat[t % len(pat)] if (t == 0 or pat[t % len(pat)] != pat[(t - 1) % len(pat)]) else None


def attention(a, g):
    pre_n = OPT['kvpre']
    a(f'''
v_mov_b32 v{aK0}, v{vL16}
v_add_u32 v{aK1}, 0x10000, v{vL16}
v_and_b32 v{vT}, 15, v0
v_lshrrev_b32 v{vT + 1}, 5, v0
v_lshlrev_b32 v{vT + 1}, 4, v{vT + 1}
v_add_u32 v{vT}, v{vT}, v{vT + 1}
v_lshlrev_b32 v{vT}, 4, v{vT}
v_add_u32 v{aV0}, 0x400, v{vT}
v_add_u32 v{aV1}, 0x10400, v{vT}
s_mov_b32 s{sVM}, 0xffff
s_mov_b32 s{sVM + 1}, 0xffff
''')
    if OPT.get('ones2', 1):
        a(f'v_and_b32 v{vT}, 27, v0')
        a(f'v_cmp_eq_u32 vcc, 16, v{vT}')
        a(f'v_mov_b32 v{vT}, 0x3f803f80')
        for i in range(4):
            a(f'v_cndmask_b32 v{RV0 + i}, 0, v{vT}, vcc')
            a(f'v_cndmask_b32 v{RV1 + i}, 0, v{vT}, vcc')
    else:
        for i in range(4):
            a(f'v_mov_b32 v{RV0 + i}, 0x3f803f80')
            a(f'v_mov_b32 v{RV1 + i}, 0x3f803f80')
    b1 = OPT.get('b1', pre_n)
    a.wait_vm(['q'] + [f'kv{i}' for i in range(b1)])
    a('s_barrier')
    st(a, 'b1')
    ev, mf, pre = {}, {}, {}
    add = lambda d, k, x: d.setdefault(k, []).append(x)
    k_read(a, 0)
    v_reads(a, [(0, 0)])
    a.wait_lg('K0')
    a(mfma32(RS[0], RK, RQ, '0'))
    row_max(a, RS[0], vT, vT + 1)
    for i in range(16):
        a(f'v_sub_f32 v{NEGM + i}, 0, v{vT}')
    a(mfma32(RS[0], RK, RQ, NEGM))
    k_read(a, 1)
    for i in range(pre_n, 16):
        add(ev, 2 * (i - pre_n), kv_dma(a, i))
    if b1 < pre_n:
        tb = 4 * b1 - 2
        add(pre, tb, lambda: (a.wait_vm([f'kv{i}' for i in range(pre_n)]), a('s_barrier')))
    tb2 = OPT['b2']
    assert tb2 <= 4 * pre_n - 2
    add(pre, tb2, lambda: (a.wait_vm([f'kv{i}' for i in range(16)]), a('s_barrier')))
    fs = OPT['fbsig']
    add(pre, fs, lambda: fb_signal_1(a))
    add(pre, fs + 1, lambda: fb_signal_2(a))
    u0, D = OPT['u0'], OPT['D']
    add(ev, u0 - 5, lambda: fb_poll(a))
    add(pre, u0 // 2, lambda: fb_check(a))
    for i in range(86):
        add(ev, u0 + i, stream_load(a, i))
    for s in range(14):
        for j in range(4):
            add(mf, u0 + 5 * s + 1 + j + D, stream_mfma(a, s, j))
    add(ev, u0 + 87, lambda: side_loads(a))
    assert u0 + 87 < 128
    pp = prio_plan(g)
    for t in range(64):
        if pp(t) is not None:
            pre.setdefault(t, []).insert(0, f's_setprio {pp(t)}')
    for t in range(64):
        attn_step(a, t, 64, ev, mf, pre)
        st(a, f'a{t}')
    if OPT.get('pr', 0):
        a('s_setprio 0')


STAMPS = {}


def st(a, name):
    if name in STAMPS:
        stamp(a, STAMPS[name])


def gen_km(label, force_fallback=False):
    k1.SC = ' sc1'
    k1.HOOKS = {0: hook0, 8: hook8, 9: hook9, 11: hook11, 14: hook14, 15: hook15}
    k1.PREBAR = {11: prebar11}
    a = Asm()
    end = label + '_end'
    att = label + '_att'
    prologue(a, end, None)
    build_srds(a, ['x', 'wq', 'w1', 'ws', 'w2', 'wo', 'b1', 'b2', 'out', 'dbg'])
    stamp(a, 0, 0)
    start_extra(a)
    k1.setup(a)
    g1 = label + '_g1'
    a(f's_cmp_eq_u32 s{sG}, 1')
    a(f's_cbranch_scc1 {g1}')
    snap0 = a.snapshot()
    joinsnap = None
    pre_n = OPT['kvpre']
    for g in (0, 1):
        if g == 1:
            a.label(g1)
            a.restore(snap0)
        for n in range(5):
            for d in k1.dma_ops(a, n, g):
                d()
        if OPT.get('pf'):
            prefetch(a)
        k1.setup2(a)
        for n in range(8):
            k1.p1_stage(a, n, g)
            st(a, f'p1_{n}')
        k1.p1_epilogue(a, g)
        st(a, 'e1')
        for n in range(8, 16):
            k1.p2_stage(a, n, g)
            st(a, f'p2_{n}')
        k1.p2_b_phase(a, 15, [[], [], [], []], [])
        k1.write_cs_partials(a, [(k1.vCSB, (3 + 2 * g + 1) * 512)])
        a.wait_all()
        a('s_barrier')
        fa_check(a)
        st(a, 'tail')
        k1.gelu_simple(a, g, 0, [q_load(a)] + [kv_dma(a, i) for i in range(pre_n)], 'ha')
        if g == 1:
            skip = a.newlabel('skipb')
            a(f's_cmp_eq_u32 s{k1.sPB}, 0')
            a(f's_cbranch_scc1 {skip}')
        k1.gelu_simple(a, g, 1, [], 'hb')
        if g == 1:
            jn = a.newlabel('joinb')
            a(f's_branch {jn}')
            a.label(skip)
            a(f'buffer_load_dword v10, v{vL16}, {srd(S_WS)}, s{sSRC} offen')
            a(f'buffer_load_dword v11, v{vL16}, {srd(S_WS)}, s{sSRC} offen')
            a.label(jn)
        a.wait_lg()
        st(a, 'gelu')
        attention(a, g)
        if g == 0:
            a(f's_branch {att}')
            joinsnap = a.snapshot()
        else:
            assert a.snapshot() == joinsnap, (a.snapshot(), joinsnap)
    a.label(att)
    a.wait_lg()
    a(mfma32(RO, RV1, RP + 4, RO))
    fb = label + '_fb'
    fin = label + '_fin'
    a(f'v_mul_f32 v{vT}, 0, v{RO + 8}')
    for i in range(8):
        a(f'v_fma_f32 v{vT}, v{RO + i}, 0, v{vT}')
    a(f'v_cmp_u_f32 vcc, v{vT}, v{vT}')
    if force_fallback:
        a(f's_branch {fb}')
    else:
        a(f's_cbranch_vccnz {fb}')
    a.label(fin)
    a(f'v_rcp_f32 v{vT}, v{RO + 8}')
    for i in range(8):
        a(f'v_mul_f32 v{RO + i}, v{vT}, v{RO + i}')
    for i in range(4):
        a(f'v_cvt_pk_bf16_f32 v{RO + i}, v{RO + 2 * i}, v{RO + 2 * i + 1}')
    for i in range(4):
        a(f'v_min_u32 v{RO + i}, -2, v{RO + i}')
    a.vmem(f'buffer_store_dwordx4 v[{RO}:{RO + 3}], v{vL16}, {srd(S_WS)}, s{sOF} offen sc1', 'ost')
    st(a, 'oend')
    a('s_barrier')
    st(a, 'ba')
    reduce_write(a)
    o_loads(a, True)
    a.wait_lg()
    a('s_barrier')
    st(a, 'bb')
    reduce_read_gate(a)
    st(a, 'gate')
    o_check(a)
    st(a, 'opoll')
    ob_write(a)
    a.wait_lg()
    a('s_barrier')
    st(a, 'bc')
    wo_gemm(a)
    st(a, 'wog')
    a.wait_lg()
    t = exchange(a, label)
    final(a, t)
    st(a, 'fin')
    a('s_waitcnt vmcnt(0)')
    stamp(a, 9, 1)
    if OPT.get('dbgst'):
        lbl = a.newlabel('nodbg')
        a(f's_cmp_lg_u32 s{sW}, {OPT["dbgst"] - 1}')
        a(f's_cbranch_scc1 {lbl}')
        a('s_mov_b64 exec, 1')
        a('v_not_b32 v2, s68')
        a(f'buffer_atomic_umax v2, off, {srd(S_DBG)}, 0 offset:20 sc1')
        for k in range(1, 10):
            a(f'v_mov_b32 v{2 + k}, s{68 + 2 * k}')
            a(f'buffer_atomic_umax v{2 + k}, off, {srd(S_DBG)}, 0 offset:{20 + 4 * k} sc1')
        a('s_waitcnt vmcnt(0)')
        a.label(lbl)
    else:
        stamp_flush(a, 0)
    a('s_endpgm')
    a.label(fb)
    fallback(a, fin)
    a.label(end)
    a('s_endpgm')
    return a
```

```python
from common import *

XR = 0
WR = 81920
ST = 143360
CSP = ST + 4096
SCR = CSP + 3584
K1_LDS = SCR + 2048

sTB, sHP, sF0 = 49, 50, 51
sT0, sT1, sT2, sT3 = 52, 53, 54, 55
sMASK = 60
sMX, sMW, sM2 = 61, 62, 63
sPB = 64
sT = 65
sQO, sKO, sHO = 66, 67, 56
sPF, sPS = 57, 58

vXD = 4
vWD, vW1D = 6, 7
aX = 8
aW = 12
vSX0, vSQ0, vSX1, vSQ1 = 16, 17, 18, 19
vU = 20
vCS0, vCS1 = 24, 28
vCSA, vCSB = 32, 36
vSEL = 40
vTMP = 44
AC_A = 48
AC_Q, AC_K = 64, 80
AC_B = 64
BUFA, BUFB = 96, 112
XF = 128
vL16 = 1
vM, vR = 2, 3
vRR, vMRR = 4, 5
vB1A, vB1B = 16, 17

C_Q = 0.25 * 1.4426950408889634
C1 = -2.302208198144325
C2 = C1 * 0.044715


EXP = set()
HPX = 0
SC = ''
HOOKS = {}
PREBAR = {}


def X(c, j):
    return XF + 16 * c + 4 * j


def fl(x):
    import struct
    return hex(struct.unpack('<I', struct.pack('<f', x))[0])


def setup(a):
    a.comment('--- K1 ids and lane constants')
    a(f'''
s_and_b32 s{sT0}, s{sXCD}, 1
s_lshl_b32 s{sT0}, s{sT0}, 3
s_and_b32 s{sT1}, s{sSLOT}, 7
s_add_u32 s{sTB}, s{sT0}, s{sT1}
s_lshr_b32 s{sT0}, s{sXCD}, 1
s_lshl_b32 s{sT0}, s{sT0}, 2
s_lshr_b32 s{sT1}, s{sSLOT}, 3
s_add_u32 s{sHP}, s{sT0}, s{sT1}
s_xor_b32 s{sHP}, s{sHP}, {HPX}
s_mul_i32 s{sT0}, s{sHP}, 7
s_and_b32 s{sT1}, s{sHP}, 1
s_add_u32 s{sT0}, s{sT0}, s{sT1}
s_lshr_b32 s{sF0}, s{sT0}, 1
s_and_b32 s{sT1}, s{sT1}, s{sG}
s_lshl_b32 s{sT1}, s{sT1}, 6
s_sub_u32 s{sPB}, 64, s{sT1}
s_lshl_b32 s{sT}, s{sTB}, 2
s_add_u32 s{sT}, s{sT}, s{sTT}
s_mov_b32 s{sMASK}, 0xffff0000
s_lshl_b32 s{sMX}, s{sW}, 11
s_lshl_b32 s{sMW}, s{sTT}, 10
s_add_u32 s{sMW}, s{sMW}, {WR}
s_lshl_b32 s{sM2}, s{sG}, 13
s_lshl_b32 s{sT0}, s{sTT}, 11
s_add_u32 s{sM2}, s{sM2}, s{sT0}
''')
    a(f'''
v_lshrrev_b32 v1, 3, v0
v_lshrrev_b32 v2, 4, v0
v_and_b32 v3, 7, v0
v_xor_b32 v2, v2, v3
s_lshl_b32 s{sT0}, s{sTB}, 7
s_lshl_b32 s{sT1}, s{sW}, 4
s_add_u32 s{sT0}, s{sT0}, s{sT1}
v_add_u32 v1, s{sT0}, v1
v_lshlrev_b32 v1, 10, v1
v_lshlrev_b32 v2, 4, v2
v_add_u32 v{vXD}, v1, v2
v_xor_b32 v2, 64, v2
v_add_u32 v1, 0x2000, v1
v_add_u32 v{vXD + 1}, v1, v2
''')
    a(f'''
v_lshrrev_b32 v1, 2, v0
v_and_b32 v2, 3, v0
v_lshlrev_b32 v2, 4, v2
s_lshl_b32 s{sT0}, s{sTT}, 4
v_add_u32 v3, s{sT0}, v1
v_mul_u32_u24 v3, 0xc00, v3
s_lshl_b32 s{sT0}, s{sHP}, 6
s_sub_u32 s{sT1}, 1, s{sG}
s_lshl_b32 s{sT1}, s{sT1}, 11
s_add_u32 s{sT0}, s{sT0}, s{sT1}
v_add3_u32 v{vWD}, v3, v2, s{sT0}
s_lshl_b32 s{sT0}, s{sTT}, 5
v_add_u32 v3, s{sT0}, v1
v_mul_u32_u24 v3, 0xe00, v3
s_lshl_b32 s{sT0}, s{sG}, 1
s_add_u32 s{sT0}, s{sT0}, s{sF0}
s_lshl_b32 s{sT0}, s{sT0}, 6
v_add3_u32 v{vW1D}, v3, v2, s{sT0}
''')


def setup2(a):
    a.comment('--- LDS read addresses')
    a(f'''
v_and_b32 v1, 31, v0
v_lshrrev_b32 v2, 5, v0
v_bfe_u32 v3, v0, 1, 3
v_xor_b32 v2, v2, v3
v_lshlrev_b32 v2, 4, v2
s_lshl_b32 s{sT0}, s{sTT}, 5
v_add_u32 v1, s{sT0}, v1
v_lshlrev_b32 v1, 7, v1
''')
    for j in range(4):
        a(f's_xor_b32 s{sT0}, s{sTT}, {j}')
        a(f's_lshl_b32 s{sT0}, s{sT0}, 5')
        a(f'v_xor_b32 v3, s{sT0}, v2')
        a(f'v_add_u32 v{aX + j}, v1, v3')
    a(f'''
v_lshrrev_b32 v1, 5, v0
v_lshlrev_b32 v1, 9, v1
v_bfe_u32 v2, v0, 2, 2
v_lshlrev_b32 v2, 6, v2
v_add_u32 v1, v1, v2
v_bfe_u32 v2, v0, 4, 1
v_lshlrev_b32 v2, 5, v2
v_add_u32 v1, v1, v2
v_and_b32 v2, 1, v0
v_lshlrev_b32 v2, 4, v2
v_add_u32 v1, v1, v2
v_and_b32 v2, 2, v0
v_lshlrev_b32 v2, 2, v2
v_add_u32 v1, v1, v2
''')
    for j in range(4):
        a(f's_xor_b32 s{sT0}, s{sTT}, {j}')
        a(f's_lshl_b32 s{sT0}, s{sT0}, 10')
        a(f's_add_u32 s{sT0}, s{sT0}, {WR}')
        a(f'v_add_u32 v{aW + j}, s{sT0}, v1')
    a(f'''
v_and_b32 v1, 15, v0
v_bfe_u32 v2, v0, 4, 1
v_cmp_eq_u32 vcc, v1, v2
v_mov_b32 v1, 0x3f803f80
v_cndmask_b32 v{vSEL}, 0, v1, vcc
v_cndmask_b32 v{vSEL + 1}, 0, v1, vcc
v_cndmask_b32 v{vSEL + 2}, 0, v1, vcc
v_cndmask_b32 v{vSEL + 3}, 0, v1, vcc
v_mov_b32 v{vSX0}, 0
v_mov_b32 v{vSQ0}, 0
v_mov_b32 v{vSX1}, 0
v_mov_b32 v{vSQ1}, 0
v_lshlrev_b32 v{vL16}, 4, v0
''')


def xslot(n):
    return (n % 5) * 16384


def dma_ops(a, n, g):
    ops = []
    tag = f'c{n}'
    if 'nodma' in EXP and n >= 5:
        return ops

    def one(srdn, voff, m0_s, m0_imm, soff_fn):
        def f():
            a(f's_add_u32 m0, s{m0_s}, {m0_imm}')
            so = soff_fn()
            a.vmem(f'buffer_load_dwordx4 v{voff}, {srd(srdn)}, {so} offen lds', tag)
        return f

    def const_soff(val):
        def f():
            a(f's_mov_b32 s{sT2}, {val}')
            return f's{sT2}'
        return f

    if n < 8:
        for q in range(2):
            ops.append(one(S_X, vXD + q, sMX, xslot(n) + q * 1024, const_soff(n * 128)))
        wb = (n % 5) * 12288
        if g == 0:
            ops.append(one(S_WQ, vWD, sMW, wb + 2 * 4096, const_soff(n * 196608)))
        else:
            ops.append(one(S_WQ, vWD, sMW, wb, const_soff(n * 196608)))
            ops.append(one(S_WQ, vWD, sMW, wb + 4096, const_soff(n * 196608 + 1024)))
    elif n < 16:
        ps, C = (n - 8) // 4, (n - 8) % 4
        for q in range(2):
            val = C * 458752 + q * 57344
            if ps == 0:
                sf = const_soff(val)
            else:
                def sf(val=val):
                    a(f's_add_u32 s{sT2}, s{sPB}, {val}')
                    return f's{sT2}'
            ops.append(one(S_W1, vW1D, sM2, xslot(n) + q * 1024, sf))
    return ops


def tr_pair(a, d, areg, off, tag):
    if 'notr' in EXP:
        return
    a.ds(f'ds_read_b64_tr_b16 v[{d}:{d + 1}], v{areg} offset:{off}', tag)
    a.ds(f'ds_read_b64_tr_b16 v[{d + 2}:{d + 3}], v{areg} offset:{off + 256}', tag)


def stat_ops(xreg, k):
    t = vU + 2 * (k % 2)
    return [f'v_and_b32 v{t}, s{sMASK}, v{xreg}',
            f'v_lshlrev_b32 v{t + 1}, 16, v{xreg}',
            f'v_fmac_f32 v{vSQ0}, v{t}, v{t}',
            f'v_fmac_f32 v{vSQ1}, v{t + 1}, v{t + 1}',
            f'v_add_f32 v{vSX0}, v{t}, v{vSX0}',
            f'v_add_f32 v{vSX1}, v{t + 1}, v{vSX1}']


def p1_frag(g, j, p):
    base = BUFA if j < 2 else BUFB
    return base + 8 * (j % 2) + 4 * p


def p1_reads(a, n, g, js, tag):
    xo = xslot(n) if n % 5 < 4 else 0
    for j in js:
        a.ds(f'ds_read_b128 v[{X(n, j)}:{X(n, j) + 3}], v{aX + j} offset:{xo}', tag)
        wb = (n % 5) * 12288
        panels = (0, 1) if g == 0 else (2,)
        for pi, p in enumerate(panels):
            tr_pair(a, p1_frag(g, j, pi), aW + j, wb + p * 4096, tag)


def p1_mfmas(n, g, js):
    out = []
    for j in js:
        first = (n == 0 and j == 0)
        if g == 0:
            out.append(mfma32(AC_Q, p1_frag(0, j, 0), X(n, j), '0' if first else None))
            out.append(mfma32(AC_K, p1_frag(0, j, 1), X(n, j), '0' if first else None))
            if j == 0 and 'nom16' not in EXP:
                out.append(mfma16(vCS0, p1_frag(0, 0, 0), vSEL, '0' if n == 0 else None))
                out.append(mfma16(vCS1, p1_frag(0, 0, 1), vSEL, '0' if n == 0 else None))
        else:
            out.append(mfma32(AC_Q, X(n, j), p1_frag(1, j, 0), '0' if first else None))
            if j == 0 and 'nom16' not in EXP:
                out.append(mfma16(vCS0, p1_frag(1, 0, 0), vSEL, '0' if n == 0 else None))
    return out


def p1_stats(n, g, js):
    ops = []
    k = 0
    if 'nostat' in EXP:
        return ops
    for j in js:
        for r in ((0, 1) if g == 0 else (2, 3)):
            ops += stat_ops(X(n, j) + r, k)
            k += 1
    return ops


def rebase(a, regs, n, delta=65536):
    if n % 5 == 4:
        for r in regs:
            a(f'v_add_u32 v{r}, {hex(delta)}, v{r}')
    if n % 5 == 0 and n > 0:
        for r in regs:
            a(f'v_subrev_u32 v{r}, {hex(delta)}, v{r}')


def p1_read_ops(a, n, g, j):
    xo = xslot(n) if n % 5 < 4 else 0
    tag = f'P{n}_{j}'
    ops = [lambda: a.ds(f'ds_read_b128 v[{X(n, j)}:{X(n, j) + 3}], v{aX + j} offset:{xo}', tag)]
    wb = (n % 5) * 12288
    panels = (0, 1) if g == 0 else (2,)
    for pi, p in enumerate(panels):
        d = p1_frag(g, j, pi)
        off = wb + p * 4096
        if 'notr' in EXP:
            continue
        ops.append(lambda d=d, off=off: a.ds(f'ds_read_b64_tr_b16 v[{d}:{d + 1}], v{aW + j} offset:{off}', tag))
        ops.append(lambda d=d, off=off: a.ds(f'ds_read_b64_tr_b16 v[{d + 2}:{d + 3}], v{aW + j} offset:{off + 256}', tag))
    return ops


def p1_stat_reg(n, g, j, k):
    if 'nostat' in EXP:
        return []
    r = (0, 1)[k] if g == 0 else (2, 3)[k]
    return stat_ops(X(n, j) + r, k)


def run_gaps(a, items):
    for it in items:
        if isinstance(it, (list, tuple)):
            for x in it:
                emit(a, x)
        else:
            emit(a, it)


def p1_b_phase(a, n, g, ra, dm):
    w = lambda j: (lambda: a.wait_lg(f'P{n}_{j}'))
    S = lambda j, k: p1_stat_reg(n, g, j, k)
    d = list(dm) + [[]] * 4
    if g == 0:
        q = lambda j: mfma32(AC_Q, p1_frag(0, j, 0), X(n, j))
        k_ = lambda j: mfma32(AC_K, p1_frag(0, j, 1), X(n, j))
        run_gaps(a, [w(2), q(2), ra[0][:3], S(2, 0),
                     k_(2), ra[0][3:], d[0], S(2, 1),
                     w(3), q(3), ra[1][:3], S(3, 0),
                     k_(3), ra[1][3:], S(3, 1)])
    else:
        v_ = lambda j: mfma32(AC_Q, X(n, j), p1_frag(1, j, 0))
        run_gaps(a, [w(2), v_(2), ra[0], S(2, 0), d[0], S(2, 1),
                     w(3), v_(3), ra[1], S(3, 0), d[1], S(3, 1)])


def p1_a_phase(a, n, g, rb, dm):
    w = lambda j: (lambda: a.wait_lg(f'P{n}_{j}'))
    S = lambda j, k: p1_stat_reg(n, g, j, k)
    d = list(dm) + [[]] * 4
    z = lambda first: '0' if first else None
    m16 = 'nom16' not in EXP
    if g == 0:
        q = lambda j: mfma32(AC_Q, p1_frag(0, j, 0), X(n, j), z(n == 0 and j == 0))
        k_ = lambda j: mfma32(AC_K, p1_frag(0, j, 1), X(n, j), z(n == 0 and j == 0))
        run_gaps(a, [w(0), q(0), rb[0][:3], S(0, 0),
                     k_(0), rb[0][3:], S(0, 1),
                     [mfma16(vCS0, p1_frag(0, 0, 0), vSEL, z(n == 0))] if m16 else [], d[0],
                     [mfma16(vCS1, p1_frag(0, 0, 1), vSEL, z(n == 0))] if m16 else [], rb[1][:3],
                     w(1), q(1), rb[1][3:], S(1, 0),
                     k_(1), d[1], S(1, 1)])
    else:
        v_ = lambda j: mfma32(AC_Q, X(n, j), p1_frag(1, j, 0), z(n == 0 and j == 0))
        run_gaps(a, [w(0), v_(0), rb[0], S(0, 0),
                     [mfma16(vCS0, p1_frag(1, 0, 0), vSEL, z(n == 0))] if m16 else [], d[0], S(0, 1),
                     w(1), v_(1), rb[1], S(1, 0), d[1], S(1, 1)])


def split_dma(dm, g, p1type):
    h = len(dm) // 2 if not (g == 0 and len(dm) == 3) else 1
    return dm[:h], dm[h:]


INIT = 5


def chunk_for_stage(n):
    return n + 3 if n + 3 >= INIT else None


def p1_stage(a, n, g):
    a.comment(f'--- P1 stage {n} g={g}')
    a.wait_vm(f'c{n}')
    if n in PREBAR:
        PREBAR[n](a, g)
    if 'nobar' not in EXP:
        a('s_barrier')
    if n in HOOKS:
        HOOKS[n](a, g)
    rebase(a, [aX + j for j in range(4)], n)
    c = chunk_for_stage(n)
    dm = dma_ops(a, c, g) if c is not None else []
    db, da = split_dma(dm, g, True)
    ra = [p1_read_ops(a, n, g, 0), p1_read_ops(a, n, g, 1)]
    if n > 0:
        p1_b_phase(a, n - 1, g, ra, db)
    else:
        run_gaps(a, ra)
        da = db + da
        da = [da[0], da[1:]] if len(da) > 2 else da
    rb = [p1_read_ops(a, n, g, 2), p1_read_ops(a, n, g, 3)]
    p1_a_phase(a, n, g, rb, da)


def write_cs_partials(a, accs_panels):
    a(f'''
v_and_b32 v{vTMP}, 15, v0
v_lshlrev_b32 v{vTMP}, 8, v{vTMP}
v_lshrrev_b32 v{vTMP + 1}, 4, v0
v_lshlrev_b32 v{vTMP + 1}, 6, v{vTMP + 1}
s_lshl_b32 s{sT0}, s{sTT}, 2
s_add_u32 s{sT0}, s{sT0}, {CSP}
v_add3_u32 v{vTMP}, v{vTMP}, v{vTMP + 1}, s{sT0}
s_mov_b32 s{sT0}, 0x00030003
s_mov_b32 s{sT1}, 0x00030003
s_mov_b64 exec, s[{sT0}:{sT1}]
''')
    for acc, off in accs_panels:
        for r in range(4):
            a.ds(f'ds_write_b32 v{vTMP}, v{acc + r} offset:{off + r * 16}', 'w')
    a('s_mov_b64 exec, -1')


def p1_epilogue(a, g):
    a.comment(f'--- P1 epilogue g={g}')
    p1_b_phase(a, 7, g, [[], []], [])
    a(f'''
v_add_f32 v{vSX0}, v{vSX0}, v{vSX1}
v_add_f32 v{vSQ0}, v{vSQ0}, v{vSQ1}
v_and_b32 v{vU}, 31, v0
v_lshlrev_b32 v{vU}, 5, v{vU}
s_lshl_b32 s{sT0}, s{sTT}, 10
s_add_u32 s{sT0}, s{sT0}, {ST}
v_add_u32 v{vU}, s{sT0}, v{vU}
v_lshrrev_b32 v{vU + 1}, 5, v0
v_lshlrev_b32 v{vU + 1}, 3, v{vU + 1}
v_add3_u32 v{vU + 1}, v{vU + 1}, v{vU}, {16 * g}
''')
    a.ds(f'ds_write_b64 v{vU + 1}, v[{vSX0}:{vSQ0}]', 'w')
    write_cs_partials(a, [(vCS0, 0), (vCS1, 512)] if g == 0 else [(vCS0, 1024)])
    a.wait_lg()
    a('s_barrier')
    prep_issue(a)
    a(f'''
v_and_b32 v{vTMP + 2}, 31, v0
v_and_b32 v{vTMP + 3}, 19, v{vTMP + 2}
v_bfe_u32 v{vCS0}, v0, 2, 1
v_lshlrev_b32 v{vCS0}, 3, v{vCS0}
v_bfe_u32 v{vCS0 + 1}, v0, 3, 1
v_lshlrev_b32 v{vCS0 + 1}, 2, v{vCS0 + 1}
v_add3_u32 v{vTMP + 3}, v{vTMP + 3}, v{vCS0}, v{vCS0 + 1}
v_lshlrev_b32 v{vTMP + 3}, 1, v{vTMP + 3}
s_lshl_b32 s{sT0}, s{sG}, 1
s_add_u32 s{sT0}, s{sT0}, s{sF0}
s_lshl_b32 s{sT0}, s{sT0}, 6
s_add_u32 s{sT1}, s{sT0}, s{sPB}
''')
    a.vmem(f'buffer_load_ushort v{vB1A}, v{vTMP + 3}, {srd(S_B1)}, s{sT0} offen', 'b1')
    a.vmem(f'buffer_load_ushort v{vB1B}, v{vTMP + 3}, {srd(S_B1)}, s{sT1} offen', 'b1')
    t = BUFA
    a.ds(f'ds_read_b128 v[{t}:{t + 3}], v{vU}', 's')
    a.ds(f'ds_read_b128 v[{t + 4}:{t + 7}], v{vU} offset:16', 's')
    a(f'''
v_and_b32 v{vU + 2}, 31, v0
v_lshlrev_b32 v{vU + 2}, 4, v{vU + 2}
''')
    if g == 0:
        a(f'''
v_lshrrev_b32 v{vU + 3}, 5, v0
v_lshlrev_b32 v{vU + 3}, 9, v{vU + 3}
v_add_u32 v{vU + 2}, v{vU + 2}, v{vU + 3}
v_add_u32 v{vU + 2}, {CSP}, v{vU + 2}
''')
        a.ds(f'ds_read_b128 v[{t + 8}:{t + 11}], v{vU + 2}', 'c')
    else:
        a(f'v_add_u32 v{vU + 2}, {CSP}, v{vU + 2}')
        a.ds(f'ds_read_b128 v[{t + 8}:{t + 11}], v{vU + 2} offset:1024', 'c')
    a.wait_lg('s')
    a(f'''
v_add_f32 v{t}, v{t}, v{t + 2}
v_add_f32 v{t + 1}, v{t + 1}, v{t + 3}
v_add_f32 v{t + 4}, v{t + 4}, v{t + 6}
v_add_f32 v{t + 5}, v{t + 5}, v{t + 7}
v_add_f32 v{t}, v{t}, v{t + 4}
v_add_f32 v{t + 1}, v{t + 1}, v{t + 5}
v_mul_f32 v{vM}, {fl(1 / 512)}, v{t}
v_mul_f32 v{t + 1}, {fl(1 / 512)}, v{t + 1}
v_fma_f32 v{t + 1}, -v{vM}, v{vM}, v{t + 1}
v_max_f32 v{t + 1}, 0, v{t + 1}
v_add_f32 v{t + 2}, {fl(1e-5)}, v{t + 1}
v_rsq_f32 v{vR}, v{t + 2}
''')
    a.wait_lg('c')
    a(f'''
v_add_f32 v{t + 8}, v{t + 8}, v{t + 9}
v_add_f32 v{t + 10}, v{t + 10}, v{t + 11}
v_mul_f32 v{t + 2}, v{vR}, v{vR}
v_mul_f32 v{t + 2}, v{t + 2}, v{t + 1}
v_add_f32 v{t + 2}, {fl(1e-5)}, v{t + 2}
v_rsq_f32 v{t + 2}, v{t + 2}
v_add_f32 v{t + 8}, v{t + 8}, v{t + 10}
v_mul_f32 v{vRR}, v{vR}, v{t + 2}
v_mul_f32 v{vMRR}, v{vM}, v{vRR}
''')
    a(f'''
s_lshl_b32 s{sT0}, s{sW}, 8
s_add_u32 s{sT0}, s{sT0}, {SCR}
v_lshlrev_b32 v{vU}, 2, v0
v_add_u32 v{vU}, s{sT0}, v{vU}
v_lshrrev_b32 v{vU + 1}, 5, v0
v_lshlrev_b32 v{vU + 1}, 4, v{vU + 1}
v_add_u32 v{vU + 1}, s{sT0}, v{vU + 1}
''')
    a(f'''
s_lshl_b32 s{sT0}, s{sHP}, 17
s_lshl_b32 s{sT1}, s{sT}, 10
s_add_u32 s{sQO}, s{sT0}, s{sT1}
s_lshl_b32 s{sT0}, s{sHP}, 18
s_lshl_b32 s{sT1}, s{sT}, 11
s_add_u32 s{sKO}, s{sT0}, s{sT1}
s_add_u32 s{sKO}, s{sKO}, {KV}
''')
    if g == 0:
        a.ds(f'ds_write_b32 v{vU}, v{t + 8}', 'w')
        for p in range(2):
            for qd in range(4):
                d = BUFA + 16 * p + 4 * qd
                a.ds(f'ds_read_b128 v[{d}:{d + 3}], v{vU + 1} offset:{p * 128 + qd * 32}', f'q{p}')
        a(f'v_mul_f32 v{vU + 2}, {fl(C_Q)}, v{vR}')
        for p, acc in ((0, AC_Q), (1, AC_K)):
            a.wait_lg(f'q{p}')
            sc = vU + 2 if p == 0 else vR
            for r in range(16):
                a(f'v_fma_f32 v{acc + r}, -v{vM}, v{BUFA + 16 * p + r}, v{acc + r}')
            for r in range(16):
                a(f'v_mul_f32 v{acc + r}, v{sc}, v{acc + r}')
            for r in range(8):
                a(f'v_cvt_pk_bf16_f32 v{acc + r}, v{acc + 2 * r}, v{acc + 2 * r + 1}')
            if p == 0:
                a.vmem(f'buffer_store_dwordx4 v[{acc}:{acc + 3}], v{vL16}, {srd(S_WS)}, s{sQO} offen{SC}', 'st')
                a(f's_add_u32 s{sT0}, s{sQO}, 65536')
                a.vmem(f'buffer_store_dwordx4 v[{acc + 4}:{acc + 7}], v{vL16}, {srd(S_WS)}, s{sT0} offen{SC}', 'st')
            else:
                a.vmem(f'buffer_store_dwordx4 v[{acc}:{acc + 3}], v{vL16}, {srd(S_WS)}, s{sKO} offen{SC}', 'st')
                a(f's_add_u32 s{sT0}, s{sKO}, 131072')
                a.vmem(f'buffer_store_dwordx4 v[{acc + 4}:{acc + 7}], v{vL16}, {srd(S_WS)}, s{sT0} offen{SC}', 'st')
    else:
        a(f'''
v_mul_f32 v{t + 9}, v{vM}, v{vR}
v_cmp_gt_u32 vcc, 32, v0
v_cndmask_b32 v{t + 9}, v{t + 9}, v{vR}, vcc
''')
        a.ds(f'ds_write_b32 v{vU}, v{t + 9}', 'w')
        a(f'v_mov_b32 v{vU + 2}, v{t + 8}')
        for qd in range(4):
            d = BUFA + 4 * qd
            a.ds(f'ds_read_b128 v[{d}:{d + 3}], v{vU + 1} offset:{qd * 32}', 'q0')
        for qd in range(4):
            d = BUFB + 4 * qd
            a.ds(f'ds_read_b128 v[{d}:{d + 3}], v{vU + 1} offset:{128 + qd * 32}', 'q0')
        a(f'''
v_bfe_u32 v{vU}, v0, 4, 1
v_lshlrev_b32 v{vU}, 17, v{vU}
v_and_b32 v{vU + 3}, 15, v0
v_lshlrev_b32 v{vU + 3}, 4, v{vU + 3}
v_add_u32 v{vU}, v{vU}, v{vU + 3}
v_lshrrev_b32 v{vU + 3}, 5, v0
v_lshlrev_b32 v{vU + 3}, 8, v{vU + 3}
v_add_u32 v{vU}, v{vU}, v{vU + 3}
''')
        a.wait_lg('q0')
        acc = AC_Q
        for r in range(16):
            a(f'v_mul_f32 v{BUFB + r}, v{vU + 2}, v{BUFB + r}')
        for r in range(16):
            a(f'v_fma_f32 v{acc + r}, v{acc + r}, v{BUFA + r}, -v{BUFB + r}')
        for r in range(8):
            a(f'v_cvt_pk_bf16_f32 v{acc + r}, v{acc + 2 * r}, v{acc + 2 * r + 1}')
        a.vmem(f'buffer_store_dwordx4 v[{acc}:{acc + 3}], v{vU}, {srd(S_WS)}, s{sKO} offen offset:1024{SC}', 'st')
        a.vmem(f'buffer_store_dwordx4 v[{acc + 4}:{acc + 7}], v{vU}, {srd(S_WS)}, s{sKO} offen offset:1536{SC}', 'st')
    a(f's_lshl_b32 s{sT0}, s{sG}, 13')
    a(f's_sub_u32 s{sT0}, s{sT0}, {WR}')
    for j in range(4):
        a(f'v_add_u32 v{aW + j}, s{sT0}, v{aW + j}')


def prep_issue(a):
    a.comment('prep DMA')
    lbl = a.newlabel('prep_wo')
    lbl2 = a.newlabel('prep_j')
    lbl3 = a.newlabel('prep_n2')
    a(f'''
v_lshrrev_b32 v{vTMP}, 2, v0
v_lshlrev_b32 v{vTMP}, 10, v{vTMP}
v_and_b32 v{vTMP + 1}, 3, v0
v_lshlrev_b32 v{vTMP + 1}, 4, v{vTMP + 1}
s_and_b32 s{sT0}, s2, 1
s_lshl_b32 s{sT0}, s{sT0}, 3
s_add_u32 s{sT0}, s{sT0}, s{sW}
s_lshl_b32 s{sT0}, s{sT0}, 6
v_add3_u32 v{vTMP}, v{vTMP}, v{vTMP + 1}, s{sT0}
s_lshr_b32 s{sPS}, s2, 1
s_lshl_b32 s{sT1}, s{sW}, 10
s_add_u32 m0, s{sT1}, {WR}
s_lshl_b32 s{sT2}, s{sPS}, 14
s_cmp_ge_u32 s2, 224
s_cbranch_scc1 {lbl}
''')
    snap = a.snapshot()
    a.vmem(f'buffer_load_dwordx4 v{vTMP}, {srd(S_W2)}, s{sT2} offen lds', 'prep')
    a(f's_branch {lbl2}')
    a.label(lbl)
    a(f's_sub_u32 s{sT2}, s{sT2}, {112 * 16384}')
    a(f'buffer_load_dwordx4 v{vTMP}, {srd(S_WO)}, s{sT2} offen lds')
    a.label(lbl2)
    a(f'''
s_cmp_ge_u32 s2, 32
s_cbranch_scc1 {lbl3}
s_add_u32 m0, s{sT1}, {WR + 8192}
s_add_u32 s{sT2}, s{sT2}, {16 * 16384}
''')
    a(f'buffer_load_dwordx4 v{vTMP}, {srd(S_WO)}, s{sT2} offen lds')
    a.label(lbl3)


def prep_finish(a):
    a.comment('prep: transpose + store')
    lbl3 = a.newlabel('prep_f2')
    t = 80
    a(f'''
v_lshrrev_b32 v{t}, 5, v0
v_lshlrev_b32 v{t}, 9, v{t}
v_bfe_u32 v{t + 1}, v0, 2, 2
v_lshlrev_b32 v{t + 1}, 6, v{t + 1}
v_add_u32 v{t}, v{t}, v{t + 1}
v_bfe_u32 v{t + 1}, v0, 4, 1
v_lshlrev_b32 v{t + 1}, 5, v{t + 1}
v_add_u32 v{t}, v{t}, v{t + 1}
v_and_b32 v{t + 1}, 3, v0
v_lshlrev_b32 v{t + 1}, 3, v{t + 1}
s_lshl_b32 s{sT0}, s{sW}, 10
s_add_u32 s{sT0}, s{sT0}, {WR}
v_add3_u32 v{t}, v{t}, v{t + 1}, s{sT0}
s_lshl_b32 s{sT0}, s2, 3
s_add_u32 s{sT0}, s{sT0}, s{sW}
s_lshl_b32 s{sT0}, s{sT0}, 10
s_add_u32 s{sT0}, s{sT0}, {WF}
''')
    tr_pair(a, t + 4, t, 0, 'pp')
    a.wait_lg('pp')
    a.vmem(f'buffer_store_dwordx4 v[{t + 4}:{t + 7}], v{vL16}, {srd(S_WS)}, s{sT0} offen{SC}', 'st')
    a(f'''
s_cmp_ge_u32 s2, 32
s_cbranch_scc1 {lbl3}
''')
    a(f'ds_read_b64_tr_b16 v[{t + 8}:{t + 9}], v{t} offset:8192')
    a(f'ds_read_b64_tr_b16 v[{t + 10}:{t + 11}], v{t} offset:{8192 + 256}')
    a(f's_add_u32 s{sT0}, s{sT0}, {2048 * 1024}')
    a('s_waitcnt lgkmcnt(0)')
    a(f'buffer_store_dwordx4 v[{t + 8}:{t + 11}], v{vL16}, {srd(S_WS)}, s{sT0} offen{SC}')
    a.label(lbl3)


P2A, P2B = (0, 4, 1, 5), (2, 6, 3, 7)


def p2_frag(p):
    return BUFA + 4 * P2A.index(p) if p in P2A else BUFB + 4 * P2B.index(p)


def p2_read_ops(a, n, p):
    so = xslot(n) if n % 5 < 4 else 0
    off = so + (p // 4) * 4096
    d = p2_frag(p)
    tag = f'P{n}_{p}'
    if 'notr' in EXP:
        return []
    return [lambda: a.ds(f'ds_read_b64_tr_b16 v[{d}:{d + 1}], v{aW + p % 4} offset:{off}', tag),
            lambda: a.ds(f'ds_read_b64_tr_b16 v[{d + 2}:{d + 3}], v{aW + p % 4} offset:{off + 256}', tag)]


def p2_mfma(n, p):
    pas, C = (n - 8) // 4, (n - 8) % 4
    acc = AC_A if pas == 0 else AC_B
    first = (C == 0 and p == 0)
    return mfma32(acc, p2_frag(p), X(2 * C + p // 4, p % 4), '0' if first else None)


def p2_m16(n, p):
    pas, C = (n - 8) // 4, (n - 8) % 4
    cs = vCSA if pas == 0 else vCSB
    return mfma16(cs, p2_frag(p), vSEL, '0' if (C == 0 and p == 0) else None)


def p2_b_phase(a, n, ra, dm, fill=None):
    w = lambda p: (lambda: a.wait_lg(f'P{n}_{p}'))
    d = list(dm) + [[]] * 4
    f = fill or (lambda k: [])
    for i, p in enumerate(P2B):
        run_gaps(a, [w(p), p2_mfma(n, p), ra[i], d[0] if i == 1 else [], f(i)])


def p2_a_phase(a, n, rb, dm, fill=None):
    w = lambda p: (lambda: a.wait_lg(f'P{n}_{p}'))
    d = list(dm) + [[]] * 4
    f = fill or (lambda k: [])
    m16 = 'nom16' not in EXP
    for i, p in enumerate(P2A):
        run_gaps(a, [w(p), p2_mfma(n, p), rb[i], d[0] if i == 2 else [], f(4 + i)])
        if m16 and p in (0, 4):
            a(p2_m16(n, p))


def gelu_prep_ops(a, g, pas):
    pi = 3 + 2 * g + pas
    b1 = vB1A if pas == 0 else vB1B
    t = vCS0
    a(f'''
v_and_b32 v{vU + 2}, 31, v0
v_lshlrev_b32 v{vU + 2}, 4, v{vU + 2}
v_add_u32 v{vU + 2}, {CSP}, v{vU + 2}
''')
    a.ds(f'ds_read_b128 v[{t}:{t + 3}], v{vU + 2} offset:{pi * 512}', 'gc')
    a(f'''
s_lshl_b32 s{sT0}, s{sW}, 8
s_add_u32 s{sT0}, s{sT0}, {SCR}
v_lshlrev_b32 v{vU}, 2, v0
v_add_u32 v{vU}, s{sT0}, v{vU}
v_lshrrev_b32 v{vU + 1}, 5, v0
v_lshlrev_b32 v{vU + 1}, 4, v{vU + 1}
v_add_u32 v{vU + 1}, s{sT0}, v{vU + 1}
v_lshlrev_b32 v{t + 4}, 16, v{b1}
''')
    a.wait_lg('gc')
    a(f'''
v_add_f32 v{t}, v{t}, v{t + 1}
v_add_f32 v{t + 2}, v{t + 2}, v{t + 3}
v_cmp_gt_u32 vcc, 32, v0
v_add_f32 v{t}, v{t}, v{t + 2}
v_cndmask_b32 v{t}, v{t + 4}, v{t}, vcc
''')
    a.ds(f'ds_write_b32 v{vU}, v{t}', 'w')


def gelu_ops(a, acc, csb, b1b, tmp):
    ops = []
    for q in range(4):
        R = [acc + 4 * q + e for e in range(4)]
        cs = [csb + 4 * q + e for e in range(4)]
        b = [b1b + 4 * q + e for e in range(4)]
        u = [tmp + e for e in range(4)]
        w = [tmp + 4 + e for e in range(4)]
        for e in range(4):
            ops.append(f'v_fma_f32 v{b[e]}, -v{vMRR}, v{cs[e]}, v{b[e]}')
        for e in range(4):
            ops.append(f'v_fma_f32 v{R[e]}, v{vRR}, v{R[e]}, v{b[e]}')
        for e in range(4):
            ops.append(f'v_mul_f32 v{u[e]}, v{R[e]}, v{R[e]}')
        for e in range(4):
            ops.append(f'v_fma_f32 v{u[e]}, v{u[e]}, s{sT3}, v{vTMP + 2}')
        for e in range(4):
            ops.append(f'v_mul_f32 v{u[e]}, v{u[e]}, v{R[e]}')
        for e in range(4):
            ops.append(f'v_exp_f32 v{w[e]}, v{u[e]}')
        for e in range(4):
            ops.append(f'v_add_f32 v{w[e]}, 1.0, v{w[e]}')
        for e in range(4):
            ops.append(f'v_rcp_f32 v{w[e]}, v{w[e]}')
        for e in range(4):
            ops.append(f'v_mul_f32 v{R[e]}, v{R[e]}, v{w[e]}')
        ops.append(f'v_cvt_pk_bf16_f32 v{acc + 2 * q}, v{R[0]}, v{R[1]}')
        ops.append(f'v_cvt_pk_bf16_f32 v{acc + 2 * q + 1}, v{R[2]}, v{R[3]}')
    return ops


def gelu_simple(a, g, pas, extras=(), sttag='st'):
    acc = AC_A if pas == 0 else AC_B
    gelu_prep_ops(a, g, pas)
    csb, b1b = BUFA, BUFA + 16
    for qd in range(4):
        a.ds(f'ds_read_b128 v[{csb + 4 * qd}:{csb + 4 * qd + 3}], v{vU + 1} offset:{qd * 32}', 'gq')
        a.ds(f'ds_read_b128 v[{b1b + 4 * qd}:{b1b + 4 * qd + 3}], v{vU + 1} offset:{128 + qd * 32}', 'gq')
    a(f's_mov_b32 s{sT3}, {fl(C2)}')
    a(f'v_mov_b32 v{vTMP + 2}, {fl(C1)}')
    a(f'''
s_mul_i32 s{sHO}, s{sT}, 112
s_lshl_b32 s{sT0}, s{sG}, 1
s_add_u32 s{sT0}, s{sT0}, s{sF0}
s_add_u32 s{sT0}, s{sT0}, {pas}
s_lshl_b32 s{sT0}, s{sT0}, 1
s_add_u32 s{sHO}, s{sHO}, s{sT0}
s_lshl_b32 s{sHO}, s{sHO}, 10
s_add_u32 s{sHO}, s{sHO}, {HF}
''')
    a.wait_lg('gq')
    gops = gelu_ops(a, acc, csb, b1b, 80)
    extras = list(extras)
    ne = len(extras)
    done = 0
    for i, op in enumerate(gops):
        while done < ne and done * len(gops) <= i * ne:
            emit(a, extras[done])
            done += 1
        a(op)
    while done < ne:
        emit(a, extras[done])
        done += 1
    a.vmem(f'buffer_store_dwordx4 v[{acc}:{acc + 3}], v{vL16}, {srd(S_WS)}, s{sHO} offen{SC}', sttag)
    a.vmem(f'buffer_store_dwordx4 v[{acc + 4}:{acc + 7}], v{vL16}, {srd(S_WS)}, s{sHO} offen offset:1024{SC}', sttag)


def p2_stage(a, n, g):
    a.comment(f'--- P2 stage {n} g={g}')
    a.wait_vm(f'c{n}')
    if n == 12:
        a.wait_lg('w')
    if n in PREBAR:
        PREBAR[n](a, g)
    if 'nobar' not in EXP:
        a('s_barrier')
    if n in HOOKS:
        HOOKS[n](a, g)
    rebase(a, [aW + j for j in range(4)], n)
    c = chunk_for_stage(n)
    dm = dma_ops(a, c, g)
    db, da = dm[:1], dm[1:]
    ra = [p2_read_ops(a, n, p) for p in P2A]
    if n > 8:
        p2_b_phase(a, n - 1, ra, db)
    else:
        run_gaps(a, ra + [db])
    rb = [p2_read_ops(a, n, p) for p in P2B]
    p2_a_phase(a, n, rb, da)
    if n == 11:
        write_cs_partials(a, [(vCSA, (3 + 2 * g) * 512)])


STAMPS = {'p1_0': 1, 'p1_7': 2, 'e1': 3, 'p2_11': 4, 'p2_15': 5, 'tail': 6, 'gelu': 7}


def st(a, name):
    if name in STAMPS:
        stamp(a, STAMPS[name])


def gen_k1(label):
    a = Asm()
    end = label + '_end'
    prologue(a, end, None)
    build_srds(a, ['x', 'wq', 'w1', 'ws', 'w2', 'wo', 'b1'])
    stamp(a, 0, 0)
    setup(a)
    g1 = label + '_g1'
    a(f's_cmp_eq_u32 s{sG}, 1')
    a(f's_cbranch_scc1 {g1}')
    for g in (0, 1):
        if g == 1:
            a.label(g1)
            a.vm, a.lg = [], []
        for n in range(5):
            for d in dma_ops(a, n, g):
                d()
        setup2(a)
        for n in range(8):
            p1_stage(a, n, g)
            st(a, f'p1_{n}')
        p1_epilogue(a, g)
        st(a, 'e1')
        for n in range(8, 16):
            p2_stage(a, n, g)
            st(a, f'p2_{n}')
        p2_b_phase(a, 15, [[], [], [], []], [])
        write_cs_partials(a, [(vCSB, (3 + 2 * g + 1) * 512)])
        a.wait_all()
        a('s_barrier')
        st(a, 'tail')
        prep_finish(a)
        gelu_simple(a, g, 0)
        skip = a.newlabel('skipb')
        if g == 1:
            a(f's_cmp_eq_u32 s{sPB}, 0')
            a(f's_cbranch_scc1 {skip}')
        gelu_simple(a, g, 1)
        if g == 1:
            a.label(skip)
        st(a, 'gelu')
        a('s_waitcnt vmcnt(0)')
        stamp(a, 9, 1)
        stamp_flush(a, 0)
        a('s_endpgm')
    a.label(end)
    a('s_endpgm')
    return a
```

```python
from common import *
import k1
from k1 import fl

KM_LDS = 163840
LCNT = 163824
RED = 0
OB = 131072
FA = FL
FB = FL + 4096
FH = FL + 8192
LOG2E = 1.4426950408889634
SPIN = 20000

sT0, sT1, sT2, sT3 = 52, 53, 54, 55
sH, sTQ, sSRC, sMD = 20, 21, 22, 23
sTILE, sCG, sOF, sOP = 24, 25, 26, 27
sHS, sWSRC, sWO, sSPIN = 8, 9, 10, 11
sVM = 94
sCT, sKH = sTT, sG

vL16 = 1
aK0, aK1, aV0, aV1 = 2, 3, 4, 5
vT = 6
RQ, RK, RV0, RV1, RP = 12, 16, 20, 24, 28
NEGM = 36
RS = (52, 68)
RO = 84
ACC = 100
RING = 164
vX, vB2, vXO = 228, 232, 236
vG, vS = 240, 248
OP = 52

OPT = dict(u0=28, D=11, fbsig=5, prio=None, b2=24, kvpre=8, nofb=False)


def spin(a, site, load, check_ok):
    ok = a.newlabel('ok')
    lp = a.newlabel('spin')
    check_ok(ok)
    a(f's_mov_b32 s{sSPIN}, {SPIN}')
    a.label(lp)
    a('s_sleep 1')
    load()
    a('s_waitcnt vmcnt(0)')
    check_ok(ok)
    a(f's_sub_u32 s{sSPIN}, s{sSPIN}, 1')
    a(f's_cmp_lg_u32 s{sSPIN}, 0')
    a(f's_cbranch_scc1 {lp}')
    a(f'v_mov_b32 v{vT}, {site}')
    a(f'buffer_store_dword v{vT}, off, {srd(S_DBG)}, 0 offset:{4 * site}')
    a.label(ok)


def one_lane_store(a, reg, srdn, soff, val=1):
    a('s_mov_b64 exec, 1')
    a(f'v_mov_b32 v{reg}, {val}')
    a(f'buffer_store_dword v{reg}, off, {srd(srdn)}, {soff} sc1')
    a('s_mov_b64 exec, -1')


def start_extra(a):
    lbl = a.newlabel('noinit')
    a(f'''
v_mov_b32 v20, 0
v_mov_b32 v21, 0
v_mov_b32 v22, 0
v_mov_b32 v23, 0
v_mov_b32 v24, {LCNT}
''')
    a.ds('ds_write_b32 v24, v20', 'w')
    a(f'''
s_or_b32 s{sT0}, s2, s{sW}
s_cmp_lg_u32 s{sT0}, 0
s_cbranch_scc1 {lbl}
v_lshrrev_b32 v1, 2, v0
v_lshlrev_b32 v1, 8, v1
v_and_b32 v2, 3, v0
v_lshlrev_b32 v2, 4, v2
v_add_u32 v1, v1, v2
s_mov_b32 s{sT0}, {FA}
s_mov_b32 s{sT1}, {FB}
s_mov_b32 s{sT2}, {FH}
buffer_store_dwordx4 v[20:23], v1, {srd(S_WS)}, s{sT0} offen sc1
buffer_store_dwordx4 v[20:23], v1, {srd(S_WS)}, s{sT1} offen sc1
buffer_store_dwordx4 v[20:23], v1, {srd(S_WS)}, s{sT2} offen sc1
''')
    a.label(lbl)


def prefetch(a):
    pf = OPT['pf']
    a(f'''
s_lshl_b32 s{sT0}, s2, 3
s_add_u32 s{sT0}, s{sT0}, s{sW}
v_lshlrev_b32 v48, 4, v0
''')
    if pf & 1:
        a(f's_mul_i32 s{sT1}, s{sT0}, 768')
        a.vmem(f'buffer_load_dwordx4 v[52:55], v48, {srd(S_WQ)}, s{sT1} offen', 'pf')
    if pf & 2:
        a(f's_mul_i32 s{sT1}, s{sT0}, 896')
        a.vmem(f'buffer_load_dwordx4 v[56:59], v48, {srd(S_W1)}, s{sT1} offen', 'pf')
    if pf & 4:
        a(f's_lshl_b32 s{sT1}, s{sT0}, 10')
        a.vmem(f'buffer_load_dwordx4 v[60:63], v48, {srd(S_X)}, s{sT1} offen', 'pf')
    if pf & 8:
        a(f's_mul_i32 s{sT1}, s{sT0}, 896')
        a.vmem(f'buffer_load_dwordx4 v[56:59], v48, {srd(S_W2)}, s{sT1} offen', 'pf')
        a(f's_lshl_b32 s{sT1}, s{sT0}, 8')
        a.vmem(f'buffer_load_dword v60, v48, {srd(S_WO)}, s{sT1} offen', 'pf')


def hook0(a, g):
    st(a, 'c0')
    if g != 0:
        return
    lbl = a.newlabel('noinit2')
    a(f'''
s_or_b32 s{sT0}, s2, s{sW}
s_cmp_lg_u32 s{sT0}, 0
s_cbranch_scc1 {lbl}
''')
    one_lane_store(a, 20, S_DBG, 0)
    a.label(lbl)


def hook8(a, g):
    a(f'''
s_lshl_b32 s{sT0}, s{sXCD}, 2
s_lshr_b32 s{sCG}, s{sSLOT}, 3
s_add_u32 s{sH}, s{sT0}, s{sCG}
s_and_b32 s{sT1}, s{sSLOT}, 7
s_lshl_b32 s{sTQ}, s{sT1}, 3
s_add_u32 s{sTQ}, s{sTQ}, s{sW}
s_lshl_b32 s{sMD}, s{sW}, 10
s_lshl_b32 s{sSRC}, s{sH}, 17
s_add_u32 s{sSRC}, s{sSRC}, {KV}
s_add_u32 s{sSRC}, s{sSRC}, s{sMD}
s_lshl_b32 s{sOF}, s{sTQ}, 5
s_add_u32 s{sOF}, s{sOF}, s{sH}
s_lshl_b32 s{sOF}, s{sOF}, 10
s_add_u32 s{sOF}, s{sOF}, {OF}
s_lshl_b32 s{sT0}, s{sXCD}, 3
s_add_u32 s{sTILE}, s{sT0}, s{sT1}
s_lshl_b32 s{sOP}, s{sTILE}, 3
s_add_u32 s{sOP}, s{sOP}, s{sW}
s_lshl_b32 s{sOP}, s{sOP}, 12
s_add_u32 s{sOP}, s{sOP}, {OF}
s_mul_i32 s{sT0}, s{sW}, 14
s_mul_i32 s{sHS}, s{sTILE}, 112
s_add_u32 s{sHS}, s{sHS}, s{sT0}
s_lshl_b32 s{sHS}, s{sHS}, 10
s_add_u32 s{sHS}, s{sHS}, {HF}
s_lshl_b32 s{sWSRC}, s{sT0}, 4
s_lshl_b32 s{sT1}, s{sCG}, 2
s_add_u32 s{sWSRC}, s{sWSRC}, s{sT1}
s_lshl_b32 s{sWSRC}, s{sWSRC}, 10
s_add_u32 s{sWSRC}, s{sWSRC}, {WF}
s_lshl_b32 s{sWO}, s{sKH}, 4
s_add_u32 s{sWO}, s{sWO}, 112
s_lshl_b32 s{sWO}, s{sWO}, 4
s_add_u32 s{sWO}, s{sWO}, s{sT1}
s_add_u32 s{sWO}, s{sWO}, s{sCT}
s_lshl_b32 s{sWO}, s{sWO}, 10
s_add_u32 s{sWO}, s{sWO}, {WF}
v_mov_b32 v92, -1
v_mov_b32 v93, -1
v_mov_b32 v94, -1
v_mov_b32 v95, -1
''')
    a.vmem(f'buffer_store_dwordx4 v[92:95], v{vL16}, {srd(S_WS)}, s{sOF} offen sc1', 'st')


def ini_load(a):
    return f'buffer_load_dword v92, off, {srd(S_DBG)}, 0 sc1'


def hook9(a, g):
    a.vmem(ini_load(a), 'ini')


def prebar11(a, g):
    a.wait_vm('ini')

    def chk(ok):
        a('v_cmp_eq_u32 vcc, 1, v92')
        a(f's_cbranch_vccnz {ok}')
    spin(a, 1, lambda: a(ini_load(a)), chk)


def hook11(a, g):
    if g == 0:
        lbl = a.newlabel('nofa')
        a(f'''
s_cmp_lg_u32 s{sW}, 0
s_cbranch_scc1 {lbl}
s_lshl_b32 s{sT0}, s{k1.sHP}, 8
s_lshl_b32 s{sT1}, s{k1.sTB}, 2
s_add_u32 s{sT0}, s{sT0}, s{sT1}
s_add_u32 s{sT0}, s{sT0}, {FA}
''')
        one_lane_store(a, 92, S_WS, f's{sT0}')
        a.label(lbl)
    k1.prep_finish(a)


def hook14(a, g):
    if g == 0:
        lbl = a.newlabel('nofw')
        a(f'''
s_cmp_lg_u32 s{sW}, 0
s_cbranch_scc1 {lbl}
s_lshr_b32 s{sT0}, s2, 4
s_lshl_b32 s{sT0}, s{sT0}, 8
s_and_b32 s{sT1}, s2, 15
s_lshl_b32 s{sT1}, s{sT1}, 2
s_add_u32 s{sT0}, s{sT0}, s{sT1}
s_add_u32 s{sT0}, s{sT0}, {FB}
''')
        one_lane_store(a, 92, S_WS, f's{sT0}')
        a.label(lbl)


def fa_load():
    return f'buffer_load_dword v93, v94, {srd(S_WS)}, s{sSPIN - 0 if False else sT1} offen sc1'


def fa_addr(a):
    a(f'''
s_lshr_b32 s{sT1}, s{sH}, 1
s_lshl_b32 s{sT1}, s{sT1}, 8
s_add_u32 s{sT1}, s{sT1}, {FA}
''')


def hook15(a, g):
    a('v_and_b32 v94, 15, v0')
    a('v_lshlrev_b32 v94, 2, v94')
    fa_addr(a)
    a.vmem(fa_load(), 'fa')


def fa_check(a):
    def chk(ok):
        a('v_cmp_ne_u32 vcc, 1, v93')
        a(f's_cbranch_vccz {ok}')

    def ld():
        fa_addr(a)
        a(fa_load())
    spin(a, 2, ld, chk)


def kv_dma(a, i):
    def f():
        a(f's_add_u32 m0, s{sMD}, {i * 8192}')
        a(f's_add_u32 s{sT2}, s{sSRC}, {i * 8192}')
        a.vmem(f'buffer_load_dwordx4 v{vL16}, {srd(S_WS)}, s{sT2} offen sc1 lds', f'kv{i}')
    return f


def q_load(a):
    def f():
        a(f'''
s_lshl_b32 s{sT2}, s{sH}, 6
s_add_u32 s{sT2}, s{sT2}, s{sTQ}
s_lshl_b32 s{sT2}, s{sT2}, 10
''')
        a.vmem(f'buffer_load_dwordx4 v[{RQ}:{RQ + 3}], v{vL16}, {srd(S_WS)}, s{sT2} offen sc1', 'q')
    return f


def k_read(a, t):
    ar, off = (aK0, t * 2048) if t < 32 else (aK1, (t - 32) * 2048)
    a.ds(f'ds_read_b128 v[{RK}:{RK + 3}], v{ar} offset:{off}', f'K{t}')


def v_reads(a, items):
    a(f's_mov_b64 exec, s[{sVM}:{sVM + 1}]')
    for part, t in items:
        ar, off = (aV0, t * 2048) if t < 32 else (aV1, (t - 32) * 2048)
        r = RV0 if part == 0 else RV1
        a.ds(f'ds_read_b128 v[{r}:{r + 3}], v{ar} offset:{off + part * 512}', f'V{part}_{t}')
    a('s_mov_b64 exec, -1')


def run(a, items):
    for it in items:
        emit(a, it)


def attn_step(a, t, nt, ev, mf, pre):
    S, Sn = RS[t % 2], RS[(t + 1) % 2]
    ex = [f'v_exp_f32 v{S + i}, v{S + i}' for i in range(16)]
    cv = [f'v_cvt_pk_bf16_f32 v{RP + i}, v{S + 2 * i}, v{S + 2 * i + 1}' for i in range(8)]
    run(a, pre.get(t, []))
    if t + 1 < nt:
        a.wait_lg(f'K{t + 1}')
        a(mfma32(Sn, RK, RQ, NEGM))
        if t + 2 < nt:
            k_read(a, t + 2)
    run(a, ev.get(2 * t, []))
    run(a, (ex[0], ex[1], ex[2], ex[3]))
    run(a, mf.get(2 * t, []))
    run(a, (cv[0], ex[4], ex[5], cv[1]))
    if t > 0:
        a.wait_lg(f'V1_{t - 1}')
        a(mfma32(RO, RV1, RP + 4, RO))
    run(a, (ex[6], ex[7], cv[2], ex[8], ex[9], cv[3], ex[10], ex[11]))
    a.wait_lg(f'V0_{t}')
    a(mfma32(RO, RV0, RP, '0' if t == 0 else RO))
    items = [(1, t)]
    if t + 1 < nt:
        items.append((0, t + 1))
    v_reads(a, items)
    run(a, ev.get(2 * t + 1, []))
    run(a, (cv[4], ex[12], ex[13], cv[5]))
    run(a, mf.get(2 * t + 1, []))
    run(a, (ex[14], ex[15], cv[6], cv[7]))


def row_max(a, S, dst, tmp):
    a(f'v_max3_f32 v{dst}, v{S}, v{S + 1}, v{S + 2}')
    a(f'v_max3_f32 v{tmp}, v{S + 3}, v{S + 4}, v{S + 5}')
    a(f'v_max3_f32 v{dst}, v{dst}, v{S + 6}, v{S + 7}')
    a(f'v_max3_f32 v{tmp}, v{tmp}, v{S + 8}, v{S + 9}')
    a(f'v_max3_f32 v{dst}, v{dst}, v{S + 10}, v{S + 11}')
    a(f'v_max3_f32 v{tmp}, v{tmp}, v{S + 12}, v{S + 13}')
    a(f'v_max3_f32 v{dst}, v{dst}, v{S + 14}, v{S + 15}')
    a(f'v_max_f32 v{dst}, v{dst}, v{tmp}')
    a(f'v_mov_b32 v{tmp}, v{dst}')
    a(f'v_permlane32_swap_b32 v{dst}, v{tmp}')
    a(f'v_max_f32 v{dst}, v{dst}, v{tmp}')


def fallback(a, done_label):
    a.comment('--- fallback: online softmax with the running true maximum')
    loop = a.newlabel('fb_loop')
    S = RS[0]
    vm, vmn, val, va, vb = vT, vT + 1, vT + 2, vT + 3, vT + 4
    a(f'v_mov_b32 v{vm}, 0xff800000')
    for i in range(16):
        a(f'v_mov_b32 v{RO + i}, 0')
    a(f'v_mov_b32 v{va}, v{aK0}')
    a(f'v_mov_b32 v{vb}, v{aV0}')
    a(f's_mov_b32 s{sT0}, 64')
    a.label(loop)
    a(f'ds_read_b128 v[{RK}:{RK + 3}], v{va}')
    a(f's_mov_b64 exec, s[{sVM}:{sVM + 1}]')
    a(f'ds_read_b128 v[{RV0}:{RV0 + 3}], v{vb}')
    a(f'ds_read_b128 v[{RV1}:{RV1 + 3}], v{vb} offset:512')
    a('s_mov_b64 exec, -1')
    a('s_waitcnt lgkmcnt(0)')
    a(mfma32(S, RK, RQ, '0'))
    a(f'v_add_u32 v{va}, 0x800, v{va}')
    a(f'v_add_u32 v{vb}, 0x800, v{vb}')
    row_max(a, S, vmn, val)
    a(f'v_max_f32 v{vmn}, v{vmn}, v{vm}')
    a(f'v_sub_f32 v{val}, v{vm}, v{vmn}')
    a(f'v_exp_f32 v{val}, v{val}')
    a(f'v_mov_b32 v{vm}, v{vmn}')
    for i in range(16):
        a(f'v_sub_f32 v{S + i}, v{S + i}, v{vmn}')
    for i in range(16):
        a(f'v_exp_f32 v{S + i}, v{S + i}')
    for i in range(16):
        a(f'v_mul_f32 v{RO + i}, v{val}, v{RO + i}')
    for i in range(8):
        a(f'v_cvt_pk_bf16_f32 v{RP + i}, v{S + 2 * i}, v{S + 2 * i + 1}')
    a(mfma32(RO, RV0, RP, RO))
    a(mfma32(RO, RV1, RP + 4, RO))
    a(f's_sub_u32 s{sT0}, s{sT0}, 1')
    a(f's_cmp_lg_u32 s{sT0}, 0')
    a(f's_cbranch_scc1 {loop}')
    a(f's_branch {done_label}')


def slot(i):
    return RING + 4 * (i % 16)


def stream_load(a, i):
    def f():
        if OPT.get('xnl') and i < 70:
            return
        if i < 70:
            s, j = divmod(i, 5)
            if j == 0:
                a(f's_add_u32 s{sT2}, s{sHS}, {s * 1024}')
                a.vmem(f'buffer_load_dwordx4 v[{slot(i)}:{slot(i) + 3}], v{vL16}, {srd(S_WS)}, s{sT2} offen sc1', f'f{i}')
            else:
                if j == 1:
                    a(f's_add_u32 s{sT3}, s{sWSRC}, {s * 16384}')
                a.vmem(f'buffer_load_dwordx4 v[{slot(i)}:{slot(i) + 3}], v{vL16}, {srd(S_WS)}, s{sT3} offen '
                       f'offset:{(j - 1) * 1024} sc1', f'f{i}')
        else:
            k = i - 70
            a(f's_add_u32 s{sT2}, s{sWO}, {k * 16384}')
            a.vmem(f'buffer_load_dwordx4 v[{slot(i)}:{slot(i) + 3}], v{vL16}, {srd(S_WS)}, s{sT2} offen sc1', 'wo')
    return f


def stream_mfma(a, s, j):
    def f():
        iw, ih = 5 * s + 1 + j, 5 * s
        if not OPT.get('xnw'):
            a.wait_vm(f'f{iw}')
        else:
            a.vm = [t for t in a.vm if t != f'f{iw}' and t != f'f{ih}']
        if OPT.get('xnm'):
            return
        a(mfma32(ACC + 16 * j, slot(iw), slot(ih), '0' if s == 0 else None))
    return f


def side_loads(a):
    a(f'''
s_lshl_b32 s{sT0}, s{sCG}, 8
s_lshl_b32 s{sT1}, s{sCT}, 6
s_add_u32 s{sT0}, s{sT0}, s{sT1}
s_lshl_b32 s{sT1}, s{sKH}, 5
s_add_u32 s{sT0}, s{sT0}, s{sT1}
v_lshrrev_b32 v{vT}, 5, v0
v_lshlrev_b32 v{vT}, 3, v{vT}
v_add_u32 v{vT}, s{sT0}, v{vT}
v_and_b32 v{vT + 1}, 31, v0
v_lshlrev_b32 v{vT + 1}, 10, v{vT + 1}
s_lshl_b32 s{sT1}, s{sTILE}, 15
v_add3_u32 v{vT + 1}, v{vT + 1}, v{vT}, s{sT1}
''')
    a.vmem(f'buffer_load_dwordx2 v[{vB2}:{vB2 + 1}], v{vT}, {srd(S_B2)}, 0 offen', 'side')
    a.vmem(f'buffer_load_dwordx2 v[{vB2 + 2}:{vB2 + 3}], v{vT}, {srd(S_B2)}, 0 offen offset:16', 'side')
    a.vmem(f'buffer_load_dwordx2 v[{vX}:{vX + 1}], v{vT + 1}, {srd(S_X)}, 0 offen', 'side')
    a.vmem(f'buffer_load_dwordx2 v[{vX + 2}:{vX + 3}], v{vT + 1}, {srd(S_X)}, 0 offen offset:16', 'side')
    a(f'''
v_lshrrev_b32 v{vT + 2}, 5, v0
v_lshlrev_b32 v{vT + 2}, 4, v{vT + 2}
v_and_b32 v{vXO}, 31, v0
v_lshlrev_b32 v{vXO}, 10, v{vXO}
s_add_u32 s{sT0}, s{sT0}, s{sT1}
v_add3_u32 v{vXO}, v{vXO}, v{vT + 2}, s{sT0}
''')
    if OPT.get('otouch'):
        a.vmem(f'buffer_load_dword v{vXO + 1}, v{vXO}, {srd(S_OUT)}, 0 offen', 'side')


def fb_signal_1(a):
    a.wait_vm('hb')
    a(f'''
v_mov_b32 v{vT}, {LCNT}
v_mov_b32 v{vT + 1}, 1
s_mov_b64 exec, 1
''')
    a.ds(f'ds_add_rtn_u32 v{vT + 1}, v{vT}, v{vT + 1}', 'cnt')
    a('s_mov_b64 exec, -1')


def fb_signal_2(a):
    lbl = a.newlabel('nofb')
    a.wait_lg('cnt')
    a(f'''
v_readfirstlane_b32 s{sT0}, v{vT + 1}
s_cmp_lg_u32 s{sT0}, 7
s_cbranch_scc1 {lbl}
s_lshl_b32 s{sT0}, s{k1.sTB}, 8
s_lshl_b32 s{sT1}, s{k1.sHP}, 2
s_add_u32 s{sT0}, s{sT0}, s{sT1}
s_add_u32 s{sT0}, s{sT0}, {FH}
''')
    one_lane_store(a, vT + 1, S_WS, f's{sT0}')
    a.label(lbl)


def fb_load(a):
    return [f'buffer_load_dwordx4 v[8:11], v{vT}, {srd(S_WS)}, s{sT1} offen sc1',
            f'buffer_load_dword v{vX}, v{vT + 1}, {srd(S_WS)}, s{sT0} offen sc1']


def fb_addr(a):
    a(f'''
s_mov_b32 s{sT1}, {FB}
s_lshr_b32 s{sT0}, s{sTILE}, 2
s_lshl_b32 s{sT0}, s{sT0}, 8
s_add_u32 s{sT0}, s{sT0}, {FH}
''')


def fb_poll(a):
    a(f'''
v_lshrrev_b32 v{vT}, 2, v0
v_lshlrev_b32 v{vT}, 8, v{vT}
v_and_b32 v{vT + 1}, 3, v0
v_lshlrev_b32 v{vT + 1}, 4, v{vT + 1}
v_add_u32 v{vT}, v{vT}, v{vT + 1}
v_and_b32 v{vT + 1}, 15, v0
v_lshlrev_b32 v{vT + 1}, 2, v{vT + 1}
''')
    fb_addr(a)
    for x in fb_load(a):
        a.vmem(x, 'fb')


def fb_check(a):
    a.wait_vm('fb')

    def chk(ok):
        a('v_and_b32 v8, v8, v9')
        a('v_and_b32 v10, v10, v11')
        a('v_and_b32 v8, v8, v10')
        a(f'v_and_b32 v8, v8, v{vX}')
        a('v_cmp_ne_u32 vcc, 1, v8')
        a(f's_cbranch_vccz {ok}')

    def ld():
        fb_addr(a)
        for x in fb_load(a):
            a(x)
    spin(a, 3, ld, chk)


def o_loads(a, tracked):
    for i in range(4):
        t = f'buffer_load_dwordx4 v[{OP + 4 * i}:{OP + 4 * i + 3}], v{vL16}, {srd(S_WS)}, s{sOP} offen offset:{1024 * i} sc1'
        if tracked:
            a.vmem(t, 'op')
        else:
            a(t)


def o_check(a):
    a.wait_vm('op')

    def chk(ok):
        for i in range(4):
            r = OP + 4 * i
            a(f'v_max3_u32 v{vT + i}, v{r}, v{r + 1}, v{r + 2}')
            a(f'v_max_u32 v{vT + i}, v{vT + i}, v{r + 3}')
        a(f'v_max3_u32 v{vT}, v{vT}, v{vT + 1}, v{vT + 2}')
        a(f'v_max_u32 v{vT}, v{vT}, v{vT + 3}')
        a(f'v_cmp_eq_u32 vcc, -1, v{vT}')
        a(f's_cbranch_vccz {ok}')
    spin(a, 4, lambda: o_loads(a, False), chk)


def reduce_write(a):
    a(f's_lshl_b32 s{sT0}, s{sW}, 14')
    a(f'v_add_u32 v{vT}, s{sT0}, v{vL16}')
    for k in range(16):
        a.ds(f'ds_write_b128 v{vT}, v[{ACC + 4 * k}:{ACC + 4 * k + 3}] offset:{k * 1024}', 'rw')


def reduce_read_gate(a):
    a(f'''
s_lshl_b32 s{sT0}, s{sCT}, 12
s_lshl_b32 s{sT1}, s{sKH}, 11
s_add_u32 s{sT0}, s{sT0}, s{sT1}
v_add_u32 v{vT}, s{sT0}, v{vL16}
v_add_u32 v{vT + 1}, 0x10000, v{vT}
''')
    t = ACC
    for w in range(8):
        for e in range(2):
            ar = vT if w < 4 else vT + 1
            d = t + 8 * w + 4 * e
            a.ds(f'ds_read_b128 v[{d}:{d + 3}], v{ar} offset:{(w % 4) * 16384 + e * 1024}', f'r{w}')
    a.wait_vm('side')
    for e in range(2):
        for h in range(2):
            a(f'v_lshlrev_b32 v{vG + 4 * e + 2 * h}, 16, v{vB2 + 2 * e + h}')
            a(f'v_and_b32 v{vG + 4 * e + 2 * h + 1}, 0xffff0000, v{vB2 + 2 * e + h}')
    for w in range(8):
        a.wait_lg(f'r{w}')
        for k in range(8):
            a(f'v_add_f32 v{vG + k}, v{vG + k}, v{t + 8 * w + k}')
    for k in range(8):
        a(f'v_mul_f32 v{t + k}, {fl(-LOG2E)}, v{vG + k}')
    for k in range(8):
        a(f'v_exp_f32 v{t + k}, v{t + k}')
    for k in range(8):
        a(f'v_add_f32 v{t + k}, 1.0, v{t + k}')
    for k in range(8):
        a(f'v_rcp_f32 v{t + k}, v{t + k}')
    for k in range(8):
        a(f'v_mul_f32 v{vG + k}, v{vG + k}, v{t + k}')


def ob_write(a):
    a(f's_lshl_b32 s{sT0}, s{sW}, 12')
    a(f's_add_u32 s{sT0}, s{sT0}, {OB}')
    a(f'v_add_u32 v{vT}, s{sT0}, v{vL16}')
    for i in range(4):
        a.ds(f'ds_write_b128 v{vT}, v[{OP + 4 * i}:{OP + 4 * i + 3}] offset:{i * 1024}', 'ow')


def wo_gemm(a):
    a(f's_lshl_b32 s{sT0}, s{sKH}, 14')
    a(f's_add_u32 s{sT0}, s{sT0}, {OB}')
    a(f'v_add_u32 v{vT}, s{sT0}, v{vL16}')
    bb = ACC
    for i in range(16):
        a.ds(f'ds_read_b128 v[{bb + 4 * i}:{bb + 4 * i + 3}], v{vT} offset:{i * 1024}', f'o{i}')
    a.wait_vm('wo')
    for i in range(16):
        a.wait_lg(f'o{i}')
        a(mfma32(RO, slot(70 + i), bb + 4 * i, '0' if i == 0 else None))


def exchange(a, label):
    k1l = label + '_kh1'
    j = label + '_khj'
    a(f'''
s_lshl_b32 s{sT0}, s{sW}, 11
v_add_u32 v{vT}, s{sT0}, v{vL16}
s_xor_b32 s{sT0}, s{sW}, 4
s_lshl_b32 s{sT0}, s{sT0}, 11
v_add_u32 v{vT + 1}, s{sT0}, v{vL16}
s_cmp_eq_u32 s{sKH}, 1
s_cbranch_scc1 {k1l}
''')
    for kh in (0, 1):
        if kh == 1:
            a.label(k1l)
        send = RO + (8 if kh == 0 else 0)
        keep = RO + (0 if kh == 0 else 8)
        a(f'ds_write_b128 v{vT}, v[{send}:{send + 3}]')
        a(f'ds_write_b128 v{vT}, v[{send + 4}:{send + 7}] offset:1024')
        for k in range(8):
            a(f'v_mov_b32 v{vS + k}, v{keep + k}')
        if kh == 0:
            a(f's_branch {j}')
    a.label(j)
    a('s_waitcnt lgkmcnt(0)')
    a('s_barrier')
    t = ACC
    a(f'ds_read_b128 v[{t}:{t + 3}], v{vT + 1}')
    a(f'ds_read_b128 v[{t + 4}:{t + 7}], v{vT + 1} offset:1024')
    return t


def final(a, t):
    u = ACC + 32
    for k in range(4):
        a(f'v_lshlrev_b32 v{u + 2 * k}, 16, v{vX + k}')
        a(f'v_and_b32 v{u + 2 * k + 1}, 0xffff0000, v{vX + k}')
    a('s_waitcnt lgkmcnt(0)')
    for k in range(8):
        a(f'v_add_f32 v{vS + k}, v{vS + k}, v{t + k}')
    for k in range(8):
        a(f'v_fma_f32 v{vS + k}, v{vS + k}, v{vG + k}, v{u + k}')
    for k in range(4):
        a(f'v_cvt_pk_bf16_f32 v{vS + k}, v{vS + 2 * k}, v{vS + 2 * k + 1}')
    a(f'v_permlane32_swap_b32 v{vS}, v{vS + 2}')
    a(f'v_permlane32_swap_b32 v{vS + 1}, v{vS + 3}')
    a.vmem(f'buffer_store_dwordx4 v[{vS}:{vS + 3}], v{vXO}, {srd(S_OUT)}, 0 offen', 'st')


def prio_plan(g):
    p = OPT.get('pr', 0)
    if p == 0:
        return lambda t: None
    if g == 1:
        return lambda t: 1 if t == 0 else None
    pat = {1: [2, 2, 2, 0], 2: [2, 2, 0], 3: [2, 0], 4: [2, 2, 2, 2, 0], 5: [2, 2, 2, 2, 2, 0, 0], 6: [0],
           7: [2, 2, 2, 0, 0]}[p]
    return lambda t: pat[t % len(pat)] if (t == 0 or pat[t % len(pat)] != pat[(t - 1) % len(pat)]) else None


def attention(a, g):
    pre_n = OPT['kvpre']
    a(f'''
v_mov_b32 v{aK0}, v{vL16}
v_add_u32 v{aK1}, 0x10000, v{vL16}
v_and_b32 v{vT}, 15, v0
v_lshrrev_b32 v{vT + 1}, 5, v0
v_lshlrev_b32 v{vT + 1}, 4, v{vT + 1}
v_add_u32 v{vT}, v{vT}, v{vT + 1}
v_lshlrev_b32 v{vT}, 4, v{vT}
v_add_u32 v{aV0}, 0x400, v{vT}
v_add_u32 v{aV1}, 0x10400, v{vT}
s_mov_b32 s{sVM}, 0xffff
s_mov_b32 s{sVM + 1}, 0xffff
''')
    if OPT.get('ones2', 1):
        a(f'v_and_b32 v{vT}, 27, v0')
        a(f'v_cmp_eq_u32 vcc, 16, v{vT}')
        a(f'v_mov_b32 v{vT}, 0x3f803f80')
        for i in range(4):
            a(f'v_cndmask_b32 v{RV0 + i}, 0, v{vT}, vcc')
            a(f'v_cndmask_b32 v{RV1 + i}, 0, v{vT}, vcc')
    else:
        for i in range(4):
            a(f'v_mov_b32 v{RV0 + i}, 0x3f803f80')
            a(f'v_mov_b32 v{RV1 + i}, 0x3f803f80')
    b1 = OPT.get('b1', pre_n)
    a.wait_vm(['q'] + [f'kv{i}' for i in range(b1)])
    a('s_barrier')
    st(a, 'b1')
    ev, mf, pre = {}, {}, {}
    add = lambda d, k, x: d.setdefault(k, []).append(x)
    k_read(a, 0)
    v_reads(a, [(0, 0)])
    a.wait_lg('K0')
    a(mfma32(RS[0], RK, RQ, '0'))
    row_max(a, RS[0], vT, vT + 1)
    for i in range(16):
        a(f'v_sub_f32 v{NEGM + i}, 0, v{vT}')
    a(mfma32(RS[0], RK, RQ, NEGM))
    k_read(a, 1)
    for i in range(pre_n, 16):
        add(ev, 2 * (i - pre_n), kv_dma(a, i))
    if b1 < pre_n:
        tb = 4 * b1 - 2
        add(pre, tb, lambda: (a.wait_vm([f'kv{i}' for i in range(pre_n)]), a('s_barrier')))
    tb2 = OPT['b2']
    assert tb2 <= 4 * pre_n - 2
    add(pre, tb2, lambda: (a.wait_vm([f'kv{i}' for i in range(16)]), a('s_barrier')))
    fs = OPT['fbsig']
    add(pre, fs, lambda: fb_signal_1(a))
    add(pre, fs + 1, lambda: fb_signal_2(a))
    u0, D = OPT['u0'], OPT['D']
    add(ev, u0 - 5, lambda: fb_poll(a))
    add(pre, u0 // 2, lambda: fb_check(a))
    for i in range(86):
        add(ev, u0 + i, stream_load(a, i))
    for s in range(14):
        for j in range(4):
            add(mf, u0 + 5 * s + 1 + j + D, stream_mfma(a, s, j))
    add(ev, u0 + 87, lambda: side_loads(a))
    assert u0 + 87 < 128
    pp = prio_plan(g)
    for t in range(64):
        if pp(t) is not None:
            pre.setdefault(t, []).insert(0, f's_setprio {pp(t)}')
    for t in range(64):
        attn_step(a, t, 64, ev, mf, pre)
        st(a, f'a{t}')
    if OPT.get('pr', 0):
        a('s_setprio 0')


STAMPS = {}


def st(a, name):
    if name in STAMPS:
        stamp(a, STAMPS[name])


def gen_km(label, force_fallback=False):
    k1.SC = ' sc1'
    k1.HOOKS = {0: hook0, 8: hook8, 9: hook9, 11: hook11, 14: hook14, 15: hook15}
    k1.PREBAR = {11: prebar11}
    a = Asm()
    end = label + '_end'
    att = label + '_att'
    if OPT.get('st0'):
        a('s_memrealtime s[98:99]')
        a('s_memtime s[100:101]')
    prologue(a, end, None)
    build_srds(a, ['x', 'wq', 'w1', 'ws', 'w2', 'wo', 'b1', 'b2', 'out', 'dbg'])
    if not OPT.get('st0'):
        stamp(a, 0, 0)
    else:
        a('s_mov_b32 s68, s98')
        a('s_mov_b32 s69, s99')
        a('s_mov_b32 s88, s100')
        a('s_mov_b32 s89, s101')
    st(a, 'ka')
    start_extra(a)
    k1.setup(a)
    st(a, 'su1')
    g1 = label + '_g1'
    a(f's_cmp_eq_u32 s{sG}, 1')
    a(f's_cbranch_scc1 {g1}')
    snap0 = a.snapshot()
    joinsnap = None
    pre_n = OPT['kvpre']
    for g in (0, 1):
        if g == 1:
            a.label(g1)
            a.restore(snap0)
        i0, i1, pfpos = OPT.get('i0', 5), OPT.get('i1', 5), OPT.get('pfpos', 0)
        k1.INIT = i1
        for n in range(i0):
            for d in k1.dma_ops(a, n, g):
                d()
        st(a, 'iss0')
        if OPT.get('pf') and pfpos == 0:
            prefetch(a)
        k1.setup2(a)
        st(a, 'su2')
        for n in range(i0, i1):
            for d in k1.dma_ops(a, n, g):
                d()
        if OPT.get('pf') and pfpos == 1:
            prefetch(a)
        st(a, 'iss')
        for n in range(8):
            k1.p1_stage(a, n, g)
            if OPT.get('pf') and pfpos == n + 2:
                prefetch(a)
            st(a, f'p1_{n}')
        k1.p1_epilogue(a, g)
        st(a, 'e1')
        if OPT.get('xdrain'):
            a('s_waitcnt vmcnt(0)')
            st(a, 'e1d')
        for n in range(8, 16):
            k1.p2_stage(a, n, g)
            st(a, f'p2_{n}')
        k1.p2_b_phase(a, 15, [[], [], [], []], [])
        k1.write_cs_partials(a, [(k1.vCSB, (3 + 2 * g + 1) * 512)])
        a.wait_all()
        a('s_barrier')
        fa_check(a)
        st(a, 'tail')
        k1.gelu_simple(a, g, 0, [q_load(a)] + [kv_dma(a, i) for i in range(pre_n)], 'ha')
        if g == 1:
            skip = a.newlabel('skipb')
            a(f's_cmp_eq_u32 s{k1.sPB}, 0')
            a(f's_cbranch_scc1 {skip}')
        k1.gelu_simple(a, g, 1, [], 'hb')
        if g == 1:
            jn = a.newlabel('joinb')
            a(f's_branch {jn}')
            a.label(skip)
            a(f'buffer_load_dword v10, v{vL16}, {srd(S_WS)}, s{sSRC} offen')
            a(f'buffer_load_dword v11, v{vL16}, {srd(S_WS)}, s{sSRC} offen')
            a.label(jn)
        a.wait_lg()
        st(a, 'gelu')
        if OPT.get('xdrain'):
            a('s_waitcnt vmcnt(0)')
            st(a, 'gelud')
        attention(a, g)
        if g == 0:
            a(f's_branch {att}')
            joinsnap = a.snapshot()
        else:
            assert a.snapshot() == joinsnap, (a.snapshot(), joinsnap)
    a.label(att)
    a.wait_lg()
    a(mfma32(RO, RV1, RP + 4, RO))
    fb = label + '_fb'
    fin = label + '_fin'
    a(f'v_mul_f32 v{vT}, 0, v{RO + 8}')
    for i in range(8):
        a(f'v_fma_f32 v{vT}, v{RO + i}, 0, v{vT}')
    a(f'v_cmp_u_f32 vcc, v{vT}, v{vT}')
    if force_fallback:
        a(f's_branch {fb}')
    else:
        a(f's_cbranch_vccnz {fb}')
    a.label(fin)
    a(f'v_rcp_f32 v{vT}, v{RO + 8}')
    for i in range(8):
        a(f'v_mul_f32 v{RO + i}, v{vT}, v{RO + i}')
    for i in range(4):
        a(f'v_cvt_pk_bf16_f32 v{RO + i}, v{RO + 2 * i}, v{RO + 2 * i + 1}')
    for i in range(4):
        a(f'v_min_u32 v{RO + i}, -2, v{RO + i}')
    a.vmem(f'buffer_store_dwordx4 v[{RO}:{RO + 3}], v{vL16}, {srd(S_WS)}, s{sOF} offen sc1', 'ost')
    st(a, 'oend')
    if OPT.get('xdrain'):
        a('s_waitcnt vmcnt(0)')
        st(a, 'oendd')
    a('s_barrier')
    st(a, 'ba')
    reduce_write(a)
    o_loads(a, True)
    a.wait_lg()
    a('s_barrier')
    st(a, 'bb')
    reduce_read_gate(a)
    st(a, 'gate')
    o_check(a)
    st(a, 'opoll')
    ob_write(a)
    a.wait_lg()
    a('s_barrier')
    st(a, 'bc')
    wo_gemm(a)
    st(a, 'wog')
    a.wait_lg()
    t = exchange(a, label)
    final(a, t)
    st(a, 'fin')
    a('s_waitcnt vmcnt(0)')
    stamp(a, 9, 1)
    if OPT.get('dbgst'):
        lbl = a.newlabel('nodbg')
        a(f's_cmp_lg_u32 s{sW}, {OPT["dbgst"] - 1}')
        a(f's_cbranch_scc1 {lbl}')
        a('s_mov_b64 exec, 1')
        a('v_not_b32 v2, s68')
        a(f'buffer_atomic_umax v2, off, {srd(S_DBG)}, 0 offset:20 sc1')
        for k in range(1, 10):
            a(f'v_mov_b32 v{2 + k}, s{68 + 2 * k}')
            a(f'buffer_atomic_umax v{2 + k}, off, {srd(S_DBG)}, 0 offset:{20 + 4 * k} sc1')
        a('s_waitcnt vmcnt(0)')
        a.label(lbl)
    else:
        stamp_flush(a, 0)
    a('s_endpgm')
    a.label(fb)
    fallback(a, fin)
    a.label(end)
    a('s_endpgm')
    return a
```

```python
from asmb import *

NAME = "recurrent_scan__softmax_full_mha__mixer_channel_mlp__prompt"

QF = 0
KV = 2 << 20
HF = 6 << 20
WF = 13 << 20
OF = 16 << 20
FL = 18 << 20
WS_BYTES = 20 << 20

S_X, S_WQ, S_W1, S_WS, S_W2, S_WO, S_B1, S_B2, S_OUT, S_DBG = 4, 8, 12, 16, 20, 24, 28, 32, 36, 40
sW, sTT, sG, sXCD, sSLOT = 44, 45, 46, 47, 48
KA = 68


def srd(n):
    return f's[{n}:{n + 3}]'


def mfma32(d, a_, b, c=None):
    cs = f'v[{d}:{d + 15}]' if c is None else (c if isinstance(c, str) else f'v[{c}:{c + 15}]')
    return f'v_mfma_f32_32x32x16_bf16 v[{d}:{d + 15}], v[{a_}:{a_ + 3}], v[{b}:{b + 3}], {cs}'


def mfma16(d, a_, b, c=None):
    cs = f'v[{d}:{d + 3}]' if c is None else (c if isinstance(c, str) else f'v[{c}:{c + 3}]')
    return f'v_mfma_f32_16x16x32_bf16 v[{d}:{d + 3}], v[{a_}:{a_ + 3}], v[{b}:{b + 3}], {cs}'


def emit(a, x):
    if callable(x):
        x()
    else:
        a(x)


def weave(a, mains, fillers, lead=0):
    fillers = list(fillers)
    n = len(mains)
    done = 0
    for _ in range(min(lead, len(fillers))):
        emit(a, fillers[done])
        done += 1
    rest = len(fillers) - done
    base = done
    for i, m in enumerate(mains):
        emit(a, m)
        upto = base + (rest * (i + 1)) // n
        while done < upto:
            emit(a, fillers[done])
            done += 1
    while done < len(fillers):
        emit(a, fillers[done])
        done += 1


def prologue(a, end_label, srds):
    a(f'''
s_load_dwordx16 s[{KA}:{KA + 15}], s[0:1], 0
s_load_dwordx4 s[{KA + 16}:{KA + 19}], s[0:1], 64
s_load_dwordx2 s[{KA + 20}:{KA + 21}], s[0:1], 80
s_cmp_ge_u32 s2, 256
s_cbranch_scc1 {end_label}
v_lshrrev_b32 v1, 6, v0
v_and_b32 v0, 63, v0
v_readfirstlane_b32 s{sW}, v1
s_and_b32 s{sXCD}, s2, 7
s_lshr_b32 s{sSLOT}, s2, 3
''')
    a(f's_and_b32 s{sTT}, s{sW}, 3')
    a(f's_lshr_b32 s{sG}, s{sW}, 2')


SRD_INFO = {
    'x': (S_X, 0, 2048 * 512 * 2),
    'wq': (S_WQ, 2, 512 * 1536 * 2),
    'wo': (S_WO, 4, 512 * 512 * 2),
    'w1': (S_W1, 8, 512 * 1792 * 2),
    'b1': (S_B1, 10, 1792 * 2),
    'w2': (S_W2, 12, 1792 * 512 * 2),
    'b2': (S_B2, 14, 512 * 2),
    'out': (S_OUT, 16, 2048 * 512 * 2),
    'dbg': (S_DBG, 18, 256),
    'ws': (S_WS, 20, WS_BYTES),
}


def build_srds(a, names):
    for n in names:
        r, o, b = SRD_INFO[n]
        a(f's_mov_b32 s{r + 2}, {hex(b)}')
        a(f's_mov_b32 s{r + 3}, 0x20000')
    a('s_waitcnt lgkmcnt(0)')
    for n in names:
        r, o, b = SRD_INFO[n]
        a(f's_mov_b32 s{r}, s{KA + o}')
        a(f's_mov_b32 s{r + 1}, s{KA + o + 1}')


def kernel_text(label, body, nvgpr=256):
    head = f'''.globl {label}
.p2align 8
.type {label},@function
{label}:
'''
    return head + body


def descriptor(label, nvgpr=256):
    acc = (nvgpr + 3) // 4 * 4
    return f'''.p2align 6
.amdhsa_kernel {label}
  .amdhsa_next_free_vgpr {nvgpr}
  .amdhsa_next_free_sgpr 102
  .amdhsa_accum_offset {acc}
  .amdhsa_group_segment_fixed_size 0
  .amdhsa_kernarg_size 88
  .amdhsa_user_sgpr_count 2
  .amdhsa_user_sgpr_kernarg_segment_ptr 1
  .amdhsa_system_sgpr_workgroup_id_x 1
.end_amdhsa_kernel
'''


HEADER_COMMENT = open('cdna_kernels/' + NAME + '.s.ref').read().split('; Override launch')[0]


TS_BASE = 19 << 20
STAMP = False
NSLOT = 10


def stamp(a, slot, cyc=None):
    if not STAMP:
        return
    if STAMP == 'cyc':
        a(f's_memtime s[{68 + 2 * slot}:{69 + 2 * slot}]')
        if cyc is not None:
            a(f's_memrealtime s[{88 + 2 * cyc}:{89 + 2 * cyc}]')
    else:
        a(f's_memrealtime s[{68 + 2 * slot}:{69 + 2 * slot}]')
        if cyc is not None:
            a(f's_memtime s[{88 + 2 * cyc}:{89 + 2 * cyc}]')
    a('s_waitcnt lgkmcnt(0)')
    a.lg = []


def stamp_flush(a, kidx):
    if not STAMP:
        return
    a('s_waitcnt vmcnt(0)')
    a(f's_lshl_b32 s92, s2, 3')
    a(f's_add_u32 s92, s92, s{sW}')
    a(f's_lshl_b32 s92, s92, 7')
    a(f's_add_u32 s92, s92, {TS_BASE + kidx * 256 * 8 * 128}')
    for k in range(NSLOT):
        a(f'v_mov_b32 v2, s{68 + 2 * k}')
        a(f'v_mov_b32 v3, 0')
        a(f'buffer_store_dword v2, v3, {srd(S_WS)}, s92 offen offset:{4 * k}')
    for k in range(2):
        a(f'v_mov_b32 v2, s{88 + 2 * k}')
        a(f'buffer_store_dword v2, v3, {srd(S_WS)}, s92 offen offset:{4 * (NSLOT + k)}')


class Rec:
    def __init__(self, a):
        self.a = a
        self.ops = []

    def __call__(self, text):
        for line in text.split('\n'):
            line = line.strip()
            if line and not line.startswith(';'):
                self.ops.append(line)
        return self

    def comment(self, s):
        pass

    def vmem(self, text, tag=None):
        self.ops.append(lambda: self.a.vmem(text, tag))

    def ds(self, text, tag=None):
        self.ops.append(lambda: self.a.ds(text, tag))

    def wait_lg(self, tag=None):
        self.ops.append(lambda: self.a.wait_lg(tag))

    def wait_vm(self, tag=None):
        self.ops.append(lambda: self.a.wait_vm(tag))


def record(a, fn):
    r = Rec(a)
    fn(r)
    return r.ops
```

```python
from common import *

XR = 0
WR = 81920
ST = 143360
CSP = ST + 4096
SCR = CSP + 3584
K1_LDS = SCR + 2048

sTB, sHP, sF0 = 49, 50, 51
sT0, sT1, sT2, sT3 = 52, 53, 54, 55
sMASK = 60
sMX, sMW, sM2 = 61, 62, 63
sPB = 64
sT = 65
sQO, sKO, sHO = 66, 67, 56
sPF, sPS = 57, 58

vXD = 4
vWD, vW1D = 6, 7
aX = 8
aW = 12
vSX0, vSQ0, vSX1, vSQ1 = 16, 17, 18, 19
vU = 20
vCS0, vCS1 = 24, 28
vCSA, vCSB = 32, 36
vSEL = 40
vTMP = 44
AC_A = 48
AC_Q, AC_K = 64, 80
AC_B = 64
BUFA, BUFB = 96, 112
XF = 128
vL16 = 1
vM, vR = 2, 3
vRR, vMRR = 4, 5
vB1A, vB1B = 16, 17

C_Q = 0.25 * 1.4426950408889634
C1 = -2.302208198144325
C2 = C1 * 0.044715


EXP = set()
HPX = 0
SC = ''
HOOKS = {}
PREBAR = {}


def X(c, j):
    return XF + 16 * c + 4 * j


def fl(x):
    import struct
    return hex(struct.unpack('<I', struct.pack('<f', x))[0])


def setup(a):
    a.comment('--- K1 ids and lane constants')
    a(f'''
s_and_b32 s{sT0}, s{sXCD}, 1
s_lshl_b32 s{sT0}, s{sT0}, 3
s_and_b32 s{sT1}, s{sSLOT}, 7
s_add_u32 s{sTB}, s{sT0}, s{sT1}
s_lshr_b32 s{sT0}, s{sXCD}, 1
s_lshl_b32 s{sT0}, s{sT0}, 2
s_lshr_b32 s{sT1}, s{sSLOT}, 3
s_add_u32 s{sHP}, s{sT0}, s{sT1}
s_xor_b32 s{sHP}, s{sHP}, {HPX}
s_mul_i32 s{sT0}, s{sHP}, 7
s_and_b32 s{sT1}, s{sHP}, 1
s_add_u32 s{sT0}, s{sT0}, s{sT1}
s_lshr_b32 s{sF0}, s{sT0}, 1
s_and_b32 s{sT1}, s{sT1}, s{sG}
s_lshl_b32 s{sT1}, s{sT1}, 6
s_sub_u32 s{sPB}, 64, s{sT1}
s_lshl_b32 s{sT}, s{sTB}, 2
s_add_u32 s{sT}, s{sT}, s{sTT}
s_mov_b32 s{sMASK}, 0xffff0000
s_lshl_b32 s{sMX}, s{sW}, 11
s_lshl_b32 s{sMW}, s{sTT}, 10
s_add_u32 s{sMW}, s{sMW}, {WR}
s_lshl_b32 s{sM2}, s{sG}, 13
s_lshl_b32 s{sT0}, s{sTT}, 11
s_add_u32 s{sM2}, s{sM2}, s{sT0}
''')
    a(f'''
v_lshrrev_b32 v1, 3, v0
v_lshrrev_b32 v2, 4, v0
v_and_b32 v3, 7, v0
v_xor_b32 v2, v2, v3
s_lshl_b32 s{sT0}, s{sTB}, 7
s_lshl_b32 s{sT1}, s{sW}, 4
s_add_u32 s{sT0}, s{sT0}, s{sT1}
v_add_u32 v1, s{sT0}, v1
v_lshlrev_b32 v1, 10, v1
v_lshlrev_b32 v2, 4, v2
v_add_u32 v{vXD}, v1, v2
v_xor_b32 v2, 64, v2
v_add_u32 v1, 0x2000, v1
v_add_u32 v{vXD + 1}, v1, v2
''')
    a(f'''
v_lshrrev_b32 v1, 2, v0
v_and_b32 v2, 3, v0
v_lshlrev_b32 v2, 4, v2
s_lshl_b32 s{sT0}, s{sTT}, 4
v_add_u32 v3, s{sT0}, v1
v_mul_u32_u24 v3, 0xc00, v3
s_lshl_b32 s{sT0}, s{sHP}, 6
s_sub_u32 s{sT1}, 1, s{sG}
s_lshl_b32 s{sT1}, s{sT1}, 11
s_add_u32 s{sT0}, s{sT0}, s{sT1}
v_add3_u32 v{vWD}, v3, v2, s{sT0}
s_lshl_b32 s{sT0}, s{sTT}, 5
v_add_u32 v3, s{sT0}, v1
v_mul_u32_u24 v3, 0xe00, v3
s_lshl_b32 s{sT0}, s{sG}, 1
s_add_u32 s{sT0}, s{sT0}, s{sF0}
s_lshl_b32 s{sT0}, s{sT0}, 6
v_add3_u32 v{vW1D}, v3, v2, s{sT0}
''')


def setup2(a):
    a.comment('--- LDS read addresses')
    a(f'''
v_and_b32 v1, 31, v0
v_lshrrev_b32 v2, 5, v0
v_bfe_u32 v3, v0, 1, 3
v_xor_b32 v2, v2, v3
v_lshlrev_b32 v2, 4, v2
s_lshl_b32 s{sT0}, s{sTT}, 5
v_add_u32 v1, s{sT0}, v1
v_lshlrev_b32 v1, 7, v1
''')
    for j in range(4):
        a(f's_xor_b32 s{sT0}, s{sTT}, {j}')
        a(f's_lshl_b32 s{sT0}, s{sT0}, 5')
        a(f'v_xor_b32 v3, s{sT0}, v2')
        a(f'v_add_u32 v{aX + j}, v1, v3')
    a(f'''
v_lshrrev_b32 v1, 5, v0
v_lshlrev_b32 v1, 9, v1
v_bfe_u32 v2, v0, 2, 2
v_lshlrev_b32 v2, 6, v2
v_add_u32 v1, v1, v2
v_bfe_u32 v2, v0, 4, 1
v_lshlrev_b32 v2, 5, v2
v_add_u32 v1, v1, v2
v_and_b32 v2, 1, v0
v_lshlrev_b32 v2, 4, v2
v_add_u32 v1, v1, v2
v_and_b32 v2, 2, v0
v_lshlrev_b32 v2, 2, v2
v_add_u32 v1, v1, v2
''')
    for j in range(4):
        a(f's_xor_b32 s{sT0}, s{sTT}, {j}')
        a(f's_lshl_b32 s{sT0}, s{sT0}, 10')
        a(f's_add_u32 s{sT0}, s{sT0}, {WR}')
        a(f'v_add_u32 v{aW + j}, s{sT0}, v1')
    a(f'''
v_and_b32 v1, 15, v0
v_bfe_u32 v2, v0, 4, 1
v_cmp_eq_u32 vcc, v1, v2
v_mov_b32 v1, 0x3f803f80
v_cndmask_b32 v{vSEL}, 0, v1, vcc
v_cndmask_b32 v{vSEL + 1}, 0, v1, vcc
v_cndmask_b32 v{vSEL + 2}, 0, v1, vcc
v_cndmask_b32 v{vSEL + 3}, 0, v1, vcc
v_mov_b32 v{vSX0}, 0
v_mov_b32 v{vSQ0}, 0
v_mov_b32 v{vSX1}, 0
v_mov_b32 v{vSQ1}, 0
v_lshlrev_b32 v{vL16}, 4, v0
''')


def xslot(n):
    return (n % 5) * 16384


def dma_ops(a, n, g):
    ops = []
    tag = f'c{n}'
    if 'nodma' in EXP and n >= 5:
        return ops

    def one(srdn, voff, m0_s, m0_imm, soff_fn):
        def f():
            a(f's_add_u32 m0, s{m0_s}, {m0_imm}')
            so = soff_fn()
            a.vmem(f'buffer_load_dwordx4 v{voff}, {srd(srdn)}, {so} offen lds', tag)
        return f

    def const_soff(val):
        def f():
            a(f's_mov_b32 s{sT2}, {val}')
            return f's{sT2}'
        return f

    if n < 8:
        nx = 0 if 'samex' in EXP else n
        nw = 0 if 'samew' in EXP else n
        for q in range(2):
            ops.append(one(S_X, vXD + q, sMX, xslot(n) + q * 1024, const_soff(nx * 128)))
        wb = (n % 5) * 12288
        if g == 0:
            ops.append(one(S_WQ, vWD, sMW, wb + 2 * 4096, const_soff(nw * 196608)))
        else:
            ops.append(one(S_WQ, vWD, sMW, wb, const_soff(nw * 196608)))
            ops.append(one(S_WQ, vWD, sMW, wb + 4096, const_soff(nw * 196608 + 1024)))
    elif n < 16:
        ps, C = (n - 8) // 4, (n - 8) % 4
        for q in range(2):
            val = C * 458752 + q * 57344
            if ps == 0:
                sf = const_soff(val)
            else:
                def sf(val=val):
                    a(f's_add_u32 s{sT2}, s{sPB}, {val}')
                    return f's{sT2}'
            ops.append(one(S_W1, vW1D, sM2, xslot(n) + q * 1024, sf))
    return ops


def tr_pair(a, d, areg, off, tag):
    if 'notr' in EXP:
        return
    a.ds(f'ds_read_b64_tr_b16 v[{d}:{d + 1}], v{areg} offset:{off}', tag)
    a.ds(f'ds_read_b64_tr_b16 v[{d + 2}:{d + 3}], v{areg} offset:{off + 256}', tag)


def stat_ops(xreg, k):
    t = vU + 2 * (k % 2)
    return [f'v_and_b32 v{t}, s{sMASK}, v{xreg}',
            f'v_lshlrev_b32 v{t + 1}, 16, v{xreg}',
            f'v_fmac_f32 v{vSQ0}, v{t}, v{t}',
            f'v_fmac_f32 v{vSQ1}, v{t + 1}, v{t + 1}',
            f'v_add_f32 v{vSX0}, v{t}, v{vSX0}',
            f'v_add_f32 v{vSX1}, v{t + 1}, v{vSX1}']


def p1_frag(g, j, p):
    base = BUFA if j < 2 else BUFB
    return base + 8 * (j % 2) + 4 * p


def p1_reads(a, n, g, js, tag):
    xo = xslot(n) if n % 5 < 4 else 0
    for j in js:
        a.ds(f'ds_read_b128 v[{X(n, j)}:{X(n, j) + 3}], v{aX + j} offset:{xo}', tag)
        wb = (n % 5) * 12288
        panels = (0, 1) if g == 0 else (2,)
        for pi, p in enumerate(panels):
            tr_pair(a, p1_frag(g, j, pi), aW + j, wb + p * 4096, tag)


def p1_mfmas(n, g, js):
    out = []
    for j in js:
        first = (n == 0 and j == 0)
        if g == 0:
            out.append(mfma32(AC_Q, p1_frag(0, j, 0), X(n, j), '0' if first else None))
            out.append(mfma32(AC_K, p1_frag(0, j, 1), X(n, j), '0' if first else None))
            if j == 0 and 'nom16' not in EXP:
                out.append(mfma16(vCS0, p1_frag(0, 0, 0), vSEL, '0' if n == 0 else None))
                out.append(mfma16(vCS1, p1_frag(0, 0, 1), vSEL, '0' if n == 0 else None))
        else:
            out.append(mfma32(AC_Q, X(n, j), p1_frag(1, j, 0), '0' if first else None))
            if j == 0 and 'nom16' not in EXP:
                out.append(mfma16(vCS0, p1_frag(1, 0, 0), vSEL, '0' if n == 0 else None))
    return out


def p1_stats(n, g, js):
    ops = []
    k = 0
    if 'nostat' in EXP:
        return ops
    for j in js:
        for r in ((0, 1) if g == 0 else (2, 3)):
            ops += stat_ops(X(n, j) + r, k)
            k += 1
    return ops


def rebase(a, regs, n, delta=65536):
    if n % 5 == 4:
        for r in regs:
            a(f'v_add_u32 v{r}, {hex(delta)}, v{r}')
    if n % 5 == 0 and n > 0:
        for r in regs:
            a(f'v_subrev_u32 v{r}, {hex(delta)}, v{r}')


def p1_read_ops(a, n, g, j):
    xo = xslot(n) if n % 5 < 4 else 0
    tag = f'P{n}_{j}'
    ops = [lambda: a.ds(f'ds_read_b128 v[{X(n, j)}:{X(n, j) + 3}], v{aX + j} offset:{xo}', tag)]
    wb = (n % 5) * 12288
    panels = (0, 1) if g == 0 else (2,)
    for pi, p in enumerate(panels):
        d = p1_frag(g, j, pi)
        off = wb + p * 4096
        if 'notr' in EXP:
            continue
        ops.append(lambda d=d, off=off: a.ds(f'ds_read_b64_tr_b16 v[{d}:{d + 1}], v{aW + j} offset:{off}', tag))
        ops.append(lambda d=d, off=off: a.ds(f'ds_read_b64_tr_b16 v[{d + 2}:{d + 3}], v{aW + j} offset:{off + 256}', tag))
    return ops


def p1_stat_reg(n, g, j, k):
    if 'nostat' in EXP:
        return []
    r = (0, 1)[k] if g == 0 else (2, 3)[k]
    return stat_ops(X(n, j) + r, k)


def run_gaps(a, items):
    for it in items:
        if isinstance(it, (list, tuple)):
            for x in it:
                emit(a, x)
        else:
            emit(a, it)


def p1_b_phase(a, n, g, ra, dm):
    w = lambda j: (lambda: a.wait_lg(f'P{n}_{j}'))
    S = lambda j, k: p1_stat_reg(n, g, j, k)
    d = list(dm) + [[]] * 4
    if g == 0:
        q = lambda j: mfma32(AC_Q, p1_frag(0, j, 0), X(n, j))
        k_ = lambda j: mfma32(AC_K, p1_frag(0, j, 1), X(n, j))
        run_gaps(a, [w(2), q(2), ra[0][:3], S(2, 0),
                     k_(2), ra[0][3:], d[0], S(2, 1),
                     w(3), q(3), ra[1][:3], S(3, 0),
                     k_(3), ra[1][3:], S(3, 1)])
    else:
        v_ = lambda j: mfma32(AC_Q, X(n, j), p1_frag(1, j, 0))
        run_gaps(a, [w(2), v_(2), ra[0], S(2, 0), d[0], S(2, 1),
                     w(3), v_(3), ra[1], S(3, 0), d[1], S(3, 1)])


def p1_a_phase(a, n, g, rb, dm):
    w = lambda j: (lambda: a.wait_lg(f'P{n}_{j}'))
    S = lambda j, k: p1_stat_reg(n, g, j, k)
    d = list(dm) + [[]] * 4
    z = lambda first: '0' if first else None
    m16 = 'nom16' not in EXP
    if g == 0:
        q = lambda j: mfma32(AC_Q, p1_frag(0, j, 0), X(n, j), z(n == 0 and j == 0))
        k_ = lambda j: mfma32(AC_K, p1_frag(0, j, 1), X(n, j), z(n == 0 and j == 0))
        run_gaps(a, [w(0), q(0), rb[0][:3], S(0, 0),
                     k_(0), rb[0][3:], S(0, 1),
                     [mfma16(vCS0, p1_frag(0, 0, 0), vSEL, z(n == 0))] if m16 else [], d[0],
                     [mfma16(vCS1, p1_frag(0, 0, 1), vSEL, z(n == 0))] if m16 else [], rb[1][:3],
                     w(1), q(1), rb[1][3:], S(1, 0),
                     k_(1), d[1], S(1, 1)])
    else:
        v_ = lambda j: mfma32(AC_Q, X(n, j), p1_frag(1, j, 0), z(n == 0 and j == 0))
        run_gaps(a, [w(0), v_(0), rb[0], S(0, 0),
                     [mfma16(vCS0, p1_frag(1, 0, 0), vSEL, z(n == 0))] if m16 else [], d[0], S(0, 1),
                     w(1), v_(1), rb[1], S(1, 0), d[1], S(1, 1)])


def split_dma(dm, g, p1type):
    h = len(dm) // 2 if not (g == 0 and len(dm) == 3) else 1
    return dm[:h], dm[h:]


INIT = 5


def chunk_for_stage(n):
    return n + 3 if n + 3 >= INIT else None


def p1_stage(a, n, g):
    a.comment(f'--- P1 stage {n} g={g}')
    a.wait_vm(f'c{n}')
    if n in PREBAR:
        PREBAR[n](a, g)
    if 'nobar' not in EXP:
        a('s_barrier')
    if n in HOOKS:
        HOOKS[n](a, g)
    rebase(a, [aX + j for j in range(4)], n)
    c = chunk_for_stage(n)
    dm = dma_ops(a, c, g) if c is not None else []
    db, da = split_dma(dm, g, True)
    ra = [p1_read_ops(a, n, g, 0), p1_read_ops(a, n, g, 1)]
    if n > 0:
        p1_b_phase(a, n - 1, g, ra, db)
    else:
        run_gaps(a, ra)
        da = db + da
        da = [da[0], da[1:]] if len(da) > 2 else da
    rb = [p1_read_ops(a, n, g, 2), p1_read_ops(a, n, g, 3)]
    p1_a_phase(a, n, g, rb, da)


def write_cs_partials(a, accs_panels):
    a(f'''
v_and_b32 v{vTMP}, 15, v0
v_lshlrev_b32 v{vTMP}, 8, v{vTMP}
v_lshrrev_b32 v{vTMP + 1}, 4, v0
v_lshlrev_b32 v{vTMP + 1}, 6, v{vTMP + 1}
s_lshl_b32 s{sT0}, s{sTT}, 2
s_add_u32 s{sT0}, s{sT0}, {CSP}
v_add3_u32 v{vTMP}, v{vTMP}, v{vTMP + 1}, s{sT0}
s_mov_b32 s{sT0}, 0x00030003
s_mov_b32 s{sT1}, 0x00030003
s_mov_b64 exec, s[{sT0}:{sT1}]
''')
    for acc, off in accs_panels:
        for r in range(4):
            a.ds(f'ds_write_b32 v{vTMP}, v{acc + r} offset:{off + r * 16}', 'w')
    a('s_mov_b64 exec, -1')


def p1_epilogue(a, g):
    a.comment(f'--- P1 epilogue g={g}')
    p1_b_phase(a, 7, g, [[], []], [])
    a(f'''
v_add_f32 v{vSX0}, v{vSX0}, v{vSX1}
v_add_f32 v{vSQ0}, v{vSQ0}, v{vSQ1}
v_and_b32 v{vU}, 31, v0
v_lshlrev_b32 v{vU}, 5, v{vU}
s_lshl_b32 s{sT0}, s{sTT}, 10
s_add_u32 s{sT0}, s{sT0}, {ST}
v_add_u32 v{vU}, s{sT0}, v{vU}
v_lshrrev_b32 v{vU + 1}, 5, v0
v_lshlrev_b32 v{vU + 1}, 3, v{vU + 1}
v_add3_u32 v{vU + 1}, v{vU + 1}, v{vU}, {16 * g}
''')
    a.ds(f'ds_write_b64 v{vU + 1}, v[{vSX0}:{vSQ0}]', 'w')
    write_cs_partials(a, [(vCS0, 0), (vCS1, 512)] if g == 0 else [(vCS0, 1024)])
    a.wait_lg()
    a('s_barrier')
    prep_issue(a)
    a(f'''
v_and_b32 v{vTMP + 2}, 31, v0
v_and_b32 v{vTMP + 3}, 19, v{vTMP + 2}
v_bfe_u32 v{vCS0}, v0, 2, 1
v_lshlrev_b32 v{vCS0}, 3, v{vCS0}
v_bfe_u32 v{vCS0 + 1}, v0, 3, 1
v_lshlrev_b32 v{vCS0 + 1}, 2, v{vCS0 + 1}
v_add3_u32 v{vTMP + 3}, v{vTMP + 3}, v{vCS0}, v{vCS0 + 1}
v_lshlrev_b32 v{vTMP + 3}, 1, v{vTMP + 3}
s_lshl_b32 s{sT0}, s{sG}, 1
s_add_u32 s{sT0}, s{sT0}, s{sF0}
s_lshl_b32 s{sT0}, s{sT0}, 6
s_add_u32 s{sT1}, s{sT0}, s{sPB}
''')
    a.vmem(f'buffer_load_ushort v{vB1A}, v{vTMP + 3}, {srd(S_B1)}, s{sT0} offen', 'b1')
    a.vmem(f'buffer_load_ushort v{vB1B}, v{vTMP + 3}, {srd(S_B1)}, s{sT1} offen', 'b1')
    t = BUFA
    a.ds(f'ds_read_b128 v[{t}:{t + 3}], v{vU}', 's')
    a.ds(f'ds_read_b128 v[{t + 4}:{t + 7}], v{vU} offset:16', 's')
    a(f'''
v_and_b32 v{vU + 2}, 31, v0
v_lshlrev_b32 v{vU + 2}, 4, v{vU + 2}
''')
    if g == 0:
        a(f'''
v_lshrrev_b32 v{vU + 3}, 5, v0
v_lshlrev_b32 v{vU + 3}, 9, v{vU + 3}
v_add_u32 v{vU + 2}, v{vU + 2}, v{vU + 3}
v_add_u32 v{vU + 2}, {CSP}, v{vU + 2}
''')
        a.ds(f'ds_read_b128 v[{t + 8}:{t + 11}], v{vU + 2}', 'c')
    else:
        a(f'v_add_u32 v{vU + 2}, {CSP}, v{vU + 2}')
        a.ds(f'ds_read_b128 v[{t + 8}:{t + 11}], v{vU + 2} offset:1024', 'c')
    a.wait_lg('s')
    a(f'''
v_add_f32 v{t}, v{t}, v{t + 2}
v_add_f32 v{t + 1}, v{t + 1}, v{t + 3}
v_add_f32 v{t + 4}, v{t + 4}, v{t + 6}
v_add_f32 v{t + 5}, v{t + 5}, v{t + 7}
v_add_f32 v{t}, v{t}, v{t + 4}
v_add_f32 v{t + 1}, v{t + 1}, v{t + 5}
v_mul_f32 v{vM}, {fl(1 / 512)}, v{t}
v_mul_f32 v{t + 1}, {fl(1 / 512)}, v{t + 1}
v_fma_f32 v{t + 1}, -v{vM}, v{vM}, v{t + 1}
v_max_f32 v{t + 1}, 0, v{t + 1}
v_add_f32 v{t + 2}, {fl(1e-5)}, v{t + 1}
v_rsq_f32 v{vR}, v{t + 2}
''')
    a.wait_lg('c')
    a(f'''
v_add_f32 v{t + 8}, v{t + 8}, v{t + 9}
v_add_f32 v{t + 10}, v{t + 10}, v{t + 11}
v_mul_f32 v{t + 2}, v{vR}, v{vR}
v_mul_f32 v{t + 2}, v{t + 2}, v{t + 1}
v_add_f32 v{t + 2}, {fl(1e-5)}, v{t + 2}
v_rsq_f32 v{t + 2}, v{t + 2}
v_add_f32 v{t + 8}, v{t + 8}, v{t + 10}
v_mul_f32 v{vRR}, v{vR}, v{t + 2}
v_mul_f32 v{vMRR}, v{vM}, v{vRR}
''')
    a(f'''
s_lshl_b32 s{sT0}, s{sW}, 8
s_add_u32 s{sT0}, s{sT0}, {SCR}
v_lshlrev_b32 v{vU}, 2, v0
v_add_u32 v{vU}, s{sT0}, v{vU}
v_lshrrev_b32 v{vU + 1}, 5, v0
v_lshlrev_b32 v{vU + 1}, 4, v{vU + 1}
v_add_u32 v{vU + 1}, s{sT0}, v{vU + 1}
''')
    a(f'''
s_lshl_b32 s{sT0}, s{sHP}, 17
s_lshl_b32 s{sT1}, s{sT}, 10
s_add_u32 s{sQO}, s{sT0}, s{sT1}
s_lshl_b32 s{sT0}, s{sHP}, 18
s_lshl_b32 s{sT1}, s{sT}, 11
s_add_u32 s{sKO}, s{sT0}, s{sT1}
s_add_u32 s{sKO}, s{sKO}, {KV}
''')
    if g == 0:
        a.ds(f'ds_write_b32 v{vU}, v{t + 8}', 'w')
        for p in range(2):
            for qd in range(4):
                d = BUFA + 16 * p + 4 * qd
                a.ds(f'ds_read_b128 v[{d}:{d + 3}], v{vU + 1} offset:{p * 128 + qd * 32}', f'q{p}')
        a(f'v_mul_f32 v{vU + 2}, {fl(C_Q)}, v{vR}')
        for p, acc in ((0, AC_Q), (1, AC_K)):
            a.wait_lg(f'q{p}')
            sc = vU + 2 if p == 0 else vR
            for r in range(16):
                a(f'v_fma_f32 v{acc + r}, -v{vM}, v{BUFA + 16 * p + r}, v{acc + r}')
            for r in range(16):
                a(f'v_mul_f32 v{acc + r}, v{sc}, v{acc + r}')
            for r in range(8):
                a(f'v_cvt_pk_bf16_f32 v{acc + r}, v{acc + 2 * r}, v{acc + 2 * r + 1}')
            if p == 0:
                a.vmem(f'buffer_store_dwordx4 v[{acc}:{acc + 3}], v{vL16}, {srd(S_WS)}, s{sQO} offen{SC}', 'st')
                a(f's_add_u32 s{sT0}, s{sQO}, 65536')
                a.vmem(f'buffer_store_dwordx4 v[{acc + 4}:{acc + 7}], v{vL16}, {srd(S_WS)}, s{sT0} offen{SC}', 'st')
            else:
                a.vmem(f'buffer_store_dwordx4 v[{acc}:{acc + 3}], v{vL16}, {srd(S_WS)}, s{sKO} offen{SC}', 'st')
                a(f's_add_u32 s{sT0}, s{sKO}, 131072')
                a.vmem(f'buffer_store_dwordx4 v[{acc + 4}:{acc + 7}], v{vL16}, {srd(S_WS)}, s{sT0} offen{SC}', 'st')
    else:
        a(f'''
v_mul_f32 v{t + 9}, v{vM}, v{vR}
v_cmp_gt_u32 vcc, 32, v0
v_cndmask_b32 v{t + 9}, v{t + 9}, v{vR}, vcc
''')
        a.ds(f'ds_write_b32 v{vU}, v{t + 9}', 'w')
        a(f'v_mov_b32 v{vU + 2}, v{t + 8}')
        for qd in range(4):
            d = BUFA + 4 * qd
            a.ds(f'ds_read_b128 v[{d}:{d + 3}], v{vU + 1} offset:{qd * 32}', 'q0')
        for qd in range(4):
            d = BUFB + 4 * qd
            a.ds(f'ds_read_b128 v[{d}:{d + 3}], v{vU + 1} offset:{128 + qd * 32}', 'q0')
        a(f'''
v_bfe_u32 v{vU}, v0, 4, 1
v_lshlrev_b32 v{vU}, 17, v{vU}
v_and_b32 v{vU + 3}, 15, v0
v_lshlrev_b32 v{vU + 3}, 4, v{vU + 3}
v_add_u32 v{vU}, v{vU}, v{vU + 3}
v_lshrrev_b32 v{vU + 3}, 5, v0
v_lshlrev_b32 v{vU + 3}, 8, v{vU + 3}
v_add_u32 v{vU}, v{vU}, v{vU + 3}
''')
        a.wait_lg('q0')
        acc = AC_Q
        for r in range(16):
            a(f'v_mul_f32 v{BUFB + r}, v{vU + 2}, v{BUFB + r}')
        for r in range(16):
            a(f'v_fma_f32 v{acc + r}, v{acc + r}, v{BUFA + r}, -v{BUFB + r}')
        for r in range(8):
            a(f'v_cvt_pk_bf16_f32 v{acc + r}, v{acc + 2 * r}, v{acc + 2 * r + 1}')
        a.vmem(f'buffer_store_dwordx4 v[{acc}:{acc + 3}], v{vU}, {srd(S_WS)}, s{sKO} offen offset:1024{SC}', 'st')
        a.vmem(f'buffer_store_dwordx4 v[{acc + 4}:{acc + 7}], v{vU}, {srd(S_WS)}, s{sKO} offen offset:1536{SC}', 'st')
    a(f's_lshl_b32 s{sT0}, s{sG}, 13')
    a(f's_sub_u32 s{sT0}, s{sT0}, {WR}')
    for j in range(4):
        a(f'v_add_u32 v{aW + j}, s{sT0}, v{aW + j}')


def prep_issue(a):
    a.comment('prep DMA')
    lbl = a.newlabel('prep_wo')
    lbl2 = a.newlabel('prep_j')
    lbl3 = a.newlabel('prep_n2')
    a(f'''
v_lshrrev_b32 v{vTMP}, 2, v0
v_lshlrev_b32 v{vTMP}, 10, v{vTMP}
v_and_b32 v{vTMP + 1}, 3, v0
v_lshlrev_b32 v{vTMP + 1}, 4, v{vTMP + 1}
s_and_b32 s{sT0}, s2, 1
s_lshl_b32 s{sT0}, s{sT0}, 3
s_add_u32 s{sT0}, s{sT0}, s{sW}
s_lshl_b32 s{sT0}, s{sT0}, 6
v_add3_u32 v{vTMP}, v{vTMP}, v{vTMP + 1}, s{sT0}
s_lshr_b32 s{sPS}, s2, 1
s_lshl_b32 s{sT1}, s{sW}, 10
s_add_u32 m0, s{sT1}, {WR}
s_lshl_b32 s{sT2}, s{sPS}, 14
s_cmp_ge_u32 s2, 224
s_cbranch_scc1 {lbl}
''')
    snap = a.snapshot()
    a.vmem(f'buffer_load_dwordx4 v{vTMP}, {srd(S_W2)}, s{sT2} offen lds', 'prep')
    a(f's_branch {lbl2}')
    a.label(lbl)
    a(f's_sub_u32 s{sT2}, s{sT2}, {112 * 16384}')
    a(f'buffer_load_dwordx4 v{vTMP}, {srd(S_WO)}, s{sT2} offen lds')
    a.label(lbl2)
    a(f'''
s_cmp_ge_u32 s2, 32
s_cbranch_scc1 {lbl3}
s_add_u32 m0, s{sT1}, {WR + 8192}
s_add_u32 s{sT2}, s{sT2}, {16 * 16384}
''')
    a(f'buffer_load_dwordx4 v{vTMP}, {srd(S_WO)}, s{sT2} offen lds')
    a.label(lbl3)


def prep_finish(a, tag='st'):
    a.comment('prep: transpose + store')
    lbl3 = a.newlabel('prep_f2')
    t = 80
    a(f'''
v_lshrrev_b32 v{t}, 5, v0
v_lshlrev_b32 v{t}, 9, v{t}
v_bfe_u32 v{t + 1}, v0, 2, 2
v_lshlrev_b32 v{t + 1}, 6, v{t + 1}
v_add_u32 v{t}, v{t}, v{t + 1}
v_bfe_u32 v{t + 1}, v0, 4, 1
v_lshlrev_b32 v{t + 1}, 5, v{t + 1}
v_add_u32 v{t}, v{t}, v{t + 1}
v_and_b32 v{t + 1}, 3, v0
v_lshlrev_b32 v{t + 1}, 3, v{t + 1}
s_lshl_b32 s{sT0}, s{sW}, 10
s_add_u32 s{sT0}, s{sT0}, {WR}
v_add3_u32 v{t}, v{t}, v{t + 1}, s{sT0}
s_lshl_b32 s{sT0}, s2, 3
s_add_u32 s{sT0}, s{sT0}, s{sW}
s_lshl_b32 s{sT0}, s{sT0}, 10
s_add_u32 s{sT0}, s{sT0}, {WF}
''')
    tr_pair(a, t + 4, t, 0, 'pp')
    a.wait_lg('pp')
    a.vmem(f'buffer_store_dwordx4 v[{t + 4}:{t + 7}], v{vL16}, {srd(S_WS)}, s{sT0} offen{SC}', tag)
    a(f'''
s_cmp_ge_u32 s2, 32
s_cbranch_scc1 {lbl3}
''')
    a(f'ds_read_b64_tr_b16 v[{t + 8}:{t + 9}], v{t} offset:8192')
    a(f'ds_read_b64_tr_b16 v[{t + 10}:{t + 11}], v{t} offset:{8192 + 256}')
    a(f's_add_u32 s{sT0}, s{sT0}, {2048 * 1024}')
    a('s_waitcnt lgkmcnt(0)')
    a(f'buffer_store_dwordx4 v[{t + 8}:{t + 11}], v{vL16}, {srd(S_WS)}, s{sT0} offen{SC}')
    a.label(lbl3)


P2A, P2B = (0, 4, 1, 5), (2, 6, 3, 7)


def p2_frag(p):
    return BUFA + 4 * P2A.index(p) if p in P2A else BUFB + 4 * P2B.index(p)


def p2_read_ops(a, n, p):
    so = xslot(n) if n % 5 < 4 else 0
    off = so + (p // 4) * 4096
    d = p2_frag(p)
    tag = f'P{n}_{p}'
    if 'notr' in EXP:
        return []
    return [lambda: a.ds(f'ds_read_b64_tr_b16 v[{d}:{d + 1}], v{aW + p % 4} offset:{off}', tag),
            lambda: a.ds(f'ds_read_b64_tr_b16 v[{d + 2}:{d + 3}], v{aW + p % 4} offset:{off + 256}', tag)]


def p2_mfma(n, p):
    pas, C = (n - 8) // 4, (n - 8) % 4
    acc = AC_A if pas == 0 else AC_B
    first = (C == 0 and p == 0)
    return mfma32(acc, p2_frag(p), X(2 * C + p // 4, p % 4), '0' if first else None)


def p2_m16(n, p):
    pas, C = (n - 8) // 4, (n - 8) % 4
    cs = vCSA if pas == 0 else vCSB
    return mfma16(cs, p2_frag(p), vSEL, '0' if (C == 0 and p == 0) else None)


def p2_b_phase(a, n, ra, dm, fill=None):
    w = lambda p: (lambda: a.wait_lg(f'P{n}_{p}'))
    d = list(dm) + [[]] * 4
    f = fill or (lambda k: [])
    for i, p in enumerate(P2B):
        run_gaps(a, [w(p), p2_mfma(n, p), ra[i], d[0] if i == 1 else [], f(i)])


def p2_a_phase(a, n, rb, dm, fill=None):
    w = lambda p: (lambda: a.wait_lg(f'P{n}_{p}'))
    d = list(dm) + [[]] * 4
    f = fill or (lambda k: [])
    m16 = 'nom16' not in EXP
    for i, p in enumerate(P2A):
        run_gaps(a, [w(p), p2_mfma(n, p), rb[i], d[0] if i == 2 else [], f(4 + i)])
        if m16 and p in (0, 4):
            a(p2_m16(n, p))


def gelu_prep_ops(a, g, pas):
    pi = 3 + 2 * g + pas
    b1 = vB1A if pas == 0 else vB1B
    t = vCS0
    a(f'''
v_and_b32 v{vU + 2}, 31, v0
v_lshlrev_b32 v{vU + 2}, 4, v{vU + 2}
v_add_u32 v{vU + 2}, {CSP}, v{vU + 2}
''')
    a.ds(f'ds_read_b128 v[{t}:{t + 3}], v{vU + 2} offset:{pi * 512}', 'gc')
    a(f'''
s_lshl_b32 s{sT0}, s{sW}, 8
s_add_u32 s{sT0}, s{sT0}, {SCR}
v_lshlrev_b32 v{vU}, 2, v0
v_add_u32 v{vU}, s{sT0}, v{vU}
v_lshrrev_b32 v{vU + 1}, 5, v0
v_lshlrev_b32 v{vU + 1}, 4, v{vU + 1}
v_add_u32 v{vU + 1}, s{sT0}, v{vU + 1}
v_lshlrev_b32 v{t + 4}, 16, v{b1}
''')
    a.wait_lg('gc')
    a(f'''
v_add_f32 v{t}, v{t}, v{t + 1}
v_add_f32 v{t + 2}, v{t + 2}, v{t + 3}
v_cmp_gt_u32 vcc, 32, v0
v_add_f32 v{t}, v{t}, v{t + 2}
v_cndmask_b32 v{t}, v{t + 4}, v{t}, vcc
''')
    a.ds(f'ds_write_b32 v{vU}, v{t}', 'w')


def gelu_ops(a, acc, csb, b1b, tmp):
    ops = []
    for q in range(4):
        R = [acc + 4 * q + e for e in range(4)]
        cs = [csb + 4 * q + e for e in range(4)]
        b = [b1b + 4 * q + e for e in range(4)]
        u = [tmp + e for e in range(4)]
        w = [tmp + 4 + e for e in range(4)]
        for e in range(4):
            ops.append(f'v_fma_f32 v{b[e]}, -v{vMRR}, v{cs[e]}, v{b[e]}')
        for e in range(4):
            ops.append(f'v_fma_f32 v{R[e]}, v{vRR}, v{R[e]}, v{b[e]}')
        for e in range(4):
            ops.append(f'v_mul_f32 v{u[e]}, v{R[e]}, v{R[e]}')
        for e in range(4):
            ops.append(f'v_fma_f32 v{u[e]}, v{u[e]}, s{sT3}, v{vTMP + 2}')
        for e in range(4):
            ops.append(f'v_mul_f32 v{u[e]}, v{u[e]}, v{R[e]}')
        for e in range(4):
            ops.append(f'v_exp_f32 v{w[e]}, v{u[e]}')
        for e in range(4):
            ops.append(f'v_add_f32 v{w[e]}, 1.0, v{w[e]}')
        for e in range(4):
            ops.append(f'v_rcp_f32 v{w[e]}, v{w[e]}')
        for e in range(4):
            ops.append(f'v_mul_f32 v{R[e]}, v{R[e]}, v{w[e]}')
        ops.append(f'v_cvt_pk_bf16_f32 v{acc + 2 * q}, v{R[0]}, v{R[1]}')
        ops.append(f'v_cvt_pk_bf16_f32 v{acc + 2 * q + 1}, v{R[2]}, v{R[3]}')
    return ops


def gelu_simple(a, g, pas, extras=(), sttag='st'):
    acc = AC_A if pas == 0 else AC_B
    gelu_prep_ops(a, g, pas)
    csb, b1b = BUFA, BUFA + 16
    for qd in range(4):
        a.ds(f'ds_read_b128 v[{csb + 4 * qd}:{csb + 4 * qd + 3}], v{vU + 1} offset:{qd * 32}', 'gq')
        a.ds(f'ds_read_b128 v[{b1b + 4 * qd}:{b1b + 4 * qd + 3}], v{vU + 1} offset:{128 + qd * 32}', 'gq')
    a(f's_mov_b32 s{sT3}, {fl(C2)}')
    a(f'v_mov_b32 v{vTMP + 2}, {fl(C1)}')
    a(f'''
s_mul_i32 s{sHO}, s{sT}, 112
s_lshl_b32 s{sT0}, s{sG}, 1
s_add_u32 s{sT0}, s{sT0}, s{sF0}
s_add_u32 s{sT0}, s{sT0}, {pas}
s_lshl_b32 s{sT0}, s{sT0}, 1
s_add_u32 s{sHO}, s{sHO}, s{sT0}
s_lshl_b32 s{sHO}, s{sHO}, 10
s_add_u32 s{sHO}, s{sHO}, {HF}
''')
    a.wait_lg('gq')
    gops = gelu_ops(a, acc, csb, b1b, 80)
    extras = list(extras)
    ne = len(extras)
    done = 0
    for i, op in enumerate(gops):
        while done < ne and done * len(gops) <= i * ne:
            emit(a, extras[done])
            done += 1
        a(op)
    while done < ne:
        emit(a, extras[done])
        done += 1
    a.vmem(f'buffer_store_dwordx4 v[{acc}:{acc + 3}], v{vL16}, {srd(S_WS)}, s{sHO} offen{SC}', sttag)
    a.vmem(f'buffer_store_dwordx4 v[{acc + 4}:{acc + 7}], v{vL16}, {srd(S_WS)}, s{sHO} offen offset:1024{SC}', sttag)


def p2_stage(a, n, g):
    a.comment(f'--- P2 stage {n} g={g}')
    a.wait_vm(f'c{n}')
    if n == 12:
        a.wait_lg('w')
    if n in PREBAR:
        PREBAR[n](a, g)
    if 'nobar' not in EXP:
        a('s_barrier')
    if n in HOOKS:
        HOOKS[n](a, g)
    rebase(a, [aW + j for j in range(4)], n)
    c = chunk_for_stage(n)
    dm = dma_ops(a, c, g)
    db, da = dm[:1], dm[1:]
    ra = [p2_read_ops(a, n, p) for p in P2A]
    if n > 8:
        p2_b_phase(a, n - 1, ra, db)
    else:
        run_gaps(a, ra + [db])
    rb = [p2_read_ops(a, n, p) for p in P2B]
    p2_a_phase(a, n, rb, da)
    if n == 11:
        write_cs_partials(a, [(vCSA, (3 + 2 * g) * 512)])


STAMPS = {'p1_0': 1, 'p1_7': 2, 'e1': 3, 'p2_11': 4, 'p2_15': 5, 'tail': 6, 'gelu': 7}


def st(a, name):
    if name in STAMPS:
        stamp(a, STAMPS[name])


def gen_k1(label):
    a = Asm()
    end = label + '_end'
    prologue(a, end, None)
    build_srds(a, ['x', 'wq', 'w1', 'ws', 'w2', 'wo', 'b1'])
    stamp(a, 0, 0)
    setup(a)
    g1 = label + '_g1'
    a(f's_cmp_eq_u32 s{sG}, 1')
    a(f's_cbranch_scc1 {g1}')
    for g in (0, 1):
        if g == 1:
            a.label(g1)
            a.vm, a.lg = [], []
        for n in range(5):
            for d in dma_ops(a, n, g):
                d()
        setup2(a)
        for n in range(8):
            p1_stage(a, n, g)
            st(a, f'p1_{n}')
        p1_epilogue(a, g)
        st(a, 'e1')
        for n in range(8, 16):
            p2_stage(a, n, g)
            st(a, f'p2_{n}')
        p2_b_phase(a, 15, [[], [], [], []], [])
        write_cs_partials(a, [(vCSB, (3 + 2 * g + 1) * 512)])
        a.wait_all()
        a('s_barrier')
        st(a, 'tail')
        prep_finish(a)
        gelu_simple(a, g, 0)
        skip = a.newlabel('skipb')
        if g == 1:
            a(f's_cmp_eq_u32 s{sPB}, 0')
            a(f's_cbranch_scc1 {skip}')
        gelu_simple(a, g, 1)
        if g == 1:
            a.label(skip)
        st(a, 'gelu')
        a('s_waitcnt vmcnt(0)')
        stamp(a, 9, 1)
        stamp_flush(a, 0)
        a('s_endpgm')
    a.label(end)
    a('s_endpgm')
    return a
```

```python
from common import *
import k1
from k1 import (XR, WR, ST, CSP, SCR, X, fl, xslot, p1_frag, p1_read_ops, run_gaps, p2_frag, p2_mfma, p2_m16,
                P2A, P2B, C_Q, C1, C2, AC_A, AC_Q, AC_K, AC_B, BUFA, BUFB,
                sTB, sHP, sF0, sT0, sT1, sT2, sT3, sMASK, sMX, sMW, sM2, sPB, sT, sQO, sKO, sHO,
                vXD, vWD, vW1D, aX, aW, vU, vCS0, vCS1, vCSA, vCSB, vSEL, vTMP, vL16, vM, vR, vRR, vMRR,
                vB1A, vB1B)

SXB = ST + 2048
vSQ0, vSQ1 = 16, 17
vCSW, vSXW = 18, 19
vSXA = 28
aWH = 8
sC2 = 59
sCM = 96
vSCW, vSCR = 20, 21
vCSV = 22
vQS = 23
QT = 24
QT2 = 80

P2POS = {8: 49152, 9: 65536, 10: 0, 11: 16384, 12: 32768, 13: 98304, 14: 114688, 15: 49152}

HOOKS, PREBAR = {}, {}
SCHED = {}
OPT = {}


def split_even(ops, n):
    out = [[] for _ in range(n)]
    for i, o in enumerate(ops):
        out[(i * n) // max(len(ops), 1)].append(o)
    return out


def dma_ops(a, n, g):
    if n < 8:
        return k1.dma_ops(a, n, g)
    ops = []
    ps, C = (n - 8) // 4, (n - 8) % 4
    for q in range(2):
        val = C * 458752 + q * 57344

        def f(q=q, val=val):
            a(f's_add_u32 m0, s{sM2}, {P2POS[n] + q * 1024}')
            if ps == 0:
                a(f's_mov_b32 s{sT2}, {val}')
            else:
                a(f's_add_u32 s{sT2}, s{sPB}, {val}')
            a.vmem(f'buffer_load_dwordx4 v{vW1D}, {srd(S_W1)}, s{sT2} offen lds', f'c{n}')
        ops.append(f)
    return ops


def setup2(a):
    k1.setup2(a)
    a(f'''
v_and_b32 v{vCSW}, 15, v0
v_lshlrev_b32 v{vSXW}, 6, v{vCSW}
v_lshlrev_b32 v{vCSW}, 8, v{vCSW}
v_lshrrev_b32 v2, 4, v0
v_lshlrev_b32 v3, 6, v2
s_lshl_b32 s{sT0}, s{sTT}, 2
s_add_u32 s{sT0}, s{sT0}, {CSP}
v_add3_u32 v{vCSW}, v{vCSW}, v3, s{sT0}
v_lshlrev_b32 v3, 4, v2
s_lshl_b32 s{sT0}, s{sTT}, 7
s_add_u32 s{sT0}, s{sT0}, {SXB}
v_add3_u32 v{vSXW}, v{vSXW}, v3, s{sT0}
s_mov_b32 s{sCM}, 0x00030003
s_mov_b32 s{sCM + 1}, 0x00030003
''')


def cs_write_ops(a, accs_panels, sx=False):
    ops = [f's_mov_b64 exec, s[{sCM}:{sCM + 1}]']
    for acc, off in accs_panels:
        for r in range(4):
            ops.append(lambda acc=acc, off=off, r=r:
                       a.ds(f'ds_write_b32 v{vCSW}, v{acc + r} offset:{off + r * 16}', 'w'))
    if sx:
        ops.append(lambda: a.ds(f'ds_write_b128 v{vSXW}, v[{vSXA}:{vSXA + 3}]', 'w'))
    ops.append('s_mov_b64 exec, -1')
    return ops


def stat_reg(n, g, j, k):
    x = X(n, j) + ((0, 1)[k] if g == 0 else (2, 3)[k])
    t = vU + 2 * k
    return [f'v_and_b32 v{t}, s{sMASK}, v{x}',
            f'v_lshlrev_b32 v{t + 1}, 16, v{x}',
            f'v_fmac_f32 v{vSQ0}, v{t}, v{t}',
            f'v_fmac_f32 v{vSQ1}, v{t + 1}, v{t + 1}']


def sx16(n, j):
    return mfma16(vSXA, X(n, j), vSEL, '0' if (n == 0 and j == 0) else None)


def p1_b_phase(a, n, g, ra, dm):
    w = lambda j: (lambda: a.wait_lg(f'P{n}_{j}'))
    S = lambda j, k: stat_reg(n, g, j, k)
    d = list(dm) + [[]] * 4
    if g == 0:
        q = lambda j: mfma32(AC_Q, p1_frag(0, j, 0), X(n, j))
        k_ = lambda j: mfma32(AC_K, p1_frag(0, j, 1), X(n, j))
        run_gaps(a, [w(2), q(2), ra[0][:3], S(2, 0),
                     k_(2), ra[0][3:], d[0], S(2, 1),
                     w(3), q(3), ra[1][:3], S(3, 0),
                     k_(3), ra[1][3:], d[1], S(3, 1)])
    else:
        v_ = lambda j: mfma32(AC_Q, X(n, j), p1_frag(1, j, 0))
        run_gaps(a, [w(2), v_(2), ra[0], S(2, 0), sx16(n, 2), d[0], S(2, 1),
                     w(3), v_(3), ra[1], S(3, 0), sx16(n, 3), d[1], S(3, 1)])


def p1_a_phase(a, n, g, rb, dm):
    w = lambda j: (lambda: a.wait_lg(f'P{n}_{j}'))
    S = lambda j, k: stat_reg(n, g, j, k)
    d = list(dm) + [[]] * 4
    z = lambda first: '0' if first else None
    if g == 0:
        q = lambda j: mfma32(AC_Q, p1_frag(0, j, 0), X(n, j), z(n == 0 and j == 0))
        k_ = lambda j: mfma32(AC_K, p1_frag(0, j, 1), X(n, j), z(n == 0 and j == 0))
        run_gaps(a, [w(0), q(0), rb[0][:3], S(0, 0),
                     k_(0), rb[0][3:], S(0, 1),
                     mfma16(vCS0, p1_frag(0, 0, 0), vSEL, z(n == 0)), d[0],
                     mfma16(vCS1, p1_frag(0, 0, 1), vSEL, z(n == 0)), rb[1][:3],
                     w(1), q(1), rb[1][3:], S(1, 0),
                     k_(1), d[1], S(1, 1)])
    else:
        v_ = lambda j: mfma32(AC_Q, X(n, j), p1_frag(1, j, 0), z(n == 0 and j == 0))
        run_gaps(a, [w(0), v_(0), rb[0], S(0, 0),
                     mfma16(vCS0, p1_frag(1, 0, 0), vSEL, z(n == 0)), d[0], S(0, 1), sx16(n, 0),
                     w(1), v_(1), rb[1], S(1, 0), sx16(n, 1), d[1], S(1, 1)])


def stage_head(a, n, g):
    a.wait_vm(f'c{n}')
    if n in PREBAR:
        PREBAR[n](a, g)
    a('s_barrier')
    if n in HOOKS:
        HOOKS[n](a, g)


def p1_stage(a, n, g):
    a.comment(f'--- P1 stage {n} g={g}')
    if OPT.get('dep', 3) == 4:
        a.wait_lg()
    stage_head(a, n, g)
    k1.rebase(a, [aX + j for j in range(4)], n)
    dm = [d for c in SCHED[n] for d in dma_ops(a, c, g)]
    db, da = k1.split_dma(dm, g, True)
    nb_ = OPT.get('db0' if g == 0 else 'db1')
    if nb_ is not None:
        db, da = dm[:nb_], dm[nb_:]
    two = lambda l: [l[:(len(l) + 1) // 2], l[(len(l) + 1) // 2:]]
    ra = [p1_read_ops(a, n, g, 0), p1_read_ops(a, n, g, 1)]
    if n > 0:
        p1_b_phase(a, n - 1, g, ra, two(db))
    else:
        run_gaps(a, ra)
        da = db + da
    da = two(da)
    rb = [p1_read_ops(a, n, g, 2), p1_read_ops(a, n, g, 3)]
    p1_a_phase(a, n, g, rb, da)


def e1a(a, g, dmas, prebar=None):
    a.comment(f'--- P1 epilogue g={g}')
    dmas = list(dmas)
    nxt = lambda: dmas.pop(0)() if dmas else None
    p1_b_phase(a, 7, g, [[], []], [])
    t = BUFA
    a(f'''
v_add_f32 v{vSQ0}, v{vSQ0}, v{vSQ1}
v_and_b32 v{t}, 31, v0
v_lshlrev_b32 v{t + 1}, 4, v{t}
s_lshl_b32 s{sT0}, s{sTT}, 9
s_add_u32 s{sT0}, s{sT0}, {ST}
v_add_u32 v{t + 1}, s{sT0}, v{t + 1}
v_lshrrev_b32 v{t + 2}, 5, v0
v_lshlrev_b32 v{t + 2}, 2, v{t + 2}
v_add3_u32 v{t + 2}, v{t + 2}, v{t + 1}, {8 * g}
''')
    a.ds(f'ds_write_b32 v{t + 2}, v{vSQ0}', 'w')
    run_gaps(a, [cs_write_ops(a, [(vCS0, 0), (vCS1, 512)] if g == 0 else [(vCS0, 1024)], sx=(g == 1))])
    a(f'''
v_lshlrev_b32 v{t + 2}, 2, v{t}
s_lshl_b32 s{sT0}, s{sTT}, 7
s_add_u32 s{sT0}, s{sT0}, {SXB}
v_add_u32 v{t + 2}, s{sT0}, v{t + 2}
v_lshlrev_b32 v{t + 3}, 4, v{t}
v_add_u32 v{t + 3}, {CSP}, v{t + 3}
''')
    if g == 0:
        a(f'''
v_lshrrev_b32 v{t}, 5, v0
v_lshlrev_b32 v{t}, 9, v{t}
v_add_u32 v{t + 3}, v{t + 3}, v{t}
''')
    a.wait_lg()
    if prebar:
        prebar(a, g)
    a('s_barrier')
    a.ds(f'ds_read_b128 v[{t + 4}:{t + 7}], v{t + 1}', 's')
    a.ds(f'ds_read_b32 v{t + 12}, v{t + 2}', 's')
    a.ds(f'ds_read_b128 v[{t + 8}:{t + 11}], v{t + 3} offset:{0 if g == 0 else 1024}', 'c')
    prep_issue(a)
    a(f'''
v_and_b32 v{vTMP + 2}, 31, v0
v_and_b32 v{vTMP + 3}, 19, v{vTMP + 2}
v_bfe_u32 v{vCS0}, v0, 2, 1
v_lshlrev_b32 v{vCS0}, 3, v{vCS0}
v_bfe_u32 v{vCS0 + 1}, v0, 3, 1
v_lshlrev_b32 v{vCS0 + 1}, 2, v{vCS0 + 1}
v_add3_u32 v{vTMP + 3}, v{vTMP + 3}, v{vCS0}, v{vCS0 + 1}
v_lshlrev_b32 v{vTMP + 3}, 1, v{vTMP + 3}
s_lshl_b32 s{sT0}, s{sG}, 1
s_add_u32 s{sT0}, s{sT0}, s{sF0}
s_lshl_b32 s{sT0}, s{sT0}, 6
s_add_u32 s{sT1}, s{sT0}, s{sPB}
''')
    a.vmem(f'buffer_load_ushort v{vB1A}, v{vTMP + 3}, {srd(S_B1)}, s{sT0} offen', 'b1')
    a.vmem(f'buffer_load_ushort v{vB1B}, v{vTMP + 3}, {srd(S_B1)}, s{sT1} offen', 'b1')
    a.wait_lg('s')
    a(f'''
v_add_f32 v{t + 4}, v{t + 4}, v{t + 5}
v_add_f32 v{t + 6}, v{t + 6}, v{t + 7}
v_mul_f32 v{vM}, {fl(1 / 512)}, v{t + 12}
v_add_f32 v{t + 4}, v{t + 4}, v{t + 6}
v_mul_f32 v{t + 4}, {fl(1 / 512)}, v{t + 4}
v_fma_f32 v{t + 4}, -v{vM}, v{vM}, v{t + 4}
v_max_f32 v{t + 4}, 0, v{t + 4}
v_add_f32 v{t + 5}, {fl(1e-5)}, v{t + 4}
v_rsq_f32 v{vR}, v{t + 5}
''')
    nxt()
    a.wait_lg('c')
    a(f'''
v_add_f32 v{t + 8}, v{t + 8}, v{t + 9}
v_add_f32 v{t + 10}, v{t + 10}, v{t + 11}
v_mul_f32 v{t + 5}, v{vR}, v{vR}
v_mul_f32 v{t + 5}, v{t + 5}, v{t + 4}
v_add_f32 v{t + 5}, {fl(1e-5)}, v{t + 5}
v_rsq_f32 v{t + 5}, v{t + 5}
v_add_f32 v{t + 8}, v{t + 8}, v{t + 10}
s_lshl_b32 s{sT0}, s{sW}, 8
s_add_u32 s{sT0}, s{sT0}, {SCR}
v_lshlrev_b32 v{vSCW}, 2, v0
v_add_u32 v{vSCW}, s{sT0}, v{vSCW}
v_lshrrev_b32 v{vSCR}, 5, v0
v_lshlrev_b32 v{vSCR}, 4, v{vSCR}
v_add_u32 v{vSCR}, s{sT0}, v{vSCR}
v_mul_f32 v{vRR}, v{vR}, v{t + 5}
v_mul_f32 v{vMRR}, v{vM}, v{vRR}
''')
    if g == 0:
        a.ds(f'ds_write_b32 v{vSCW}, v{t + 8}', 'w')
        a(f'v_mul_f32 v{vQS}, {fl(C_Q)}, v{vR}')
    else:
        a(f'''
v_mul_f32 v{t + 9}, v{vM}, v{vR}
v_cmp_gt_u32 vcc, 32, v0
v_cndmask_b32 v{t + 9}, v{t + 9}, v{vR}, vcc
''')
        a.ds(f'ds_write_b32 v{vSCW}, v{t + 9}', 'w')
        a(f'''
v_mov_b32 v{vCSV}, v{t + 8}
v_bfe_u32 v{vQS}, v0, 4, 1
v_lshlrev_b32 v{vQS}, 17, v{vQS}
v_and_b32 v{t + 3}, 15, v0
v_lshlrev_b32 v{t + 3}, 4, v{t + 3}
v_add_u32 v{vQS}, v{vQS}, v{t + 3}
v_lshrrev_b32 v{t + 3}, 5, v0
v_lshlrev_b32 v{t + 3}, 8, v{t + 3}
v_add_u32 v{vQS}, v{vQS}, v{t + 3}
''')
    nxt()
    a(f'''
s_lshl_b32 s{sT0}, s{sHP}, 17
s_lshl_b32 s{sT1}, s{sT}, 10
s_add_u32 s{sQO}, s{sT0}, s{sT1}
s_lshl_b32 s{sT0}, s{sHP}, 18
s_lshl_b32 s{sT1}, s{sT}, 11
s_add_u32 s{sKO}, s{sT0}, s{sT1}
s_add_u32 s{sKO}, s{sKO}, {KV}
s_lshl_b32 s{sT0}, s{sG}, 13
s_sub_u32 s{sT0}, s{sT0}, {WR}
''')
    for j in range(4):
        a(f'v_add_u32 v{aW + j}, s{sT0}, v{aW + j}')
    for j in range(4):
        a(f'v_add_u32 v{aWH + j}, 0x10000, v{aW + j}')
    while dmas:
        nxt()


def e1b_ops(a, g):
    SC = k1.SC
    ops = []
    if g == 0:
        quads = [(p, qd) for p in (0, 1) for qd in range(4)]
        rd = lambda i: (lambda: a.ds(f'ds_read_b128 v[{QT + 4 * (i % 2)}:{QT + 4 * (i % 2) + 3}], v{vSCR} '
                                     f'offset:{quads[i][0] * 128 + quads[i][1] * 32}', f'eq{i}'))
        ops += [rd(0), rd(1)]
        for i, (p, qd) in enumerate(quads):
            acc = AC_Q if p == 0 else AC_K
            sc = vQS if p == 0 else vR
            T = QT + 4 * (i % 2)
            R = [acc + 4 * qd + e for e in range(4)]
            ops.append(lambda i=i: a.wait_lg(f'eq{i}'))
            ops += [f'v_fma_f32 v{R[e]}, -v{vM}, v{T + e}, v{R[e]}' for e in range(4)]
            if i + 2 < 8:
                ops.append(rd(i + 2))
            ops += [f'v_mul_f32 v{R[e]}, v{sc}, v{R[e]}' for e in range(4)]
            ops.append(f'v_cvt_pk_bf16_f32 v{acc + 2 * qd}, v{R[0]}, v{R[1]}')
            ops.append(f'v_cvt_pk_bf16_f32 v{acc + 2 * qd + 1}, v{R[2]}, v{R[3]}')
            if qd in (1, 3):
                half = qd // 2
                so, delta = (sQO, 65536) if p == 0 else (sKO, 131072)

                def stf(acc=acc, half=half, so=so, delta=delta):
                    if half == 0:
                        s_ = f's{so}'
                    else:
                        a(f's_add_u32 s{sT2}, s{so}, {delta}')
                        s_ = f's{sT2}'
                    a.vmem(f'buffer_store_dwordx4 v[{acc + 4 * half}:{acc + 4 * half + 3}], v{vL16}, {srd(S_WS)}, '
                           f'{s_} offen{SC}', 'st')
                ops.append(stf)
    else:
        acc = AC_Q
        T = lambda i: (QT, QT2)[i % 2]

        def rd(i):
            def f():
                a.ds(f'ds_read_b128 v[{T(i)}:{T(i) + 3}], v{vSCR} offset:{i * 32}', f'eq{i}')
                a.ds(f'ds_read_b128 v[{T(i) + 4}:{T(i) + 7}], v{vSCR} offset:{128 + i * 32}', f'eq{i}')
            return f
        ops += [rd(0), rd(1)]
        for qd in range(4):
            R = [acc + 4 * qd + e for e in range(4)]
            t = T(qd)
            ops.append(lambda qd=qd: a.wait_lg(f'eq{qd}'))
            ops += [f'v_mul_f32 v{t + 4 + e}, v{vCSV}, v{t + 4 + e}' for e in range(4)]
            ops += [f'v_fma_f32 v{R[e]}, v{R[e]}, v{t + e}, -v{t + 4 + e}' for e in range(4)]
            if qd + 2 < 4:
                ops.append(rd(qd + 2))
            ops.append(f'v_cvt_pk_bf16_f32 v{acc + 2 * qd}, v{R[0]}, v{R[1]}')
            ops.append(f'v_cvt_pk_bf16_f32 v{acc + 2 * qd + 1}, v{R[2]}, v{R[3]}')
            if qd in (1, 3):
                half = qd // 2
                ops.append(lambda half=half: a.vmem(
                    f'buffer_store_dwordx4 v[{acc + 4 * half}:{acc + 4 * half + 3}], v{vQS}, {srd(S_WS)}, '
                    f's{sKO} offen offset:{1024 + 512 * half}{SC}', 'st'))
    return ops


def p2_read_ops(a, n, p):
    pos = P2POS[n] + (p // 4) * 4096
    base = aW if pos < 65536 else aWH
    off = pos % 65536
    d = p2_frag(p)
    tag = f'P{n}_{p}'
    return [lambda: a.ds(f'ds_read_b64_tr_b16 v[{d}:{d + 1}], v{base + p % 4} offset:{off}', tag),
            lambda: a.ds(f'ds_read_b64_tr_b16 v[{d + 2}:{d + 3}], v{base + p % 4} offset:{off + 256}', tag)]


def p2_b_phase(a, n, ra, fill):
    w = lambda p: (lambda: a.wait_lg(f'P{n}_{p}'))
    for i, p in enumerate(P2B):
        run_gaps(a, [w(p), p2_mfma(n, p), ra[i], fill[i]])


def p2_a_phase(a, n, rb, fill):
    w = lambda p: (lambda: a.wait_lg(f'P{n}_{p}'))
    for i, p in enumerate(P2A):
        run_gaps(a, [w(p), p2_mfma(n, p), rb[i], fill[i]])
        if p in (0, 4):
            a(p2_m16(n, p))


def p2_stage(a, n, g, fill):
    a.comment(f'--- P2 stage {n} g={g}')
    if n == 12:
        a.wait_lg('w')
    stage_head(a, n, g)
    ra = [p2_read_ops(a, n, p) for p in P2A]
    if n > 8:
        p2_b_phase(a, n - 1, ra, fill[:4])
    else:
        run_gaps(a, [[x for pair in zip(ra, fill[:4]) for y in pair for x in y]])
    rb = [p2_read_ops(a, n, p) for p in P2B]
    p2_a_phase(a, n, rb, fill[4:])


GT = 80


def gelu_prep(a, g, pas):
    pi = 3 + 2 * g + pas
    b1 = vB1A if pas == 0 else vB1B
    t = vCS0
    return [f'v_and_b32 v{t + 4}, 31, v0',
            f'v_lshlrev_b32 v{t + 4}, 4, v{t + 4}',
            f'v_add_u32 v{t + 4}, {CSP}, v{t + 4}',
            lambda: a.ds(f'ds_read_b128 v[{t}:{t + 3}], v{t + 4} offset:{pi * 512}', 'gc'),
            f'v_lshlrev_b32 v{t + 4}, 16, v{b1}',
            f'v_cmp_gt_u32 vcc, 32, v0',
            lambda: a.wait_lg('gc'),
            f'v_add_f32 v{t}, v{t}, v{t + 1}',
            f'v_add_f32 v{t + 2}, v{t + 2}, v{t + 3}',
            f'v_add_f32 v{t}, v{t}, v{t + 2}',
            f'v_cndmask_b32 v{t}, v{t + 4}, v{t}, vcc',
            lambda: a.ds(f'ds_write_b32 v{vSCW}, v{t}', 'w')]


def gelu_quad(a, acc, q, tag):
    cs, b, u, w = [[GT + 4 * k + e for e in range(4)] for k in range(4)]
    R = [acc + 4 * q + e for e in range(4)]
    rd = [lambda: a.ds(f'ds_read_b128 v[{cs[0]}:{cs[3]}], v{vSCR} offset:{q * 32}', tag),
          lambda: a.ds(f'ds_read_b128 v[{b[0]}:{b[3]}], v{vSCR} offset:{128 + q * 32}', tag)]
    ops = [lambda: a.wait_lg(tag)]
    ops += [f'v_fma_f32 v{b[e]}, -v{vMRR}, v{cs[e]}, v{b[e]}' for e in range(4)]
    ops += [f'v_fma_f32 v{R[e]}, v{vRR}, v{R[e]}, v{b[e]}' for e in range(4)]
    body = [f'v_mul_f32 v{u[e]}, v{R[e]}, v{R[e]}' for e in range(4)]
    body += [f'v_fma_f32 v{u[e]}, v{u[e]}, s{sC2}, v{vTMP + 2}' for e in range(4)]
    body += [f'v_mul_f32 v{u[e]}, v{u[e]}, v{R[e]}' for e in range(4)]
    body += [f'v_exp_f32 v{w[e]}, v{u[e]}' for e in range(4)]
    body += [f'v_add_f32 v{w[e]}, 1.0, v{w[e]}' for e in range(4)]
    body += [f'v_rcp_f32 v{w[e]}, v{w[e]}' for e in range(4)]
    body += [f'v_mul_f32 v{R[e]}, v{R[e]}, v{w[e]}' for e in range(4)]
    body.append(f'v_cvt_pk_bf16_f32 v{acc + 2 * q}, v{R[0]}, v{R[1]}')
    body.append(f'v_cvt_pk_bf16_f32 v{acc + 2 * q + 1}, v{R[2]}, v{R[3]}')
    return rd, ops, body


def gelu_consts():
    return [f's_mov_b32 s{sC2}, {fl(C2)}', f'v_mov_b32 v{vTMP + 2}, {fl(C1)}']


def gelu_tile_ops(a, acc, tagp):
    out = []
    rds = [gelu_quad(a, acc, q, f'{tagp}{q}') for q in range(4)]
    out += rds[0][0]
    per = []
    for q in range(4):
        rd, head, body = rds[q]
        seq = list(head)
        if q + 1 < 4:
            seq += rds[q + 1][0]
        seq += body
        per.append(seq)
    return out, per


def h_store(a, g, pas, tag):
    acc = AC_A if pas == 0 else AC_B
    a(f'''
s_mul_i32 s{sHO}, s{sT}, 112
s_lshl_b32 s{sT0}, s{sG}, 1
s_add_u32 s{sT0}, s{sT0}, s{sF0}
s_add_u32 s{sT0}, s{sT0}, {pas}
s_lshl_b32 s{sT0}, s{sT0}, 1
s_add_u32 s{sHO}, s{sHO}, s{sT0}
s_lshl_b32 s{sHO}, s{sHO}, 10
s_add_u32 s{sHO}, s{sHO}, {HF}
''')
    a.vmem(f'buffer_store_dwordx4 v[{acc}:{acc + 3}], v{vL16}, {srd(S_WS)}, s{sHO} offen{k1.SC}', tag)
    a.vmem(f'buffer_store_dwordx4 v[{acc + 4}:{acc + 7}], v{vL16}, {srd(S_WS)}, s{sHO} offen offset:1024{k1.SC}', tag)


vPO2 = 47


def prep_issue(a):
    a.comment('prep DMA')
    lbl = a.newlabel('prep_wo')
    lbl2 = a.newlabel('prep_j')
    a(f'''
v_lshrrev_b32 v{vTMP}, 2, v0
v_lshlrev_b32 v{vTMP}, 10, v{vTMP}
v_and_b32 v{vTMP + 1}, 3, v0
v_lshlrev_b32 v{vTMP + 1}, 4, v{vTMP + 1}
s_and_b32 s{sT0}, s2, 1
s_lshl_b32 s{sT0}, s{sT0}, 3
s_add_u32 s{sT0}, s{sT0}, s{sW}
s_lshl_b32 s{sT0}, s{sT0}, 6
v_add3_u32 v{vTMP}, v{vTMP}, v{vTMP + 1}, s{sT0}
s_lshr_b32 s{k1.sPS}, s2, 1
s_lshl_b32 s{sT1}, s{sW}, 10
s_add_u32 m0, s{sT1}, {WR}
s_lshl_b32 s{sT2}, s{k1.sPS}, 14
s_cmp_ge_u32 s2, 224
s_cbranch_scc1 {lbl}
''')
    a.vmem(f'buffer_load_dwordx4 v{vTMP}, {srd(S_W2)}, s{sT2} offen lds', 'prep')
    a(f's_branch {lbl2}')
    a.label(lbl)
    a(f's_sub_u32 s{sT2}, s{sT2}, {112 * 16384}')
    a(f'buffer_load_dwordx4 v{vTMP}, {srd(S_WO)}, s{sT2} offen lds')
    a.label(lbl2)
    a(f'''
s_cmp_ge_u32 s2, 32
s_cselect_b32 s{k1.sPF}, 0x40000000, 0
s_lshr_b32 s{sT2}, s2, 1
s_add_u32 s{sT2}, s{sT2}, 16
s_lshl_b32 s{sT2}, s{sT2}, 14
s_add_u32 m0, s{sT1}, {WR + 8192}
v_add_u32 v{vTMP}, s{k1.sPF}, v{vTMP}
''')
    a.vmem(f'buffer_load_dwordx4 v{vTMP}, {srd(S_WO)}, s{sT2} offen lds', 'prep')


def prep_finish_ops(a, tag):
    t = 80
    SC = k1.SC

    def body(r):
        r(f'''
v_lshrrev_b32 v{t}, 5, v0
v_lshlrev_b32 v{t}, 9, v{t}
v_bfe_u32 v{t + 1}, v0, 2, 2
v_lshlrev_b32 v{t + 1}, 6, v{t + 1}
v_add_u32 v{t}, v{t}, v{t + 1}
v_bfe_u32 v{t + 1}, v0, 4, 1
v_lshlrev_b32 v{t + 1}, 5, v{t + 1}
v_add_u32 v{t}, v{t}, v{t + 1}
v_and_b32 v{t + 1}, 3, v0
v_lshlrev_b32 v{t + 1}, 3, v{t + 1}
s_lshl_b32 s{sT0}, s{sW}, 10
s_add_u32 s{sT0}, s{sT0}, {WR}
v_add3_u32 v{t}, v{t}, v{t + 1}, s{sT0}
v_add_u32 v{t + 2}, s{k1.sPF}, v{vL16}
''')
    addr = record(a, body)

    def rd(r):
        r.wait_vm('prep')
        r.ds(f'ds_read_b64_tr_b16 v[{t + 4}:{t + 5}], v{t}', 'pp')
        r.ds(f'ds_read_b64_tr_b16 v[{t + 6}:{t + 7}], v{t} offset:256', 'pp')
        r.ds(f'ds_read_b64_tr_b16 v[{t + 8}:{t + 9}], v{t} offset:8192', 'pp')
        r.ds(f'ds_read_b64_tr_b16 v[{t + 10}:{t + 11}], v{t} offset:{8192 + 256}', 'pp')
    reads = record(a, rd)

    def stf(r):
        r(f'''
s_lshl_b32 s{k1.sPS}, s2, 3
s_add_u32 s{k1.sPS}, s{k1.sPS}, s{sW}
s_lshl_b32 s{k1.sPS}, s{k1.sPS}, 10
s_add_u32 s{k1.sPS}, s{k1.sPS}, {WF}
''')
        r.wait_lg('pp')
        r.vmem(f'buffer_store_dwordx4 v[{t + 4}:{t + 7}], v{vL16}, {srd(S_WS)}, s{k1.sPS} offen{SC}', tag)
        r(f's_add_u32 s{k1.sPS}, s{k1.sPS}, {2048 * 1024}')
        r.vmem(f'buffer_store_dwordx4 v[{t + 8}:{t + 11}], v{t + 2}, {srd(S_WS)}, s{k1.sPS} offen{SC}', tag)
    stores = record(a, stf)
    return addr, reads, stores
```

```python
from common import *
import k1
from k1 import fl

KM_LDS = 163840
LCNT = 163824
RED = 0
OB = 131072
FA = FL
FB = FL + 4096
FH = FL + 8192
LOG2E = 1.4426950408889634
SPIN = 20000

sT0, sT1, sT2, sT3 = 52, 53, 54, 55
sH, sTQ, sSRC, sMD = 20, 21, 22, 23
sTILE, sCG, sOF, sOP = 24, 25, 26, 27
sHS, sWSRC, sWO, sSPIN = 8, 9, 10, 11
sVM = 94
sCT, sKH = sTT, sG

vL16 = 1
aK0, aK1, aV0, aV1 = 2, 3, 4, 5
vT = 6
RQ, RK, RV0, RV1, RP = 12, 16, 20, 24, 28
NEGM = 36
RS = (52, 68)
RO = 84
ACC = 100
RING = 164
vX, vB2, vXO = 228, 232, 236
vG, vS = 240, 248
OP = 52

OPT = dict(u0=28, D=11, fbsig=5, prio=None, b2=24, kvpre=8, nofb=False)


def spin(a, site, load, check_ok):
    ok = a.newlabel('ok')
    lp = a.newlabel('spin')
    check_ok(ok)
    a(f's_mov_b32 s{sSPIN}, {SPIN}')
    a.label(lp)
    a('s_sleep 1')
    load()
    a('s_waitcnt vmcnt(0)')
    check_ok(ok)
    a(f's_sub_u32 s{sSPIN}, s{sSPIN}, 1')
    a(f's_cmp_lg_u32 s{sSPIN}, 0')
    a(f's_cbranch_scc1 {lp}')
    a(f'v_mov_b32 v{vT}, {site}')
    a(f'buffer_store_dword v{vT}, off, {srd(S_DBG)}, 0 offset:{4 * site}')
    a.label(ok)


def one_lane_store(a, reg, srdn, soff, val=1):
    a('s_mov_b64 exec, 1')
    a(f'v_mov_b32 v{reg}, {val}')
    a(f'buffer_store_dword v{reg}, off, {srd(srdn)}, {soff} sc1')
    a('s_mov_b64 exec, -1')


def start_extra(a):
    lbl = a.newlabel('noinit')
    a(f'''
v_mov_b32 v20, 0
v_mov_b32 v21, 0
v_mov_b32 v22, 0
v_mov_b32 v23, 0
v_mov_b32 v24, {LCNT}
''')
    a.ds('ds_write_b32 v24, v20', 'w')
    a(f'''
s_or_b32 s{sT0}, s2, s{sW}
s_cmp_lg_u32 s{sT0}, 0
s_cbranch_scc1 {lbl}
v_lshrrev_b32 v1, 2, v0
v_lshlrev_b32 v1, 8, v1
v_and_b32 v2, 3, v0
v_lshlrev_b32 v2, 4, v2
v_add_u32 v1, v1, v2
s_mov_b32 s{sT0}, {FA}
s_mov_b32 s{sT1}, {FB}
s_mov_b32 s{sT2}, {FH}
buffer_store_dwordx4 v[20:23], v1, {srd(S_WS)}, s{sT0} offen sc1
buffer_store_dwordx4 v[20:23], v1, {srd(S_WS)}, s{sT1} offen sc1
buffer_store_dwordx4 v[20:23], v1, {srd(S_WS)}, s{sT2} offen sc1
''')
    a.label(lbl)


def prefetch(a):
    pf = OPT['pf']
    a(f'''
s_lshl_b32 s{sT0}, s2, 3
s_add_u32 s{sT0}, s{sT0}, s{sW}
v_lshlrev_b32 v48, 4, v0
''')
    if pf & 1:
        a(f's_mul_i32 s{sT1}, s{sT0}, 768')
        a.vmem(f'buffer_load_dwordx4 v[52:55], v48, {srd(S_WQ)}, s{sT1} offen', 'pf')
    if pf & 2:
        a(f's_mul_i32 s{sT1}, s{sT0}, 896')
        a.vmem(f'buffer_load_dwordx4 v[56:59], v48, {srd(S_W1)}, s{sT1} offen', 'pf')
    if pf & 4:
        a(f's_lshl_b32 s{sT1}, s{sT0}, 10')
        a.vmem(f'buffer_load_dwordx4 v[60:63], v48, {srd(S_X)}, s{sT1} offen', 'pf')
    if pf & 8:
        a(f's_mul_i32 s{sT1}, s{sT0}, 896')
        a.vmem(f'buffer_load_dwordx4 v[56:59], v48, {srd(S_W2)}, s{sT1} offen', 'pf')
        a(f's_lshl_b32 s{sT1}, s{sT0}, 8')
        a.vmem(f'buffer_load_dword v60, v48, {srd(S_WO)}, s{sT1} offen', 'pf')


def hook0(a, g):
    st(a, 'c0')
    if g != 0:
        return
    lbl = a.newlabel('noinit2')
    a(f'''
s_or_b32 s{sT0}, s2, s{sW}
s_cmp_lg_u32 s{sT0}, 0
s_cbranch_scc1 {lbl}
''')
    one_lane_store(a, 20, S_DBG, 0)
    a.label(lbl)


def hook8(a, g, poi=92, tag='st'):
    a(f'''
s_lshl_b32 s{sT0}, s{sXCD}, 2
s_lshr_b32 s{sCG}, s{sSLOT}, 3
s_add_u32 s{sH}, s{sT0}, s{sCG}
s_and_b32 s{sT1}, s{sSLOT}, 7
s_lshl_b32 s{sTQ}, s{sT1}, 3
s_add_u32 s{sTQ}, s{sTQ}, s{sW}
s_lshl_b32 s{sMD}, s{sW}, 10
s_lshl_b32 s{sSRC}, s{sH}, 17
s_add_u32 s{sSRC}, s{sSRC}, {KV}
s_add_u32 s{sSRC}, s{sSRC}, s{sMD}
s_lshl_b32 s{sOF}, s{sTQ}, 5
s_add_u32 s{sOF}, s{sOF}, s{sH}
s_lshl_b32 s{sOF}, s{sOF}, 10
s_add_u32 s{sOF}, s{sOF}, {OF}
s_lshl_b32 s{sT0}, s{sXCD}, 3
s_add_u32 s{sTILE}, s{sT0}, s{sT1}
s_lshl_b32 s{sOP}, s{sTILE}, 3
s_add_u32 s{sOP}, s{sOP}, s{sW}
s_lshl_b32 s{sOP}, s{sOP}, 12
s_add_u32 s{sOP}, s{sOP}, {OF}
s_mul_i32 s{sT0}, s{sW}, 14
s_mul_i32 s{sHS}, s{sTILE}, 112
s_add_u32 s{sHS}, s{sHS}, s{sT0}
s_lshl_b32 s{sHS}, s{sHS}, 10
s_add_u32 s{sHS}, s{sHS}, {HF}
s_lshl_b32 s{sWSRC}, s{sT0}, 4
s_lshl_b32 s{sT1}, s{sCG}, 2
s_add_u32 s{sWSRC}, s{sWSRC}, s{sT1}
s_lshl_b32 s{sWSRC}, s{sWSRC}, 10
s_add_u32 s{sWSRC}, s{sWSRC}, {WF}
s_lshl_b32 s{sWO}, s{sKH}, 4
s_add_u32 s{sWO}, s{sWO}, 112
s_lshl_b32 s{sWO}, s{sWO}, 4
s_add_u32 s{sWO}, s{sWO}, s{sT1}
s_add_u32 s{sWO}, s{sWO}, s{sCT}
s_lshl_b32 s{sWO}, s{sWO}, 10
s_add_u32 s{sWO}, s{sWO}, {WF}
v_mov_b32 v{poi}, -1
v_mov_b32 v{poi + 1}, -1
v_mov_b32 v{poi + 2}, -1
v_mov_b32 v{poi + 3}, -1
''')
    a.vmem(f'buffer_store_dwordx4 v[{poi}:{poi + 3}], v{vL16}, {srd(S_WS)}, s{sOF} offen sc1', tag)


def ini_load(a):
    return f'buffer_load_dword v92, off, {srd(S_DBG)}, 0 sc1'


def hook9(a, g):
    a.vmem(ini_load(a), 'ini')


def prebar11(a, g):
    a.wait_vm('ini')

    def chk(ok):
        a('v_cmp_eq_u32 vcc, 1, v92')
        a(f's_cbranch_vccnz {ok}')
    spin(a, 1, lambda: a(ini_load(a)), chk)


def hook11(a, g):
    if g == 0:
        lbl = a.newlabel('nofa')
        a(f'''
s_cmp_lg_u32 s{sW}, 0
s_cbranch_scc1 {lbl}
s_lshl_b32 s{sT0}, s{k1.sHP}, 8
s_lshl_b32 s{sT1}, s{k1.sTB}, 2
s_add_u32 s{sT0}, s{sT0}, s{sT1}
s_add_u32 s{sT0}, s{sT0}, {FA}
''')
        one_lane_store(a, 92, S_WS, f's{sT0}')
        a.label(lbl)
    k1.prep_finish(a)


def hook14(a, g):
    if g == 0:
        lbl = a.newlabel('nofw')
        a(f'''
s_cmp_lg_u32 s{sW}, 0
s_cbranch_scc1 {lbl}
s_lshr_b32 s{sT0}, s2, 4
s_lshl_b32 s{sT0}, s{sT0}, 8
s_and_b32 s{sT1}, s2, 15
s_lshl_b32 s{sT1}, s{sT1}, 2
s_add_u32 s{sT0}, s{sT0}, s{sT1}
s_add_u32 s{sT0}, s{sT0}, {FB}
''')
        one_lane_store(a, 92, S_WS, f's{sT0}')
        a.label(lbl)


def fa_load():
    return f'buffer_load_dword v93, v94, {srd(S_WS)}, s{sSPIN - 0 if False else sT1} offen sc1'


def fa_addr(a):
    a(f'''
s_lshr_b32 s{sT1}, s{sH}, 1
s_lshl_b32 s{sT1}, s{sT1}, 8
s_add_u32 s{sT1}, s{sT1}, {FA}
''')


def hook15(a, g):
    a('v_and_b32 v94, 15, v0')
    a('v_lshlrev_b32 v94, 2, v94')
    fa_addr(a)
    a.vmem(fa_load(), 'fa')


def fa_check(a):
    def chk(ok):
        a('v_cmp_ne_u32 vcc, 1, v93')
        a(f's_cbranch_vccz {ok}')

    def ld():
        fa_addr(a)
        a(fa_load())
    spin(a, 2, ld, chk)


def kv_dma(a, i):
    def f():
        a(f's_add_u32 m0, s{sMD}, {i * 8192}')
        a(f's_add_u32 s{sT2}, s{sSRC}, {i * 8192}')
        a.vmem(f'buffer_load_dwordx4 v{vL16}, {srd(S_WS)}, s{sT2} offen sc1 lds', f'kv{i}')
    return f


def q_load(a):
    def f():
        a(f'''
s_lshl_b32 s{sT2}, s{sH}, 6
s_add_u32 s{sT2}, s{sT2}, s{sTQ}
s_lshl_b32 s{sT2}, s{sT2}, 10
''')
        a.vmem(f'buffer_load_dwordx4 v[{RQ}:{RQ + 3}], v{vL16}, {srd(S_WS)}, s{sT2} offen sc1', 'q')
    return f


def k_read(a, t):
    ar, off = (aK0, t * 2048) if t < 32 else (aK1, (t - 32) * 2048)
    a.ds(f'ds_read_b128 v[{RK}:{RK + 3}], v{ar} offset:{off}', f'K{t}')


def v_reads(a, items):
    a(f's_mov_b64 exec, s[{sVM}:{sVM + 1}]')
    for part, t in items:
        ar, off = (aV0, t * 2048) if t < 32 else (aV1, (t - 32) * 2048)
        r = RV0 if part == 0 else RV1
        a.ds(f'ds_read_b128 v[{r}:{r + 3}], v{ar} offset:{off + part * 512}', f'V{part}_{t}')
    a('s_mov_b64 exec, -1')


def run(a, items):
    for it in items:
        emit(a, it)


def attn_step(a, t, nt, ev, mf, pre):
    S, Sn = RS[t % 2], RS[(t + 1) % 2]
    ex = [f'v_exp_f32 v{S + i}, v{S + i}' for i in range(16)]
    cv = [f'v_cvt_pk_bf16_f32 v{RP + i}, v{S + 2 * i}, v{S + 2 * i + 1}' for i in range(8)]
    run(a, pre.get(t, []))
    if t + 1 < nt:
        a.wait_lg(f'K{t + 1}')
        a(mfma32(Sn, RK, RQ, NEGM))
        if t + 2 < nt:
            k_read(a, t + 2)
    run(a, ev.get(2 * t, []))
    run(a, (ex[0], ex[1], ex[2], ex[3]))
    run(a, mf.get(2 * t, []))
    run(a, (cv[0], ex[4], ex[5], cv[1]))
    if t > 0:
        a.wait_lg(f'V1_{t - 1}')
        a(mfma32(RO, RV1, RP + 4, RO))
    run(a, (ex[6], ex[7], cv[2], ex[8], ex[9], cv[3], ex[10], ex[11]))
    a.wait_lg(f'V0_{t}')
    a(mfma32(RO, RV0, RP, '0' if t == 0 else RO))
    items = [(1, t)]
    if t + 1 < nt:
        items.append((0, t + 1))
    v_reads(a, items)
    run(a, ev.get(2 * t + 1, []))
    run(a, (cv[4], ex[12], ex[13], cv[5]))
    run(a, mf.get(2 * t + 1, []))
    run(a, (ex[14], ex[15], cv[6], cv[7]))


def row_max(a, S, dst, tmp):
    a(f'v_max3_f32 v{dst}, v{S}, v{S + 1}, v{S + 2}')
    a(f'v_max3_f32 v{tmp}, v{S + 3}, v{S + 4}, v{S + 5}')
    a(f'v_max3_f32 v{dst}, v{dst}, v{S + 6}, v{S + 7}')
    a(f'v_max3_f32 v{tmp}, v{tmp}, v{S + 8}, v{S + 9}')
    a(f'v_max3_f32 v{dst}, v{dst}, v{S + 10}, v{S + 11}')
    a(f'v_max3_f32 v{tmp}, v{tmp}, v{S + 12}, v{S + 13}')
    a(f'v_max3_f32 v{dst}, v{dst}, v{S + 14}, v{S + 15}')
    a(f'v_max_f32 v{dst}, v{dst}, v{tmp}')
    a(f'v_mov_b32 v{tmp}, v{dst}')
    a(f'v_permlane32_swap_b32 v{dst}, v{tmp}')
    a(f'v_max_f32 v{dst}, v{dst}, v{tmp}')


def fallback(a, done_label):
    a.comment('--- fallback: online softmax with the running true maximum')
    loop = a.newlabel('fb_loop')
    S = RS[0]
    vm, vmn, val, va, vb = vT, vT + 1, vT + 2, vT + 3, vT + 4
    a(f'v_mov_b32 v{vm}, 0xff800000')
    for i in range(16):
        a(f'v_mov_b32 v{RO + i}, 0')
    a(f'v_mov_b32 v{va}, v{aK0}')
    a(f'v_mov_b32 v{vb}, v{aV0}')
    a(f's_mov_b32 s{sT0}, 64')
    a.label(loop)
    a(f'ds_read_b128 v[{RK}:{RK + 3}], v{va}')
    a(f's_mov_b64 exec, s[{sVM}:{sVM + 1}]')
    a(f'ds_read_b128 v[{RV0}:{RV0 + 3}], v{vb}')
    a(f'ds_read_b128 v[{RV1}:{RV1 + 3}], v{vb} offset:512')
    a('s_mov_b64 exec, -1')
    a('s_waitcnt lgkmcnt(0)')
    a(mfma32(S, RK, RQ, '0'))
    a(f'v_add_u32 v{va}, 0x800, v{va}')
    a(f'v_add_u32 v{vb}, 0x800, v{vb}')
    row_max(a, S, vmn, val)
    a(f'v_max_f32 v{vmn}, v{vmn}, v{vm}')
    a(f'v_sub_f32 v{val}, v{vm}, v{vmn}')
    a(f'v_exp_f32 v{val}, v{val}')
    a(f'v_mov_b32 v{vm}, v{vmn}')
    for i in range(16):
        a(f'v_sub_f32 v{S + i}, v{S + i}, v{vmn}')
    for i in range(16):
        a(f'v_exp_f32 v{S + i}, v{S + i}')
    for i in range(16):
        a(f'v_mul_f32 v{RO + i}, v{val}, v{RO + i}')
    for i in range(8):
        a(f'v_cvt_pk_bf16_f32 v{RP + i}, v{S + 2 * i}, v{S + 2 * i + 1}')
    a(mfma32(RO, RV0, RP, RO))
    a(mfma32(RO, RV1, RP + 4, RO))
    a(f's_sub_u32 s{sT0}, s{sT0}, 1')
    a(f's_cmp_lg_u32 s{sT0}, 0')
    a(f's_cbranch_scc1 {loop}')
    a(f's_branch {done_label}')


def slot(i):
    return RING + 4 * (i % 16)


def stream_load(a, i):
    def f():
        if OPT.get('xnl') and i < 70:
            return
        if i < 70:
            s, j = divmod(i, 5)
            if j == 0:
                a(f's_add_u32 s{sT2}, s{sHS}, {s * 1024}')
                a.vmem(f'buffer_load_dwordx4 v[{slot(i)}:{slot(i) + 3}], v{vL16}, {srd(S_WS)}, s{sT2} offen sc1', f'f{i}')
            else:
                if j == 1:
                    a(f's_add_u32 s{sT3}, s{sWSRC}, {s * 16384}')
                a.vmem(f'buffer_load_dwordx4 v[{slot(i)}:{slot(i) + 3}], v{vL16}, {srd(S_WS)}, s{sT3} offen '
                       f'offset:{(j - 1) * 1024} sc1', f'f{i}')
        else:
            k = i - 70
            a(f's_add_u32 s{sT2}, s{sWO}, {k * 16384}')
            a.vmem(f'buffer_load_dwordx4 v[{slot(i)}:{slot(i) + 3}], v{vL16}, {srd(S_WS)}, s{sT2} offen sc1', 'wo')
    return f


def stream_mfma(a, s, j):
    def f():
        iw, ih = 5 * s + 1 + j, 5 * s
        if not OPT.get('xnw'):
            a.wait_vm(f'f{iw}')
        else:
            a.vm = [t for t in a.vm if t != f'f{iw}' and t != f'f{ih}']
        if OPT.get('xnm'):
            return
        a(mfma32(ACC + 16 * j, slot(iw), slot(ih), '0' if s == 0 else None))
    return f


def side_loads(a):
    a(f'''
s_lshl_b32 s{sT0}, s{sCG}, 8
s_lshl_b32 s{sT1}, s{sCT}, 6
s_add_u32 s{sT0}, s{sT0}, s{sT1}
s_lshl_b32 s{sT1}, s{sKH}, 5
s_add_u32 s{sT0}, s{sT0}, s{sT1}
v_lshrrev_b32 v{vT}, 5, v0
v_lshlrev_b32 v{vT}, 3, v{vT}
v_add_u32 v{vT}, s{sT0}, v{vT}
v_and_b32 v{vT + 1}, 31, v0
v_lshlrev_b32 v{vT + 1}, 10, v{vT + 1}
s_lshl_b32 s{sT1}, s{sTILE}, 15
v_add3_u32 v{vT + 1}, v{vT + 1}, v{vT}, s{sT1}
''')
    a.vmem(f'buffer_load_dwordx2 v[{vB2}:{vB2 + 1}], v{vT}, {srd(S_B2)}, 0 offen', 'side')
    a.vmem(f'buffer_load_dwordx2 v[{vB2 + 2}:{vB2 + 3}], v{vT}, {srd(S_B2)}, 0 offen offset:16', 'side')
    a.vmem(f'buffer_load_dwordx2 v[{vX}:{vX + 1}], v{vT + 1}, {srd(S_X)}, 0 offen', 'side')
    a.vmem(f'buffer_load_dwordx2 v[{vX + 2}:{vX + 3}], v{vT + 1}, {srd(S_X)}, 0 offen offset:16', 'side')
    a(f'''
v_lshrrev_b32 v{vT + 2}, 5, v0
v_lshlrev_b32 v{vT + 2}, 4, v{vT + 2}
v_and_b32 v{vXO}, 31, v0
v_lshlrev_b32 v{vXO}, 10, v{vXO}
s_add_u32 s{sT0}, s{sT0}, s{sT1}
v_add3_u32 v{vXO}, v{vXO}, v{vT + 2}, s{sT0}
''')
    if OPT.get('otouch'):
        a.vmem(f'buffer_load_dword v{vXO + 1}, v{vXO}, {srd(S_OUT)}, 0 offen', 'side')


def fb_signal_1(a):
    a.wait_vm('hb')
    a(f'''
v_mov_b32 v{vT}, {LCNT}
v_mov_b32 v{vT + 1}, 1
s_mov_b64 exec, 1
''')
    a.ds(f'ds_add_rtn_u32 v{vT + 1}, v{vT}, v{vT + 1}', 'cnt')
    a('s_mov_b64 exec, -1')


def fb_signal_2(a):
    lbl = a.newlabel('nofb')
    a.wait_lg('cnt')
    a(f'''
v_readfirstlane_b32 s{sT0}, v{vT + 1}
s_cmp_lg_u32 s{sT0}, 7
s_cbranch_scc1 {lbl}
s_lshl_b32 s{sT0}, s{k1.sTB}, 8
s_lshl_b32 s{sT1}, s{k1.sHP}, 2
s_add_u32 s{sT0}, s{sT0}, s{sT1}
s_add_u32 s{sT0}, s{sT0}, {FH}
''')
    one_lane_store(a, vT + 1, S_WS, f's{sT0}')
    a.label(lbl)


def fb_load(a):
    return [f'buffer_load_dwordx4 v[8:11], v{vT}, {srd(S_WS)}, s{sT1} offen sc1',
            f'buffer_load_dword v{vX}, v{vT + 1}, {srd(S_WS)}, s{sT0} offen sc1']


def fb_addr(a):
    a(f'''
s_mov_b32 s{sT1}, {FB}
s_lshr_b32 s{sT0}, s{sTILE}, 2
s_lshl_b32 s{sT0}, s{sT0}, 8
s_add_u32 s{sT0}, s{sT0}, {FH}
''')


def fb_poll(a):
    a(f'''
v_lshrrev_b32 v{vT}, 2, v0
v_lshlrev_b32 v{vT}, 8, v{vT}
v_and_b32 v{vT + 1}, 3, v0
v_lshlrev_b32 v{vT + 1}, 4, v{vT + 1}
v_add_u32 v{vT}, v{vT}, v{vT + 1}
v_and_b32 v{vT + 1}, 15, v0
v_lshlrev_b32 v{vT + 1}, 2, v{vT + 1}
''')
    fb_addr(a)
    for x in fb_load(a):
        a.vmem(x, 'fb')


def fb_check(a):
    a.wait_vm('fb')

    def chk(ok):
        a('v_and_b32 v8, v8, v9')
        a('v_and_b32 v10, v10, v11')
        a('v_and_b32 v8, v8, v10')
        a(f'v_and_b32 v8, v8, v{vX}')
        a('v_cmp_ne_u32 vcc, 1, v8')
        a(f's_cbranch_vccz {ok}')

    def ld():
        fb_addr(a)
        for x in fb_load(a):
            a(x)
    spin(a, 3, ld, chk)


def o_loads(a, tracked):
    for i in range(4):
        t = f'buffer_load_dwordx4 v[{OP + 4 * i}:{OP + 4 * i + 3}], v{vL16}, {srd(S_WS)}, s{sOP} offen offset:{1024 * i} sc1'
        if tracked:
            a.vmem(t, 'op')
        else:
            a(t)


def o_check(a):
    a.wait_vm('op')

    def chk(ok):
        for i in range(4):
            r = OP + 4 * i
            a(f'v_max3_u32 v{vT + i}, v{r}, v{r + 1}, v{r + 2}')
            a(f'v_max_u32 v{vT + i}, v{vT + i}, v{r + 3}')
        a(f'v_max3_u32 v{vT}, v{vT}, v{vT + 1}, v{vT + 2}')
        a(f'v_max_u32 v{vT}, v{vT}, v{vT + 3}')
        a(f'v_cmp_eq_u32 vcc, -1, v{vT}')
        a(f's_cbranch_vccz {ok}')
    spin(a, 4, lambda: o_loads(a, False), chk)


def reduce_write(a):
    a(f's_lshl_b32 s{sT0}, s{sW}, 14')
    a(f'v_add_u32 v{vT}, s{sT0}, v{vL16}')
    for k in range(16):
        a.ds(f'ds_write_b128 v{vT}, v[{ACC + 4 * k}:{ACC + 4 * k + 3}] offset:{k * 1024}', 'rw')


def reduce_read_gate(a):
    a(f'''
s_lshl_b32 s{sT0}, s{sCT}, 12
s_lshl_b32 s{sT1}, s{sKH}, 11
s_add_u32 s{sT0}, s{sT0}, s{sT1}
v_add_u32 v{vT}, s{sT0}, v{vL16}
v_add_u32 v{vT + 1}, 0x10000, v{vT}
''')
    t = ACC
    for w in range(8):
        for e in range(2):
            ar = vT if w < 4 else vT + 1
            d = t + 8 * w + 4 * e
            a.ds(f'ds_read_b128 v[{d}:{d + 3}], v{ar} offset:{(w % 4) * 16384 + e * 1024}', f'r{w}')
    a.wait_vm('side')
    for e in range(2):
        for h in range(2):
            a(f'v_lshlrev_b32 v{vG + 4 * e + 2 * h}, 16, v{vB2 + 2 * e + h}')
            a(f'v_and_b32 v{vG + 4 * e + 2 * h + 1}, 0xffff0000, v{vB2 + 2 * e + h}')
    for w in range(8):
        a.wait_lg(f'r{w}')
        for k in range(8):
            a(f'v_add_f32 v{vG + k}, v{vG + k}, v{t + 8 * w + k}')
    for k in range(8):
        a(f'v_mul_f32 v{t + k}, {fl(-LOG2E)}, v{vG + k}')
    for k in range(8):
        a(f'v_exp_f32 v{t + k}, v{t + k}')
    for k in range(8):
        a(f'v_add_f32 v{t + k}, 1.0, v{t + k}')
    for k in range(8):
        a(f'v_rcp_f32 v{t + k}, v{t + k}')
    for k in range(8):
        a(f'v_mul_f32 v{vG + k}, v{vG + k}, v{t + k}')


def ob_write(a):
    a(f's_lshl_b32 s{sT0}, s{sW}, 12')
    a(f's_add_u32 s{sT0}, s{sT0}, {OB}')
    a(f'v_add_u32 v{vT}, s{sT0}, v{vL16}')
    for i in range(4):
        a.ds(f'ds_write_b128 v{vT}, v[{OP + 4 * i}:{OP + 4 * i + 3}] offset:{i * 1024}', 'ow')


def wo_gemm(a):
    a(f's_lshl_b32 s{sT0}, s{sKH}, 14')
    a(f's_add_u32 s{sT0}, s{sT0}, {OB}')
    a(f'v_add_u32 v{vT}, s{sT0}, v{vL16}')
    bb = ACC
    for i in range(16):
        a.ds(f'ds_read_b128 v[{bb + 4 * i}:{bb + 4 * i + 3}], v{vT} offset:{i * 1024}', f'o{i}')
    a.wait_vm('wo')
    for i in range(16):
        a.wait_lg(f'o{i}')
        a(mfma32(RO, slot(70 + i), bb + 4 * i, '0' if i == 0 else None))


def exchange(a, label):
    k1l = label + '_kh1'
    j = label + '_khj'
    a(f'''
s_lshl_b32 s{sT0}, s{sW}, 11
v_add_u32 v{vT}, s{sT0}, v{vL16}
s_xor_b32 s{sT0}, s{sW}, 4
s_lshl_b32 s{sT0}, s{sT0}, 11
v_add_u32 v{vT + 1}, s{sT0}, v{vL16}
s_cmp_eq_u32 s{sKH}, 1
s_cbranch_scc1 {k1l}
''')
    for kh in (0, 1):
        if kh == 1:
            a.label(k1l)
        send = RO + (8 if kh == 0 else 0)
        keep = RO + (0 if kh == 0 else 8)
        a(f'ds_write_b128 v{vT}, v[{send}:{send + 3}]')
        a(f'ds_write_b128 v{vT}, v[{send + 4}:{send + 7}] offset:1024')
        for k in range(8):
            a(f'v_mov_b32 v{vS + k}, v{keep + k}')
        if kh == 0:
            a(f's_branch {j}')
    a.label(j)
    a('s_waitcnt lgkmcnt(0)')
    a('s_barrier')
    t = ACC
    a(f'ds_read_b128 v[{t}:{t + 3}], v{vT + 1}')
    a(f'ds_read_b128 v[{t + 4}:{t + 7}], v{vT + 1} offset:1024')
    return t


def final(a, t):
    u = ACC + 32
    for k in range(4):
        a(f'v_lshlrev_b32 v{u + 2 * k}, 16, v{vX + k}')
        a(f'v_and_b32 v{u + 2 * k + 1}, 0xffff0000, v{vX + k}')
    a('s_waitcnt lgkmcnt(0)')
    for k in range(8):
        a(f'v_add_f32 v{vS + k}, v{vS + k}, v{t + k}')
    for k in range(8):
        a(f'v_fma_f32 v{vS + k}, v{vS + k}, v{vG + k}, v{u + k}')
    for k in range(4):
        a(f'v_cvt_pk_bf16_f32 v{vS + k}, v{vS + 2 * k}, v{vS + 2 * k + 1}')
    a(f'v_permlane32_swap_b32 v{vS}, v{vS + 2}')
    a(f'v_permlane32_swap_b32 v{vS + 1}, v{vS + 3}')
    a.vmem(f'buffer_store_dwordx4 v[{vS}:{vS + 3}], v{vXO}, {srd(S_OUT)}, 0 offen', 'st')


def prio_plan(g):
    p = OPT.get('pr', 0)
    if p == 0:
        return lambda t: None
    if g == 1:
        return lambda t: 1 if t == 0 else None
    pat = {1: [2, 2, 2, 0], 2: [2, 2, 0], 3: [2, 0], 4: [2, 2, 2, 2, 0], 5: [2, 2, 2, 2, 2, 0, 0], 6: [0],
           7: [2, 2, 2, 0, 0]}[p]
    return lambda t: pat[t % len(pat)] if (t == 0 or pat[t % len(pat)] != pat[(t - 1) % len(pat)]) else None


def attention(a, g):
    pre_n = OPT['kvpre']
    a(f'''
v_mov_b32 v{aK0}, v{vL16}
v_add_u32 v{aK1}, 0x10000, v{vL16}
v_and_b32 v{vT}, 15, v0
v_lshrrev_b32 v{vT + 1}, 5, v0
v_lshlrev_b32 v{vT + 1}, 4, v{vT + 1}
v_add_u32 v{vT}, v{vT}, v{vT + 1}
v_lshlrev_b32 v{vT}, 4, v{vT}
v_add_u32 v{aV0}, 0x400, v{vT}
v_add_u32 v{aV1}, 0x10400, v{vT}
s_mov_b32 s{sVM}, 0xffff
s_mov_b32 s{sVM + 1}, 0xffff
''')
    if OPT.get('ones2', 1):
        a(f'v_and_b32 v{vT}, 27, v0')
        a(f'v_cmp_eq_u32 vcc, 16, v{vT}')
        a(f'v_mov_b32 v{vT}, 0x3f803f80')
        for i in range(4):
            a(f'v_cndmask_b32 v{RV0 + i}, 0, v{vT}, vcc')
            a(f'v_cndmask_b32 v{RV1 + i}, 0, v{vT}, vcc')
    else:
        for i in range(4):
            a(f'v_mov_b32 v{RV0 + i}, 0x3f803f80')
            a(f'v_mov_b32 v{RV1 + i}, 0x3f803f80')
    b1 = OPT.get('b1', pre_n)
    a.wait_vm(['q'] + [f'kv{i}' for i in range(b1)])
    a('s_barrier')
    st(a, 'b1')
    ev, mf, pre = {}, {}, {}
    add = lambda d, k, x: d.setdefault(k, []).append(x)
    k_read(a, 0)
    v_reads(a, [(0, 0)])
    a.wait_lg('K0')
    a(mfma32(RS[0], RK, RQ, '0'))
    row_max(a, RS[0], vT, vT + 1)
    for i in range(16):
        a(f'v_sub_f32 v{NEGM + i}, 0, v{vT}')
    a(mfma32(RS[0], RK, RQ, NEGM))
    k_read(a, 1)
    for i in range(pre_n, 16):
        add(ev, 2 * (i - pre_n), kv_dma(a, i))
    if b1 < pre_n:
        tb = 4 * b1 - 2
        add(pre, tb, lambda: (a.wait_vm([f'kv{i}' for i in range(pre_n)]), a('s_barrier')))
    tb2 = OPT['b2']
    assert tb2 <= 4 * pre_n - 2
    add(pre, tb2, lambda: (a.wait_vm([f'kv{i}' for i in range(16)]), a('s_barrier')))
    fs = OPT['fbsig']
    add(pre, fs, lambda: fb_signal_1(a))
    add(pre, fs + 1, lambda: fb_signal_2(a))
    u0, D = OPT['u0'], OPT['D']
    add(ev, u0 - 5, lambda: fb_poll(a))
    add(pre, u0 // 2, lambda: fb_check(a))
    for i in range(86):
        add(ev, u0 + i, stream_load(a, i))
    for s in range(14):
        for j in range(4):
            add(mf, u0 + 5 * s + 1 + j + D, stream_mfma(a, s, j))
    add(ev, u0 + 87, lambda: side_loads(a))
    assert u0 + 87 < 128
    pp = prio_plan(g)
    for t in range(64):
        if pp(t) is not None:
            pre.setdefault(t, []).insert(0, f's_setprio {pp(t)}')
    for t in range(64):
        attn_step(a, t, 64, ev, mf, pre)
        st(a, f'a{t}')
    if OPT.get('pr', 0):
        a('s_setprio 0')


vINI, vFAA, vFAD = 6, 22, 23
vPOI = 24


def nb_hook6(a, g):
    a.vmem(f'buffer_load_dword v{vINI}, off, {srd(S_DBG)}, 0 sc1', 'ini')


def nb_ini_check(a, g):
    a.wait_vm('ini')

    def chk(ok):
        a(f'v_cmp_eq_u32 vcc, 1, v{vINI}')
        a(f's_cbranch_vccnz {ok}')
    spin(a, 1, lambda: a(f'buffer_load_dword v{vINI}, off, {srd(S_DBG)}, 0 sc1'), chk)


def flag_ops(addr):
    return [x.strip() for x in addr.strip().split('\n')] + [
        f's_cmp_eq_u32 s{sW}, 0',
        's_cselect_b64 exec, 1, 0',
        f'v_mov_b32 v{vINI}, 1',
        f'buffer_store_dword v{vINI}, off, {srd(S_WS)}, s{sT0} sc1',
        's_mov_b64 exec, -1']


def fa_signal_ops():
    return [flag_ops(f'''
s_lshl_b32 s{sT0}, s{k1.sHP}, 8
s_lshl_b32 s{sT1}, s{k1.sTB}, 2
s_add_u32 s{sT0}, s{sT0}, s{sT1}
s_add_u32 s{sT0}, s{sT0}, {FA}
''')][0]


def fw_signal_ops():
    return flag_ops(f'''
s_lshr_b32 s{sT0}, s2, 4
s_lshl_b32 s{sT0}, s{sT0}, 8
s_and_b32 s{sT1}, s2, 15
s_lshl_b32 s{sT1}, s{sT1}, 2
s_add_u32 s{sT0}, s{sT0}, s{sT1}
s_add_u32 s{sT0}, s{sT0}, {FB}
''')


def nb_prebar_st(a, g):
    a.wait_vm('st')


def nb_prebar14(a, g):
    a.wait_vm(['pst', 'poi'])


def nb_fa_load():
    return f'buffer_load_dword v{vFAD}, v{vFAA}, {srd(S_WS)}, s{sT1} offen sc1'


def nb_hook15(a, g):
    a(f'v_and_b32 v{vFAA}, 15, v0')
    a(f'v_lshlrev_b32 v{vFAA}, 2, v{vFAA}')
    fa_addr(a)
    a.vmem(nb_fa_load(), 'fa')


def nb_fa_check(a):
    def chk(ok):
        a(f'v_cmp_ne_u32 vcc, 1, v{vFAD}')
        a(f's_cbranch_vccz {ok}')

    def ld():
        fa_addr(a)
        a(nb_fa_load())
    spin(a, 2, ld, chk)


def k1_new(a, g):
    import k1b
    k1b.OPT = OPT
    fas = OPT.get('fas', 12)
    k1b.HOOKS = {0: hook0, 6: nb_hook6}
    k1b.PREBAR = {fas: nb_prebar_st, 14: nb_prebar14}
    pre_n = OPT['kvpre']
    for d in k1b.dma_ops(a, 0, g):
        d()
    st(a, 'iss0')
    k1b.setup2(a)
    st(a, 'su2')
    i1, dep, ramp = OPT.get('i1', 3), OPT.get('dep', 3), OPT.get('ramp', 1)
    for n in range(1, i1):
        for d in k1b.dma_ops(a, n, g):
            d()
    nxt = i1
    for n in range(8):
        k1b.SCHED[n] = []
        while nxt <= n + dep and (len(k1b.SCHED[n]) < ramp or nxt <= n + 1):
            k1b.SCHED[n].append(nxt)
            nxt += 1
    late = list(range(nxt, 15))
    st(a, 'iss')
    pfpos = OPT.get('pfpos', 2)
    for n in range(8):
        k1b.p1_stage(a, n, g)
        if OPT.get('pf') and pfpos == n + 2:
            prefetch(a)
        st(a, f'p1_{n}')
    ne1 = OPT.get('ne1', 2)
    k1b.e1a(a, g, [d for c in late[:ne1] for d in k1b.dma_ops(a, c, g)], nb_ini_check)
    late = late[ne1:]
    st(a, 'e1')
    fill = {n: [[] for _ in range(8)] for n in range(8, 17)}
    e1b = k1b.e1b_ops(a, g)
    n8 = OPT.get('n8', 2)
    d13 = [d for c in late[:n8] for d in k1b.dma_ops(a, c, g)]
    late = late[n8:]
    w8 = OPT.get('w8', 2)
    slots = [(8, i) for i in range(4) for _ in range(w8)] + [(8, i) for i in range(4, 8)] + [(9, i) for i in range(8)]
    if g == 1:
        slots = slots[:len(slots) - OPT.get('e1short', 4)]
    parts = k1b.split_even(e1b, len(slots))
    for i in range(len(d13)):
        fill[8][i].append(d13[i])
    for k, c in enumerate(late):
        dd = k1b.dma_ops(a, c, g)
        fill[9 + k][1].insert(0, dd[0])
        fill[9 + k][5].insert(0, dd[1])
    for (n, i), p in zip(slots, parts):
        fill[n][i] += p
    d15 = k1b.dma_ops(a, 15, g)
    fill[10][1].append(d15[0])
    fill[10][5].append(d15[1])
    ids = record(a, lambda r: hook8(r, g, vPOI, 'poi'))
    for i, p in enumerate(k1b.split_even(ids, 8)):
        fill[10][i] += p
    addr, reads, stores = k1b.prep_finish_ops(a, 'pst')
    for i, p in enumerate(k1b.split_even(addr, 3)):
        fill[11][i] += p
    fill[11][3] += reads
    fill[11][6] += stores
    if g == 0:
        fill[fas][0] = fa_signal_ops() + fill[fas][0]
        fill[14][0] = fw_signal_ops() + fill[14][0]
    fill[15][0] = record(a, lambda r: nb_hook15(r, g)) + fill[15][0]
    fill[11][7] += k1b.cs_write_ops(a, [(k1.vCSA, (3 + 2 * g) * 512)])
    prep = k1b.gelu_prep(a, g, 0) + k1b.gelu_consts()
    first, per = k1b.gelu_tile_ops(a, k1.AC_A, 'ga')
    pp = k1b.split_even(prep + first, 4)
    for i in range(4):
        fill[12][i] += pp[i]
    gl = [o for q in per for o in q]
    gs = OPT.get('gstart', 5)
    slots = [(12, i) for i in range(gs, 8)] + [(n, i) for n in (13, 14, 15) for i in range(8)] + \
            [(16, i) for i in range(OPT.get('gend', 2))]
    for (n, i), p in zip(slots, k1b.split_even(gl, len(slots))):
        fill[n][i] += p
    for n in range(8, 16):
        k1b.p2_stage(a, n, g, fill[n])
        st(a, f'p2_{n}')
    k1b.p2_b_phase(a, 15, [[], [], [], []], fill[16][:4])
    k1.run_gaps(a, [k1b.cs_write_ops(a, [(k1.vCSB, (3 + 2 * g + 1) * 512)])])
    a.wait_lg()
    a.wait_vm('fa')
    a('s_barrier')
    nb_fa_check(a)
    st(a, 'tail')
    extras = [q_load(a)] + [kv_dma(a, i) for i in range(pre_n)]
    if g == 1:
        skip = a.newlabel('skipb')
        a(f's_cmp_eq_u32 s{k1.sPB}, 0')
        a(f's_cbranch_scc1 {skip}')
        snap = a.snapshot()
    prep = k1b.gelu_prep(a, g, 1)
    first, per = k1b.gelu_tile_ops(a, k1.AC_B, 'gb')
    ex = list(extras)
    k1.run_gaps(a, [prep[:4], ex.pop(0), prep[4:6], ex.pop(0), prep[6:], first, ex.pop(0)])
    gl = [o for q in per for o in q]
    nx = len(ex)
    span = (len(gl) * OPT.get('xspan', 60)) // 100
    done = 0
    for i, op in enumerate(gl):
        while done < nx and done * span <= i * nx:
            ex[done]()
            done += 1
        emit(a, op)
    while done < nx:
        ex[done]()
        done += 1
    k1b.h_store(a, g, 0, 'ha')
    k1b.h_store(a, g, 1, 'hb')
    if g == 1:
        jn = a.newlabel('joinb')
        a(f's_branch {jn}')
        endsnap = a.snapshot()
        a.label(skip)
        a.restore(snap)
        for x in extras:
            x()
        k1b.h_store(a, g, 0, 'ha')
        a.vmem(f'buffer_load_dword v10, v{vL16}, {srd(S_WS)}, s{sSRC} offen', 'hb')
        a.vmem(f'buffer_load_dword v11, v{vL16}, {srd(S_WS)}, s{sSRC} offen', 'hb')
        assert a.snapshot()[0] == endsnap[0], (a.snapshot(), endsnap)
        a.label(jn)
        a.restore(endsnap)
    a.wait_lg()
    st(a, 'gelu')

STAMPS = {}


def st(a, name):
    if name in STAMPS:
        stamp(a, STAMPS[name])


def gen_km(label, force_fallback=False):
    k1.SC = ' sc1'
    k1.HOOKS = {0: hook0, 8: hook8, 9: hook9, 11: hook11, 14: hook14, 15: hook15}
    k1.PREBAR = {11: prebar11}
    a = Asm()
    end = label + '_end'
    att = label + '_att'
    if OPT.get('st0'):
        a('s_memrealtime s[98:99]')
        a('s_memtime s[100:101]')
    prologue(a, end, None)
    build_srds(a, ['x', 'wq', 'w1', 'ws', 'w2', 'wo', 'b1', 'b2', 'out', 'dbg'])
    if not OPT.get('st0'):
        stamp(a, 0, 0)
    else:
        a('s_mov_b32 s68, s98')
        a('s_mov_b32 s69, s99')
        a('s_mov_b32 s88, s100')
        a('s_mov_b32 s89, s101')
    st(a, 'ka')
    start_extra(a)
    k1.setup(a)
    st(a, 'su1')
    g1 = label + '_g1'
    a(f's_cmp_eq_u32 s{sG}, 1')
    a(f's_cbranch_scc1 {g1}')
    snap0 = a.snapshot()
    joinsnap = None
    pre_n = OPT['kvpre']
    for g in (0, 1):
        if g == 1:
            a.label(g1)
            a.restore(snap0)
        if OPT.get('nb'):
            k1_new(a, g)
        else:
            i0, i1, pfpos = OPT.get('i0', 5), OPT.get('i1', 5), OPT.get('pfpos', 0)
            k1.INIT = i1
            for n in range(i0):
                for d in k1.dma_ops(a, n, g):
                    d()
            st(a, 'iss0')
            if OPT.get('pf') and pfpos == 0:
                prefetch(a)
            k1.setup2(a)
            st(a, 'su2')
            for n in range(i0, i1):
                for d in k1.dma_ops(a, n, g):
                    d()
            if OPT.get('pf') and pfpos == 1:
                prefetch(a)
            st(a, 'iss')
            for n in range(8):
                k1.p1_stage(a, n, g)
                if OPT.get('pf') and pfpos == n + 2:
                    prefetch(a)
                st(a, f'p1_{n}')
            k1.p1_epilogue(a, g)
            st(a, 'e1')
            if OPT.get('xdrain'):
                a('s_waitcnt vmcnt(0)')
                st(a, 'e1d')
            for n in range(8, 16):
                k1.p2_stage(a, n, g)
                st(a, f'p2_{n}')
            k1.p2_b_phase(a, 15, [[], [], [], []], [])
            k1.write_cs_partials(a, [(k1.vCSB, (3 + 2 * g + 1) * 512)])
            a.wait_all()
            a('s_barrier')
            fa_check(a)
            st(a, 'tail')
            k1.gelu_simple(a, g, 0, [q_load(a)] + [kv_dma(a, i) for i in range(pre_n)], 'ha')
            if g == 1:
                skip = a.newlabel('skipb')
                a(f's_cmp_eq_u32 s{k1.sPB}, 0')
                a(f's_cbranch_scc1 {skip}')
            k1.gelu_simple(a, g, 1, [], 'hb')
            if g == 1:
                jn = a.newlabel('joinb')
                a(f's_branch {jn}')
                a.label(skip)
                a(f'buffer_load_dword v10, v{vL16}, {srd(S_WS)}, s{sSRC} offen')
                a(f'buffer_load_dword v11, v{vL16}, {srd(S_WS)}, s{sSRC} offen')
                a.label(jn)
            a.wait_lg()
            st(a, 'gelu')
        if OPT.get('xdrain'):
            a('s_waitcnt vmcnt(0)')
            st(a, 'gelud')
        attention(a, g)
        if g == 0:
            a(f's_branch {att}')
            joinsnap = a.snapshot()
        else:
            assert a.snapshot() == joinsnap, (a.snapshot(), joinsnap)
    a.label(att)
    a.wait_lg()
    a(mfma32(RO, RV1, RP + 4, RO))
    fb = label + '_fb'
    fin = label + '_fin'
    a(f'v_mul_f32 v{vT}, 0, v{RO + 8}')
    for i in range(8):
        a(f'v_fma_f32 v{vT}, v{RO + i}, 0, v{vT}')
    a(f'v_cmp_u_f32 vcc, v{vT}, v{vT}')
    if force_fallback:
        a(f's_branch {fb}')
    else:
        a(f's_cbranch_vccnz {fb}')
    a.label(fin)
    a(f'v_rcp_f32 v{vT}, v{RO + 8}')
    for i in range(8):
        a(f'v_mul_f32 v{RO + i}, v{vT}, v{RO + i}')
    for i in range(4):
        a(f'v_cvt_pk_bf16_f32 v{RO + i}, v{RO + 2 * i}, v{RO + 2 * i + 1}')
    for i in range(4):
        a(f'v_min_u32 v{RO + i}, -2, v{RO + i}')
    a.vmem(f'buffer_store_dwordx4 v[{RO}:{RO + 3}], v{vL16}, {srd(S_WS)}, s{sOF} offen sc1', 'ost')
    st(a, 'oend')
    if OPT.get('xdrain'):
        a('s_waitcnt vmcnt(0)')
        st(a, 'oendd')
    a('s_barrier')
    st(a, 'ba')
    reduce_write(a)
    o_loads(a, True)
    a.wait_lg()
    a('s_barrier')
    st(a, 'bb')
    reduce_read_gate(a)
    st(a, 'gate')
    o_check(a)
    st(a, 'opoll')
    ob_write(a)
    a.wait_lg()
    a('s_barrier')
    st(a, 'bc')
    wo_gemm(a)
    st(a, 'wog')
    a.wait_lg()
    t = exchange(a, label)
    final(a, t)
    st(a, 'fin')
    a('s_waitcnt vmcnt(0)')
    stamp(a, 9, 1)
    if OPT.get('dbgst'):
        lbl = a.newlabel('nodbg')
        a(f's_cmp_lg_u32 s{sW}, {OPT["dbgst"] - 1}')
        a(f's_cbranch_scc1 {lbl}')
        a('s_mov_b64 exec, 1')
        a('v_not_b32 v2, s68')
        a(f'buffer_atomic_umax v2, off, {srd(S_DBG)}, 0 offset:20 sc1')
        for k in range(1, 10):
            a(f'v_mov_b32 v{2 + k}, s{68 + 2 * k}')
            a(f'buffer_atomic_umax v{2 + k}, off, {srd(S_DBG)}, 0 offset:{20 + 4 * k} sc1')
        a('s_waitcnt vmcnt(0)')
        a.label(lbl)
    else:
        stamp_flush(a, 0)
    a('s_endpgm')
    a.label(fb)
    fallback(a, fin)
    a.label(end)
    a('s_endpgm')
    return a
```

```python
from common import *
import k1
from k1 import fl

KM_LDS = 163840
LCNT = 163824
RED = 0
OB = 131072
FA = FL
FB = FL + 4096
FH = FL + 8192
LOG2E = 1.4426950408889634
SPIN = 20000

sT0, sT1, sT2, sT3 = 52, 53, 54, 55
sH, sTQ, sSRC, sMD = 20, 21, 22, 23
sTILE, sCG, sOF, sOP = 24, 25, 26, 27
sHS, sWSRC, sWO, sSPIN = 8, 9, 10, 11
sVM = 94
sCT, sKH = sTT, sG

vL16 = 1
aK0, aK1, aV0, aV1 = 2, 3, 4, 5
vT = 6
RQ, RK, RV0, RV1, RP = 12, 16, 20, 24, 28
NEGM = 36
RS = (52, 68)
RO = 84
ACC = 100
RING = 164
vX, vB2, vXO = 228, 232, 236
vG, vS = 240, 248
OP = 52

OPT = dict(u0=28, D=11, fbsig=5, prio=None, b2=24, kvpre=8, nofb=False)


def spin(a, site, load, check_ok):
    ok = a.newlabel('ok')
    lp = a.newlabel('spin')
    check_ok(ok)
    a(f's_mov_b32 s{sSPIN}, {SPIN}')
    a.label(lp)
    a('s_sleep 1')
    load()
    a('s_waitcnt vmcnt(0)')
    check_ok(ok)
    a(f's_sub_u32 s{sSPIN}, s{sSPIN}, 1')
    a(f's_cmp_lg_u32 s{sSPIN}, 0')
    a(f's_cbranch_scc1 {lp}')
    a(f'v_mov_b32 v{vT}, {site}')
    a(f'buffer_store_dword v{vT}, off, {srd(S_DBG)}, 0 offset:{4 * site}')
    a.label(ok)


def one_lane_store(a, reg, srdn, soff, val=1):
    a('s_mov_b64 exec, 1')
    a(f'v_mov_b32 v{reg}, {val}')
    a(f'buffer_store_dword v{reg}, off, {srd(srdn)}, {soff} sc1')
    a('s_mov_b64 exec, -1')


def start_extra(a):
    lbl = a.newlabel('noinit')
    a(f'''
v_mov_b32 v20, 0
v_mov_b32 v21, 0
v_mov_b32 v22, 0
v_mov_b32 v23, 0
v_mov_b32 v24, {LCNT}
''')
    a.ds('ds_write_b32 v24, v20', 'w')
    a(f'''
s_or_b32 s{sT0}, s2, s{sW}
s_cmp_lg_u32 s{sT0}, 0
s_cbranch_scc1 {lbl}
v_lshrrev_b32 v1, 2, v0
v_lshlrev_b32 v1, 8, v1
v_and_b32 v2, 3, v0
v_lshlrev_b32 v2, 4, v2
v_add_u32 v1, v1, v2
s_mov_b32 s{sT0}, {FA}
s_mov_b32 s{sT1}, {FB}
s_mov_b32 s{sT2}, {FH}
buffer_store_dwordx4 v[20:23], v1, {srd(S_WS)}, s{sT0} offen sc1
buffer_store_dwordx4 v[20:23], v1, {srd(S_WS)}, s{sT1} offen sc1
buffer_store_dwordx4 v[20:23], v1, {srd(S_WS)}, s{sT2} offen sc1
''')
    a.label(lbl)


def prefetch(a):
    pf = OPT['pf']
    a(f'''
s_lshl_b32 s{sT0}, s2, 3
s_add_u32 s{sT0}, s{sT0}, s{sW}
v_lshlrev_b32 v48, 4, v0
''')
    if pf & 1:
        a(f's_mul_i32 s{sT1}, s{sT0}, 768')
        a.vmem(f'buffer_load_dwordx4 v[52:55], v48, {srd(S_WQ)}, s{sT1} offen', 'pf')
    if pf & 2:
        a(f's_mul_i32 s{sT1}, s{sT0}, 896')
        a.vmem(f'buffer_load_dwordx4 v[56:59], v48, {srd(S_W1)}, s{sT1} offen', 'pf')
    if pf & 4:
        a(f's_lshl_b32 s{sT1}, s{sT0}, 10')
        a.vmem(f'buffer_load_dwordx4 v[60:63], v48, {srd(S_X)}, s{sT1} offen', 'pf')
    if pf & 8:
        a(f's_mul_i32 s{sT1}, s{sT0}, 896')
        a.vmem(f'buffer_load_dwordx4 v[56:59], v48, {srd(S_W2)}, s{sT1} offen', 'pf')
        a(f's_lshl_b32 s{sT1}, s{sT0}, 8')
        a.vmem(f'buffer_load_dword v60, v48, {srd(S_WO)}, s{sT1} offen', 'pf')


def hook0(a, g):
    st(a, 'c0')
    if g != 0:
        return
    lbl = a.newlabel('noinit2')
    a(f'''
s_or_b32 s{sT0}, s2, s{sW}
s_cmp_lg_u32 s{sT0}, 0
s_cbranch_scc1 {lbl}
''')
    one_lane_store(a, 20, S_DBG, 0)
    a.label(lbl)


def hook8(a, g, poi=92, tag='st'):
    a(f'''
s_lshl_b32 s{sT0}, s{sXCD}, 2
s_lshr_b32 s{sCG}, s{sSLOT}, 3
s_add_u32 s{sH}, s{sT0}, s{sCG}
s_and_b32 s{sT1}, s{sSLOT}, 7
s_lshl_b32 s{sTQ}, s{sT1}, 3
s_add_u32 s{sTQ}, s{sTQ}, s{sW}
s_lshl_b32 s{sMD}, s{sW}, 10
s_lshl_b32 s{sSRC}, s{sH}, 17
s_add_u32 s{sSRC}, s{sSRC}, {KV}
s_add_u32 s{sSRC}, s{sSRC}, s{sMD}
s_lshl_b32 s{sOF}, s{sTQ}, 5
s_add_u32 s{sOF}, s{sOF}, s{sH}
s_lshl_b32 s{sOF}, s{sOF}, 10
s_add_u32 s{sOF}, s{sOF}, {OF}
s_lshl_b32 s{sT0}, s{sXCD}, 3
s_add_u32 s{sTILE}, s{sT0}, s{sT1}
s_lshl_b32 s{sOP}, s{sTILE}, 3
s_add_u32 s{sOP}, s{sOP}, s{sW}
s_lshl_b32 s{sOP}, s{sOP}, 12
s_add_u32 s{sOP}, s{sOP}, {OF}
s_mul_i32 s{sT0}, s{sW}, 14
s_mul_i32 s{sHS}, s{sTILE}, 112
s_add_u32 s{sHS}, s{sHS}, s{sT0}
s_lshl_b32 s{sHS}, s{sHS}, 10
s_add_u32 s{sHS}, s{sHS}, {HF}
s_lshl_b32 s{sWSRC}, s{sT0}, 4
s_lshl_b32 s{sT1}, s{sCG}, 2
s_add_u32 s{sWSRC}, s{sWSRC}, s{sT1}
s_lshl_b32 s{sWSRC}, s{sWSRC}, 10
s_add_u32 s{sWSRC}, s{sWSRC}, {WF}
s_lshl_b32 s{sWO}, s{sKH}, 4
s_add_u32 s{sWO}, s{sWO}, 112
s_lshl_b32 s{sWO}, s{sWO}, 4
s_add_u32 s{sWO}, s{sWO}, s{sT1}
s_add_u32 s{sWO}, s{sWO}, s{sCT}
s_lshl_b32 s{sWO}, s{sWO}, 10
s_add_u32 s{sWO}, s{sWO}, {WF}
v_mov_b32 v{poi}, -1
v_mov_b32 v{poi + 1}, -1
v_mov_b32 v{poi + 2}, -1
v_mov_b32 v{poi + 3}, -1
''')
    a.vmem(f'buffer_store_dwordx4 v[{poi}:{poi + 3}], v{vL16}, {srd(S_WS)}, s{sOF} offen sc1', tag)


def ini_load(a):
    return f'buffer_load_dword v92, off, {srd(S_DBG)}, 0 sc1'


def hook9(a, g):
    a.vmem(ini_load(a), 'ini')


def prebar11(a, g):
    a.wait_vm('ini')

    def chk(ok):
        a('v_cmp_eq_u32 vcc, 1, v92')
        a(f's_cbranch_vccnz {ok}')
    spin(a, 1, lambda: a(ini_load(a)), chk)


def hook11(a, g):
    if g == 0:
        lbl = a.newlabel('nofa')
        a(f'''
s_cmp_lg_u32 s{sW}, 0
s_cbranch_scc1 {lbl}
s_lshl_b32 s{sT0}, s{k1.sHP}, 8
s_lshl_b32 s{sT1}, s{k1.sTB}, 2
s_add_u32 s{sT0}, s{sT0}, s{sT1}
s_add_u32 s{sT0}, s{sT0}, {FA}
''')
        one_lane_store(a, 92, S_WS, f's{sT0}')
        a.label(lbl)
    k1.prep_finish(a)


def hook14(a, g):
    if g == 0:
        lbl = a.newlabel('nofw')
        a(f'''
s_cmp_lg_u32 s{sW}, 0
s_cbranch_scc1 {lbl}
s_lshr_b32 s{sT0}, s2, 4
s_lshl_b32 s{sT0}, s{sT0}, 8
s_and_b32 s{sT1}, s2, 15
s_lshl_b32 s{sT1}, s{sT1}, 2
s_add_u32 s{sT0}, s{sT0}, s{sT1}
s_add_u32 s{sT0}, s{sT0}, {FB}
''')
        one_lane_store(a, 92, S_WS, f's{sT0}')
        a.label(lbl)


def fa_load():
    return f'buffer_load_dword v93, v94, {srd(S_WS)}, s{sSPIN - 0 if False else sT1} offen sc1'


def fa_addr(a):
    a(f'''
s_lshr_b32 s{sT1}, s{sH}, 1
s_lshl_b32 s{sT1}, s{sT1}, 8
s_add_u32 s{sT1}, s{sT1}, {FA}
''')


def hook15(a, g):
    a('v_and_b32 v94, 15, v0')
    a('v_lshlrev_b32 v94, 2, v94')
    fa_addr(a)
    a.vmem(fa_load(), 'fa')


def fa_check(a):
    def chk(ok):
        a('v_cmp_ne_u32 vcc, 1, v93')
        a(f's_cbranch_vccz {ok}')

    def ld():
        fa_addr(a)
        a(fa_load())
    spin(a, 2, ld, chk)


def kv_dma(a, i):
    def f():
        a(f's_add_u32 m0, s{sMD}, {i * 8192}')
        a(f's_add_u32 s{sT2}, s{sSRC}, {i * 8192}')
        a.vmem(f'buffer_load_dwordx4 v{vL16}, {srd(S_WS)}, s{sT2} offen sc1 lds', f'kv{i}')
    return f


def q_load(a):
    def f():
        a(f'''
s_lshl_b32 s{sT2}, s{sH}, 6
s_add_u32 s{sT2}, s{sT2}, s{sTQ}
s_lshl_b32 s{sT2}, s{sT2}, 10
''')
        a.vmem(f'buffer_load_dwordx4 v[{RQ}:{RQ + 3}], v{vL16}, {srd(S_WS)}, s{sT2} offen sc1', 'q')
    return f


def k_read(a, t):
    ar, off = (aK0, t * 2048) if t < 32 else (aK1, (t - 32) * 2048)
    a.ds(f'ds_read_b128 v[{RK}:{RK + 3}], v{ar} offset:{off}', f'K{t}')


def v_reads(a, items):
    a(f's_mov_b64 exec, s[{sVM}:{sVM + 1}]')
    for part, t in items:
        ar, off = (aV0, t * 2048) if t < 32 else (aV1, (t - 32) * 2048)
        r = RV0 if part == 0 else RV1
        a.ds(f'ds_read_b128 v[{r}:{r + 3}], v{ar} offset:{off + part * 512}', f'V{part}_{t}')
    a('s_mov_b64 exec, -1')


def run(a, items):
    for it in items:
        emit(a, it)


def attn_step(a, t, nt, ev, mf, pre):
    S, Sn = RS[t % 2], RS[(t + 1) % 2]
    ex = [f'v_exp_f32 v{S + i}, v{S + i}' for i in range(16)]
    cv = [f'v_cvt_pk_bf16_f32 v{RP + i}, v{S + 2 * i}, v{S + 2 * i + 1}' for i in range(8)]
    run(a, pre.get(t, []))
    if t + 1 < nt:
        a.wait_lg(f'K{t + 1}')
        a(mfma32(Sn, RK, RQ, NEGM))
        if t + 2 < nt:
            k_read(a, t + 2)
    run(a, ev.get(2 * t, []))
    run(a, (ex[0], ex[1], ex[2], ex[3]))
    run(a, mf.get(2 * t, []))
    run(a, (cv[0], ex[4], ex[5], cv[1]))
    if t > 0:
        a.wait_lg(f'V1_{t - 1}')
        a(mfma32(RO, RV1, RP + 4, RO))
    run(a, (ex[6], ex[7], cv[2], ex[8], ex[9], cv[3], ex[10], ex[11]))
    a.wait_lg(f'V0_{t}')
    a(mfma32(RO, RV0, RP, '0' if t == 0 else RO))
    items = [(1, t)]
    if t + 1 < nt:
        items.append((0, t + 1))
    v_reads(a, items)
    run(a, ev.get(2 * t + 1, []))
    run(a, (cv[4], ex[12], ex[13], cv[5]))
    run(a, mf.get(2 * t + 1, []))
    run(a, (ex[14], ex[15], cv[6], cv[7]))


def row_max(a, S, dst, tmp):
    a(f'v_max3_f32 v{dst}, v{S}, v{S + 1}, v{S + 2}')
    a(f'v_max3_f32 v{tmp}, v{S + 3}, v{S + 4}, v{S + 5}')
    a(f'v_max3_f32 v{dst}, v{dst}, v{S + 6}, v{S + 7}')
    a(f'v_max3_f32 v{tmp}, v{tmp}, v{S + 8}, v{S + 9}')
    a(f'v_max3_f32 v{dst}, v{dst}, v{S + 10}, v{S + 11}')
    a(f'v_max3_f32 v{tmp}, v{tmp}, v{S + 12}, v{S + 13}')
    a(f'v_max3_f32 v{dst}, v{dst}, v{S + 14}, v{S + 15}')
    a(f'v_max_f32 v{dst}, v{dst}, v{tmp}')
    a(f'v_mov_b32 v{tmp}, v{dst}')
    a(f'v_permlane32_swap_b32 v{dst}, v{tmp}')
    a(f'v_max_f32 v{dst}, v{dst}, v{tmp}')


def fallback(a, done_label):
    a.comment('--- fallback: online softmax with the running true maximum')
    loop = a.newlabel('fb_loop')
    S = RS[0]
    vm, vmn, val, va, vb = vT, vT + 1, vT + 2, vT + 3, vT + 4
    a(f'v_mov_b32 v{vm}, 0xff800000')
    for i in range(16):
        a(f'v_mov_b32 v{RO + i}, 0')
    a(f'v_mov_b32 v{va}, v{aK0}')
    a(f'v_mov_b32 v{vb}, v{aV0}')
    a(f's_mov_b32 s{sT0}, 64')
    a.label(loop)
    a(f'ds_read_b128 v[{RK}:{RK + 3}], v{va}')
    a(f's_mov_b64 exec, s[{sVM}:{sVM + 1}]')
    a(f'ds_read_b128 v[{RV0}:{RV0 + 3}], v{vb}')
    a(f'ds_read_b128 v[{RV1}:{RV1 + 3}], v{vb} offset:512')
    a('s_mov_b64 exec, -1')
    a('s_waitcnt lgkmcnt(0)')
    a(mfma32(S, RK, RQ, '0'))
    a(f'v_add_u32 v{va}, 0x800, v{va}')
    a(f'v_add_u32 v{vb}, 0x800, v{vb}')
    row_max(a, S, vmn, val)
    a(f'v_max_f32 v{vmn}, v{vmn}, v{vm}')
    a(f'v_sub_f32 v{val}, v{vm}, v{vmn}')
    a(f'v_exp_f32 v{val}, v{val}')
    a(f'v_mov_b32 v{vm}, v{vmn}')
    for i in range(16):
        a(f'v_sub_f32 v{S + i}, v{S + i}, v{vmn}')
    for i in range(16):
        a(f'v_exp_f32 v{S + i}, v{S + i}')
    for i in range(16):
        a(f'v_mul_f32 v{RO + i}, v{val}, v{RO + i}')
    for i in range(8):
        a(f'v_cvt_pk_bf16_f32 v{RP + i}, v{S + 2 * i}, v{S + 2 * i + 1}')
    a(mfma32(RO, RV0, RP, RO))
    a(mfma32(RO, RV1, RP + 4, RO))
    a(f's_sub_u32 s{sT0}, s{sT0}, 1')
    a(f's_cmp_lg_u32 s{sT0}, 0')
    a(f's_cbranch_scc1 {loop}')
    a(f's_branch {done_label}')


def slot(i):
    return RING + 4 * (i % 16)


def stream_load(a, i):
    def f():
        if OPT.get('xnl') and i < 70:
            return
        if i < 70:
            s, j = divmod(i, 5)
            if j == 0:
                a(f's_add_u32 s{sT2}, s{sHS}, {s * 1024}')
                a.vmem(f'buffer_load_dwordx4 v[{slot(i)}:{slot(i) + 3}], v{vL16}, {srd(S_WS)}, s{sT2} offen sc1', f'f{i}')
            else:
                if j == 1:
                    a(f's_add_u32 s{sT3}, s{sWSRC}, {s * 16384}')
                a.vmem(f'buffer_load_dwordx4 v[{slot(i)}:{slot(i) + 3}], v{vL16}, {srd(S_WS)}, s{sT3} offen '
                       f'offset:{(j - 1) * 1024} sc1', f'f{i}')
        else:
            k = i - 70
            a(f's_add_u32 s{sT2}, s{sWO}, {k * 16384}')
            a.vmem(f'buffer_load_dwordx4 v[{slot(i)}:{slot(i) + 3}], v{vL16}, {srd(S_WS)}, s{sT2} offen sc1', 'wo')
    return f


def stream_mfma(a, s, j):
    def f():
        iw, ih = 5 * s + 1 + j, 5 * s
        if not OPT.get('xnw'):
            a.wait_vm(f'f{iw}')
        else:
            a.vm = [t for t in a.vm if t != f'f{iw}' and t != f'f{ih}']
        if OPT.get('xnm'):
            return
        a(mfma32(ACC + 16 * j, slot(iw), slot(ih), '0' if s == 0 else None))
    return f


def side_loads(a):
    a(f'''
s_lshl_b32 s{sT0}, s{sCG}, 8
s_lshl_b32 s{sT1}, s{sCT}, 6
s_add_u32 s{sT0}, s{sT0}, s{sT1}
s_lshl_b32 s{sT1}, s{sKH}, 5
s_add_u32 s{sT0}, s{sT0}, s{sT1}
v_lshrrev_b32 v{vT}, 5, v0
v_lshlrev_b32 v{vT}, 3, v{vT}
v_add_u32 v{vT}, s{sT0}, v{vT}
v_and_b32 v{vT + 1}, 31, v0
v_lshlrev_b32 v{vT + 1}, 10, v{vT + 1}
s_lshl_b32 s{sT1}, s{sTILE}, 15
v_add3_u32 v{vT + 1}, v{vT + 1}, v{vT}, s{sT1}
''')
    a.vmem(f'buffer_load_dwordx2 v[{vB2}:{vB2 + 1}], v{vT}, {srd(S_B2)}, 0 offen', 'side')
    a.vmem(f'buffer_load_dwordx2 v[{vB2 + 2}:{vB2 + 3}], v{vT}, {srd(S_B2)}, 0 offen offset:16', 'side')
    a.vmem(f'buffer_load_dwordx2 v[{vX}:{vX + 1}], v{vT + 1}, {srd(S_X)}, 0 offen', 'side')
    a.vmem(f'buffer_load_dwordx2 v[{vX + 2}:{vX + 3}], v{vT + 1}, {srd(S_X)}, 0 offen offset:16', 'side')
    a(f'''
v_lshrrev_b32 v{vT + 2}, 5, v0
v_lshlrev_b32 v{vT + 2}, 4, v{vT + 2}
v_and_b32 v{vXO}, 31, v0
v_lshlrev_b32 v{vXO}, 10, v{vXO}
s_add_u32 s{sT0}, s{sT0}, s{sT1}
v_add3_u32 v{vXO}, v{vXO}, v{vT + 2}, s{sT0}
''')
    if OPT.get('otouch'):
        a.vmem(f'buffer_load_dword v{vXO + 1}, v{vXO}, {srd(S_OUT)}, 0 offen', 'side')


def fb_signal_1(a):
    a.wait_vm('hb')
    a(f'''
v_mov_b32 v{vT}, {LCNT}
v_mov_b32 v{vT + 1}, 1
s_mov_b64 exec, 1
''')
    a.ds(f'ds_add_rtn_u32 v{vT + 1}, v{vT}, v{vT + 1}', 'cnt')
    a('s_mov_b64 exec, -1')


def fb_signal_2(a):
    lbl = a.newlabel('nofb')
    a.wait_lg('cnt')
    a(f'''
v_readfirstlane_b32 s{sT0}, v{vT + 1}
s_cmp_lg_u32 s{sT0}, 7
s_cbranch_scc1 {lbl}
s_lshl_b32 s{sT0}, s{k1.sTB}, 8
s_lshl_b32 s{sT1}, s{k1.sHP}, 2
s_add_u32 s{sT0}, s{sT0}, s{sT1}
s_add_u32 s{sT0}, s{sT0}, {FH}
''')
    one_lane_store(a, vT + 1, S_WS, f's{sT0}')
    a.label(lbl)


def fb_load(a):
    return [f'buffer_load_dwordx4 v[8:11], v{vT}, {srd(S_WS)}, s{sT1} offen sc1',
            f'buffer_load_dword v{vX}, v{vT + 1}, {srd(S_WS)}, s{sT0} offen sc1']


def fb_addr(a):
    a(f'''
s_mov_b32 s{sT1}, {FB}
s_lshr_b32 s{sT0}, s{sTILE}, 2
s_lshl_b32 s{sT0}, s{sT0}, 8
s_add_u32 s{sT0}, s{sT0}, {FH}
''')


def fb_poll(a):
    a(f'''
v_lshrrev_b32 v{vT}, 2, v0
v_lshlrev_b32 v{vT}, 8, v{vT}
v_and_b32 v{vT + 1}, 3, v0
v_lshlrev_b32 v{vT + 1}, 4, v{vT + 1}
v_add_u32 v{vT}, v{vT}, v{vT + 1}
v_and_b32 v{vT + 1}, 15, v0
v_lshlrev_b32 v{vT + 1}, 2, v{vT + 1}
''')
    fb_addr(a)
    for x in fb_load(a):
        a.vmem(x, 'fb')


def fb_check(a):
    a.wait_vm('fb')

    def chk(ok):
        a('v_and_b32 v8, v8, v9')
        a('v_and_b32 v10, v10, v11')
        a('v_and_b32 v8, v8, v10')
        a(f'v_and_b32 v8, v8, v{vX}')
        a('v_cmp_ne_u32 vcc, 1, v8')
        a(f's_cbranch_vccz {ok}')

    def ld():
        fb_addr(a)
        for x in fb_load(a):
            a(x)
    spin(a, 3, ld, chk)


def o_loads(a, tracked):
    for i in range(4):
        t = f'buffer_load_dwordx4 v[{OP + 4 * i}:{OP + 4 * i + 3}], v{vL16}, {srd(S_WS)}, s{sOP} offen offset:{1024 * i} sc1'
        if tracked:
            a.vmem(t, 'op')
        else:
            a(t)


def o_check(a):
    a.wait_vm('op')

    def chk(ok):
        for i in range(4):
            r = OP + 4 * i
            a(f'v_max3_u32 v{vT + i}, v{r}, v{r + 1}, v{r + 2}')
            a(f'v_max_u32 v{vT + i}, v{vT + i}, v{r + 3}')
        a(f'v_max3_u32 v{vT}, v{vT}, v{vT + 1}, v{vT + 2}')
        a(f'v_max_u32 v{vT}, v{vT}, v{vT + 3}')
        a(f'v_cmp_eq_u32 vcc, -1, v{vT}')
        a(f's_cbranch_vccz {ok}')
    spin(a, 4, lambda: o_loads(a, False), chk)


def reduce_write(a):
    a(f's_lshl_b32 s{sT0}, s{sW}, 14')
    a(f'v_add_u32 v{vT}, s{sT0}, v{vL16}')
    for k in range(16):
        a.ds(f'ds_write_b128 v{vT}, v[{ACC + 4 * k}:{ACC + 4 * k + 3}] offset:{k * 1024}', 'rw')


vRW = 238


def rw_addr(a):
    a(f'''
s_lshl_b32 s{sT0}, s{sW}, 14
s_cmp_ge_u32 s{sW}, 6
s_cselect_b32 s{sT1}, 0x8000, 0
s_add_u32 s{sT0}, s{sT0}, s{sT1}
v_add_u32 v{vRW}, s{sT0}, v{vL16}
''')


def rw_op(a, k):
    return lambda: a.ds(f'ds_write_b128 v{vRW}, v[{ACC + 4 * k}:{ACC + 4 * k + 3}] offset:{k * 1024}', 'rw')


def reduce_read_gate(a):
    early = OPT.get('erw')
    a(f'''
s_lshl_b32 s{sT0}, s{sCT}, 12
s_lshl_b32 s{sT1}, s{sKH}, 11
s_add_u32 s{sT0}, s{sT0}, s{sT1}
v_add_u32 v{vT}, s{sT0}, v{vL16}
v_add_u32 v{vT + 1}, 0x10000, v{vT}
''')
    if early:
        a(f'v_add_u32 v{vT + 2}, 0x20000, v{vT}')
    t = ACC
    for w in range(8):
        for e in range(2):
            ar = vT if w < 4 else vT + 1
            off = (w % 4) * 16384 + e * 1024
            if early and w >= 6:
                ar, off = vT + 2, (w - 6) * 16384 + e * 1024
            d = t + 8 * w + 4 * e
            a.ds(f'ds_read_b128 v[{d}:{d + 3}], v{ar} offset:{off}', f'r{w}')
    a.wait_vm('side')
    for e in range(2):
        for h in range(2):
            a(f'v_lshlrev_b32 v{vG + 4 * e + 2 * h}, 16, v{vB2 + 2 * e + h}')
            a(f'v_and_b32 v{vG + 4 * e + 2 * h + 1}, 0xffff0000, v{vB2 + 2 * e + h}')
    for w in range(8):
        a.wait_lg(f'r{w}')
        for k in range(8):
            a(f'v_add_f32 v{vG + k}, v{vG + k}, v{t + 8 * w + k}')
        if OPT.get('erw') and OPT.get('opos', 1) == 2 + w:
            o_loads(a, True)
    for k in range(8):
        a(f'v_mul_f32 v{t + k}, {fl(-LOG2E)}, v{vG + k}')
    for k in range(8):
        a(f'v_exp_f32 v{t + k}, v{t + k}')
    for k in range(8):
        a(f'v_add_f32 v{t + k}, 1.0, v{t + k}')
    for k in range(8):
        a(f'v_rcp_f32 v{t + k}, v{t + k}')
    for k in range(8):
        a(f'v_mul_f32 v{vG + k}, v{vG + k}, v{t + k}')


def ob_base():
    return 98304 if OPT.get('erw') else OB


def ob_write(a):
    a(f's_lshl_b32 s{sT0}, s{sW}, 12')
    a(f's_add_u32 s{sT0}, s{sT0}, {ob_base()}')
    a(f'v_add_u32 v{vT}, s{sT0}, v{vL16}')
    for i in range(4):
        a.ds(f'ds_write_b128 v{vT}, v[{OP + 4 * i}:{OP + 4 * i + 3}] offset:{i * 1024}', 'ow')


def wo_gemm(a):
    a(f's_lshl_b32 s{sT0}, s{sKH}, 14')
    a(f's_add_u32 s{sT0}, s{sT0}, {ob_base()}')
    a(f'v_add_u32 v{vT}, s{sT0}, v{vL16}')
    bb = ACC
    for i in range(16):
        a.ds(f'ds_read_b128 v[{bb + 4 * i}:{bb + 4 * i + 3}], v{vT} offset:{i * 1024}', f'o{i}')
    a.wait_vm('wo')
    for i in range(16):
        a.wait_lg(f'o{i}')
        a(mfma32(RO, slot(70 + i), bb + 4 * i, '0' if i == 0 else None))


def exchange(a, label):
    k1l = label + '_kh1'
    j = label + '_khj'
    a(f'''
s_lshl_b32 s{sT0}, s{sW}, 11
v_add_u32 v{vT}, s{sT0}, v{vL16}
s_xor_b32 s{sT0}, s{sW}, 4
s_lshl_b32 s{sT0}, s{sT0}, 11
v_add_u32 v{vT + 1}, s{sT0}, v{vL16}
s_cmp_eq_u32 s{sKH}, 1
s_cbranch_scc1 {k1l}
''')
    for kh in (0, 1):
        if kh == 1:
            a.label(k1l)
        send = RO + (8 if kh == 0 else 0)
        keep = RO + (0 if kh == 0 else 8)
        a(f'ds_write_b128 v{vT}, v[{send}:{send + 3}]')
        a(f'ds_write_b128 v{vT}, v[{send + 4}:{send + 7}] offset:1024')
        for k in range(8):
            a(f'v_mov_b32 v{vS + k}, v{keep + k}')
        if kh == 0:
            a(f's_branch {j}')
    a.label(j)
    a('s_waitcnt lgkmcnt(0)')
    a('s_barrier')
    t = ACC
    a(f'ds_read_b128 v[{t}:{t + 3}], v{vT + 1}')
    a(f'ds_read_b128 v[{t + 4}:{t + 7}], v{vT + 1} offset:1024')
    return t


def final(a, t):
    u = ACC + 32
    for k in range(4):
        a(f'v_lshlrev_b32 v{u + 2 * k}, 16, v{vX + k}')
        a(f'v_and_b32 v{u + 2 * k + 1}, 0xffff0000, v{vX + k}')
    a('s_waitcnt lgkmcnt(0)')
    for k in range(8):
        a(f'v_add_f32 v{vS + k}, v{vS + k}, v{t + k}')
    for k in range(8):
        a(f'v_fma_f32 v{vS + k}, v{vS + k}, v{vG + k}, v{u + k}')
    for k in range(4):
        a(f'v_cvt_pk_bf16_f32 v{vS + k}, v{vS + 2 * k}, v{vS + 2 * k + 1}')
    a(f'v_permlane32_swap_b32 v{vS}, v{vS + 2}')
    a(f'v_permlane32_swap_b32 v{vS + 1}, v{vS + 3}')
    a.vmem(f'buffer_store_dwordx4 v[{vS}:{vS + 3}], v{vXO}, {srd(S_OUT)}, 0 offen', 'st')


def prio_plan(g):
    p = OPT.get('pr', 0)
    if p == 0:
        return lambda t: None
    if g == 1:
        return lambda t: 1 if t == 0 else None
    pat = {1: [2, 2, 2, 0], 2: [2, 2, 0], 3: [2, 0], 4: [2, 2, 2, 2, 0], 5: [2, 2, 2, 2, 2, 0, 0], 6: [0],
           7: [2, 2, 2, 0, 0]}[p]
    return lambda t: pat[t % len(pat)] if (t == 0 or pat[t % len(pat)] != pat[(t - 1) % len(pat)]) else None


def attention(a, g):
    pre_n = OPT['kvpre']
    a(f'''
v_mov_b32 v{aK0}, v{vL16}
v_add_u32 v{aK1}, 0x10000, v{vL16}
v_and_b32 v{vT}, 15, v0
v_lshrrev_b32 v{vT + 1}, 5, v0
v_lshlrev_b32 v{vT + 1}, 4, v{vT + 1}
v_add_u32 v{vT}, v{vT}, v{vT + 1}
v_lshlrev_b32 v{vT}, 4, v{vT}
v_add_u32 v{aV0}, 0x400, v{vT}
v_add_u32 v{aV1}, 0x10400, v{vT}
s_mov_b32 s{sVM}, 0xffff
s_mov_b32 s{sVM + 1}, 0xffff
''')
    if OPT.get('ones2', 1):
        a(f'v_and_b32 v{vT}, 27, v0')
        a(f'v_cmp_eq_u32 vcc, 16, v{vT}')
        a(f'v_mov_b32 v{vT}, 0x3f803f80')
        for i in range(4):
            a(f'v_cndmask_b32 v{RV0 + i}, 0, v{vT}, vcc')
            a(f'v_cndmask_b32 v{RV1 + i}, 0, v{vT}, vcc')
    else:
        for i in range(4):
            a(f'v_mov_b32 v{RV0 + i}, 0x3f803f80')
            a(f'v_mov_b32 v{RV1 + i}, 0x3f803f80')
    b1 = OPT.get('b1', pre_n)
    a.wait_vm(['q'] + [f'kv{i}' for i in range(b1)])
    a('s_barrier')
    st(a, 'b1')
    ev, mf, pre = {}, {}, {}
    add = lambda d, k, x: d.setdefault(k, []).append(x)
    k_read(a, 0)
    v_reads(a, [(0, 0)])
    a.wait_lg('K0')
    a(mfma32(RS[0], RK, RQ, '0'))
    row_max(a, RS[0], vT, vT + 1)
    for i in range(16):
        a(f'v_sub_f32 v{NEGM + i}, 0, v{vT}')
    a(mfma32(RS[0], RK, RQ, NEGM))
    k_read(a, 1)
    for i in range(pre_n, 16):
        add(ev, 2 * (i - pre_n), kv_dma(a, i))
    if b1 < pre_n:
        tb = 4 * b1 - 2
        add(pre, tb, lambda: (a.wait_vm([f'kv{i}' for i in range(pre_n)]), a('s_barrier')))
    tb2 = OPT['b2']
    assert tb2 <= 4 * pre_n - 2
    add(pre, tb2, lambda: (a.wait_vm([f'kv{i}' for i in range(16)]), a('s_barrier')))
    fs = OPT['fbsig']
    add(pre, fs, lambda: fb_signal_1(a))
    add(pre, fs + 1, lambda: fb_signal_2(a))
    u0, D = OPT['u0'], OPT['D']
    add(ev, u0 - 5, lambda: fb_poll(a))
    add(pre, u0 // 2, lambda: fb_check(a))
    for i in range(86):
        add(ev, u0 + i, stream_load(a, i))
    for s in range(14):
        for j in range(4):
            add(mf, u0 + 5 * s + 1 + j + D, stream_mfma(a, s, j))
    add(ev, u0 + 87, lambda: side_loads(a))
    assert u0 + 87 < 128
    if OPT.get('erw'):
        tb3, u1 = OPT.get('b3', 50), OPT['erw']
        assert tb3 >= 50
        add(pre, tb3, lambda: a('s_barrier'))
        if u1 > 1:
            assert u1 >= 2 * tb3 and u1 > u0 + 70 + D + 1
            add(ev, u1 - 1, lambda: rw_addr(a))
            nper = OPT.get('erwn', 1)
            for k in range(16):
                add(ev, u1 + k // nper, rw_op(a, k))
            assert u1 + 15 // nper < 128
    pp = prio_plan(g)
    for t in range(64):
        if pp(t) is not None:
            pre.setdefault(t, []).insert(0, f's_setprio {pp(t)}')
    for t in range(64):
        attn_step(a, t, 64, ev, mf, pre)
        st(a, f'a{t}')
    if OPT.get('pr', 0):
        a('s_setprio 0')


vINI, vFAA, vFAD = 6, 22, 23
vPOI = 24


def nb_hook6(a, g):
    a.vmem(f'buffer_load_dword v{vINI}, off, {srd(S_DBG)}, 0 sc1', 'ini')


def nb_ini_check(a, g):
    a.wait_vm('ini')

    def chk(ok):
        a(f'v_cmp_eq_u32 vcc, 1, v{vINI}')
        a(f's_cbranch_vccnz {ok}')
    spin(a, 1, lambda: a(f'buffer_load_dword v{vINI}, off, {srd(S_DBG)}, 0 sc1'), chk)


def flag_ops(addr):
    return [x.strip() for x in addr.strip().split('\n')] + [
        f's_cmp_eq_u32 s{sW}, 0',
        's_cselect_b64 exec, 1, 0',
        f'v_mov_b32 v{vINI}, 1',
        f'buffer_store_dword v{vINI}, off, {srd(S_WS)}, s{sT0} sc1',
        's_mov_b64 exec, -1']


def fa_signal_ops():
    return [flag_ops(f'''
s_lshl_b32 s{sT0}, s{k1.sHP}, 8
s_lshl_b32 s{sT1}, s{k1.sTB}, 2
s_add_u32 s{sT0}, s{sT0}, s{sT1}
s_add_u32 s{sT0}, s{sT0}, {FA}
''')][0]


def fw_signal_ops():
    return flag_ops(f'''
s_lshr_b32 s{sT0}, s2, 4
s_lshl_b32 s{sT0}, s{sT0}, 8
s_and_b32 s{sT1}, s2, 15
s_lshl_b32 s{sT1}, s{sT1}, 2
s_add_u32 s{sT0}, s{sT0}, s{sT1}
s_add_u32 s{sT0}, s{sT0}, {FB}
''')


def nb_prebar_st(a, g):
    a.wait_vm('st')


def nb_prebar14(a, g):
    a.wait_vm(['pst', 'poi'])


def nb_fa_load():
    return f'buffer_load_dword v{vFAD}, v{vFAA}, {srd(S_WS)}, s{sT1} offen sc1'


def nb_hook15(a, g):
    a(f'v_and_b32 v{vFAA}, 15, v0')
    a(f'v_lshlrev_b32 v{vFAA}, 2, v{vFAA}')
    fa_addr(a)
    a.vmem(nb_fa_load(), 'fa')


def nb_fa_check(a):
    def chk(ok):
        a(f'v_cmp_ne_u32 vcc, 1, v{vFAD}')
        a(f's_cbranch_vccz {ok}')

    def ld():
        fa_addr(a)
        a(nb_fa_load())
    spin(a, 2, ld, chk)


def k1_new(a, g):
    import k1b
    k1b.OPT = OPT
    fas = OPT.get('fas', 12)
    k1b.HOOKS = {0: hook0, 6: nb_hook6}
    k1b.PREBAR = {fas: nb_prebar_st, 14: nb_prebar14}
    pre_n = OPT['kvpre']
    for d in k1b.dma_ops(a, 0, g):
        d()
    st(a, 'iss0')
    k1b.setup2(a)
    st(a, 'su2')
    i1, dep, ramp = OPT.get('i1', 3), OPT.get('dep', 3), OPT.get('ramp', 1)
    for n in range(1, i1):
        for d in k1b.dma_ops(a, n, g):
            d()
    nxt = i1
    for n in range(8):
        k1b.SCHED[n] = []
        while nxt <= n + dep and (len(k1b.SCHED[n]) < ramp or nxt <= n + 1):
            k1b.SCHED[n].append(nxt)
            nxt += 1
    late = list(range(nxt, 15))
    st(a, 'iss')
    pfpos = OPT.get('pfpos', 2)
    for n in range(8):
        k1b.p1_stage(a, n, g)
        if OPT.get('pf') and pfpos == n + 2:
            prefetch(a)
        st(a, f'p1_{n}')
    ne1 = OPT.get('ne1', 2)
    k1b.e1a(a, g, [d for c in late[:ne1] for d in k1b.dma_ops(a, c, g)], nb_ini_check)
    late = late[ne1:]
    st(a, 'e1')
    fill = {n: [[] for _ in range(8)] for n in range(8, 17)}
    e1b = k1b.e1b_ops(a, g)
    n8 = OPT.get('n8', 2)
    d13 = [d for c in late[:n8] for d in k1b.dma_ops(a, c, g)]
    late = late[n8:]
    w8 = OPT.get('w8', 2)
    slots = [(8, i) for i in range(4) for _ in range(w8)] + [(8, i) for i in range(4, 8)] + [(9, i) for i in range(8)]
    if g == 1:
        slots = slots[:len(slots) - OPT.get('e1short', 4)]
    parts = k1b.split_even(e1b, len(slots))
    for i in range(len(d13)):
        fill[8][i].append(d13[i])
    for k, c in enumerate(late):
        dd = k1b.dma_ops(a, c, g)
        fill[9 + k][1].insert(0, dd[0])
        fill[9 + k][5].insert(0, dd[1])
    for (n, i), p in zip(slots, parts):
        fill[n][i] += p
    d15 = k1b.dma_ops(a, 15, g)
    fill[10][1].append(d15[0])
    fill[10][5].append(d15[1])
    ids = record(a, lambda r: hook8(r, g, vPOI, 'poi'))
    for i, p in enumerate(k1b.split_even(ids, 8)):
        fill[10][i] += p
    addr, reads, stores = k1b.prep_finish_ops(a, 'pst')
    for i, p in enumerate(k1b.split_even(addr, 3)):
        fill[11][i] += p
    fill[11][3] += reads
    fill[11][6] += stores
    if g == 0:
        fill[fas][0] = fa_signal_ops() + fill[fas][0]
        fill[14][0] = fw_signal_ops() + fill[14][0]
    fill[15][0] = record(a, lambda r: nb_hook15(r, g)) + fill[15][0]
    fill[11][7] += k1b.cs_write_ops(a, [(k1.vCSA, (3 + 2 * g) * 512)])
    prep = k1b.gelu_prep(a, g, 0) + k1b.gelu_consts()
    first, per = k1b.gelu_tile_ops(a, k1.AC_A, 'ga')
    pp = k1b.split_even(prep + first, 4)
    for i in range(4):
        fill[12][i] += pp[i]
    gl = [o for q in per for o in q]
    gs = OPT.get('gstart', 5)
    slots = [(12, i) for i in range(gs, 8)] + [(n, i) for n in (13, 14, 15) for i in range(8)] + \
            [(16, i) for i in range(OPT.get('gend', 2))]
    for (n, i), p in zip(slots, k1b.split_even(gl, len(slots))):
        fill[n][i] += p
    for n in range(8, 16):
        k1b.p2_stage(a, n, g, fill[n])
        st(a, f'p2_{n}')
    k1b.p2_b_phase(a, 15, [[], [], [], []], fill[16][:4])
    k1.run_gaps(a, [k1b.cs_write_ops(a, [(k1.vCSB, (3 + 2 * g + 1) * 512)])])
    a.wait_lg()
    a.wait_vm('fa')
    a('s_barrier')
    nb_fa_check(a)
    st(a, 'tail')
    extras = [q_load(a)] + [kv_dma(a, i) for i in range(pre_n)]
    if g == 1:
        skip = a.newlabel('skipb')
        a(f's_cmp_eq_u32 s{k1.sPB}, 0')
        a(f's_cbranch_scc1 {skip}')
        snap = a.snapshot()
    prep = k1b.gelu_prep(a, g, 1)
    first, per = k1b.gelu_tile_ops(a, k1.AC_B, 'gb')
    ex = list(extras)
    k1.run_gaps(a, [prep[:4], ex.pop(0), prep[4:6], ex.pop(0), prep[6:], first, ex.pop(0)])
    gl = [o for q in per for o in q]
    nx = len(ex)
    span = (len(gl) * OPT.get('xspan', 60)) // 100
    done = 0
    for i, op in enumerate(gl):
        while done < nx and done * span <= i * nx:
            ex[done]()
            done += 1
        emit(a, op)
    while done < nx:
        ex[done]()
        done += 1
    k1b.h_store(a, g, 0, 'ha')
    k1b.h_store(a, g, 1, 'hb')
    if g == 1:
        jn = a.newlabel('joinb')
        a(f's_branch {jn}')
        endsnap = a.snapshot()
        a.label(skip)
        a.restore(snap)
        for x in extras:
            x()
        k1b.h_store(a, g, 0, 'ha')
        a.vmem(f'buffer_load_dword v10, v{vL16}, {srd(S_WS)}, s{sSRC} offen', 'hb')
        a.vmem(f'buffer_load_dword v11, v{vL16}, {srd(S_WS)}, s{sSRC} offen', 'hb')
        assert a.snapshot()[0] == endsnap[0], (a.snapshot(), endsnap)
        a.label(jn)
        a.restore(endsnap)
    a.wait_lg()
    st(a, 'gelu')

STAMPS = {}


def st(a, name):
    if name in STAMPS:
        stamp(a, STAMPS[name])


def gen_km(label, force_fallback=False):
    k1.SC = ' sc1'
    k1.HOOKS = {0: hook0, 8: hook8, 9: hook9, 11: hook11, 14: hook14, 15: hook15}
    k1.PREBAR = {11: prebar11}
    a = Asm()
    end = label + '_end'
    att = label + '_att'
    if OPT.get('st0'):
        a('s_memrealtime s[98:99]')
        a('s_memtime s[100:101]')
    prologue(a, end, None)
    build_srds(a, ['x', 'wq', 'w1', 'ws', 'w2', 'wo', 'b1', 'b2', 'out', 'dbg'])
    if not OPT.get('st0'):
        stamp(a, 0, 0)
    else:
        a('s_mov_b32 s68, s98')
        a('s_mov_b32 s69, s99')
        a('s_mov_b32 s88, s100')
        a('s_mov_b32 s89, s101')
    st(a, 'ka')
    start_extra(a)
    k1.setup(a)
    st(a, 'su1')
    g1 = label + '_g1'
    a(f's_cmp_eq_u32 s{sG}, 1')
    a(f's_cbranch_scc1 {g1}')
    snap0 = a.snapshot()
    joinsnap = None
    pre_n = OPT['kvpre']
    for g in (0, 1):
        if g == 1:
            a.label(g1)
            a.restore(snap0)
        if OPT.get('nb'):
            k1_new(a, g)
        else:
            i0, i1, pfpos = OPT.get('i0', 5), OPT.get('i1', 5), OPT.get('pfpos', 0)
            k1.INIT = i1
            for n in range(i0):
                for d in k1.dma_ops(a, n, g):
                    d()
            st(a, 'iss0')
            if OPT.get('pf') and pfpos == 0:
                prefetch(a)
            k1.setup2(a)
            st(a, 'su2')
            for n in range(i0, i1):
                for d in k1.dma_ops(a, n, g):
                    d()
            if OPT.get('pf') and pfpos == 1:
                prefetch(a)
            st(a, 'iss')
            for n in range(8):
                k1.p1_stage(a, n, g)
                if OPT.get('pf') and pfpos == n + 2:
                    prefetch(a)
                st(a, f'p1_{n}')
            k1.p1_epilogue(a, g)
            st(a, 'e1')
            if OPT.get('xdrain'):
                a('s_waitcnt vmcnt(0)')
                st(a, 'e1d')
            for n in range(8, 16):
                k1.p2_stage(a, n, g)
                st(a, f'p2_{n}')
            k1.p2_b_phase(a, 15, [[], [], [], []], [])
            k1.write_cs_partials(a, [(k1.vCSB, (3 + 2 * g + 1) * 512)])
            a.wait_all()
            a('s_barrier')
            fa_check(a)
            st(a, 'tail')
            k1.gelu_simple(a, g, 0, [q_load(a)] + [kv_dma(a, i) for i in range(pre_n)], 'ha')
            if g == 1:
                skip = a.newlabel('skipb')
                a(f's_cmp_eq_u32 s{k1.sPB}, 0')
                a(f's_cbranch_scc1 {skip}')
            k1.gelu_simple(a, g, 1, [], 'hb')
            if g == 1:
                jn = a.newlabel('joinb')
                a(f's_branch {jn}')
                a.label(skip)
                a(f'buffer_load_dword v10, v{vL16}, {srd(S_WS)}, s{sSRC} offen')
                a(f'buffer_load_dword v11, v{vL16}, {srd(S_WS)}, s{sSRC} offen')
                a.label(jn)
            a.wait_lg()
            st(a, 'gelu')
        if OPT.get('xdrain'):
            a('s_waitcnt vmcnt(0)')
            st(a, 'gelud')
        attention(a, g)
        if g == 0:
            a(f's_branch {att}')
            joinsnap = a.snapshot()
        else:
            assert a.snapshot() == joinsnap, (a.snapshot(), joinsnap)
    a.label(att)
    a.wait_lg()
    a(mfma32(RO, RV1, RP + 4, RO))
    fb = label + '_fb'
    fin = label + '_fin'
    a(f'v_mul_f32 v{vT}, 0, v{RO + 8}')
    for i in range(8):
        a(f'v_fma_f32 v{vT}, v{RO + i}, 0, v{vT}')
    a(f'v_cmp_u_f32 vcc, v{vT}, v{vT}')
    if force_fallback:
        a(f's_branch {fb}')
    else:
        a(f's_cbranch_vccnz {fb}')
    a.label(fin)
    a(f'v_rcp_f32 v{vT}, v{RO + 8}')
    for i in range(8):
        a(f'v_mul_f32 v{RO + i}, v{vT}, v{RO + i}')
    for i in range(4):
        a(f'v_cvt_pk_bf16_f32 v{RO + i}, v{RO + 2 * i}, v{RO + 2 * i + 1}')
    for i in range(4):
        a(f'v_min_u32 v{RO + i}, -2, v{RO + i}')
    a.vmem(f'buffer_store_dwordx4 v[{RO}:{RO + 3}], v{vL16}, {srd(S_WS)}, s{sOF} offen sc1', 'ost')
    st(a, 'oend')
    if OPT.get('xdrain'):
        a('s_waitcnt vmcnt(0)')
        st(a, 'oendd')
    if OPT.get('erw'):
        if OPT.get('erw') == 1:
            rw_addr(a)
            for k in range(16):
                rw_op(a, k)()
        if OPT.get('opos', 1) == 0:
            o_loads(a, True)
        a.wait_lg()
        a('s_barrier')
        st(a, 'ba')
        if OPT.get('opos', 1) == 1:
            o_loads(a, True)
    else:
        a('s_barrier')
        st(a, 'ba')
        reduce_write(a)
        o_loads(a, True)
        a.wait_lg()
        a('s_barrier')
    st(a, 'bb')
    reduce_read_gate(a)
    st(a, 'gate')
    o_check(a)
    st(a, 'opoll')
    ob_write(a)
    a.wait_lg()
    a('s_barrier')
    st(a, 'bc')
    wo_gemm(a)
    st(a, 'wog')
    a.wait_lg()
    t = exchange(a, label)
    final(a, t)
    st(a, 'fin')
    a('s_waitcnt vmcnt(0)')
    stamp(a, 9, 1)
    if OPT.get('dbgst'):
        lbl = a.newlabel('nodbg')
        a(f's_cmp_lg_u32 s{sW}, {OPT["dbgst"] - 1}')
        a(f's_cbranch_scc1 {lbl}')
        a('s_mov_b64 exec, 1')
        a('v_not_b32 v2, s68')
        a(f'buffer_atomic_umax v2, off, {srd(S_DBG)}, 0 offset:20 sc1')
        for k in range(1, 10):
            a(f'v_mov_b32 v{2 + k}, s{68 + 2 * k}')
            a(f'buffer_atomic_umax v{2 + k}, off, {srd(S_DBG)}, 0 offset:{20 + 4 * k} sc1')
        a('s_waitcnt vmcnt(0)')
        a.label(lbl)
    else:
        stamp_flush(a, 0)
    a('s_endpgm')
    a.label(fb)
    fallback(a, fin)
    a.label(end)
    a('s_endpgm')
    return a
```

```python
from common import *
import k1
from k1 import fl

KM_LDS = 163840
LCNT = 163824
RED = 0
OB = 131072
FA = FL
FB = FL + 4096
FH = FL + 8192
LOG2E = 1.4426950408889634
SPIN = 20000

sT0, sT1, sT2, sT3 = 52, 53, 54, 55
sH, sTQ, sSRC, sMD = 20, 21, 22, 23
sTILE, sCG, sOF, sOP = 24, 25, 26, 27
sHS, sWSRC, sWO, sSPIN = 8, 9, 10, 11
sVM = 94
sCT, sKH = sTT, sG

vL16 = 1
aK0, aK1, aV0, aV1 = 2, 3, 4, 5
vT = 6
RQ, RK, RV0, RV1, RP = 12, 16, 20, 24, 28
NEGM = 36
RS = (52, 68)
RO = 84
ACC = 100
RING = 164
vX, vB2, vXO = 228, 232, 236
vG, vS = 240, 248
OP = 52

OPT = dict(u0=28, D=11, fbsig=5, prio=None, b2=24, kvpre=8, nofb=False)


def spin(a, site, load, check_ok):
    ok = a.newlabel('ok')
    lp = a.newlabel('spin')
    check_ok(ok)
    a(f's_mov_b32 s{sSPIN}, {SPIN}')
    a.label(lp)
    a('s_sleep 1')
    load()
    a('s_waitcnt vmcnt(0)')
    check_ok(ok)
    a(f's_sub_u32 s{sSPIN}, s{sSPIN}, 1')
    a(f's_cmp_lg_u32 s{sSPIN}, 0')
    a(f's_cbranch_scc1 {lp}')
    a(f'v_mov_b32 v{vT}, {site}')
    a(f'buffer_store_dword v{vT}, off, {srd(S_DBG)}, 0 offset:{4 * site}')
    a.label(ok)


def one_lane_store(a, reg, srdn, soff, val=1):
    a('s_mov_b64 exec, 1')
    a(f'v_mov_b32 v{reg}, {val}')
    a(f'buffer_store_dword v{reg}, off, {srd(srdn)}, {soff} sc1')
    a('s_mov_b64 exec, -1')


def start_extra(a):
    lbl = a.newlabel('noinit')
    a(f'''
v_mov_b32 v20, 0
v_mov_b32 v21, 0
v_mov_b32 v22, 0
v_mov_b32 v23, 0
v_mov_b32 v24, {LCNT}
''')
    a.ds('ds_write_b32 v24, v20', 'w')
    a(f'''
s_or_b32 s{sT0}, s2, s{sW}
s_cmp_lg_u32 s{sT0}, 0
s_cbranch_scc1 {lbl}
v_lshrrev_b32 v1, 2, v0
v_lshlrev_b32 v1, 8, v1
v_and_b32 v2, 3, v0
v_lshlrev_b32 v2, 4, v2
v_add_u32 v1, v1, v2
s_mov_b32 s{sT0}, {FA}
s_mov_b32 s{sT1}, {FB}
s_mov_b32 s{sT2}, {FH}
buffer_store_dwordx4 v[20:23], v1, {srd(S_WS)}, s{sT0} offen sc1
buffer_store_dwordx4 v[20:23], v1, {srd(S_WS)}, s{sT1} offen sc1
buffer_store_dwordx4 v[20:23], v1, {srd(S_WS)}, s{sT2} offen sc1
''')
    a.label(lbl)


def prefetch(a):
    pf = OPT['pf']
    a(f'''
s_lshl_b32 s{sT0}, s2, 3
s_add_u32 s{sT0}, s{sT0}, s{sW}
v_lshlrev_b32 v48, 4, v0
''')
    if pf & 1:
        a(f's_mul_i32 s{sT1}, s{sT0}, 768')
        a.vmem(f'buffer_load_dwordx4 v[52:55], v48, {srd(S_WQ)}, s{sT1} offen', 'pf')
    if pf & 2:
        a(f's_mul_i32 s{sT1}, s{sT0}, 896')
        a.vmem(f'buffer_load_dwordx4 v[56:59], v48, {srd(S_W1)}, s{sT1} offen', 'pf')
    if pf & 4:
        a(f's_lshl_b32 s{sT1}, s{sT0}, 10')
        a.vmem(f'buffer_load_dwordx4 v[60:63], v48, {srd(S_X)}, s{sT1} offen', 'pf')
    if pf & 8:
        a(f's_mul_i32 s{sT1}, s{sT0}, 896')
        a.vmem(f'buffer_load_dwordx4 v[56:59], v48, {srd(S_W2)}, s{sT1} offen', 'pf')
        a(f's_lshl_b32 s{sT1}, s{sT0}, 8')
        a.vmem(f'buffer_load_dword v60, v48, {srd(S_WO)}, s{sT1} offen', 'pf')


def hook0(a, g):
    st(a, 'c0')
    if g != 0:
        return
    lbl = a.newlabel('noinit2')
    a(f'''
s_or_b32 s{sT0}, s2, s{sW}
s_cmp_lg_u32 s{sT0}, 0
s_cbranch_scc1 {lbl}
''')
    one_lane_store(a, 20, S_DBG, 0)
    a.label(lbl)


def hook8(a, g, poi=92, tag='st'):
    a(f'''
s_lshl_b32 s{sT0}, s{sXCD}, 2
s_lshr_b32 s{sCG}, s{sSLOT}, 3
s_add_u32 s{sH}, s{sT0}, s{sCG}
s_and_b32 s{sT1}, s{sSLOT}, 7
s_lshl_b32 s{sTQ}, s{sT1}, 3
s_add_u32 s{sTQ}, s{sTQ}, s{sW}
s_lshl_b32 s{sMD}, s{sW}, 10
s_lshl_b32 s{sSRC}, s{sH}, 17
s_add_u32 s{sSRC}, s{sSRC}, {KV}
s_add_u32 s{sSRC}, s{sSRC}, s{sMD}
s_lshl_b32 s{sOF}, s{sTQ}, 5
s_add_u32 s{sOF}, s{sOF}, s{sH}
s_lshl_b32 s{sOF}, s{sOF}, 10
s_add_u32 s{sOF}, s{sOF}, {OF}
s_lshl_b32 s{sT0}, s{sXCD}, 3
s_add_u32 s{sTILE}, s{sT0}, s{sT1}
s_lshl_b32 s{sOP}, s{sTILE}, 3
s_add_u32 s{sOP}, s{sOP}, s{sW}
s_lshl_b32 s{sOP}, s{sOP}, 12
s_add_u32 s{sOP}, s{sOP}, {OF}
s_mul_i32 s{sT0}, s{sW}, 14
s_mul_i32 s{sHS}, s{sTILE}, 112
s_add_u32 s{sHS}, s{sHS}, s{sT0}
s_lshl_b32 s{sHS}, s{sHS}, 10
s_add_u32 s{sHS}, s{sHS}, {HF}
s_lshl_b32 s{sWSRC}, s{sT0}, 4
s_lshl_b32 s{sT1}, s{sCG}, 2
s_add_u32 s{sWSRC}, s{sWSRC}, s{sT1}
s_lshl_b32 s{sWSRC}, s{sWSRC}, 10
s_add_u32 s{sWSRC}, s{sWSRC}, {WF}
s_lshl_b32 s{sWO}, s{sKH}, 4
s_add_u32 s{sWO}, s{sWO}, 112
s_lshl_b32 s{sWO}, s{sWO}, 4
s_add_u32 s{sWO}, s{sWO}, s{sT1}
s_add_u32 s{sWO}, s{sWO}, s{sCT}
s_lshl_b32 s{sWO}, s{sWO}, 10
s_add_u32 s{sWO}, s{sWO}, {WF}
v_mov_b32 v{poi}, -1
v_mov_b32 v{poi + 1}, -1
v_mov_b32 v{poi + 2}, -1
v_mov_b32 v{poi + 3}, -1
''')
    a.vmem(f'buffer_store_dwordx4 v[{poi}:{poi + 3}], v{vL16}, {srd(S_WS)}, s{sOF} offen sc1', tag)


def ini_load(a):
    return f'buffer_load_dword v92, off, {srd(S_DBG)}, 0 sc1'


def hook9(a, g):
    a.vmem(ini_load(a), 'ini')


def prebar11(a, g):
    a.wait_vm('ini')

    def chk(ok):
        a('v_cmp_eq_u32 vcc, 1, v92')
        a(f's_cbranch_vccnz {ok}')
    spin(a, 1, lambda: a(ini_load(a)), chk)


def hook11(a, g):
    if g == 0:
        lbl = a.newlabel('nofa')
        a(f'''
s_cmp_lg_u32 s{sW}, 0
s_cbranch_scc1 {lbl}
s_lshl_b32 s{sT0}, s{k1.sHP}, 8
s_lshl_b32 s{sT1}, s{k1.sTB}, 2
s_add_u32 s{sT0}, s{sT0}, s{sT1}
s_add_u32 s{sT0}, s{sT0}, {FA}
''')
        one_lane_store(a, 92, S_WS, f's{sT0}')
        a.label(lbl)
    k1.prep_finish(a)


def hook14(a, g):
    if g == 0:
        lbl = a.newlabel('nofw')
        a(f'''
s_cmp_lg_u32 s{sW}, 0
s_cbranch_scc1 {lbl}
s_lshr_b32 s{sT0}, s2, 4
s_lshl_b32 s{sT0}, s{sT0}, 8
s_and_b32 s{sT1}, s2, 15
s_lshl_b32 s{sT1}, s{sT1}, 2
s_add_u32 s{sT0}, s{sT0}, s{sT1}
s_add_u32 s{sT0}, s{sT0}, {FB}
''')
        one_lane_store(a, 92, S_WS, f's{sT0}')
        a.label(lbl)


def fa_load():
    return f'buffer_load_dword v93, v94, {srd(S_WS)}, s{sSPIN - 0 if False else sT1} offen sc1'


def fa_addr(a):
    a(f'''
s_lshr_b32 s{sT1}, s{sH}, 1
s_lshl_b32 s{sT1}, s{sT1}, 8
s_add_u32 s{sT1}, s{sT1}, {FA}
''')


def hook15(a, g):
    a('v_and_b32 v94, 15, v0')
    a('v_lshlrev_b32 v94, 2, v94')
    fa_addr(a)
    a.vmem(fa_load(), 'fa')


def fa_check(a):
    def chk(ok):
        a('v_cmp_ne_u32 vcc, 1, v93')
        a(f's_cbranch_vccz {ok}')

    def ld():
        fa_addr(a)
        a(fa_load())
    spin(a, 2, ld, chk)


def kv_dma(a, i):
    def f():
        a(f's_add_u32 m0, s{sMD}, {i * 8192}')
        a(f's_add_u32 s{sT2}, s{sSRC}, {i * 8192}')
        a.vmem(f'buffer_load_dwordx4 v{vL16}, {srd(S_WS)}, s{sT2} offen sc1 lds', f'kv{i}')
    return f


def q_load(a):
    def f():
        a(f'''
s_lshl_b32 s{sT2}, s{sH}, 6
s_add_u32 s{sT2}, s{sT2}, s{sTQ}
s_lshl_b32 s{sT2}, s{sT2}, 10
''')
        a.vmem(f'buffer_load_dwordx4 v[{RQ}:{RQ + 3}], v{vL16}, {srd(S_WS)}, s{sT2} offen sc1', 'q')
    return f


def k_read(a, t):
    ar, off = (aK0, t * 2048) if t < 32 else (aK1, (t - 32) * 2048)
    a.ds(f'ds_read_b128 v[{RK}:{RK + 3}], v{ar} offset:{off}', f'K{t}')


def v_reads(a, items):
    a(f's_mov_b64 exec, s[{sVM}:{sVM + 1}]')
    for part, t in items:
        ar, off = (aV0, t * 2048) if t < 32 else (aV1, (t - 32) * 2048)
        r = RV0 if part == 0 else RV1
        a.ds(f'ds_read_b128 v[{r}:{r + 3}], v{ar} offset:{off + part * 512}', f'V{part}_{t}')
    a('s_mov_b64 exec, -1')


def run(a, items):
    for it in items:
        emit(a, it)


def attn_step(a, t, nt, ev, mf, pre):
    S, Sn = RS[t % 2], RS[(t + 1) % 2]
    ex = [f'v_exp_f32 v{S + i}, v{S + i}' for i in range(16)]
    cv = [f'v_cvt_pk_bf16_f32 v{RP + i}, v{S + 2 * i}, v{S + 2 * i + 1}' for i in range(8)]
    run(a, pre.get(t, []))
    if t + 1 < nt:
        a.wait_lg(f'K{t + 1}')
        a(mfma32(Sn, RK, RQ, NEGM))
        if t + 2 < nt:
            k_read(a, t + 2)
    run(a, ev.get(2 * t, []))
    run(a, (ex[0], ex[1], ex[2], ex[3]))
    run(a, mf.get(2 * t, []))
    run(a, (cv[0], ex[4], ex[5], cv[1]))
    if t > 0:
        a.wait_lg(f'V1_{t - 1}')
        a(mfma32(RO, RV1, RP + 4, RO))
    run(a, (ex[6], ex[7], cv[2], ex[8], ex[9], cv[3], ex[10], ex[11]))
    a.wait_lg(f'V0_{t}')
    a(mfma32(RO, RV0, RP, '0' if t == 0 else RO))
    items = [(1, t)]
    if t + 1 < nt:
        items.append((0, t + 1))
    v_reads(a, items)
    run(a, ev.get(2 * t + 1, []))
    run(a, (cv[4], ex[12], ex[13], cv[5]))
    run(a, mf.get(2 * t + 1, []))
    run(a, (ex[14], ex[15], cv[6], cv[7]))


def row_max(a, S, dst, tmp):
    a(f'v_max3_f32 v{dst}, v{S}, v{S + 1}, v{S + 2}')
    a(f'v_max3_f32 v{tmp}, v{S + 3}, v{S + 4}, v{S + 5}')
    a(f'v_max3_f32 v{dst}, v{dst}, v{S + 6}, v{S + 7}')
    a(f'v_max3_f32 v{tmp}, v{tmp}, v{S + 8}, v{S + 9}')
    a(f'v_max3_f32 v{dst}, v{dst}, v{S + 10}, v{S + 11}')
    a(f'v_max3_f32 v{tmp}, v{tmp}, v{S + 12}, v{S + 13}')
    a(f'v_max3_f32 v{dst}, v{dst}, v{S + 14}, v{S + 15}')
    a(f'v_max_f32 v{dst}, v{dst}, v{tmp}')
    a(f'v_mov_b32 v{tmp}, v{dst}')
    a(f'v_permlane32_swap_b32 v{dst}, v{tmp}')
    a(f'v_max_f32 v{dst}, v{dst}, v{tmp}')


def fallback(a, done_label):
    a.comment('--- fallback: online softmax with the running true maximum')
    loop = a.newlabel('fb_loop')
    S = RS[0]
    vm, vmn, val, va, vb = vT, vT + 1, vT + 2, vT + 3, vT + 4
    a(f'v_mov_b32 v{vm}, 0xff800000')
    for i in range(16):
        a(f'v_mov_b32 v{RO + i}, 0')
    a(f'v_mov_b32 v{va}, v{aK0}')
    a(f'v_mov_b32 v{vb}, v{aV0}')
    a(f's_mov_b32 s{sT0}, 64')
    a.label(loop)
    a(f'ds_read_b128 v[{RK}:{RK + 3}], v{va}')
    a(f's_mov_b64 exec, s[{sVM}:{sVM + 1}]')
    a(f'ds_read_b128 v[{RV0}:{RV0 + 3}], v{vb}')
    a(f'ds_read_b128 v[{RV1}:{RV1 + 3}], v{vb} offset:512')
    a('s_mov_b64 exec, -1')
    a('s_waitcnt lgkmcnt(0)')
    a(mfma32(S, RK, RQ, '0'))
    a(f'v_add_u32 v{va}, 0x800, v{va}')
    a(f'v_add_u32 v{vb}, 0x800, v{vb}')
    row_max(a, S, vmn, val)
    a(f'v_max_f32 v{vmn}, v{vmn}, v{vm}')
    a(f'v_sub_f32 v{val}, v{vm}, v{vmn}')
    a(f'v_exp_f32 v{val}, v{val}')
    a(f'v_mov_b32 v{vm}, v{vmn}')
    for i in range(16):
        a(f'v_sub_f32 v{S + i}, v{S + i}, v{vmn}')
    for i in range(16):
        a(f'v_exp_f32 v{S + i}, v{S + i}')
    for i in range(16):
        a(f'v_mul_f32 v{RO + i}, v{val}, v{RO + i}')
    for i in range(8):
        a(f'v_cvt_pk_bf16_f32 v{RP + i}, v{S + 2 * i}, v{S + 2 * i + 1}')
    a(mfma32(RO, RV0, RP, RO))
    a(mfma32(RO, RV1, RP + 4, RO))
    a(f's_sub_u32 s{sT0}, s{sT0}, 1')
    a(f's_cmp_lg_u32 s{sT0}, 0')
    a(f's_cbranch_scc1 {loop}')
    a(f's_branch {done_label}')


def slot(i):
    return RING + 4 * (i % 16)


def stream_load(a, i):
    def f():
        if OPT.get('xnl') and i < 70:
            return
        if i < 70:
            s, j = divmod(i, 5)
            if j == 0:
                a(f's_add_u32 s{sT2}, s{sHS}, {s * 1024}')
                a.vmem(f'buffer_load_dwordx4 v[{slot(i)}:{slot(i) + 3}], v{vL16}, {srd(S_WS)}, s{sT2} offen sc1', f'f{i}')
            else:
                if j == 1:
                    a(f's_add_u32 s{sT3}, s{sWSRC}, {s * 16384}')
                a.vmem(f'buffer_load_dwordx4 v[{slot(i)}:{slot(i) + 3}], v{vL16}, {srd(S_WS)}, s{sT3} offen '
                       f'offset:{(j - 1) * 1024} sc1', f'f{i}')
        else:
            k = i - 70
            a(f's_add_u32 s{sT2}, s{sWO}, {k * 16384}')
            a.vmem(f'buffer_load_dwordx4 v[{slot(i)}:{slot(i) + 3}], v{vL16}, {srd(S_WS)}, s{sT2} offen sc1', 'wo')
    return f


def stream_mfma(a, s, j):
    def f():
        iw, ih = 5 * s + 1 + j, 5 * s
        if not OPT.get('xnw'):
            a.wait_vm(f'f{iw}')
        else:
            a.vm = [t for t in a.vm if t != f'f{iw}' and t != f'f{ih}']
        if OPT.get('xnm'):
            return
        a(mfma32(ACC + 16 * j, slot(iw), slot(ih), '0' if s == 0 else None))
    return f


def side_loads(a):
    a(f'''
s_lshl_b32 s{sT0}, s{sCG}, 8
s_lshl_b32 s{sT1}, s{sCT}, 6
s_add_u32 s{sT0}, s{sT0}, s{sT1}
s_lshl_b32 s{sT1}, s{sKH}, 5
s_add_u32 s{sT0}, s{sT0}, s{sT1}
v_lshrrev_b32 v{vT}, 5, v0
v_lshlrev_b32 v{vT}, 3, v{vT}
v_add_u32 v{vT}, s{sT0}, v{vT}
v_and_b32 v{vT + 1}, 31, v0
v_lshlrev_b32 v{vT + 1}, 10, v{vT + 1}
s_lshl_b32 s{sT1}, s{sTILE}, 15
v_add3_u32 v{vT + 1}, v{vT + 1}, v{vT}, s{sT1}
''')
    a.vmem(f'buffer_load_dwordx2 v[{vB2}:{vB2 + 1}], v{vT}, {srd(S_B2)}, 0 offen', 'side')
    a.vmem(f'buffer_load_dwordx2 v[{vB2 + 2}:{vB2 + 3}], v{vT}, {srd(S_B2)}, 0 offen offset:16', 'side')
    a.vmem(f'buffer_load_dwordx2 v[{vX}:{vX + 1}], v{vT + 1}, {srd(S_X)}, 0 offen', 'side')
    a.vmem(f'buffer_load_dwordx2 v[{vX + 2}:{vX + 3}], v{vT + 1}, {srd(S_X)}, 0 offen offset:16', 'side')
    a(f'''
v_lshrrev_b32 v{vT + 2}, 5, v0
v_lshlrev_b32 v{vT + 2}, 4, v{vT + 2}
v_and_b32 v{vXO}, 31, v0
v_lshlrev_b32 v{vXO}, 10, v{vXO}
s_add_u32 s{sT0}, s{sT0}, s{sT1}
v_add3_u32 v{vXO}, v{vXO}, v{vT + 2}, s{sT0}
''')
    if OPT.get('otouch'):
        a.vmem(f'buffer_load_dword v{vXO + 1}, v{vXO}, {srd(S_OUT)}, 0 offen', 'side')


def fb_signal_1(a):
    a.wait_vm('hb')
    a(f'''
v_mov_b32 v{vT}, {LCNT}
v_mov_b32 v{vT + 1}, 1
s_mov_b64 exec, 1
''')
    a.ds(f'ds_add_rtn_u32 v{vT + 1}, v{vT}, v{vT + 1}', 'cnt')
    a('s_mov_b64 exec, -1')


def fb_signal_2(a):
    lbl = a.newlabel('nofb')
    a.wait_lg('cnt')
    a(f'''
v_readfirstlane_b32 s{sT0}, v{vT + 1}
s_cmp_lg_u32 s{sT0}, 7
s_cbranch_scc1 {lbl}
s_lshl_b32 s{sT0}, s{k1.sTB}, 8
s_lshl_b32 s{sT1}, s{k1.sHP}, 2
s_add_u32 s{sT0}, s{sT0}, s{sT1}
s_add_u32 s{sT0}, s{sT0}, {FH}
''')
    one_lane_store(a, vT + 1, S_WS, f's{sT0}')
    a.label(lbl)


def fb_load(a):
    return [f'buffer_load_dwordx4 v[8:11], v{vT}, {srd(S_WS)}, s{sT1} offen sc1',
            f'buffer_load_dword v{vX}, v{vT + 1}, {srd(S_WS)}, s{sT0} offen sc1']


def fb_addr(a):
    a(f'''
s_mov_b32 s{sT1}, {FB}
s_lshr_b32 s{sT0}, s{sTILE}, 2
s_lshl_b32 s{sT0}, s{sT0}, 8
s_add_u32 s{sT0}, s{sT0}, {FH}
''')


def fb_poll(a):
    a(f'''
v_lshrrev_b32 v{vT}, 2, v0
v_lshlrev_b32 v{vT}, 8, v{vT}
v_and_b32 v{vT + 1}, 3, v0
v_lshlrev_b32 v{vT + 1}, 4, v{vT + 1}
v_add_u32 v{vT}, v{vT}, v{vT + 1}
v_and_b32 v{vT + 1}, 15, v0
v_lshlrev_b32 v{vT + 1}, 2, v{vT + 1}
''')
    fb_addr(a)
    for x in fb_load(a):
        a.vmem(x, 'fb')


def fb_check(a):
    a.wait_vm('fb')

    def chk(ok):
        a('v_and_b32 v8, v8, v9')
        a('v_and_b32 v10, v10, v11')
        a('v_and_b32 v8, v8, v10')
        a(f'v_and_b32 v8, v8, v{vX}')
        a('v_cmp_ne_u32 vcc, 1, v8')
        a(f's_cbranch_vccz {ok}')

    def ld():
        fb_addr(a)
        for x in fb_load(a):
            a(x)
    spin(a, 3, ld, chk)


def o_loads(a, tracked):
    for i in range(4):
        t = f'buffer_load_dwordx4 v[{OP + 4 * i}:{OP + 4 * i + 3}], v{vL16}, {srd(S_WS)}, s{sOP} offen offset:{1024 * i} sc1'
        if tracked:
            a.vmem(t, 'op')
        else:
            a(t)


def o_check(a):
    a.wait_vm('op')

    def chk(ok):
        for i in range(4):
            r = OP + 4 * i
            a(f'v_max3_u32 v{vT + i}, v{r}, v{r + 1}, v{r + 2}')
            a(f'v_max_u32 v{vT + i}, v{vT + i}, v{r + 3}')
        a(f'v_max3_u32 v{vT}, v{vT}, v{vT + 1}, v{vT + 2}')
        a(f'v_max_u32 v{vT}, v{vT}, v{vT + 3}')
        a(f'v_cmp_eq_u32 vcc, -1, v{vT}')
        a(f's_cbranch_vccz {ok}')
    spin(a, 4, lambda: o_loads(a, False), chk)


def reduce_write(a):
    a(f's_lshl_b32 s{sT0}, s{sW}, 14')
    a(f'v_add_u32 v{vT}, s{sT0}, v{vL16}')
    for k in range(16):
        a.ds(f'ds_write_b128 v{vT}, v[{ACC + 4 * k}:{ACC + 4 * k + 3}] offset:{k * 1024}', 'rw')


vRW = 238


def rw_addr(a):
    a(f'''
s_lshl_b32 s{sT0}, s{sW}, 14
s_cmp_ge_u32 s{sW}, 6
s_cselect_b32 s{sT1}, 0x8000, 0
s_add_u32 s{sT0}, s{sT0}, s{sT1}
v_add_u32 v{vRW}, s{sT0}, v{vL16}
''')


def rw_op(a, k):
    return lambda: a.ds(f'ds_write_b128 v{vRW}, v[{ACC + 4 * k}:{ACC + 4 * k + 3}] offset:{k * 1024}', 'rw')


def reduce_read_gate(a):
    early = OPT.get('erw')
    a(f'''
s_lshl_b32 s{sT0}, s{sCT}, 12
s_lshl_b32 s{sT1}, s{sKH}, 11
s_add_u32 s{sT0}, s{sT0}, s{sT1}
v_add_u32 v{vT}, s{sT0}, v{vL16}
v_add_u32 v{vT + 1}, 0x10000, v{vT}
''')
    if early:
        a(f'v_add_u32 v{vT + 2}, 0x20000, v{vT}')
    t = ACC
    for w in range(8):
        for e in range(2):
            ar = vT if w < 4 else vT + 1
            off = (w % 4) * 16384 + e * 1024
            if early and w >= 6:
                ar, off = vT + 2, (w - 6) * 16384 + e * 1024
            d = t + 8 * w + 4 * e
            a.ds(f'ds_read_b128 v[{d}:{d + 3}], v{ar} offset:{off}', f'r{w}')
    a.wait_vm('side')
    for e in range(2):
        for h in range(2):
            a(f'v_lshlrev_b32 v{vG + 4 * e + 2 * h}, 16, v{vB2 + 2 * e + h}')
            a(f'v_and_b32 v{vG + 4 * e + 2 * h + 1}, 0xffff0000, v{vB2 + 2 * e + h}')
    for w in range(8):
        a.wait_lg(f'r{w}')
        for k in range(8):
            a(f'v_add_f32 v{vG + k}, v{vG + k}, v{t + 8 * w + k}')
        if OPT.get('erw') and OPT.get('opos', 1) == 2 + w:
            o_loads(a, True)
    for k in range(8):
        a(f'v_mul_f32 v{t + k}, {fl(-LOG2E)}, v{vG + k}')
    for k in range(8):
        a(f'v_exp_f32 v{t + k}, v{t + k}')
    for k in range(8):
        a(f'v_add_f32 v{t + k}, 1.0, v{t + k}')
    for k in range(8):
        a(f'v_rcp_f32 v{t + k}, v{t + k}')
    for k in range(8):
        a(f'v_mul_f32 v{vG + k}, v{vG + k}, v{t + k}')


def ob_base():
    return 98304 if OPT.get('erw') else OB


def ob_write(a):
    a(f's_lshl_b32 s{sT0}, s{sW}, 12')
    a(f's_add_u32 s{sT0}, s{sT0}, {ob_base()}')
    a(f'v_add_u32 v{vT}, s{sT0}, v{vL16}')
    for i in range(4):
        a.ds(f'ds_write_b128 v{vT}, v[{OP + 4 * i}:{OP + 4 * i + 3}] offset:{i * 1024}', 'ow')


def wo_gemm(a):
    a(f's_lshl_b32 s{sT0}, s{sKH}, 14')
    a(f's_add_u32 s{sT0}, s{sT0}, {ob_base()}')
    a(f'v_add_u32 v{vT}, s{sT0}, v{vL16}')
    bb = ACC
    for i in range(16):
        a.ds(f'ds_read_b128 v[{bb + 4 * i}:{bb + 4 * i + 3}], v{vT} offset:{i * 1024}', f'o{i}')
    a.wait_vm('wo')
    for i in range(16):
        a.wait_lg(f'o{i}')
        a(mfma32(RO, slot(70 + i), bb + 4 * i, '0' if i == 0 else None))


def exchange(a, label):
    k1l = label + '_kh1'
    j = label + '_khj'
    a(f'''
s_lshl_b32 s{sT0}, s{sW}, 11
v_add_u32 v{vT}, s{sT0}, v{vL16}
s_xor_b32 s{sT0}, s{sW}, 4
s_lshl_b32 s{sT0}, s{sT0}, 11
v_add_u32 v{vT + 1}, s{sT0}, v{vL16}
s_cmp_eq_u32 s{sKH}, 1
s_cbranch_scc1 {k1l}
''')
    for kh in (0, 1):
        if kh == 1:
            a.label(k1l)
        send = RO + (8 if kh == 0 else 0)
        keep = RO + (0 if kh == 0 else 8)
        a(f'ds_write_b128 v{vT}, v[{send}:{send + 3}]')
        a(f'ds_write_b128 v{vT}, v[{send + 4}:{send + 7}] offset:1024')
        for k in range(8):
            a(f'v_mov_b32 v{vS + k}, v{keep + k}')
        if kh == 0:
            a(f's_branch {j}')
    a.label(j)
    a('s_waitcnt lgkmcnt(0)')
    a('s_barrier')
    t = ACC
    a(f'ds_read_b128 v[{t}:{t + 3}], v{vT + 1}')
    a(f'ds_read_b128 v[{t + 4}:{t + 7}], v{vT + 1} offset:1024')
    return t


def final(a, t):
    u = ACC + 32
    for k in range(4):
        a(f'v_lshlrev_b32 v{u + 2 * k}, 16, v{vX + k}')
        a(f'v_and_b32 v{u + 2 * k + 1}, 0xffff0000, v{vX + k}')
    a('s_waitcnt lgkmcnt(0)')
    for k in range(8):
        a(f'v_add_f32 v{vS + k}, v{vS + k}, v{t + k}')
    for k in range(8):
        a(f'v_fma_f32 v{vS + k}, v{vS + k}, v{vG + k}, v{u + k}')
    for k in range(4):
        a(f'v_cvt_pk_bf16_f32 v{vS + k}, v{vS + 2 * k}, v{vS + 2 * k + 1}')
    a(f'v_permlane32_swap_b32 v{vS}, v{vS + 2}')
    a(f'v_permlane32_swap_b32 v{vS + 1}, v{vS + 3}')
    mod = {0: '', 1: ' sc1', 2: ' sc0 sc1', 3: ' nt', 4: ' sc1 nt', 5: ' sc0 sc1 nt'}[OPT.get('omod', 0)]
    a.vmem(f'buffer_store_dwordx4 v[{vS}:{vS + 3}], v{vXO}, {srd(S_OUT)}, 0 offen{mod}', 'st')


def prio_plan(g):
    p = OPT.get('pr', 0)
    if p == 0:
        return lambda t: None
    if g == 1:
        return lambda t: 1 if t == 0 else None
    pat = {1: [2, 2, 2, 0], 2: [2, 2, 0], 3: [2, 0], 4: [2, 2, 2, 2, 0], 5: [2, 2, 2, 2, 2, 0, 0], 6: [0],
           7: [2, 2, 2, 0, 0]}[p]
    return lambda t: pat[t % len(pat)] if (t == 0 or pat[t % len(pat)] != pat[(t - 1) % len(pat)]) else None


def attention(a, g):
    pre_n = OPT['kvpre']
    a(f'''
v_mov_b32 v{aK0}, v{vL16}
v_add_u32 v{aK1}, 0x10000, v{vL16}
v_and_b32 v{vT}, 15, v0
v_lshrrev_b32 v{vT + 1}, 5, v0
v_lshlrev_b32 v{vT + 1}, 4, v{vT + 1}
v_add_u32 v{vT}, v{vT}, v{vT + 1}
v_lshlrev_b32 v{vT}, 4, v{vT}
v_add_u32 v{aV0}, 0x400, v{vT}
v_add_u32 v{aV1}, 0x10400, v{vT}
s_mov_b32 s{sVM}, 0xffff
s_mov_b32 s{sVM + 1}, 0xffff
''')
    if OPT.get('ones2', 1):
        a(f'v_and_b32 v{vT}, 27, v0')
        a(f'v_cmp_eq_u32 vcc, 16, v{vT}')
        a(f'v_mov_b32 v{vT}, 0x3f803f80')
        for i in range(4):
            a(f'v_cndmask_b32 v{RV0 + i}, 0, v{vT}, vcc')
            a(f'v_cndmask_b32 v{RV1 + i}, 0, v{vT}, vcc')
    else:
        for i in range(4):
            a(f'v_mov_b32 v{RV0 + i}, 0x3f803f80')
            a(f'v_mov_b32 v{RV1 + i}, 0x3f803f80')
    b1 = OPT.get('b1', pre_n)
    a.wait_vm(['q'] + [f'kv{i}' for i in range(b1)])
    a('s_barrier')
    st(a, 'b1')
    ev, mf, pre = {}, {}, {}
    add = lambda d, k, x: d.setdefault(k, []).append(x)
    k_read(a, 0)
    v_reads(a, [(0, 0)])
    a.wait_lg('K0')
    a(mfma32(RS[0], RK, RQ, '0'))
    row_max(a, RS[0], vT, vT + 1)
    for i in range(16):
        a(f'v_sub_f32 v{NEGM + i}, 0, v{vT}')
    a(mfma32(RS[0], RK, RQ, NEGM))
    k_read(a, 1)
    for i in range(pre_n, 16):
        add(ev, 2 * (i - pre_n), kv_dma(a, i))
    if b1 < pre_n:
        tb = 4 * b1 - 2
        add(pre, tb, lambda: (a.wait_vm([f'kv{i}' for i in range(pre_n)]), a('s_barrier')))
    tb2 = OPT['b2']
    assert tb2 <= 4 * pre_n - 2
    add(pre, tb2, lambda: (a.wait_vm([f'kv{i}' for i in range(16)]), a('s_barrier')))
    fs = OPT['fbsig']
    add(pre, fs, lambda: fb_signal_1(a))
    add(pre, fs + 1, lambda: fb_signal_2(a))
    u0, D = OPT['u0'], OPT['D']
    add(ev, u0 - 5, lambda: fb_poll(a))
    add(pre, u0 // 2, lambda: fb_check(a))
    for i in range(86):
        add(ev, u0 + i, stream_load(a, i))
    for s in range(14):
        for j in range(4):
            add(mf, u0 + 5 * s + 1 + j + D, stream_mfma(a, s, j))
    add(ev, u0 + 87, lambda: side_loads(a))
    assert u0 + 87 < 128
    if OPT.get('erw'):
        tb3, u1 = OPT.get('b3', 50), OPT['erw']
        assert tb3 >= 50
        add(pre, tb3, lambda: a('s_barrier'))
        if u1 > 1:
            assert u1 >= 2 * tb3 and u1 > u0 + 70 + D + 1
            add(ev, u1 - 1, lambda: rw_addr(a))
            nper = OPT.get('erwn', 1)
            for k in range(16):
                add(ev, u1 + k // nper, rw_op(a, k))
            assert u1 + 15 // nper < 128
    pp = prio_plan(g)
    for t in range(64):
        if pp(t) is not None:
            pre.setdefault(t, []).insert(0, f's_setprio {pp(t)}')
    for t in range(64):
        attn_step(a, t, 64, ev, mf, pre)
        st(a, f'a{t}')
    if OPT.get('pr', 0):
        a('s_setprio 0')


vINI, vFAA, vFAD = 6, 22, 23
vPOI = 24


def nb_hook6(a, g):
    a.vmem(f'buffer_load_dword v{vINI}, off, {srd(S_DBG)}, 0 sc1', 'ini')


def nb_ini_check(a, g):
    a.wait_vm('ini')

    def chk(ok):
        a(f'v_cmp_eq_u32 vcc, 1, v{vINI}')
        a(f's_cbranch_vccnz {ok}')
    spin(a, 1, lambda: a(f'buffer_load_dword v{vINI}, off, {srd(S_DBG)}, 0 sc1'), chk)


def flag_ops(addr):
    return [x.strip() for x in addr.strip().split('\n')] + [
        f's_cmp_eq_u32 s{sW}, 0',
        's_cselect_b64 exec, 1, 0',
        f'v_mov_b32 v{vINI}, 1',
        f'buffer_store_dword v{vINI}, off, {srd(S_WS)}, s{sT0} sc1',
        's_mov_b64 exec, -1']


def fa_signal_ops():
    return [flag_ops(f'''
s_lshl_b32 s{sT0}, s{k1.sHP}, 8
s_lshl_b32 s{sT1}, s{k1.sTB}, 2
s_add_u32 s{sT0}, s{sT0}, s{sT1}
s_add_u32 s{sT0}, s{sT0}, {FA}
''')][0]


def fw_signal_ops():
    return flag_ops(f'''
s_lshr_b32 s{sT0}, s2, 4
s_lshl_b32 s{sT0}, s{sT0}, 8
s_and_b32 s{sT1}, s2, 15
s_lshl_b32 s{sT1}, s{sT1}, 2
s_add_u32 s{sT0}, s{sT0}, s{sT1}
s_add_u32 s{sT0}, s{sT0}, {FB}
''')


def nb_prebar_st(a, g):
    a.wait_vm('st')


def nb_prebar14(a, g):
    a.wait_vm(['pst', 'poi'])


def nb_fa_load():
    return f'buffer_load_dword v{vFAD}, v{vFAA}, {srd(S_WS)}, s{sT1} offen sc1'


def nb_hook15(a, g):
    a(f'v_and_b32 v{vFAA}, 15, v0')
    a(f'v_lshlrev_b32 v{vFAA}, 2, v{vFAA}')
    fa_addr(a)
    a.vmem(nb_fa_load(), 'fa')


def nb_fa_check(a):
    def chk(ok):
        a(f'v_cmp_ne_u32 vcc, 1, v{vFAD}')
        a(f's_cbranch_vccz {ok}')

    def ld():
        fa_addr(a)
        a(nb_fa_load())
    spin(a, 2, ld, chk)


def k1_new(a, g):
    import k1b
    k1b.OPT = OPT
    fas = OPT.get('fas', 12)
    k1b.HOOKS = {0: hook0, 6: nb_hook6}
    k1b.PREBAR = {fas: nb_prebar_st, 14: nb_prebar14}
    pre_n = OPT['kvpre']
    for d in k1b.dma_ops(a, 0, g):
        d()
    st(a, 'iss0')
    k1b.setup2(a)
    st(a, 'su2')
    i1, dep, ramp = OPT.get('i1', 3), OPT.get('dep', 3), OPT.get('ramp', 1)
    for n in range(1, i1):
        for d in k1b.dma_ops(a, n, g):
            d()
    nxt = i1
    for n in range(8):
        k1b.SCHED[n] = []
        while nxt <= n + dep and (len(k1b.SCHED[n]) < ramp or nxt <= n + 1):
            k1b.SCHED[n].append(nxt)
            nxt += 1
    late = list(range(nxt, 15))
    st(a, 'iss')
    pfpos = OPT.get('pfpos', 2)
    for n in range(8):
        k1b.p1_stage(a, n, g)
        if OPT.get('pf') and pfpos == n + 2:
            prefetch(a)
        st(a, f'p1_{n}')
    ne1 = OPT.get('ne1', 2)
    k1b.e1a(a, g, [d for c in late[:ne1] for d in k1b.dma_ops(a, c, g)], nb_ini_check)
    late = late[ne1:]
    st(a, 'e1')
    fill = {n: [[] for _ in range(8)] for n in range(8, 17)}
    e1b = k1b.e1b_ops(a, g)
    n8 = OPT.get('n8', 2)
    d13 = [d for c in late[:n8] for d in k1b.dma_ops(a, c, g)]
    late = late[n8:]
    w8 = OPT.get('w8', 2)
    slots = [(8, i) for i in range(4) for _ in range(w8)] + [(8, i) for i in range(4, 8)] + [(9, i) for i in range(8)]
    if g == 1:
        slots = slots[:len(slots) - OPT.get('e1short', 4)]
    parts = k1b.split_even(e1b, len(slots))
    for i in range(len(d13)):
        fill[8][i].append(d13[i])
    for k, c in enumerate(late):
        dd = k1b.dma_ops(a, c, g)
        fill[9 + k][1].insert(0, dd[0])
        fill[9 + k][5].insert(0, dd[1])
    for (n, i), p in zip(slots, parts):
        fill[n][i] += p
    d15 = k1b.dma_ops(a, 15, g)
    fill[10][1].append(d15[0])
    fill[10][5].append(d15[1])
    ids = record(a, lambda r: hook8(r, g, vPOI, 'poi'))
    for i, p in enumerate(k1b.split_even(ids, 8)):
        fill[10][i] += p
    addr, reads, stores = k1b.prep_finish_ops(a, 'pst')
    for i, p in enumerate(k1b.split_even(addr, 3)):
        fill[11][i] += p
    fill[11][3] += reads
    fill[11][6] += stores
    if g == 0:
        fill[fas][0] = fa_signal_ops() + fill[fas][0]
        fill[14][0] = fw_signal_ops() + fill[14][0]
    fill[15][0] = record(a, lambda r: nb_hook15(r, g)) + fill[15][0]
    fill[11][7] += k1b.cs_write_ops(a, [(k1.vCSA, (3 + 2 * g) * 512)])
    prep = k1b.gelu_prep(a, g, 0) + k1b.gelu_consts()
    first, per = k1b.gelu_tile_ops(a, k1.AC_A, 'ga')
    pp = k1b.split_even(prep + first, 4)
    for i in range(4):
        fill[12][i] += pp[i]
    gl = [o for q in per for o in q]
    gs = OPT.get('gstart', 5)
    slots = [(12, i) for i in range(gs, 8)] + [(n, i) for n in (13, 14, 15) for i in range(8)] + \
            [(16, i) for i in range(OPT.get('gend', 2))]
    for (n, i), p in zip(slots, k1b.split_even(gl, len(slots))):
        fill[n][i] += p
    for n in range(8, 16):
        k1b.p2_stage(a, n, g, fill[n])
        st(a, f'p2_{n}')
    k1b.p2_b_phase(a, 15, [[], [], [], []], fill[16][:4])
    k1.run_gaps(a, [k1b.cs_write_ops(a, [(k1.vCSB, (3 + 2 * g + 1) * 512)])])
    a.wait_lg()
    a.wait_vm('fa')
    a('s_barrier')
    nb_fa_check(a)
    st(a, 'tail')
    extras = [q_load(a)] + [kv_dma(a, i) for i in range(pre_n)]
    if g == 1:
        skip = a.newlabel('skipb')
        a(f's_cmp_eq_u32 s{k1.sPB}, 0')
        a(f's_cbranch_scc1 {skip}')
        snap = a.snapshot()
    prep = k1b.gelu_prep(a, g, 1)
    first, per = k1b.gelu_tile_ops(a, k1.AC_B, 'gb')
    ex = list(extras)
    k1.run_gaps(a, [prep[:4], ex.pop(0), prep[4:6], ex.pop(0), prep[6:], first, ex.pop(0)])
    gl = [o for q in per for o in q]
    nx = len(ex)
    span = (len(gl) * OPT.get('xspan', 60)) // 100
    done = 0
    for i, op in enumerate(gl):
        while done < nx and done * span <= i * nx:
            ex[done]()
            done += 1
        emit(a, op)
    while done < nx:
        ex[done]()
        done += 1
    k1b.h_store(a, g, 0, 'ha')
    k1b.h_store(a, g, 1, 'hb')
    if g == 1:
        jn = a.newlabel('joinb')
        a(f's_branch {jn}')
        endsnap = a.snapshot()
        a.label(skip)
        a.restore(snap)
        for x in extras:
            x()
        k1b.h_store(a, g, 0, 'ha')
        a.vmem(f'buffer_load_dword v10, v{vL16}, {srd(S_WS)}, s{sSRC} offen', 'hb')
        a.vmem(f'buffer_load_dword v11, v{vL16}, {srd(S_WS)}, s{sSRC} offen', 'hb')
        assert a.snapshot()[0] == endsnap[0], (a.snapshot(), endsnap)
        a.label(jn)
        a.restore(endsnap)
    a.wait_lg()
    st(a, 'gelu')

STAMPS = {}


def st(a, name):
    if name in STAMPS:
        stamp(a, STAMPS[name])


def gen_km(label, force_fallback=False):
    k1.SC = ' sc1'
    k1.HOOKS = {0: hook0, 8: hook8, 9: hook9, 11: hook11, 14: hook14, 15: hook15}
    k1.PREBAR = {11: prebar11}
    a = Asm()
    end = label + '_end'
    att = label + '_att'
    if OPT.get('st0'):
        a('s_memrealtime s[98:99]')
        a('s_memtime s[100:101]')
    prologue(a, end, None)
    build_srds(a, ['x', 'wq', 'w1', 'ws', 'w2', 'wo', 'b1', 'b2', 'out', 'dbg'])
    if not OPT.get('st0'):
        stamp(a, 0, 0)
    else:
        a('s_mov_b32 s68, s98')
        a('s_mov_b32 s69, s99')
        a('s_mov_b32 s88, s100')
        a('s_mov_b32 s89, s101')
    st(a, 'ka')
    start_extra(a)
    k1.setup(a)
    st(a, 'su1')
    g1 = label + '_g1'
    a(f's_cmp_eq_u32 s{sG}, 1')
    a(f's_cbranch_scc1 {g1}')
    snap0 = a.snapshot()
    joinsnap = None
    pre_n = OPT['kvpre']
    for g in (0, 1):
        if g == 1:
            a.label(g1)
            a.restore(snap0)
        if OPT.get('nb'):
            k1_new(a, g)
        else:
            i0, i1, pfpos = OPT.get('i0', 5), OPT.get('i1', 5), OPT.get('pfpos', 0)
            k1.INIT = i1
            for n in range(i0):
                for d in k1.dma_ops(a, n, g):
                    d()
            st(a, 'iss0')
            if OPT.get('pf') and pfpos == 0:
                prefetch(a)
            k1.setup2(a)
            st(a, 'su2')
            for n in range(i0, i1):
                for d in k1.dma_ops(a, n, g):
                    d()
            if OPT.get('pf') and pfpos == 1:
                prefetch(a)
            st(a, 'iss')
            for n in range(8):
                k1.p1_stage(a, n, g)
                if OPT.get('pf') and pfpos == n + 2:
                    prefetch(a)
                st(a, f'p1_{n}')
            k1.p1_epilogue(a, g)
            st(a, 'e1')
            if OPT.get('xdrain'):
                a('s_waitcnt vmcnt(0)')
                st(a, 'e1d')
            for n in range(8, 16):
                k1.p2_stage(a, n, g)
                st(a, f'p2_{n}')
            k1.p2_b_phase(a, 15, [[], [], [], []], [])
            k1.write_cs_partials(a, [(k1.vCSB, (3 + 2 * g + 1) * 512)])
            a.wait_all()
            a('s_barrier')
            fa_check(a)
            st(a, 'tail')
            k1.gelu_simple(a, g, 0, [q_load(a)] + [kv_dma(a, i) for i in range(pre_n)], 'ha')
            if g == 1:
                skip = a.newlabel('skipb')
                a(f's_cmp_eq_u32 s{k1.sPB}, 0')
                a(f's_cbranch_scc1 {skip}')
            k1.gelu_simple(a, g, 1, [], 'hb')
            if g == 1:
                jn = a.newlabel('joinb')
                a(f's_branch {jn}')
                a.label(skip)
                a(f'buffer_load_dword v10, v{vL16}, {srd(S_WS)}, s{sSRC} offen')
                a(f'buffer_load_dword v11, v{vL16}, {srd(S_WS)}, s{sSRC} offen')
                a.label(jn)
            a.wait_lg()
            st(a, 'gelu')
        if OPT.get('xdrain'):
            a('s_waitcnt vmcnt(0)')
            st(a, 'gelud')
        attention(a, g)
        if g == 0:
            a(f's_branch {att}')
            joinsnap = a.snapshot()
        else:
            assert a.snapshot() == joinsnap, (a.snapshot(), joinsnap)
    a.label(att)
    a.wait_lg()
    a(mfma32(RO, RV1, RP + 4, RO))
    fb = label + '_fb'
    fin = label + '_fin'
    a(f'v_mul_f32 v{vT}, 0, v{RO + 8}')
    for i in range(8):
        a(f'v_fma_f32 v{vT}, v{RO + i}, 0, v{vT}')
    a(f'v_cmp_u_f32 vcc, v{vT}, v{vT}')
    if force_fallback:
        a(f's_branch {fb}')
    else:
        a(f's_cbranch_vccnz {fb}')
    a.label(fin)
    a(f'v_rcp_f32 v{vT}, v{RO + 8}')
    for i in range(8):
        a(f'v_mul_f32 v{RO + i}, v{vT}, v{RO + i}')
    for i in range(4):
        a(f'v_cvt_pk_bf16_f32 v{RO + i}, v{RO + 2 * i}, v{RO + 2 * i + 1}')
    for i in range(4):
        a(f'v_min_u32 v{RO + i}, -2, v{RO + i}')
    a.vmem(f'buffer_store_dwordx4 v[{RO}:{RO + 3}], v{vL16}, {srd(S_WS)}, s{sOF} offen sc1', 'ost')
    st(a, 'oend')
    if OPT.get('xdrain'):
        a('s_waitcnt vmcnt(0)')
        st(a, 'oendd')
    if OPT.get('erw'):
        if OPT.get('erw') == 1:
            rw_addr(a)
            for k in range(16):
                rw_op(a, k)()
        if OPT.get('opos', 1) == 0:
            o_loads(a, True)
        a.wait_lg()
        a('s_barrier')
        st(a, 'ba')
        if OPT.get('opos', 1) == 1:
            o_loads(a, True)
    else:
        a('s_barrier')
        st(a, 'ba')
        reduce_write(a)
        o_loads(a, True)
        a.wait_lg()
        a('s_barrier')
    st(a, 'bb')
    reduce_read_gate(a)
    st(a, 'gate')
    o_check(a)
    st(a, 'opoll')
    ob_write(a)
    a.wait_lg()
    a('s_barrier')
    st(a, 'bc')
    wo_gemm(a)
    st(a, 'wog')
    a.wait_lg()
    t = exchange(a, label)
    final(a, t)
    st(a, 'fin')
    if not OPT.get('nofinw'):
        a('s_waitcnt vmcnt(0)')
    stamp(a, 9, 1)
    if OPT.get('dbgst'):
        lbl = a.newlabel('nodbg')
        a(f's_cmp_lg_u32 s{sW}, {OPT["dbgst"] - 1}')
        a(f's_cbranch_scc1 {lbl}')
        a('s_mov_b64 exec, 1')
        a('v_not_b32 v2, s68')
        a(f'buffer_atomic_umax v2, off, {srd(S_DBG)}, 0 offset:20 sc1')
        for k in range(1, 10):
            a(f'v_mov_b32 v{2 + k}, s{68 + 2 * k}')
            a(f'buffer_atomic_umax v{2 + k}, off, {srd(S_DBG)}, 0 offset:{20 + 4 * k} sc1')
        a('s_waitcnt vmcnt(0)')
        a.label(lbl)
    else:
        stamp_flush(a, 0)
    a('s_endpgm')
    a.label(fb)
    fallback(a, fin)
    a.label(end)
    a('s_endpgm')
    return a
```

```python
from common import *
import k1
from k1 import (XR, WR, ST, CSP, SCR, X, fl, xslot, p1_frag, p1_read_ops, run_gaps, p2_frag, p2_mfma, p2_m16,
                P2A, P2B, C_Q, C1, C2, AC_A, AC_Q, AC_K, AC_B, BUFA, BUFB,
                sTB, sHP, sF0, sT0, sT1, sT2, sT3, sMASK, sMX, sMW, sM2, sPB, sT, sQO, sKO, sHO,
                vXD, vWD, vW1D, aX, aW, vU, vCS0, vCS1, vCSA, vCSB, vSEL, vTMP, vL16, vM, vR, vRR, vMRR,
                vB1A, vB1B)

SXB = ST + 2048
vSQ0, vSQ1 = 16, 17
vCSW, vSXW = 18, 19
vSXA = 28
aWH = 8
sC2 = 59
sCM = 96
vSCW, vSCR = 20, 21
vCSV = 22
vQS = 23
QT = 24
QT2 = 80

P2POS = {8: 49152, 9: 65536, 10: 0, 11: 16384, 12: 32768, 13: 98304, 14: 114688, 15: 81920}
PST = 131072

HOOKS, PREBAR = {}, {}
SCHED = {}
OPT = {}


def split_even(ops, n):
    out = [[] for _ in range(n)]
    for i, o in enumerate(ops):
        out[(i * n) // max(len(ops), 1)].append(o)
    return out


def dma_ops(a, n, g):
    if n < 8:
        return k1.dma_ops(a, n, g)
    ops = []
    ps, C = (n - 8) // 4, (n - 8) % 4
    for q in range(2):
        val = C * 458752 + q * 57344

        def f(q=q, val=val):
            a(f's_add_u32 m0, s{sM2}, {P2POS[n] + q * 1024}')
            if ps == 0:
                a(f's_mov_b32 s{sT2}, {val}')
            else:
                a(f's_add_u32 s{sT2}, s{sPB}, {val}')
            a.vmem(f'buffer_load_dwordx4 v{vW1D}, {srd(S_W1)}, s{sT2} offen lds', f'c{n}')
        ops.append(f)
    return ops


def setup2(a):
    k1.setup2(a)
    a(f'''
v_and_b32 v{vCSW}, 15, v0
v_lshlrev_b32 v{vSXW}, 6, v{vCSW}
v_lshlrev_b32 v{vCSW}, 8, v{vCSW}
v_lshrrev_b32 v2, 4, v0
v_lshlrev_b32 v3, 6, v2
s_lshl_b32 s{sT0}, s{sTT}, 2
s_add_u32 s{sT0}, s{sT0}, {CSP}
v_add3_u32 v{vCSW}, v{vCSW}, v3, s{sT0}
v_lshlrev_b32 v3, 4, v2
s_lshl_b32 s{sT0}, s{sTT}, 7
s_add_u32 s{sT0}, s{sT0}, {SXB}
v_add3_u32 v{vSXW}, v{vSXW}, v3, s{sT0}
s_mov_b32 s{sCM}, 0x00030003
s_mov_b32 s{sCM + 1}, 0x00030003
''')


def cs_write_ops(a, accs_panels, sx=False):
    ops = [f's_mov_b64 exec, s[{sCM}:{sCM + 1}]']
    for acc, off in accs_panels:
        for r in range(4):
            ops.append(lambda acc=acc, off=off, r=r:
                       a.ds(f'ds_write_b32 v{vCSW}, v{acc + r} offset:{off + r * 16}', 'w'))
    if sx:
        ops.append(lambda: a.ds(f'ds_write_b128 v{vSXW}, v[{vSXA}:{vSXA + 3}]', 'w'))
    ops.append('s_mov_b64 exec, -1')
    return ops


def stat_reg(n, g, j, k):
    x = X(n, j) + ((0, 1)[k] if g == 0 else (2, 3)[k])
    t = vU + 2 * k
    return [f'v_and_b32 v{t}, s{sMASK}, v{x}',
            f'v_lshlrev_b32 v{t + 1}, 16, v{x}',
            f'v_fmac_f32 v{vSQ0}, v{t}, v{t}',
            f'v_fmac_f32 v{vSQ1}, v{t + 1}, v{t + 1}']


def sx16(n, j):
    return mfma16(vSXA, X(n, j), vSEL, '0' if (n == 0 and j == 0) else None)


def p1_b_phase(a, n, g, ra, dm):
    w = lambda j: (lambda: a.wait_lg(f'P{n}_{j}'))
    S = lambda j, k: stat_reg(n, g, j, k)
    d = list(dm) + [[]] * 4
    if g == 0:
        q = lambda j: mfma32(AC_Q, p1_frag(0, j, 0), X(n, j))
        k_ = lambda j: mfma32(AC_K, p1_frag(0, j, 1), X(n, j))
        run_gaps(a, [w(2), q(2), ra[0][:3], S(2, 0),
                     k_(2), ra[0][3:], d[0], S(2, 1),
                     w(3), q(3), ra[1][:3], S(3, 0),
                     k_(3), ra[1][3:], d[1], S(3, 1)])
    else:
        v_ = lambda j: mfma32(AC_Q, X(n, j), p1_frag(1, j, 0))
        run_gaps(a, [w(2), v_(2), ra[0], S(2, 0), sx16(n, 2), d[0], S(2, 1),
                     w(3), v_(3), ra[1], S(3, 0), sx16(n, 3), d[1], S(3, 1)])


def p1_a_phase(a, n, g, rb, dm):
    w = lambda j: (lambda: a.wait_lg(f'P{n}_{j}'))
    S = lambda j, k: stat_reg(n, g, j, k)
    d = list(dm) + [[]] * 4
    z = lambda first: '0' if first else None
    if g == 0:
        q = lambda j: mfma32(AC_Q, p1_frag(0, j, 0), X(n, j), z(n == 0 and j == 0))
        k_ = lambda j: mfma32(AC_K, p1_frag(0, j, 1), X(n, j), z(n == 0 and j == 0))
        run_gaps(a, [w(0), q(0), rb[0][:3], S(0, 0),
                     k_(0), rb[0][3:], S(0, 1),
                     mfma16(vCS0, p1_frag(0, 0, 0), vSEL, z(n == 0)), d[0],
                     mfma16(vCS1, p1_frag(0, 0, 1), vSEL, z(n == 0)), rb[1][:3],
                     w(1), q(1), rb[1][3:], S(1, 0),
                     k_(1), d[1], S(1, 1)])
    else:
        v_ = lambda j: mfma32(AC_Q, X(n, j), p1_frag(1, j, 0), z(n == 0 and j == 0))
        run_gaps(a, [w(0), v_(0), rb[0], S(0, 0),
                     mfma16(vCS0, p1_frag(1, 0, 0), vSEL, z(n == 0)), d[0], S(0, 1), sx16(n, 0),
                     w(1), v_(1), rb[1], S(1, 0), sx16(n, 1), d[1], S(1, 1)])


def stage_head(a, n, g):
    a.wait_vm(f'c{n}')
    if n in PREBAR:
        PREBAR[n](a, g)
    a('s_barrier')
    if n in HOOKS:
        HOOKS[n](a, g)


def p1_stage(a, n, g):
    a.comment(f'--- P1 stage {n} g={g}')
    if OPT.get('dep', 3) == 4:
        a.wait_lg()
    stage_head(a, n, g)
    k1.rebase(a, [aX + j for j in range(4)], n)
    dm = [d for c in SCHED[n] for d in dma_ops(a, c, g)]
    db, da = k1.split_dma(dm, g, True)
    nb_ = OPT.get('db0' if g == 0 else 'db1')
    if nb_ is not None:
        db, da = dm[:nb_], dm[nb_:]
    two = lambda l: [l[:(len(l) + 1) // 2], l[(len(l) + 1) // 2:]]
    ra = [p1_read_ops(a, n, g, 0), p1_read_ops(a, n, g, 1)]
    if n > 0:
        p1_b_phase(a, n - 1, g, ra, two(db))
    else:
        run_gaps(a, ra)
        da = db + da
    da = two(da)
    rb = [p1_read_ops(a, n, g, 2), p1_read_ops(a, n, g, 3)]
    p1_a_phase(a, n, g, rb, da)


def e1a(a, g, dmas, prebar=None):
    a.comment(f'--- P1 epilogue g={g}')
    dmas = list(dmas)
    nxt = lambda: dmas.pop(0)() if dmas else None
    p1_b_phase(a, 7, g, [[], []], [])
    t = BUFA
    a(f'''
v_add_f32 v{vSQ0}, v{vSQ0}, v{vSQ1}
v_and_b32 v{t}, 31, v0
v_lshlrev_b32 v{t + 1}, 4, v{t}
s_lshl_b32 s{sT0}, s{sTT}, 9
s_add_u32 s{sT0}, s{sT0}, {ST}
v_add_u32 v{t + 1}, s{sT0}, v{t + 1}
v_lshrrev_b32 v{t + 2}, 5, v0
v_lshlrev_b32 v{t + 2}, 2, v{t + 2}
v_add3_u32 v{t + 2}, v{t + 2}, v{t + 1}, {8 * g}
''')
    a.ds(f'ds_write_b32 v{t + 2}, v{vSQ0}', 'w')
    run_gaps(a, [cs_write_ops(a, [(vCS0, 0), (vCS1, 512)] if g == 0 else [(vCS0, 1024)], sx=(g == 1))])
    a(f'''
v_lshlrev_b32 v{t + 2}, 2, v{t}
s_lshl_b32 s{sT0}, s{sTT}, 7
s_add_u32 s{sT0}, s{sT0}, {SXB}
v_add_u32 v{t + 2}, s{sT0}, v{t + 2}
v_lshlrev_b32 v{t + 3}, 4, v{t}
v_add_u32 v{t + 3}, {CSP}, v{t + 3}
''')
    if g == 0:
        a(f'''
v_lshrrev_b32 v{t}, 5, v0
v_lshlrev_b32 v{t}, 9, v{t}
v_add_u32 v{t + 3}, v{t + 3}, v{t}
''')
    a.wait_lg()
    if prebar:
        prebar(a, g)
    a('s_barrier')
    a.ds(f'ds_read_b128 v[{t + 4}:{t + 7}], v{t + 1}', 's')
    a.ds(f'ds_read_b32 v{t + 12}, v{t + 2}', 's')
    a.ds(f'ds_read_b128 v[{t + 8}:{t + 11}], v{t + 3} offset:{0 if g == 0 else 1024}', 'c')
    a(f'''
v_and_b32 v{vTMP + 2}, 31, v0
v_and_b32 v{vTMP + 3}, 19, v{vTMP + 2}
v_bfe_u32 v{vCS0}, v0, 2, 1
v_lshlrev_b32 v{vCS0}, 3, v{vCS0}
v_bfe_u32 v{vCS0 + 1}, v0, 3, 1
v_lshlrev_b32 v{vCS0 + 1}, 2, v{vCS0 + 1}
v_add3_u32 v{vTMP + 3}, v{vTMP + 3}, v{vCS0}, v{vCS0 + 1}
v_lshlrev_b32 v{vTMP + 3}, 1, v{vTMP + 3}
s_lshl_b32 s{sT0}, s{sG}, 1
s_add_u32 s{sT0}, s{sT0}, s{sF0}
s_lshl_b32 s{sT0}, s{sT0}, 6
s_add_u32 s{sT1}, s{sT0}, s{sPB}
''')
    a.vmem(f'buffer_load_ushort v{vB1A}, v{vTMP + 3}, {srd(S_B1)}, s{sT0} offen', 'b1')
    a.vmem(f'buffer_load_ushort v{vB1B}, v{vTMP + 3}, {srd(S_B1)}, s{sT1} offen', 'b1')
    a.wait_lg('s')
    a(f'''
v_add_f32 v{t + 4}, v{t + 4}, v{t + 5}
v_add_f32 v{t + 6}, v{t + 6}, v{t + 7}
v_mul_f32 v{vM}, {fl(1 / 512)}, v{t + 12}
v_add_f32 v{t + 4}, v{t + 4}, v{t + 6}
v_mul_f32 v{t + 4}, {fl(1 / 512)}, v{t + 4}
v_fma_f32 v{t + 4}, -v{vM}, v{vM}, v{t + 4}
v_max_f32 v{t + 4}, 0, v{t + 4}
v_add_f32 v{t + 5}, {fl(1e-5)}, v{t + 4}
v_rsq_f32 v{vR}, v{t + 5}
''')
    nxt()
    a.wait_lg('c')
    a(f'''
v_add_f32 v{t + 8}, v{t + 8}, v{t + 9}
v_add_f32 v{t + 10}, v{t + 10}, v{t + 11}
v_mul_f32 v{t + 5}, v{vR}, v{vR}
v_mul_f32 v{t + 5}, v{t + 5}, v{t + 4}
v_add_f32 v{t + 5}, {fl(1e-5)}, v{t + 5}
v_rsq_f32 v{t + 5}, v{t + 5}
v_add_f32 v{t + 8}, v{t + 8}, v{t + 10}
s_lshl_b32 s{sT0}, s{sW}, 8
s_add_u32 s{sT0}, s{sT0}, {SCR}
v_lshlrev_b32 v{vSCW}, 2, v0
v_add_u32 v{vSCW}, s{sT0}, v{vSCW}
v_lshrrev_b32 v{vSCR}, 5, v0
v_lshlrev_b32 v{vSCR}, 4, v{vSCR}
v_add_u32 v{vSCR}, s{sT0}, v{vSCR}
v_mul_f32 v{vRR}, v{vR}, v{t + 5}
v_mul_f32 v{vMRR}, v{vM}, v{vRR}
''')
    if g == 0:
        a.ds(f'ds_write_b32 v{vSCW}, v{t + 8}', 'w')
        a(f'v_mul_f32 v{vQS}, {fl(C_Q)}, v{vR}')
    else:
        a(f'''
v_mul_f32 v{t + 9}, v{vM}, v{vR}
v_cmp_gt_u32 vcc, 32, v0
v_cndmask_b32 v{t + 9}, v{t + 9}, v{vR}, vcc
''')
        a.ds(f'ds_write_b32 v{vSCW}, v{t + 9}', 'w')
        a(f'''
v_mov_b32 v{vCSV}, v{t + 8}
v_bfe_u32 v{vQS}, v0, 4, 1
v_lshlrev_b32 v{vQS}, 17, v{vQS}
v_and_b32 v{t + 3}, 15, v0
v_lshlrev_b32 v{t + 3}, 4, v{t + 3}
v_add_u32 v{vQS}, v{vQS}, v{t + 3}
v_lshrrev_b32 v{t + 3}, 5, v0
v_lshlrev_b32 v{t + 3}, 8, v{t + 3}
v_add_u32 v{vQS}, v{vQS}, v{t + 3}
''')
    nxt()
    a(f'''
s_lshl_b32 s{sT0}, s{sHP}, 17
s_lshl_b32 s{sT1}, s{sT}, 10
s_add_u32 s{sQO}, s{sT0}, s{sT1}
s_lshl_b32 s{sT0}, s{sHP}, 18
s_lshl_b32 s{sT1}, s{sT}, 11
s_add_u32 s{sKO}, s{sT0}, s{sT1}
s_add_u32 s{sKO}, s{sKO}, {KV}
s_lshl_b32 s{sT0}, s{sG}, 13
s_sub_u32 s{sT0}, s{sT0}, {WR}
''')
    for j in range(4):
        a(f'v_add_u32 v{aW + j}, s{sT0}, v{aW + j}')
    for j in range(4):
        a(f'v_add_u32 v{aWH + j}, 0x10000, v{aW + j}')
    while dmas:
        nxt()


def e1b_ops(a, g):
    SC = k1.SC
    ops = []
    stores = []
    if g == 0:
        quads = [(p, qd) for p in (0, 1) for qd in range(4)]
        rd = lambda i: (lambda: a.ds(f'ds_read_b128 v[{QT + 4 * (i % 2)}:{QT + 4 * (i % 2) + 3}], v{vSCR} '
                                     f'offset:{quads[i][0] * 128 + quads[i][1] * 32}', f'eq{i}'))
        ops += [rd(0), rd(1)]
        for i, (p, qd) in enumerate(quads):
            acc = AC_Q if p == 0 else AC_K
            sc = vQS if p == 0 else vR
            T = QT + 4 * (i % 2)
            R = [acc + 4 * qd + e for e in range(4)]
            ops.append(lambda i=i: a.wait_lg(f'eq{i}'))
            ops += [f'v_fma_f32 v{R[e]}, -v{vM}, v{T + e}, v{R[e]}' for e in range(4)]
            if i + 2 < 8:
                ops.append(rd(i + 2))
            ops += [f'v_mul_f32 v{R[e]}, v{sc}, v{R[e]}' for e in range(4)]
            ops.append(f'v_cvt_pk_bf16_f32 v{acc + 2 * qd}, v{R[0]}, v{R[1]}')
            ops.append(f'v_cvt_pk_bf16_f32 v{acc + 2 * qd + 1}, v{R[2]}, v{R[3]}')
            if qd in (1, 3):
                half = qd // 2
                so, delta = (sQO, 65536) if p == 0 else (sKO, 131072)

                def stf(acc=acc, half=half, so=so, delta=delta):
                    if half == 0:
                        s_ = f's{so}'
                    else:
                        a(f's_add_u32 s{sT2}, s{so}, {delta}')
                        s_ = f's{sT2}'
                    a.vmem(f'buffer_store_dwordx4 v[{acc + 4 * half}:{acc + 4 * half + 3}], v{vL16}, {srd(S_WS)}, '
                           f'{s_} offen{SC}', 'st')
                (stores if OPT.get('defst', 1) else ops).append(stf)
    else:
        acc = AC_Q
        T = lambda i: (QT, QT2)[i % 2]

        def rd(i):
            def f():
                a.ds(f'ds_read_b128 v[{T(i)}:{T(i) + 3}], v{vSCR} offset:{i * 32}', f'eq{i}')
                a.ds(f'ds_read_b128 v[{T(i) + 4}:{T(i) + 7}], v{vSCR} offset:{128 + i * 32}', f'eq{i}')
            return f
        ops += [rd(0), rd(1)]
        for qd in range(4):
            R = [acc + 4 * qd + e for e in range(4)]
            t = T(qd)
            ops.append(lambda qd=qd: a.wait_lg(f'eq{qd}'))
            ops += [f'v_mul_f32 v{t + 4 + e}, v{vCSV}, v{t + 4 + e}' for e in range(4)]
            ops += [f'v_fma_f32 v{R[e]}, v{R[e]}, v{t + e}, -v{t + 4 + e}' for e in range(4)]
            if qd + 2 < 4:
                ops.append(rd(qd + 2))
            ops.append(f'v_cvt_pk_bf16_f32 v{acc + 2 * qd}, v{R[0]}, v{R[1]}')
            ops.append(f'v_cvt_pk_bf16_f32 v{acc + 2 * qd + 1}, v{R[2]}, v{R[3]}')
            if qd in (1, 3):
                half = qd // 2
                (stores if OPT.get('defst', 1) else ops).append(lambda half=half: a.vmem(
                    f'buffer_store_dwordx4 v[{acc + 4 * half}:{acc + 4 * half + 3}], v{vQS}, {srd(S_WS)}, '
                    f's{sKO} offen offset:{1024 + 512 * half}{SC}', 'st'))
    return ops, stores


def p2_read_ops(a, n, p):
    pos = P2POS[n] + (p // 4) * 4096
    base = aW if pos < 65536 else aWH
    off = pos % 65536
    d = p2_frag(p)
    tag = f'P{n}_{p}'
    return [lambda: a.ds(f'ds_read_b64_tr_b16 v[{d}:{d + 1}], v{base + p % 4} offset:{off}', tag),
            lambda: a.ds(f'ds_read_b64_tr_b16 v[{d + 2}:{d + 3}], v{base + p % 4} offset:{off + 256}', tag)]


def p2_b_phase(a, n, ra, fill):
    w = lambda p: (lambda: a.wait_lg(f'P{n}_{p}'))
    for i, p in enumerate(P2B):
        run_gaps(a, [w(p), p2_mfma(n, p), ra[i], fill[i]])


def p2_a_phase(a, n, rb, fill):
    w = lambda p: (lambda: a.wait_lg(f'P{n}_{p}'))
    for i, p in enumerate(P2A):
        run_gaps(a, [w(p), p2_mfma(n, p), rb[i], fill[i]])
        if p in (0, 4):
            a(p2_m16(n, p))


def p2_stage(a, n, g, fill):
    a.comment(f'--- P2 stage {n} g={g}')
    if n == 12:
        a.wait_lg('w')
    stage_head(a, n, g)
    ra = [p2_read_ops(a, n, p) for p in P2A]
    if n > 8:
        p2_b_phase(a, n - 1, ra, fill[:4])
    else:
        run_gaps(a, [[x for pair in zip(ra, fill[:4]) for y in pair for x in y]])
    rb = [p2_read_ops(a, n, p) for p in P2B]
    p2_a_phase(a, n, rb, fill[4:])


GT = 80


def gelu_prep(a, g, pas):
    pi = 3 + 2 * g + pas
    b1 = vB1A if pas == 0 else vB1B
    t = vCS0
    return [f'v_and_b32 v{t + 4}, 31, v0',
            f'v_lshlrev_b32 v{t + 4}, 4, v{t + 4}',
            f'v_add_u32 v{t + 4}, {CSP}, v{t + 4}',
            lambda: a.ds(f'ds_read_b128 v[{t}:{t + 3}], v{t + 4} offset:{pi * 512}', 'gc'),
            f'v_lshlrev_b32 v{t + 4}, 16, v{b1}',
            f'v_cmp_gt_u32 vcc, 32, v0',
            lambda: a.wait_lg('gc'),
            f'v_add_f32 v{t}, v{t}, v{t + 1}',
            f'v_add_f32 v{t + 2}, v{t + 2}, v{t + 3}',
            f'v_add_f32 v{t}, v{t}, v{t + 2}',
            f'v_cndmask_b32 v{t}, v{t + 4}, v{t}, vcc',
            lambda: a.ds(f'ds_write_b32 v{vSCW}, v{t}', 'w')]


def gelu_quad(a, acc, q, tag):
    cs, b, u, w = [[GT + 4 * k + e for e in range(4)] for k in range(4)]
    R = [acc + 4 * q + e for e in range(4)]
    rd = [lambda: a.ds(f'ds_read_b128 v[{cs[0]}:{cs[3]}], v{vSCR} offset:{q * 32}', tag),
          lambda: a.ds(f'ds_read_b128 v[{b[0]}:{b[3]}], v{vSCR} offset:{128 + q * 32}', tag)]
    ops = [lambda: a.wait_lg(tag)]
    ops += [f'v_fma_f32 v{b[e]}, -v{vMRR}, v{cs[e]}, v{b[e]}' for e in range(4)]
    ops += [f'v_fma_f32 v{R[e]}, v{vRR}, v{R[e]}, v{b[e]}' for e in range(4)]
    body = [f'v_mul_f32 v{u[e]}, v{R[e]}, v{R[e]}' for e in range(4)]
    body += [f'v_fma_f32 v{u[e]}, v{u[e]}, s{sC2}, v{vTMP + 2}' for e in range(4)]
    body += [f'v_mul_f32 v{u[e]}, v{u[e]}, v{R[e]}' for e in range(4)]
    body += [f'v_exp_f32 v{w[e]}, v{u[e]}' for e in range(4)]
    body += [f'v_add_f32 v{w[e]}, 1.0, v{w[e]}' for e in range(4)]
    body += [f'v_rcp_f32 v{w[e]}, v{w[e]}' for e in range(4)]
    body += [f'v_mul_f32 v{R[e]}, v{R[e]}, v{w[e]}' for e in range(4)]
    body.append(f'v_cvt_pk_bf16_f32 v{acc + 2 * q}, v{R[0]}, v{R[1]}')
    body.append(f'v_cvt_pk_bf16_f32 v{acc + 2 * q + 1}, v{R[2]}, v{R[3]}')
    return rd, ops, body


def gelu_consts():
    return [f's_mov_b32 s{sC2}, {fl(C2)}', f'v_mov_b32 v{vTMP + 2}, {fl(C1)}']


def gelu_tile_ops(a, acc, tagp):
    out = []
    rds = [gelu_quad(a, acc, q, f'{tagp}{q}') for q in range(4)]
    out += rds[0][0]
    per = []
    for q in range(4):
        rd, head, body = rds[q]
        seq = list(head)
        if q + 1 < 4:
            seq += rds[q + 1][0]
        seq += body
        per.append(seq)
    return out, per


def h_store(a, g, pas, tag):
    acc = AC_A if pas == 0 else AC_B
    a(f'''
s_mul_i32 s{sHO}, s{sT}, 112
s_lshl_b32 s{sT0}, s{sG}, 1
s_add_u32 s{sT0}, s{sT0}, s{sF0}
s_add_u32 s{sT0}, s{sT0}, {pas}
s_lshl_b32 s{sT0}, s{sT0}, 1
s_add_u32 s{sHO}, s{sHO}, s{sT0}
s_lshl_b32 s{sHO}, s{sHO}, 10
s_add_u32 s{sHO}, s{sHO}, {HF}
''')
    a.vmem(f'buffer_store_dwordx4 v[{acc}:{acc + 3}], v{vL16}, {srd(S_WS)}, s{sHO} offen{k1.SC}', tag)
    a.vmem(f'buffer_store_dwordx4 v[{acc + 4}:{acc + 7}], v{vL16}, {srd(S_WS)}, s{sHO} offen offset:1024{k1.SC}', tag)


vPO2 = 47


def prep_issue(a):
    a.comment('prep DMA')
    lbl = a.newlabel('prep_wo')
    lbl2 = a.newlabel('prep_j')
    a(f'''
v_lshrrev_b32 v{vTMP}, 2, v0
v_lshlrev_b32 v{vTMP}, 10, v{vTMP}
v_and_b32 v{vTMP + 1}, 3, v0
v_lshlrev_b32 v{vTMP + 1}, 4, v{vTMP + 1}
s_and_b32 s{sT0}, s2, 1
s_lshl_b32 s{sT0}, s{sT0}, 3
s_add_u32 s{sT0}, s{sT0}, s{sW}
s_lshl_b32 s{sT0}, s{sT0}, 6
v_add3_u32 v{vTMP}, v{vTMP}, v{vTMP + 1}, s{sT0}
s_lshr_b32 s{k1.sPS}, s2, 1
s_lshl_b32 s{sT1}, s{sW}, 10
s_add_u32 m0, s{sT1}, {PST}
s_lshl_b32 s{sT2}, s{k1.sPS}, 14
s_cmp_ge_u32 s2, 224
s_cbranch_scc1 {lbl}
''')
    a.vmem(f'buffer_load_dwordx4 v{vTMP}, {srd(S_W2)}, s{sT2} offen lds', 'prep')
    a(f's_branch {lbl2}')
    a.label(lbl)
    a(f's_sub_u32 s{sT2}, s{sT2}, {112 * 16384}')
    a(f'buffer_load_dwordx4 v{vTMP}, {srd(S_WO)}, s{sT2} offen lds')
    a.label(lbl2)
    a(f'''
s_cmp_ge_u32 s2, 32
s_cselect_b32 s{k1.sPF}, 0x40000000, 0
s_lshr_b32 s{sT2}, s2, 1
s_add_u32 s{sT2}, s{sT2}, 16
s_lshl_b32 s{sT2}, s{sT2}, 14
s_add_u32 m0, s{sT1}, {PST + 8192}
v_add_u32 v{vTMP}, s{k1.sPF}, v{vTMP}
''')
    a.vmem(f'buffer_load_dwordx4 v{vTMP}, {srd(S_WO)}, s{sT2} offen lds', 'prep')


def prep_finish_ops(a, tag):
    t, u, oob, d = 2, 3, 44, 56
    SC = k1.SC

    def body(r):
        r(f'''
v_lshrrev_b32 v{t}, 5, v0
v_lshlrev_b32 v{t}, 9, v{t}
v_bfe_u32 v{u}, v0, 2, 2
v_lshlrev_b32 v{u}, 6, v{u}
v_add_u32 v{t}, v{t}, v{u}
v_bfe_u32 v{u}, v0, 4, 1
v_lshlrev_b32 v{u}, 5, v{u}
v_add_u32 v{t}, v{t}, v{u}
v_and_b32 v{u}, 3, v0
v_lshlrev_b32 v{u}, 3, v{u}
s_lshl_b32 s{sT0}, s{sW}, 10
s_add_u32 s{sT0}, s{sT0}, {PST}
v_add3_u32 v{t}, v{t}, v{u}, s{sT0}
v_add_u32 v{oob}, s{k1.sPF}, v{vL16}
''')
    addr = record(a, body)

    def rd(r):
        r.wait_vm('prep')
        r.ds(f'ds_read_b64_tr_b16 v[{d}:{d + 1}], v{t}', 'pp')
        r.ds(f'ds_read_b64_tr_b16 v[{d + 2}:{d + 3}], v{t} offset:256', 'pp')
        r.ds(f'ds_read_b64_tr_b16 v[{d + 4}:{d + 5}], v{t} offset:8192', 'pp')
        r.ds(f'ds_read_b64_tr_b16 v[{d + 6}:{d + 7}], v{t} offset:{8192 + 256}', 'pp')
    reads = record(a, rd)

    def stf(r):
        r(f'''
s_lshl_b32 s{k1.sPS}, s2, 3
s_add_u32 s{k1.sPS}, s{k1.sPS}, s{sW}
s_lshl_b32 s{k1.sPS}, s{k1.sPS}, 10
s_add_u32 s{k1.sPS}, s{k1.sPS}, {WF}
''')
        r.wait_lg('pp')
        r.vmem(f'buffer_store_dwordx4 v[{d}:{d + 3}], v{vL16}, {srd(S_WS)}, s{k1.sPS} offen{SC}', tag)
        r(f's_add_u32 s{k1.sPS}, s{k1.sPS}, {2048 * 1024}')
        r.vmem(f'buffer_store_dwordx4 v[{d + 4}:{d + 7}], v{oob}, {srd(S_WS)}, s{k1.sPS} offen{SC}', tag)
    stores = record(a, stf)
    return addr, reads, stores
```

```python
from common import *
import k1
from k1 import fl

KM_LDS = 163840
LCNT = 163824
RED = 0
OB = 131072
FA = FL
FB = FL + 4096
FH = FL + 8192
LOG2E = 1.4426950408889634
SPIN = 20000

sT0, sT1, sT2, sT3 = 52, 53, 54, 55
sH, sTQ, sSRC, sMD = 28, 29, 30, 31
sTILE, sCG, sOF, sOP = 98, 99, 100, 101
sHS, sWSRC, sWO, sSPIN = 8, 9, 10, 11
sVM = 94
sCT, sKH = sTT, sG

vL16 = 1
aK0, aK1, aV0, aV1 = 2, 3, 4, 5
vT = 6
RQ, RK, RV0, RV1, RP = 12, 16, 20, 24, 28
NEGM = 36
RS = (52, 68)
RO = 84
ACC = 100
RING = 164
vX, vB2, vXO = 228, 232, 236
vG, vS = 240, 248
OP = 52

OPT = dict(u0=28, D=11, fbsig=5, prio=None, b2=24, kvpre=8, nofb=False)


def spin(a, site, load, check_ok):
    ok = a.newlabel('ok')
    lp = a.newlabel('spin')
    check_ok(ok)
    a(f's_mov_b32 s{sSPIN}, {SPIN}')
    a.label(lp)
    a('s_sleep 1')
    load()
    a('s_waitcnt vmcnt(0)')
    check_ok(ok)
    a(f's_sub_u32 s{sSPIN}, s{sSPIN}, 1')
    a(f's_cmp_lg_u32 s{sSPIN}, 0')
    a(f's_cbranch_scc1 {lp}')
    a(f'v_mov_b32 v{vT}, {site}')
    a(f'buffer_store_dword v{vT}, off, {srd(S_DBG)}, 0 offset:{4 * site}')
    a.label(ok)


def one_lane_store(a, reg, srdn, soff, val=1):
    a('s_mov_b64 exec, 1')
    a(f'v_mov_b32 v{reg}, {val}')
    a(f'buffer_store_dword v{reg}, off, {srd(srdn)}, {soff} sc1')
    a('s_mov_b64 exec, -1')


def start_extra(a):
    lbl = a.newlabel('noinit')
    a(f'''
v_mov_b32 v20, 0
v_mov_b32 v21, 0
v_mov_b32 v22, 0
v_mov_b32 v23, 0
v_mov_b32 v24, {LCNT}
''')
    a.ds('ds_write_b32 v24, v20', 'w')
    a(f'''
s_or_b32 s{sT0}, s2, s{sW}
s_cmp_lg_u32 s{sT0}, 0
s_cbranch_scc1 {lbl}
v_lshrrev_b32 v1, 2, v0
v_lshlrev_b32 v1, 8, v1
v_and_b32 v2, 3, v0
v_lshlrev_b32 v2, 4, v2
v_add_u32 v1, v1, v2
s_mov_b32 s{sT0}, {FA}
s_mov_b32 s{sT1}, {FB}
s_mov_b32 s{sT2}, {FH}
buffer_store_dwordx4 v[20:23], v1, {srd(S_WS)}, s{sT0} offen sc1
buffer_store_dwordx4 v[20:23], v1, {srd(S_WS)}, s{sT1} offen sc1
buffer_store_dwordx4 v[20:23], v1, {srd(S_WS)}, s{sT2} offen sc1
''')
    a.label(lbl)


def prefetch(a):
    pf = OPT['pf']
    a(f'''
s_lshl_b32 s{sT0}, s2, 3
s_add_u32 s{sT0}, s{sT0}, s{sW}
v_lshlrev_b32 v48, 4, v0
''')
    if pf & 1:
        a(f's_mul_i32 s{sT1}, s{sT0}, 768')
        a.vmem(f'buffer_load_dwordx4 v[52:55], v48, {srd(S_WQ)}, s{sT1} offen', 'pf')
    if pf & 2:
        a(f's_mul_i32 s{sT1}, s{sT0}, 896')
        a.vmem(f'buffer_load_dwordx4 v[56:59], v48, {srd(S_W1)}, s{sT1} offen', 'pf')
    if pf & 4:
        a(f's_lshl_b32 s{sT1}, s{sT0}, 10')
        a.vmem(f'buffer_load_dwordx4 v[60:63], v48, {srd(S_X)}, s{sT1} offen', 'pf')
    if pf & 8:
        a(f's_mul_i32 s{sT1}, s{sT0}, 896')
        a.vmem(f'buffer_load_dwordx4 v[56:59], v48, {srd(S_W2)}, s{sT1} offen', 'pf')
        a(f's_lshl_b32 s{sT1}, s{sT0}, 8')
        a.vmem(f'buffer_load_dword v60, v48, {srd(S_WO)}, s{sT1} offen', 'pf')


def hook0(a, g):
    st(a, 'c0')
    if g != 0:
        return
    lbl = a.newlabel('noinit2')
    a(f'''
s_or_b32 s{sT0}, s2, s{sW}
s_cmp_lg_u32 s{sT0}, 0
s_cbranch_scc1 {lbl}
''')
    one_lane_store(a, 20, S_DBG, 0)
    a.label(lbl)


def hook8(a, g, poi=92, tag='st'):
    a(f'''
s_lshl_b32 s{sT0}, s{sXCD}, 2
s_lshr_b32 s{sCG}, s{sSLOT}, 3
s_add_u32 s{sH}, s{sT0}, s{sCG}
s_and_b32 s{sT1}, s{sSLOT}, 7
s_lshl_b32 s{sTQ}, s{sT1}, 3
s_add_u32 s{sTQ}, s{sTQ}, s{sW}
s_lshl_b32 s{sMD}, s{sW}, 10
s_lshl_b32 s{sSRC}, s{sH}, 17
s_add_u32 s{sSRC}, s{sSRC}, {KV}
s_add_u32 s{sSRC}, s{sSRC}, s{sMD}
s_lshl_b32 s{sOF}, s{sTQ}, 5
s_add_u32 s{sOF}, s{sOF}, s{sH}
s_lshl_b32 s{sOF}, s{sOF}, 10
s_add_u32 s{sOF}, s{sOF}, {OF}
s_lshl_b32 s{sT0}, s{sXCD}, 3
s_add_u32 s{sTILE}, s{sT0}, s{sT1}
s_lshl_b32 s{sOP}, s{sTILE}, 3
s_add_u32 s{sOP}, s{sOP}, s{sW}
s_lshl_b32 s{sOP}, s{sOP}, 12
s_add_u32 s{sOP}, s{sOP}, {OF}
s_mul_i32 s{sT0}, s{sW}, 14
s_mul_i32 s{sHS}, s{sTILE}, 112
s_add_u32 s{sHS}, s{sHS}, s{sT0}
s_lshl_b32 s{sHS}, s{sHS}, 10
s_add_u32 s{sHS}, s{sHS}, {HF}
s_lshl_b32 s{sWSRC}, s{sT0}, 4
s_lshl_b32 s{sT1}, s{sCG}, 2
s_add_u32 s{sWSRC}, s{sWSRC}, s{sT1}
s_lshl_b32 s{sWSRC}, s{sWSRC}, 10
s_add_u32 s{sWSRC}, s{sWSRC}, {WF}
s_lshl_b32 s{sWO}, s{sKH}, 4
s_add_u32 s{sWO}, s{sWO}, 112
s_lshl_b32 s{sWO}, s{sWO}, 4
s_add_u32 s{sWO}, s{sWO}, s{sT1}
s_add_u32 s{sWO}, s{sWO}, s{sCT}
s_lshl_b32 s{sWO}, s{sWO}, 10
s_add_u32 s{sWO}, s{sWO}, {WF}
v_mov_b32 v{poi}, -1
v_mov_b32 v{poi + 1}, -1
v_mov_b32 v{poi + 2}, -1
v_mov_b32 v{poi + 3}, -1
''')
    a.vmem(f'buffer_store_dwordx4 v[{poi}:{poi + 3}], v{vL16}, {srd(S_WS)}, s{sOF} offen sc1', tag)


def ini_load(a):
    return f'buffer_load_dword v92, off, {srd(S_DBG)}, 0 sc1'


def hook9(a, g):
    a.vmem(ini_load(a), 'ini')


def prebar11(a, g):
    a.wait_vm('ini')

    def chk(ok):
        a('v_cmp_eq_u32 vcc, 1, v92')
        a(f's_cbranch_vccnz {ok}')
    spin(a, 1, lambda: a(ini_load(a)), chk)


def hook11(a, g):
    if g == 0:
        lbl = a.newlabel('nofa')
        a(f'''
s_cmp_lg_u32 s{sW}, 0
s_cbranch_scc1 {lbl}
s_lshl_b32 s{sT0}, s{k1.sHP}, 8
s_lshl_b32 s{sT1}, s{k1.sTB}, 2
s_add_u32 s{sT0}, s{sT0}, s{sT1}
s_add_u32 s{sT0}, s{sT0}, {FA}
''')
        one_lane_store(a, 92, S_WS, f's{sT0}')
        a.label(lbl)
    k1.prep_finish(a)


def hook14(a, g):
    if g == 0:
        lbl = a.newlabel('nofw')
        a(f'''
s_cmp_lg_u32 s{sW}, 0
s_cbranch_scc1 {lbl}
s_lshr_b32 s{sT0}, s2, 4
s_lshl_b32 s{sT0}, s{sT0}, 8
s_and_b32 s{sT1}, s2, 15
s_lshl_b32 s{sT1}, s{sT1}, 2
s_add_u32 s{sT0}, s{sT0}, s{sT1}
s_add_u32 s{sT0}, s{sT0}, {FB}
''')
        one_lane_store(a, 92, S_WS, f's{sT0}')
        a.label(lbl)


def fa_load():
    return f'buffer_load_dword v93, v94, {srd(S_WS)}, s{sSPIN - 0 if False else sT1} offen sc1'


def fa_addr(a):
    a(f'''
s_lshr_b32 s{sT1}, s{sH}, 1
s_lshl_b32 s{sT1}, s{sT1}, 8
s_add_u32 s{sT1}, s{sT1}, {FA}
''')


def hook15(a, g):
    a('v_and_b32 v94, 15, v0')
    a('v_lshlrev_b32 v94, 2, v94')
    fa_addr(a)
    a.vmem(fa_load(), 'fa')


def fa_check(a):
    def chk(ok):
        a('v_cmp_ne_u32 vcc, 1, v93')
        a(f's_cbranch_vccz {ok}')

    def ld():
        fa_addr(a)
        a(fa_load())
    spin(a, 2, ld, chk)


def kv_dma(a, i):
    def f():
        a(f's_add_u32 m0, s{sMD}, {i * 8192}')
        a(f's_add_u32 s{sT2}, s{sSRC}, {i * 8192}')
        a.vmem(f'buffer_load_dwordx4 v{vL16}, {srd(S_WS)}, s{sT2} offen sc1 lds', f'kv{i}')
    return f


def q_load(a):
    def f():
        a(f'''
s_lshl_b32 s{sT2}, s{sH}, 6
s_add_u32 s{sT2}, s{sT2}, s{sTQ}
s_lshl_b32 s{sT2}, s{sT2}, 10
''')
        a.vmem(f'buffer_load_dwordx4 v[{RQ}:{RQ + 3}], v{vL16}, {srd(S_WS)}, s{sT2} offen sc1', 'q')
    return f


def k_read(a, t):
    ar, off = (aK0, t * 2048) if t < 32 else (aK1, (t - 32) * 2048)
    a.ds(f'ds_read_b128 v[{RK}:{RK + 3}], v{ar} offset:{off}', f'K{t}')


def v_reads(a, items):
    a(f's_mov_b64 exec, s[{sVM}:{sVM + 1}]')
    for part, t in items:
        ar, off = (aV0, t * 2048) if t < 32 else (aV1, (t - 32) * 2048)
        r = RV0 if part == 0 else RV1
        a.ds(f'ds_read_b128 v[{r}:{r + 3}], v{ar} offset:{off + part * 512}', f'V{part}_{t}')
    a('s_mov_b64 exec, -1')


def run(a, items):
    for it in items:
        emit(a, it)


def attn_step(a, t, nt, ev, mf, pre):
    S, Sn = RS[t % 2], RS[(t + 1) % 2]
    ex = [f'v_exp_f32 v{S + i}, v{S + i}' for i in range(16)]
    cv = [f'v_cvt_pk_bf16_f32 v{RP + i}, v{S + 2 * i}, v{S + 2 * i + 1}' for i in range(8)]
    run(a, pre.get(t, []))
    if t + 1 < nt:
        a.wait_lg(f'K{t + 1}')
        a(mfma32(Sn, RK, RQ, NEGM))
        if t + 2 < nt:
            k_read(a, t + 2)
    run(a, ev.get(2 * t, []))
    run(a, (ex[0], ex[1], ex[2], ex[3]))
    run(a, mf.get(2 * t, []))
    run(a, (cv[0], ex[4], ex[5], cv[1]))
    if t > 0:
        a.wait_lg(f'V1_{t - 1}')
        a(mfma32(RO, RV1, RP + 4, RO))
    run(a, (ex[6], ex[7], cv[2], ex[8], ex[9], cv[3], ex[10], ex[11]))
    a.wait_lg(f'V0_{t}')
    a(mfma32(RO, RV0, RP, '0' if t == 0 else RO))
    items = [(1, t)]
    if t + 1 < nt:
        items.append((0, t + 1))
    v_reads(a, items)
    run(a, ev.get(2 * t + 1, []))
    run(a, (cv[4], ex[12], ex[13], cv[5]))
    run(a, mf.get(2 * t + 1, []))
    run(a, (ex[14], ex[15], cv[6], cv[7]))


def row_max(a, S, dst, tmp):
    a(f'v_max3_f32 v{dst}, v{S}, v{S + 1}, v{S + 2}')
    a(f'v_max3_f32 v{tmp}, v{S + 3}, v{S + 4}, v{S + 5}')
    a(f'v_max3_f32 v{dst}, v{dst}, v{S + 6}, v{S + 7}')
    a(f'v_max3_f32 v{tmp}, v{tmp}, v{S + 8}, v{S + 9}')
    a(f'v_max3_f32 v{dst}, v{dst}, v{S + 10}, v{S + 11}')
    a(f'v_max3_f32 v{tmp}, v{tmp}, v{S + 12}, v{S + 13}')
    a(f'v_max3_f32 v{dst}, v{dst}, v{S + 14}, v{S + 15}')
    a(f'v_max_f32 v{dst}, v{dst}, v{tmp}')
    a(f'v_mov_b32 v{tmp}, v{dst}')
    a(f'v_permlane32_swap_b32 v{dst}, v{tmp}')
    a(f'v_max_f32 v{dst}, v{dst}, v{tmp}')


def fallback(a, done_label):
    a.comment('--- fallback: online softmax with the running true maximum')
    loop = a.newlabel('fb_loop')
    S = RS[0]
    vm, vmn, val, va, vb = vT, vT + 1, vT + 2, vT + 3, vT + 4
    a(f'v_mov_b32 v{vm}, 0xff800000')
    for i in range(16):
        a(f'v_mov_b32 v{RO + i}, 0')
    a(f'v_mov_b32 v{va}, v{aK0}')
    a(f'v_mov_b32 v{vb}, v{aV0}')
    a(f's_mov_b32 s{sT0}, 64')
    a.label(loop)
    a(f'ds_read_b128 v[{RK}:{RK + 3}], v{va}')
    a(f's_mov_b64 exec, s[{sVM}:{sVM + 1}]')
    a(f'ds_read_b128 v[{RV0}:{RV0 + 3}], v{vb}')
    a(f'ds_read_b128 v[{RV1}:{RV1 + 3}], v{vb} offset:512')
    a('s_mov_b64 exec, -1')
    a('s_waitcnt lgkmcnt(0)')
    a(mfma32(S, RK, RQ, '0'))
    a(f'v_add_u32 v{va}, 0x800, v{va}')
    a(f'v_add_u32 v{vb}, 0x800, v{vb}')
    row_max(a, S, vmn, val)
    a(f'v_max_f32 v{vmn}, v{vmn}, v{vm}')
    a(f'v_sub_f32 v{val}, v{vm}, v{vmn}')
    a(f'v_exp_f32 v{val}, v{val}')
    a(f'v_mov_b32 v{vm}, v{vmn}')
    for i in range(16):
        a(f'v_sub_f32 v{S + i}, v{S + i}, v{vmn}')
    for i in range(16):
        a(f'v_exp_f32 v{S + i}, v{S + i}')
    for i in range(16):
        a(f'v_mul_f32 v{RO + i}, v{val}, v{RO + i}')
    for i in range(8):
        a(f'v_cvt_pk_bf16_f32 v{RP + i}, v{S + 2 * i}, v{S + 2 * i + 1}')
    a(mfma32(RO, RV0, RP, RO))
    a(mfma32(RO, RV1, RP + 4, RO))
    a(f's_sub_u32 s{sT0}, s{sT0}, 1')
    a(f's_cmp_lg_u32 s{sT0}, 0')
    a(f's_cbranch_scc1 {loop}')
    a(f's_branch {done_label}')


def slot(i):
    return RING + 4 * (i % 16)


def stream_load(a, i):
    def f():
        if OPT.get('xnl') and i < 70:
            return
        if i < 70:
            s, j = divmod(i, 5)
            if j == 0:
                a(f's_add_u32 s{sT2}, s{sHS}, {s * 1024}')
                a.vmem(f'buffer_load_dwordx4 v[{slot(i)}:{slot(i) + 3}], v{vL16}, {srd(S_WS)}, s{sT2} offen sc1', f'f{i}')
            else:
                if j == 1:
                    a(f's_add_u32 s{sT3}, s{sWSRC}, {s * 16384}')
                a.vmem(f'buffer_load_dwordx4 v[{slot(i)}:{slot(i) + 3}], v{vL16}, {srd(S_WS)}, s{sT3} offen '
                       f'offset:{(j - 1) * 1024} sc1', f'f{i}')
        else:
            k = i - 70
            a(f's_add_u32 s{sT2}, s{sWO}, {k * 16384}')
            a.vmem(f'buffer_load_dwordx4 v[{slot(i)}:{slot(i) + 3}], v{vL16}, {srd(S_WS)}, s{sT2} offen sc1', 'wo')
    return f


def stream_mfma(a, s, j):
    def f():
        iw, ih = 5 * s + 1 + j, 5 * s
        if not OPT.get('xnw'):
            a.wait_vm(f'f{iw}')
        else:
            a.vm = [t for t in a.vm if t != f'f{iw}' and t != f'f{ih}']
        if OPT.get('xnm'):
            return
        a(mfma32(ACC + 16 * j, slot(iw), slot(ih), '0' if s == 0 else None))
    return f


def side_loads(a):
    a(f'''
s_lshl_b32 s{sT0}, s{sCG}, 8
s_lshl_b32 s{sT1}, s{sCT}, 6
s_add_u32 s{sT0}, s{sT0}, s{sT1}
s_lshl_b32 s{sT1}, s{sKH}, 5
s_add_u32 s{sT0}, s{sT0}, s{sT1}
v_lshrrev_b32 v{vT}, 5, v0
v_lshlrev_b32 v{vT}, 3, v{vT}
v_add_u32 v{vT}, s{sT0}, v{vT}
v_and_b32 v{vT + 1}, 31, v0
v_lshlrev_b32 v{vT + 1}, 10, v{vT + 1}
s_lshl_b32 s{sT1}, s{sTILE}, 15
v_add3_u32 v{vT + 1}, v{vT + 1}, v{vT}, s{sT1}
''')
    a.vmem(f'buffer_load_dwordx2 v[{vB2}:{vB2 + 1}], v{vT}, {srd(S_B2)}, 0 offen', 'side')
    a.vmem(f'buffer_load_dwordx2 v[{vB2 + 2}:{vB2 + 3}], v{vT}, {srd(S_B2)}, 0 offen offset:16', 'side')
    a.vmem(f'buffer_load_dwordx2 v[{vX}:{vX + 1}], v{vT + 1}, {srd(S_X)}, 0 offen', 'side')
    a.vmem(f'buffer_load_dwordx2 v[{vX + 2}:{vX + 3}], v{vT + 1}, {srd(S_X)}, 0 offen offset:16', 'side')
    a(f'''
v_lshrrev_b32 v{vT + 2}, 5, v0
v_lshlrev_b32 v{vT + 2}, 4, v{vT + 2}
v_and_b32 v{vXO}, 31, v0
v_lshlrev_b32 v{vXO}, 10, v{vXO}
s_add_u32 s{sT0}, s{sT0}, s{sT1}
v_add3_u32 v{vXO}, v{vXO}, v{vT + 2}, s{sT0}
''')
    if OPT.get('otouch'):
        a.vmem(f'buffer_load_dword v{vXO + 1}, v{vXO}, {srd(S_OUT)}, 0 offen', 'side')


def fb_signal_1(a):
    a.wait_vm('hb')
    a(f'''
v_mov_b32 v{vT}, {LCNT}
v_mov_b32 v{vT + 1}, 1
s_mov_b64 exec, 1
''')
    a.ds(f'ds_add_rtn_u32 v{vT + 1}, v{vT}, v{vT + 1}', 'cnt')
    a('s_mov_b64 exec, -1')


def fb_signal_2(a):
    lbl = a.newlabel('nofb')
    a.wait_lg('cnt')
    a(f'''
v_readfirstlane_b32 s{sT0}, v{vT + 1}
s_cmp_lg_u32 s{sT0}, 7
s_cbranch_scc1 {lbl}
s_lshr_b32 s{sT0}, s2, 4
s_lshl_b32 s{sT0}, s{sT0}, 8
s_and_b32 s{sT1}, s2, 15
s_lshl_b32 s{sT1}, s{sT1}, 2
s_add_u32 s{sT0}, s{sT0}, s{sT1}
s_add_u32 s{sT0}, s{sT0}, {FB}
''')
    one_lane_store(a, vT + 1, S_WS, f's{sT0}')
    a.label(lbl)


def fb_load(a):
    return [f'buffer_load_dwordx4 v[8:11], v{vT}, {srd(S_WS)}, s{sT1} offen sc1']


def fb_addr(a):
    a(f'''
s_mov_b32 s{sT1}, {FB}
s_lshr_b32 s{sT0}, s{sTILE}, 2
s_lshl_b32 s{sT0}, s{sT0}, 8
s_add_u32 s{sT0}, s{sT0}, {FH}
''')


def fb_poll(a):
    a(f'''
v_lshrrev_b32 v{vT}, 2, v0
v_lshlrev_b32 v{vT}, 8, v{vT}
v_and_b32 v{vT + 1}, 3, v0
v_lshlrev_b32 v{vT + 1}, 4, v{vT + 1}
v_add_u32 v{vT}, v{vT}, v{vT + 1}
v_and_b32 v{vT + 1}, 15, v0
v_lshlrev_b32 v{vT + 1}, 2, v{vT + 1}
''')
    fb_addr(a)
    for x in fb_load(a):
        a.vmem(x, 'fb')


def fb_check(a):
    a.wait_vm('fb')

    def chk(ok):
        a('v_and_b32 v8, v8, v9')
        a('v_and_b32 v10, v10, v11')
        a('v_and_b32 v8, v8, v10')
        a('v_cmp_ne_u32 vcc, 1, v8')
        a(f's_cbranch_vccz {ok}')

    def ld():
        fb_addr(a)
        for x in fb_load(a):
            a(x)
    spin(a, 3, ld, chk)


def o_loads(a, tracked):
    for i in range(4):
        t = f'buffer_load_dwordx4 v[{OP + 4 * i}:{OP + 4 * i + 3}], v{vL16}, {srd(S_WS)}, s{sOP} offen offset:{1024 * i} sc1'
        if tracked:
            a.vmem(t, 'op')
        else:
            a(t)


def o_check(a):
    a.wait_vm('op')

    def chk(ok):
        for i in range(4):
            r = OP + 4 * i
            a(f'v_max3_u32 v{vT + i}, v{r}, v{r + 1}, v{r + 2}')
            a(f'v_max_u32 v{vT + i}, v{vT + i}, v{r + 3}')
        a(f'v_max3_u32 v{vT}, v{vT}, v{vT + 1}, v{vT + 2}')
        a(f'v_max_u32 v{vT}, v{vT}, v{vT + 3}')
        a(f'v_cmp_eq_u32 vcc, -1, v{vT}')
        a(f's_cbranch_vccz {ok}')
    spin(a, 4, lambda: o_loads(a, False), chk)


def reduce_write(a):
    a(f's_lshl_b32 s{sT0}, s{sW}, 14')
    a(f'v_add_u32 v{vT}, s{sT0}, v{vL16}')
    for k in range(16):
        a.ds(f'ds_write_b128 v{vT}, v[{ACC + 4 * k}:{ACC + 4 * k + 3}] offset:{k * 1024}', 'rw')


vRW = 238


def rw_addr(a):
    a(f'''
s_lshl_b32 s{sT0}, s{sW}, 14
s_cmp_ge_u32 s{sW}, 6
s_cselect_b32 s{sT1}, 0x8000, 0
s_add_u32 s{sT0}, s{sT0}, s{sT1}
v_add_u32 v{vRW}, s{sT0}, v{vL16}
''')


def rw_op(a, k):
    return lambda: a.ds(f'ds_write_b128 v{vRW}, v[{ACC + 4 * k}:{ACC + 4 * k + 3}] offset:{k * 1024}', 'rw')


def reduce_read_gate(a):
    early = OPT.get('erw')
    a(f'''
s_lshl_b32 s{sT0}, s{sCT}, 12
s_lshl_b32 s{sT1}, s{sKH}, 11
s_add_u32 s{sT0}, s{sT0}, s{sT1}
v_add_u32 v{vT}, s{sT0}, v{vL16}
v_add_u32 v{vT + 1}, 0x10000, v{vT}
''')
    if early:
        a(f'v_add_u32 v{vT + 2}, 0x20000, v{vT}')
    t = ACC
    for w in range(8):
        for e in range(2):
            ar = vT if w < 4 else vT + 1
            off = (w % 4) * 16384 + e * 1024
            if early and w >= 6:
                ar, off = vT + 2, (w - 6) * 16384 + e * 1024
            d = t + 8 * w + 4 * e
            a.ds(f'ds_read_b128 v[{d}:{d + 3}], v{ar} offset:{off}', f'r{w}')
    a.wait_vm('side')
    for e in range(2):
        for h in range(2):
            a(f'v_lshlrev_b32 v{vG + 4 * e + 2 * h}, 16, v{vB2 + 2 * e + h}')
            a(f'v_and_b32 v{vG + 4 * e + 2 * h + 1}, 0xffff0000, v{vB2 + 2 * e + h}')
    for w in range(8):
        a.wait_lg(f'r{w}')
        for k in range(8):
            a(f'v_add_f32 v{vG + k}, v{vG + k}, v{t + 8 * w + k}')
        if OPT.get('erw') and OPT.get('opos', 1) == 2 + w:
            o_loads(a, True)
    for k in range(8):
        a(f'v_mul_f32 v{t + k}, {fl(-LOG2E)}, v{vG + k}')
    for k in range(8):
        a(f'v_exp_f32 v{t + k}, v{t + k}')
    for k in range(8):
        a(f'v_add_f32 v{t + k}, 1.0, v{t + k}')
    for k in range(8):
        a(f'v_rcp_f32 v{t + k}, v{t + k}')
    for k in range(8):
        a(f'v_mul_f32 v{vG + k}, v{vG + k}, v{t + k}')


def ob_base():
    return 98304 if OPT.get('erw') else OB


def ob_write(a):
    a(f's_lshl_b32 s{sT0}, s{sW}, 12')
    a(f's_add_u32 s{sT0}, s{sT0}, {ob_base()}')
    a(f'v_add_u32 v{vT}, s{sT0}, v{vL16}')
    for i in range(4):
        a.ds(f'ds_write_b128 v{vT}, v[{OP + 4 * i}:{OP + 4 * i + 3}] offset:{i * 1024}', 'ow')


def wo_gemm(a):
    a(f's_lshl_b32 s{sT0}, s{sKH}, 14')
    a(f's_add_u32 s{sT0}, s{sT0}, {ob_base()}')
    a(f'v_add_u32 v{vT}, s{sT0}, v{vL16}')
    bb = ACC
    for i in range(16):
        a.ds(f'ds_read_b128 v[{bb + 4 * i}:{bb + 4 * i + 3}], v{vT} offset:{i * 1024}', f'o{i}')
    a.wait_vm('wo')
    for i in range(16):
        a.wait_lg(f'o{i}')
        a(mfma32(RO, slot(70 + i), bb + 4 * i, '0' if i == 0 else None))


def exchange(a, label):
    k1l = label + '_kh1'
    j = label + '_khj'
    a(f'''
s_lshl_b32 s{sT0}, s{sW}, 11
v_add_u32 v{vT}, s{sT0}, v{vL16}
s_xor_b32 s{sT0}, s{sW}, 4
s_lshl_b32 s{sT0}, s{sT0}, 11
v_add_u32 v{vT + 1}, s{sT0}, v{vL16}
s_cmp_eq_u32 s{sKH}, 1
s_cbranch_scc1 {k1l}
''')
    for kh in (0, 1):
        if kh == 1:
            a.label(k1l)
        send = RO + (8 if kh == 0 else 0)
        keep = RO + (0 if kh == 0 else 8)
        a(f'ds_write_b128 v{vT}, v[{send}:{send + 3}]')
        a(f'ds_write_b128 v{vT}, v[{send + 4}:{send + 7}] offset:1024')
        for k in range(8):
            a(f'v_mov_b32 v{vS + k}, v{keep + k}')
        if kh == 0:
            a(f's_branch {j}')
    a.label(j)
    a('s_waitcnt lgkmcnt(0)')
    a('s_barrier')
    t = ACC
    a(f'ds_read_b128 v[{t}:{t + 3}], v{vT + 1}')
    a(f'ds_read_b128 v[{t + 4}:{t + 7}], v{vT + 1} offset:1024')
    return t


def final(a, t):
    u = ACC + 32
    for k in range(4):
        a(f'v_lshlrev_b32 v{u + 2 * k}, 16, v{vX + k}')
        a(f'v_and_b32 v{u + 2 * k + 1}, 0xffff0000, v{vX + k}')
    a('s_waitcnt lgkmcnt(0)')
    for k in range(8):
        a(f'v_add_f32 v{vS + k}, v{vS + k}, v{t + k}')
    for k in range(8):
        a(f'v_fma_f32 v{vS + k}, v{vS + k}, v{vG + k}, v{u + k}')
    for k in range(4):
        a(f'v_cvt_pk_bf16_f32 v{vS + k}, v{vS + 2 * k}, v{vS + 2 * k + 1}')
    a(f'v_permlane32_swap_b32 v{vS}, v{vS + 2}')
    a(f'v_permlane32_swap_b32 v{vS + 1}, v{vS + 3}')
    mod = {0: '', 1: ' sc1', 2: ' sc0 sc1', 3: ' nt', 4: ' sc1 nt', 5: ' sc0 sc1 nt'}[OPT.get('omod', 0)]
    a.vmem(f'buffer_store_dwordx4 v[{vS}:{vS + 3}], v{vXO}, {srd(S_OUT)}, 0 offen{mod}', 'st')


def prio_plan(g):
    p = OPT.get('pr', 0)
    if p == 0:
        return lambda t: None
    if g == 1:
        return lambda t: 1 if t == 0 else None
    pat = {1: [2, 2, 2, 0], 2: [2, 2, 0], 3: [2, 0], 4: [2, 2, 2, 2, 0], 5: [2, 2, 2, 2, 2, 0, 0], 6: [0],
           7: [2, 2, 2, 0, 0]}[p]
    return lambda t: pat[t % len(pat)] if (t == 0 or pat[t % len(pat)] != pat[(t - 1) % len(pat)]) else None


def attention(a, g):
    pre_n = OPT['kvpre']
    a(f'''
v_mov_b32 v{aK0}, v{vL16}
v_add_u32 v{aK1}, 0x10000, v{vL16}
v_and_b32 v{vT}, 15, v0
v_lshrrev_b32 v{vT + 1}, 5, v0
v_lshlrev_b32 v{vT + 1}, 4, v{vT + 1}
v_add_u32 v{vT}, v{vT}, v{vT + 1}
v_lshlrev_b32 v{vT}, 4, v{vT}
v_add_u32 v{aV0}, 0x400, v{vT}
v_add_u32 v{aV1}, 0x10400, v{vT}
s_mov_b32 s{sVM}, 0xffff
s_mov_b32 s{sVM + 1}, 0xffff
''')
    if OPT.get('ones2', 1):
        a(f'v_and_b32 v{vT}, 27, v0')
        a(f'v_cmp_eq_u32 vcc, 16, v{vT}')
        a(f'v_mov_b32 v{vT}, 0x3f803f80')
        for i in range(4):
            a(f'v_cndmask_b32 v{RV0 + i}, 0, v{vT}, vcc')
            a(f'v_cndmask_b32 v{RV1 + i}, 0, v{vT}, vcc')
    else:
        for i in range(4):
            a(f'v_mov_b32 v{RV0 + i}, 0x3f803f80')
            a(f'v_mov_b32 v{RV1 + i}, 0x3f803f80')
    b1 = OPT.get('b1', pre_n)
    a.wait_vm(['q'] + [f'kv{i}' for i in range(b1)])
    a('s_barrier')
    st(a, 'b1')
    ev, mf, pre = {}, {}, {}
    add = lambda d, k, x: d.setdefault(k, []).append(x)
    k_read(a, 0)
    v_reads(a, [(0, 0)])
    a.wait_lg('K0')
    a(mfma32(RS[0], RK, RQ, '0'))
    row_max(a, RS[0], vT, vT + 1)
    for i in range(16):
        a(f'v_sub_f32 v{NEGM + i}, 0, v{vT}')
    a(mfma32(RS[0], RK, RQ, NEGM))
    k_read(a, 1)
    for i in range(pre_n, 16):
        add(ev, 2 * (i - pre_n), kv_dma(a, i))
    if b1 < pre_n:
        tb = 4 * b1 - 2
        add(pre, tb, lambda: (a.wait_vm([f'kv{i}' for i in range(pre_n)]), a('s_barrier')))
    tb2 = OPT['b2']
    assert tb2 <= 4 * pre_n - 2
    add(pre, tb2, lambda: (a.wait_vm([f'kv{i}' for i in range(16)]), a('s_barrier')))
    fs = OPT['fbsig']
    add(pre, fs, lambda: fb_signal_1(a))
    add(pre, fs + 1, lambda: fb_signal_2(a))
    u0, D = OPT['u0'], OPT['D']
    add(ev, u0 - 5, lambda: fb_poll(a))
    add(pre, u0 // 2, lambda: fb_check(a))
    for i in range(86):
        add(ev, u0 + i, stream_load(a, i))
    for s in range(14):
        for j in range(4):
            add(mf, u0 + 5 * s + 1 + j + D, stream_mfma(a, s, j))
    add(ev, u0 + 87, lambda: side_loads(a))
    assert u0 + 87 < 128
    if OPT.get('erw'):
        tb3, u1 = OPT.get('b3', 50), OPT['erw']
        assert tb3 >= 50
        add(pre, tb3, lambda: a('s_barrier'))
        if u1 > 1:
            assert u1 >= 2 * tb3 and u1 > u0 + 70 + D + 1
            add(ev, u1 - 1, lambda: rw_addr(a))
            nper = OPT.get('erwn', 1)
            for k in range(16):
                add(ev, u1 + k // nper, rw_op(a, k))
            assert u1 + 15 // nper < 128
    pp = prio_plan(g)
    for t in range(64):
        if pp(t) is not None:
            pre.setdefault(t, []).insert(0, f's_setprio {pp(t)}')
    for t in range(64):
        attn_step(a, t, 64, ev, mf, pre)
        st(a, f'a{t}')
    if OPT.get('pr', 0):
        a('s_setprio 0')


vINI, vFAA, vFAD = 6, 22, 23
vPOI = 24


def nb_hook6(a, g):
    a.vmem(f'buffer_load_dword v{vINI}, off, {srd(S_DBG)}, 0 sc1', 'ini')


def nb_ini_check(a, g):
    a.wait_vm('ini')

    def chk(ok):
        a(f'v_cmp_eq_u32 vcc, 1, v{vINI}')
        a(f's_cbranch_vccnz {ok}')
    spin(a, 1, lambda: a(f'buffer_load_dword v{vINI}, off, {srd(S_DBG)}, 0 sc1'), chk)


def flag_ops(addr):
    return [x.strip() for x in addr.strip().split('\n')] + [
        f's_cmp_eq_u32 s{sW}, 0',
        's_cselect_b64 exec, 1, 0',
        f'v_mov_b32 v{vINI}, 1',
        f'buffer_store_dword v{vINI}, off, {srd(S_WS)}, s{sT0} sc1',
        's_mov_b64 exec, -1']


def fa_signal_ops():
    return [flag_ops(f'''
s_lshl_b32 s{sT0}, s{k1.sHP}, 8
s_lshl_b32 s{sT1}, s{k1.sTB}, 2
s_add_u32 s{sT0}, s{sT0}, s{sT1}
s_add_u32 s{sT0}, s{sT0}, {FA}
''')][0]


def fw_signal_ops():
    return flag_ops(f'''
s_lshr_b32 s{sT0}, s2, 4
s_lshl_b32 s{sT0}, s{sT0}, 8
s_and_b32 s{sT1}, s2, 15
s_lshl_b32 s{sT1}, s{sT1}, 2
s_add_u32 s{sT0}, s{sT0}, s{sT1}
s_add_u32 s{sT0}, s{sT0}, {FB}
''')


def nb_prebar_st(a, g):
    a.wait_vm('st')


def nb_prebar14(a, g):
    a.wait_vm(['pst', 'poi'])


def nb_fa_load():
    return f'buffer_load_dword v{vFAD}, v{vFAA}, {srd(S_WS)}, s{sT1} offen sc1'


def nb_hook15(a, g):
    a(f'v_and_b32 v{vFAA}, 15, v0')
    a(f'v_lshlrev_b32 v{vFAA}, 2, v{vFAA}')
    fa_addr(a)
    a.vmem(nb_fa_load(), 'fa')


def nb_fa_check(a):
    def chk(ok):
        a(f'v_cmp_ne_u32 vcc, 1, v{vFAD}')
        a(f's_cbranch_vccz {ok}')

    def ld():
        fa_addr(a)
        a(nb_fa_load())
    spin(a, 2, ld, chk)


def k1_new(a, g):
    import k1b
    k1b.OPT = OPT
    fas = OPT.get('fas', 12)
    k1b.HOOKS = {0: hook0, 6: nb_hook6}
    k1b.PREBAR = {fas: nb_prebar_st}
    pre_n = OPT['kvpre']
    for d in k1b.dma_ops(a, 0, g):
        d()
    st(a, 'iss0')
    k1b.setup2(a)
    st(a, 'su2')
    i1, dep, ramp = OPT.get('i1', 3), OPT.get('dep', 3), OPT.get('ramp', 1)
    for n in range(1, i1):
        for d in k1b.dma_ops(a, n, g):
            d()
    nxt = i1
    for n in range(8):
        k1b.SCHED[n] = []
        while nxt <= n + dep and (len(k1b.SCHED[n]) < ramp or nxt <= n + 1):
            k1b.SCHED[n].append(nxt)
            nxt += 1
    late = list(range(nxt, 15))
    st(a, 'iss')
    pfpos = OPT.get('pfpos', 2)
    for n in range(8):
        k1b.p1_stage(a, n, g)
        if OPT.get('pf') and pfpos == n + 2:
            prefetch(a)
        st(a, f'p1_{n}')
    ne1 = OPT.get('ne1', 2)
    k1b.e1a(a, g, [d for c in late[:ne1] for d in k1b.dma_ops(a, c, g)], nb_ini_check)
    late = late[ne1:]
    st(a, 'e1')
    fill = {n: [[] for _ in range(8)] for n in range(8, 17)}
    e1b, e1st = k1b.e1b_ops(a, g)
    gaps = [(8, 0), (8, 2), (8, 4), (8, 6), (9, 0), (9, 2), (9, 4), (9, 6)][OPT.get('dg0', 0):]
    dl = [d for c in late + [15] for d in k1b.dma_ops(a, c, g)]
    for (n, i), d in zip(gaps, dl):
        fill[n][i].append(d)
    assert len(dl) <= len(gaps)
    w8 = OPT.get('w8', 2)
    slots = [(8, i) for i in range(4) for _ in range(w8)] + [(8, i) for i in range(4, 8)] + [(9, i) for i in range(8)]
    if g == 1:
        slots = slots[:len(slots) - OPT.get('e1short', 4)]
    parts = k1b.split_even(e1b, len(slots))
    for (n, i), p in zip(slots, parts):
        fill[n][i] += p
    sp = OPT.get('stpos', 79)
    for k, x in enumerate(e1st):
        fill[(sp + k) // 8][(sp + k) % 8].append(x)
    ids = record(a, lambda r: hook8(r, g, vPOI, 'st'))
    for i, p in enumerate(k1b.split_even(ids, 4)):
        fill[10][4 + i] += p
    if g == 0:
        fill[fas][0] = fa_signal_ops() + fill[fas][0]
    fill[15][0] = record(a, lambda r: nb_hook15(r, g)) + fill[15][0]
    fill[OPT.get('prepst', 13)][3].append(lambda: k1b.prep_issue(a))
    fill[11][7] += k1b.cs_write_ops(a, [(k1.vCSA, (3 + 2 * g) * 512)])
    prep = k1b.gelu_prep(a, g, 0) + k1b.gelu_consts()
    first, per = k1b.gelu_tile_ops(a, k1.AC_A, 'ga')
    pp = k1b.split_even(prep + first, 4)
    for i in range(4):
        fill[12][i] += pp[i]
    gl = [o for q in per for o in q]
    gs = OPT.get('gstart', 5)
    slots = [(12, i) for i in range(gs, 8)] + [(n, i) for n in (13, 14, 15) for i in range(8)] + \
            [(16, i) for i in range(OPT.get('gend', 2))]
    for (n, i), p in zip(slots, k1b.split_even(gl, len(slots))):
        fill[n][i] += p
    for n in range(8, 16):
        k1b.p2_stage(a, n, g, fill[n])
        st(a, f'p2_{n}')
    k1b.p2_b_phase(a, 15, [[], [], [], []], fill[16][:4])
    k1.run_gaps(a, [k1b.cs_write_ops(a, [(k1.vCSB, (3 + 2 * g + 1) * 512)])])
    a.wait_lg()
    a.wait_vm('fa')
    a('s_barrier')
    nb_fa_check(a)
    st(a, 'tail')
    extras = [q_load(a)] + [kv_dma(a, i) for i in range(pre_n)]
    if g == 1:
        skip = a.newlabel('skipb')
        a(f's_cmp_eq_u32 s{k1.sPB}, 0')
        a(f's_cbranch_scc1 {skip}')
        snap = a.snapshot()
    paddr, preads, pstores = k1b.prep_finish_ops(a, 'pst')
    prep = k1b.gelu_prep(a, g, 1)
    first, per = k1b.gelu_tile_ops(a, k1.AC_B, 'gb')
    ex = list(extras)
    k1.run_gaps(a, [prep[:4], ex.pop(0), prep[4:6], ex.pop(0), prep[6:], first, ex.pop(0), paddr])
    gl = [o for q in per for o in q]
    nx = len(ex)
    span = (len(gl) * OPT.get('xspan', 60)) // 100
    done = 0
    for i, op in enumerate(gl):
        while done < nx and done * span <= i * nx:
            ex[done]()
            done += 1
        if i == (len(gl) * 3) // 4:
            k1.run_gaps(a, [preads])
        emit(a, op)
    while done < nx:
        ex[done]()
        done += 1
    k1b.h_store(a, g, 0, 'ha')
    k1.run_gaps(a, [pstores])
    k1b.h_store(a, g, 1, 'hb')
    if g == 1:
        jn = a.newlabel('joinb')
        a(f's_branch {jn}')
        endsnap = a.snapshot()
        a.label(skip)
        a.restore(snap)
        for x in extras:
            x()
        k1.run_gaps(a, [paddr, preads])
        k1b.h_store(a, g, 0, 'ha')
        k1.run_gaps(a, [pstores])
        a.vmem(f'buffer_load_dword v10, v{vL16}, {srd(S_WS)}, s{sSRC} offen', 'hb')
        a.vmem(f'buffer_load_dword v11, v{vL16}, {srd(S_WS)}, s{sSRC} offen', 'hb')
        assert a.snapshot()[0] == endsnap[0], (a.snapshot(), endsnap)
        a.label(jn)
        a.restore(endsnap)
    a.wait_lg()
    st(a, 'gelu')

STAMPS = {}


def st(a, name):
    if name in STAMPS:
        stamp(a, STAMPS[name])


def gen_km(label, force_fallback=False):
    k1.SC = ' sc1'
    k1.HOOKS = {0: hook0, 8: hook8, 9: hook9, 11: hook11, 14: hook14, 15: hook15}
    k1.PREBAR = {11: prebar11}
    a = Asm()
    end = label + '_end'
    att = label + '_att'
    if OPT.get('st0'):
        a('s_memrealtime s[98:99]')
        a('s_memtime s[100:101]')
    prologue(a, end, None)
    build_srds(a, ['x', 'wq', 'w1', 'ws', 'w2', 'wo', 'b1', 'b2', 'out', 'dbg'])
    if not OPT.get('st0'):
        stamp(a, 0, 0)
    else:
        a('s_mov_b32 s68, s98')
        a('s_mov_b32 s69, s99')
        a('s_mov_b32 s88, s100')
        a('s_mov_b32 s89, s101')
    st(a, 'ka')
    start_extra(a)
    k1.setup(a)
    st(a, 'su1')
    g1 = label + '_g1'
    a(f's_cmp_eq_u32 s{sG}, 1')
    a(f's_cbranch_scc1 {g1}')
    snap0 = a.snapshot()
    joinsnap = None
    pre_n = OPT['kvpre']
    for g in (0, 1):
        if g == 1:
            a.label(g1)
            a.restore(snap0)
        if OPT.get('nb'):
            k1_new(a, g)
        else:
            i0, i1, pfpos = OPT.get('i0', 5), OPT.get('i1', 5), OPT.get('pfpos', 0)
            k1.INIT = i1
            for n in range(i0):
                for d in k1.dma_ops(a, n, g):
                    d()
            st(a, 'iss0')
            if OPT.get('pf') and pfpos == 0:
                prefetch(a)
            k1.setup2(a)
            st(a, 'su2')
            for n in range(i0, i1):
                for d in k1.dma_ops(a, n, g):
                    d()
            if OPT.get('pf') and pfpos == 1:
                prefetch(a)
            st(a, 'iss')
            for n in range(8):
                k1.p1_stage(a, n, g)
                if OPT.get('pf') and pfpos == n + 2:
                    prefetch(a)
                st(a, f'p1_{n}')
            k1.p1_epilogue(a, g)
            st(a, 'e1')
            if OPT.get('xdrain'):
                a('s_waitcnt vmcnt(0)')
                st(a, 'e1d')
            for n in range(8, 16):
                k1.p2_stage(a, n, g)
                st(a, f'p2_{n}')
            k1.p2_b_phase(a, 15, [[], [], [], []], [])
            k1.write_cs_partials(a, [(k1.vCSB, (3 + 2 * g + 1) * 512)])
            a.wait_all()
            a('s_barrier')
            fa_check(a)
            st(a, 'tail')
            k1.gelu_simple(a, g, 0, [q_load(a)] + [kv_dma(a, i) for i in range(pre_n)], 'ha')
            if g == 1:
                skip = a.newlabel('skipb')
                a(f's_cmp_eq_u32 s{k1.sPB}, 0')
                a(f's_cbranch_scc1 {skip}')
            k1.gelu_simple(a, g, 1, [], 'hb')
            if g == 1:
                jn = a.newlabel('joinb')
                a(f's_branch {jn}')
                a.label(skip)
                a(f'buffer_load_dword v10, v{vL16}, {srd(S_WS)}, s{sSRC} offen')
                a(f'buffer_load_dword v11, v{vL16}, {srd(S_WS)}, s{sSRC} offen')
                a.label(jn)
            a.wait_lg()
            st(a, 'gelu')
        if OPT.get('xdrain'):
            a('s_waitcnt vmcnt(0)')
            st(a, 'gelud')
        attention(a, g)
        if g == 0:
            a(f's_branch {att}')
            joinsnap = a.snapshot()
        else:
            assert a.snapshot() == joinsnap, (a.snapshot(), joinsnap)
    a.label(att)
    a.wait_lg()
    a(mfma32(RO, RV1, RP + 4, RO))
    fb = label + '_fb'
    fin = label + '_fin'
    a(f'v_mul_f32 v{vT}, 0, v{RO + 8}')
    for i in range(8):
        a(f'v_fma_f32 v{vT}, v{RO + i}, 0, v{vT}')
    a(f'v_cmp_u_f32 vcc, v{vT}, v{vT}')
    if force_fallback:
        a(f's_branch {fb}')
    else:
        a(f's_cbranch_vccnz {fb}')
    a.label(fin)
    a(f'v_rcp_f32 v{vT}, v{RO + 8}')
    for i in range(8):
        a(f'v_mul_f32 v{RO + i}, v{vT}, v{RO + i}')
    for i in range(4):
        a(f'v_cvt_pk_bf16_f32 v{RO + i}, v{RO + 2 * i}, v{RO + 2 * i + 1}')
    for i in range(4):
        a(f'v_min_u32 v{RO + i}, -2, v{RO + i}')
    a.vmem(f'buffer_store_dwordx4 v[{RO}:{RO + 3}], v{vL16}, {srd(S_WS)}, s{sOF} offen sc1', 'ost')
    st(a, 'oend')
    if OPT.get('xdrain'):
        a('s_waitcnt vmcnt(0)')
        st(a, 'oendd')
    if OPT.get('erw'):
        if OPT.get('erw') == 1:
            rw_addr(a)
            for k in range(16):
                rw_op(a, k)()
        if OPT.get('opos', 1) == 0:
            o_loads(a, True)
        a.wait_lg()
        a('s_barrier')
        st(a, 'ba')
        if OPT.get('opos', 1) == 1:
            o_loads(a, True)
    else:
        a('s_barrier')
        st(a, 'ba')
        reduce_write(a)
        o_loads(a, True)
        a.wait_lg()
        a('s_barrier')
    st(a, 'bb')
    reduce_read_gate(a)
    st(a, 'gate')
    o_check(a)
    st(a, 'opoll')
    ob_write(a)
    a.wait_lg()
    a('s_barrier')
    st(a, 'bc')
    wo_gemm(a)
    st(a, 'wog')
    a.wait_lg()
    t = exchange(a, label)
    final(a, t)
    st(a, 'fin')
    if not OPT.get('nofinw'):
        a('s_waitcnt vmcnt(0)')
    stamp(a, 9, 1)
    if OPT.get('dbgst'):
        lbl = a.newlabel('nodbg')
        a(f's_cmp_lg_u32 s{sW}, {OPT["dbgst"] - 1}')
        a(f's_cbranch_scc1 {lbl}')
        a('s_mov_b64 exec, 1')
        a('v_not_b32 v2, s68')
        a(f'buffer_atomic_umax v2, off, {srd(S_DBG)}, 0 offset:20 sc1')
        for k in range(1, 10):
            a(f'v_mov_b32 v{2 + k}, s{68 + 2 * k}')
            a(f'buffer_atomic_umax v{2 + k}, off, {srd(S_DBG)}, 0 offset:{20 + 4 * k} sc1')
        a('s_waitcnt vmcnt(0)')
        a.label(lbl)
    else:
        stamp_flush(a, 0)
    a('s_endpgm')
    a.label(fb)
    fallback(a, fin)
    a.label(end)
    a('s_endpgm')
    return a
```

```python
from common import *
import k1
from k1 import (XR, WR, ST, CSP, SCR, X, fl, xslot, p1_frag, p1_read_ops, run_gaps, p2_frag, p2_mfma, p2_m16,
                P2A, P2B, C_Q, C1, C2, AC_A, AC_Q, AC_K, AC_B, BUFA, BUFB,
                sTB, sHP, sF0, sT0, sT1, sT2, sT3, sMASK, sMX, sMW, sM2, sPB, sT, sQO, sKO, sHO,
                vXD, vWD, vW1D, aX, aW, vU, vCS0, vCS1, vCSA, vCSB, vSEL, vTMP, vL16, vM, vR, vRR, vMRR,
                vB1A, vB1B)

SXB = ST + 2048
vSQ0, vSQ1 = 16, 17
vCSW, vSXW = 18, 19
vSXA = 28
aWH = 8
sC2 = 59
sCM = 96
vSCW, vSCR = 20, 21
vCSV = 22
vQS = 23
QT = 24
QT2 = 80

P2POS = {8: 49152, 9: 65536, 10: 0, 11: 16384, 12: 32768, 13: 98304, 14: 114688, 15: 49152}

HOOKS, PREBAR = {}, {}
SCHED = {}
OPT = {}


def split_even(ops, n):
    out = [[] for _ in range(n)]
    for i, o in enumerate(ops):
        out[(i * n) // max(len(ops), 1)].append(o)
    return out


sROT, sKX, sKW = 93, 57, 58


def rot_setup(a):
    m = OPT.get('rot', 0)
    if m == 1:
        a(f's_and_b32 s{sROT}, s{sTB}, 3')
    elif m == 2:
        a(f's_lshr_b32 s{sROT}, s{sSLOT}, 3')
        a(f's_add_u32 s{sROT}, s{sROT}, s{sTB}')
        a(f's_and_b32 s{sROT}, s{sROT}, 3')
    elif m == 3:
        a(f's_and_b32 s{sROT}, s{sTB}, 1')
        a(f's_lshl_b32 s{sROT}, s{sROT}, 1')
    elif m == 4:
        a(f's_lshr_b32 s{sROT}, s{sTB}, 1')
        a(f's_and_b32 s{sROT}, s{sROT}, 3')
    if m:
        a(f's_lshl_b32 s{sROT}, s{sROT}, 1')


def dma_ops(a, n, g):
    if n < 8 and not OPT.get('rot'):
        return k1.dma_ops(a, n, g)
    ops = []
    if n < 8:
        tag = f'c{n}'

        def xop(q):
            def f():
                if q == 0:
                    a(f's_add_u32 s{sKW}, s{sROT}, {n}')
                    a(f's_and_b32 s{sKW}, s{sKW}, 7')
                    a(f's_lshl_b32 s{sKX}, s{sKW}, 7')
                    a(f's_mul_i32 s{sKW}, s{sKW}, 196608')
                a(f's_add_u32 m0, s{sMX}, {xslot(n) + q * 1024}')
                a.vmem(f'buffer_load_dwordx4 v{vXD + q}, {srd(S_X)}, s{sKX} offen lds', tag)
            return f

        def wop(ldsoff, extra):
            def f():
                a(f's_add_u32 m0, s{sMW}, {ldsoff}')
                if extra:
                    a(f's_add_u32 s{sT2}, s{sKW}, {extra}')
                a.vmem(f'buffer_load_dwordx4 v{vWD}, {srd(S_WQ)}, s{sT2 if extra else sKW} offen lds', tag)
            return f
        wb = (n % 5) * 12288
        ops = [xop(0), xop(1)]
        if g == 0:
            ops.append(wop(wb + 2 * 4096, 0))
        else:
            ops.append(wop(wb, 0))
            ops.append(wop(wb + 4096, 1024))
        return ops
    ps, C = (n - 8) // 4, (n - 8) % 4
    for q in range(2):
        val = C * 458752 + q * 57344

        def f(q=q, val=val):
            a(f's_add_u32 m0, s{sM2}, {P2POS[n] + q * 1024}')
            if OPT.get('rot'):
                a(f's_lshr_b32 s{sT2}, s{sROT}, 1')
                a(f's_add_u32 s{sT2}, s{sT2}, {C}')
                a(f's_and_b32 s{sT2}, s{sT2}, 3')
                a(f's_mul_i32 s{sT2}, s{sT2}, 458752')
                if q:
                    a(f's_add_u32 s{sT2}, s{sT2}, {q * 57344}')
                if ps:
                    a(f's_add_u32 s{sT2}, s{sT2}, s{sPB}')
            elif ps == 0:
                a(f's_mov_b32 s{sT2}, {val}')
            else:
                a(f's_add_u32 s{sT2}, s{sPB}, {val}')
            a.vmem(f'buffer_load_dwordx4 v{vW1D}, {srd(S_W1)}, s{sT2} offen lds', f'c{n}')
        ops.append(f)
    return ops


def setup2(a):
    k1.setup2(a)
    a(f'''
v_and_b32 v{vCSW}, 15, v0
v_lshlrev_b32 v{vSXW}, 6, v{vCSW}
v_lshlrev_b32 v{vCSW}, 8, v{vCSW}
v_lshrrev_b32 v2, 4, v0
v_lshlrev_b32 v3, 6, v2
s_lshl_b32 s{sT0}, s{sTT}, 2
s_add_u32 s{sT0}, s{sT0}, {CSP}
v_add3_u32 v{vCSW}, v{vCSW}, v3, s{sT0}
v_lshlrev_b32 v3, 4, v2
s_lshl_b32 s{sT0}, s{sTT}, 7
s_add_u32 s{sT0}, s{sT0}, {SXB}
v_add3_u32 v{vSXW}, v{vSXW}, v3, s{sT0}
s_mov_b32 s{sCM}, 0x00030003
s_mov_b32 s{sCM + 1}, 0x00030003
''')


def cs_write_ops(a, accs_panels, sx=False):
    ops = [f's_mov_b64 exec, s[{sCM}:{sCM + 1}]']
    for acc, off in accs_panels:
        for r in range(4):
            ops.append(lambda acc=acc, off=off, r=r:
                       a.ds(f'ds_write_b32 v{vCSW}, v{acc + r} offset:{off + r * 16}', 'w'))
    if sx:
        ops.append(lambda: a.ds(f'ds_write_b128 v{vSXW}, v[{vSXA}:{vSXA + 3}]', 'w'))
    ops.append('s_mov_b64 exec, -1')
    return ops


def stat_reg(n, g, j, k):
    x = X(n, j) + ((0, 1)[k] if g == 0 else (2, 3)[k])
    t = vU + 2 * k
    return [f'v_and_b32 v{t}, s{sMASK}, v{x}',
            f'v_lshlrev_b32 v{t + 1}, 16, v{x}',
            f'v_fmac_f32 v{vSQ0}, v{t}, v{t}',
            f'v_fmac_f32 v{vSQ1}, v{t + 1}, v{t + 1}']


def sx16(n, j):
    return mfma16(vSXA, X(n, j), vSEL, '0' if (n == 0 and j == 0) else None)


def p1_b_phase(a, n, g, ra, dm):
    w = lambda j: (lambda: a.wait_lg(f'P{n}_{j}'))
    S = lambda j, k: stat_reg(n, g, j, k)
    d = list(dm) + [[]] * 4
    if g == 0:
        q = lambda j: mfma32(AC_Q, p1_frag(0, j, 0), X(n, j))
        k_ = lambda j: mfma32(AC_K, p1_frag(0, j, 1), X(n, j))
        run_gaps(a, [w(2), q(2), ra[0][:3], S(2, 0),
                     k_(2), ra[0][3:], d[0], S(2, 1),
                     w(3), q(3), ra[1][:3], S(3, 0),
                     k_(3), ra[1][3:], d[1], S(3, 1)])
    else:
        v_ = lambda j: mfma32(AC_Q, X(n, j), p1_frag(1, j, 0))
        run_gaps(a, [w(2), v_(2), ra[0], S(2, 0), sx16(n, 2), d[0], S(2, 1),
                     w(3), v_(3), ra[1], S(3, 0), sx16(n, 3), d[1], S(3, 1)])


def p1_a_phase(a, n, g, rb, dm):
    w = lambda j: (lambda: a.wait_lg(f'P{n}_{j}'))
    S = lambda j, k: stat_reg(n, g, j, k)
    d = list(dm) + [[]] * 4
    z = lambda first: '0' if first else None
    if g == 0:
        q = lambda j: mfma32(AC_Q, p1_frag(0, j, 0), X(n, j), z(n == 0 and j == 0))
        k_ = lambda j: mfma32(AC_K, p1_frag(0, j, 1), X(n, j), z(n == 0 and j == 0))
        run_gaps(a, [w(0), q(0), rb[0][:3], S(0, 0),
                     k_(0), rb[0][3:], S(0, 1),
                     mfma16(vCS0, p1_frag(0, 0, 0), vSEL, z(n == 0)), d[0],
                     mfma16(vCS1, p1_frag(0, 0, 1), vSEL, z(n == 0)), rb[1][:3],
                     w(1), q(1), rb[1][3:], S(1, 0),
                     k_(1), d[1], S(1, 1)])
    else:
        v_ = lambda j: mfma32(AC_Q, X(n, j), p1_frag(1, j, 0), z(n == 0 and j == 0))
        run_gaps(a, [w(0), v_(0), rb[0], S(0, 0),
                     mfma16(vCS0, p1_frag(1, 0, 0), vSEL, z(n == 0)), d[0], S(0, 1), sx16(n, 0),
                     w(1), v_(1), rb[1], S(1, 0), sx16(n, 1), d[1], S(1, 1)])


def stage_head(a, n, g):
    a.wait_vm(f'c{n}')
    if n in PREBAR:
        PREBAR[n](a, g)
    a('s_barrier')
    if n in HOOKS:
        HOOKS[n](a, g)


def p1_stage(a, n, g):
    a.comment(f'--- P1 stage {n} g={g}')
    if OPT.get('dep', 3) == 4:
        a.wait_lg()
    stage_head(a, n, g)
    k1.rebase(a, [aX + j for j in range(4)], n)
    dm = [d for c in SCHED[n] for d in dma_ops(a, c, g)]
    db, da = k1.split_dma(dm, g, True)
    nb_ = OPT.get('db0' if g == 0 else 'db1')
    if nb_ is not None:
        db, da = dm[:nb_], dm[nb_:]
    two = lambda l: [l[:(len(l) + 1) // 2], l[(len(l) + 1) // 2:]]
    ra = [p1_read_ops(a, n, g, 0), p1_read_ops(a, n, g, 1)]
    if n > 0:
        p1_b_phase(a, n - 1, g, ra, two(db))
    else:
        run_gaps(a, ra)
        da = db + da
    da = two(da)
    rb = [p1_read_ops(a, n, g, 2), p1_read_ops(a, n, g, 3)]
    p1_a_phase(a, n, g, rb, da)


def e1a(a, g, dmas, prebar=None):
    a.comment(f'--- P1 epilogue g={g}')
    dmas = list(dmas)
    nxt = lambda: dmas.pop(0)() if dmas else None
    p1_b_phase(a, 7, g, [[], []], [])
    t = BUFA
    a(f'''
v_add_f32 v{vSQ0}, v{vSQ0}, v{vSQ1}
v_and_b32 v{t}, 31, v0
v_lshlrev_b32 v{t + 1}, 4, v{t}
s_lshl_b32 s{sT0}, s{sTT}, 9
s_add_u32 s{sT0}, s{sT0}, {ST}
v_add_u32 v{t + 1}, s{sT0}, v{t + 1}
v_lshrrev_b32 v{t + 2}, 5, v0
v_lshlrev_b32 v{t + 2}, 2, v{t + 2}
v_add3_u32 v{t + 2}, v{t + 2}, v{t + 1}, {8 * g}
''')
    a.ds(f'ds_write_b32 v{t + 2}, v{vSQ0}', 'w')
    run_gaps(a, [cs_write_ops(a, [(vCS0, 0), (vCS1, 512)] if g == 0 else [(vCS0, 1024)], sx=(g == 1))])
    a(f'''
v_lshlrev_b32 v{t + 2}, 2, v{t}
s_lshl_b32 s{sT0}, s{sTT}, 7
s_add_u32 s{sT0}, s{sT0}, {SXB}
v_add_u32 v{t + 2}, s{sT0}, v{t + 2}
v_lshlrev_b32 v{t + 3}, 4, v{t}
v_add_u32 v{t + 3}, {CSP}, v{t + 3}
''')
    if g == 0:
        a(f'''
v_lshrrev_b32 v{t}, 5, v0
v_lshlrev_b32 v{t}, 9, v{t}
v_add_u32 v{t + 3}, v{t + 3}, v{t}
''')
    a.wait_lg()
    if prebar:
        prebar(a, g)
    a('s_barrier')
    a.ds(f'ds_read_b128 v[{t + 4}:{t + 7}], v{t + 1}', 's')
    a.ds(f'ds_read_b32 v{t + 12}, v{t + 2}', 's')
    a.ds(f'ds_read_b128 v[{t + 8}:{t + 11}], v{t + 3} offset:{0 if g == 0 else 1024}', 'c')
    prep_issue(a)
    a(f'''
v_and_b32 v{vTMP + 2}, 31, v0
v_and_b32 v{vTMP + 3}, 19, v{vTMP + 2}
v_bfe_u32 v{vCS0}, v0, 2, 1
v_lshlrev_b32 v{vCS0}, 3, v{vCS0}
v_bfe_u32 v{vCS0 + 1}, v0, 3, 1
v_lshlrev_b32 v{vCS0 + 1}, 2, v{vCS0 + 1}
v_add3_u32 v{vTMP + 3}, v{vTMP + 3}, v{vCS0}, v{vCS0 + 1}
v_lshlrev_b32 v{vTMP + 3}, 1, v{vTMP + 3}
s_lshl_b32 s{sT0}, s{sG}, 1
s_add_u32 s{sT0}, s{sT0}, s{sF0}
s_lshl_b32 s{sT0}, s{sT0}, 6
s_add_u32 s{sT1}, s{sT0}, s{sPB}
''')
    a.vmem(f'buffer_load_ushort v{vB1A}, v{vTMP + 3}, {srd(S_B1)}, s{sT0} offen', 'b1')
    a.vmem(f'buffer_load_ushort v{vB1B}, v{vTMP + 3}, {srd(S_B1)}, s{sT1} offen', 'b1')
    a.wait_lg('s')
    a(f'''
v_add_f32 v{t + 4}, v{t + 4}, v{t + 5}
v_add_f32 v{t + 6}, v{t + 6}, v{t + 7}
v_mul_f32 v{vM}, {fl(1 / 512)}, v{t + 12}
v_add_f32 v{t + 4}, v{t + 4}, v{t + 6}
v_mul_f32 v{t + 4}, {fl(1 / 512)}, v{t + 4}
v_fma_f32 v{t + 4}, -v{vM}, v{vM}, v{t + 4}
v_max_f32 v{t + 4}, 0, v{t + 4}
v_add_f32 v{t + 5}, {fl(1e-5)}, v{t + 4}
v_rsq_f32 v{vR}, v{t + 5}
''')
    nxt()
    a.wait_lg('c')
    a(f'''
v_add_f32 v{t + 8}, v{t + 8}, v{t + 9}
v_add_f32 v{t + 10}, v{t + 10}, v{t + 11}
v_mul_f32 v{t + 5}, v{vR}, v{vR}
v_mul_f32 v{t + 5}, v{t + 5}, v{t + 4}
v_add_f32 v{t + 5}, {fl(1e-5)}, v{t + 5}
v_rsq_f32 v{t + 5}, v{t + 5}
v_add_f32 v{t + 8}, v{t + 8}, v{t + 10}
s_lshl_b32 s{sT0}, s{sW}, 8
s_add_u32 s{sT0}, s{sT0}, {SCR}
v_lshlrev_b32 v{vSCW}, 2, v0
v_add_u32 v{vSCW}, s{sT0}, v{vSCW}
v_lshrrev_b32 v{vSCR}, 5, v0
v_lshlrev_b32 v{vSCR}, 4, v{vSCR}
v_add_u32 v{vSCR}, s{sT0}, v{vSCR}
v_mul_f32 v{vRR}, v{vR}, v{t + 5}
v_mul_f32 v{vMRR}, v{vM}, v{vRR}
''')
    if g == 0:
        a.ds(f'ds_write_b32 v{vSCW}, v{t + 8}', 'w')
        a(f'v_mul_f32 v{vQS}, {fl(C_Q)}, v{vR}')
    else:
        a(f'''
v_mul_f32 v{t + 9}, v{vM}, v{vR}
v_cmp_gt_u32 vcc, 32, v0
v_cndmask_b32 v{t + 9}, v{t + 9}, v{vR}, vcc
''')
        a.ds(f'ds_write_b32 v{vSCW}, v{t + 9}', 'w')
        a(f'''
v_mov_b32 v{vCSV}, v{t + 8}
v_bfe_u32 v{vQS}, v0, 4, 1
v_lshlrev_b32 v{vQS}, 17, v{vQS}
v_and_b32 v{t + 3}, 15, v0
v_lshlrev_b32 v{t + 3}, 4, v{t + 3}
v_add_u32 v{vQS}, v{vQS}, v{t + 3}
v_lshrrev_b32 v{t + 3}, 5, v0
v_lshlrev_b32 v{t + 3}, 8, v{t + 3}
v_add_u32 v{vQS}, v{vQS}, v{t + 3}
''')
    nxt()
    a(f'''
s_lshl_b32 s{sT0}, s{sHP}, 17
s_lshl_b32 s{sT1}, s{sT}, 10
s_add_u32 s{sQO}, s{sT0}, s{sT1}
s_lshl_b32 s{sT0}, s{sHP}, 18
s_lshl_b32 s{sT1}, s{sT}, 11
s_add_u32 s{sKO}, s{sT0}, s{sT1}
s_add_u32 s{sKO}, s{sKO}, {KV}
s_lshl_b32 s{sT0}, s{sG}, 13
s_sub_u32 s{sT0}, s{sT0}, {WR}
''')
    for j in range(4):
        a(f'v_add_u32 v{aW + j}, s{sT0}, v{aW + j}')
    for j in range(4):
        a(f'v_add_u32 v{aWH + j}, 0x10000, v{aW + j}')
    while dmas:
        nxt()


def e1b_ops(a, g):
    SC = k1.SC
    ops = []
    if g == 0:
        quads = [(p, qd) for p in (0, 1) for qd in range(4)]
        rd = lambda i: (lambda: a.ds(f'ds_read_b128 v[{QT + 4 * (i % 2)}:{QT + 4 * (i % 2) + 3}], v{vSCR} '
                                     f'offset:{quads[i][0] * 128 + quads[i][1] * 32}', f'eq{i}'))
        ops += [rd(0), rd(1)]
        for i, (p, qd) in enumerate(quads):
            acc = AC_Q if p == 0 else AC_K
            sc = vQS if p == 0 else vR
            T = QT + 4 * (i % 2)
            R = [acc + 4 * qd + e for e in range(4)]
            ops.append(lambda i=i: a.wait_lg(f'eq{i}'))
            ops += [f'v_fma_f32 v{R[e]}, -v{vM}, v{T + e}, v{R[e]}' for e in range(4)]
            if i + 2 < 8:
                ops.append(rd(i + 2))
            ops += [f'v_mul_f32 v{R[e]}, v{sc}, v{R[e]}' for e in range(4)]
            ops.append(f'v_cvt_pk_bf16_f32 v{acc + 2 * qd}, v{R[0]}, v{R[1]}')
            ops.append(f'v_cvt_pk_bf16_f32 v{acc + 2 * qd + 1}, v{R[2]}, v{R[3]}')
            if qd in (1, 3):
                half = qd // 2
                so, delta = (sQO, 65536) if p == 0 else (sKO, 131072)

                def stf(acc=acc, half=half, so=so, delta=delta):
                    if half == 0:
                        s_ = f's{so}'
                    else:
                        a(f's_add_u32 s{sT2}, s{so}, {delta}')
                        s_ = f's{sT2}'
                    a.vmem(f'buffer_store_dwordx4 v[{acc + 4 * half}:{acc + 4 * half + 3}], v{vL16}, {srd(S_WS)}, '
                           f'{s_} offen{SC}', 'st')
                ops.append(stf)
    else:
        acc = AC_Q
        T = lambda i: (QT, QT2)[i % 2]

        def rd(i):
            def f():
                a.ds(f'ds_read_b128 v[{T(i)}:{T(i) + 3}], v{vSCR} offset:{i * 32}', f'eq{i}')
                a.ds(f'ds_read_b128 v[{T(i) + 4}:{T(i) + 7}], v{vSCR} offset:{128 + i * 32}', f'eq{i}')
            return f
        ops += [rd(0), rd(1)]
        for qd in range(4):
            R = [acc + 4 * qd + e for e in range(4)]
            t = T(qd)
            ops.append(lambda qd=qd: a.wait_lg(f'eq{qd}'))
            ops += [f'v_mul_f32 v{t + 4 + e}, v{vCSV}, v{t + 4 + e}' for e in range(4)]
            ops += [f'v_fma_f32 v{R[e]}, v{R[e]}, v{t + e}, -v{t + 4 + e}' for e in range(4)]
            if qd + 2 < 4:
                ops.append(rd(qd + 2))
            ops.append(f'v_cvt_pk_bf16_f32 v{acc + 2 * qd}, v{R[0]}, v{R[1]}')
            ops.append(f'v_cvt_pk_bf16_f32 v{acc + 2 * qd + 1}, v{R[2]}, v{R[3]}')
            if qd in (1, 3):
                half = qd // 2
                ops.append(lambda half=half: a.vmem(
                    f'buffer_store_dwordx4 v[{acc + 4 * half}:{acc + 4 * half + 3}], v{vQS}, {srd(S_WS)}, '
                    f's{sKO} offen offset:{1024 + 512 * half}{SC}', 'st'))
    return ops


def p2_read_ops(a, n, p):
    pos = P2POS[n] + (p // 4) * 4096
    base = aW if pos < 65536 else aWH
    off = pos % 65536
    d = p2_frag(p)
    tag = f'P{n}_{p}'
    return [lambda: a.ds(f'ds_read_b64_tr_b16 v[{d}:{d + 1}], v{base + p % 4} offset:{off}', tag),
            lambda: a.ds(f'ds_read_b64_tr_b16 v[{d + 2}:{d + 3}], v{base + p % 4} offset:{off + 256}', tag)]


def p2_b_phase(a, n, ra, fill):
    w = lambda p: (lambda: a.wait_lg(f'P{n}_{p}'))
    for i, p in enumerate(P2B):
        run_gaps(a, [w(p), p2_mfma(n, p), ra[i], fill[i]])


def p2_a_phase(a, n, rb, fill):
    w = lambda p: (lambda: a.wait_lg(f'P{n}_{p}'))
    for i, p in enumerate(P2A):
        run_gaps(a, [w(p), p2_mfma(n, p), rb[i], fill[i]])
        if p in (0, 4):
            a(p2_m16(n, p))


def p2_stage(a, n, g, fill):
    a.comment(f'--- P2 stage {n} g={g}')
    if n == 12:
        a.wait_lg('w')
    stage_head(a, n, g)
    ra = [p2_read_ops(a, n, p) for p in P2A]
    if n > 8:
        p2_b_phase(a, n - 1, ra, fill[:4])
    else:
        run_gaps(a, [[x for pair in zip(ra, fill[:4]) for y in pair for x in y]])
    rb = [p2_read_ops(a, n, p) for p in P2B]
    p2_a_phase(a, n, rb, fill[4:])


GT = 80


def gelu_prep(a, g, pas):
    pi = 3 + 2 * g + pas
    b1 = vB1A if pas == 0 else vB1B
    t = vCS0
    return [f'v_and_b32 v{t + 4}, 31, v0',
            f'v_lshlrev_b32 v{t + 4}, 4, v{t + 4}',
            f'v_add_u32 v{t + 4}, {CSP}, v{t + 4}',
            lambda: a.ds(f'ds_read_b128 v[{t}:{t + 3}], v{t + 4} offset:{pi * 512}', 'gc'),
            f'v_lshlrev_b32 v{t + 4}, 16, v{b1}',
            f'v_cmp_gt_u32 vcc, 32, v0',
            lambda: a.wait_lg('gc'),
            f'v_add_f32 v{t}, v{t}, v{t + 1}',
            f'v_add_f32 v{t + 2}, v{t + 2}, v{t + 3}',
            f'v_add_f32 v{t}, v{t}, v{t + 2}',
            f'v_cndmask_b32 v{t}, v{t + 4}, v{t}, vcc',
            lambda: a.ds(f'ds_write_b32 v{vSCW}, v{t}', 'w')]


def gelu_quad(a, acc, q, tag):
    cs, b, u, w = [[GT + 4 * k + e for e in range(4)] for k in range(4)]
    R = [acc + 4 * q + e for e in range(4)]
    rd = [lambda: a.ds(f'ds_read_b128 v[{cs[0]}:{cs[3]}], v{vSCR} offset:{q * 32}', tag),
          lambda: a.ds(f'ds_read_b128 v[{b[0]}:{b[3]}], v{vSCR} offset:{128 + q * 32}', tag)]
    ops = [lambda: a.wait_lg(tag)]
    ops += [f'v_fma_f32 v{b[e]}, -v{vMRR}, v{cs[e]}, v{b[e]}' for e in range(4)]
    ops += [f'v_fma_f32 v{R[e]}, v{vRR}, v{R[e]}, v{b[e]}' for e in range(4)]
    body = [f'v_mul_f32 v{u[e]}, v{R[e]}, v{R[e]}' for e in range(4)]
    body += [f'v_fma_f32 v{u[e]}, v{u[e]}, s{sC2}, v{vTMP + 2}' for e in range(4)]
    body += [f'v_mul_f32 v{u[e]}, v{u[e]}, v{R[e]}' for e in range(4)]
    body += [f'v_exp_f32 v{w[e]}, v{u[e]}' for e in range(4)]
    body += [f'v_add_f32 v{w[e]}, 1.0, v{w[e]}' for e in range(4)]
    body += [f'v_rcp_f32 v{w[e]}, v{w[e]}' for e in range(4)]
    body += [f'v_mul_f32 v{R[e]}, v{R[e]}, v{w[e]}' for e in range(4)]
    body.append(f'v_cvt_pk_bf16_f32 v{acc + 2 * q}, v{R[0]}, v{R[1]}')
    body.append(f'v_cvt_pk_bf16_f32 v{acc + 2 * q + 1}, v{R[2]}, v{R[3]}')
    return rd, ops, body


def gelu_consts():
    return [f's_mov_b32 s{sC2}, {fl(C2)}', f'v_mov_b32 v{vTMP + 2}, {fl(C1)}']


def gelu_tile_ops(a, acc, tagp):
    out = []
    rds = [gelu_quad(a, acc, q, f'{tagp}{q}') for q in range(4)]
    out += rds[0][0]
    per = []
    for q in range(4):
        rd, head, body = rds[q]
        seq = list(head)
        if q + 1 < 4:
            seq += rds[q + 1][0]
        seq += body
        per.append(seq)
    return out, per


def h_store(a, g, pas, tag):
    acc = AC_A if pas == 0 else AC_B
    a(f'''
s_mul_i32 s{sHO}, s{sT}, 112
s_lshl_b32 s{sT0}, s{sG}, 1
s_add_u32 s{sT0}, s{sT0}, s{sF0}
s_add_u32 s{sT0}, s{sT0}, {pas}
s_lshl_b32 s{sT0}, s{sT0}, 1
s_add_u32 s{sHO}, s{sHO}, s{sT0}
s_lshl_b32 s{sHO}, s{sHO}, 10
s_add_u32 s{sHO}, s{sHO}, {HF}
''')
    a.vmem(f'buffer_store_dwordx4 v[{acc}:{acc + 3}], v{vL16}, {srd(S_WS)}, s{sHO} offen{k1.SC}', tag)
    a.vmem(f'buffer_store_dwordx4 v[{acc + 4}:{acc + 7}], v{vL16}, {srd(S_WS)}, s{sHO} offen offset:1024{k1.SC}', tag)


vPO2 = 47


def prep_issue(a):
    a.comment('prep DMA')
    lbl = a.newlabel('prep_wo')
    lbl2 = a.newlabel('prep_j')
    a(f'''
v_lshrrev_b32 v{vTMP}, 2, v0
v_lshlrev_b32 v{vTMP}, 10, v{vTMP}
v_and_b32 v{vTMP + 1}, 3, v0
v_lshlrev_b32 v{vTMP + 1}, 4, v{vTMP + 1}
s_and_b32 s{sT0}, s2, 1
s_lshl_b32 s{sT0}, s{sT0}, 3
s_add_u32 s{sT0}, s{sT0}, s{sW}
s_lshl_b32 s{sT0}, s{sT0}, 6
v_add3_u32 v{vTMP}, v{vTMP}, v{vTMP + 1}, s{sT0}
s_lshr_b32 s{k1.sPS}, s2, 1
s_lshl_b32 s{sT1}, s{sW}, 10
s_add_u32 m0, s{sT1}, {WR}
s_lshl_b32 s{sT2}, s{k1.sPS}, 14
s_cmp_ge_u32 s2, 224
s_cbranch_scc1 {lbl}
''')
    a.vmem(f'buffer_load_dwordx4 v{vTMP}, {srd(S_W2)}, s{sT2} offen lds', 'prep')
    a(f's_branch {lbl2}')
    a.label(lbl)
    a(f's_sub_u32 s{sT2}, s{sT2}, {112 * 16384}')
    a(f'buffer_load_dwordx4 v{vTMP}, {srd(S_WO)}, s{sT2} offen lds')
    a.label(lbl2)
    a(f'''
s_cmp_ge_u32 s2, 32
s_cselect_b32 s{k1.sPF}, 0x40000000, 0
s_lshr_b32 s{sT2}, s2, 1
s_add_u32 s{sT2}, s{sT2}, 16
s_lshl_b32 s{sT2}, s{sT2}, 14
s_add_u32 m0, s{sT1}, {WR + 8192}
v_add_u32 v{vTMP}, s{k1.sPF}, v{vTMP}
''')
    a.vmem(f'buffer_load_dwordx4 v{vTMP}, {srd(S_WO)}, s{sT2} offen lds', 'prep')


def prep_finish_ops(a, tag):
    t = 80
    SC = k1.SC

    def body(r):
        r(f'''
v_lshrrev_b32 v{t}, 5, v0
v_lshlrev_b32 v{t}, 9, v{t}
v_bfe_u32 v{t + 1}, v0, 2, 2
v_lshlrev_b32 v{t + 1}, 6, v{t + 1}
v_add_u32 v{t}, v{t}, v{t + 1}
v_bfe_u32 v{t + 1}, v0, 4, 1
v_lshlrev_b32 v{t + 1}, 5, v{t + 1}
v_add_u32 v{t}, v{t}, v{t + 1}
v_and_b32 v{t + 1}, 3, v0
v_lshlrev_b32 v{t + 1}, 3, v{t + 1}
s_lshl_b32 s{sT0}, s{sW}, 10
s_add_u32 s{sT0}, s{sT0}, {WR}
v_add3_u32 v{t}, v{t}, v{t + 1}, s{sT0}
v_add_u32 v{t + 2}, s{k1.sPF}, v{vL16}
''')
    addr = record(a, body)

    def rd(r):
        r.wait_vm('prep')
        r.ds(f'ds_read_b64_tr_b16 v[{t + 4}:{t + 5}], v{t}', 'pp')
        r.ds(f'ds_read_b64_tr_b16 v[{t + 6}:{t + 7}], v{t} offset:256', 'pp')
        r.ds(f'ds_read_b64_tr_b16 v[{t + 8}:{t + 9}], v{t} offset:8192', 'pp')
        r.ds(f'ds_read_b64_tr_b16 v[{t + 10}:{t + 11}], v{t} offset:{8192 + 256}', 'pp')
    reads = record(a, rd)

    def stf(r):
        r(f'''
s_lshl_b32 s{k1.sPS}, s2, 3
s_add_u32 s{k1.sPS}, s{k1.sPS}, s{sW}
s_lshl_b32 s{k1.sPS}, s{k1.sPS}, 10
s_add_u32 s{k1.sPS}, s{k1.sPS}, {WF}
''')
        r.wait_lg('pp')
        r.vmem(f'buffer_store_dwordx4 v[{t + 4}:{t + 7}], v{vL16}, {srd(S_WS)}, s{k1.sPS} offen{SC}', tag)
        r(f's_add_u32 s{k1.sPS}, s{k1.sPS}, {2048 * 1024}')
        r.vmem(f'buffer_store_dwordx4 v[{t + 8}:{t + 11}], v{t + 2}, {srd(S_WS)}, s{k1.sPS} offen{SC}', tag)
    stores = record(a, stf)
    return addr, reads, stores
```

```python
from common import *
import k1
from k1 import fl

KM_LDS = 163840
LCNT = 163824
RED = 0
OB = 131072
FA = FL
FB = FL + 4096
FH = FL + 8192
LOG2E = 1.4426950408889634
SPIN = 20000

sT0, sT1, sT2, sT3 = 52, 53, 54, 55
sH, sTQ, sSRC, sMD = 20, 21, 22, 23
sTILE, sCG, sOF, sOP = 24, 25, 26, 27
sHS, sWSRC, sWO, sSPIN = 8, 9, 10, 11
sVM = 94
sCT, sKH = sTT, sG

vL16 = 1
aK0, aK1, aV0, aV1 = 2, 3, 4, 5
vT = 6
RQ, RK, RV0, RV1, RP = 12, 16, 20, 24, 28
NEGM = 36
RS = (52, 68)
RO = 84
ACC = 100
RING = 164
vX, vB2, vXO = 228, 232, 236
vG, vS = 240, 248
OP = 52

OPT = dict(u0=28, D=11, fbsig=5, prio=None, b2=24, kvpre=8, nofb=False)


def spin(a, site, load, check_ok):
    ok = a.newlabel('ok')
    lp = a.newlabel('spin')
    check_ok(ok)
    a(f's_mov_b32 s{sSPIN}, {SPIN}')
    a.label(lp)
    a('s_sleep 1')
    load()
    a('s_waitcnt vmcnt(0)')
    check_ok(ok)
    a(f's_sub_u32 s{sSPIN}, s{sSPIN}, 1')
    a(f's_cmp_lg_u32 s{sSPIN}, 0')
    a(f's_cbranch_scc1 {lp}')
    a(f'v_mov_b32 v{vT}, {site}')
    a(f'buffer_store_dword v{vT}, off, {srd(S_DBG)}, 0 offset:{4 * site}')
    a.label(ok)


def one_lane_store(a, reg, srdn, soff, val=1):
    a('s_mov_b64 exec, 1')
    a(f'v_mov_b32 v{reg}, {val}')
    a(f'buffer_store_dword v{reg}, off, {srd(srdn)}, {soff} sc1')
    a('s_mov_b64 exec, -1')


def start_extra(a):
    lbl = a.newlabel('noinit')
    a(f'''
v_mov_b32 v20, 0
v_mov_b32 v21, 0
v_mov_b32 v22, 0
v_mov_b32 v23, 0
v_mov_b32 v24, {LCNT}
''')
    a.ds('ds_write_b32 v24, v20', 'w')
    a(f'''
s_or_b32 s{sT0}, s2, s{sW}
s_cmp_lg_u32 s{sT0}, 0
s_cbranch_scc1 {lbl}
v_lshrrev_b32 v1, 2, v0
v_lshlrev_b32 v1, 8, v1
v_and_b32 v2, 3, v0
v_lshlrev_b32 v2, 4, v2
v_add_u32 v1, v1, v2
s_mov_b32 s{sT0}, {FA}
s_mov_b32 s{sT1}, {FB}
s_mov_b32 s{sT2}, {FH}
buffer_store_dwordx4 v[20:23], v1, {srd(S_WS)}, s{sT0} offen sc1
buffer_store_dwordx4 v[20:23], v1, {srd(S_WS)}, s{sT1} offen sc1
buffer_store_dwordx4 v[20:23], v1, {srd(S_WS)}, s{sT2} offen sc1
''')
    a.label(lbl)


def prefetch(a):
    pf = OPT['pf']
    a(f'''
s_lshl_b32 s{sT0}, s2, 3
s_add_u32 s{sT0}, s{sT0}, s{sW}
v_lshlrev_b32 v48, 4, v0
''')
    if pf & 1:
        a(f's_mul_i32 s{sT1}, s{sT0}, 768')
        a.vmem(f'buffer_load_dwordx4 v[52:55], v48, {srd(S_WQ)}, s{sT1} offen', 'pf')
    if pf & 2:
        a(f's_mul_i32 s{sT1}, s{sT0}, 896')
        a.vmem(f'buffer_load_dwordx4 v[56:59], v48, {srd(S_W1)}, s{sT1} offen', 'pf')
    if pf & 4:
        a(f's_lshl_b32 s{sT1}, s{sT0}, 10')
        a.vmem(f'buffer_load_dwordx4 v[60:63], v48, {srd(S_X)}, s{sT1} offen', 'pf')
    if pf & 8:
        a(f's_mul_i32 s{sT1}, s{sT0}, 896')
        a.vmem(f'buffer_load_dwordx4 v[56:59], v48, {srd(S_W2)}, s{sT1} offen', 'pf')
        a(f's_lshl_b32 s{sT1}, s{sT0}, 8')
        a.vmem(f'buffer_load_dword v60, v48, {srd(S_WO)}, s{sT1} offen', 'pf')


def hook0(a, g):
    st(a, 'c0')
    if g != 0:
        return
    lbl = a.newlabel('noinit2')
    a(f'''
s_or_b32 s{sT0}, s2, s{sW}
s_cmp_lg_u32 s{sT0}, 0
s_cbranch_scc1 {lbl}
''')
    one_lane_store(a, 20, S_DBG, 0)
    a.label(lbl)


def hook8(a, g, poi=92, tag='st'):
    a(f'''
s_lshl_b32 s{sT0}, s{sXCD}, 2
s_lshr_b32 s{sCG}, s{sSLOT}, 3
s_add_u32 s{sH}, s{sT0}, s{sCG}
s_and_b32 s{sT1}, s{sSLOT}, 7
s_lshl_b32 s{sTQ}, s{sT1}, 3
s_add_u32 s{sTQ}, s{sTQ}, s{sW}
s_lshl_b32 s{sMD}, s{sW}, 10
s_lshl_b32 s{sSRC}, s{sH}, 17
s_add_u32 s{sSRC}, s{sSRC}, {KV}
s_add_u32 s{sSRC}, s{sSRC}, s{sMD}
s_lshl_b32 s{sOF}, s{sTQ}, 5
s_add_u32 s{sOF}, s{sOF}, s{sH}
s_lshl_b32 s{sOF}, s{sOF}, 10
s_add_u32 s{sOF}, s{sOF}, {OF}
s_lshl_b32 s{sT0}, s{sXCD}, 3
s_add_u32 s{sTILE}, s{sT0}, s{sT1}
s_lshl_b32 s{sOP}, s{sTILE}, 3
s_add_u32 s{sOP}, s{sOP}, s{sW}
s_lshl_b32 s{sOP}, s{sOP}, 12
s_add_u32 s{sOP}, s{sOP}, {OF}
s_mul_i32 s{sT0}, s{sW}, 14
s_mul_i32 s{sHS}, s{sTILE}, 112
s_add_u32 s{sHS}, s{sHS}, s{sT0}
s_lshl_b32 s{sHS}, s{sHS}, 10
s_add_u32 s{sHS}, s{sHS}, {HF}
s_lshl_b32 s{sWSRC}, s{sT0}, 4
s_lshl_b32 s{sT1}, s{sCG}, 2
s_add_u32 s{sWSRC}, s{sWSRC}, s{sT1}
s_lshl_b32 s{sWSRC}, s{sWSRC}, 10
s_add_u32 s{sWSRC}, s{sWSRC}, {WF}
s_lshl_b32 s{sWO}, s{sKH}, 4
s_add_u32 s{sWO}, s{sWO}, 112
s_lshl_b32 s{sWO}, s{sWO}, 4
s_add_u32 s{sWO}, s{sWO}, s{sT1}
s_add_u32 s{sWO}, s{sWO}, s{sCT}
s_lshl_b32 s{sWO}, s{sWO}, 10
s_add_u32 s{sWO}, s{sWO}, {WF}
v_mov_b32 v{poi}, -1
v_mov_b32 v{poi + 1}, -1
v_mov_b32 v{poi + 2}, -1
v_mov_b32 v{poi + 3}, -1
''')
    a.vmem(f'buffer_store_dwordx4 v[{poi}:{poi + 3}], v{vL16}, {srd(S_WS)}, s{sOF} offen sc1', tag)


def ini_load(a):
    return f'buffer_load_dword v92, off, {srd(S_DBG)}, 0 sc1'


def hook9(a, g):
    a.vmem(ini_load(a), 'ini')


def prebar11(a, g):
    a.wait_vm('ini')

    def chk(ok):
        a('v_cmp_eq_u32 vcc, 1, v92')
        a(f's_cbranch_vccnz {ok}')
    spin(a, 1, lambda: a(ini_load(a)), chk)


def hook11(a, g):
    if g == 0:
        lbl = a.newlabel('nofa')
        a(f'''
s_cmp_lg_u32 s{sW}, 0
s_cbranch_scc1 {lbl}
s_lshl_b32 s{sT0}, s{k1.sHP}, 8
s_lshl_b32 s{sT1}, s{k1.sTB}, 2
s_add_u32 s{sT0}, s{sT0}, s{sT1}
s_add_u32 s{sT0}, s{sT0}, {FA}
''')
        one_lane_store(a, 92, S_WS, f's{sT0}')
        a.label(lbl)
    k1.prep_finish(a)


def hook14(a, g):
    if g == 0:
        lbl = a.newlabel('nofw')
        a(f'''
s_cmp_lg_u32 s{sW}, 0
s_cbranch_scc1 {lbl}
s_lshr_b32 s{sT0}, s2, 4
s_lshl_b32 s{sT0}, s{sT0}, 8
s_and_b32 s{sT1}, s2, 15
s_lshl_b32 s{sT1}, s{sT1}, 2
s_add_u32 s{sT0}, s{sT0}, s{sT1}
s_add_u32 s{sT0}, s{sT0}, {FB}
''')
        one_lane_store(a, 92, S_WS, f's{sT0}')
        a.label(lbl)


def fa_load():
    return f'buffer_load_dword v93, v94, {srd(S_WS)}, s{sSPIN - 0 if False else sT1} offen sc1'


def fa_addr(a):
    a(f'''
s_lshr_b32 s{sT1}, s{sH}, 1
s_lshl_b32 s{sT1}, s{sT1}, 8
s_add_u32 s{sT1}, s{sT1}, {FA}
''')


def hook15(a, g):
    a('v_and_b32 v94, 15, v0')
    a('v_lshlrev_b32 v94, 2, v94')
    fa_addr(a)
    a.vmem(fa_load(), 'fa')


def fa_check(a):
    def chk(ok):
        a('v_cmp_ne_u32 vcc, 1, v93')
        a(f's_cbranch_vccz {ok}')

    def ld():
        fa_addr(a)
        a(fa_load())
    spin(a, 2, ld, chk)


def kv_dma(a, i):
    def f():
        a(f's_add_u32 m0, s{sMD}, {i * 8192}')
        a(f's_add_u32 s{sT2}, s{sSRC}, {i * 8192}')
        a.vmem(f'buffer_load_dwordx4 v{vL16}, {srd(S_WS)}, s{sT2} offen sc1 lds', f'kv{i}')
    return f


def q_load(a):
    def f():
        a(f'''
s_lshl_b32 s{sT2}, s{sH}, 6
s_add_u32 s{sT2}, s{sT2}, s{sTQ}
s_lshl_b32 s{sT2}, s{sT2}, 10
''')
        a.vmem(f'buffer_load_dwordx4 v[{RQ}:{RQ + 3}], v{vL16}, {srd(S_WS)}, s{sT2} offen sc1', 'q')
    return f


def k_read(a, t):
    ar, off = (aK0, t * 2048) if t < 32 else (aK1, (t - 32) * 2048)
    a.ds(f'ds_read_b128 v[{RK}:{RK + 3}], v{ar} offset:{off}', f'K{t}')


def v_reads(a, items):
    a(f's_mov_b64 exec, s[{sVM}:{sVM + 1}]')
    for part, t in items:
        ar, off = (aV0, t * 2048) if t < 32 else (aV1, (t - 32) * 2048)
        r = RV0 if part == 0 else RV1
        a.ds(f'ds_read_b128 v[{r}:{r + 3}], v{ar} offset:{off + part * 512}', f'V{part}_{t}')
    a('s_mov_b64 exec, -1')


def run(a, items):
    for it in items:
        emit(a, it)


def attn_step(a, t, nt, ev, mf, pre):
    S, Sn = RS[t % 2], RS[(t + 1) % 2]
    ex = [f'v_exp_f32 v{S + i}, v{S + i}' for i in range(16)]
    cv = [f'v_cvt_pk_bf16_f32 v{RP + i}, v{S + 2 * i}, v{S + 2 * i + 1}' for i in range(8)]
    run(a, pre.get(t, []))
    if t + 1 < nt:
        a.wait_lg(f'K{t + 1}')
        a(mfma32(Sn, RK, RQ, NEGM))
        if t + 2 < nt:
            k_read(a, t + 2)
    run(a, ev.get(2 * t, []))
    run(a, (ex[0], ex[1], ex[2], ex[3]))
    run(a, mf.get(2 * t, []))
    run(a, (cv[0], ex[4], ex[5], cv[1]))
    if t > 0:
        a.wait_lg(f'V1_{t - 1}')
        a(mfma32(RO, RV1, RP + 4, RO))
    run(a, (ex[6], ex[7], cv[2], ex[8], ex[9], cv[3], ex[10], ex[11]))
    a.wait_lg(f'V0_{t}')
    a(mfma32(RO, RV0, RP, '0' if t == 0 else RO))
    items = [(1, t)]
    if t + 1 < nt:
        items.append((0, t + 1))
    v_reads(a, items)
    run(a, ev.get(2 * t + 1, []))
    run(a, (cv[4], ex[12], ex[13], cv[5]))
    run(a, mf.get(2 * t + 1, []))
    run(a, (ex[14], ex[15], cv[6], cv[7]))


def row_max(a, S, dst, tmp):
    a(f'v_max3_f32 v{dst}, v{S}, v{S + 1}, v{S + 2}')
    a(f'v_max3_f32 v{tmp}, v{S + 3}, v{S + 4}, v{S + 5}')
    a(f'v_max3_f32 v{dst}, v{dst}, v{S + 6}, v{S + 7}')
    a(f'v_max3_f32 v{tmp}, v{tmp}, v{S + 8}, v{S + 9}')
    a(f'v_max3_f32 v{dst}, v{dst}, v{S + 10}, v{S + 11}')
    a(f'v_max3_f32 v{tmp}, v{tmp}, v{S + 12}, v{S + 13}')
    a(f'v_max3_f32 v{dst}, v{dst}, v{S + 14}, v{S + 15}')
    a(f'v_max_f32 v{dst}, v{dst}, v{tmp}')
    a(f'v_mov_b32 v{tmp}, v{dst}')
    a(f'v_permlane32_swap_b32 v{dst}, v{tmp}')
    a(f'v_max_f32 v{dst}, v{dst}, v{tmp}')


def fallback(a, done_label):
    a.comment('--- fallback: online softmax with the running true maximum')
    loop = a.newlabel('fb_loop')
    S = RS[0]
    vm, vmn, val, va, vb = vT, vT + 1, vT + 2, vT + 3, vT + 4
    a(f'v_mov_b32 v{vm}, 0xff800000')
    for i in range(16):
        a(f'v_mov_b32 v{RO + i}, 0')
    a(f'v_mov_b32 v{va}, v{aK0}')
    a(f'v_mov_b32 v{vb}, v{aV0}')
    a(f's_mov_b32 s{sT0}, 64')
    a.label(loop)
    a(f'ds_read_b128 v[{RK}:{RK + 3}], v{va}')
    a(f's_mov_b64 exec, s[{sVM}:{sVM + 1}]')
    a(f'ds_read_b128 v[{RV0}:{RV0 + 3}], v{vb}')
    a(f'ds_read_b128 v[{RV1}:{RV1 + 3}], v{vb} offset:512')
    a('s_mov_b64 exec, -1')
    a('s_waitcnt lgkmcnt(0)')
    a(mfma32(S, RK, RQ, '0'))
    a(f'v_add_u32 v{va}, 0x800, v{va}')
    a(f'v_add_u32 v{vb}, 0x800, v{vb}')
    row_max(a, S, vmn, val)
    a(f'v_max_f32 v{vmn}, v{vmn}, v{vm}')
    a(f'v_sub_f32 v{val}, v{vm}, v{vmn}')
    a(f'v_exp_f32 v{val}, v{val}')
    a(f'v_mov_b32 v{vm}, v{vmn}')
    for i in range(16):
        a(f'v_sub_f32 v{S + i}, v{S + i}, v{vmn}')
    for i in range(16):
        a(f'v_exp_f32 v{S + i}, v{S + i}')
    for i in range(16):
        a(f'v_mul_f32 v{RO + i}, v{val}, v{RO + i}')
    for i in range(8):
        a(f'v_cvt_pk_bf16_f32 v{RP + i}, v{S + 2 * i}, v{S + 2 * i + 1}')
    a(mfma32(RO, RV0, RP, RO))
    a(mfma32(RO, RV1, RP + 4, RO))
    a(f's_sub_u32 s{sT0}, s{sT0}, 1')
    a(f's_cmp_lg_u32 s{sT0}, 0')
    a(f's_cbranch_scc1 {loop}')
    a(f's_branch {done_label}')


def slot(i):
    return RING + 4 * (i % 16)


def stream_load(a, i):
    def f():
        if OPT.get('xnl') and i < 70:
            return
        if i < 70:
            s, j = divmod(i, 5)
            if j == 0:
                a(f's_add_u32 s{sT2}, s{sHS}, {s * 1024}')
                a.vmem(f'buffer_load_dwordx4 v[{slot(i)}:{slot(i) + 3}], v{vL16}, {srd(S_WS)}, s{sT2} offen sc1', f'f{i}')
            else:
                if j == 1:
                    a(f's_add_u32 s{sT3}, s{sWSRC}, {s * 16384}')
                a.vmem(f'buffer_load_dwordx4 v[{slot(i)}:{slot(i) + 3}], v{vL16}, {srd(S_WS)}, s{sT3} offen '
                       f'offset:{(j - 1) * 1024} sc1', f'f{i}')
        else:
            k = i - 70
            a(f's_add_u32 s{sT2}, s{sWO}, {k * 16384}')
            a.vmem(f'buffer_load_dwordx4 v[{slot(i)}:{slot(i) + 3}], v{vL16}, {srd(S_WS)}, s{sT2} offen sc1', 'wo')
    return f


def stream_mfma(a, s, j):
    def f():
        iw, ih = 5 * s + 1 + j, 5 * s
        if not OPT.get('xnw'):
            a.wait_vm(f'f{iw}')
        else:
            a.vm = [t for t in a.vm if t != f'f{iw}' and t != f'f{ih}']
        if OPT.get('xnm'):
            return
        a(mfma32(ACC + 16 * j, slot(iw), slot(ih), '0' if s == 0 else None))
    return f


def side_loads(a):
    a(f'''
s_lshl_b32 s{sT0}, s{sCG}, 8
s_lshl_b32 s{sT1}, s{sCT}, 6
s_add_u32 s{sT0}, s{sT0}, s{sT1}
s_lshl_b32 s{sT1}, s{sKH}, 5
s_add_u32 s{sT0}, s{sT0}, s{sT1}
v_lshrrev_b32 v{vT}, 5, v0
v_lshlrev_b32 v{vT}, 3, v{vT}
v_add_u32 v{vT}, s{sT0}, v{vT}
v_and_b32 v{vT + 1}, 31, v0
v_lshlrev_b32 v{vT + 1}, 10, v{vT + 1}
s_lshl_b32 s{sT1}, s{sTILE}, 15
v_add3_u32 v{vT + 1}, v{vT + 1}, v{vT}, s{sT1}
''')
    a.vmem(f'buffer_load_dwordx2 v[{vB2}:{vB2 + 1}], v{vT}, {srd(S_B2)}, 0 offen', 'side')
    a.vmem(f'buffer_load_dwordx2 v[{vB2 + 2}:{vB2 + 3}], v{vT}, {srd(S_B2)}, 0 offen offset:16', 'side')
    a.vmem(f'buffer_load_dwordx2 v[{vX}:{vX + 1}], v{vT + 1}, {srd(S_X)}, 0 offen', 'side')
    a.vmem(f'buffer_load_dwordx2 v[{vX + 2}:{vX + 3}], v{vT + 1}, {srd(S_X)}, 0 offen offset:16', 'side')
    a(f'''
v_lshrrev_b32 v{vT + 2}, 5, v0
v_lshlrev_b32 v{vT + 2}, 4, v{vT + 2}
v_and_b32 v{vXO}, 31, v0
v_lshlrev_b32 v{vXO}, 10, v{vXO}
s_add_u32 s{sT0}, s{sT0}, s{sT1}
v_add3_u32 v{vXO}, v{vXO}, v{vT + 2}, s{sT0}
''')
    if OPT.get('otouch'):
        a.vmem(f'buffer_load_dword v{vXO + 1}, v{vXO}, {srd(S_OUT)}, 0 offen', 'side')


def fb_signal_1(a):
    a.wait_vm('hb')
    a(f'''
v_mov_b32 v{vT}, {LCNT}
v_mov_b32 v{vT + 1}, 1
s_mov_b64 exec, 1
''')
    a.ds(f'ds_add_rtn_u32 v{vT + 1}, v{vT}, v{vT + 1}', 'cnt')
    a('s_mov_b64 exec, -1')


def fb_signal_2(a):
    lbl = a.newlabel('nofb')
    a.wait_lg('cnt')
    a(f'''
v_readfirstlane_b32 s{sT0}, v{vT + 1}
s_cmp_lg_u32 s{sT0}, 7
s_cbranch_scc1 {lbl}
s_lshl_b32 s{sT0}, s{k1.sTB}, 8
s_lshl_b32 s{sT1}, s{k1.sHP}, 2
s_add_u32 s{sT0}, s{sT0}, s{sT1}
s_add_u32 s{sT0}, s{sT0}, {FH}
''')
    one_lane_store(a, vT + 1, S_WS, f's{sT0}')
    a.label(lbl)


def fb_load(a):
    return [f'buffer_load_dwordx4 v[8:11], v{vT}, {srd(S_WS)}, s{sT1} offen sc1',
            f'buffer_load_dword v{vX}, v{vT + 1}, {srd(S_WS)}, s{sT0} offen sc1']


def fb_addr(a):
    a(f'''
s_mov_b32 s{sT1}, {FB}
s_lshr_b32 s{sT0}, s{sTILE}, 2
s_lshl_b32 s{sT0}, s{sT0}, 8
s_add_u32 s{sT0}, s{sT0}, {FH}
''')


def fb_poll(a):
    a(f'''
v_lshrrev_b32 v{vT}, 2, v0
v_lshlrev_b32 v{vT}, 8, v{vT}
v_and_b32 v{vT + 1}, 3, v0
v_lshlrev_b32 v{vT + 1}, 4, v{vT + 1}
v_add_u32 v{vT}, v{vT}, v{vT + 1}
v_and_b32 v{vT + 1}, 15, v0
v_lshlrev_b32 v{vT + 1}, 2, v{vT + 1}
''')
    fb_addr(a)
    for x in fb_load(a):
        a.vmem(x, 'fb')


def fb_check(a):
    a.wait_vm('fb')

    def chk(ok):
        a('v_and_b32 v8, v8, v9')
        a('v_and_b32 v10, v10, v11')
        a('v_and_b32 v8, v8, v10')
        a(f'v_and_b32 v8, v8, v{vX}')
        a('v_cmp_ne_u32 vcc, 1, v8')
        a(f's_cbranch_vccz {ok}')

    def ld():
        fb_addr(a)
        for x in fb_load(a):
            a(x)
    spin(a, 3, ld, chk)


def o_loads(a, tracked):
    for i in range(4):
        t = f'buffer_load_dwordx4 v[{OP + 4 * i}:{OP + 4 * i + 3}], v{vL16}, {srd(S_WS)}, s{sOP} offen offset:{1024 * i} sc1'
        if tracked:
            a.vmem(t, 'op')
        else:
            a(t)


def o_check(a):
    a.wait_vm('op')

    def chk(ok):
        for i in range(4):
            r = OP + 4 * i
            a(f'v_max3_u32 v{vT + i}, v{r}, v{r + 1}, v{r + 2}')
            a(f'v_max_u32 v{vT + i}, v{vT + i}, v{r + 3}')
        a(f'v_max3_u32 v{vT}, v{vT}, v{vT + 1}, v{vT + 2}')
        a(f'v_max_u32 v{vT}, v{vT}, v{vT + 3}')
        a(f'v_cmp_eq_u32 vcc, -1, v{vT}')
        a(f's_cbranch_vccz {ok}')
    spin(a, 4, lambda: o_loads(a, False), chk)


def reduce_write(a):
    a(f's_lshl_b32 s{sT0}, s{sW}, 14')
    a(f'v_add_u32 v{vT}, s{sT0}, v{vL16}')
    for k in range(16):
        a.ds(f'ds_write_b128 v{vT}, v[{ACC + 4 * k}:{ACC + 4 * k + 3}] offset:{k * 1024}', 'rw')


def reduce_read_gate(a):
    a(f'''
s_lshl_b32 s{sT0}, s{sCT}, 12
s_lshl_b32 s{sT1}, s{sKH}, 11
s_add_u32 s{sT0}, s{sT0}, s{sT1}
v_add_u32 v{vT}, s{sT0}, v{vL16}
v_add_u32 v{vT + 1}, 0x10000, v{vT}
''')
    t = ACC
    for w in range(8):
        for e in range(2):
            ar = vT if w < 4 else vT + 1
            d = t + 8 * w + 4 * e
            a.ds(f'ds_read_b128 v[{d}:{d + 3}], v{ar} offset:{(w % 4) * 16384 + e * 1024}', f'r{w}')
    a.wait_vm('side')
    for e in range(2):
        for h in range(2):
            a(f'v_lshlrev_b32 v{vG + 4 * e + 2 * h}, 16, v{vB2 + 2 * e + h}')
            a(f'v_and_b32 v{vG + 4 * e + 2 * h + 1}, 0xffff0000, v{vB2 + 2 * e + h}')
    for w in range(8):
        a.wait_lg(f'r{w}')
        for k in range(8):
            a(f'v_add_f32 v{vG + k}, v{vG + k}, v{t + 8 * w + k}')
    for k in range(8):
        a(f'v_mul_f32 v{t + k}, {fl(-LOG2E)}, v{vG + k}')
    for k in range(8):
        a(f'v_exp_f32 v{t + k}, v{t + k}')
    for k in range(8):
        a(f'v_add_f32 v{t + k}, 1.0, v{t + k}')
    for k in range(8):
        a(f'v_rcp_f32 v{t + k}, v{t + k}')
    for k in range(8):
        a(f'v_mul_f32 v{vG + k}, v{vG + k}, v{t + k}')


def ob_write(a):
    a(f's_lshl_b32 s{sT0}, s{sW}, 12')
    a(f's_add_u32 s{sT0}, s{sT0}, {OB}')
    a(f'v_add_u32 v{vT}, s{sT0}, v{vL16}')
    for i in range(4):
        a.ds(f'ds_write_b128 v{vT}, v[{OP + 4 * i}:{OP + 4 * i + 3}] offset:{i * 1024}', 'ow')


def wo_gemm(a):
    a(f's_lshl_b32 s{sT0}, s{sKH}, 14')
    a(f's_add_u32 s{sT0}, s{sT0}, {OB}')
    a(f'v_add_u32 v{vT}, s{sT0}, v{vL16}')
    bb = ACC
    for i in range(16):
        a.ds(f'ds_read_b128 v[{bb + 4 * i}:{bb + 4 * i + 3}], v{vT} offset:{i * 1024}', f'o{i}')
    a.wait_vm('wo')
    for i in range(16):
        a.wait_lg(f'o{i}')
        a(mfma32(RO, slot(70 + i), bb + 4 * i, '0' if i == 0 else None))


def exchange(a, label):
    k1l = label + '_kh1'
    j = label + '_khj'
    a(f'''
s_lshl_b32 s{sT0}, s{sW}, 11
v_add_u32 v{vT}, s{sT0}, v{vL16}
s_xor_b32 s{sT0}, s{sW}, 4
s_lshl_b32 s{sT0}, s{sT0}, 11
v_add_u32 v{vT + 1}, s{sT0}, v{vL16}
s_cmp_eq_u32 s{sKH}, 1
s_cbranch_scc1 {k1l}
''')
    for kh in (0, 1):
        if kh == 1:
            a.label(k1l)
        send = RO + (8 if kh == 0 else 0)
        keep = RO + (0 if kh == 0 else 8)
        a(f'ds_write_b128 v{vT}, v[{send}:{send + 3}]')
        a(f'ds_write_b128 v{vT}, v[{send + 4}:{send + 7}] offset:1024')
        for k in range(8):
            a(f'v_mov_b32 v{vS + k}, v{keep + k}')
        if kh == 0:
            a(f's_branch {j}')
    a.label(j)
    a('s_waitcnt lgkmcnt(0)')
    a('s_barrier')
    t = ACC
    a(f'ds_read_b128 v[{t}:{t + 3}], v{vT + 1}')
    a(f'ds_read_b128 v[{t + 4}:{t + 7}], v{vT + 1} offset:1024')
    return t


def final(a, t):
    u = ACC + 32
    for k in range(4):
        a(f'v_lshlrev_b32 v{u + 2 * k}, 16, v{vX + k}')
        a(f'v_and_b32 v{u + 2 * k + 1}, 0xffff0000, v{vX + k}')
    a('s_waitcnt lgkmcnt(0)')
    for k in range(8):
        a(f'v_add_f32 v{vS + k}, v{vS + k}, v{t + k}')
    for k in range(8):
        a(f'v_fma_f32 v{vS + k}, v{vS + k}, v{vG + k}, v{u + k}')
    for k in range(4):
        a(f'v_cvt_pk_bf16_f32 v{vS + k}, v{vS + 2 * k}, v{vS + 2 * k + 1}')
    a(f'v_permlane32_swap_b32 v{vS}, v{vS + 2}')
    a(f'v_permlane32_swap_b32 v{vS + 1}, v{vS + 3}')
    a.vmem(f'buffer_store_dwordx4 v[{vS}:{vS + 3}], v{vXO}, {srd(S_OUT)}, 0 offen', 'st')


def prio_plan(g):
    p = OPT.get('pr', 0)
    if p == 0:
        return lambda t: None
    if g == 1:
        return lambda t: 1 if t == 0 else None
    pat = {1: [2, 2, 2, 0], 2: [2, 2, 0], 3: [2, 0], 4: [2, 2, 2, 2, 0], 5: [2, 2, 2, 2, 2, 0, 0], 6: [0],
           7: [2, 2, 2, 0, 0]}[p]
    return lambda t: pat[t % len(pat)] if (t == 0 or pat[t % len(pat)] != pat[(t - 1) % len(pat)]) else None


def attention(a, g):
    pre_n = OPT['kvpre']
    a(f'''
v_mov_b32 v{aK0}, v{vL16}
v_add_u32 v{aK1}, 0x10000, v{vL16}
v_and_b32 v{vT}, 15, v0
v_lshrrev_b32 v{vT + 1}, 5, v0
v_lshlrev_b32 v{vT + 1}, 4, v{vT + 1}
v_add_u32 v{vT}, v{vT}, v{vT + 1}
v_lshlrev_b32 v{vT}, 4, v{vT}
v_add_u32 v{aV0}, 0x400, v{vT}
v_add_u32 v{aV1}, 0x10400, v{vT}
s_mov_b32 s{sVM}, 0xffff
s_mov_b32 s{sVM + 1}, 0xffff
''')
    if OPT.get('ones2', 1):
        a(f'v_and_b32 v{vT}, 27, v0')
        a(f'v_cmp_eq_u32 vcc, 16, v{vT}')
        a(f'v_mov_b32 v{vT}, 0x3f803f80')
        for i in range(4):
            a(f'v_cndmask_b32 v{RV0 + i}, 0, v{vT}, vcc')
            a(f'v_cndmask_b32 v{RV1 + i}, 0, v{vT}, vcc')
    else:
        for i in range(4):
            a(f'v_mov_b32 v{RV0 + i}, 0x3f803f80')
            a(f'v_mov_b32 v{RV1 + i}, 0x3f803f80')
    b1 = OPT.get('b1', pre_n)
    a.wait_vm(['q'] + [f'kv{i}' for i in range(b1)])
    a('s_barrier')
    st(a, 'b1')
    ev, mf, pre = {}, {}, {}
    add = lambda d, k, x: d.setdefault(k, []).append(x)
    k_read(a, 0)
    v_reads(a, [(0, 0)])
    a.wait_lg('K0')
    a(mfma32(RS[0], RK, RQ, '0'))
    row_max(a, RS[0], vT, vT + 1)
    for i in range(16):
        a(f'v_sub_f32 v{NEGM + i}, 0, v{vT}')
    a(mfma32(RS[0], RK, RQ, NEGM))
    k_read(a, 1)
    for i in range(pre_n, 16):
        add(ev, 2 * (i - pre_n), kv_dma(a, i))
    if b1 < pre_n:
        tb = 4 * b1 - 2
        add(pre, tb, lambda: (a.wait_vm([f'kv{i}' for i in range(pre_n)]), a('s_barrier')))
    tb2 = OPT['b2']
    assert tb2 <= 4 * pre_n - 2
    add(pre, tb2, lambda: (a.wait_vm([f'kv{i}' for i in range(16)]), a('s_barrier')))
    fs = OPT['fbsig']
    add(pre, fs, lambda: fb_signal_1(a))
    add(pre, fs + 1, lambda: fb_signal_2(a))
    u0, D = OPT['u0'], OPT['D']
    add(ev, u0 - 5, lambda: fb_poll(a))
    add(pre, u0 // 2, lambda: fb_check(a))
    for i in range(86):
        add(ev, u0 + i, stream_load(a, i))
    for s in range(14):
        for j in range(4):
            add(mf, u0 + 5 * s + 1 + j + D, stream_mfma(a, s, j))
    add(ev, u0 + 87, lambda: side_loads(a))
    assert u0 + 87 < 128
    pp = prio_plan(g)
    for t in range(64):
        if pp(t) is not None:
            pre.setdefault(t, []).insert(0, f's_setprio {pp(t)}')
    for t in range(64):
        attn_step(a, t, 64, ev, mf, pre)
        st(a, f'a{t}')
    if OPT.get('pr', 0):
        a('s_setprio 0')


vINI, vFAA, vFAD = 6, 22, 23
vPOI = 24


def nb_hook6(a, g):
    a.vmem(f'buffer_load_dword v{vINI}, off, {srd(S_DBG)}, 0 sc1', 'ini')


def nb_ini_check(a, g):
    a.wait_vm('ini')

    def chk(ok):
        a(f'v_cmp_eq_u32 vcc, 1, v{vINI}')
        a(f's_cbranch_vccnz {ok}')
    spin(a, 1, lambda: a(f'buffer_load_dword v{vINI}, off, {srd(S_DBG)}, 0 sc1'), chk)


def flag_ops(addr):
    return [x.strip() for x in addr.strip().split('\n')] + [
        f's_cmp_eq_u32 s{sW}, 0',
        's_cselect_b64 exec, 1, 0',
        f'v_mov_b32 v{vINI}, 1',
        f'buffer_store_dword v{vINI}, off, {srd(S_WS)}, s{sT0} sc1',
        's_mov_b64 exec, -1']


def fa_signal_ops():
    return [flag_ops(f'''
s_lshl_b32 s{sT0}, s{k1.sHP}, 8
s_lshl_b32 s{sT1}, s{k1.sTB}, 2
s_add_u32 s{sT0}, s{sT0}, s{sT1}
s_add_u32 s{sT0}, s{sT0}, {FA}
''')][0]


def fw_signal_ops():
    return flag_ops(f'''
s_lshr_b32 s{sT0}, s2, 4
s_lshl_b32 s{sT0}, s{sT0}, 8
s_and_b32 s{sT1}, s2, 15
s_lshl_b32 s{sT1}, s{sT1}, 2
s_add_u32 s{sT0}, s{sT0}, s{sT1}
s_add_u32 s{sT0}, s{sT0}, {FB}
''')


def nb_prebar_st(a, g):
    a.wait_vm('st')


def nb_prebar14(a, g):
    a.wait_vm(['pst', 'poi'])


def nb_fa_load():
    return f'buffer_load_dword v{vFAD}, v{vFAA}, {srd(S_WS)}, s{sT1} offen sc1'


def nb_hook15(a, g):
    a(f'v_and_b32 v{vFAA}, 15, v0')
    a(f'v_lshlrev_b32 v{vFAA}, 2, v{vFAA}')
    fa_addr(a)
    a.vmem(nb_fa_load(), 'fa')


def nb_fa_check(a):
    def chk(ok):
        a(f'v_cmp_ne_u32 vcc, 1, v{vFAD}')
        a(f's_cbranch_vccz {ok}')

    def ld():
        fa_addr(a)
        a(nb_fa_load())
    spin(a, 2, ld, chk)


def k1_new(a, g):
    import k1b
    k1b.OPT = OPT
    fas = OPT.get('fas', 12)
    k1b.HOOKS = {0: hook0, 6: nb_hook6}
    k1b.PREBAR = {fas: nb_prebar_st, 14: nb_prebar14}
    pre_n = OPT['kvpre']
    k1b.rot_setup(a)
    for d in k1b.dma_ops(a, 0, g):
        d()
    st(a, 'iss0')
    k1b.setup2(a)
    st(a, 'su2')
    i1, dep, ramp = OPT.get('i1', 3), OPT.get('dep', 3), OPT.get('ramp', 1)
    for n in range(1, i1):
        for d in k1b.dma_ops(a, n, g):
            d()
    nxt = i1
    for n in range(8):
        k1b.SCHED[n] = []
        while nxt <= n + dep and (len(k1b.SCHED[n]) < ramp or nxt <= n + 1):
            k1b.SCHED[n].append(nxt)
            nxt += 1
    late = list(range(nxt, 15))
    st(a, 'iss')
    pfpos = OPT.get('pfpos', 2)
    for n in range(8):
        k1b.p1_stage(a, n, g)
        if OPT.get('pf') and pfpos == n + 2:
            prefetch(a)
        st(a, f'p1_{n}')
    ne1 = OPT.get('ne1', 2)
    k1b.e1a(a, g, [d for c in late[:ne1] for d in k1b.dma_ops(a, c, g)], nb_ini_check)
    late = late[ne1:]
    st(a, 'e1')
    fill = {n: [[] for _ in range(8)] for n in range(8, 17)}
    e1b = k1b.e1b_ops(a, g)
    n8 = OPT.get('n8', 2)
    d13 = [d for c in late[:n8] for d in k1b.dma_ops(a, c, g)]
    late = late[n8:]
    w8 = OPT.get('w8', 2)
    slots = [(8, i) for i in range(4) for _ in range(w8)] + [(8, i) for i in range(4, 8)] + [(9, i) for i in range(8)]
    if g == 1:
        slots = slots[:len(slots) - OPT.get('e1short', 4)]
    parts = k1b.split_even(e1b, len(slots))
    for i in range(len(d13)):
        fill[8][i].append(d13[i])
    for k, c in enumerate(late):
        dd = k1b.dma_ops(a, c, g)
        fill[9 + k][1].insert(0, dd[0])
        fill[9 + k][5].insert(0, dd[1])
    for (n, i), p in zip(slots, parts):
        fill[n][i] += p
    d15 = k1b.dma_ops(a, 15, g)
    fill[10][1].append(d15[0])
    fill[10][5].append(d15[1])
    ids = record(a, lambda r: hook8(r, g, vPOI, 'poi'))
    for i, p in enumerate(k1b.split_even(ids, 8)):
        fill[10][i] += p
    addr, reads, stores = k1b.prep_finish_ops(a, 'pst')
    for i, p in enumerate(k1b.split_even(addr, 3)):
        fill[11][i] += p
    fill[11][3] += reads
    fill[11][6] += stores
    if g == 0:
        fill[fas][0] = fa_signal_ops() + fill[fas][0]
        fill[14][0] = fw_signal_ops() + fill[14][0]
    fill[15][0] = record(a, lambda r: nb_hook15(r, g)) + fill[15][0]
    fill[11][7] += k1b.cs_write_ops(a, [(k1.vCSA, (3 + 2 * g) * 512)])
    prep = k1b.gelu_prep(a, g, 0) + k1b.gelu_consts()
    first, per = k1b.gelu_tile_ops(a, k1.AC_A, 'ga')
    pp = k1b.split_even(prep + first, 4)
    for i in range(4):
        fill[12][i] += pp[i]
    gl = [o for q in per for o in q]
    gs = OPT.get('gstart', 5)
    slots = [(12, i) for i in range(gs, 8)] + [(n, i) for n in (13, 14, 15) for i in range(8)] + \
            [(16, i) for i in range(OPT.get('gend', 2))]
    for (n, i), p in zip(slots, k1b.split_even(gl, len(slots))):
        fill[n][i] += p
    for n in range(8, 16):
        k1b.p2_stage(a, n, g, fill[n])
        st(a, f'p2_{n}')
    k1b.p2_b_phase(a, 15, [[], [], [], []], fill[16][:4])
    k1.run_gaps(a, [k1b.cs_write_ops(a, [(k1.vCSB, (3 + 2 * g + 1) * 512)])])
    a.wait_lg()
    a.wait_vm('fa')
    a('s_barrier')
    nb_fa_check(a)
    st(a, 'tail')
    extras = [q_load(a)] + [kv_dma(a, i) for i in range(pre_n)]
    if g == 1:
        skip = a.newlabel('skipb')
        a(f's_cmp_eq_u32 s{k1.sPB}, 0')
        a(f's_cbranch_scc1 {skip}')
        snap = a.snapshot()
    prep = k1b.gelu_prep(a, g, 1)
    first, per = k1b.gelu_tile_ops(a, k1.AC_B, 'gb')
    ex = list(extras)
    k1.run_gaps(a, [prep[:4], ex.pop(0), prep[4:6], ex.pop(0), prep[6:], first, ex.pop(0)])
    gl = [o for q in per for o in q]
    nx = len(ex)
    span = (len(gl) * OPT.get('xspan', 60)) // 100
    done = 0
    for i, op in enumerate(gl):
        while done < nx and done * span <= i * nx:
            ex[done]()
            done += 1
        emit(a, op)
    while done < nx:
        ex[done]()
        done += 1
    k1b.h_store(a, g, 0, 'ha')
    k1b.h_store(a, g, 1, 'hb')
    if g == 1:
        jn = a.newlabel('joinb')
        a(f's_branch {jn}')
        endsnap = a.snapshot()
        a.label(skip)
        a.restore(snap)
        for x in extras:
            x()
        k1b.h_store(a, g, 0, 'ha')
        a.vmem(f'buffer_load_dword v10, v{vL16}, {srd(S_WS)}, s{sSRC} offen', 'hb')
        a.vmem(f'buffer_load_dword v11, v{vL16}, {srd(S_WS)}, s{sSRC} offen', 'hb')
        assert a.snapshot()[0] == endsnap[0], (a.snapshot(), endsnap)
        a.label(jn)
        a.restore(endsnap)
    a.wait_lg()
    st(a, 'gelu')

STAMPS = {}


def st(a, name):
    if name in STAMPS:
        stamp(a, STAMPS[name])


def gen_km(label, force_fallback=False):
    k1.SC = ' sc1'
    k1.HOOKS = {0: hook0, 8: hook8, 9: hook9, 11: hook11, 14: hook14, 15: hook15}
    k1.PREBAR = {11: prebar11}
    a = Asm()
    end = label + '_end'
    att = label + '_att'
    if OPT.get('st0'):
        a('s_memrealtime s[98:99]')
        a('s_memtime s[100:101]')
    prologue(a, end, None)
    build_srds(a, ['x', 'wq', 'w1', 'ws', 'w2', 'wo', 'b1', 'b2', 'out', 'dbg'])
    if not OPT.get('st0'):
        stamp(a, 0, 0)
    else:
        a('s_mov_b32 s68, s98')
        a('s_mov_b32 s69, s99')
        a('s_mov_b32 s88, s100')
        a('s_mov_b32 s89, s101')
    st(a, 'ka')
    start_extra(a)
    k1.setup(a)
    st(a, 'su1')
    g1 = label + '_g1'
    a(f's_cmp_eq_u32 s{sG}, 1')
    a(f's_cbranch_scc1 {g1}')
    snap0 = a.snapshot()
    joinsnap = None
    pre_n = OPT['kvpre']
    for g in (0, 1):
        if g == 1:
            a.label(g1)
            a.restore(snap0)
        if OPT.get('nb'):
            k1_new(a, g)
        else:
            i0, i1, pfpos = OPT.get('i0', 5), OPT.get('i1', 5), OPT.get('pfpos', 0)
            k1.INIT = i1
            for n in range(i0):
                for d in k1.dma_ops(a, n, g):
                    d()
            st(a, 'iss0')
            if OPT.get('pf') and pfpos == 0:
                prefetch(a)
            k1.setup2(a)
            st(a, 'su2')
            for n in range(i0, i1):
                for d in k1.dma_ops(a, n, g):
                    d()
            if OPT.get('pf') and pfpos == 1:
                prefetch(a)
            st(a, 'iss')
            for n in range(8):
                k1.p1_stage(a, n, g)
                if OPT.get('pf') and pfpos == n + 2:
                    prefetch(a)
                st(a, f'p1_{n}')
            k1.p1_epilogue(a, g)
            st(a, 'e1')
            if OPT.get('xdrain'):
                a('s_waitcnt vmcnt(0)')
                st(a, 'e1d')
            for n in range(8, 16):
                k1.p2_stage(a, n, g)
                st(a, f'p2_{n}')
            k1.p2_b_phase(a, 15, [[], [], [], []], [])
            k1.write_cs_partials(a, [(k1.vCSB, (3 + 2 * g + 1) * 512)])
            a.wait_all()
            a('s_barrier')
            fa_check(a)
            st(a, 'tail')
            k1.gelu_simple(a, g, 0, [q_load(a)] + [kv_dma(a, i) for i in range(pre_n)], 'ha')
            if g == 1:
                skip = a.newlabel('skipb')
                a(f's_cmp_eq_u32 s{k1.sPB}, 0')
                a(f's_cbranch_scc1 {skip}')
            k1.gelu_simple(a, g, 1, [], 'hb')
            if g == 1:
                jn = a.newlabel('joinb')
                a(f's_branch {jn}')
                a.label(skip)
                a(f'buffer_load_dword v10, v{vL16}, {srd(S_WS)}, s{sSRC} offen')
                a(f'buffer_load_dword v11, v{vL16}, {srd(S_WS)}, s{sSRC} offen')
                a.label(jn)
            a.wait_lg()
            st(a, 'gelu')
        if OPT.get('xdrain'):
            a('s_waitcnt vmcnt(0)')
            st(a, 'gelud')
        attention(a, g)
        if g == 0:
            a(f's_branch {att}')
            joinsnap = a.snapshot()
        else:
            assert a.snapshot() == joinsnap, (a.snapshot(), joinsnap)
    a.label(att)
    a.wait_lg()
    a(mfma32(RO, RV1, RP + 4, RO))
    fb = label + '_fb'
    fin = label + '_fin'
    a(f'v_mul_f32 v{vT}, 0, v{RO + 8}')
    for i in range(8):
        a(f'v_fma_f32 v{vT}, v{RO + i}, 0, v{vT}')
    a(f'v_cmp_u_f32 vcc, v{vT}, v{vT}')
    if force_fallback:
        a(f's_branch {fb}')
    else:
        a(f's_cbranch_vccnz {fb}')
    a.label(fin)
    a(f'v_rcp_f32 v{vT}, v{RO + 8}')
    for i in range(8):
        a(f'v_mul_f32 v{RO + i}, v{vT}, v{RO + i}')
    for i in range(4):
        a(f'v_cvt_pk_bf16_f32 v{RO + i}, v{RO + 2 * i}, v{RO + 2 * i + 1}')
    for i in range(4):
        a(f'v_min_u32 v{RO + i}, -2, v{RO + i}')
    a.vmem(f'buffer_store_dwordx4 v[{RO}:{RO + 3}], v{vL16}, {srd(S_WS)}, s{sOF} offen sc1', 'ost')
    st(a, 'oend')
    if OPT.get('xdrain'):
        a('s_waitcnt vmcnt(0)')
        st(a, 'oendd')
    a('s_barrier')
    st(a, 'ba')
    reduce_write(a)
    o_loads(a, True)
    a.wait_lg()
    a('s_barrier')
    st(a, 'bb')
    reduce_read_gate(a)
    st(a, 'gate')
    o_check(a)
    st(a, 'opoll')
    ob_write(a)
    a.wait_lg()
    a('s_barrier')
    st(a, 'bc')
    wo_gemm(a)
    st(a, 'wog')
    a.wait_lg()
    t = exchange(a, label)
    final(a, t)
    st(a, 'fin')
    a('s_waitcnt vmcnt(0)')
    stamp(a, 9, 1)
    if OPT.get('dbgst'):
        lbl = a.newlabel('nodbg')
        a(f's_cmp_lg_u32 s{sW}, {OPT["dbgst"] - 1}')
        a(f's_cbranch_scc1 {lbl}')
        a('s_mov_b64 exec, 1')
        a('v_not_b32 v2, s68')
        a(f'buffer_atomic_umax v2, off, {srd(S_DBG)}, 0 offset:20 sc1')
        for k in range(1, 10):
            a(f'v_mov_b32 v{2 + k}, s{68 + 2 * k}')
            a(f'buffer_atomic_umax v{2 + k}, off, {srd(S_DBG)}, 0 offset:{20 + 4 * k} sc1')
        a('s_waitcnt vmcnt(0)')
        a.label(lbl)
    else:
        stamp_flush(a, 0)
    a('s_endpgm')
    a.label(fb)
    fallback(a, fin)
    a.label(end)
    a('s_endpgm')
    return a
```

```python
from common import *
import k1
from k1 import fl

KM_LDS = 163840
LCNT = 163824
RED = 0
OB = 131072
FA = FL
FB = FL + 4096
FH = FL + 8192
LOG2E = 1.4426950408889634
SPIN = 20000

sT0, sT1, sT2, sT3 = 52, 53, 54, 55
sH, sTQ, sSRC, sMD = 20, 21, 22, 23
sTILE, sCG, sOF, sOP = 24, 25, 26, 27
sHS, sWSRC, sWO, sSPIN = 8, 9, 10, 11
sVM = 94
sCT, sKH = sTT, sG

vL16 = 1
aK0, aK1, aV0, aV1 = 2, 3, 4, 5
vT = 6
RQ, RK, RV0, RV1, RP = 12, 16, 20, 24, 28
NEGM = 36
RS = (52, 68)
RO = 84
ACC = 100
RING = 164
vX, vB2, vXO = 228, 232, 236
vG, vS = 240, 248
OP = 52

OPT = dict(u0=28, D=11, fbsig=5, prio=None, b2=24, kvpre=8, nofb=False)


def spin(a, site, load, check_ok):
    ok = a.newlabel('ok')
    lp = a.newlabel('spin')
    check_ok(ok)
    a(f's_mov_b32 s{sSPIN}, {SPIN}')
    a.label(lp)
    a('s_sleep 1')
    load()
    a('s_waitcnt vmcnt(0)')
    check_ok(ok)
    a(f's_sub_u32 s{sSPIN}, s{sSPIN}, 1')
    a(f's_cmp_lg_u32 s{sSPIN}, 0')
    a(f's_cbranch_scc1 {lp}')
    a(f'v_mov_b32 v{vT}, {site}')
    a(f'buffer_store_dword v{vT}, off, {srd(S_DBG)}, 0 offset:{4 * site}')
    a.label(ok)


def one_lane_store(a, reg, srdn, soff, val=1):
    a('s_mov_b64 exec, 1')
    a(f'v_mov_b32 v{reg}, {val}')
    a(f'buffer_store_dword v{reg}, off, {srd(srdn)}, {soff} sc1')
    a('s_mov_b64 exec, -1')


def start_extra(a):
    lbl = a.newlabel('noinit')
    a(f'''
v_mov_b32 v20, 0
v_mov_b32 v21, 0
v_mov_b32 v22, 0
v_mov_b32 v23, 0
v_mov_b32 v24, {LCNT}
''')
    a.ds('ds_write_b32 v24, v20', 'w')
    a(f'''
s_or_b32 s{sT0}, s2, s{sW}
s_cmp_lg_u32 s{sT0}, 0
s_cbranch_scc1 {lbl}
v_lshrrev_b32 v1, 2, v0
v_lshlrev_b32 v1, 8, v1
v_and_b32 v2, 3, v0
v_lshlrev_b32 v2, 4, v2
v_add_u32 v1, v1, v2
s_mov_b32 s{sT0}, {FA}
s_mov_b32 s{sT1}, {FB}
s_mov_b32 s{sT2}, {FH}
buffer_store_dwordx4 v[20:23], v1, {srd(S_WS)}, s{sT0} offen sc1
buffer_store_dwordx4 v[20:23], v1, {srd(S_WS)}, s{sT1} offen sc1
buffer_store_dwordx4 v[20:23], v1, {srd(S_WS)}, s{sT2} offen sc1
''')
    a.label(lbl)


def prefetch(a):
    pf = OPT['pf']
    a(f'''
s_lshl_b32 s{sT0}, s2, 3
s_add_u32 s{sT0}, s{sT0}, s{sW}
v_lshlrev_b32 v48, 4, v0
''')
    if pf & 1:
        a(f's_mul_i32 s{sT1}, s{sT0}, 768')
        a.vmem(f'buffer_load_dwordx4 v[52:55], v48, {srd(S_WQ)}, s{sT1} offen', 'pf')
    if pf & 2:
        a(f's_mul_i32 s{sT1}, s{sT0}, 896')
        a.vmem(f'buffer_load_dwordx4 v[56:59], v48, {srd(S_W1)}, s{sT1} offen', 'pf')
    if pf & 4:
        a(f's_lshl_b32 s{sT1}, s{sT0}, 10')
        a.vmem(f'buffer_load_dwordx4 v[60:63], v48, {srd(S_X)}, s{sT1} offen', 'pf')
    if pf & 8:
        a(f's_mul_i32 s{sT1}, s{sT0}, 896')
        a.vmem(f'buffer_load_dwordx4 v[56:59], v48, {srd(S_W2)}, s{sT1} offen', 'pf')
        a(f's_lshl_b32 s{sT1}, s{sT0}, 8')
        a.vmem(f'buffer_load_dword v60, v48, {srd(S_WO)}, s{sT1} offen', 'pf')


def hook0(a, g):
    st(a, 'c0')
    if g != 0:
        return
    lbl = a.newlabel('noinit2')
    a(f'''
s_or_b32 s{sT0}, s2, s{sW}
s_cmp_lg_u32 s{sT0}, 0
s_cbranch_scc1 {lbl}
''')
    one_lane_store(a, 20, S_DBG, 0)
    a.label(lbl)


def hook8(a, g, poi=92, tag='st'):
    a(f'''
s_lshl_b32 s{sT0}, s{sXCD}, 2
s_lshr_b32 s{sCG}, s{sSLOT}, 3
s_add_u32 s{sH}, s{sT0}, s{sCG}
s_and_b32 s{sT1}, s{sSLOT}, 7
s_lshl_b32 s{sTQ}, s{sT1}, 3
s_add_u32 s{sTQ}, s{sTQ}, s{sW}
s_lshl_b32 s{sMD}, s{sW}, 10
s_lshl_b32 s{sSRC}, s{sH}, 17
s_add_u32 s{sSRC}, s{sSRC}, {KV}
s_add_u32 s{sSRC}, s{sSRC}, s{sMD}
s_lshl_b32 s{sOF}, s{sTQ}, 5
s_add_u32 s{sOF}, s{sOF}, s{sH}
s_lshl_b32 s{sOF}, s{sOF}, 10
s_add_u32 s{sOF}, s{sOF}, {OF}
s_lshl_b32 s{sT0}, s{sXCD}, 3
s_add_u32 s{sTILE}, s{sT0}, s{sT1}
s_lshl_b32 s{sOP}, s{sTILE}, 3
s_add_u32 s{sOP}, s{sOP}, s{sW}
s_lshl_b32 s{sOP}, s{sOP}, 12
s_add_u32 s{sOP}, s{sOP}, {OF}
s_mul_i32 s{sT0}, s{sW}, 14
s_mul_i32 s{sHS}, s{sTILE}, 112
s_add_u32 s{sHS}, s{sHS}, s{sT0}
s_lshl_b32 s{sHS}, s{sHS}, 10
s_add_u32 s{sHS}, s{sHS}, {HF}
s_lshl_b32 s{sWSRC}, s{sT0}, 4
s_lshl_b32 s{sT1}, s{sCG}, 2
s_add_u32 s{sWSRC}, s{sWSRC}, s{sT1}
s_lshl_b32 s{sWSRC}, s{sWSRC}, 10
s_add_u32 s{sWSRC}, s{sWSRC}, {WF}
s_lshl_b32 s{sWO}, s{sKH}, 4
s_add_u32 s{sWO}, s{sWO}, 112
s_lshl_b32 s{sWO}, s{sWO}, 4
s_add_u32 s{sWO}, s{sWO}, s{sT1}
s_add_u32 s{sWO}, s{sWO}, s{sCT}
s_lshl_b32 s{sWO}, s{sWO}, 10
s_add_u32 s{sWO}, s{sWO}, {WF}
v_mov_b32 v{poi}, -1
v_mov_b32 v{poi + 1}, -1
v_mov_b32 v{poi + 2}, -1
v_mov_b32 v{poi + 3}, -1
''')
    a.vmem(f'buffer_store_dwordx4 v[{poi}:{poi + 3}], v{vL16}, {srd(S_WS)}, s{sOF} offen sc1', tag)


def ini_load(a):
    return f'buffer_load_dword v92, off, {srd(S_DBG)}, 0 sc1'


def hook9(a, g):
    a.vmem(ini_load(a), 'ini')


def prebar11(a, g):
    a.wait_vm('ini')

    def chk(ok):
        a('v_cmp_eq_u32 vcc, 1, v92')
        a(f's_cbranch_vccnz {ok}')
    spin(a, 1, lambda: a(ini_load(a)), chk)


def hook11(a, g):
    if g == 0:
        lbl = a.newlabel('nofa')
        a(f'''
s_cmp_lg_u32 s{sW}, 0
s_cbranch_scc1 {lbl}
s_lshl_b32 s{sT0}, s{k1.sHP}, 8
s_lshl_b32 s{sT1}, s{k1.sTB}, 2
s_add_u32 s{sT0}, s{sT0}, s{sT1}
s_add_u32 s{sT0}, s{sT0}, {FA}
''')
        one_lane_store(a, 92, S_WS, f's{sT0}')
        a.label(lbl)
    k1.prep_finish(a)


def hook14(a, g):
    if g == 0:
        lbl = a.newlabel('nofw')
        a(f'''
s_cmp_lg_u32 s{sW}, 0
s_cbranch_scc1 {lbl}
s_lshr_b32 s{sT0}, s2, 4
s_lshl_b32 s{sT0}, s{sT0}, 8
s_and_b32 s{sT1}, s2, 15
s_lshl_b32 s{sT1}, s{sT1}, 2
s_add_u32 s{sT0}, s{sT0}, s{sT1}
s_add_u32 s{sT0}, s{sT0}, {FB}
''')
        one_lane_store(a, 92, S_WS, f's{sT0}')
        a.label(lbl)


def fa_load():
    return f'buffer_load_dword v93, v94, {srd(S_WS)}, s{sSPIN - 0 if False else sT1} offen sc1'


def fa_addr(a):
    a(f'''
s_lshr_b32 s{sT1}, s{sH}, 1
s_lshl_b32 s{sT1}, s{sT1}, 8
s_add_u32 s{sT1}, s{sT1}, {FA}
''')


def hook15(a, g):
    a('v_and_b32 v94, 15, v0')
    a('v_lshlrev_b32 v94, 2, v94')
    fa_addr(a)
    a.vmem(fa_load(), 'fa')


def fa_check(a):
    def chk(ok):
        a('v_cmp_ne_u32 vcc, 1, v93')
        a(f's_cbranch_vccz {ok}')

    def ld():
        fa_addr(a)
        a(fa_load())
    spin(a, 2, ld, chk)


def kv_dma(a, i):
    def f():
        a(f's_add_u32 m0, s{sMD}, {i * 8192}')
        a(f's_add_u32 s{sT2}, s{sSRC}, {i * 8192}')
        a.vmem(f'buffer_load_dwordx4 v{vL16}, {srd(S_WS)}, s{sT2} offen sc1 lds', f'kv{i}')
    return f


def q_load(a):
    def f():
        a(f'''
s_lshl_b32 s{sT2}, s{sH}, 6
s_add_u32 s{sT2}, s{sT2}, s{sTQ}
s_lshl_b32 s{sT2}, s{sT2}, 10
''')
        a.vmem(f'buffer_load_dwordx4 v[{RQ}:{RQ + 3}], v{vL16}, {srd(S_WS)}, s{sT2} offen sc1', 'q')
    return f


def k_read(a, t):
    ar, off = (aK0, t * 2048) if t < 32 else (aK1, (t - 32) * 2048)
    a.ds(f'ds_read_b128 v[{RK}:{RK + 3}], v{ar} offset:{off}', f'K{t}')


def v_reads(a, items):
    a(f's_mov_b64 exec, s[{sVM}:{sVM + 1}]')
    for part, t in items:
        ar, off = (aV0, t * 2048) if t < 32 else (aV1, (t - 32) * 2048)
        r = RV0 if part == 0 else RV1
        a.ds(f'ds_read_b128 v[{r}:{r + 3}], v{ar} offset:{off + part * 512}', f'V{part}_{t}')
    a('s_mov_b64 exec, -1')


def run(a, items):
    for it in items:
        emit(a, it)


def attn_step(a, t, nt, ev, mf, pre):
    S, Sn = RS[t % 2], RS[(t + 1) % 2]
    ex = [f'v_exp_f32 v{S + i}, v{S + i}' for i in range(16)]
    cv = [f'v_cvt_pk_bf16_f32 v{RP + i}, v{S + 2 * i}, v{S + 2 * i + 1}' for i in range(8)]
    run(a, pre.get(t, []))
    if t + 1 < nt:
        a.wait_lg(f'K{t + 1}')
        a(mfma32(Sn, RK, RQ, NEGM))
        if t + 2 < nt:
            k_read(a, t + 2)
    run(a, ev.get(2 * t, []))
    run(a, (ex[0], ex[1], ex[2], ex[3]))
    run(a, mf.get(2 * t, []))
    run(a, (cv[0], ex[4], ex[5], cv[1]))
    if t > 0:
        a.wait_lg(f'V1_{t - 1}')
        a(mfma32(RO, RV1, RP + 4, RO))
    run(a, (ex[6], ex[7], cv[2], ex[8], ex[9], cv[3], ex[10], ex[11]))
    a.wait_lg(f'V0_{t}')
    a(mfma32(RO, RV0, RP, '0' if t == 0 else RO))
    items = [(1, t)]
    if t + 1 < nt:
        items.append((0, t + 1))
    v_reads(a, items)
    run(a, ev.get(2 * t + 1, []))
    run(a, (cv[4], ex[12], ex[13], cv[5]))
    run(a, mf.get(2 * t + 1, []))
    run(a, (ex[14], ex[15], cv[6], cv[7]))


def row_max(a, S, dst, tmp):
    a(f'v_max3_f32 v{dst}, v{S}, v{S + 1}, v{S + 2}')
    a(f'v_max3_f32 v{tmp}, v{S + 3}, v{S + 4}, v{S + 5}')
    a(f'v_max3_f32 v{dst}, v{dst}, v{S + 6}, v{S + 7}')
    a(f'v_max3_f32 v{tmp}, v{tmp}, v{S + 8}, v{S + 9}')
    a(f'v_max3_f32 v{dst}, v{dst}, v{S + 10}, v{S + 11}')
    a(f'v_max3_f32 v{tmp}, v{tmp}, v{S + 12}, v{S + 13}')
    a(f'v_max3_f32 v{dst}, v{dst}, v{S + 14}, v{S + 15}')
    a(f'v_max_f32 v{dst}, v{dst}, v{tmp}')
    a(f'v_mov_b32 v{tmp}, v{dst}')
    a(f'v_permlane32_swap_b32 v{dst}, v{tmp}')
    a(f'v_max_f32 v{dst}, v{dst}, v{tmp}')


def fallback(a, done_label):
    a.comment('--- fallback: online softmax with the running true maximum')
    loop = a.newlabel('fb_loop')
    S = RS[0]
    vm, vmn, val, va, vb = vT, vT + 1, vT + 2, vT + 3, vT + 4
    a(f'v_mov_b32 v{vm}, 0xff800000')
    for i in range(16):
        a(f'v_mov_b32 v{RO + i}, 0')
    a(f'v_mov_b32 v{va}, v{aK0}')
    a(f'v_mov_b32 v{vb}, v{aV0}')
    a(f's_mov_b32 s{sT0}, 64')
    a.label(loop)
    a(f'ds_read_b128 v[{RK}:{RK + 3}], v{va}')
    a(f's_mov_b64 exec, s[{sVM}:{sVM + 1}]')
    a(f'ds_read_b128 v[{RV0}:{RV0 + 3}], v{vb}')
    a(f'ds_read_b128 v[{RV1}:{RV1 + 3}], v{vb} offset:512')
    a('s_mov_b64 exec, -1')
    a('s_waitcnt lgkmcnt(0)')
    a(mfma32(S, RK, RQ, '0'))
    a(f'v_add_u32 v{va}, 0x800, v{va}')
    a(f'v_add_u32 v{vb}, 0x800, v{vb}')
    row_max(a, S, vmn, val)
    a(f'v_max_f32 v{vmn}, v{vmn}, v{vm}')
    a(f'v_sub_f32 v{val}, v{vm}, v{vmn}')
    a(f'v_exp_f32 v{val}, v{val}')
    a(f'v_mov_b32 v{vm}, v{vmn}')
    for i in range(16):
        a(f'v_sub_f32 v{S + i}, v{S + i}, v{vmn}')
    for i in range(16):
        a(f'v_exp_f32 v{S + i}, v{S + i}')
    for i in range(16):
        a(f'v_mul_f32 v{RO + i}, v{val}, v{RO + i}')
    for i in range(8):
        a(f'v_cvt_pk_bf16_f32 v{RP + i}, v{S + 2 * i}, v{S + 2 * i + 1}')
    a(mfma32(RO, RV0, RP, RO))
    a(mfma32(RO, RV1, RP + 4, RO))
    a(f's_sub_u32 s{sT0}, s{sT0}, 1')
    a(f's_cmp_lg_u32 s{sT0}, 0')
    a(f's_cbranch_scc1 {loop}')
    a(f's_branch {done_label}')


def slot(i):
    return RING + 4 * (i % 16)


def stream_load(a, i):
    def f():
        if OPT.get('xnl') and i < 70:
            return
        if i < 70:
            s, j = divmod(i, 5)
            if j == 0:
                a(f's_add_u32 s{sT2}, s{sHS}, {s * 1024}')
                a.vmem(f'buffer_load_dwordx4 v[{slot(i)}:{slot(i) + 3}], v{vL16}, {srd(S_WS)}, s{sT2} offen sc1', f'f{i}')
            else:
                if j == 1:
                    a(f's_add_u32 s{sT3}, s{sWSRC}, {s * 16384}')
                a.vmem(f'buffer_load_dwordx4 v[{slot(i)}:{slot(i) + 3}], v{vL16}, {srd(S_WS)}, s{sT3} offen '
                       f'offset:{(j - 1) * 1024} sc1', f'f{i}')
        else:
            k = i - 70
            a(f's_add_u32 s{sT2}, s{sWO}, {k * 16384}')
            a.vmem(f'buffer_load_dwordx4 v[{slot(i)}:{slot(i) + 3}], v{vL16}, {srd(S_WS)}, s{sT2} offen sc1', 'wo')
    return f


def stream_mfma(a, s, j):
    def f():
        iw, ih = 5 * s + 1 + j, 5 * s
        if not OPT.get('xnw'):
            a.wait_vm(f'f{iw}')
        else:
            a.vm = [t for t in a.vm if t != f'f{iw}' and t != f'f{ih}']
        if OPT.get('xnm'):
            return
        a(mfma32(ACC + 16 * j, slot(iw), slot(ih), '0' if s == 0 else None))
    return f


def side_loads(a):
    a(f'''
s_lshl_b32 s{sT0}, s{sCG}, 8
s_lshl_b32 s{sT1}, s{sCT}, 6
s_add_u32 s{sT0}, s{sT0}, s{sT1}
s_lshl_b32 s{sT1}, s{sKH}, 5
s_add_u32 s{sT0}, s{sT0}, s{sT1}
v_lshrrev_b32 v{vT}, 5, v0
v_lshlrev_b32 v{vT}, 3, v{vT}
v_add_u32 v{vT}, s{sT0}, v{vT}
v_and_b32 v{vT + 1}, 31, v0
v_lshlrev_b32 v{vT + 1}, 10, v{vT + 1}
s_lshl_b32 s{sT1}, s{sTILE}, 15
v_add3_u32 v{vT + 1}, v{vT + 1}, v{vT}, s{sT1}
''')
    a.vmem(f'buffer_load_dwordx2 v[{vB2}:{vB2 + 1}], v{vT}, {srd(S_B2)}, 0 offen', 'side')
    a.vmem(f'buffer_load_dwordx2 v[{vB2 + 2}:{vB2 + 3}], v{vT}, {srd(S_B2)}, 0 offen offset:16', 'side')
    a.vmem(f'buffer_load_dwordx2 v[{vX}:{vX + 1}], v{vT + 1}, {srd(S_X)}, 0 offen', 'side')
    a.vmem(f'buffer_load_dwordx2 v[{vX + 2}:{vX + 3}], v{vT + 1}, {srd(S_X)}, 0 offen offset:16', 'side')
    a(f'''
v_lshrrev_b32 v{vT + 2}, 5, v0
v_lshlrev_b32 v{vT + 2}, 4, v{vT + 2}
v_and_b32 v{vXO}, 31, v0
v_lshlrev_b32 v{vXO}, 10, v{vXO}
s_add_u32 s{sT0}, s{sT0}, s{sT1}
v_add3_u32 v{vXO}, v{vXO}, v{vT + 2}, s{sT0}
''')
    if OPT.get('otouch'):
        a.vmem(f'buffer_load_dword v{vXO + 1}, v{vXO}, {srd(S_OUT)}, 0 offen', 'side')


def fb_signal_1(a):
    a.wait_vm('hb')
    a(f'''
v_mov_b32 v{vT}, {LCNT}
v_mov_b32 v{vT + 1}, 1
s_mov_b64 exec, 1
''')
    a.ds(f'ds_add_rtn_u32 v{vT + 1}, v{vT}, v{vT + 1}', 'cnt')
    a('s_mov_b64 exec, -1')


def fb_signal_2(a):
    lbl = a.newlabel('nofb')
    a.wait_lg('cnt')
    a(f'''
v_readfirstlane_b32 s{sT0}, v{vT + 1}
s_cmp_lg_u32 s{sT0}, 7
s_cbranch_scc1 {lbl}
s_lshl_b32 s{sT0}, s{k1.sTB}, 8
s_lshl_b32 s{sT1}, s{k1.sHP}, 2
s_add_u32 s{sT0}, s{sT0}, s{sT1}
s_add_u32 s{sT0}, s{sT0}, {FH}
''')
    one_lane_store(a, vT + 1, S_WS, f's{sT0}')
    a.label(lbl)


def fb_load(a):
    return [f'buffer_load_dwordx4 v[8:11], v{vT}, {srd(S_WS)}, s{sT1} offen sc1',
            f'buffer_load_dword v{vX}, v{vT + 1}, {srd(S_WS)}, s{sT0} offen sc1']


def fb_addr(a):
    a(f'''
s_mov_b32 s{sT1}, {FB}
s_lshr_b32 s{sT0}, s{sTILE}, 2
s_lshl_b32 s{sT0}, s{sT0}, 8
s_add_u32 s{sT0}, s{sT0}, {FH}
''')


def fb_poll(a):
    a(f'''
v_lshrrev_b32 v{vT}, 2, v0
v_lshlrev_b32 v{vT}, 8, v{vT}
v_and_b32 v{vT + 1}, 3, v0
v_lshlrev_b32 v{vT + 1}, 4, v{vT + 1}
v_add_u32 v{vT}, v{vT}, v{vT + 1}
v_and_b32 v{vT + 1}, 15, v0
v_lshlrev_b32 v{vT + 1}, 2, v{vT + 1}
''')
    fb_addr(a)
    for x in fb_load(a):
        a.vmem(x, 'fb')


def fb_check(a):
    a.wait_vm('fb')

    def chk(ok):
        a('v_and_b32 v8, v8, v9')
        a('v_and_b32 v10, v10, v11')
        a('v_and_b32 v8, v8, v10')
        a(f'v_and_b32 v8, v8, v{vX}')
        a('v_cmp_ne_u32 vcc, 1, v8')
        a(f's_cbranch_vccz {ok}')

    def ld():
        fb_addr(a)
        for x in fb_load(a):
            a(x)
    spin(a, 3, ld, chk)


def o_loads(a, tracked):
    for i in range(4):
        t = f'buffer_load_dwordx4 v[{OP + 4 * i}:{OP + 4 * i + 3}], v{vL16}, {srd(S_WS)}, s{sOP} offen offset:{1024 * i} sc1'
        if tracked:
            a.vmem(t, 'op')
        else:
            a(t)


def o_check(a):
    a.wait_vm('op')

    def chk(ok):
        for i in range(4):
            r = OP + 4 * i
            a(f'v_max3_u32 v{vT + i}, v{r}, v{r + 1}, v{r + 2}')
            a(f'v_max_u32 v{vT + i}, v{vT + i}, v{r + 3}')
        a(f'v_max3_u32 v{vT}, v{vT}, v{vT + 1}, v{vT + 2}')
        a(f'v_max_u32 v{vT}, v{vT}, v{vT + 3}')
        a(f'v_cmp_eq_u32 vcc, -1, v{vT}')
        a(f's_cbranch_vccz {ok}')
    spin(a, 4, lambda: o_loads(a, False), chk)


def reduce_write(a):
    a(f's_lshl_b32 s{sT0}, s{sW}, 14')
    a(f'v_add_u32 v{vT}, s{sT0}, v{vL16}')
    for k in range(16):
        a.ds(f'ds_write_b128 v{vT}, v[{ACC + 4 * k}:{ACC + 4 * k + 3}] offset:{k * 1024}', 'rw')


PART = [0, 16384, 131072, 147456, 32768, 49152, 65536, 81920]


def reduce_write2(a, g):
    if g == 0:
        a(f's_lshl_b32 s{sT0}, s{sW}, 14')
        a(f's_cmp_ge_u32 s{sW}, 2')
        a(f's_cselect_b32 s{sT1}, {131072 - 32768}, 0')
        a(f's_add_u32 s{sT0}, s{sT0}, s{sT1}')
    else:
        a(f's_lshl_b32 s{sT0}, s{sW}, 14')
        a(f's_sub_u32 s{sT0}, s{sT0}, {65536 - 32768}')
    a(f'v_add_u32 v{vT}, s{sT0}, v{vL16}')
    for k in range(16):
        a.ds(f'ds_write_b128 v{vT}, v[{ACC + 4 * k}:{ACC + 4 * k + 3}] offset:{k * 1024}', 'rw')


def reduce_read_gate(a):
    early = OPT.get('erw') == 2
    a(f'''
s_lshl_b32 s{sT0}, s{sCT}, 12
s_lshl_b32 s{sT1}, s{sKH}, 11
s_add_u32 s{sT0}, s{sT0}, s{sT1}
v_add_u32 v{vT}, s{sT0}, v{vL16}
v_add_u32 v{vT + 1}, 0x10000, v{vT}
''')
    if early:
        a(f'v_add_u32 v{vT + 2}, 0x20000, v{vT}')
    t = ACC
    for w in range(8):
        for e in range(2):
            if early:
                p = PART[w]
                ar, off = vT + p // 65536, p % 65536 + e * 1024
            else:
                ar, off = (vT if w < 4 else vT + 1), (w % 4) * 16384 + e * 1024
            d = t + 8 * w + 4 * e
            a.ds(f'ds_read_b128 v[{d}:{d + 3}], v{ar} offset:{off}', f'r{w}')
    a.wait_vm('side')
    for e in range(2):
        for h in range(2):
            a(f'v_lshlrev_b32 v{vG + 4 * e + 2 * h}, 16, v{vB2 + 2 * e + h}')
            a(f'v_and_b32 v{vG + 4 * e + 2 * h + 1}, 0xffff0000, v{vB2 + 2 * e + h}')
    for w in range(8):
        a.wait_lg(f'r{w}')
        for k in range(8):
            a(f'v_add_f32 v{vG + k}, v{vG + k}, v{t + 8 * w + k}')
    for k in range(8):
        a(f'v_mul_f32 v{t + k}, {fl(-LOG2E)}, v{vG + k}')
    for k in range(8):
        a(f'v_exp_f32 v{t + k}, v{t + k}')
    for k in range(8):
        a(f'v_add_f32 v{t + k}, 1.0, v{t + k}')
    for k in range(8):
        a(f'v_rcp_f32 v{t + k}, v{t + k}')
    for k in range(8):
        a(f'v_mul_f32 v{vG + k}, v{vG + k}, v{t + k}')


def ob_base():
    return 98304 if OPT.get('erw') == 2 else OB


def ob_write(a):
    a(f's_lshl_b32 s{sT0}, s{sW}, 12')
    a(f's_add_u32 s{sT0}, s{sT0}, {ob_base()}')
    a(f'v_add_u32 v{vT}, s{sT0}, v{vL16}')
    for i in range(4):
        a.ds(f'ds_write_b128 v{vT}, v[{OP + 4 * i}:{OP + 4 * i + 3}] offset:{i * 1024}', 'ow')


def wo_gemm(a):
    a(f's_lshl_b32 s{sT0}, s{sKH}, 14')
    a(f's_add_u32 s{sT0}, s{sT0}, {ob_base()}')
    a(f'v_add_u32 v{vT}, s{sT0}, v{vL16}')
    bb = ACC
    for i in range(16):
        a.ds(f'ds_read_b128 v[{bb + 4 * i}:{bb + 4 * i + 3}], v{vT} offset:{i * 1024}', f'o{i}')
    a.wait_vm('wo')
    for i in range(16):
        a.wait_lg(f'o{i}')
        a(mfma32(RO, slot(70 + i), bb + 4 * i, '0' if i == 0 else None))


def exchange(a, label):
    k1l = label + '_kh1'
    j = label + '_khj'
    a(f'''
s_lshl_b32 s{sT0}, s{sW}, 11
v_add_u32 v{vT}, s{sT0}, v{vL16}
s_xor_b32 s{sT0}, s{sW}, 4
s_lshl_b32 s{sT0}, s{sT0}, 11
v_add_u32 v{vT + 1}, s{sT0}, v{vL16}
s_cmp_eq_u32 s{sKH}, 1
s_cbranch_scc1 {k1l}
''')
    for kh in (0, 1):
        if kh == 1:
            a.label(k1l)
        send = RO + (8 if kh == 0 else 0)
        keep = RO + (0 if kh == 0 else 8)
        a(f'ds_write_b128 v{vT}, v[{send}:{send + 3}]')
        a(f'ds_write_b128 v{vT}, v[{send + 4}:{send + 7}] offset:1024')
        for k in range(8):
            a(f'v_mov_b32 v{vS + k}, v{keep + k}')
        if kh == 0:
            a(f's_branch {j}')
    a.label(j)
    a('s_waitcnt lgkmcnt(0)')
    a('s_barrier')
    t = ACC
    a(f'ds_read_b128 v[{t}:{t + 3}], v{vT + 1}')
    a(f'ds_read_b128 v[{t + 4}:{t + 7}], v{vT + 1} offset:1024')
    return t


def final(a, t):
    u = ACC + 32
    for k in range(4):
        a(f'v_lshlrev_b32 v{u + 2 * k}, 16, v{vX + k}')
        a(f'v_and_b32 v{u + 2 * k + 1}, 0xffff0000, v{vX + k}')
    a('s_waitcnt lgkmcnt(0)')
    for k in range(8):
        a(f'v_add_f32 v{vS + k}, v{vS + k}, v{t + k}')
    for k in range(8):
        a(f'v_fma_f32 v{vS + k}, v{vS + k}, v{vG + k}, v{u + k}')
    for k in range(4):
        a(f'v_cvt_pk_bf16_f32 v{vS + k}, v{vS + 2 * k}, v{vS + 2 * k + 1}')
    a(f'v_permlane32_swap_b32 v{vS}, v{vS + 2}')
    a(f'v_permlane32_swap_b32 v{vS + 1}, v{vS + 3}')
    a.vmem(f'buffer_store_dwordx4 v[{vS}:{vS + 3}], v{vXO}, {srd(S_OUT)}, 0 offen', 'st')


def prio_plan(g):
    p = OPT.get('pr', 0)
    if p == 0:
        return lambda t: None
    if g == 1:
        return lambda t: 1 if t == 0 else None
    pat = {1: [2, 2, 2, 0], 2: [2, 2, 0], 3: [2, 0], 4: [2, 2, 2, 2, 0], 5: [2, 2, 2, 2, 2, 0, 0], 6: [0],
           7: [2, 2, 2, 0, 0]}[p]
    return lambda t: pat[t % len(pat)] if (t == 0 or pat[t % len(pat)] != pat[(t - 1) % len(pat)]) else None


def attention(a, g):
    pre_n = OPT['kvpre']
    a(f'''
v_mov_b32 v{aK0}, v{vL16}
v_add_u32 v{aK1}, 0x10000, v{vL16}
v_and_b32 v{vT}, 15, v0
v_lshrrev_b32 v{vT + 1}, 5, v0
v_lshlrev_b32 v{vT + 1}, 4, v{vT + 1}
v_add_u32 v{vT}, v{vT}, v{vT + 1}
v_lshlrev_b32 v{vT}, 4, v{vT}
v_add_u32 v{aV0}, 0x400, v{vT}
v_add_u32 v{aV1}, 0x10400, v{vT}
s_mov_b32 s{sVM}, 0xffff
s_mov_b32 s{sVM + 1}, 0xffff
''')
    if OPT.get('ones2', 1):
        a(f'v_and_b32 v{vT}, 27, v0')
        a(f'v_cmp_eq_u32 vcc, 16, v{vT}')
        a(f'v_mov_b32 v{vT}, 0x3f803f80')
        for i in range(4):
            a(f'v_cndmask_b32 v{RV0 + i}, 0, v{vT}, vcc')
            a(f'v_cndmask_b32 v{RV1 + i}, 0, v{vT}, vcc')
    else:
        for i in range(4):
            a(f'v_mov_b32 v{RV0 + i}, 0x3f803f80')
            a(f'v_mov_b32 v{RV1 + i}, 0x3f803f80')
    b1 = OPT.get('b1', pre_n)
    a.wait_vm(['q'] + [f'kv{i}' for i in range(b1)])
    a('s_barrier')
    st(a, 'b1')
    ev, mf, pre = {}, {}, {}
    add = lambda d, k, x: d.setdefault(k, []).append(x)
    k_read(a, 0)
    v_reads(a, [(0, 0)])
    a.wait_lg('K0')
    a(mfma32(RS[0], RK, RQ, '0'))
    row_max(a, RS[0], vT, vT + 1)
    for i in range(16):
        a(f'v_sub_f32 v{NEGM + i}, 0, v{vT}')
    a(mfma32(RS[0], RK, RQ, NEGM))
    k_read(a, 1)
    for i in range(pre_n, 16):
        add(ev, 2 * (i - pre_n), kv_dma(a, i))
    if b1 < pre_n:
        tb = 4 * b1 - 2
        add(pre, tb, lambda: (a.wait_vm([f'kv{i}' for i in range(pre_n)]), a('s_barrier')))
    tb2 = OPT['b2']
    assert tb2 <= 4 * pre_n - 2
    add(pre, tb2, lambda: (a.wait_vm([f'kv{i}' for i in range(16)]), a('s_barrier')))
    fs = OPT['fbsig']
    add(pre, fs, lambda: fb_signal_1(a))
    add(pre, fs + 1, lambda: fb_signal_2(a))
    u0, D = OPT['u0'], OPT['D']
    add(ev, u0 - 5, lambda: fb_poll(a))
    add(pre, u0 // 2, lambda: fb_check(a))
    for i in range(86):
        add(ev, u0 + i, stream_load(a, i))
    for s in range(14):
        for j in range(4):
            add(mf, u0 + 5 * s + 1 + j + D, stream_mfma(a, s, j))
    add(ev, u0 + 87, lambda: side_loads(a))
    assert u0 + 87 < 128
    pp = prio_plan(g)
    for t in range(64):
        if pp(t) is not None:
            pre.setdefault(t, []).insert(0, f's_setprio {pp(t)}')
    for t in range(64):
        attn_step(a, t, 64, ev, mf, pre)
        st(a, f'a{t}')
    if OPT.get('pr', 0):
        a('s_setprio 0')


vINI, vFAA, vFAD = 6, 22, 23
vPOI = 24


def nb_hook6(a, g):
    a.vmem(f'buffer_load_dword v{vINI}, off, {srd(S_DBG)}, 0 sc1', 'ini')


def nb_ini_check(a, g):
    a.wait_vm('ini')

    def chk(ok):
        a(f'v_cmp_eq_u32 vcc, 1, v{vINI}')
        a(f's_cbranch_vccnz {ok}')
    spin(a, 1, lambda: a(f'buffer_load_dword v{vINI}, off, {srd(S_DBG)}, 0 sc1'), chk)


def flag_ops(addr):
    return [x.strip() for x in addr.strip().split('\n')] + [
        f's_cmp_eq_u32 s{sW}, 0',
        's_cselect_b64 exec, 1, 0',
        f'v_mov_b32 v{vINI}, 1',
        f'buffer_store_dword v{vINI}, off, {srd(S_WS)}, s{sT0} sc1',
        's_mov_b64 exec, -1']


def fa_signal_ops():
    return [flag_ops(f'''
s_lshl_b32 s{sT0}, s{k1.sHP}, 8
s_lshl_b32 s{sT1}, s{k1.sTB}, 2
s_add_u32 s{sT0}, s{sT0}, s{sT1}
s_add_u32 s{sT0}, s{sT0}, {FA}
''')][0]


def fw_signal_ops():
    return flag_ops(f'''
s_lshr_b32 s{sT0}, s2, 4
s_lshl_b32 s{sT0}, s{sT0}, 8
s_and_b32 s{sT1}, s2, 15
s_lshl_b32 s{sT1}, s{sT1}, 2
s_add_u32 s{sT0}, s{sT0}, s{sT1}
s_add_u32 s{sT0}, s{sT0}, {FB}
''')


def nb_prebar_st(a, g):
    a.wait_vm('st')


def nb_prebar14(a, g):
    a.wait_vm(['pst', 'poi'])


def nb_fa_load():
    return f'buffer_load_dword v{vFAD}, v{vFAA}, {srd(S_WS)}, s{sT1} offen sc1'


def nb_hook15(a, g):
    a(f'v_and_b32 v{vFAA}, 15, v0')
    a(f'v_lshlrev_b32 v{vFAA}, 2, v{vFAA}')
    fa_addr(a)
    a.vmem(nb_fa_load(), 'fa')


def nb_fa_check(a):
    def chk(ok):
        a(f'v_cmp_ne_u32 vcc, 1, v{vFAD}')
        a(f's_cbranch_vccz {ok}')

    def ld():
        fa_addr(a)
        a(nb_fa_load())
    spin(a, 2, ld, chk)


def k1_new(a, g):
    import k1b
    k1b.OPT = OPT
    fas = OPT.get('fas', 12)
    k1b.HOOKS = {0: hook0, 6: nb_hook6}
    k1b.PREBAR = {fas: nb_prebar_st, 14: nb_prebar14}
    pre_n = OPT['kvpre']
    k1b.rot_setup(a)
    for d in k1b.dma_ops(a, 0, g):
        d()
    st(a, 'iss0')
    k1b.setup2(a)
    st(a, 'su2')
    i1, dep, ramp = OPT.get('i1', 3), OPT.get('dep', 3), OPT.get('ramp', 1)
    for n in range(1, i1):
        for d in k1b.dma_ops(a, n, g):
            d()
    nxt = i1
    for n in range(8):
        k1b.SCHED[n] = []
        while nxt <= n + dep and (len(k1b.SCHED[n]) < ramp or nxt <= n + 1):
            k1b.SCHED[n].append(nxt)
            nxt += 1
    late = list(range(nxt, 15))
    st(a, 'iss')
    pfpos = OPT.get('pfpos', 2)
    for n in range(8):
        k1b.p1_stage(a, n, g)
        if OPT.get('pf') and pfpos == n + 2:
            prefetch(a)
        st(a, f'p1_{n}')
    ne1 = OPT.get('ne1', 2)
    k1b.e1a(a, g, [d for c in late[:ne1] for d in k1b.dma_ops(a, c, g)], nb_ini_check)
    late = late[ne1:]
    st(a, 'e1')
    fill = {n: [[] for _ in range(8)] for n in range(8, 17)}
    e1b = k1b.e1b_ops(a, g)
    n8 = OPT.get('n8', 2)
    d13 = [d for c in late[:n8] for d in k1b.dma_ops(a, c, g)]
    late = late[n8:]
    w8 = OPT.get('w8', 2)
    slots = [(8, i) for i in range(4) for _ in range(w8)] + [(8, i) for i in range(4, 8)] + [(9, i) for i in range(8)]
    if g == 1:
        slots = slots[:len(slots) - OPT.get('e1short', 4)]
    parts = k1b.split_even(e1b, len(slots))
    for i in range(len(d13)):
        fill[8][i].append(d13[i])
    for k, c in enumerate(late):
        dd = k1b.dma_ops(a, c, g)
        fill[9 + k][1].insert(0, dd[0])
        fill[9 + k][5].insert(0, dd[1])
    for (n, i), p in zip(slots, parts):
        fill[n][i] += p
    d15 = k1b.dma_ops(a, 15, g)
    fill[10][1].append(d15[0])
    fill[10][5].append(d15[1])
    ids = record(a, lambda r: hook8(r, g, vPOI, 'poi'))
    for i, p in enumerate(k1b.split_even(ids, 8)):
        fill[10][i] += p
    addr, reads, stores = k1b.prep_finish_ops(a, 'pst')
    for i, p in enumerate(k1b.split_even(addr, 3)):
        fill[11][i] += p
    fill[11][3] += reads
    fill[11][6] += stores
    if g == 0:
        fill[fas][0] = fa_signal_ops() + fill[fas][0]
        fill[14][0] = fw_signal_ops() + fill[14][0]
    fill[15][0] = record(a, lambda r: nb_hook15(r, g)) + fill[15][0]
    fill[11][7] += k1b.cs_write_ops(a, [(k1.vCSA, (3 + 2 * g) * 512)])
    prep = k1b.gelu_prep(a, g, 0) + k1b.gelu_consts()
    first, per = k1b.gelu_tile_ops(a, k1.AC_A, 'ga')
    pp = k1b.split_even(prep + first, 4)
    for i in range(4):
        fill[12][i] += pp[i]
    gl = [o for q in per for o in q]
    gs = OPT.get('gstart', 5)
    slots = [(12, i) for i in range(gs, 8)] + [(n, i) for n in (13, 14, 15) for i in range(8)] + \
            [(16, i) for i in range(OPT.get('gend', 2))]
    for (n, i), p in zip(slots, k1b.split_even(gl, len(slots))):
        fill[n][i] += p
    for n in range(8, 16):
        k1b.p2_stage(a, n, g, fill[n])
        st(a, f'p2_{n}')
    k1b.p2_b_phase(a, 15, [[], [], [], []], fill[16][:4])
    k1.run_gaps(a, [k1b.cs_write_ops(a, [(k1.vCSB, (3 + 2 * g + 1) * 512)])])
    a.wait_lg()
    a.wait_vm('fa')
    a('s_barrier')
    nb_fa_check(a)
    st(a, 'tail')
    extras = [q_load(a)] + [kv_dma(a, i) for i in range(pre_n)]
    if g == 1:
        skip = a.newlabel('skipb')
        a(f's_cmp_eq_u32 s{k1.sPB}, 0')
        a(f's_cbranch_scc1 {skip}')
        snap = a.snapshot()
    prep = k1b.gelu_prep(a, g, 1)
    first, per = k1b.gelu_tile_ops(a, k1.AC_B, 'gb')
    ex = list(extras)
    k1.run_gaps(a, [prep[:4], ex.pop(0), prep[4:6], ex.pop(0), prep[6:], first, ex.pop(0)])
    gl = [o for q in per for o in q]
    nx = len(ex)
    span = (len(gl) * OPT.get('xspan', 60)) // 100
    done = 0
    for i, op in enumerate(gl):
        while done < nx and done * span <= i * nx:
            ex[done]()
            done += 1
        emit(a, op)
    while done < nx:
        ex[done]()
        done += 1
    k1b.h_store(a, g, 0, 'ha')
    k1b.h_store(a, g, 1, 'hb')
    if g == 1:
        jn = a.newlabel('joinb')
        a(f's_branch {jn}')
        endsnap = a.snapshot()
        a.label(skip)
        a.restore(snap)
        for x in extras:
            x()
        k1b.h_store(a, g, 0, 'ha')
        a.vmem(f'buffer_load_dword v10, v{vL16}, {srd(S_WS)}, s{sSRC} offen', 'hb')
        a.vmem(f'buffer_load_dword v11, v{vL16}, {srd(S_WS)}, s{sSRC} offen', 'hb')
        assert a.snapshot()[0] == endsnap[0], (a.snapshot(), endsnap)
        a.label(jn)
        a.restore(endsnap)
    a.wait_lg()
    st(a, 'gelu')

STAMPS = {}


def st(a, name):
    if name in STAMPS:
        stamp(a, STAMPS[name])


def gen_km(label, force_fallback=False):
    k1.SC = ' sc1'
    k1.HOOKS = {0: hook0, 8: hook8, 9: hook9, 11: hook11, 14: hook14, 15: hook15}
    k1.PREBAR = {11: prebar11}
    a = Asm()
    end = label + '_end'
    att = label + '_att'
    if OPT.get('st0'):
        a('s_memrealtime s[98:99]')
        a('s_memtime s[100:101]')
    prologue(a, end, None)
    build_srds(a, ['x', 'wq', 'w1', 'ws', 'w2', 'wo', 'b1', 'b2', 'out', 'dbg'])
    if not OPT.get('st0'):
        stamp(a, 0, 0)
    else:
        a('s_mov_b32 s68, s98')
        a('s_mov_b32 s69, s99')
        a('s_mov_b32 s88, s100')
        a('s_mov_b32 s89, s101')
    st(a, 'ka')
    start_extra(a)
    k1.setup(a)
    st(a, 'su1')
    g1 = label + '_g1'
    a(f's_cmp_eq_u32 s{sG}, 1')
    a(f's_cbranch_scc1 {g1}')
    snap0 = a.snapshot()
    joinsnap = None
    pre_n = OPT['kvpre']
    for g in (0, 1):
        if g == 1:
            a.label(g1)
            a.restore(snap0)
        if OPT.get('nb'):
            k1_new(a, g)
        else:
            i0, i1, pfpos = OPT.get('i0', 5), OPT.get('i1', 5), OPT.get('pfpos', 0)
            k1.INIT = i1
            for n in range(i0):
                for d in k1.dma_ops(a, n, g):
                    d()
            st(a, 'iss0')
            if OPT.get('pf') and pfpos == 0:
                prefetch(a)
            k1.setup2(a)
            st(a, 'su2')
            for n in range(i0, i1):
                for d in k1.dma_ops(a, n, g):
                    d()
            if OPT.get('pf') and pfpos == 1:
                prefetch(a)
            st(a, 'iss')
            for n in range(8):
                k1.p1_stage(a, n, g)
                if OPT.get('pf') and pfpos == n + 2:
                    prefetch(a)
                st(a, f'p1_{n}')
            k1.p1_epilogue(a, g)
            st(a, 'e1')
            if OPT.get('xdrain'):
                a('s_waitcnt vmcnt(0)')
                st(a, 'e1d')
            for n in range(8, 16):
                k1.p2_stage(a, n, g)
                st(a, f'p2_{n}')
            k1.p2_b_phase(a, 15, [[], [], [], []], [])
            k1.write_cs_partials(a, [(k1.vCSB, (3 + 2 * g + 1) * 512)])
            a.wait_all()
            a('s_barrier')
            fa_check(a)
            st(a, 'tail')
            k1.gelu_simple(a, g, 0, [q_load(a)] + [kv_dma(a, i) for i in range(pre_n)], 'ha')
            if g == 1:
                skip = a.newlabel('skipb')
                a(f's_cmp_eq_u32 s{k1.sPB}, 0')
                a(f's_cbranch_scc1 {skip}')
            k1.gelu_simple(a, g, 1, [], 'hb')
            if g == 1:
                jn = a.newlabel('joinb')
                a(f's_branch {jn}')
                a.label(skip)
                a(f'buffer_load_dword v10, v{vL16}, {srd(S_WS)}, s{sSRC} offen')
                a(f'buffer_load_dword v11, v{vL16}, {srd(S_WS)}, s{sSRC} offen')
                a.label(jn)
            a.wait_lg()
            st(a, 'gelu')
        if OPT.get('xdrain'):
            a('s_waitcnt vmcnt(0)')
            st(a, 'gelud')
        attention(a, g)
        if g == 0:
            a(f's_branch {att}')
            joinsnap = a.snapshot()
        else:
            assert a.snapshot() == joinsnap, (a.snapshot(), joinsnap)
    a.label(att)
    a.wait_lg()
    a(mfma32(RO, RV1, RP + 4, RO))
    fb = label + '_fb'
    fin = label + '_fin'
    a(f'v_mul_f32 v{vT}, 0, v{RO + 8}')
    for i in range(8):
        a(f'v_fma_f32 v{vT}, v{RO + i}, 0, v{vT}')
    a(f'v_cmp_u_f32 vcc, v{vT}, v{vT}')
    if force_fallback:
        a(f's_branch {fb}')
    else:
        a(f's_cbranch_vccnz {fb}')
    a.label(fin)
    a(f'v_rcp_f32 v{vT}, v{RO + 8}')
    for i in range(8):
        a(f'v_mul_f32 v{RO + i}, v{vT}, v{RO + i}')
    for i in range(4):
        a(f'v_cvt_pk_bf16_f32 v{RO + i}, v{RO + 2 * i}, v{RO + 2 * i + 1}')
    for i in range(4):
        a(f'v_min_u32 v{RO + i}, -2, v{RO + i}')
    a.vmem(f'buffer_store_dwordx4 v[{RO}:{RO + 3}], v{vL16}, {srd(S_WS)}, s{sOF} offen sc1', 'ost')
    st(a, 'oend')
    if OPT.get('xdrain'):
        a('s_waitcnt vmcnt(0)')
        st(a, 'oendd')
    if OPT.get('erw') == 2:
        assert OPT['b2'] >= 18
        g1l, jl = a.newlabel('rw_g1'), a.newlabel('rw_j')
        a(f's_cmp_eq_u32 s{sG}, 1')
        a(f's_cbranch_scc1 {g1l}')
        snap = a.snapshot()
        reduce_write2(a, 0)
        a('s_barrier')
        a(f's_branch {jl}')
        end0 = a.snapshot()
        a.label(g1l)
        a.restore(snap)
        a('s_barrier')
        reduce_write2(a, 1)
        assert a.snapshot() == end0
        a.label(jl)
        st(a, 'ba')
    else:
        a('s_barrier')
        st(a, 'ba')
        reduce_write(a)
    o_loads(a, True)
    a.wait_lg()
    a('s_barrier')
    st(a, 'bb')
    reduce_read_gate(a)
    st(a, 'gate')
    o_check(a)
    st(a, 'opoll')
    ob_write(a)
    a.wait_lg()
    a('s_barrier')
    st(a, 'bc')
    wo_gemm(a)
    st(a, 'wog')
    a.wait_lg()
    t = exchange(a, label)
    final(a, t)
    st(a, 'fin')
    a('s_waitcnt vmcnt(0)')
    stamp(a, 9, 1)
    if OPT.get('dbgst'):
        lbl = a.newlabel('nodbg')
        a(f's_cmp_lg_u32 s{sW}, {OPT["dbgst"] - 1}')
        a(f's_cbranch_scc1 {lbl}')
        a('s_mov_b64 exec, 1')
        a('v_not_b32 v2, s68')
        a(f'buffer_atomic_umax v2, off, {srd(S_DBG)}, 0 offset:20 sc1')
        for k in range(1, 10):
            a(f'v_mov_b32 v{2 + k}, s{68 + 2 * k}')
            a(f'buffer_atomic_umax v{2 + k}, off, {srd(S_DBG)}, 0 offset:{20 + 4 * k} sc1')
        a('s_waitcnt vmcnt(0)')
        a.label(lbl)
    else:
        stamp_flush(a, 0)
    a('s_endpgm')
    a.label(fb)
    fallback(a, fin)
    a.label(end)
    a('s_endpgm')
    return a
```

```python
from common import *
import k1
from k1 import (XR, WR, ST, CSP, SCR, X, fl, xslot, p1_frag, p1_read_ops, run_gaps, p2_frag, p2_mfma, p2_m16,
                P2A, P2B, C_Q, C1, C2, AC_A, AC_Q, AC_K, AC_B, BUFA, BUFB,
                sTB, sHP, sF0, sT0, sT1, sT2, sT3, sMASK, sMX, sMW, sM2, sPB, sT, sQO, sKO, sHO,
                vXD, vWD, vW1D, aX, aW, vU, vCS0, vCS1, vCSA, vCSB, vSEL, vTMP, vL16, vM, vR, vRR, vMRR,
                vB1A, vB1B)

SXB = ST + 2048
vSQ0, vSQ1 = 16, 17
vCSW, vSXW = 18, 19
vSXA = 28
aWH = 8
sC2 = 59
sCM = 96
vSCW, vSCR = 20, 21
vCSV = 22
vQS = 23
QT = 24
QT2 = 80

P2POS = {8: 49152, 9: 65536, 10: 0, 11: 16384, 12: 32768, 13: 98304, 14: 114688, 15: 49152}

HOOKS, PREBAR = {}, {}
SCHED = {}
OPT = {}


def split_even(ops, n):
    out = [[] for _ in range(n)]
    for i, o in enumerate(ops):
        out[(i * n) // max(len(ops), 1)].append(o)
    return out


sROT, sKX, sKW = 93, 57, 58


def rot_setup(a):
    m = OPT.get('rot', 0)
    if m == 1:
        a(f's_and_b32 s{sROT}, s{sTB}, 3')
    elif m == 2:
        a(f's_lshr_b32 s{sROT}, s{sSLOT}, 3')
        a(f's_add_u32 s{sROT}, s{sROT}, s{sTB}')
        a(f's_and_b32 s{sROT}, s{sROT}, 3')
    elif m == 3:
        a(f's_and_b32 s{sROT}, s{sTB}, 1')
        a(f's_lshl_b32 s{sROT}, s{sROT}, 1')
    elif m == 4:
        a(f's_lshr_b32 s{sROT}, s{sTB}, 1')
        a(f's_and_b32 s{sROT}, s{sROT}, 3')
    if m:
        a(f's_lshl_b32 s{sROT}, s{sROT}, 1')


def dma_ops(a, n, g):
    if n < 8 and not OPT.get('rot'):
        return k1.dma_ops(a, n, g)
    ops = []
    if n < 8:
        tag = f'c{n}'

        def xop(q):
            def f():
                if q == 0:
                    a(f's_add_u32 s{sKW}, s{sROT}, {n}')
                    a(f's_and_b32 s{sKW}, s{sKW}, 7')
                    a(f's_lshl_b32 s{sKX}, s{sKW}, 7')
                    a(f's_mul_i32 s{sKW}, s{sKW}, 196608')
                a(f's_add_u32 m0, s{sMX}, {xslot(n) + q * 1024}')
                a.vmem(f'buffer_load_dwordx4 v{vXD + q}, {srd(S_X)}, s{sKX} offen lds', tag)
            return f

        def wop(ldsoff, extra):
            def f():
                a(f's_add_u32 m0, s{sMW}, {ldsoff}')
                if extra:
                    a(f's_add_u32 s{sT2}, s{sKW}, {extra}')
                a.vmem(f'buffer_load_dwordx4 v{vWD}, {srd(S_WQ)}, s{sT2 if extra else sKW} offen lds', tag)
            return f
        wb = (n % 5) * 12288
        ops = [xop(0), xop(1)]
        if g == 0:
            ops.append(wop(wb + 2 * 4096, 0))
        else:
            ops.append(wop(wb, 0))
            ops.append(wop(wb + 4096, 1024))
        return ops
    ps, C = (n - 8) // 4, (n - 8) % 4
    for q in range(2):
        val = C * 458752 + q * 57344

        def f(q=q, val=val):
            a(f's_add_u32 m0, s{sM2}, {P2POS[n] + q * 1024}')
            if OPT.get('rot'):
                a(f's_lshr_b32 s{sT2}, s{sROT}, 1')
                a(f's_add_u32 s{sT2}, s{sT2}, {C}')
                a(f's_and_b32 s{sT2}, s{sT2}, 3')
                a(f's_mul_i32 s{sT2}, s{sT2}, 458752')
                if q:
                    a(f's_add_u32 s{sT2}, s{sT2}, {q * 57344}')
                if ps:
                    a(f's_add_u32 s{sT2}, s{sT2}, s{sPB}')
            elif ps == 0:
                a(f's_mov_b32 s{sT2}, {val}')
            else:
                a(f's_add_u32 s{sT2}, s{sPB}, {val}')
            a.vmem(f'buffer_load_dwordx4 v{vW1D}, {srd(S_W1)}, s{sT2} offen lds', f'c{n}')
        ops.append(f)
    return ops


def setup2(a):
    k1.setup2(a)
    a(f'''
v_and_b32 v{vCSW}, 15, v0
v_lshlrev_b32 v{vSXW}, 6, v{vCSW}
v_lshlrev_b32 v{vCSW}, 8, v{vCSW}
v_lshrrev_b32 v2, 4, v0
v_lshlrev_b32 v3, 6, v2
s_lshl_b32 s{sT0}, s{sTT}, 2
s_add_u32 s{sT0}, s{sT0}, {CSP}
v_add3_u32 v{vCSW}, v{vCSW}, v3, s{sT0}
v_lshlrev_b32 v3, 4, v2
s_lshl_b32 s{sT0}, s{sTT}, 7
s_add_u32 s{sT0}, s{sT0}, {SXB}
v_add3_u32 v{vSXW}, v{vSXW}, v3, s{sT0}
s_mov_b32 s{sCM}, 0x00030003
s_mov_b32 s{sCM + 1}, 0x00030003
''')


def cs_write_ops(a, accs_panels, sx=False):
    ops = [f's_mov_b64 exec, s[{sCM}:{sCM + 1}]']
    for acc, off in accs_panels:
        for r in range(4):
            ops.append(lambda acc=acc, off=off, r=r:
                       a.ds(f'ds_write_b32 v{vCSW}, v{acc + r} offset:{off + r * 16}', 'w'))
    if sx:
        ops.append(lambda: a.ds(f'ds_write_b128 v{vSXW}, v[{vSXA}:{vSXA + 3}]', 'w'))
    ops.append('s_mov_b64 exec, -1')
    return ops


def stat_reg(n, g, j, k):
    x = X(n, j) + ((0, 1)[k] if g == 0 else (2, 3)[k])
    t = vU + 2 * k
    return [f'v_and_b32 v{t}, s{sMASK}, v{x}',
            f'v_lshlrev_b32 v{t + 1}, 16, v{x}',
            f'v_fmac_f32 v{vSQ0}, v{t}, v{t}',
            f'v_fmac_f32 v{vSQ1}, v{t + 1}, v{t + 1}']


def sx16(n, j):
    return mfma16(vSXA, X(n, j), vSEL, '0' if (n == 0 and j == 0) else None)


def p1_b_phase(a, n, g, ra, dm):
    w = lambda j: (lambda: a.wait_lg(f'P{n}_{j}'))
    S = lambda j, k: stat_reg(n, g, j, k)
    d = list(dm) + [[]] * 4
    if g == 0:
        q = lambda j: mfma32(AC_Q, p1_frag(0, j, 0), X(n, j))
        k_ = lambda j: mfma32(AC_K, p1_frag(0, j, 1), X(n, j))
        run_gaps(a, [w(2), q(2), ra[0][:3], S(2, 0),
                     k_(2), ra[0][3:], d[0], S(2, 1),
                     w(3), q(3), ra[1][:3], S(3, 0),
                     k_(3), ra[1][3:], d[1], S(3, 1)])
    else:
        v_ = lambda j: mfma32(AC_Q, X(n, j), p1_frag(1, j, 0))
        run_gaps(a, [w(2), v_(2), ra[0], S(2, 0), sx16(n, 2), d[0], S(2, 1),
                     w(3), v_(3), ra[1], S(3, 0), sx16(n, 3), d[1], S(3, 1)])


def p1_a_phase(a, n, g, rb, dm):
    w = lambda j: (lambda: a.wait_lg(f'P{n}_{j}'))
    S = lambda j, k: stat_reg(n, g, j, k)
    d = list(dm) + [[]] * 4
    z = lambda first: '0' if first else None
    if g == 0:
        q = lambda j: mfma32(AC_Q, p1_frag(0, j, 0), X(n, j), z(n == 0 and j == 0))
        k_ = lambda j: mfma32(AC_K, p1_frag(0, j, 1), X(n, j), z(n == 0 and j == 0))
        run_gaps(a, [w(0), q(0), rb[0][:3], S(0, 0),
                     k_(0), rb[0][3:], S(0, 1),
                     mfma16(vCS0, p1_frag(0, 0, 0), vSEL, z(n == 0)), d[0],
                     mfma16(vCS1, p1_frag(0, 0, 1), vSEL, z(n == 0)), rb[1][:3],
                     w(1), q(1), rb[1][3:], S(1, 0),
                     k_(1), d[1], S(1, 1)])
    else:
        v_ = lambda j: mfma32(AC_Q, X(n, j), p1_frag(1, j, 0), z(n == 0 and j == 0))
        run_gaps(a, [w(0), v_(0), rb[0], S(0, 0),
                     mfma16(vCS0, p1_frag(1, 0, 0), vSEL, z(n == 0)), d[0], S(0, 1), sx16(n, 0),
                     w(1), v_(1), rb[1], S(1, 0), sx16(n, 1), d[1], S(1, 1)])


def stage_head(a, n, g):
    a.wait_vm(f'c{n}')
    if n in PREBAR:
        PREBAR[n](a, g)
    a('s_barrier')
    if n in HOOKS:
        HOOKS[n](a, g)


def p1_stage(a, n, g):
    a.comment(f'--- P1 stage {n} g={g}')
    if OPT.get('dep', 3) == 4:
        a.wait_lg()
    stage_head(a, n, g)
    k1.rebase(a, [aX + j for j in range(4)], n)
    dm = [d for c in SCHED[n] for d in dma_ops(a, c, g)]
    db, da = k1.split_dma(dm, g, True)
    nb_ = OPT.get('db0' if g == 0 else 'db1')
    if nb_ is not None:
        db, da = dm[:nb_], dm[nb_:]
    two = lambda l: [l[:(len(l) + 1) // 2], l[(len(l) + 1) // 2:]]
    ra = [p1_read_ops(a, n, g, 0), p1_read_ops(a, n, g, 1)]
    if n > 0:
        p1_b_phase(a, n - 1, g, ra, two(db))
    else:
        run_gaps(a, ra)
        da = db + da
    da = two(da)
    rb = [p1_read_ops(a, n, g, 2), p1_read_ops(a, n, g, 3)]
    p1_a_phase(a, n, g, rb, da)


def e1a(a, g, dmas, prebar=None):
    a.comment(f'--- P1 epilogue g={g}')
    dmas = list(dmas)
    nxt = lambda: dmas.pop(0)() if dmas else None
    p1_b_phase(a, 7, g, [[], []], [])
    t = BUFA
    a(f'''
v_add_f32 v{vSQ0}, v{vSQ0}, v{vSQ1}
v_and_b32 v{t}, 31, v0
v_lshlrev_b32 v{t + 1}, 4, v{t}
s_lshl_b32 s{sT0}, s{sTT}, 9
s_add_u32 s{sT0}, s{sT0}, {ST}
v_add_u32 v{t + 1}, s{sT0}, v{t + 1}
v_lshrrev_b32 v{t + 2}, 5, v0
v_lshlrev_b32 v{t + 2}, 2, v{t + 2}
v_add3_u32 v{t + 2}, v{t + 2}, v{t + 1}, {8 * g}
''')
    a.ds(f'ds_write_b32 v{t + 2}, v{vSQ0}', 'w')
    run_gaps(a, [cs_write_ops(a, [(vCS0, 0), (vCS1, 512)] if g == 0 else [(vCS0, 1024)], sx=(g == 1))])
    a(f'''
v_lshlrev_b32 v{t + 2}, 2, v{t}
s_lshl_b32 s{sT0}, s{sTT}, 7
s_add_u32 s{sT0}, s{sT0}, {SXB}
v_add_u32 v{t + 2}, s{sT0}, v{t + 2}
v_lshlrev_b32 v{t + 3}, 4, v{t}
v_add_u32 v{t + 3}, {CSP}, v{t + 3}
''')
    if g == 0:
        a(f'''
v_lshrrev_b32 v{t}, 5, v0
v_lshlrev_b32 v{t}, 9, v{t}
v_add_u32 v{t + 3}, v{t + 3}, v{t}
''')
    a.wait_lg()
    if prebar:
        prebar(a, g)
    a('s_barrier')
    a.ds(f'ds_read_b128 v[{t + 4}:{t + 7}], v{t + 1}', 's')
    a.ds(f'ds_read_b32 v{t + 12}, v{t + 2}', 's')
    a.ds(f'ds_read_b128 v[{t + 8}:{t + 11}], v{t + 3} offset:{0 if g == 0 else 1024}', 'c')
    if not OPT.get('prs'):
        prep_issue(a)
    a(f'''
v_and_b32 v{vTMP + 2}, 31, v0
v_and_b32 v{vTMP + 3}, 19, v{vTMP + 2}
v_bfe_u32 v{vCS0}, v0, 2, 1
v_lshlrev_b32 v{vCS0}, 3, v{vCS0}
v_bfe_u32 v{vCS0 + 1}, v0, 3, 1
v_lshlrev_b32 v{vCS0 + 1}, 2, v{vCS0 + 1}
v_add3_u32 v{vTMP + 3}, v{vTMP + 3}, v{vCS0}, v{vCS0 + 1}
v_lshlrev_b32 v{vTMP + 3}, 1, v{vTMP + 3}
s_lshl_b32 s{sT0}, s{sG}, 1
s_add_u32 s{sT0}, s{sT0}, s{sF0}
s_lshl_b32 s{sT0}, s{sT0}, 6
s_add_u32 s{sT1}, s{sT0}, s{sPB}
''')
    a.vmem(f'buffer_load_ushort v{vB1A}, v{vTMP + 3}, {srd(S_B1)}, s{sT0} offen', 'b1')
    a.vmem(f'buffer_load_ushort v{vB1B}, v{vTMP + 3}, {srd(S_B1)}, s{sT1} offen', 'b1')
    a.wait_lg('s')
    a(f'''
v_add_f32 v{t + 4}, v{t + 4}, v{t + 5}
v_add_f32 v{t + 6}, v{t + 6}, v{t + 7}
v_mul_f32 v{vM}, {fl(1 / 512)}, v{t + 12}
v_add_f32 v{t + 4}, v{t + 4}, v{t + 6}
v_mul_f32 v{t + 4}, {fl(1 / 512)}, v{t + 4}
v_fma_f32 v{t + 4}, -v{vM}, v{vM}, v{t + 4}
v_max_f32 v{t + 4}, 0, v{t + 4}
v_add_f32 v{t + 5}, {fl(1e-5)}, v{t + 4}
v_rsq_f32 v{vR}, v{t + 5}
''')
    nxt()
    a.wait_lg('c')
    a(f'''
v_add_f32 v{t + 8}, v{t + 8}, v{t + 9}
v_add_f32 v{t + 10}, v{t + 10}, v{t + 11}
v_mul_f32 v{t + 5}, v{vR}, v{vR}
v_mul_f32 v{t + 5}, v{t + 5}, v{t + 4}
v_add_f32 v{t + 5}, {fl(1e-5)}, v{t + 5}
v_rsq_f32 v{t + 5}, v{t + 5}
v_add_f32 v{t + 8}, v{t + 8}, v{t + 10}
s_lshl_b32 s{sT0}, s{sW}, 8
s_add_u32 s{sT0}, s{sT0}, {SCR}
v_lshlrev_b32 v{vSCW}, 2, v0
v_add_u32 v{vSCW}, s{sT0}, v{vSCW}
v_lshrrev_b32 v{vSCR}, 5, v0
v_lshlrev_b32 v{vSCR}, 4, v{vSCR}
v_add_u32 v{vSCR}, s{sT0}, v{vSCR}
v_mul_f32 v{vRR}, v{vR}, v{t + 5}
v_mul_f32 v{vMRR}, v{vM}, v{vRR}
''')
    if g == 0:
        a.ds(f'ds_write_b32 v{vSCW}, v{t + 8}', 'w')
        a(f'v_mul_f32 v{vQS}, {fl(C_Q)}, v{vR}')
    else:
        a(f'''
v_mul_f32 v{t + 9}, v{vM}, v{vR}
v_cmp_gt_u32 vcc, 32, v0
v_cndmask_b32 v{t + 9}, v{t + 9}, v{vR}, vcc
''')
        a.ds(f'ds_write_b32 v{vSCW}, v{t + 9}', 'w')
        a(f'''
v_mov_b32 v{vCSV}, v{t + 8}
v_bfe_u32 v{vQS}, v0, 4, 1
v_lshlrev_b32 v{vQS}, 17, v{vQS}
v_and_b32 v{t + 3}, 15, v0
v_lshlrev_b32 v{t + 3}, 4, v{t + 3}
v_add_u32 v{vQS}, v{vQS}, v{t + 3}
v_lshrrev_b32 v{t + 3}, 5, v0
v_lshlrev_b32 v{t + 3}, 8, v{t + 3}
v_add_u32 v{vQS}, v{vQS}, v{t + 3}
''')
    nxt()
    a(f'''
s_lshl_b32 s{sT0}, s{sHP}, 17
s_lshl_b32 s{sT1}, s{sT}, 10
s_add_u32 s{sQO}, s{sT0}, s{sT1}
s_lshl_b32 s{sT0}, s{sHP}, 18
s_lshl_b32 s{sT1}, s{sT}, 11
s_add_u32 s{sKO}, s{sT0}, s{sT1}
s_add_u32 s{sKO}, s{sKO}, {KV}
s_lshl_b32 s{sT0}, s{sG}, 13
s_sub_u32 s{sT0}, s{sT0}, {WR}
''')
    for j in range(4):
        a(f'v_add_u32 v{aW + j}, s{sT0}, v{aW + j}')
    for j in range(4):
        a(f'v_add_u32 v{aWH + j}, 0x10000, v{aW + j}')
    while dmas:
        nxt()


def e1m(a, g, dmas, prebar, e1b_first):
    a.comment(f'--- P1 epilogue + P2 stage 8, g={g}')
    dmas = list(dmas)
    p1_b_phase(a, 7, g, [[], []], [])
    t, u = BUFA, BUFB
    a(f'''
v_add_f32 v{vSQ0}, v{vSQ0}, v{vSQ1}
v_and_b32 v{t}, 31, v0
v_lshlrev_b32 v{t + 1}, 4, v{t}
s_lshl_b32 s{sT0}, s{sTT}, 9
s_add_u32 s{sT0}, s{sT0}, {ST}
v_add_u32 v{t + 1}, s{sT0}, v{t + 1}
v_lshrrev_b32 v{t + 2}, 5, v0
v_lshlrev_b32 v{t + 2}, 2, v{t + 2}
v_add3_u32 v{t + 2}, v{t + 2}, v{t + 1}, {8 * g}
''')
    a.ds(f'ds_write_b32 v{t + 2}, v{vSQ0}', 'w')
    run_gaps(a, [cs_write_ops(a, [(vCS0, 0), (vCS1, 512)] if g == 0 else [(vCS0, 1024)], sx=(g == 1))])
    a(f'''
v_lshlrev_b32 v{t + 2}, 2, v{t}
s_lshl_b32 s{sT0}, s{sTT}, 7
s_add_u32 s{sT0}, s{sT0}, {SXB}
v_add_u32 v{t + 2}, s{sT0}, v{t + 2}
v_lshlrev_b32 v{t + 3}, 4, v{t}
v_add_u32 v{t + 3}, {CSP}, v{t + 3}
''')
    if g == 0:
        a(f'''
v_lshrrev_b32 v{t}, 5, v0
v_lshlrev_b32 v{t}, 9, v{t}
v_add_u32 v{t + 3}, v{t + 3}, v{t}
''')
    a(f'''
s_lshl_b32 s{sT0}, s{sG}, 13
s_sub_u32 s{sT0}, s{sT0}, {WR}
''')
    for j in range(4):
        a(f'v_add_u32 v{aW + j}, s{sT0}, v{aW + j}')
    for j in range(4):
        a(f'v_add_u32 v{aWH + j}, 0x10000, v{aW + j}')
    a.wait_lg()
    if prebar:
        prebar(a, g)
    a.wait_vm('c8')
    a('s_barrier')
    a.ds(f'ds_read_b128 v[{u + 4}:{u + 7}], v{t + 1}', 's')
    a.ds(f'ds_read_b32 v{u + 12}, v{t + 2}', 's')
    a.ds(f'ds_read_b128 v[{u + 8}:{u + 11}], v{t + 3} offset:{0 if g == 0 else 1024}', 'c')
    run_gaps(a, [p2_read_ops(a, 8, p) for p in P2A])

    def b1_ops(r):
        r(f'''
v_and_b32 v{vTMP + 2}, 31, v0
v_and_b32 v{vTMP + 3}, 19, v{vTMP + 2}
v_bfe_u32 v{vCS0}, v0, 2, 1
v_lshlrev_b32 v{vCS0}, 3, v{vCS0}
v_bfe_u32 v{vCS0 + 1}, v0, 3, 1
v_lshlrev_b32 v{vCS0 + 1}, 2, v{vCS0 + 1}
v_add3_u32 v{vTMP + 3}, v{vTMP + 3}, v{vCS0}, v{vCS0 + 1}
v_lshlrev_b32 v{vTMP + 3}, 1, v{vTMP + 3}
s_lshl_b32 s{sT0}, s{sG}, 1
s_add_u32 s{sT0}, s{sT0}, s{sF0}
s_lshl_b32 s{sT0}, s{sT0}, 6
s_add_u32 s{sT1}, s{sT0}, s{sPB}
''')
        r.vmem(f'buffer_load_ushort v{vB1A}, v{vTMP + 3}, {srd(S_B1)}, s{sT0} offen', 'b1')
        r.vmem(f'buffer_load_ushort v{vB1B}, v{vTMP + 3}, {srd(S_B1)}, s{sT1} offen', 'b1')

    def s1(r):
        r.wait_lg('s')
        r(f'''
v_add_f32 v{u + 4}, v{u + 4}, v{u + 5}
v_add_f32 v{u + 6}, v{u + 6}, v{u + 7}
v_mul_f32 v{vM}, {fl(1 / 512)}, v{u + 12}
v_add_f32 v{u + 4}, v{u + 4}, v{u + 6}
v_mul_f32 v{u + 4}, {fl(1 / 512)}, v{u + 4}
v_fma_f32 v{u + 4}, -v{vM}, v{vM}, v{u + 4}
v_max_f32 v{u + 4}, 0, v{u + 4}
v_add_f32 v{u + 5}, {fl(1e-5)}, v{u + 4}
v_rsq_f32 v{vR}, v{u + 5}
''')

    def s2(r):
        r.wait_lg('c')
        r(f'''
v_add_f32 v{u + 8}, v{u + 8}, v{u + 9}
v_add_f32 v{u + 10}, v{u + 10}, v{u + 11}
v_mul_f32 v{u + 5}, v{vR}, v{vR}
v_mul_f32 v{u + 5}, v{u + 5}, v{u + 4}
v_add_f32 v{u + 5}, {fl(1e-5)}, v{u + 5}
v_rsq_f32 v{u + 5}, v{u + 5}
v_add_f32 v{u + 8}, v{u + 8}, v{u + 10}
s_lshl_b32 s{sT0}, s{sW}, 8
s_add_u32 s{sT0}, s{sT0}, {SCR}
v_lshlrev_b32 v{vSCW}, 2, v0
v_add_u32 v{vSCW}, s{sT0}, v{vSCW}
v_lshrrev_b32 v{vSCR}, 5, v0
v_lshlrev_b32 v{vSCR}, 4, v{vSCR}
v_add_u32 v{vSCR}, s{sT0}, v{vSCR}
v_mul_f32 v{vRR}, v{vR}, v{u + 5}
v_mul_f32 v{vMRR}, v{vM}, v{vRR}
''')

    def s3(r):
        if g == 0:
            r.ds(f'ds_write_b32 v{vSCW}, v{u + 8}', 'w')
            r(f'v_mul_f32 v{vQS}, {fl(C_Q)}, v{vR}')
        else:
            r(f'''
v_mul_f32 v{u + 9}, v{vM}, v{vR}
v_cmp_gt_u32 vcc, 32, v0
v_cndmask_b32 v{u + 9}, v{u + 9}, v{vR}, vcc
''')
            r.ds(f'ds_write_b32 v{vSCW}, v{u + 9}', 'w')
            r(f'''
v_mov_b32 v{vCSV}, v{u + 8}
v_bfe_u32 v{vQS}, v0, 4, 1
v_lshlrev_b32 v{vQS}, 17, v{vQS}
v_and_b32 v{u + 3}, 15, v0
v_lshlrev_b32 v{u + 3}, 4, v{u + 3}
v_add_u32 v{vQS}, v{vQS}, v{u + 3}
v_lshrrev_b32 v{u + 3}, 5, v0
v_lshlrev_b32 v{u + 3}, 8, v{u + 3}
v_add_u32 v{vQS}, v{vQS}, v{u + 3}
''')

    def offs(r):
        r(f'''
s_lshl_b32 s{sT0}, s{sHP}, 17
s_lshl_b32 s{sT1}, s{sT}, 10
s_add_u32 s{sQO}, s{sT0}, s{sT1}
s_lshl_b32 s{sT0}, s{sHP}, 18
s_lshl_b32 s{sT1}, s{sT}, 11
s_add_u32 s{sKO}, s{sT0}, s{sT1}
s_add_u32 s{sKO}, s{sKO}, {KV}
''')
    w = lambda p: (lambda: a.wait_lg(f'P8_{p}'))
    mm = lambda p: [w(p), p2_mfma(8, p)] + ([p2_m16(8, p)] if p in (0, 4) else [])
    mode = OPT.get('e1m', 1)
    prep = [] if OPT.get('prs') else [lambda: prep_issue(a)]
    nd = len(dmas) // 2
    if mode == 1:
        run_gaps(a, [prep, record(a, b1_ops), record(a, s1), mm(P2A[0]), dmas[:nd][:1], record(a, s2), mm(P2A[1]),
                     record(a, s3), e1b_first[:2], record(a, offs), mm(P2A[2]), dmas[1:nd], mm(P2A[3])])
        rest = dmas[nd:]
    elif mode == 2:
        run_gaps(a, [record(a, b1_ops), record(a, s1), mm(P2A[0]), record(a, s2), mm(P2A[1]),
                     record(a, s3), e1b_first[:2], record(a, offs), mm(P2A[2]), prep, mm(P2A[3]), dmas[:nd]])
        rest = dmas[nd:]
    else:
        run_gaps(a, [record(a, offs), record(a, s1), mm(P2A[0]), record(a, s2), mm(P2A[1]),
                     record(a, s3), e1b_first[:2], mm(P2A[2]), record(a, b1_ops), mm(P2A[3]), prep, dmas[:nd]])
        rest = dmas[nd:]
    rb = [p2_read_ops(a, 8, p) for p in P2B]
    run_gaps(a, rb)
    rem = split_even(e1b_first[2:], len(rest) + 1)
    for i, p in enumerate(rem):
        run_gaps(a, [p])
        if i < len(rest):
            rest[i]()


def e1b_ops(a, g):
    SC = k1.SC
    ops = []
    if g == 0:
        quads = [(p, qd) for p in (0, 1) for qd in range(4)]
        rd = lambda i: (lambda: a.ds(f'ds_read_b128 v[{QT + 4 * (i % 2)}:{QT + 4 * (i % 2) + 3}], v{vSCR} '
                                     f'offset:{quads[i][0] * 128 + quads[i][1] * 32}', f'eq{i}'))
        ops += [rd(0), rd(1)]
        for i, (p, qd) in enumerate(quads):
            acc = AC_Q if p == 0 else AC_K
            sc = vQS if p == 0 else vR
            T = QT + 4 * (i % 2)
            R = [acc + 4 * qd + e for e in range(4)]
            ops.append(lambda i=i: a.wait_lg(f'eq{i}'))
            ops += [f'v_fma_f32 v{R[e]}, -v{vM}, v{T + e}, v{R[e]}' for e in range(4)]
            if i + 2 < 8:
                ops.append(rd(i + 2))
            ops += [f'v_mul_f32 v{R[e]}, v{sc}, v{R[e]}' for e in range(4)]
            ops.append(f'v_cvt_pk_bf16_f32 v{acc + 2 * qd}, v{R[0]}, v{R[1]}')
            ops.append(f'v_cvt_pk_bf16_f32 v{acc + 2 * qd + 1}, v{R[2]}, v{R[3]}')
            if qd in (1, 3):
                half = qd // 2
                so, delta = (sQO, 65536) if p == 0 else (sKO, 131072)

                def stf(acc=acc, half=half, so=so, delta=delta):
                    if half == 0:
                        s_ = f's{so}'
                    else:
                        a(f's_add_u32 s{sT2}, s{so}, {delta}')
                        s_ = f's{sT2}'
                    a.vmem(f'buffer_store_dwordx4 v[{acc + 4 * half}:{acc + 4 * half + 3}], v{vL16}, {srd(S_WS)}, '
                           f'{s_} offen{SC}', 'st')
                ops.append(stf)
    else:
        acc = AC_Q
        T = lambda i: (QT, QT2)[i % 2]

        def rd(i):
            def f():
                a.ds(f'ds_read_b128 v[{T(i)}:{T(i) + 3}], v{vSCR} offset:{i * 32}', f'eq{i}')
                a.ds(f'ds_read_b128 v[{T(i) + 4}:{T(i) + 7}], v{vSCR} offset:{128 + i * 32}', f'eq{i}')
            return f
        ops += [rd(0), rd(1)]
        for qd in range(4):
            R = [acc + 4 * qd + e for e in range(4)]
            t = T(qd)
            ops.append(lambda qd=qd: a.wait_lg(f'eq{qd}'))
            ops += [f'v_mul_f32 v{t + 4 + e}, v{vCSV}, v{t + 4 + e}' for e in range(4)]
            ops += [f'v_fma_f32 v{R[e]}, v{R[e]}, v{t + e}, -v{t + 4 + e}' for e in range(4)]
            if qd + 2 < 4:
                ops.append(rd(qd + 2))
            ops.append(f'v_cvt_pk_bf16_f32 v{acc + 2 * qd}, v{R[0]}, v{R[1]}')
            ops.append(f'v_cvt_pk_bf16_f32 v{acc + 2 * qd + 1}, v{R[2]}, v{R[3]}')
            if qd in (1, 3):
                half = qd // 2
                ops.append(lambda half=half: a.vmem(
                    f'buffer_store_dwordx4 v[{acc + 4 * half}:{acc + 4 * half + 3}], v{vQS}, {srd(S_WS)}, '
                    f's{sKO} offen offset:{1024 + 512 * half}{SC}', 'st'))
    return ops


def p2_read_ops(a, n, p):
    pos = P2POS[n] + (p // 4) * 4096
    base = aW if pos < 65536 else aWH
    off = pos % 65536
    d = p2_frag(p)
    tag = f'P{n}_{p}'
    return [lambda: a.ds(f'ds_read_b64_tr_b16 v[{d}:{d + 1}], v{base + p % 4} offset:{off}', tag),
            lambda: a.ds(f'ds_read_b64_tr_b16 v[{d + 2}:{d + 3}], v{base + p % 4} offset:{off + 256}', tag)]


def p2_b_phase(a, n, ra, fill):
    w = lambda p: (lambda: a.wait_lg(f'P{n}_{p}'))
    for i, p in enumerate(P2B):
        run_gaps(a, [w(p), p2_mfma(n, p), ra[i], fill[i]])


def p2_a_phase(a, n, rb, fill):
    w = lambda p: (lambda: a.wait_lg(f'P{n}_{p}'))
    for i, p in enumerate(P2A):
        run_gaps(a, [w(p), p2_mfma(n, p), rb[i], fill[i]])
        if p in (0, 4):
            a(p2_m16(n, p))


def p2_stage(a, n, g, fill):
    a.comment(f'--- P2 stage {n} g={g}')
    if n == 12:
        a.wait_lg('w')
    stage_head(a, n, g)
    ra = [p2_read_ops(a, n, p) for p in P2A]
    if n > 8:
        p2_b_phase(a, n - 1, ra, fill[:4])
    else:
        run_gaps(a, [[x for pair in zip(ra, fill[:4]) for y in pair for x in y]])
    rb = [p2_read_ops(a, n, p) for p in P2B]
    p2_a_phase(a, n, rb, fill[4:])


GT = 80


def gelu_prep(a, g, pas):
    pi = 3 + 2 * g + pas
    b1 = vB1A if pas == 0 else vB1B
    t = vCS0
    return [f'v_and_b32 v{t + 4}, 31, v0',
            f'v_lshlrev_b32 v{t + 4}, 4, v{t + 4}',
            f'v_add_u32 v{t + 4}, {CSP}, v{t + 4}',
            lambda: a.ds(f'ds_read_b128 v[{t}:{t + 3}], v{t + 4} offset:{pi * 512}', 'gc'),
            f'v_lshlrev_b32 v{t + 4}, 16, v{b1}',
            f'v_cmp_gt_u32 vcc, 32, v0',
            lambda: a.wait_lg('gc'),
            f'v_add_f32 v{t}, v{t}, v{t + 1}',
            f'v_add_f32 v{t + 2}, v{t + 2}, v{t + 3}',
            f'v_add_f32 v{t}, v{t}, v{t + 2}',
            f'v_cndmask_b32 v{t}, v{t + 4}, v{t}, vcc',
            lambda: a.ds(f'ds_write_b32 v{vSCW}, v{t}', 'w')]


def gelu_quad(a, acc, q, tag):
    cs, b, u, w = [[GT + 4 * k + e for e in range(4)] for k in range(4)]
    R = [acc + 4 * q + e for e in range(4)]
    rd = [lambda: a.ds(f'ds_read_b128 v[{cs[0]}:{cs[3]}], v{vSCR} offset:{q * 32}', tag),
          lambda: a.ds(f'ds_read_b128 v[{b[0]}:{b[3]}], v{vSCR} offset:{128 + q * 32}', tag)]
    ops = [lambda: a.wait_lg(tag)]
    ops += [f'v_fma_f32 v{b[e]}, -v{vMRR}, v{cs[e]}, v{b[e]}' for e in range(4)]
    ops += [f'v_fma_f32 v{R[e]}, v{vRR}, v{R[e]}, v{b[e]}' for e in range(4)]
    body = [f'v_mul_f32 v{u[e]}, v{R[e]}, v{R[e]}' for e in range(4)]
    body += [f'v_fma_f32 v{u[e]}, v{u[e]}, s{sC2}, v{vTMP + 2}' for e in range(4)]
    body += [f'v_mul_f32 v{u[e]}, v{u[e]}, v{R[e]}' for e in range(4)]
    body += [f'v_exp_f32 v{w[e]}, v{u[e]}' for e in range(4)]
    body += [f'v_add_f32 v{w[e]}, 1.0, v{w[e]}' for e in range(4)]
    body += [f'v_rcp_f32 v{w[e]}, v{w[e]}' for e in range(4)]
    body += [f'v_mul_f32 v{R[e]}, v{R[e]}, v{w[e]}' for e in range(4)]
    body.append(f'v_cvt_pk_bf16_f32 v{acc + 2 * q}, v{R[0]}, v{R[1]}')
    body.append(f'v_cvt_pk_bf16_f32 v{acc + 2 * q + 1}, v{R[2]}, v{R[3]}')
    return rd, ops, body


def gelu_consts():
    return [f's_mov_b32 s{sC2}, {fl(C2)}', f'v_mov_b32 v{vTMP + 2}, {fl(C1)}']


def gelu_tile_ops(a, acc, tagp):
    out = []
    rds = [gelu_quad(a, acc, q, f'{tagp}{q}') for q in range(4)]
    out += rds[0][0]
    per = []
    for q in range(4):
        rd, head, body = rds[q]
        seq = list(head)
        if q + 1 < 4:
            seq += rds[q + 1][0]
        seq += body
        per.append(seq)
    return out, per


def h_store(a, g, pas, tag):
    acc = AC_A if pas == 0 else AC_B
    a(f'''
s_mul_i32 s{sHO}, s{sT}, 112
s_lshl_b32 s{sT0}, s{sG}, 1
s_add_u32 s{sT0}, s{sT0}, s{sF0}
s_add_u32 s{sT0}, s{sT0}, {pas}
s_lshl_b32 s{sT0}, s{sT0}, 1
s_add_u32 s{sHO}, s{sHO}, s{sT0}
s_lshl_b32 s{sHO}, s{sHO}, 10
s_add_u32 s{sHO}, s{sHO}, {HF}
''')
    a.vmem(f'buffer_store_dwordx4 v[{acc}:{acc + 3}], v{vL16}, {srd(S_WS)}, s{sHO} offen{k1.SC}', tag)
    a.vmem(f'buffer_store_dwordx4 v[{acc + 4}:{acc + 7}], v{vL16}, {srd(S_WS)}, s{sHO} offen offset:1024{k1.SC}', tag)


vPO2 = 47


def prep_issue(a):
    a.comment('prep DMA')
    lbl = a.newlabel('prep_wo')
    lbl2 = a.newlabel('prep_j')
    a(f'''
v_lshrrev_b32 v{vTMP}, 2, v0
v_lshlrev_b32 v{vTMP}, 10, v{vTMP}
v_and_b32 v{vTMP + 1}, 3, v0
v_lshlrev_b32 v{vTMP + 1}, 4, v{vTMP + 1}
s_and_b32 s{sT0}, s2, 1
s_lshl_b32 s{sT0}, s{sT0}, 3
s_add_u32 s{sT0}, s{sT0}, s{sW}
s_lshl_b32 s{sT0}, s{sT0}, 6
v_add3_u32 v{vTMP}, v{vTMP}, v{vTMP + 1}, s{sT0}
s_lshr_b32 s{k1.sPS}, s2, 1
s_lshl_b32 s{sT1}, s{sW}, 10
s_add_u32 m0, s{sT1}, {WR}
s_lshl_b32 s{sT2}, s{k1.sPS}, 14
s_cmp_ge_u32 s2, 224
s_cbranch_scc1 {lbl}
''')
    a.vmem(f'buffer_load_dwordx4 v{vTMP}, {srd(S_W2)}, s{sT2} offen lds', 'prep')
    a(f's_branch {lbl2}')
    a.label(lbl)
    a(f's_sub_u32 s{sT2}, s{sT2}, {112 * 16384}')
    a(f'buffer_load_dwordx4 v{vTMP}, {srd(S_WO)}, s{sT2} offen lds')
    a.label(lbl2)
    a(f'''
s_cmp_ge_u32 s2, 32
s_cselect_b32 s{k1.sPF}, 0x40000000, 0
s_lshr_b32 s{sT2}, s2, 1
s_add_u32 s{sT2}, s{sT2}, 16
s_lshl_b32 s{sT2}, s{sT2}, 14
s_add_u32 m0, s{sT1}, {WR + 8192}
v_add_u32 v{vTMP}, s{k1.sPF}, v{vTMP}
''')
    a.vmem(f'buffer_load_dwordx4 v{vTMP}, {srd(S_WO)}, s{sT2} offen lds', 'prep')


def prep_finish_ops(a, tag):
    t = 80
    SC = k1.SC

    def body(r):
        r(f'''
v_lshrrev_b32 v{t}, 5, v0
v_lshlrev_b32 v{t}, 9, v{t}
v_bfe_u32 v{t + 1}, v0, 2, 2
v_lshlrev_b32 v{t + 1}, 6, v{t + 1}
v_add_u32 v{t}, v{t}, v{t + 1}
v_bfe_u32 v{t + 1}, v0, 4, 1
v_lshlrev_b32 v{t + 1}, 5, v{t + 1}
v_add_u32 v{t}, v{t}, v{t + 1}
v_and_b32 v{t + 1}, 3, v0
v_lshlrev_b32 v{t + 1}, 3, v{t + 1}
s_lshl_b32 s{sT0}, s{sW}, 10
s_add_u32 s{sT0}, s{sT0}, {WR}
v_add3_u32 v{t}, v{t}, v{t + 1}, s{sT0}
v_add_u32 v{t + 2}, s{k1.sPF}, v{vL16}
''')
    addr = record(a, body)

    def rd(r):
        r.wait_vm('prep')
        r.ds(f'ds_read_b64_tr_b16 v[{t + 4}:{t + 5}], v{t}', 'pp')
        r.ds(f'ds_read_b64_tr_b16 v[{t + 6}:{t + 7}], v{t} offset:256', 'pp')
        r.ds(f'ds_read_b64_tr_b16 v[{t + 8}:{t + 9}], v{t} offset:8192', 'pp')
        r.ds(f'ds_read_b64_tr_b16 v[{t + 10}:{t + 11}], v{t} offset:{8192 + 256}', 'pp')
    reads = record(a, rd)

    def stf(r):
        r(f'''
s_lshl_b32 s{k1.sPS}, s2, 3
s_add_u32 s{k1.sPS}, s{k1.sPS}, s{sW}
s_lshl_b32 s{k1.sPS}, s{k1.sPS}, 10
s_add_u32 s{k1.sPS}, s{k1.sPS}, {WF}
''')
        r.wait_lg('pp')
        r.vmem(f'buffer_store_dwordx4 v[{t + 4}:{t + 7}], v{vL16}, {srd(S_WS)}, s{k1.sPS} offen{SC}', tag)
        r(f's_add_u32 s{k1.sPS}, s{k1.sPS}, {2048 * 1024}')
        r.vmem(f'buffer_store_dwordx4 v[{t + 8}:{t + 11}], v{t + 2}, {srd(S_WS)}, s{k1.sPS} offen{SC}', tag)
    stores = record(a, stf)
    return addr, reads, stores
```

```python
from common import *
import k1
from k1 import fl

KM_LDS = 163840
LCNT = 163824
RED = 0
OB = 131072
FA = FL
FB = FL + 4096
FH = FL + 8192
LOG2E = 1.4426950408889634
SPIN = 20000

sT0, sT1, sT2, sT3 = 52, 53, 54, 55
sH, sTQ, sSRC, sMD = 20, 21, 22, 23
sTILE, sCG, sOF, sOP = 24, 25, 26, 27
sHS, sWSRC, sWO, sSPIN = 8, 9, 10, 11
sVM = 94
sCT, sKH = sTT, sG

vL16 = 1
aK0, aK1, aV0, aV1 = 2, 3, 4, 5
vT = 6
RQ, RK, RV0, RV1, RP = 12, 16, 20, 24, 28
NEGM = 36
RS = (52, 68)
RO = 84
ACC = 100
RING = 164
vX, vB2, vXO = 228, 232, 236
vG, vS = 240, 248
OP = 52

OPT = dict(u0=28, D=11, fbsig=5, prio=None, b2=24, kvpre=8, nofb=False)


def spin(a, site, load, check_ok):
    ok = a.newlabel('ok')
    lp = a.newlabel('spin')
    check_ok(ok)
    a(f's_mov_b32 s{sSPIN}, {SPIN}')
    a.label(lp)
    a('s_sleep 1')
    load()
    a('s_waitcnt vmcnt(0)')
    check_ok(ok)
    a(f's_sub_u32 s{sSPIN}, s{sSPIN}, 1')
    a(f's_cmp_lg_u32 s{sSPIN}, 0')
    a(f's_cbranch_scc1 {lp}')
    a(f'v_mov_b32 v{vT}, {site}')
    a(f'buffer_store_dword v{vT}, off, {srd(S_DBG)}, 0 offset:{4 * site}')
    a.label(ok)


def one_lane_store(a, reg, srdn, soff, val=1):
    a('s_mov_b64 exec, 1')
    a(f'v_mov_b32 v{reg}, {val}')
    a(f'buffer_store_dword v{reg}, off, {srd(srdn)}, {soff} sc1')
    a('s_mov_b64 exec, -1')


def start_extra(a):
    lbl = a.newlabel('noinit')
    a(f'''
v_mov_b32 v20, 0
v_mov_b32 v21, 0
v_mov_b32 v22, 0
v_mov_b32 v23, 0
v_mov_b32 v24, {LCNT}
''')
    a.ds('ds_write_b32 v24, v20', 'w')
    a(f'''
s_or_b32 s{sT0}, s2, s{sW}
s_cmp_lg_u32 s{sT0}, 0
s_cbranch_scc1 {lbl}
v_lshrrev_b32 v1, 2, v0
v_lshlrev_b32 v1, 8, v1
v_and_b32 v2, 3, v0
v_lshlrev_b32 v2, 4, v2
v_add_u32 v1, v1, v2
s_mov_b32 s{sT0}, {FA}
s_mov_b32 s{sT1}, {FB}
s_mov_b32 s{sT2}, {FH}
buffer_store_dwordx4 v[20:23], v1, {srd(S_WS)}, s{sT0} offen sc1
buffer_store_dwordx4 v[20:23], v1, {srd(S_WS)}, s{sT1} offen sc1
buffer_store_dwordx4 v[20:23], v1, {srd(S_WS)}, s{sT2} offen sc1
''')
    a.label(lbl)


def prefetch(a):
    pf = OPT['pf']
    a(f'''
s_lshl_b32 s{sT0}, s2, 3
s_add_u32 s{sT0}, s{sT0}, s{sW}
v_lshlrev_b32 v48, 4, v0
''')
    if pf & 1:
        a(f's_mul_i32 s{sT1}, s{sT0}, 768')
        a.vmem(f'buffer_load_dwordx4 v[52:55], v48, {srd(S_WQ)}, s{sT1} offen', 'pf')
    if pf & 2:
        a(f's_mul_i32 s{sT1}, s{sT0}, 896')
        a.vmem(f'buffer_load_dwordx4 v[56:59], v48, {srd(S_W1)}, s{sT1} offen', 'pf')
    if pf & 4:
        a(f's_lshl_b32 s{sT1}, s{sT0}, 10')
        a.vmem(f'buffer_load_dwordx4 v[60:63], v48, {srd(S_X)}, s{sT1} offen', 'pf')
    if pf & 8:
        a(f's_mul_i32 s{sT1}, s{sT0}, 896')
        a.vmem(f'buffer_load_dwordx4 v[56:59], v48, {srd(S_W2)}, s{sT1} offen', 'pf')
        a(f's_lshl_b32 s{sT1}, s{sT0}, 8')
        a.vmem(f'buffer_load_dword v60, v48, {srd(S_WO)}, s{sT1} offen', 'pf')


def hook0(a, g):
    st(a, 'c0')
    if g != 0:
        return
    lbl = a.newlabel('noinit2')
    a(f'''
s_or_b32 s{sT0}, s2, s{sW}
s_cmp_lg_u32 s{sT0}, 0
s_cbranch_scc1 {lbl}
''')
    one_lane_store(a, 20, S_DBG, 0)
    a.label(lbl)


def hook8(a, g, poi=92, tag='st'):
    a(f'''
s_lshl_b32 s{sT0}, s{sXCD}, 2
s_lshr_b32 s{sCG}, s{sSLOT}, 3
s_add_u32 s{sH}, s{sT0}, s{sCG}
s_and_b32 s{sT1}, s{sSLOT}, 7
s_lshl_b32 s{sTQ}, s{sT1}, 3
s_add_u32 s{sTQ}, s{sTQ}, s{sW}
s_lshl_b32 s{sMD}, s{sW}, 10
s_lshl_b32 s{sSRC}, s{sH}, 17
s_add_u32 s{sSRC}, s{sSRC}, {KV}
s_add_u32 s{sSRC}, s{sSRC}, s{sMD}
s_lshl_b32 s{sOF}, s{sTQ}, 5
s_add_u32 s{sOF}, s{sOF}, s{sH}
s_lshl_b32 s{sOF}, s{sOF}, 10
s_add_u32 s{sOF}, s{sOF}, {OF}
s_lshl_b32 s{sT0}, s{sXCD}, 3
s_add_u32 s{sTILE}, s{sT0}, s{sT1}
s_lshl_b32 s{sOP}, s{sTILE}, 3
s_add_u32 s{sOP}, s{sOP}, s{sW}
s_lshl_b32 s{sOP}, s{sOP}, 12
s_add_u32 s{sOP}, s{sOP}, {OF}
s_mul_i32 s{sT0}, s{sW}, 14
s_mul_i32 s{sHS}, s{sTILE}, 112
s_add_u32 s{sHS}, s{sHS}, s{sT0}
s_lshl_b32 s{sHS}, s{sHS}, 10
s_add_u32 s{sHS}, s{sHS}, {HF}
s_lshl_b32 s{sWSRC}, s{sT0}, 4
s_lshl_b32 s{sT1}, s{sCG}, 2
s_add_u32 s{sWSRC}, s{sWSRC}, s{sT1}
s_lshl_b32 s{sWSRC}, s{sWSRC}, 10
s_add_u32 s{sWSRC}, s{sWSRC}, {WF}
s_lshl_b32 s{sWO}, s{sKH}, 4
s_add_u32 s{sWO}, s{sWO}, 112
s_lshl_b32 s{sWO}, s{sWO}, 4
s_add_u32 s{sWO}, s{sWO}, s{sT1}
s_add_u32 s{sWO}, s{sWO}, s{sCT}
s_lshl_b32 s{sWO}, s{sWO}, 10
s_add_u32 s{sWO}, s{sWO}, {WF}
v_mov_b32 v{poi}, -1
v_mov_b32 v{poi + 1}, -1
v_mov_b32 v{poi + 2}, -1
v_mov_b32 v{poi + 3}, -1
''')
    a.vmem(f'buffer_store_dwordx4 v[{poi}:{poi + 3}], v{vL16}, {srd(S_WS)}, s{sOF} offen sc1', tag)


def ini_load(a):
    return f'buffer_load_dword v92, off, {srd(S_DBG)}, 0 sc1'


def hook9(a, g):
    a.vmem(ini_load(a), 'ini')


def prebar11(a, g):
    a.wait_vm('ini')

    def chk(ok):
        a('v_cmp_eq_u32 vcc, 1, v92')
        a(f's_cbranch_vccnz {ok}')
    spin(a, 1, lambda: a(ini_load(a)), chk)


def hook11(a, g):
    if g == 0:
        lbl = a.newlabel('nofa')
        a(f'''
s_cmp_lg_u32 s{sW}, 0
s_cbranch_scc1 {lbl}
s_lshl_b32 s{sT0}, s{k1.sHP}, 8
s_lshl_b32 s{sT1}, s{k1.sTB}, 2
s_add_u32 s{sT0}, s{sT0}, s{sT1}
s_add_u32 s{sT0}, s{sT0}, {FA}
''')
        one_lane_store(a, 92, S_WS, f's{sT0}')
        a.label(lbl)
    k1.prep_finish(a)


def hook14(a, g):
    if g == 0:
        lbl = a.newlabel('nofw')
        a(f'''
s_cmp_lg_u32 s{sW}, 0
s_cbranch_scc1 {lbl}
s_lshr_b32 s{sT0}, s2, 4
s_lshl_b32 s{sT0}, s{sT0}, 8
s_and_b32 s{sT1}, s2, 15
s_lshl_b32 s{sT1}, s{sT1}, 2
s_add_u32 s{sT0}, s{sT0}, s{sT1}
s_add_u32 s{sT0}, s{sT0}, {FB}
''')
        one_lane_store(a, 92, S_WS, f's{sT0}')
        a.label(lbl)


def fa_load():
    return f'buffer_load_dword v93, v94, {srd(S_WS)}, s{sSPIN - 0 if False else sT1} offen sc1'


def fa_addr(a):
    a(f'''
s_lshr_b32 s{sT1}, s{sH}, 1
s_lshl_b32 s{sT1}, s{sT1}, 8
s_add_u32 s{sT1}, s{sT1}, {FA}
''')


def hook15(a, g):
    a('v_and_b32 v94, 15, v0')
    a('v_lshlrev_b32 v94, 2, v94')
    fa_addr(a)
    a.vmem(fa_load(), 'fa')


def fa_check(a):
    def chk(ok):
        a('v_cmp_ne_u32 vcc, 1, v93')
        a(f's_cbranch_vccz {ok}')

    def ld():
        fa_addr(a)
        a(fa_load())
    spin(a, 2, ld, chk)


def kv_dma(a, i):
    def f():
        a(f's_add_u32 m0, s{sMD}, {i * 8192}')
        a(f's_add_u32 s{sT2}, s{sSRC}, {i * 8192}')
        a.vmem(f'buffer_load_dwordx4 v{vL16}, {srd(S_WS)}, s{sT2} offen sc1 lds', f'kv{i}')
    return f


def q_load(a):
    def f():
        a(f'''
s_lshl_b32 s{sT2}, s{sH}, 6
s_add_u32 s{sT2}, s{sT2}, s{sTQ}
s_lshl_b32 s{sT2}, s{sT2}, 10
''')
        a.vmem(f'buffer_load_dwordx4 v[{RQ}:{RQ + 3}], v{vL16}, {srd(S_WS)}, s{sT2} offen sc1', 'q')
    return f


def k_read(a, t):
    ar, off = (aK0, t * 2048) if t < 32 else (aK1, (t - 32) * 2048)
    a.ds(f'ds_read_b128 v[{RK}:{RK + 3}], v{ar} offset:{off}', f'K{t}')


def v_reads(a, items):
    a(f's_mov_b64 exec, s[{sVM}:{sVM + 1}]')
    for part, t in items:
        ar, off = (aV0, t * 2048) if t < 32 else (aV1, (t - 32) * 2048)
        r = RV0 if part == 0 else RV1
        a.ds(f'ds_read_b128 v[{r}:{r + 3}], v{ar} offset:{off + part * 512}', f'V{part}_{t}')
    a('s_mov_b64 exec, -1')


def run(a, items):
    for it in items:
        emit(a, it)


def attn_step(a, t, nt, ev, mf, pre):
    S, Sn = RS[t % 2], RS[(t + 1) % 2]
    ex = [f'v_exp_f32 v{S + i}, v{S + i}' for i in range(16)]
    cv = [f'v_cvt_pk_bf16_f32 v{RP + i}, v{S + 2 * i}, v{S + 2 * i + 1}' for i in range(8)]
    run(a, pre.get(t, []))
    if t + 1 < nt:
        a.wait_lg(f'K{t + 1}')
        a(mfma32(Sn, RK, RQ, NEGM))
        if t + 2 < nt:
            k_read(a, t + 2)
    run(a, ev.get(2 * t, []))
    run(a, (ex[0], ex[1], ex[2], ex[3]))
    run(a, mf.get(2 * t, []))
    run(a, (cv[0], ex[4], ex[5], cv[1]))
    if t > 0:
        a.wait_lg(f'V1_{t - 1}')
        a(mfma32(RO, RV1, RP + 4, RO))
    run(a, (ex[6], ex[7], cv[2], ex[8], ex[9], cv[3], ex[10], ex[11]))
    a.wait_lg(f'V0_{t}')
    a(mfma32(RO, RV0, RP, '0' if t == 0 else RO))
    items = [(1, t)]
    if t + 1 < nt:
        items.append((0, t + 1))
    v_reads(a, items)
    run(a, ev.get(2 * t + 1, []))
    run(a, (cv[4], ex[12], ex[13], cv[5]))
    run(a, mf.get(2 * t + 1, []))
    run(a, (ex[14], ex[15], cv[6], cv[7]))


def row_max(a, S, dst, tmp):
    a(f'v_max3_f32 v{dst}, v{S}, v{S + 1}, v{S + 2}')
    a(f'v_max3_f32 v{tmp}, v{S + 3}, v{S + 4}, v{S + 5}')
    a(f'v_max3_f32 v{dst}, v{dst}, v{S + 6}, v{S + 7}')
    a(f'v_max3_f32 v{tmp}, v{tmp}, v{S + 8}, v{S + 9}')
    a(f'v_max3_f32 v{dst}, v{dst}, v{S + 10}, v{S + 11}')
    a(f'v_max3_f32 v{tmp}, v{tmp}, v{S + 12}, v{S + 13}')
    a(f'v_max3_f32 v{dst}, v{dst}, v{S + 14}, v{S + 15}')
    a(f'v_max_f32 v{dst}, v{dst}, v{tmp}')
    a(f'v_mov_b32 v{tmp}, v{dst}')
    a(f'v_permlane32_swap_b32 v{dst}, v{tmp}')
    a(f'v_max_f32 v{dst}, v{dst}, v{tmp}')


def fallback(a, done_label):
    a.comment('--- fallback: online softmax with the running true maximum')
    loop = a.newlabel('fb_loop')
    S = RS[0]
    vm, vmn, val, va, vb = vT, vT + 1, vT + 2, vT + 3, vT + 4
    a(f'v_mov_b32 v{vm}, 0xff800000')
    for i in range(16):
        a(f'v_mov_b32 v{RO + i}, 0')
    a(f'v_mov_b32 v{va}, v{aK0}')
    a(f'v_mov_b32 v{vb}, v{aV0}')
    a(f's_mov_b32 s{sT0}, 64')
    a.label(loop)
    a(f'ds_read_b128 v[{RK}:{RK + 3}], v{va}')
    a(f's_mov_b64 exec, s[{sVM}:{sVM + 1}]')
    a(f'ds_read_b128 v[{RV0}:{RV0 + 3}], v{vb}')
    a(f'ds_read_b128 v[{RV1}:{RV1 + 3}], v{vb} offset:512')
    a('s_mov_b64 exec, -1')
    a('s_waitcnt lgkmcnt(0)')
    a(mfma32(S, RK, RQ, '0'))
    a(f'v_add_u32 v{va}, 0x800, v{va}')
    a(f'v_add_u32 v{vb}, 0x800, v{vb}')
    row_max(a, S, vmn, val)
    a(f'v_max_f32 v{vmn}, v{vmn}, v{vm}')
    a(f'v_sub_f32 v{val}, v{vm}, v{vmn}')
    a(f'v_exp_f32 v{val}, v{val}')
    a(f'v_mov_b32 v{vm}, v{vmn}')
    for i in range(16):
        a(f'v_sub_f32 v{S + i}, v{S + i}, v{vmn}')
    for i in range(16):
        a(f'v_exp_f32 v{S + i}, v{S + i}')
    for i in range(16):
        a(f'v_mul_f32 v{RO + i}, v{val}, v{RO + i}')
    for i in range(8):
        a(f'v_cvt_pk_bf16_f32 v{RP + i}, v{S + 2 * i}, v{S + 2 * i + 1}')
    a(mfma32(RO, RV0, RP, RO))
    a(mfma32(RO, RV1, RP + 4, RO))
    a(f's_sub_u32 s{sT0}, s{sT0}, 1')
    a(f's_cmp_lg_u32 s{sT0}, 0')
    a(f's_cbranch_scc1 {loop}')
    a(f's_branch {done_label}')


def slot(i):
    return RING + 4 * (i % 16)


def stream_load(a, i):
    def f():
        if OPT.get('xnl') and i < 70:
            return
        if i < 70:
            s, j = divmod(i, 5)
            if j == 0:
                a(f's_add_u32 s{sT2}, s{sHS}, {s * 1024}')
                a.vmem(f'buffer_load_dwordx4 v[{slot(i)}:{slot(i) + 3}], v{vL16}, {srd(S_WS)}, s{sT2} offen sc1', f'f{i}')
            else:
                if j == 1:
                    a(f's_add_u32 s{sT3}, s{sWSRC}, {s * 16384}')
                a.vmem(f'buffer_load_dwordx4 v[{slot(i)}:{slot(i) + 3}], v{vL16}, {srd(S_WS)}, s{sT3} offen '
                       f'offset:{(j - 1) * 1024} sc1', f'f{i}')
        else:
            k = i - 70
            a(f's_add_u32 s{sT2}, s{sWO}, {k * 16384}')
            a.vmem(f'buffer_load_dwordx4 v[{slot(i)}:{slot(i) + 3}], v{vL16}, {srd(S_WS)}, s{sT2} offen sc1', 'wo')
    return f


def stream_mfma(a, s, j):
    def f():
        iw, ih = 5 * s + 1 + j, 5 * s
        if not OPT.get('xnw'):
            a.wait_vm(f'f{iw}')
        else:
            a.vm = [t for t in a.vm if t != f'f{iw}' and t != f'f{ih}']
        if OPT.get('xnm'):
            return
        a(mfma32(ACC + 16 * j, slot(iw), slot(ih), '0' if s == 0 else None))
    return f


def side_loads(a):
    a(f'''
s_lshl_b32 s{sT0}, s{sCG}, 8
s_lshl_b32 s{sT1}, s{sCT}, 6
s_add_u32 s{sT0}, s{sT0}, s{sT1}
s_lshl_b32 s{sT1}, s{sKH}, 5
s_add_u32 s{sT0}, s{sT0}, s{sT1}
v_lshrrev_b32 v{vT}, 5, v0
v_lshlrev_b32 v{vT}, 3, v{vT}
v_add_u32 v{vT}, s{sT0}, v{vT}
v_and_b32 v{vT + 1}, 31, v0
v_lshlrev_b32 v{vT + 1}, 10, v{vT + 1}
s_lshl_b32 s{sT1}, s{sTILE}, 15
v_add3_u32 v{vT + 1}, v{vT + 1}, v{vT}, s{sT1}
''')
    a.vmem(f'buffer_load_dwordx2 v[{vB2}:{vB2 + 1}], v{vT}, {srd(S_B2)}, 0 offen', 'side')
    a.vmem(f'buffer_load_dwordx2 v[{vB2 + 2}:{vB2 + 3}], v{vT}, {srd(S_B2)}, 0 offen offset:16', 'side')
    a.vmem(f'buffer_load_dwordx2 v[{vX}:{vX + 1}], v{vT + 1}, {srd(S_X)}, 0 offen', 'side')
    a.vmem(f'buffer_load_dwordx2 v[{vX + 2}:{vX + 3}], v{vT + 1}, {srd(S_X)}, 0 offen offset:16', 'side')
    a(f'''
v_lshrrev_b32 v{vT + 2}, 5, v0
v_lshlrev_b32 v{vT + 2}, 4, v{vT + 2}
v_and_b32 v{vXO}, 31, v0
v_lshlrev_b32 v{vXO}, 10, v{vXO}
s_add_u32 s{sT0}, s{sT0}, s{sT1}
v_add3_u32 v{vXO}, v{vXO}, v{vT + 2}, s{sT0}
''')
    if OPT.get('otouch'):
        a.vmem(f'buffer_load_dword v{vXO + 1}, v{vXO}, {srd(S_OUT)}, 0 offen', 'side')


def fb_signal_1(a):
    a.wait_vm('hb')
    a(f'''
v_mov_b32 v{vT}, {LCNT}
v_mov_b32 v{vT + 1}, 1
s_mov_b64 exec, 1
''')
    a.ds(f'ds_add_rtn_u32 v{vT + 1}, v{vT}, v{vT + 1}', 'cnt')
    a('s_mov_b64 exec, -1')


def fb_signal_2(a):
    lbl = a.newlabel('nofb')
    a.wait_lg('cnt')
    a(f'''
v_readfirstlane_b32 s{sT0}, v{vT + 1}
s_cmp_lg_u32 s{sT0}, 7
s_cbranch_scc1 {lbl}
s_lshl_b32 s{sT0}, s{k1.sTB}, 8
s_lshl_b32 s{sT1}, s{k1.sHP}, 2
s_add_u32 s{sT0}, s{sT0}, s{sT1}
s_add_u32 s{sT0}, s{sT0}, {FH}
''')
    one_lane_store(a, vT + 1, S_WS, f's{sT0}')
    a.label(lbl)


def fb_load(a):
    return [f'buffer_load_dwordx4 v[8:11], v{vT}, {srd(S_WS)}, s{sT1} offen sc1',
            f'buffer_load_dword v{vX}, v{vT + 1}, {srd(S_WS)}, s{sT0} offen sc1']


def fb_addr(a):
    a(f'''
s_mov_b32 s{sT1}, {FB}
s_lshr_b32 s{sT0}, s{sTILE}, 2
s_lshl_b32 s{sT0}, s{sT0}, 8
s_add_u32 s{sT0}, s{sT0}, {FH}
''')


def fb_poll(a):
    a(f'''
v_lshrrev_b32 v{vT}, 2, v0
v_lshlrev_b32 v{vT}, 8, v{vT}
v_and_b32 v{vT + 1}, 3, v0
v_lshlrev_b32 v{vT + 1}, 4, v{vT + 1}
v_add_u32 v{vT}, v{vT}, v{vT + 1}
v_and_b32 v{vT + 1}, 15, v0
v_lshlrev_b32 v{vT + 1}, 2, v{vT + 1}
''')
    fb_addr(a)
    for x in fb_load(a):
        a.vmem(x, 'fb')


def fb_check(a):
    a.wait_vm('fb')

    def chk(ok):
        a('v_and_b32 v8, v8, v9')
        a('v_and_b32 v10, v10, v11')
        a('v_and_b32 v8, v8, v10')
        a(f'v_and_b32 v8, v8, v{vX}')
        a('v_cmp_ne_u32 vcc, 1, v8')
        a(f's_cbranch_vccz {ok}')

    def ld():
        fb_addr(a)
        for x in fb_load(a):
            a(x)
    spin(a, 3, ld, chk)


def o_loads(a, tracked):
    for i in range(4):
        t = f'buffer_load_dwordx4 v[{OP + 4 * i}:{OP + 4 * i + 3}], v{vL16}, {srd(S_WS)}, s{sOP} offen offset:{1024 * i} sc1'
        if tracked:
            a.vmem(t, 'op')
        else:
            a(t)


def o_check(a):
    a.wait_vm('op')

    def chk(ok):
        for i in range(4):
            r = OP + 4 * i
            a(f'v_max3_u32 v{vT + i}, v{r}, v{r + 1}, v{r + 2}')
            a(f'v_max_u32 v{vT + i}, v{vT + i}, v{r + 3}')
        a(f'v_max3_u32 v{vT}, v{vT}, v{vT + 1}, v{vT + 2}')
        a(f'v_max_u32 v{vT}, v{vT}, v{vT + 3}')
        a(f'v_cmp_eq_u32 vcc, -1, v{vT}')
        a(f's_cbranch_vccz {ok}')
    spin(a, 4, lambda: o_loads(a, False), chk)


def reduce_write(a):
    a(f's_lshl_b32 s{sT0}, s{sW}, 14')
    a(f'v_add_u32 v{vT}, s{sT0}, v{vL16}')
    for k in range(16):
        a.ds(f'ds_write_b128 v{vT}, v[{ACC + 4 * k}:{ACC + 4 * k + 3}] offset:{k * 1024}', 'rw')


PART = [0, 16384, 131072, 147456, 32768, 49152, 65536, 81920]


def reduce_write2(a, g):
    if g == 0:
        a(f's_lshl_b32 s{sT0}, s{sW}, 14')
        a(f's_cmp_ge_u32 s{sW}, 2')
        a(f's_cselect_b32 s{sT1}, {131072 - 32768}, 0')
        a(f's_add_u32 s{sT0}, s{sT0}, s{sT1}')
    else:
        a(f's_lshl_b32 s{sT0}, s{sW}, 14')
        a(f's_sub_u32 s{sT0}, s{sT0}, {65536 - 32768}')
    a(f'v_add_u32 v{vT}, s{sT0}, v{vL16}')
    for k in range(16):
        a.ds(f'ds_write_b128 v{vT}, v[{ACC + 4 * k}:{ACC + 4 * k + 3}] offset:{k * 1024}', 'rw')


def reduce_read_gate(a):
    early = OPT.get('erw') == 2
    a(f'''
s_lshl_b32 s{sT0}, s{sCT}, 12
s_lshl_b32 s{sT1}, s{sKH}, 11
s_add_u32 s{sT0}, s{sT0}, s{sT1}
v_add_u32 v{vT}, s{sT0}, v{vL16}
v_add_u32 v{vT + 1}, 0x10000, v{vT}
''')
    if early:
        a(f'v_add_u32 v{vT + 2}, 0x20000, v{vT}')
    t = ACC
    for w in range(8):
        for e in range(2):
            if early:
                p = PART[w]
                ar, off = vT + p // 65536, p % 65536 + e * 1024
            else:
                ar, off = (vT if w < 4 else vT + 1), (w % 4) * 16384 + e * 1024
            d = t + 8 * w + 4 * e
            a.ds(f'ds_read_b128 v[{d}:{d + 3}], v{ar} offset:{off}', f'r{w}')
    a.wait_vm('side')
    for e in range(2):
        for h in range(2):
            a(f'v_lshlrev_b32 v{vG + 4 * e + 2 * h}, 16, v{vB2 + 2 * e + h}')
            a(f'v_and_b32 v{vG + 4 * e + 2 * h + 1}, 0xffff0000, v{vB2 + 2 * e + h}')
    for w in range(8):
        a.wait_lg(f'r{w}')
        for k in range(8):
            a(f'v_add_f32 v{vG + k}, v{vG + k}, v{t + 8 * w + k}')
    for k in range(8):
        a(f'v_mul_f32 v{t + k}, {fl(-LOG2E)}, v{vG + k}')
    for k in range(8):
        a(f'v_exp_f32 v{t + k}, v{t + k}')
    for k in range(8):
        a(f'v_add_f32 v{t + k}, 1.0, v{t + k}')
    for k in range(8):
        a(f'v_rcp_f32 v{t + k}, v{t + k}')
    for k in range(8):
        a(f'v_mul_f32 v{vG + k}, v{vG + k}, v{t + k}')


def ob_base():
    return 98304 if OPT.get('erw') == 2 else OB


def ob_write(a):
    a(f's_lshl_b32 s{sT0}, s{sW}, 12')
    a(f's_add_u32 s{sT0}, s{sT0}, {ob_base()}')
    a(f'v_add_u32 v{vT}, s{sT0}, v{vL16}')
    for i in range(4):
        a.ds(f'ds_write_b128 v{vT}, v[{OP + 4 * i}:{OP + 4 * i + 3}] offset:{i * 1024}', 'ow')


def wo_gemm(a):
    a(f's_lshl_b32 s{sT0}, s{sKH}, 14')
    a(f's_add_u32 s{sT0}, s{sT0}, {ob_base()}')
    a(f'v_add_u32 v{vT}, s{sT0}, v{vL16}')
    bb = ACC
    for i in range(16):
        a.ds(f'ds_read_b128 v[{bb + 4 * i}:{bb + 4 * i + 3}], v{vT} offset:{i * 1024}', f'o{i}')
    a.wait_vm('wo')
    for i in range(16):
        a.wait_lg(f'o{i}')
        a(mfma32(RO, slot(70 + i), bb + 4 * i, '0' if i == 0 else None))


def exchange(a, label):
    k1l = label + '_kh1'
    j = label + '_khj'
    a(f'''
s_lshl_b32 s{sT0}, s{sW}, 11
v_add_u32 v{vT}, s{sT0}, v{vL16}
s_xor_b32 s{sT0}, s{sW}, 4
s_lshl_b32 s{sT0}, s{sT0}, 11
v_add_u32 v{vT + 1}, s{sT0}, v{vL16}
s_cmp_eq_u32 s{sKH}, 1
s_cbranch_scc1 {k1l}
''')
    for kh in (0, 1):
        if kh == 1:
            a.label(k1l)
        send = RO + (8 if kh == 0 else 0)
        keep = RO + (0 if kh == 0 else 8)
        a(f'ds_write_b128 v{vT}, v[{send}:{send + 3}]')
        a(f'ds_write_b128 v{vT}, v[{send + 4}:{send + 7}] offset:1024')
        for k in range(8):
            a(f'v_mov_b32 v{vS + k}, v{keep + k}')
        if kh == 0:
            a(f's_branch {j}')
    a.label(j)
    a('s_waitcnt lgkmcnt(0)')
    a('s_barrier')
    t = ACC
    a(f'ds_read_b128 v[{t}:{t + 3}], v{vT + 1}')
    a(f'ds_read_b128 v[{t + 4}:{t + 7}], v{vT + 1} offset:1024')
    return t


def final(a, t):
    u = ACC + 32
    for k in range(4):
        a(f'v_lshlrev_b32 v{u + 2 * k}, 16, v{vX + k}')
        a(f'v_and_b32 v{u + 2 * k + 1}, 0xffff0000, v{vX + k}')
    a('s_waitcnt lgkmcnt(0)')
    for k in range(8):
        a(f'v_add_f32 v{vS + k}, v{vS + k}, v{t + k}')
    for k in range(8):
        a(f'v_fma_f32 v{vS + k}, v{vS + k}, v{vG + k}, v{u + k}')
    for k in range(4):
        a(f'v_cvt_pk_bf16_f32 v{vS + k}, v{vS + 2 * k}, v{vS + 2 * k + 1}')
    a(f'v_permlane32_swap_b32 v{vS}, v{vS + 2}')
    a(f'v_permlane32_swap_b32 v{vS + 1}, v{vS + 3}')
    a.vmem(f'buffer_store_dwordx4 v[{vS}:{vS + 3}], v{vXO}, {srd(S_OUT)}, 0 offen', 'st')


def prio_plan(g):
    p = OPT.get('pr', 0)
    if p == 0:
        return lambda t: None
    if g == 1:
        return lambda t: 1 if t == 0 else None
    pat = {1: [2, 2, 2, 0], 2: [2, 2, 0], 3: [2, 0], 4: [2, 2, 2, 2, 0], 5: [2, 2, 2, 2, 2, 0, 0], 6: [0],
           7: [2, 2, 2, 0, 0]}[p]
    return lambda t: pat[t % len(pat)] if (t == 0 or pat[t % len(pat)] != pat[(t - 1) % len(pat)]) else None


def attention(a, g):
    pre_n = OPT['kvpre']
    a(f'''
v_mov_b32 v{aK0}, v{vL16}
v_add_u32 v{aK1}, 0x10000, v{vL16}
v_and_b32 v{vT}, 15, v0
v_lshrrev_b32 v{vT + 1}, 5, v0
v_lshlrev_b32 v{vT + 1}, 4, v{vT + 1}
v_add_u32 v{vT}, v{vT}, v{vT + 1}
v_lshlrev_b32 v{vT}, 4, v{vT}
v_add_u32 v{aV0}, 0x400, v{vT}
v_add_u32 v{aV1}, 0x10400, v{vT}
s_mov_b32 s{sVM}, 0xffff
s_mov_b32 s{sVM + 1}, 0xffff
''')
    if OPT.get('ones2', 1):
        a(f'v_and_b32 v{vT}, 27, v0')
        a(f'v_cmp_eq_u32 vcc, 16, v{vT}')
        a(f'v_mov_b32 v{vT}, 0x3f803f80')
        for i in range(4):
            a(f'v_cndmask_b32 v{RV0 + i}, 0, v{vT}, vcc')
            a(f'v_cndmask_b32 v{RV1 + i}, 0, v{vT}, vcc')
    else:
        for i in range(4):
            a(f'v_mov_b32 v{RV0 + i}, 0x3f803f80')
            a(f'v_mov_b32 v{RV1 + i}, 0x3f803f80')
    b1 = OPT.get('b1', pre_n)
    if OPT.get('nob1'):
        a.wait_vm('q')
    else:
        a.wait_vm(['q'] + [f'kv{i}' for i in range(b1)])
        a('s_barrier')
    st(a, 'b1')
    ev, mf, pre = {}, {}, {}
    add = lambda d, k, x: d.setdefault(k, []).append(x)
    k_read(a, 0)
    v_reads(a, [(0, 0)])
    a.wait_lg('K0')
    a(mfma32(RS[0], RK, RQ, '0'))
    row_max(a, RS[0], vT, vT + 1)
    for i in range(16):
        a(f'v_sub_f32 v{NEGM + i}, 0, v{vT}')
    a(mfma32(RS[0], RK, RQ, NEGM))
    k_read(a, 1)
    for i in range(pre_n, 16):
        add(ev, 2 * (i - pre_n), kv_dma(a, i))
    if b1 < pre_n and OPT['b2'] > 4 * b1 - 2:
        tb = 4 * b1 - 2
        add(pre, tb, lambda: (a.wait_vm([f'kv{i}' for i in range(pre_n)]), a('s_barrier')))
    tb2 = OPT['b2']
    assert tb2 <= 4 * pre_n - 2 and tb2 >= 2 * (15 - pre_n) + 1
    add(pre, tb2, lambda: (a.wait_vm([f'kv{i}' for i in range(16)]), a('s_barrier')))
    fs = OPT['fbsig']
    add(pre, fs, lambda: fb_signal_1(a))
    add(pre, fs + 1, lambda: fb_signal_2(a))
    u0, D = OPT['u0'], OPT['D']
    add(ev, u0 - 5, lambda: fb_poll(a))
    add(pre, u0 // 2, lambda: fb_check(a))
    for i in range(86):
        add(ev, u0 + i, stream_load(a, i))
    for s in range(14):
        for j in range(4):
            add(mf, u0 + 5 * s + 1 + j + D, stream_mfma(a, s, j))
    add(ev, u0 + 87, lambda: side_loads(a))
    assert u0 + 87 < 128
    pp = prio_plan(g)
    for t in range(64):
        if pp(t) is not None:
            pre.setdefault(t, []).insert(0, f's_setprio {pp(t)}')
    for t in range(64):
        attn_step(a, t, 64, ev, mf, pre)
        st(a, f'a{t}')
    if OPT.get('pr', 0):
        a('s_setprio 0')


vINI, vFAA, vFAD = 6, 22, 23
vPOI = 24


def nb_hook6(a, g):
    a.vmem(f'buffer_load_dword v{vINI}, off, {srd(S_DBG)}, 0 sc1', 'ini')


def nb_ini_check(a, g):
    a.wait_vm('ini')

    def chk(ok):
        a(f'v_cmp_eq_u32 vcc, 1, v{vINI}')
        a(f's_cbranch_vccnz {ok}')
    spin(a, 1, lambda: a(f'buffer_load_dword v{vINI}, off, {srd(S_DBG)}, 0 sc1'), chk)


def flag_ops(addr):
    return [x.strip() for x in addr.strip().split('\n')] + [
        f's_cmp_eq_u32 s{sW}, 0',
        's_cselect_b64 exec, 1, 0',
        f'v_mov_b32 v{vINI}, 1',
        f'buffer_store_dword v{vINI}, off, {srd(S_WS)}, s{sT0} sc1',
        's_mov_b64 exec, -1']


def fa_signal_ops():
    return [flag_ops(f'''
s_lshl_b32 s{sT0}, s{k1.sHP}, 8
s_lshl_b32 s{sT1}, s{k1.sTB}, 2
s_add_u32 s{sT0}, s{sT0}, s{sT1}
s_add_u32 s{sT0}, s{sT0}, {FA}
''')][0]


def fw_signal_ops():
    return flag_ops(f'''
s_lshr_b32 s{sT0}, s2, 4
s_lshl_b32 s{sT0}, s{sT0}, 8
s_and_b32 s{sT1}, s2, 15
s_lshl_b32 s{sT1}, s{sT1}, 2
s_add_u32 s{sT0}, s{sT0}, s{sT1}
s_add_u32 s{sT0}, s{sT0}, {FB}
''')


def nb_prebar_st(a, g):
    a.wait_vm('st')


def nb_prebar14(a, g):
    a.wait_vm(['pst', 'poi'])


def nb_fa_load():
    return f'buffer_load_dword v{vFAD}, v{vFAA}, {srd(S_WS)}, s{sT1} offen sc1'


def nb_hook15(a, g):
    a(f'v_and_b32 v{vFAA}, 15, v0')
    a(f'v_lshlrev_b32 v{vFAA}, 2, v{vFAA}')
    fa_addr(a)
    a.vmem(nb_fa_load(), 'fa')


def nb_fa_check(a):
    def chk(ok):
        a(f'v_cmp_ne_u32 vcc, 1, v{vFAD}')
        a(f's_cbranch_vccz {ok}')

    def ld():
        fa_addr(a)
        a(nb_fa_load())
    spin(a, 2, ld, chk)


def k1_new(a, g):
    import k1b
    k1b.OPT = OPT
    fas = OPT.get('fas', 12)
    k1b.HOOKS = {0: hook0, 6: nb_hook6}
    k1b.PREBAR = {fas: nb_prebar_st, 14: nb_prebar14}
    pre_n = OPT['kvpre']
    k1b.rot_setup(a)
    for d in k1b.dma_ops(a, 0, g):
        d()
    st(a, 'iss0')
    k1b.setup2(a)
    st(a, 'su2')
    i1, dep, ramp = OPT.get('i1', 3), OPT.get('dep', 3), OPT.get('ramp', 1)
    for n in range(1, i1):
        for d in k1b.dma_ops(a, n, g):
            d()
    nxt = i1
    for n in range(8):
        k1b.SCHED[n] = []
        while nxt <= n + dep and (len(k1b.SCHED[n]) < ramp or nxt <= n + 1):
            k1b.SCHED[n].append(nxt)
            nxt += 1
    late = list(range(nxt, 15))
    st(a, 'iss')
    pfpos = OPT.get('pfpos', 2)
    for n in range(8):
        k1b.p1_stage(a, n, g)
        if OPT.get('pf') and pfpos == n + 2:
            prefetch(a)
        st(a, f'p1_{n}')
    ne1 = OPT.get('ne1', 2)
    e1m = OPT.get('e1m', 0)
    d_e1 = [d for c in late[:ne1] for d in k1b.dma_ops(a, c, g)]
    if not e1m:
        k1b.e1a(a, g, d_e1, nb_ini_check)
        st(a, 'e1')
    late = late[ne1:]
    fill = {n: [[] for _ in range(8)] for n in range(8, 17)}
    e1b = k1b.e1b_ops(a, g)
    n8 = OPT.get('n8', 2)
    d13 = [d for c in late[:n8] for d in k1b.dma_ops(a, c, g)]
    late = late[n8:]
    w8 = OPT.get('w8', 2)
    slots = [(8, i) for i in range(4) for _ in range(w8)] + [(8, i) for i in range(4, 8)] + [(9, i) for i in range(8)]
    if e1m:
        slots = [(8, 0)] * OPT.get('wm', 3) + [(9, i) for i in range(8)] + [(10, i) for i in range(OPT.get('n10', 4))]
    if g == 1:
        slots = slots[:len(slots) - OPT.get('e1short', 4)]
    parts = k1b.split_even(e1b, len(slots))
    for i in range(len(d13)):
        fill[8][i].append(d13[i])
    for k, c in enumerate(late):
        dd = k1b.dma_ops(a, c, g)
        sk = 9 + k * OPT.get('lstep', 1) + OPT.get('l0', 0)
        if OPT.get('lmap'):
            sk = 9 + int(str(OPT['lmap'])[1 + k])
        assert sk <= c - 1
        fill[sk][OPT.get('lg0', 1)].insert(0, dd[0])
        fill[sk][OPT.get('lg1', 5)].insert(0, dd[1])
    for (n, i), p in zip(slots, parts):
        fill[n][i] += p
    d15 = k1b.dma_ops(a, 15, g)
    s15 = OPT.get('d15s', 10)
    fill[s15][OPT.get('dg0', 1)].append(d15[0])
    fill[s15][OPT.get('dg1', 5)].append(d15[1])
    if OPT.get('prs'):
        fill[OPT['prs']][OPT.get('prg', 7)].append(lambda: k1b.prep_issue(a))
    ids = record(a, lambda r: hook8(r, g, vPOI, 'poi'))
    for i, p in enumerate(k1b.split_even(ids, 8)):
        fill[10][i] += p
    addr, reads, stores = k1b.prep_finish_ops(a, 'pst')
    for i, p in enumerate(k1b.split_even(addr, 3)):
        fill[11][i] += p
    fill[11][3] += reads
    fill[11][6] += stores
    if g == 0:
        fill[fas][0] = fa_signal_ops() + fill[fas][0]
        fill[14][0] = fw_signal_ops() + fill[14][0]
    ekv = OPT.get('ekv', 0)
    nek = OPT.get('nek', 6) if ekv else 0
    if not ekv:
        fill[15][0] = record(a, lambda r: nb_hook15(r, g)) + fill[15][0]
    else:
        pg, cg = {1: (0, 8), 2: (4, 12), 3: (2, 10), 4: (0, 10), 5: (0, 12), 6: (4, 14), 7: (-4, 4), 8: (-2, 6),
                  9: (-6, 2)}[ekv]
        at = lambda x: fill[14 + x // 8][x % 8]
        ekv_poll = record(a, lambda r: nb_hook15(r, g))
        ekv_at = (pg, cg)
    fill[11][7] += k1b.cs_write_ops(a, [(k1.vCSA, (3 + 2 * g) * 512)])
    prep = k1b.gelu_prep(a, g, 0) + k1b.gelu_consts()
    first, per = k1b.gelu_tile_ops(a, k1.AC_A, 'ga')
    pp = k1b.split_even(prep + first, 4)
    for i in range(4):
        fill[12][i] += pp[i]
    gl = [o for q in per for o in q]
    gs = OPT.get('gstart', 5)
    slots = [(12, i) for i in range(gs, 8)] + [(n, i) for n in (13, 14, 15) for i in range(8)] + \
            [(16, i) for i in range(OPT.get('gend', 2))]
    for (n, i), p in zip(slots, k1b.split_even(gl, len(slots))):
        fill[n][i] += p
    if ekv:
        pg, cg = ekv_at
        at(pg)[:0] = ekv_poll
        at(cg)[:0] = [lambda: (a.wait_vm('fa'), nb_fa_check(a))]
        assert nek <= 6
        for i in range(nek):
            at(min(cg + 1 + i * OPT.get('eks', 1), 19)).append(kv_dma(a, i))
        if OPT.get('ekq'):
            fill[16][3].append(q_load(a))
    for n in range(8, 16):
        if n == 8 and e1m:
            assert not d13 and not any(fill[8][1:])
            k1b.e1m(a, g, d_e1, nb_ini_check, fill[8][0])
        else:
            k1b.p2_stage(a, n, g, fill[n])
        st(a, f'p2_{n}')
    k1b.p2_b_phase(a, 15, [[], [], [], []], fill[16][:4])
    k1.run_gaps(a, [k1b.cs_write_ops(a, [(k1.vCSB, (3 + 2 * g + 1) * 512)])])
    a.wait_lg()
    if not ekv:
        a.wait_vm('fa')
    if OPT.get('nob1'):
        assert ekv and OPT['nob1'] <= nek and OPT['b1'] == OPT['nob1']
        a.wait_vm([f'kv{i}' for i in range(OPT['nob1'])])
    a('s_barrier')
    if not ekv:
        nb_fa_check(a)
    st(a, 'tail')
    extras = ([] if (ekv and OPT.get('ekq')) else [q_load(a)]) + [kv_dma(a, i) for i in range(nek, pre_n)]
    if g == 1:
        skip = a.newlabel('skipb')
        a(f's_cmp_eq_u32 s{k1.sPB}, 0')
        a(f's_cbranch_scc1 {skip}')
        snap = a.snapshot()
    prep = k1b.gelu_prep(a, g, 1)
    first, per = k1b.gelu_tile_ops(a, k1.AC_B, 'gb')
    ex = list(extras)
    pop = lambda: ex.pop(0) if ex else (lambda: None)
    k1.run_gaps(a, [prep[:4], pop(), prep[4:6], pop(), prep[6:], first, pop()])
    gl = [o for q in per for o in q]
    nx = len(ex)
    span = (len(gl) * OPT.get('xspan', 60)) // 100
    done = 0
    for i, op in enumerate(gl):
        while done < nx and done * span <= i * nx:
            ex[done]()
            done += 1
        emit(a, op)
    while done < nx:
        ex[done]()
        done += 1
    k1b.h_store(a, g, 0, 'ha')
    k1b.h_store(a, g, 1, 'hb')
    if g == 1:
        jn = a.newlabel('joinb')
        a(f's_branch {jn}')
        endsnap = a.snapshot()
        a.label(skip)
        a.restore(snap)
        for x in extras:
            x()
        k1b.h_store(a, g, 0, 'ha')
        a.vmem(f'buffer_load_dword v10, v{vL16}, {srd(S_WS)}, s{sSRC} offen', 'hb')
        a.vmem(f'buffer_load_dword v11, v{vL16}, {srd(S_WS)}, s{sSRC} offen', 'hb')
        assert a.snapshot()[0] == endsnap[0], (a.snapshot(), endsnap)
        a.label(jn)
        a.restore(endsnap)
    a.wait_lg()
    st(a, 'gelu')

STAMPS = {}


def st(a, name):
    if name in STAMPS:
        stamp(a, STAMPS[name])


def gen_km(label, force_fallback=False):
    k1.SC = ' sc1'
    k1.HOOKS = {0: hook0, 8: hook8, 9: hook9, 11: hook11, 14: hook14, 15: hook15}
    k1.PREBAR = {11: prebar11}
    a = Asm()
    end = label + '_end'
    att = label + '_att'
    if OPT.get('st0'):
        a('s_memrealtime s[98:99]')
        a('s_memtime s[100:101]')
    prologue(a, end, None)
    build_srds(a, ['x', 'wq', 'w1', 'ws', 'w2', 'wo', 'b1', 'b2', 'out', 'dbg'])
    if not OPT.get('st0'):
        stamp(a, 0, 0)
    else:
        a('s_mov_b32 s68, s98')
        a('s_mov_b32 s69, s99')
        a('s_mov_b32 s88, s100')
        a('s_mov_b32 s89, s101')
    st(a, 'ka')
    start_extra(a)
    k1.setup(a)
    st(a, 'su1')
    g1 = label + '_g1'
    a(f's_cmp_eq_u32 s{sG}, 1')
    a(f's_cbranch_scc1 {g1}')
    snap0 = a.snapshot()
    joinsnap = None
    pre_n = OPT['kvpre']
    for g in (0, 1):
        if g == 1:
            a.label(g1)
            a.restore(snap0)
        if OPT.get('nb'):
            k1_new(a, g)
        else:
            i0, i1, pfpos = OPT.get('i0', 5), OPT.get('i1', 5), OPT.get('pfpos', 0)
            k1.INIT = i1
            for n in range(i0):
                for d in k1.dma_ops(a, n, g):
                    d()
            st(a, 'iss0')
            if OPT.get('pf') and pfpos == 0:
                prefetch(a)
            k1.setup2(a)
            st(a, 'su2')
            for n in range(i0, i1):
                for d in k1.dma_ops(a, n, g):
                    d()
            if OPT.get('pf') and pfpos == 1:
                prefetch(a)
            st(a, 'iss')
            for n in range(8):
                k1.p1_stage(a, n, g)
                if OPT.get('pf') and pfpos == n + 2:
                    prefetch(a)
                st(a, f'p1_{n}')
            k1.p1_epilogue(a, g)
            st(a, 'e1')
            if OPT.get('xdrain'):
                a('s_waitcnt vmcnt(0)')
                st(a, 'e1d')
            for n in range(8, 16):
                k1.p2_stage(a, n, g)
                st(a, f'p2_{n}')
            k1.p2_b_phase(a, 15, [[], [], [], []], [])
            k1.write_cs_partials(a, [(k1.vCSB, (3 + 2 * g + 1) * 512)])
            a.wait_all()
            a('s_barrier')
            fa_check(a)
            st(a, 'tail')
            k1.gelu_simple(a, g, 0, [q_load(a)] + [kv_dma(a, i) for i in range(pre_n)], 'ha')
            if g == 1:
                skip = a.newlabel('skipb')
                a(f's_cmp_eq_u32 s{k1.sPB}, 0')
                a(f's_cbranch_scc1 {skip}')
            k1.gelu_simple(a, g, 1, [], 'hb')
            if g == 1:
                jn = a.newlabel('joinb')
                a(f's_branch {jn}')
                a.label(skip)
                a(f'buffer_load_dword v10, v{vL16}, {srd(S_WS)}, s{sSRC} offen')
                a(f'buffer_load_dword v11, v{vL16}, {srd(S_WS)}, s{sSRC} offen')
                a.label(jn)
            a.wait_lg()
            st(a, 'gelu')
        if OPT.get('xdrain'):
            a('s_waitcnt vmcnt(0)')
            st(a, 'gelud')
        attention(a, g)
        if g == 0:
            a(f's_branch {att}')
            joinsnap = a.snapshot()
        else:
            assert a.snapshot() == joinsnap, (a.snapshot(), joinsnap)
    a.label(att)
    a.wait_lg()
    a(mfma32(RO, RV1, RP + 4, RO))
    fb = label + '_fb'
    fin = label + '_fin'
    a(f'v_mul_f32 v{vT}, 0, v{RO + 8}')
    for i in range(8):
        a(f'v_fma_f32 v{vT}, v{RO + i}, 0, v{vT}')
    a(f'v_cmp_u_f32 vcc, v{vT}, v{vT}')
    if force_fallback:
        a(f's_branch {fb}')
    else:
        a(f's_cbranch_vccnz {fb}')
    a.label(fin)
    a(f'v_rcp_f32 v{vT}, v{RO + 8}')
    for i in range(8):
        a(f'v_mul_f32 v{RO + i}, v{vT}, v{RO + i}')
    for i in range(4):
        a(f'v_cvt_pk_bf16_f32 v{RO + i}, v{RO + 2 * i}, v{RO + 2 * i + 1}')
    for i in range(4):
        a(f'v_min_u32 v{RO + i}, -2, v{RO + i}')
    a.vmem(f'buffer_store_dwordx4 v[{RO}:{RO + 3}], v{vL16}, {srd(S_WS)}, s{sOF} offen sc1', 'ost')
    st(a, 'oend')
    if OPT.get('xdrain'):
        a('s_waitcnt vmcnt(0)')
        st(a, 'oendd')
    if OPT.get('erw') == 2:
        assert OPT['b2'] >= 18
        g1l, jl = a.newlabel('rw_g1'), a.newlabel('rw_j')
        a(f's_cmp_eq_u32 s{sG}, 1')
        a(f's_cbranch_scc1 {g1l}')
        snap = a.snapshot()
        reduce_write2(a, 0)
        a('s_barrier')
        a(f's_branch {jl}')
        end0 = a.snapshot()
        a.label(g1l)
        a.restore(snap)
        a('s_barrier')
        reduce_write2(a, 1)
        assert a.snapshot() == end0
        a.label(jl)
        st(a, 'ba')
    else:
        a('s_barrier')
        st(a, 'ba')
        reduce_write(a)
    o_loads(a, True)
    a.wait_lg()
    a('s_barrier')
    st(a, 'bb')
    reduce_read_gate(a)
    st(a, 'gate')
    o_check(a)
    st(a, 'opoll')
    ob_write(a)
    a.wait_lg()
    a('s_barrier')
    st(a, 'bc')
    wo_gemm(a)
    st(a, 'wog')
    a.wait_lg()
    t = exchange(a, label)
    final(a, t)
    st(a, 'fin')
    a('s_waitcnt vmcnt(0)')
    stamp(a, 9, 1)
    if OPT.get('dbgst'):
        lbl = a.newlabel('nodbg')
        a(f's_cmp_lg_u32 s{sW}, {OPT["dbgst"] - 1}')
        a(f's_cbranch_scc1 {lbl}')
        a('s_mov_b64 exec, 1')
        a('v_not_b32 v2, s68')
        a(f'buffer_atomic_umax v2, off, {srd(S_DBG)}, 0 offset:20 sc1')
        for k in range(1, 10):
            a(f'v_mov_b32 v{2 + k}, s{68 + 2 * k}')
            a(f'buffer_atomic_umax v{2 + k}, off, {srd(S_DBG)}, 0 offset:{20 + 4 * k} sc1')
        a('s_waitcnt vmcnt(0)')
        a.label(lbl)
    else:
        stamp_flush(a, 0)
    a('s_endpgm')
    a.label(fb)
    fallback(a, fin)
    a.label(end)
    a('s_endpgm')
    return a
```

```python
from common import *
import k1
from k1 import fl

KM_LDS = 163840
LCNT = 163824
RED = 0
OB = 131072
FA = FL
FB = FL + 4096
FH = FL + 8192
LOG2E = 1.4426950408889634
SPIN = 20000

sT0, sT1, sT2, sT3 = 52, 53, 54, 55
sH, sTQ, sSRC, sMD = 20, 21, 22, 23
sTILE, sCG, sOF, sOP = 24, 25, 26, 27
sHS, sWSRC, sWO, sSPIN = 8, 9, 10, 11
sVM = 94
sCT, sKH = sTT, sG

vL16 = 1
aK0, aK1, aV0, aV1 = 2, 3, 4, 5
vT = 6
RQ, RK, RV0, RV1, RP = 12, 16, 20, 24, 28
NEGM = 36
RS = (52, 68)
RO = 84
ACC = 100
RING = 164
vX, vB2, vXO = 228, 232, 236
vG, vS = 240, 248
OP = 52

OPT = dict(u0=28, D=11, fbsig=5, prio=None, b2=24, kvpre=8, nofb=False)


def spin(a, site, load, check_ok):
    ok = a.newlabel('ok')
    lp = a.newlabel('spin')
    check_ok(ok)
    a(f's_mov_b32 s{sSPIN}, {SPIN}')
    a.label(lp)
    a('s_sleep 1')
    load()
    a('s_waitcnt vmcnt(0)')
    check_ok(ok)
    a(f's_sub_u32 s{sSPIN}, s{sSPIN}, 1')
    a(f's_cmp_lg_u32 s{sSPIN}, 0')
    a(f's_cbranch_scc1 {lp}')
    a(f'v_mov_b32 v{vT}, {site}')
    a(f'buffer_store_dword v{vT}, off, {srd(S_DBG)}, 0 offset:{4 * site}')
    a.label(ok)


def one_lane_store(a, reg, srdn, soff, val=1):
    a('s_mov_b64 exec, 1')
    a(f'v_mov_b32 v{reg}, {val}')
    a(f'buffer_store_dword v{reg}, off, {srd(srdn)}, {soff} sc1')
    a('s_mov_b64 exec, -1')


def start_extra(a):
    lbl = a.newlabel('noinit')
    a(f'''
v_mov_b32 v20, 0
v_mov_b32 v21, 0
v_mov_b32 v22, 0
v_mov_b32 v23, 0
v_mov_b32 v24, {LCNT}
''')
    a.ds('ds_write_b32 v24, v20', 'w')
    a(f'''
s_or_b32 s{sT0}, s2, s{sW}
s_cmp_lg_u32 s{sT0}, 0
s_cbranch_scc1 {lbl}
v_lshrrev_b32 v1, 2, v0
v_lshlrev_b32 v1, 8, v1
v_and_b32 v2, 3, v0
v_lshlrev_b32 v2, 4, v2
v_add_u32 v1, v1, v2
s_mov_b32 s{sT0}, {FA}
s_mov_b32 s{sT1}, {FB}
s_mov_b32 s{sT2}, {FH}
buffer_store_dwordx4 v[20:23], v1, {srd(S_WS)}, s{sT0} offen sc1
buffer_store_dwordx4 v[20:23], v1, {srd(S_WS)}, s{sT1} offen sc1
buffer_store_dwordx4 v[20:23], v1, {srd(S_WS)}, s{sT2} offen sc1
''')
    a.label(lbl)


def prefetch(a):
    pf = OPT['pf']
    a(f'''
s_lshl_b32 s{sT0}, s2, 3
s_add_u32 s{sT0}, s{sT0}, s{sW}
v_lshlrev_b32 v48, 4, v0
''')
    if pf & 1:
        a(f's_mul_i32 s{sT1}, s{sT0}, 768')
        a.vmem(f'buffer_load_dwordx4 v[52:55], v48, {srd(S_WQ)}, s{sT1} offen', 'pf')
    if pf & 2:
        a(f's_mul_i32 s{sT1}, s{sT0}, 896')
        a.vmem(f'buffer_load_dwordx4 v[56:59], v48, {srd(S_W1)}, s{sT1} offen', 'pf')
    if pf & 4:
        a(f's_lshl_b32 s{sT1}, s{sT0}, 10')
        a.vmem(f'buffer_load_dwordx4 v[60:63], v48, {srd(S_X)}, s{sT1} offen', 'pf')
    if pf & 8:
        a(f's_mul_i32 s{sT1}, s{sT0}, 896')
        a.vmem(f'buffer_load_dwordx4 v[56:59], v48, {srd(S_W2)}, s{sT1} offen', 'pf')
        a(f's_lshl_b32 s{sT1}, s{sT0}, 8')
        a.vmem(f'buffer_load_dword v60, v48, {srd(S_WO)}, s{sT1} offen', 'pf')


def hook0(a, g):
    st(a, 'c0')
    if g != 0:
        return
    lbl = a.newlabel('noinit2')
    a(f'''
s_or_b32 s{sT0}, s2, s{sW}
s_cmp_lg_u32 s{sT0}, 0
s_cbranch_scc1 {lbl}
''')
    one_lane_store(a, 20, S_DBG, 0)
    a.label(lbl)


def hook8(a, g, poi=92, tag='st'):
    a(f'''
s_lshl_b32 s{sT0}, s{sXCD}, 2
s_lshr_b32 s{sCG}, s{sSLOT}, 3
s_add_u32 s{sH}, s{sT0}, s{sCG}
s_and_b32 s{sT1}, s{sSLOT}, 7
s_lshl_b32 s{sTQ}, s{sT1}, 3
s_add_u32 s{sTQ}, s{sTQ}, s{sW}
s_lshl_b32 s{sMD}, s{sW}, 10
s_lshl_b32 s{sSRC}, s{sH}, 17
s_add_u32 s{sSRC}, s{sSRC}, {KV}
s_add_u32 s{sSRC}, s{sSRC}, s{sMD}
s_lshl_b32 s{sOF}, s{sTQ}, 5
s_add_u32 s{sOF}, s{sOF}, s{sH}
s_lshl_b32 s{sOF}, s{sOF}, 10
s_add_u32 s{sOF}, s{sOF}, {OF}
s_lshl_b32 s{sT0}, s{sXCD}, 3
s_add_u32 s{sTILE}, s{sT0}, s{sT1}
s_lshl_b32 s{sOP}, s{sTILE}, 3
s_add_u32 s{sOP}, s{sOP}, s{sW}
s_lshl_b32 s{sOP}, s{sOP}, 12
s_add_u32 s{sOP}, s{sOP}, {OF}
{f's_mul_i32 s{sT0}, s{sCT}, 28' if OPT.get('fs') else f's_mul_i32 s{sT0}, s{sW}, 14'}
s_mul_i32 s{sHS}, s{sTILE}, 112
s_add_u32 s{sHS}, s{sHS}, s{sT0}
s_lshl_b32 s{sHS}, s{sHS}, 10
s_add_u32 s{sHS}, s{sHS}, {HF}
s_lshl_b32 s{sWSRC}, s{sT0}, 4
s_lshl_b32 s{sT1}, s{sCG}, 2
s_add_u32 s{sWSRC}, s{sWSRC}, s{sT1}
{f's_add_u32 s{sWSRC}, s{sWSRC}, s{sKH}' if OPT.get('fs') else ''}
{f's_add_u32 s{sWSRC}, s{sWSRC}, s{sKH}' if OPT.get('fs') else ''}
s_lshl_b32 s{sWSRC}, s{sWSRC}, 10
s_add_u32 s{sWSRC}, s{sWSRC}, {WF}
s_lshl_b32 s{sWO}, s{sKH}, 4
s_add_u32 s{sWO}, s{sWO}, 112
s_lshl_b32 s{sWO}, s{sWO}, 4
s_add_u32 s{sWO}, s{sWO}, s{sT1}
s_add_u32 s{sWO}, s{sWO}, s{sCT}
s_lshl_b32 s{sWO}, s{sWO}, 10
s_add_u32 s{sWO}, s{sWO}, {WF}
v_mov_b32 v{poi}, -1
v_mov_b32 v{poi + 1}, -1
v_mov_b32 v{poi + 2}, -1
v_mov_b32 v{poi + 3}, -1
''')
    a.vmem(f'buffer_store_dwordx4 v[{poi}:{poi + 3}], v{vL16}, {srd(S_WS)}, s{sOF} offen sc1', tag)


def ini_load(a):
    return f'buffer_load_dword v92, off, {srd(S_DBG)}, 0 sc1'


def hook9(a, g):
    a.vmem(ini_load(a), 'ini')


def prebar11(a, g):
    a.wait_vm('ini')

    def chk(ok):
        a('v_cmp_eq_u32 vcc, 1, v92')
        a(f's_cbranch_vccnz {ok}')
    spin(a, 1, lambda: a(ini_load(a)), chk)


def hook11(a, g):
    if g == 0:
        lbl = a.newlabel('nofa')
        a(f'''
s_cmp_lg_u32 s{sW}, 0
s_cbranch_scc1 {lbl}
s_lshl_b32 s{sT0}, s{k1.sHP}, 8
s_lshl_b32 s{sT1}, s{k1.sTB}, 2
s_add_u32 s{sT0}, s{sT0}, s{sT1}
s_add_u32 s{sT0}, s{sT0}, {FA}
''')
        one_lane_store(a, 92, S_WS, f's{sT0}')
        a.label(lbl)
    k1.prep_finish(a)


def hook14(a, g):
    if g == 0:
        lbl = a.newlabel('nofw')
        a(f'''
s_cmp_lg_u32 s{sW}, 0
s_cbranch_scc1 {lbl}
s_lshr_b32 s{sT0}, s2, 4
s_lshl_b32 s{sT0}, s{sT0}, 8
s_and_b32 s{sT1}, s2, 15
s_lshl_b32 s{sT1}, s{sT1}, 2
s_add_u32 s{sT0}, s{sT0}, s{sT1}
s_add_u32 s{sT0}, s{sT0}, {FB}
''')
        one_lane_store(a, 92, S_WS, f's{sT0}')
        a.label(lbl)


def fa_load():
    return f'buffer_load_dword v93, v94, {srd(S_WS)}, s{sSPIN - 0 if False else sT1} offen sc1'


def fa_addr(a):
    a(f'''
s_lshr_b32 s{sT1}, s{sH}, 1
s_lshl_b32 s{sT1}, s{sT1}, 8
s_add_u32 s{sT1}, s{sT1}, {FA}
''')


def hook15(a, g):
    a('v_and_b32 v94, 15, v0')
    a('v_lshlrev_b32 v94, 2, v94')
    fa_addr(a)
    a.vmem(fa_load(), 'fa')


def fa_check(a):
    def chk(ok):
        a('v_cmp_ne_u32 vcc, 1, v93')
        a(f's_cbranch_vccz {ok}')

    def ld():
        fa_addr(a)
        a(fa_load())
    spin(a, 2, ld, chk)


def kv_dma(a, i):
    def f():
        a(f's_add_u32 m0, s{sMD}, {i * 8192}')
        a(f's_add_u32 s{sT2}, s{sSRC}, {i * 8192}')
        a.vmem(f'buffer_load_dwordx4 v{vL16}, {srd(S_WS)}, s{sT2} offen sc1 lds', f'kv{i}')
    return f


def q_load(a):
    def f():
        a(f'''
s_lshl_b32 s{sT2}, s{sH}, 6
s_add_u32 s{sT2}, s{sT2}, s{sTQ}
s_lshl_b32 s{sT2}, s{sT2}, 10
''')
        a.vmem(f'buffer_load_dwordx4 v[{RQ}:{RQ + 3}], v{vL16}, {srd(S_WS)}, s{sT2} offen sc1', 'q')
    return f


def k_read(a, t):
    ar, off = (aK0, t * 2048) if t < 32 else (aK1, (t - 32) * 2048)
    a.ds(f'ds_read_b128 v[{RK}:{RK + 3}], v{ar} offset:{off}', f'K{t}')


def v_reads(a, items):
    a(f's_mov_b64 exec, s[{sVM}:{sVM + 1}]')
    for part, t in items:
        ar, off = (aV0, t * 2048) if t < 32 else (aV1, (t - 32) * 2048)
        r = RV0 if part == 0 else RV1
        a.ds(f'ds_read_b128 v[{r}:{r + 3}], v{ar} offset:{off + part * 512}', f'V{part}_{t}')
    a('s_mov_b64 exec, -1')


def run(a, items):
    for it in items:
        emit(a, it)


def attn_step(a, t, nt, ev, mf, pre):
    S, Sn = RS[t % 2], RS[(t + 1) % 2]
    ex = [f'v_exp_f32 v{S + i}, v{S + i}' for i in range(16)]
    cv = [f'v_cvt_pk_bf16_f32 v{RP + i}, v{S + 2 * i}, v{S + 2 * i + 1}' for i in range(8)]
    run(a, pre.get(t, []))
    if t + 1 < nt:
        a.wait_lg(f'K{t + 1}')
        a(mfma32(Sn, RK, RQ, NEGM))
        if t + 2 < nt:
            k_read(a, t + 2)
    run(a, ev.get(2 * t, []))
    run(a, (ex[0], ex[1], ex[2], ex[3]))
    run(a, mf.get(2 * t, []))
    run(a, (cv[0], ex[4], ex[5], cv[1]))
    if t > 0:
        a.wait_lg(f'V1_{t - 1}')
        a(mfma32(RO, RV1, RP + 4, RO))
    run(a, (ex[6], ex[7], cv[2], ex[8], ex[9], cv[3], ex[10], ex[11]))
    a.wait_lg(f'V0_{t}')
    a(mfma32(RO, RV0, RP, '0' if t == 0 else RO))
    items = [(1, t)]
    if t + 1 < nt:
        items.append((0, t + 1))
    v_reads(a, items)
    run(a, ev.get(2 * t + 1, []))
    run(a, (cv[4], ex[12], ex[13], cv[5]))
    run(a, mf.get(2 * t + 1, []))
    run(a, (ex[14], ex[15], cv[6], cv[7]))


def row_max(a, S, dst, tmp):
    a(f'v_max3_f32 v{dst}, v{S}, v{S + 1}, v{S + 2}')
    a(f'v_max3_f32 v{tmp}, v{S + 3}, v{S + 4}, v{S + 5}')
    a(f'v_max3_f32 v{dst}, v{dst}, v{S + 6}, v{S + 7}')
    a(f'v_max3_f32 v{tmp}, v{tmp}, v{S + 8}, v{S + 9}')
    a(f'v_max3_f32 v{dst}, v{dst}, v{S + 10}, v{S + 11}')
    a(f'v_max3_f32 v{tmp}, v{tmp}, v{S + 12}, v{S + 13}')
    a(f'v_max3_f32 v{dst}, v{dst}, v{S + 14}, v{S + 15}')
    a(f'v_max_f32 v{dst}, v{dst}, v{tmp}')
    a(f'v_mov_b32 v{tmp}, v{dst}')
    a(f'v_permlane32_swap_b32 v{dst}, v{tmp}')
    a(f'v_max_f32 v{dst}, v{dst}, v{tmp}')


def fallback(a, done_label):
    a.comment('--- fallback: online softmax with the running true maximum')
    loop = a.newlabel('fb_loop')
    S = RS[0]
    vm, vmn, val, va, vb = vT, vT + 1, vT + 2, vT + 3, vT + 4
    a(f'v_mov_b32 v{vm}, 0xff800000')
    for i in range(16):
        a(f'v_mov_b32 v{RO + i}, 0')
    a(f'v_mov_b32 v{va}, v{aK0}')
    a(f'v_mov_b32 v{vb}, v{aV0}')
    a(f's_mov_b32 s{sT0}, 64')
    a.label(loop)
    a(f'ds_read_b128 v[{RK}:{RK + 3}], v{va}')
    a(f's_mov_b64 exec, s[{sVM}:{sVM + 1}]')
    a(f'ds_read_b128 v[{RV0}:{RV0 + 3}], v{vb}')
    a(f'ds_read_b128 v[{RV1}:{RV1 + 3}], v{vb} offset:512')
    a('s_mov_b64 exec, -1')
    a('s_waitcnt lgkmcnt(0)')
    a(mfma32(S, RK, RQ, '0'))
    a(f'v_add_u32 v{va}, 0x800, v{va}')
    a(f'v_add_u32 v{vb}, 0x800, v{vb}')
    row_max(a, S, vmn, val)
    a(f'v_max_f32 v{vmn}, v{vmn}, v{vm}')
    a(f'v_sub_f32 v{val}, v{vm}, v{vmn}')
    a(f'v_exp_f32 v{val}, v{val}')
    a(f'v_mov_b32 v{vm}, v{vmn}')
    for i in range(16):
        a(f'v_sub_f32 v{S + i}, v{S + i}, v{vmn}')
    for i in range(16):
        a(f'v_exp_f32 v{S + i}, v{S + i}')
    for i in range(16):
        a(f'v_mul_f32 v{RO + i}, v{val}, v{RO + i}')
    for i in range(8):
        a(f'v_cvt_pk_bf16_f32 v{RP + i}, v{S + 2 * i}, v{S + 2 * i + 1}')
    a(mfma32(RO, RV0, RP, RO))
    a(mfma32(RO, RV1, RP + 4, RO))
    a(f's_sub_u32 s{sT0}, s{sT0}, 1')
    a(f's_cmp_lg_u32 s{sT0}, 0')
    a(f's_cbranch_scc1 {loop}')
    a(f's_branch {done_label}')


def slot(i):
    return RING + 4 * (i % 16)


def nper():
    return (3, 28) if OPT.get('fs') else (5, 14)


def stream_load(a, i):
    np_, ns = nper()
    nf = np_ * ns

    def f():
        if OPT.get('xnl') and i < nf:
            return
        if i < nf:
            s, j = divmod(i, np_)
            if j == 0:
                a(f's_add_u32 s{sT2}, s{sHS}, {s * 1024}')
                a.vmem(f'buffer_load_dwordx4 v[{slot(i)}:{slot(i) + 3}], v{vL16}, {srd(S_WS)}, s{sT2} offen sc1', f'f{i}')
            else:
                if j == 1:
                    a(f's_add_u32 s{sT3}, s{sWSRC}, {s * 16384}')
                a.vmem(f'buffer_load_dwordx4 v[{slot(i)}:{slot(i) + 3}], v{vL16}, {srd(S_WS)}, s{sT3} offen '
                       f'offset:{(j - 1) * 1024} sc1', f'f{i}')
        else:
            k = i - nf
            a(f's_add_u32 s{sT2}, s{sWO}, {k * 16384}')
            a.vmem(f'buffer_load_dwordx4 v[{slot(i)}:{slot(i) + 3}], v{vL16}, {srd(S_WS)}, s{sT2} offen sc1', 'wo')
    return f


def stream_mfma(a, s, j):
    def f():
        np_ = nper()[0]
        iw, ih = np_ * s + 1 + j, np_ * s
        if not OPT.get('xnw'):
            a.wait_vm(f'f{iw}')
        else:
            a.vm = [t for t in a.vm if t != f'f{iw}' and t != f'f{ih}']
        if OPT.get('xnm'):
            return
        a(mfma32(ACC + 16 * j, slot(iw), slot(ih), '0' if s == 0 else None))
    return f


def side_loads(a):
    a(f'''
s_lshl_b32 s{sT0}, s{sCG}, 8
s_lshl_b32 s{sT1}, s{sCT}, 6
s_add_u32 s{sT0}, s{sT0}, s{sT1}
s_lshl_b32 s{sT1}, s{sKH}, 5
s_add_u32 s{sT0}, s{sT0}, s{sT1}
v_lshrrev_b32 v{vT}, 5, v0
v_lshlrev_b32 v{vT}, 3, v{vT}
v_add_u32 v{vT}, s{sT0}, v{vT}
v_and_b32 v{vT + 1}, 31, v0
v_lshlrev_b32 v{vT + 1}, 10, v{vT + 1}
s_lshl_b32 s{sT1}, s{sTILE}, 15
v_add3_u32 v{vT + 1}, v{vT + 1}, v{vT}, s{sT1}
''')
    a.vmem(f'buffer_load_dwordx2 v[{vB2}:{vB2 + 1}], v{vT}, {srd(S_B2)}, 0 offen', 'side')
    a.vmem(f'buffer_load_dwordx2 v[{vB2 + 2}:{vB2 + 3}], v{vT}, {srd(S_B2)}, 0 offen offset:16', 'side')
    a.vmem(f'buffer_load_dwordx2 v[{vX}:{vX + 1}], v{vT + 1}, {srd(S_X)}, 0 offen', 'side')
    a.vmem(f'buffer_load_dwordx2 v[{vX + 2}:{vX + 3}], v{vT + 1}, {srd(S_X)}, 0 offen offset:16', 'side')
    a(f'''
v_lshrrev_b32 v{vT + 2}, 5, v0
v_lshlrev_b32 v{vT + 2}, 4, v{vT + 2}
v_and_b32 v{vXO}, 31, v0
v_lshlrev_b32 v{vXO}, 10, v{vXO}
s_add_u32 s{sT0}, s{sT0}, s{sT1}
v_add3_u32 v{vXO}, v{vXO}, v{vT + 2}, s{sT0}
''')
    if OPT.get('otouch'):
        a.vmem(f'buffer_load_dword v{vXO + 1}, v{vXO}, {srd(S_OUT)}, 0 offen', 'side')


def fb_signal_1(a):
    a.wait_vm('hb')
    a(f'''
v_mov_b32 v{vT}, {LCNT}
v_mov_b32 v{vT + 1}, 1
s_mov_b64 exec, 1
''')
    a.ds(f'ds_add_rtn_u32 v{vT + 1}, v{vT}, v{vT + 1}', 'cnt')
    a('s_mov_b64 exec, -1')


def fb_signal_2(a):
    lbl = a.newlabel('nofb')
    a.wait_lg('cnt')
    a(f'''
v_readfirstlane_b32 s{sT0}, v{vT + 1}
s_cmp_lg_u32 s{sT0}, 7
s_cbranch_scc1 {lbl}
s_lshl_b32 s{sT0}, s{k1.sTB}, 8
s_lshl_b32 s{sT1}, s{k1.sHP}, 2
s_add_u32 s{sT0}, s{sT0}, s{sT1}
s_add_u32 s{sT0}, s{sT0}, {FH}
''')
    one_lane_store(a, vT + 1, S_WS, f's{sT0}')
    a.label(lbl)


def fb_load(a):
    return [f'buffer_load_dwordx4 v[8:11], v{vT}, {srd(S_WS)}, s{sT1} offen sc1',
            f'buffer_load_dword v{vX}, v{vT + 1}, {srd(S_WS)}, s{sT0} offen sc1']


def fb_addr(a):
    a(f'''
s_mov_b32 s{sT1}, {FB}
s_lshr_b32 s{sT0}, s{sTILE}, 2
s_lshl_b32 s{sT0}, s{sT0}, 8
s_add_u32 s{sT0}, s{sT0}, {FH}
''')


def fb_poll(a):
    a(f'''
v_lshrrev_b32 v{vT}, 2, v0
v_lshlrev_b32 v{vT}, 8, v{vT}
v_and_b32 v{vT + 1}, 3, v0
v_lshlrev_b32 v{vT + 1}, 4, v{vT + 1}
v_add_u32 v{vT}, v{vT}, v{vT + 1}
v_and_b32 v{vT + 1}, 15, v0
v_lshlrev_b32 v{vT + 1}, 2, v{vT + 1}
''')
    fb_addr(a)
    for x in fb_load(a):
        a.vmem(x, 'fb')


def fb_check(a):
    a.wait_vm('fb')

    def chk(ok):
        a('v_and_b32 v8, v8, v9')
        a('v_and_b32 v10, v10, v11')
        a('v_and_b32 v8, v8, v10')
        a(f'v_and_b32 v8, v8, v{vX}')
        a('v_cmp_ne_u32 vcc, 1, v8')
        a(f's_cbranch_vccz {ok}')

    def ld():
        fb_addr(a)
        for x in fb_load(a):
            a(x)
    spin(a, 3, ld, chk)


def o_loads(a, tracked):
    for i in range(4):
        t = f'buffer_load_dwordx4 v[{OP + 4 * i}:{OP + 4 * i + 3}], v{vL16}, {srd(S_WS)}, s{sOP} offen offset:{1024 * i} sc1'
        if tracked:
            a.vmem(t, 'op')
        else:
            a(t)


def o_check(a):
    a.wait_vm('op')

    def chk(ok):
        for i in range(4):
            r = OP + 4 * i
            a(f'v_max3_u32 v{vT + i}, v{r}, v{r + 1}, v{r + 2}')
            a(f'v_max_u32 v{vT + i}, v{vT + i}, v{r + 3}')
        a(f'v_max3_u32 v{vT}, v{vT}, v{vT + 1}, v{vT + 2}')
        a(f'v_max_u32 v{vT}, v{vT}, v{vT + 3}')
        a(f'v_cmp_eq_u32 vcc, -1, v{vT}')
        a(f's_cbranch_vccz {ok}')
    spin(a, 4, lambda: o_loads(a, False), chk)


def reduce_write(a):
    a(f's_lshl_b32 s{sT0}, s{sW}, 14')
    a(f'v_add_u32 v{vT}, s{sT0}, v{vL16}')
    for k in range(16):
        a.ds(f'ds_write_b128 v{vT}, v[{ACC + 4 * k}:{ACC + 4 * k + 3}] offset:{k * 1024}', 'rw')


PART = [0, 16384, 131072, 147456, 32768, 49152, 65536, 81920]


def reduce_write2(a, g):
    if g == 0:
        a(f's_lshl_b32 s{sT0}, s{sW}, 14')
        a(f's_cmp_ge_u32 s{sW}, 2')
        a(f's_cselect_b32 s{sT1}, {131072 - 32768}, 0')
        a(f's_add_u32 s{sT0}, s{sT0}, s{sT1}')
    else:
        a(f's_lshl_b32 s{sT0}, s{sW}, 14')
        a(f's_sub_u32 s{sT0}, s{sT0}, {65536 - 32768}')
    a(f'v_add_u32 v{vT}, s{sT0}, v{vL16}')
    for k in range(16):
        a.ds(f'ds_write_b128 v{vT}, v[{ACC + 4 * k}:{ACC + 4 * k + 3}] offset:{k * 1024}', 'rw')


def part_base(w):
    return w * 8192 if w < 4 else 131072 + (w - 4) * 8192


def reduce_write4(a):
    a(f's_lshl_b32 s{sT0}, s{sCT}, 13')
    a(f's_lshl_b32 s{sT1}, s{sKH}, 17')
    a(f's_add_u32 s{sT0}, s{sT0}, s{sT1}')
    a(f'v_add_u32 v{vT}, s{sT0}, v{vL16}')
    for k in range(8):
        a.ds(f'ds_write_b128 v{vT}, v[{ACC + 4 * k}:{ACC + 4 * k + 3}] offset:{k * 1024}', 'rw')


def reduce_read_gate4(a):
    a(f'''
s_lshr_b32 s{sT0}, s{sCT}, 1
s_lshl_b32 s{sT0}, s{sT0}, 17
s_and_b32 s{sT1}, s{sCT}, 1
s_lshl_b32 s{sT1}, s{sT1}, 12
s_add_u32 s{sT0}, s{sT0}, s{sT1}
s_lshl_b32 s{sT1}, s{sKH}, 11
s_add_u32 s{sT0}, s{sT0}, s{sT1}
v_add_u32 v{vT}, s{sT0}, v{vL16}
''')
    t = ACC
    for q in range(4):
        for e in range(2):
            d = t + 8 * q + 4 * e
            a.ds(f'ds_read_b128 v[{d}:{d + 3}], v{vT} offset:{q * 8192 + e * 1024}', f'r{q}')
    gate_math(a, t, 4)


def gate_math(a, t, n):
    a.wait_vm('side')
    for e in range(2):
        for h in range(2):
            a(f'v_lshlrev_b32 v{vG + 4 * e + 2 * h}, 16, v{vB2 + 2 * e + h}')
            a(f'v_and_b32 v{vG + 4 * e + 2 * h + 1}, 0xffff0000, v{vB2 + 2 * e + h}')
    for w in range(n):
        a.wait_lg(f'r{w}')
        for k in range(8):
            a(f'v_add_f32 v{vG + k}, v{vG + k}, v{t + 8 * w + k}')
    for k in range(8):
        a(f'v_mul_f32 v{t + k}, {fl(-LOG2E)}, v{vG + k}')
    for k in range(8):
        a(f'v_exp_f32 v{t + k}, v{t + k}')
    for k in range(8):
        a(f'v_add_f32 v{t + k}, 1.0, v{t + k}')
    for k in range(8):
        a(f'v_rcp_f32 v{t + k}, v{t + k}')
    for k in range(8):
        a(f'v_mul_f32 v{vG + k}, v{vG + k}, v{t + k}')


def reduce_read_gate(a):
    if OPT.get('fs'):
        return reduce_read_gate4(a)
    early = OPT.get('erw') == 2
    a(f'''
s_lshl_b32 s{sT0}, s{sCT}, 12
s_lshl_b32 s{sT1}, s{sKH}, 11
s_add_u32 s{sT0}, s{sT0}, s{sT1}
v_add_u32 v{vT}, s{sT0}, v{vL16}
v_add_u32 v{vT + 1}, 0x10000, v{vT}
''')
    if early:
        a(f'v_add_u32 v{vT + 2}, 0x20000, v{vT}')
    t = ACC
    for w in range(8):
        for e in range(2):
            if early:
                p = PART[w]
                ar, off = vT + p // 65536, p % 65536 + e * 1024
            else:
                ar, off = (vT if w < 4 else vT + 1), (w % 4) * 16384 + e * 1024
            d = t + 8 * w + 4 * e
            a.ds(f'ds_read_b128 v[{d}:{d + 3}], v{ar} offset:{off}', f'r{w}')
    a.wait_vm('side')
    for e in range(2):
        for h in range(2):
            a(f'v_lshlrev_b32 v{vG + 4 * e + 2 * h}, 16, v{vB2 + 2 * e + h}')
            a(f'v_and_b32 v{vG + 4 * e + 2 * h + 1}, 0xffff0000, v{vB2 + 2 * e + h}')
    for w in range(8):
        a.wait_lg(f'r{w}')
        for k in range(8):
            a(f'v_add_f32 v{vG + k}, v{vG + k}, v{t + 8 * w + k}')
    for k in range(8):
        a(f'v_mul_f32 v{t + k}, {fl(-LOG2E)}, v{vG + k}')
    for k in range(8):
        a(f'v_exp_f32 v{t + k}, v{t + k}')
    for k in range(8):
        a(f'v_add_f32 v{t + k}, 1.0, v{t + k}')
    for k in range(8):
        a(f'v_rcp_f32 v{t + k}, v{t + k}')
    for k in range(8):
        a(f'v_mul_f32 v{vG + k}, v{vG + k}, v{t + k}')


def ob_base():
    if OPT.get('fs'):
        return 32768
    return 98304 if OPT.get('erw') == 2 else OB


def ob_write(a):
    a(f's_lshl_b32 s{sT0}, s{sW}, 12')
    a(f's_add_u32 s{sT0}, s{sT0}, {ob_base()}')
    a(f'v_add_u32 v{vT}, s{sT0}, v{vL16}')
    for i in range(4):
        a.ds(f'ds_write_b128 v{vT}, v[{OP + 4 * i}:{OP + 4 * i + 3}] offset:{i * 1024}', 'ow')


def wo_gemm(a):
    a(f's_lshl_b32 s{sT0}, s{sKH}, 14')
    a(f's_add_u32 s{sT0}, s{sT0}, {ob_base()}')
    a(f'v_add_u32 v{vT}, s{sT0}, v{vL16}')
    bb = ACC
    for i in range(16):
        a.ds(f'ds_read_b128 v[{bb + 4 * i}:{bb + 4 * i + 3}], v{vT} offset:{i * 1024}', f'o{i}')
    a.wait_vm('wo')
    for i in range(16):
        a.wait_lg(f'o{i}')
        a(mfma32(RO, slot(nper()[0] * nper()[1] + i), bb + 4 * i, '0' if i == 0 else None))


def exchange(a, label):
    k1l = label + '_kh1'
    j = label + '_khj'
    a(f'''
s_lshl_b32 s{sT0}, s{sW}, 11
v_add_u32 v{vT}, s{sT0}, v{vL16}
s_xor_b32 s{sT0}, s{sW}, 4
s_lshl_b32 s{sT0}, s{sT0}, 11
v_add_u32 v{vT + 1}, s{sT0}, v{vL16}
s_cmp_eq_u32 s{sKH}, 1
s_cbranch_scc1 {k1l}
''')
    for kh in (0, 1):
        if kh == 1:
            a.label(k1l)
        send = RO + (8 if kh == 0 else 0)
        keep = RO + (0 if kh == 0 else 8)
        a(f'ds_write_b128 v{vT}, v[{send}:{send + 3}]')
        a(f'ds_write_b128 v{vT}, v[{send + 4}:{send + 7}] offset:1024')
        for k in range(8):
            a(f'v_mov_b32 v{vS + k}, v{keep + k}')
        if kh == 0:
            a(f's_branch {j}')
    a.label(j)
    a('s_waitcnt lgkmcnt(0)')
    a('s_barrier')
    t = ACC
    a(f'ds_read_b128 v[{t}:{t + 3}], v{vT + 1}')
    a(f'ds_read_b128 v[{t + 4}:{t + 7}], v{vT + 1} offset:1024')
    return t


def final(a, t):
    u = ACC + 32
    for k in range(4):
        a(f'v_lshlrev_b32 v{u + 2 * k}, 16, v{vX + k}')
        a(f'v_and_b32 v{u + 2 * k + 1}, 0xffff0000, v{vX + k}')
    a('s_waitcnt lgkmcnt(0)')
    for k in range(8):
        a(f'v_add_f32 v{vS + k}, v{vS + k}, v{t + k}')
    for k in range(8):
        a(f'v_fma_f32 v{vS + k}, v{vS + k}, v{vG + k}, v{u + k}')
    for k in range(4):
        a(f'v_cvt_pk_bf16_f32 v{vS + k}, v{vS + 2 * k}, v{vS + 2 * k + 1}')
    a(f'v_permlane32_swap_b32 v{vS}, v{vS + 2}')
    a(f'v_permlane32_swap_b32 v{vS + 1}, v{vS + 3}')
    a.vmem(f'buffer_store_dwordx4 v[{vS}:{vS + 3}], v{vXO}, {srd(S_OUT)}, 0 offen', 'st')


def prio_plan(g):
    p = OPT.get('pr', 0)
    if p == 0:
        return lambda t: None
    if g == 1:
        return lambda t: 1 if t == 0 else None
    pat = {1: [2, 2, 2, 0], 2: [2, 2, 0], 3: [2, 0], 4: [2, 2, 2, 2, 0], 5: [2, 2, 2, 2, 2, 0, 0], 6: [0],
           7: [2, 2, 2, 0, 0]}[p]
    return lambda t: pat[t % len(pat)] if (t == 0 or pat[t % len(pat)] != pat[(t - 1) % len(pat)]) else None


def attention(a, g):
    pre_n = OPT['kvpre']
    a(f'''
v_mov_b32 v{aK0}, v{vL16}
v_add_u32 v{aK1}, 0x10000, v{vL16}
v_and_b32 v{vT}, 15, v0
v_lshrrev_b32 v{vT + 1}, 5, v0
v_lshlrev_b32 v{vT + 1}, 4, v{vT + 1}
v_add_u32 v{vT}, v{vT}, v{vT + 1}
v_lshlrev_b32 v{vT}, 4, v{vT}
v_add_u32 v{aV0}, 0x400, v{vT}
v_add_u32 v{aV1}, 0x10400, v{vT}
s_mov_b32 s{sVM}, 0xffff
s_mov_b32 s{sVM + 1}, 0xffff
''')
    if OPT.get('ones2', 1):
        a(f'v_and_b32 v{vT}, 27, v0')
        a(f'v_cmp_eq_u32 vcc, 16, v{vT}')
        a(f'v_mov_b32 v{vT}, 0x3f803f80')
        for i in range(4):
            a(f'v_cndmask_b32 v{RV0 + i}, 0, v{vT}, vcc')
            a(f'v_cndmask_b32 v{RV1 + i}, 0, v{vT}, vcc')
    else:
        for i in range(4):
            a(f'v_mov_b32 v{RV0 + i}, 0x3f803f80')
            a(f'v_mov_b32 v{RV1 + i}, 0x3f803f80')
    b1 = OPT.get('b1', pre_n)
    if OPT.get('nob1'):
        a.wait_vm('q')
    else:
        a.wait_vm(['q'] + [f'kv{i}' for i in range(b1)])
        a('s_barrier')
    st(a, 'b1')
    ev, mf, pre = {}, {}, {}
    add = lambda d, k, x: d.setdefault(k, []).append(x)
    k_read(a, 0)
    v_reads(a, [(0, 0)])
    a.wait_lg('K0')
    a(mfma32(RS[0], RK, RQ, '0'))
    row_max(a, RS[0], vT, vT + 1)
    for i in range(16):
        a(f'v_sub_f32 v{NEGM + i}, 0, v{vT}')
    a(mfma32(RS[0], RK, RQ, NEGM))
    k_read(a, 1)
    for i in range(pre_n, 16):
        add(ev, 2 * (i - pre_n), kv_dma(a, i))
    if b1 < pre_n and OPT['b2'] > 4 * b1 - 2:
        tb = 4 * b1 - 2
        add(pre, tb, lambda: (a.wait_vm([f'kv{i}' for i in range(pre_n)]), a('s_barrier')))
    tb2 = OPT['b2']
    assert tb2 <= 4 * pre_n - 2 and tb2 >= 2 * (15 - pre_n) + 1
    add(pre, tb2, lambda: (a.wait_vm([f'kv{i}' for i in range(16)]), a('s_barrier')))
    fs = OPT['fbsig']
    add(pre, fs, lambda: fb_signal_1(a))
    add(pre, fs + 1, lambda: fb_signal_2(a))
    u0, D = OPT['u0'], OPT['D']
    add(ev, u0 - 5, lambda: fb_poll(a))
    add(pre, u0 // 2, lambda: fb_check(a))
    np_, ns = nper()
    nl = np_ * ns + 16
    num, den = OPT.get('rnum', 1), OPT.get('rden', 1)
    U = lambda i: u0 + (i * num) // den
    last_use = {}
    for s in range(ns):
        for j in range(np_ - 1):
            um = U(np_ * s + 1 + j) + D
            add(mf, um, stream_mfma(a, s, j))
            last_use[np_ * s + 1 + j] = um
            last_use[np_ * s] = um
    for i in range(nl):
        add(ev, U(i), stream_load(a, i))
        if i >= 16:
            assert U(i) > last_use[i - 16], (i, U(i), last_use[i - 16])
    assert max(last_use.values()) < 128
    us = min(U(nl + 1), 127)
    add(ev, us, lambda: side_loads(a))
    assert U(nl - 1) <= us
    pp = prio_plan(g)
    for t in range(64):
        if pp(t) is not None:
            pre.setdefault(t, []).insert(0, f's_setprio {pp(t)}')
    for t in range(64):
        attn_step(a, t, 64, ev, mf, pre)
        st(a, f'a{t}')
    if OPT.get('pr', 0):
        a('s_setprio 0')


vINI, vFAA, vFAD = 6, 22, 23
vPOI = 24


def nb_hook6(a, g):
    a.vmem(f'buffer_load_dword v{vINI}, off, {srd(S_DBG)}, 0 sc1', 'ini')


def nb_ini_check(a, g):
    a.wait_vm('ini')

    def chk(ok):
        a(f'v_cmp_eq_u32 vcc, 1, v{vINI}')
        a(f's_cbranch_vccnz {ok}')
    spin(a, 1, lambda: a(f'buffer_load_dword v{vINI}, off, {srd(S_DBG)}, 0 sc1'), chk)


def flag_ops(addr):
    return [x.strip() for x in addr.strip().split('\n')] + [
        f's_cmp_eq_u32 s{sW}, 0',
        's_cselect_b64 exec, 1, 0',
        f'v_mov_b32 v{vINI}, 1',
        f'buffer_store_dword v{vINI}, off, {srd(S_WS)}, s{sT0} sc1',
        's_mov_b64 exec, -1']


def fa_signal_ops():
    return [flag_ops(f'''
s_lshl_b32 s{sT0}, s{k1.sHP}, 8
s_lshl_b32 s{sT1}, s{k1.sTB}, 2
s_add_u32 s{sT0}, s{sT0}, s{sT1}
s_add_u32 s{sT0}, s{sT0}, {FA}
''')][0]


def fw_signal_ops():
    return flag_ops(f'''
s_lshr_b32 s{sT0}, s2, 4
s_lshl_b32 s{sT0}, s{sT0}, 8
s_and_b32 s{sT1}, s2, 15
s_lshl_b32 s{sT1}, s{sT1}, 2
s_add_u32 s{sT0}, s{sT0}, s{sT1}
s_add_u32 s{sT0}, s{sT0}, {FB}
''')


def nb_prebar_st(a, g):
    a.wait_vm('st')


def nb_prebar14(a, g):
    a.wait_vm(['pst', 'poi'])


def nb_fa_load():
    return f'buffer_load_dword v{vFAD}, v{vFAA}, {srd(S_WS)}, s{sT1} offen sc1'


def nb_hook15(a, g):
    a(f'v_and_b32 v{vFAA}, 15, v0')
    a(f'v_lshlrev_b32 v{vFAA}, 2, v{vFAA}')
    fa_addr(a)
    a.vmem(nb_fa_load(), 'fa')


def nb_fa_check(a):
    def chk(ok):
        a(f'v_cmp_ne_u32 vcc, 1, v{vFAD}')
        a(f's_cbranch_vccz {ok}')

    def ld():
        fa_addr(a)
        a(nb_fa_load())
    spin(a, 2, ld, chk)


def k1_new(a, g):
    import k1b
    k1b.OPT = OPT
    fas = OPT.get('fas', 12)
    k1b.HOOKS = {0: hook0, 6: nb_hook6}
    k1b.PREBAR = {fas: nb_prebar_st, 14: nb_prebar14}
    pre_n = OPT['kvpre']
    k1b.rot_setup(a)
    for d in k1b.dma_ops(a, 0, g):
        d()
    st(a, 'iss0')
    k1b.setup2(a)
    st(a, 'su2')
    i1, dep, ramp = OPT.get('i1', 3), OPT.get('dep', 3), OPT.get('ramp', 1)
    for n in range(1, i1):
        for d in k1b.dma_ops(a, n, g):
            d()
    nxt = i1
    for n in range(8):
        k1b.SCHED[n] = []
        while nxt <= n + dep and (len(k1b.SCHED[n]) < ramp or nxt <= n + 1):
            k1b.SCHED[n].append(nxt)
            nxt += 1
    late = list(range(nxt, 15))
    st(a, 'iss')
    pfpos = OPT.get('pfpos', 2)
    for n in range(8):
        k1b.p1_stage(a, n, g)
        if OPT.get('pf') and pfpos == n + 2:
            prefetch(a)
        st(a, f'p1_{n}')
    ne1 = OPT.get('ne1', 2)
    e1m = OPT.get('e1m', 0)
    d_e1 = [d for c in late[:ne1] for d in k1b.dma_ops(a, c, g)]
    if not e1m:
        k1b.e1a(a, g, d_e1, nb_ini_check)
        st(a, 'e1')
    late = late[ne1:]
    fill = {n: [[] for _ in range(8)] for n in range(8, 17)}
    e1b = k1b.e1b_ops(a, g)
    n8 = OPT.get('n8', 2)
    d13 = [d for c in late[:n8] for d in k1b.dma_ops(a, c, g)]
    late = late[n8:]
    w8 = OPT.get('w8', 2)
    slots = [(8, i) for i in range(4) for _ in range(w8)] + [(8, i) for i in range(4, 8)] + [(9, i) for i in range(8)]
    if e1m:
        slots = [(8, 0)] * OPT.get('wm', 3) + [(9, i) for i in range(8)] + [(10, i) for i in range(OPT.get('n10', 4))]
    if g == 1:
        slots = slots[:len(slots) - OPT.get('e1short', 4)]
    parts = k1b.split_even(e1b, len(slots))
    for i in range(len(d13)):
        fill[8][i].append(d13[i])
    for k, c in enumerate(late):
        dd = k1b.dma_ops(a, c, g)
        sk = 9 + k * OPT.get('lstep', 1) + OPT.get('l0', 0)
        if OPT.get('lmap'):
            sk = 9 + int(str(OPT['lmap'])[1 + k])
        assert sk <= c - 1
        fill[sk][OPT.get('lg0', 1)].insert(0, dd[0])
        fill[sk][OPT.get('lg1', 5)].insert(0, dd[1])
    for (n, i), p in zip(slots, parts):
        fill[n][i] += p
    d15 = k1b.dma_ops(a, 15, g)
    s15 = OPT.get('d15s', 10)
    fill[s15][OPT.get('dg0', 1)].append(d15[0])
    fill[s15][OPT.get('dg1', 5)].append(d15[1])
    if OPT.get('prs'):
        fill[OPT['prs']][OPT.get('prg', 7)].append(lambda: k1b.prep_issue(a))
    ids = record(a, lambda r: hook8(r, g, vPOI, 'poi'))
    for i, p in enumerate(k1b.split_even(ids, 8)):
        fill[10][i] += p
    addr, reads, stores = k1b.prep_finish_ops(a, 'pst')
    for i, p in enumerate(k1b.split_even(addr, 3)):
        fill[11][i] += p
    fill[11][3] += reads
    fill[11][6] += stores
    if g == 0:
        fill[fas][0] = fa_signal_ops() + fill[fas][0]
        fill[14][0] = fw_signal_ops() + fill[14][0]
    ekv = OPT.get('ekv', 0)
    nek = OPT.get('nek', 6) if ekv else 0
    if not ekv:
        fill[15][0] = record(a, lambda r: nb_hook15(r, g)) + fill[15][0]
    else:
        pg, cg = {1: (0, 8), 2: (4, 12), 3: (2, 10), 4: (0, 10), 5: (0, 12), 6: (4, 14), 7: (-4, 4), 8: (-2, 6),
                  9: (-6, 2)}[ekv]
        at = lambda x: fill[14 + x // 8][x % 8]
        ekv_poll = record(a, lambda r: nb_hook15(r, g))
        ekv_at = (pg, cg)
    fill[11][7] += k1b.cs_write_ops(a, [(k1.vCSA, (3 + 2 * g) * 512)])
    prep = k1b.gelu_prep(a, g, 0) + k1b.gelu_consts()
    first, per = k1b.gelu_tile_ops(a, k1.AC_A, 'ga')
    pp = k1b.split_even(prep + first, 4)
    for i in range(4):
        fill[12][i] += pp[i]
    gl = [o for q in per for o in q]
    gs = OPT.get('gstart', 5)
    slots = [(12, i) for i in range(gs, 8)] + [(n, i) for n in (13, 14, 15) for i in range(8)] + \
            [(16, i) for i in range(OPT.get('gend', 2))]
    for (n, i), p in zip(slots, k1b.split_even(gl, len(slots))):
        fill[n][i] += p
    if ekv:
        pg, cg = ekv_at
        at(pg)[:0] = ekv_poll
        at(cg)[:0] = [lambda: (a.wait_vm('fa'), nb_fa_check(a))]
        assert nek <= 6
        for i in range(nek):
            at(min(cg + 1 + i * OPT.get('eks', 1), 19)).append(kv_dma(a, i))
        if OPT.get('ekq'):
            fill[16][3].append(q_load(a))
    for n in range(8, 16):
        if n == 8 and e1m:
            assert not d13 and not any(fill[8][1:])
            k1b.e1m(a, g, d_e1, nb_ini_check, fill[8][0])
        else:
            k1b.p2_stage(a, n, g, fill[n])
        st(a, f'p2_{n}')
    k1b.p2_b_phase(a, 15, [[], [], [], []], fill[16][:4])
    k1.run_gaps(a, [k1b.cs_write_ops(a, [(k1.vCSB, (3 + 2 * g + 1) * 512)])])
    a.wait_lg()
    if not ekv:
        a.wait_vm('fa')
    if OPT.get('nob1'):
        assert ekv and OPT['nob1'] <= nek and OPT['b1'] == OPT['nob1']
        a.wait_vm([f'kv{i}' for i in range(OPT['nob1'])])
    a('s_barrier')
    if not ekv:
        nb_fa_check(a)
    st(a, 'tail')
    extras = ([] if (ekv and OPT.get('ekq')) else [q_load(a)]) + [kv_dma(a, i) for i in range(nek, pre_n)]
    if g == 1:
        skip = a.newlabel('skipb')
        a(f's_cmp_eq_u32 s{k1.sPB}, 0')
        a(f's_cbranch_scc1 {skip}')
        snap = a.snapshot()
    prep = k1b.gelu_prep(a, g, 1)
    first, per = k1b.gelu_tile_ops(a, k1.AC_B, 'gb')
    ex = list(extras)
    pop = lambda: ex.pop(0) if ex else (lambda: None)
    k1.run_gaps(a, [prep[:4], pop(), prep[4:6], pop(), prep[6:], first, pop()])
    gl = [o for q in per for o in q]
    nx = len(ex)
    span = (len(gl) * OPT.get('xspan', 60)) // 100
    done = 0
    for i, op in enumerate(gl):
        while done < nx and done * span <= i * nx:
            ex[done]()
            done += 1
        emit(a, op)
    while done < nx:
        ex[done]()
        done += 1
    k1b.h_store(a, g, 0, 'ha')
    k1b.h_store(a, g, 1, 'hb')
    if g == 1:
        jn = a.newlabel('joinb')
        a(f's_branch {jn}')
        endsnap = a.snapshot()
        a.label(skip)
        a.restore(snap)
        for x in extras:
            x()
        k1b.h_store(a, g, 0, 'ha')
        a.vmem(f'buffer_load_dword v10, v{vL16}, {srd(S_WS)}, s{sSRC} offen', 'hb')
        a.vmem(f'buffer_load_dword v11, v{vL16}, {srd(S_WS)}, s{sSRC} offen', 'hb')
        assert a.snapshot()[0] == endsnap[0], (a.snapshot(), endsnap)
        a.label(jn)
        a.restore(endsnap)
    a.wait_lg()
    st(a, 'gelu')

STAMPS = {}


def st(a, name):
    if name in STAMPS:
        stamp(a, STAMPS[name])


def gen_km(label, force_fallback=False):
    k1.SC = ' sc1'
    k1.HOOKS = {0: hook0, 8: hook8, 9: hook9, 11: hook11, 14: hook14, 15: hook15}
    k1.PREBAR = {11: prebar11}
    a = Asm()
    end = label + '_end'
    att = label + '_att'
    if OPT.get('st0'):
        a('s_memrealtime s[98:99]')
        a('s_memtime s[100:101]')
    prologue(a, end, None)
    build_srds(a, ['x', 'wq', 'w1', 'ws', 'w2', 'wo', 'b1', 'b2', 'out', 'dbg'])
    if not OPT.get('st0'):
        stamp(a, 0, 0)
    else:
        a('s_mov_b32 s68, s98')
        a('s_mov_b32 s69, s99')
        a('s_mov_b32 s88, s100')
        a('s_mov_b32 s89, s101')
    st(a, 'ka')
    start_extra(a)
    k1.setup(a)
    st(a, 'su1')
    g1 = label + '_g1'
    a(f's_cmp_eq_u32 s{sG}, 1')
    a(f's_cbranch_scc1 {g1}')
    snap0 = a.snapshot()
    joinsnap = None
    pre_n = OPT['kvpre']
    for g in (0, 1):
        if g == 1:
            a.label(g1)
            a.restore(snap0)
        if OPT.get('nb'):
            k1_new(a, g)
        else:
            i0, i1, pfpos = OPT.get('i0', 5), OPT.get('i1', 5), OPT.get('pfpos', 0)
            k1.INIT = i1
            for n in range(i0):
                for d in k1.dma_ops(a, n, g):
                    d()
            st(a, 'iss0')
            if OPT.get('pf') and pfpos == 0:
                prefetch(a)
            k1.setup2(a)
            st(a, 'su2')
            for n in range(i0, i1):
                for d in k1.dma_ops(a, n, g):
                    d()
            if OPT.get('pf') and pfpos == 1:
                prefetch(a)
            st(a, 'iss')
            for n in range(8):
                k1.p1_stage(a, n, g)
                if OPT.get('pf') and pfpos == n + 2:
                    prefetch(a)
                st(a, f'p1_{n}')
            k1.p1_epilogue(a, g)
            st(a, 'e1')
            if OPT.get('xdrain'):
                a('s_waitcnt vmcnt(0)')
                st(a, 'e1d')
            for n in range(8, 16):
                k1.p2_stage(a, n, g)
                st(a, f'p2_{n}')
            k1.p2_b_phase(a, 15, [[], [], [], []], [])
            k1.write_cs_partials(a, [(k1.vCSB, (3 + 2 * g + 1) * 512)])
            a.wait_all()
            a('s_barrier')
            fa_check(a)
            st(a, 'tail')
            k1.gelu_simple(a, g, 0, [q_load(a)] + [kv_dma(a, i) for i in range(pre_n)], 'ha')
            if g == 1:
                skip = a.newlabel('skipb')
                a(f's_cmp_eq_u32 s{k1.sPB}, 0')
                a(f's_cbranch_scc1 {skip}')
            k1.gelu_simple(a, g, 1, [], 'hb')
            if g == 1:
                jn = a.newlabel('joinb')
                a(f's_branch {jn}')
                a.label(skip)
                a(f'buffer_load_dword v10, v{vL16}, {srd(S_WS)}, s{sSRC} offen')
                a(f'buffer_load_dword v11, v{vL16}, {srd(S_WS)}, s{sSRC} offen')
                a.label(jn)
            a.wait_lg()
            st(a, 'gelu')
        if OPT.get('xdrain'):
            a('s_waitcnt vmcnt(0)')
            st(a, 'gelud')
        attention(a, g)
        if g == 0:
            a(f's_branch {att}')
            joinsnap = a.snapshot()
        else:
            assert a.snapshot() == joinsnap, (a.snapshot(), joinsnap)
    a.label(att)
    a.wait_lg()
    a(mfma32(RO, RV1, RP + 4, RO))
    fb = label + '_fb'
    fin = label + '_fin'
    a(f'v_mul_f32 v{vT}, 0, v{RO + 8}')
    for i in range(8):
        a(f'v_fma_f32 v{vT}, v{RO + i}, 0, v{vT}')
    a(f'v_cmp_u_f32 vcc, v{vT}, v{vT}')
    if force_fallback:
        a(f's_branch {fb}')
    else:
        a(f's_cbranch_vccnz {fb}')
    a.label(fin)
    a(f'v_rcp_f32 v{vT}, v{RO + 8}')
    for i in range(8):
        a(f'v_mul_f32 v{RO + i}, v{vT}, v{RO + i}')
    for i in range(4):
        a(f'v_cvt_pk_bf16_f32 v{RO + i}, v{RO + 2 * i}, v{RO + 2 * i + 1}')
    for i in range(4):
        a(f'v_min_u32 v{RO + i}, -2, v{RO + i}')
    a.vmem(f'buffer_store_dwordx4 v[{RO}:{RO + 3}], v{vL16}, {srd(S_WS)}, s{sOF} offen sc1', 'ost')
    st(a, 'oend')
    if OPT.get('xdrain'):
        a('s_waitcnt vmcnt(0)')
        st(a, 'oendd')
    if OPT.get('fs'):
        assert OPT['b2'] >= 18
        reduce_write4(a)
        st(a, 'ba')
    elif OPT.get('erw') == 2:
        assert OPT['b2'] >= 18
        g1l, jl = a.newlabel('rw_g1'), a.newlabel('rw_j')
        a(f's_cmp_eq_u32 s{sG}, 1')
        a(f's_cbranch_scc1 {g1l}')
        snap = a.snapshot()
        reduce_write2(a, 0)
        a('s_barrier')
        a(f's_branch {jl}')
        end0 = a.snapshot()
        a.label(g1l)
        a.restore(snap)
        a('s_barrier')
        reduce_write2(a, 1)
        assert a.snapshot() == end0
        a.label(jl)
        st(a, 'ba')
    else:
        a('s_barrier')
        st(a, 'ba')
        reduce_write(a)
    o_loads(a, True)
    a.wait_lg()
    a('s_barrier')
    st(a, 'bb')
    reduce_read_gate(a)
    st(a, 'gate')
    o_check(a)
    st(a, 'opoll')
    ob_write(a)
    a.wait_lg()
    a('s_barrier')
    st(a, 'bc')
    wo_gemm(a)
    st(a, 'wog')
    a.wait_lg()
    t = exchange(a, label)
    final(a, t)
    st(a, 'fin')
    a('s_waitcnt vmcnt(0)')
    stamp(a, 9, 1)
    if OPT.get('dbgst'):
        lbl = a.newlabel('nodbg')
        a(f's_cmp_lg_u32 s{sW}, {OPT["dbgst"] - 1}')
        a(f's_cbranch_scc1 {lbl}')
        a('s_mov_b64 exec, 1')
        a('v_not_b32 v2, s68')
        a(f'buffer_atomic_umax v2, off, {srd(S_DBG)}, 0 offset:20 sc1')
        for k in range(1, 10):
            a(f'v_mov_b32 v{2 + k}, s{68 + 2 * k}')
            a(f'buffer_atomic_umax v{2 + k}, off, {srd(S_DBG)}, 0 offset:{20 + 4 * k} sc1')
        a('s_waitcnt vmcnt(0)')
        a.label(lbl)
    else:
        stamp_flush(a, 0)
    a('s_endpgm')
    a.label(fb)
    fallback(a, fin)
    a.label(end)
    a('s_endpgm')
    return a
```

```python
from common import *
import k1
from k1 import fl

KM_LDS = 163840
LCNT = 163824
RED = 0
OB = 131072
FA = FL
FB = FL + 4096
FH = FL + 8192
LOG2E = 1.4426950408889634
SPIN = 20000

sT0, sT1, sT2, sT3 = 52, 53, 54, 55
sH, sTQ, sSRC, sMD = 20, 21, 22, 23
sTILE, sCG, sOF, sOP = 24, 25, 26, 27
sHS, sWSRC, sWO, sSPIN = 8, 9, 10, 11
sVM = 94
sCT, sKH = sTT, sG

vL16 = 1
aK0, aK1, aV0, aV1 = 2, 3, 4, 5
vT = 6
RQ, RK, RV0, RV1, RP = 12, 16, 20, 24, 28
NEGM = 36
RS = (52, 68)
RO = 84
ACC = 100
RING = 164
vX, vB2, vXO = 228, 232, 236
vG, vS = 240, 248
OP = 52

OPT = dict(u0=28, D=11, fbsig=5, prio=None, b2=24, kvpre=8, nofb=False)


def spin(a, site, load, check_ok):
    ok = a.newlabel('ok')
    lp = a.newlabel('spin')
    check_ok(ok)
    a(f's_mov_b32 s{sSPIN}, {SPIN}')
    a.label(lp)
    a('s_sleep 1')
    load()
    a('s_waitcnt vmcnt(0)')
    check_ok(ok)
    a(f's_sub_u32 s{sSPIN}, s{sSPIN}, 1')
    a(f's_cmp_lg_u32 s{sSPIN}, 0')
    a(f's_cbranch_scc1 {lp}')
    a(f'v_mov_b32 v{vT}, {site}')
    a(f'buffer_store_dword v{vT}, off, {srd(S_DBG)}, 0 offset:{4 * site}')
    a.label(ok)


def one_lane_store(a, reg, srdn, soff, val=1):
    a('s_mov_b64 exec, 1')
    a(f'v_mov_b32 v{reg}, {val}')
    a(f'buffer_store_dword v{reg}, off, {srd(srdn)}, {soff} sc1')
    a('s_mov_b64 exec, -1')


def start_extra(a):
    lbl = a.newlabel('noinit')
    a(f'''
v_mov_b32 v20, 0
v_mov_b32 v21, 0
v_mov_b32 v22, 0
v_mov_b32 v23, 0
v_mov_b32 v24, {LCNT}
''')
    a.ds('ds_write_b32 v24, v20', 'w')
    a(f'''
s_or_b32 s{sT0}, s2, s{sW}
s_cmp_lg_u32 s{sT0}, 0
s_cbranch_scc1 {lbl}
v_lshrrev_b32 v1, 2, v0
v_lshlrev_b32 v1, 8, v1
v_and_b32 v2, 3, v0
v_lshlrev_b32 v2, 4, v2
v_add_u32 v1, v1, v2
s_mov_b32 s{sT0}, {FA}
s_mov_b32 s{sT1}, {FB}
s_mov_b32 s{sT2}, {FH}
buffer_store_dwordx4 v[20:23], v1, {srd(S_WS)}, s{sT0} offen sc1
buffer_store_dwordx4 v[20:23], v1, {srd(S_WS)}, s{sT1} offen sc1
buffer_store_dwordx4 v[20:23], v1, {srd(S_WS)}, s{sT2} offen sc1
''')
    a.label(lbl)


def prefetch(a):
    pf = OPT['pf']
    a(f'''
s_lshl_b32 s{sT0}, s2, 3
s_add_u32 s{sT0}, s{sT0}, s{sW}
v_lshlrev_b32 v48, 4, v0
''')
    if pf & 1:
        a(f's_mul_i32 s{sT1}, s{sT0}, 768')
        a.vmem(f'buffer_load_dwordx4 v[52:55], v48, {srd(S_WQ)}, s{sT1} offen', 'pf')
    if pf & 2:
        a(f's_mul_i32 s{sT1}, s{sT0}, 896')
        a.vmem(f'buffer_load_dwordx4 v[56:59], v48, {srd(S_W1)}, s{sT1} offen', 'pf')
    if pf & 4:
        a(f's_lshl_b32 s{sT1}, s{sT0}, 10')
        a.vmem(f'buffer_load_dwordx4 v[60:63], v48, {srd(S_X)}, s{sT1} offen', 'pf')
    if pf & 8:
        a(f's_mul_i32 s{sT1}, s{sT0}, 896')
        a.vmem(f'buffer_load_dwordx4 v[56:59], v48, {srd(S_W2)}, s{sT1} offen', 'pf')
        a(f's_lshl_b32 s{sT1}, s{sT0}, 8')
        a.vmem(f'buffer_load_dword v60, v48, {srd(S_WO)}, s{sT1} offen', 'pf')


def hook0(a, g):
    st(a, 'c0')
    if g != 0:
        return
    lbl = a.newlabel('noinit2')
    a(f'''
s_or_b32 s{sT0}, s2, s{sW}
s_cmp_lg_u32 s{sT0}, 0
s_cbranch_scc1 {lbl}
''')
    one_lane_store(a, 20, S_DBG, 0)
    a.label(lbl)


def hook8(a, g, poi=92, tag='st'):
    a(f'''
s_lshl_b32 s{sT0}, s{sXCD}, 2
s_lshr_b32 s{sCG}, s{sSLOT}, 3
s_add_u32 s{sH}, s{sT0}, s{sCG}
s_and_b32 s{sT1}, s{sSLOT}, 7
s_lshl_b32 s{sTQ}, s{sT1}, 3
s_add_u32 s{sTQ}, s{sTQ}, s{sW}
s_lshl_b32 s{sMD}, s{sW}, 10
s_lshl_b32 s{sSRC}, s{sH}, 17
s_add_u32 s{sSRC}, s{sSRC}, {KV}
s_add_u32 s{sSRC}, s{sSRC}, s{sMD}
s_lshl_b32 s{sOF}, s{sTQ}, 5
s_add_u32 s{sOF}, s{sOF}, s{sH}
s_lshl_b32 s{sOF}, s{sOF}, 10
s_add_u32 s{sOF}, s{sOF}, {OF}
s_lshl_b32 s{sT0}, s{sXCD}, 3
s_add_u32 s{sTILE}, s{sT0}, s{sT1}
s_lshl_b32 s{sOP}, s{sTILE}, 3
s_add_u32 s{sOP}, s{sOP}, s{sW}
s_lshl_b32 s{sOP}, s{sOP}, 12
s_add_u32 s{sOP}, s{sOP}, {OF}
{f's_mul_i32 s{sT0}, s{sCT}, 28' if OPT.get('fs') else f's_mul_i32 s{sT0}, s{sW}, 14'}
s_mul_i32 s{sHS}, s{sTILE}, 112
s_add_u32 s{sHS}, s{sHS}, s{sT0}
s_lshl_b32 s{sHS}, s{sHS}, 10
s_add_u32 s{sHS}, s{sHS}, {HF}
s_lshl_b32 s{sWSRC}, s{sT0}, 4
s_lshl_b32 s{sT1}, s{sCG}, 2
s_add_u32 s{sWSRC}, s{sWSRC}, s{sT1}
{f's_add_u32 s{sWSRC}, s{sWSRC}, s{sKH}' if OPT.get('fs') else ''}
{f's_add_u32 s{sWSRC}, s{sWSRC}, s{sKH}' if OPT.get('fs') else ''}
s_lshl_b32 s{sWSRC}, s{sWSRC}, 10
s_add_u32 s{sWSRC}, s{sWSRC}, {WF}
s_lshl_b32 s{sWO}, s{sKH}, 4
s_add_u32 s{sWO}, s{sWO}, 112
s_lshl_b32 s{sWO}, s{sWO}, 4
s_add_u32 s{sWO}, s{sWO}, s{sT1}
s_add_u32 s{sWO}, s{sWO}, s{sCT}
s_lshl_b32 s{sWO}, s{sWO}, 10
s_add_u32 s{sWO}, s{sWO}, {WF}
v_mov_b32 v{poi}, -1
v_mov_b32 v{poi + 1}, -1
v_mov_b32 v{poi + 2}, -1
v_mov_b32 v{poi + 3}, -1
''')
    a.vmem(f'buffer_store_dwordx4 v[{poi}:{poi + 3}], v{vL16}, {srd(S_WS)}, s{sOF} offen sc1', tag)


def ini_load(a):
    return f'buffer_load_dword v92, off, {srd(S_DBG)}, 0 sc1'


def hook9(a, g):
    a.vmem(ini_load(a), 'ini')


def prebar11(a, g):
    a.wait_vm('ini')

    def chk(ok):
        a('v_cmp_eq_u32 vcc, 1, v92')
        a(f's_cbranch_vccnz {ok}')
    spin(a, 1, lambda: a(ini_load(a)), chk)


def hook11(a, g):
    if g == 0:
        lbl = a.newlabel('nofa')
        a(f'''
s_cmp_lg_u32 s{sW}, 0
s_cbranch_scc1 {lbl}
s_lshl_b32 s{sT0}, s{k1.sHP}, 8
s_lshl_b32 s{sT1}, s{k1.sTB}, 2
s_add_u32 s{sT0}, s{sT0}, s{sT1}
s_add_u32 s{sT0}, s{sT0}, {FA}
''')
        one_lane_store(a, 92, S_WS, f's{sT0}')
        a.label(lbl)
    k1.prep_finish(a)


def hook14(a, g):
    if g == 0:
        lbl = a.newlabel('nofw')
        a(f'''
s_cmp_lg_u32 s{sW}, 0
s_cbranch_scc1 {lbl}
s_lshr_b32 s{sT0}, s2, 4
s_lshl_b32 s{sT0}, s{sT0}, 8
s_and_b32 s{sT1}, s2, 15
s_lshl_b32 s{sT1}, s{sT1}, 2
s_add_u32 s{sT0}, s{sT0}, s{sT1}
s_add_u32 s{sT0}, s{sT0}, {FB}
''')
        one_lane_store(a, 92, S_WS, f's{sT0}')
        a.label(lbl)


def fa_load():
    return f'buffer_load_dword v93, v94, {srd(S_WS)}, s{sSPIN - 0 if False else sT1} offen sc1'


def fa_addr(a):
    a(f'''
s_lshr_b32 s{sT1}, s{sH}, 1
s_lshl_b32 s{sT1}, s{sT1}, 8
s_add_u32 s{sT1}, s{sT1}, {FA}
''')


def hook15(a, g):
    a('v_and_b32 v94, 15, v0')
    a('v_lshlrev_b32 v94, 2, v94')
    fa_addr(a)
    a.vmem(fa_load(), 'fa')


def fa_check(a):
    def chk(ok):
        a('v_cmp_ne_u32 vcc, 1, v93')
        a(f's_cbranch_vccz {ok}')

    def ld():
        fa_addr(a)
        a(fa_load())
    spin(a, 2, ld, chk)


def kv_dma(a, i):
    def f():
        a(f's_add_u32 m0, s{sMD}, {i * 8192}')
        a(f's_add_u32 s{sT2}, s{sSRC}, {i * 8192}')
        a.vmem(f'buffer_load_dwordx4 v{vL16}, {srd(S_WS)}, s{sT2} offen sc1 lds', f'kv{i}')
    return f


def q_load(a):
    def f():
        a(f'''
s_lshl_b32 s{sT2}, s{sH}, 6
s_add_u32 s{sT2}, s{sT2}, s{sTQ}
s_lshl_b32 s{sT2}, s{sT2}, 10
''')
        a.vmem(f'buffer_load_dwordx4 v[{RQ}:{RQ + 3}], v{vL16}, {srd(S_WS)}, s{sT2} offen sc1', 'q')
    return f


def k_read(a, t):
    ar, off = (aK0, t * 2048) if t < 32 else (aK1, (t - 32) * 2048)
    a.ds(f'ds_read_b128 v[{RK}:{RK + 3}], v{ar} offset:{off}', f'K{t}')


def v_reads(a, items):
    a(f's_mov_b64 exec, s[{sVM}:{sVM + 1}]')
    for part, t in items:
        ar, off = (aV0, t * 2048) if t < 32 else (aV1, (t - 32) * 2048)
        r = RV0 if part == 0 else RV1
        a.ds(f'ds_read_b128 v[{r}:{r + 3}], v{ar} offset:{off + part * 512}', f'V{part}_{t}')
    a('s_mov_b64 exec, -1')


def run(a, items):
    for it in items:
        emit(a, it)


def attn_step(a, t, nt, ev, mf, pre):
    S, Sn = RS[t % 2], RS[(t + 1) % 2]
    ex = [f'v_exp_f32 v{S + i}, v{S + i}' for i in range(16)]
    cv = [f'v_cvt_pk_bf16_f32 v{RP + i}, v{S + 2 * i}, v{S + 2 * i + 1}' for i in range(8)]
    run(a, pre.get(t, []))
    if t + 1 < nt:
        a.wait_lg(f'K{t + 1}')
        a(mfma32(Sn, RK, RQ, NEGM))
        if t + 2 < nt:
            k_read(a, t + 2)
    run(a, ev.get(2 * t, []))
    run(a, (ex[0], ex[1], ex[2], ex[3]))
    run(a, mf.get(2 * t, []))
    run(a, (cv[0], ex[4], ex[5], cv[1]))
    if t > 0:
        a.wait_lg(f'V1_{t - 1}')
        a(mfma32(RO, RV1, RP + 4, RO))
    run(a, (ex[6], ex[7], cv[2], ex[8], ex[9], cv[3], ex[10], ex[11]))
    a.wait_lg(f'V0_{t}')
    a(mfma32(RO, RV0, RP, '0' if t == 0 else RO))
    items = [(1, t)]
    if t + 1 < nt:
        items.append((0, t + 1))
    v_reads(a, items)
    run(a, ev.get(2 * t + 1, []))
    run(a, (cv[4], ex[12], ex[13], cv[5]))
    run(a, mf.get(2 * t + 1, []))
    run(a, (ex[14], ex[15], cv[6], cv[7]))


def row_max(a, S, dst, tmp):
    a(f'v_max3_f32 v{dst}, v{S}, v{S + 1}, v{S + 2}')
    a(f'v_max3_f32 v{tmp}, v{S + 3}, v{S + 4}, v{S + 5}')
    a(f'v_max3_f32 v{dst}, v{dst}, v{S + 6}, v{S + 7}')
    a(f'v_max3_f32 v{tmp}, v{tmp}, v{S + 8}, v{S + 9}')
    a(f'v_max3_f32 v{dst}, v{dst}, v{S + 10}, v{S + 11}')
    a(f'v_max3_f32 v{tmp}, v{tmp}, v{S + 12}, v{S + 13}')
    a(f'v_max3_f32 v{dst}, v{dst}, v{S + 14}, v{S + 15}')
    a(f'v_max_f32 v{dst}, v{dst}, v{tmp}')
    a(f'v_mov_b32 v{tmp}, v{dst}')
    a(f'v_permlane32_swap_b32 v{dst}, v{tmp}')
    a(f'v_max_f32 v{dst}, v{dst}, v{tmp}')


def fallback(a, done_label):
    a.comment('--- fallback: online softmax with the running true maximum')
    loop = a.newlabel('fb_loop')
    S = RS[0]
    vm, vmn, val, va, vb = vT, vT + 1, vT + 2, vT + 3, vT + 4
    a(f'v_mov_b32 v{vm}, 0xff800000')
    for i in range(16):
        a(f'v_mov_b32 v{RO + i}, 0')
    a(f'v_mov_b32 v{va}, v{aK0}')
    a(f'v_mov_b32 v{vb}, v{aV0}')
    a(f's_mov_b32 s{sT0}, 64')
    a.label(loop)
    a(f'ds_read_b128 v[{RK}:{RK + 3}], v{va}')
    a(f's_mov_b64 exec, s[{sVM}:{sVM + 1}]')
    a(f'ds_read_b128 v[{RV0}:{RV0 + 3}], v{vb}')
    a(f'ds_read_b128 v[{RV1}:{RV1 + 3}], v{vb} offset:512')
    a('s_mov_b64 exec, -1')
    a('s_waitcnt lgkmcnt(0)')
    a(mfma32(S, RK, RQ, '0'))
    a(f'v_add_u32 v{va}, 0x800, v{va}')
    a(f'v_add_u32 v{vb}, 0x800, v{vb}')
    row_max(a, S, vmn, val)
    a(f'v_max_f32 v{vmn}, v{vmn}, v{vm}')
    a(f'v_sub_f32 v{val}, v{vm}, v{vmn}')
    a(f'v_exp_f32 v{val}, v{val}')
    a(f'v_mov_b32 v{vm}, v{vmn}')
    for i in range(16):
        a(f'v_sub_f32 v{S + i}, v{S + i}, v{vmn}')
    for i in range(16):
        a(f'v_exp_f32 v{S + i}, v{S + i}')
    for i in range(16):
        a(f'v_mul_f32 v{RO + i}, v{val}, v{RO + i}')
    for i in range(8):
        a(f'v_cvt_pk_bf16_f32 v{RP + i}, v{S + 2 * i}, v{S + 2 * i + 1}')
    a(mfma32(RO, RV0, RP, RO))
    a(mfma32(RO, RV1, RP + 4, RO))
    a(f's_sub_u32 s{sT0}, s{sT0}, 1')
    a(f's_cmp_lg_u32 s{sT0}, 0')
    a(f's_cbranch_scc1 {loop}')
    a(f's_branch {done_label}')


def slot(i):
    return RING + 4 * (i % 16)


def nper():
    return (3, 28) if OPT.get('fs') else (5, 14)


def stream_load(a, i):
    np_, ns = nper()
    nf = np_ * ns

    def f():
        if OPT.get('xnl') and i < nf:
            return
        if i < nf:
            s, j = divmod(i, np_)
            if j == 0:
                a(f's_add_u32 s{sT2}, s{sHS}, {s * 1024}')
                a.vmem(f'buffer_load_dwordx4 v[{slot(i)}:{slot(i) + 3}], v{vL16}, {srd(S_WS)}, s{sT2} offen sc1', f'f{i}')
            else:
                if j == 1:
                    a(f's_add_u32 s{sT3}, s{sWSRC}, {s * 16384}')
                a.vmem(f'buffer_load_dwordx4 v[{slot(i)}:{slot(i) + 3}], v{vL16}, {srd(S_WS)}, s{sT3} offen '
                       f'offset:{(j - 1) * 1024} sc1', f'f{i}')
        else:
            k = i - nf
            if OPT.get('own'):
                a(f's_lshl_b32 s{sT2}, s{sCT}, 2')
                a(f's_add_u32 s{sT2}, s{sT2}, {k}')
                a(f's_and_b32 s{sT2}, s{sT2}, 15')
                a(f's_lshl_b32 s{sT2}, s{sT2}, 14')
                a(f's_add_u32 s{sT2}, s{sT2}, s{sWO}')
            else:
                a(f's_add_u32 s{sT2}, s{sWO}, {k * 16384}')
            a.vmem(f'buffer_load_dwordx4 v[{slot(i)}:{slot(i) + 3}], v{vL16}, {srd(S_WS)}, s{sT2} offen sc1', 'wo')
    return f


def stream_mfma(a, s, j):
    def f():
        np_ = nper()[0]
        iw, ih = np_ * s + 1 + j, np_ * s
        if not OPT.get('xnw'):
            a.wait_vm(f'f{iw}')
        else:
            a.vm = [t for t in a.vm if t != f'f{iw}' and t != f'f{ih}']
        if OPT.get('xnm'):
            return
        a(mfma32(ACC + 16 * j, slot(iw), slot(ih), '0' if s == 0 else None))
    return f


def side_loads(a):
    a(f'''
s_lshl_b32 s{sT0}, s{sCG}, 8
s_lshl_b32 s{sT1}, s{sCT}, 6
s_add_u32 s{sT0}, s{sT0}, s{sT1}
s_lshl_b32 s{sT1}, s{sKH}, 5
s_add_u32 s{sT0}, s{sT0}, s{sT1}
v_lshrrev_b32 v{vT}, 5, v0
v_lshlrev_b32 v{vT}, 3, v{vT}
v_add_u32 v{vT}, s{sT0}, v{vT}
v_and_b32 v{vT + 1}, 31, v0
v_lshlrev_b32 v{vT + 1}, 10, v{vT + 1}
s_lshl_b32 s{sT1}, s{sTILE}, 15
v_add3_u32 v{vT + 1}, v{vT + 1}, v{vT}, s{sT1}
''')
    a.vmem(f'buffer_load_dwordx2 v[{vB2}:{vB2 + 1}], v{vT}, {srd(S_B2)}, 0 offen', 'side')
    a.vmem(f'buffer_load_dwordx2 v[{vB2 + 2}:{vB2 + 3}], v{vT}, {srd(S_B2)}, 0 offen offset:16', 'side')
    a.vmem(f'buffer_load_dwordx2 v[{vX}:{vX + 1}], v{vT + 1}, {srd(S_X)}, 0 offen', 'side')
    a.vmem(f'buffer_load_dwordx2 v[{vX + 2}:{vX + 3}], v{vT + 1}, {srd(S_X)}, 0 offen offset:16', 'side')
    a(f'''
v_lshrrev_b32 v{vT + 2}, 5, v0
v_lshlrev_b32 v{vT + 2}, 4, v{vT + 2}
v_and_b32 v{vXO}, 31, v0
v_lshlrev_b32 v{vXO}, 10, v{vXO}
s_add_u32 s{sT0}, s{sT0}, s{sT1}
v_add3_u32 v{vXO}, v{vXO}, v{vT + 2}, s{sT0}
''')
    if OPT.get('otouch'):
        a.vmem(f'buffer_load_dword v{vXO + 1}, v{vXO}, {srd(S_OUT)}, 0 offen', 'side')


def fb_signal_1(a):
    a.wait_vm('hb')
    a(f'''
v_mov_b32 v{vT}, {LCNT}
v_mov_b32 v{vT + 1}, 1
s_mov_b64 exec, 1
''')
    a.ds(f'ds_add_rtn_u32 v{vT + 1}, v{vT}, v{vT + 1}', 'cnt')
    a('s_mov_b64 exec, -1')


def fb_signal_2(a):
    lbl = a.newlabel('nofb')
    a.wait_lg('cnt')
    a(f'''
v_readfirstlane_b32 s{sT0}, v{vT + 1}
s_cmp_lg_u32 s{sT0}, 7
s_cbranch_scc1 {lbl}
s_lshl_b32 s{sT0}, s{k1.sTB}, 8
s_lshl_b32 s{sT1}, s{k1.sHP}, 2
s_add_u32 s{sT0}, s{sT0}, s{sT1}
s_add_u32 s{sT0}, s{sT0}, {FH}
''')
    one_lane_store(a, vT + 1, S_WS, f's{sT0}')
    a.label(lbl)


def fb_load(a):
    return [f'buffer_load_dwordx4 v[8:11], v{vT}, {srd(S_WS)}, s{sT1} offen sc1',
            f'buffer_load_dword v{vX}, v{vT + 1}, {srd(S_WS)}, s{sT0} offen sc1']


def fb_addr(a):
    a(f'''
s_mov_b32 s{sT1}, {FB}
s_lshr_b32 s{sT0}, s{sTILE}, 2
s_lshl_b32 s{sT0}, s{sT0}, 8
s_add_u32 s{sT0}, s{sT0}, {FH}
''')


def fb_poll(a):
    a(f'''
v_lshrrev_b32 v{vT}, 2, v0
v_lshlrev_b32 v{vT}, 8, v{vT}
v_and_b32 v{vT + 1}, 3, v0
v_lshlrev_b32 v{vT + 1}, 4, v{vT + 1}
v_add_u32 v{vT}, v{vT}, v{vT + 1}
v_and_b32 v{vT + 1}, 15, v0
v_lshlrev_b32 v{vT + 1}, 2, v{vT + 1}
''')
    fb_addr(a)
    for x in fb_load(a):
        a.vmem(x, 'fb')


def fb_check(a):
    a.wait_vm('fb')

    def chk(ok):
        a('v_and_b32 v8, v8, v9')
        a('v_and_b32 v10, v10, v11')
        a('v_and_b32 v8, v8, v10')
        a(f'v_and_b32 v8, v8, v{vX}')
        a('v_cmp_ne_u32 vcc, 1, v8')
        a(f's_cbranch_vccz {ok}')

    def ld():
        fb_addr(a)
        for x in fb_load(a):
            a(x)
    spin(a, 3, ld, chk)


def o_loads(a, tracked):
    for i in range(4):
        t = f'buffer_load_dwordx4 v[{OP + 4 * i}:{OP + 4 * i + 3}], v{vL16}, {srd(S_WS)}, s{sOP} offen offset:{1024 * i} sc1'
        if tracked:
            a.vmem(t, 'op')
        else:
            a(t)


def o_check(a):
    a.wait_vm('op')

    def chk(ok):
        for i in range(4):
            r = OP + 4 * i
            a(f'v_max3_u32 v{vT + i}, v{r}, v{r + 1}, v{r + 2}')
            a(f'v_max_u32 v{vT + i}, v{vT + i}, v{r + 3}')
        a(f'v_max3_u32 v{vT}, v{vT}, v{vT + 1}, v{vT + 2}')
        a(f'v_max_u32 v{vT}, v{vT}, v{vT + 3}')
        a(f'v_cmp_eq_u32 vcc, -1, v{vT}')
        a(f's_cbranch_vccz {ok}')
    spin(a, 4, lambda: o_loads(a, False), chk)


def reduce_write(a):
    a(f's_lshl_b32 s{sT0}, s{sW}, 14')
    a(f'v_add_u32 v{vT}, s{sT0}, v{vL16}')
    for k in range(16):
        a.ds(f'ds_write_b128 v{vT}, v[{ACC + 4 * k}:{ACC + 4 * k + 3}] offset:{k * 1024}', 'rw')


PART = [0, 16384, 131072, 147456, 32768, 49152, 65536, 81920]


def reduce_write2(a, g):
    if g == 0:
        a(f's_lshl_b32 s{sT0}, s{sW}, 14')
        a(f's_cmp_ge_u32 s{sW}, 2')
        a(f's_cselect_b32 s{sT1}, {131072 - 32768}, 0')
        a(f's_add_u32 s{sT0}, s{sT0}, s{sT1}')
    else:
        a(f's_lshl_b32 s{sT0}, s{sW}, 14')
        a(f's_sub_u32 s{sT0}, s{sT0}, {65536 - 32768}')
    a(f'v_add_u32 v{vT}, s{sT0}, v{vL16}')
    for k in range(16):
        a.ds(f'ds_write_b128 v{vT}, v[{ACC + 4 * k}:{ACC + 4 * k + 3}] offset:{k * 1024}', 'rw')


def part_base(w):
    return w * 8192 if w < 4 else 131072 + (w - 4) * 8192


def reduce_write4(a):
    a(f's_lshl_b32 s{sT0}, s{sCT}, 13')
    a(f's_lshl_b32 s{sT1}, s{sKH}, 17')
    a(f's_add_u32 s{sT0}, s{sT0}, s{sT1}')
    a(f'v_add_u32 v{vT}, s{sT0}, v{vL16}')
    for k in range(8):
        a.ds(f'ds_write_b128 v{vT}, v[{ACC + 4 * k}:{ACC + 4 * k + 3}] offset:{k * 1024}', 'rw')


def reduce_read_gate4(a):
    a(f'''
s_lshr_b32 s{sT0}, s{sCT}, 1
s_lshl_b32 s{sT0}, s{sT0}, 17
s_and_b32 s{sT1}, s{sCT}, 1
s_lshl_b32 s{sT1}, s{sT1}, 12
s_add_u32 s{sT0}, s{sT0}, s{sT1}
s_lshl_b32 s{sT1}, s{sKH}, 11
s_add_u32 s{sT0}, s{sT0}, s{sT1}
v_add_u32 v{vT}, s{sT0}, v{vL16}
''')
    t = ACC
    for q in range(4):
        for e in range(2):
            d = t + 8 * q + 4 * e
            a.ds(f'ds_read_b128 v[{d}:{d + 3}], v{vT} offset:{q * 8192 + e * 1024}', f'r{q}')
    gate_math(a, t, 4)


def gate_math(a, t, n):
    a.wait_vm('side')
    if OPT.get('opos') == 2:
        o_loads(a, True)
    for e in range(2):
        for h in range(2):
            a(f'v_lshlrev_b32 v{vG + 4 * e + 2 * h}, 16, v{vB2 + 2 * e + h}')
            a(f'v_and_b32 v{vG + 4 * e + 2 * h + 1}, 0xffff0000, v{vB2 + 2 * e + h}')
    for w in range(n):
        a.wait_lg(f'r{w}')
        for k in range(8):
            a(f'v_add_f32 v{vG + k}, v{vG + k}, v{t + 8 * w + k}')
    if OPT.get('opos') == 3:
        o_loads(a, True)
    for k in range(8):
        a(f'v_mul_f32 v{t + k}, {fl(-LOG2E)}, v{vG + k}')
    for k in range(8):
        a(f'v_exp_f32 v{t + k}, v{t + k}')
    for k in range(8):
        a(f'v_add_f32 v{t + k}, 1.0, v{t + k}')
    for k in range(8):
        a(f'v_rcp_f32 v{t + k}, v{t + k}')
    for k in range(8):
        a(f'v_mul_f32 v{vG + k}, v{vG + k}, v{t + k}')


def reduce_read_gate(a):
    if OPT.get('fs'):
        return reduce_read_gate4(a)
    early = OPT.get('erw') == 2
    a(f'''
s_lshl_b32 s{sT0}, s{sCT}, 12
s_lshl_b32 s{sT1}, s{sKH}, 11
s_add_u32 s{sT0}, s{sT0}, s{sT1}
v_add_u32 v{vT}, s{sT0}, v{vL16}
v_add_u32 v{vT + 1}, 0x10000, v{vT}
''')
    if early:
        a(f'v_add_u32 v{vT + 2}, 0x20000, v{vT}')
    t = ACC
    for w in range(8):
        for e in range(2):
            if early:
                p = PART[w]
                ar, off = vT + p // 65536, p % 65536 + e * 1024
            else:
                ar, off = (vT if w < 4 else vT + 1), (w % 4) * 16384 + e * 1024
            d = t + 8 * w + 4 * e
            a.ds(f'ds_read_b128 v[{d}:{d + 3}], v{ar} offset:{off}', f'r{w}')
    a.wait_vm('side')
    for e in range(2):
        for h in range(2):
            a(f'v_lshlrev_b32 v{vG + 4 * e + 2 * h}, 16, v{vB2 + 2 * e + h}')
            a(f'v_and_b32 v{vG + 4 * e + 2 * h + 1}, 0xffff0000, v{vB2 + 2 * e + h}')
    for w in range(8):
        a.wait_lg(f'r{w}')
        for k in range(8):
            a(f'v_add_f32 v{vG + k}, v{vG + k}, v{t + 8 * w + k}')
    for k in range(8):
        a(f'v_mul_f32 v{t + k}, {fl(-LOG2E)}, v{vG + k}')
    for k in range(8):
        a(f'v_exp_f32 v{t + k}, v{t + k}')
    for k in range(8):
        a(f'v_add_f32 v{t + k}, 1.0, v{t + k}')
    for k in range(8):
        a(f'v_rcp_f32 v{t + k}, v{t + k}')
    for k in range(8):
        a(f'v_mul_f32 v{vG + k}, v{vG + k}, v{t + k}')


def ob_base():
    if OPT.get('fs'):
        return 32768
    return 98304 if OPT.get('erw') == 2 else OB


def ob_write(a):
    a(f's_lshl_b32 s{sT0}, s{sW}, 12')
    a(f's_add_u32 s{sT0}, s{sT0}, {ob_base()}')
    a(f'v_add_u32 v{vT}, s{sT0}, v{vL16}')
    for i in range(4):
        a.ds(f'ds_write_b128 v{vT}, v[{OP + 4 * i}:{OP + 4 * i + 3}] offset:{i * 1024}', 'ow')


def wo_own(a):
    nf = nper()[0] * nper()[1]
    a.wait_vm('wo')
    for i in range(4):
        a(mfma32(RO, slot(nf + i), OP + 4 * i, '0' if i == 0 else None))


def wo_rest(a):
    nf = nper()[0] * nper()[1]
    bb = ACC
    for n in range(1, 4):
        a(f's_add_u32 s{sT0}, s{sCT}, {n}')
        a(f's_and_b32 s{sT0}, s{sT0}, 3')
        a(f's_lshl_b32 s{sT0}, s{sT0}, 12')
        a(f's_lshl_b32 s{sT1}, s{sKH}, 14')
        a(f's_add_u32 s{sT0}, s{sT0}, s{sT1}')
        a(f's_add_u32 s{sT0}, s{sT0}, {ob_base()}')
        a(f'v_add_u32 v{vT + n}, s{sT0}, v{vL16}')
    return bb


def wo_rest2(a, bb):
    nf = nper()[0] * nper()[1]
    for n in range(1, 4):
        for i in range(4):
            k = 4 * n + i
            a.ds(f'ds_read_b128 v[{bb + 4 * k}:{bb + 4 * k + 3}], v{vT + n} offset:{i * 1024}', f'o{k}')
    for k in range(4, 16):
        a.wait_lg(f'o{k}')
        a(mfma32(RO, slot(nf + k), bb + 4 * k, None))


def wo_gemm(a):
    a(f's_lshl_b32 s{sT0}, s{sKH}, 14')
    a(f's_add_u32 s{sT0}, s{sT0}, {ob_base()}')
    a(f'v_add_u32 v{vT}, s{sT0}, v{vL16}')
    bb = ACC
    for i in range(16):
        a.ds(f'ds_read_b128 v[{bb + 4 * i}:{bb + 4 * i + 3}], v{vT} offset:{i * 1024}', f'o{i}')
    a.wait_vm('wo')
    for i in range(16):
        a.wait_lg(f'o{i}')
        a(mfma32(RO, slot(nper()[0] * nper()[1] + i), bb + 4 * i, '0' if i == 0 else None))


def exchange(a, label):
    k1l = label + '_kh1'
    j = label + '_khj'
    a(f'''
s_lshl_b32 s{sT0}, s{sW}, 11
v_add_u32 v{vT}, s{sT0}, v{vL16}
s_xor_b32 s{sT0}, s{sW}, 4
s_lshl_b32 s{sT0}, s{sT0}, 11
v_add_u32 v{vT + 1}, s{sT0}, v{vL16}
s_cmp_eq_u32 s{sKH}, 1
s_cbranch_scc1 {k1l}
''')
    for kh in (0, 1):
        if kh == 1:
            a.label(k1l)
        send = RO + (8 if kh == 0 else 0)
        keep = RO + (0 if kh == 0 else 8)
        a(f'ds_write_b128 v{vT}, v[{send}:{send + 3}]')
        a(f'ds_write_b128 v{vT}, v[{send + 4}:{send + 7}] offset:1024')
        for k in range(8):
            a(f'v_mov_b32 v{vS + k}, v{keep + k}')
        if kh == 0:
            a(f's_branch {j}')
    a.label(j)
    a('s_waitcnt lgkmcnt(0)')
    a('s_barrier')
    t = ACC
    a(f'ds_read_b128 v[{t}:{t + 3}], v{vT + 1}')
    a(f'ds_read_b128 v[{t + 4}:{t + 7}], v{vT + 1} offset:1024')
    return t


def final(a, t):
    u = ACC + 32
    for k in range(4):
        a(f'v_lshlrev_b32 v{u + 2 * k}, 16, v{vX + k}')
        a(f'v_and_b32 v{u + 2 * k + 1}, 0xffff0000, v{vX + k}')
    a('s_waitcnt lgkmcnt(0)')
    for k in range(8):
        a(f'v_add_f32 v{vS + k}, v{vS + k}, v{t + k}')
    for k in range(8):
        a(f'v_fma_f32 v{vS + k}, v{vS + k}, v{vG + k}, v{u + k}')
    for k in range(4):
        a(f'v_cvt_pk_bf16_f32 v{vS + k}, v{vS + 2 * k}, v{vS + 2 * k + 1}')
    a(f'v_permlane32_swap_b32 v{vS}, v{vS + 2}')
    a(f'v_permlane32_swap_b32 v{vS + 1}, v{vS + 3}')
    a.vmem(f'buffer_store_dwordx4 v[{vS}:{vS + 3}], v{vXO}, {srd(S_OUT)}, 0 offen', 'st')


def prio_plan(g):
    p = OPT.get('pr', 0)
    if p == 0:
        return lambda t: None
    if g == 1:
        return lambda t: 1 if t == 0 else None
    pat = {1: [2, 2, 2, 0], 2: [2, 2, 0], 3: [2, 0], 4: [2, 2, 2, 2, 0], 5: [2, 2, 2, 2, 2, 0, 0], 6: [0],
           7: [2, 2, 2, 0, 0]}[p]
    return lambda t: pat[t % len(pat)] if (t == 0 or pat[t % len(pat)] != pat[(t - 1) % len(pat)]) else None


def attention(a, g):
    pre_n = OPT['kvpre']
    a(f'''
v_mov_b32 v{aK0}, v{vL16}
v_add_u32 v{aK1}, 0x10000, v{vL16}
v_and_b32 v{vT}, 15, v0
v_lshrrev_b32 v{vT + 1}, 5, v0
v_lshlrev_b32 v{vT + 1}, 4, v{vT + 1}
v_add_u32 v{vT}, v{vT}, v{vT + 1}
v_lshlrev_b32 v{vT}, 4, v{vT}
v_add_u32 v{aV0}, 0x400, v{vT}
v_add_u32 v{aV1}, 0x10400, v{vT}
s_mov_b32 s{sVM}, 0xffff
s_mov_b32 s{sVM + 1}, 0xffff
''')
    if OPT.get('ones2', 1):
        a(f'v_and_b32 v{vT}, 27, v0')
        a(f'v_cmp_eq_u32 vcc, 16, v{vT}')
        a(f'v_mov_b32 v{vT}, 0x3f803f80')
        for i in range(4):
            a(f'v_cndmask_b32 v{RV0 + i}, 0, v{vT}, vcc')
            a(f'v_cndmask_b32 v{RV1 + i}, 0, v{vT}, vcc')
    else:
        for i in range(4):
            a(f'v_mov_b32 v{RV0 + i}, 0x3f803f80')
            a(f'v_mov_b32 v{RV1 + i}, 0x3f803f80')
    b1 = OPT.get('b1', pre_n)
    if OPT.get('nob1'):
        a.wait_vm('q')
    else:
        a.wait_vm(['q'] + [f'kv{i}' for i in range(b1)])
        a('s_barrier')
    st(a, 'b1')
    ev, mf, pre = {}, {}, {}
    add = lambda d, k, x: d.setdefault(k, []).append(x)
    k_read(a, 0)
    v_reads(a, [(0, 0)])
    a.wait_lg('K0')
    a(mfma32(RS[0], RK, RQ, '0'))
    row_max(a, RS[0], vT, vT + 1)
    for i in range(16):
        a(f'v_sub_f32 v{NEGM + i}, 0, v{vT}')
    a(mfma32(RS[0], RK, RQ, NEGM))
    k_read(a, 1)
    for i in range(pre_n, 16):
        add(ev, 2 * (i - pre_n), kv_dma(a, i))
    if b1 < pre_n and OPT['b2'] > 4 * b1 - 2:
        tb = 4 * b1 - 2
        add(pre, tb, lambda: (a.wait_vm([f'kv{i}' for i in range(pre_n)]), a('s_barrier')))
    tb2 = OPT['b2']
    assert tb2 <= 4 * pre_n - 2 and tb2 >= 2 * (15 - pre_n) + 1
    add(pre, tb2, lambda: (a.wait_vm([f'kv{i}' for i in range(16)]), a('s_barrier')))
    fs = OPT['fbsig']
    add(pre, fs, lambda: fb_signal_1(a))
    add(pre, fs + 1, lambda: fb_signal_2(a))
    u0, D = OPT['u0'], OPT['D']
    add(ev, u0 - 5, lambda: fb_poll(a))
    add(pre, u0 // 2, lambda: fb_check(a))
    np_, ns = nper()
    nl = np_ * ns + 16
    num, den = OPT.get('rnum', 1), OPT.get('rden', 1)
    U = lambda i: u0 + (i * num) // den
    last_use = {}
    for s in range(ns):
        for j in range(np_ - 1):
            um = U(np_ * s + 1 + j) + D
            add(mf, um, stream_mfma(a, s, j))
            last_use[np_ * s + 1 + j] = um
            last_use[np_ * s] = um
    for i in range(nl):
        add(ev, U(i), stream_load(a, i))
        if i >= 16:
            assert U(i) > last_use[i - 16], (i, U(i), last_use[i - 16])
    assert max(last_use.values()) < 128
    us = min(U(nl + 1), 127)
    add(ev, us, lambda: side_loads(a))
    assert U(nl - 1) <= us
    pp = prio_plan(g)
    for t in range(64):
        if pp(t) is not None:
            pre.setdefault(t, []).insert(0, f's_setprio {pp(t)}')
    for t in range(64):
        attn_step(a, t, 64, ev, mf, pre)
        st(a, f'a{t}')
    if OPT.get('pr', 0):
        a('s_setprio 0')


vINI, vFAA, vFAD = 6, 22, 23
vPOI = 24


def nb_hook6(a, g):
    a.vmem(f'buffer_load_dword v{vINI}, off, {srd(S_DBG)}, 0 sc1', 'ini')


def nb_ini_check(a, g):
    a.wait_vm('ini')

    def chk(ok):
        a(f'v_cmp_eq_u32 vcc, 1, v{vINI}')
        a(f's_cbranch_vccnz {ok}')
    spin(a, 1, lambda: a(f'buffer_load_dword v{vINI}, off, {srd(S_DBG)}, 0 sc1'), chk)


def flag_ops(addr):
    return [x.strip() for x in addr.strip().split('\n')] + [
        f's_cmp_eq_u32 s{sW}, 0',
        's_cselect_b64 exec, 1, 0',
        f'v_mov_b32 v{vINI}, 1',
        f'buffer_store_dword v{vINI}, off, {srd(S_WS)}, s{sT0} sc1',
        's_mov_b64 exec, -1']


def fa_signal_ops():
    return [flag_ops(f'''
s_lshl_b32 s{sT0}, s{k1.sHP}, 8
s_lshl_b32 s{sT1}, s{k1.sTB}, 2
s_add_u32 s{sT0}, s{sT0}, s{sT1}
s_add_u32 s{sT0}, s{sT0}, {FA}
''')][0]


def fw_signal_ops():
    return flag_ops(f'''
s_lshr_b32 s{sT0}, s2, 4
s_lshl_b32 s{sT0}, s{sT0}, 8
s_and_b32 s{sT1}, s2, 15
s_lshl_b32 s{sT1}, s{sT1}, 2
s_add_u32 s{sT0}, s{sT0}, s{sT1}
s_add_u32 s{sT0}, s{sT0}, {FB}
''')


def nb_prebar_st(a, g):
    a.wait_vm('st')


def nb_prebar14(a, g):
    a.wait_vm(['pst', 'poi'])


def nb_fa_load():
    return f'buffer_load_dword v{vFAD}, v{vFAA}, {srd(S_WS)}, s{sT1} offen sc1'


def nb_hook15(a, g):
    a(f'v_and_b32 v{vFAA}, 15, v0')
    a(f'v_lshlrev_b32 v{vFAA}, 2, v{vFAA}')
    fa_addr(a)
    a.vmem(nb_fa_load(), 'fa')


def nb_fa_check(a):
    def chk(ok):
        a(f'v_cmp_ne_u32 vcc, 1, v{vFAD}')
        a(f's_cbranch_vccz {ok}')

    def ld():
        fa_addr(a)
        a(nb_fa_load())
    spin(a, 2, ld, chk)


def k1_new(a, g):
    import k1b
    k1b.OPT = OPT
    fas = OPT.get('fas', 12)
    k1b.HOOKS = {0: hook0, 6: nb_hook6}
    k1b.PREBAR = {fas: nb_prebar_st, 14: nb_prebar14}
    pre_n = OPT['kvpre']
    k1b.rot_setup(a)
    for d in k1b.dma_ops(a, 0, g):
        d()
    st(a, 'iss0')
    k1b.setup2(a)
    st(a, 'su2')
    i1, dep, ramp = OPT.get('i1', 3), OPT.get('dep', 3), OPT.get('ramp', 1)
    for n in range(1, i1):
        for d in k1b.dma_ops(a, n, g):
            d()
    nxt = i1
    for n in range(8):
        k1b.SCHED[n] = []
        while nxt <= n + dep and (len(k1b.SCHED[n]) < ramp or nxt <= n + 1):
            k1b.SCHED[n].append(nxt)
            nxt += 1
    late = list(range(nxt, 15))
    st(a, 'iss')
    pfpos = OPT.get('pfpos', 2)
    for n in range(8):
        k1b.p1_stage(a, n, g)
        if OPT.get('pf') and pfpos == n + 2:
            prefetch(a)
        st(a, f'p1_{n}')
    ne1 = OPT.get('ne1', 2)
    e1m = OPT.get('e1m', 0)
    d_e1 = [d for c in late[:ne1] for d in k1b.dma_ops(a, c, g)]
    if not e1m:
        k1b.e1a(a, g, d_e1, nb_ini_check)
        st(a, 'e1')
    late = late[ne1:]
    fill = {n: [[] for _ in range(8)] for n in range(8, 17)}
    e1b = k1b.e1b_ops(a, g)
    n8 = OPT.get('n8', 2)
    d13 = [d for c in late[:n8] for d in k1b.dma_ops(a, c, g)]
    late = late[n8:]
    w8 = OPT.get('w8', 2)
    slots = [(8, i) for i in range(4) for _ in range(w8)] + [(8, i) for i in range(4, 8)] + [(9, i) for i in range(8)]
    if e1m:
        slots = [(8, 0)] * OPT.get('wm', 3) + [(9, i) for i in range(8)] + [(10, i) for i in range(OPT.get('n10', 4))]
    if g == 1:
        slots = slots[:len(slots) - OPT.get('e1short', 4)]
    parts = k1b.split_even(e1b, len(slots))
    for i in range(len(d13)):
        fill[8][i].append(d13[i])
    for k, c in enumerate(late):
        dd = k1b.dma_ops(a, c, g)
        sk = 9 + k * OPT.get('lstep', 1) + OPT.get('l0', 0)
        if OPT.get('lmap'):
            sk = 9 + int(str(OPT['lmap'])[1 + k])
        assert sk <= c - 1
        fill[sk][OPT.get('lg0', 1)].insert(0, dd[0])
        fill[sk][OPT.get('lg1', 5)].insert(0, dd[1])
    for (n, i), p in zip(slots, parts):
        fill[n][i] += p
    d15 = k1b.dma_ops(a, 15, g)
    s15 = OPT.get('d15s', 10)
    fill[s15][OPT.get('dg0', 1)].append(d15[0])
    fill[s15][OPT.get('dg1', 5)].append(d15[1])
    if OPT.get('prs'):
        fill[OPT['prs']][OPT.get('prg', 7)].append(lambda: k1b.prep_issue(a))
    ids = record(a, lambda r: hook8(r, g, vPOI, 'poi'))
    for i, p in enumerate(k1b.split_even(ids, 8)):
        fill[10][i] += p
    addr, reads, stores = k1b.prep_finish_ops(a, 'pst')
    for i, p in enumerate(k1b.split_even(addr, 3)):
        fill[11][i] += p
    fill[11][3] += reads
    fill[11][6] += stores
    if g == 0:
        fill[fas][0] = fa_signal_ops() + fill[fas][0]
        fill[14][0] = fw_signal_ops() + fill[14][0]
    ekv = OPT.get('ekv', 0)
    nek = OPT.get('nek', 6) if ekv else 0
    if not ekv:
        fill[15][0] = record(a, lambda r: nb_hook15(r, g)) + fill[15][0]
    else:
        pg, cg = {1: (0, 8), 2: (4, 12), 3: (2, 10), 4: (0, 10), 5: (0, 12), 6: (4, 14), 7: (-4, 4), 8: (-2, 6),
                  9: (-6, 2)}[ekv]
        at = lambda x: fill[14 + x // 8][x % 8]
        ekv_poll = record(a, lambda r: nb_hook15(r, g))
        ekv_at = (pg, cg)
    fill[11][7] += k1b.cs_write_ops(a, [(k1.vCSA, (3 + 2 * g) * 512)])
    prep = k1b.gelu_prep(a, g, 0) + k1b.gelu_consts()
    first, per = k1b.gelu_tile_ops(a, k1.AC_A, 'ga')
    pp = k1b.split_even(prep + first, 4)
    for i in range(4):
        fill[12][i] += pp[i]
    gl = [o for q in per for o in q]
    gs = OPT.get('gstart', 5)
    slots = [(12, i) for i in range(gs, 8)] + [(n, i) for n in (13, 14, 15) for i in range(8)] + \
            [(16, i) for i in range(OPT.get('gend', 2))]
    for (n, i), p in zip(slots, k1b.split_even(gl, len(slots))):
        fill[n][i] += p
    if ekv:
        pg, cg = ekv_at
        at(pg)[:0] = ekv_poll
        at(cg)[:0] = [lambda: (a.wait_vm('fa'), nb_fa_check(a))]
        assert nek <= 6
        for i in range(nek):
            at(min(cg + 1 + i * OPT.get('eks', 1), 19)).append(kv_dma(a, i))
        if OPT.get('ekq'):
            fill[16][3].append(q_load(a))
    for n in range(8, 16):
        if n == 8 and e1m:
            assert not d13 and not any(fill[8][1:])
            k1b.e1m(a, g, d_e1, nb_ini_check, fill[8][0])
        else:
            k1b.p2_stage(a, n, g, fill[n])
        st(a, f'p2_{n}')
    k1b.p2_b_phase(a, 15, [[], [], [], []], fill[16][:4])
    k1.run_gaps(a, [k1b.cs_write_ops(a, [(k1.vCSB, (3 + 2 * g + 1) * 512)])])
    a.wait_lg()
    if not ekv:
        a.wait_vm('fa')
    if OPT.get('nob1'):
        assert ekv and OPT['nob1'] <= nek and OPT['b1'] == OPT['nob1']
        a.wait_vm([f'kv{i}' for i in range(OPT['nob1'])])
    a('s_barrier')
    if not ekv:
        nb_fa_check(a)
    st(a, 'tail')
    extras = ([] if (ekv and OPT.get('ekq')) else [q_load(a)]) + [kv_dma(a, i) for i in range(nek, pre_n)]
    if g == 1:
        skip = a.newlabel('skipb')
        a(f's_cmp_eq_u32 s{k1.sPB}, 0')
        a(f's_cbranch_scc1 {skip}')
        snap = a.snapshot()
    prep = k1b.gelu_prep(a, g, 1)
    first, per = k1b.gelu_tile_ops(a, k1.AC_B, 'gb')
    ex = list(extras)
    pop = lambda: ex.pop(0) if ex else (lambda: None)
    k1.run_gaps(a, [prep[:4], pop(), prep[4:6], pop(), prep[6:], first, pop()])
    gl = [o for q in per for o in q]
    nx = len(ex)
    span = (len(gl) * OPT.get('xspan', 60)) // 100
    done = 0
    for i, op in enumerate(gl):
        while done < nx and done * span <= i * nx:
            ex[done]()
            done += 1
        emit(a, op)
    while done < nx:
        ex[done]()
        done += 1
    k1b.h_store(a, g, 0, 'ha')
    k1b.h_store(a, g, 1, 'hb')
    if g == 1:
        jn = a.newlabel('joinb')
        a(f's_branch {jn}')
        endsnap = a.snapshot()
        a.label(skip)
        a.restore(snap)
        for x in extras:
            x()
        k1b.h_store(a, g, 0, 'ha')
        a.vmem(f'buffer_load_dword v10, v{vL16}, {srd(S_WS)}, s{sSRC} offen', 'hb')
        a.vmem(f'buffer_load_dword v11, v{vL16}, {srd(S_WS)}, s{sSRC} offen', 'hb')
        assert a.snapshot()[0] == endsnap[0], (a.snapshot(), endsnap)
        a.label(jn)
        a.restore(endsnap)
    a.wait_lg()
    st(a, 'gelu')

STAMPS = {}


def st(a, name):
    if name in STAMPS:
        stamp(a, STAMPS[name])


def gen_km(label, force_fallback=False):
    k1.SC = ' sc1'
    k1.HOOKS = {0: hook0, 8: hook8, 9: hook9, 11: hook11, 14: hook14, 15: hook15}
    k1.PREBAR = {11: prebar11}
    a = Asm()
    end = label + '_end'
    att = label + '_att'
    if OPT.get('st0'):
        a('s_memrealtime s[98:99]')
        a('s_memtime s[100:101]')
    prologue(a, end, None)
    build_srds(a, ['x', 'wq', 'w1', 'ws', 'w2', 'wo', 'b1', 'b2', 'out', 'dbg'])
    if not OPT.get('st0'):
        stamp(a, 0, 0)
    else:
        a('s_mov_b32 s68, s98')
        a('s_mov_b32 s69, s99')
        a('s_mov_b32 s88, s100')
        a('s_mov_b32 s89, s101')
    st(a, 'ka')
    start_extra(a)
    k1.setup(a)
    st(a, 'su1')
    g1 = label + '_g1'
    a(f's_cmp_eq_u32 s{sG}, 1')
    a(f's_cbranch_scc1 {g1}')
    snap0 = a.snapshot()
    joinsnap = None
    pre_n = OPT['kvpre']
    for g in (0, 1):
        if g == 1:
            a.label(g1)
            a.restore(snap0)
        if OPT.get('nb'):
            k1_new(a, g)
        else:
            i0, i1, pfpos = OPT.get('i0', 5), OPT.get('i1', 5), OPT.get('pfpos', 0)
            k1.INIT = i1
            for n in range(i0):
                for d in k1.dma_ops(a, n, g):
                    d()
            st(a, 'iss0')
            if OPT.get('pf') and pfpos == 0:
                prefetch(a)
            k1.setup2(a)
            st(a, 'su2')
            for n in range(i0, i1):
                for d in k1.dma_ops(a, n, g):
                    d()
            if OPT.get('pf') and pfpos == 1:
                prefetch(a)
            st(a, 'iss')
            for n in range(8):
                k1.p1_stage(a, n, g)
                if OPT.get('pf') and pfpos == n + 2:
                    prefetch(a)
                st(a, f'p1_{n}')
            k1.p1_epilogue(a, g)
            st(a, 'e1')
            if OPT.get('xdrain'):
                a('s_waitcnt vmcnt(0)')
                st(a, 'e1d')
            for n in range(8, 16):
                k1.p2_stage(a, n, g)
                st(a, f'p2_{n}')
            k1.p2_b_phase(a, 15, [[], [], [], []], [])
            k1.write_cs_partials(a, [(k1.vCSB, (3 + 2 * g + 1) * 512)])
            a.wait_all()
            a('s_barrier')
            fa_check(a)
            st(a, 'tail')
            k1.gelu_simple(a, g, 0, [q_load(a)] + [kv_dma(a, i) for i in range(pre_n)], 'ha')
            if g == 1:
                skip = a.newlabel('skipb')
                a(f's_cmp_eq_u32 s{k1.sPB}, 0')
                a(f's_cbranch_scc1 {skip}')
            k1.gelu_simple(a, g, 1, [], 'hb')
            if g == 1:
                jn = a.newlabel('joinb')
                a(f's_branch {jn}')
                a.label(skip)
                a(f'buffer_load_dword v10, v{vL16}, {srd(S_WS)}, s{sSRC} offen')
                a(f'buffer_load_dword v11, v{vL16}, {srd(S_WS)}, s{sSRC} offen')
                a.label(jn)
            a.wait_lg()
            st(a, 'gelu')
        if OPT.get('xdrain'):
            a('s_waitcnt vmcnt(0)')
            st(a, 'gelud')
        attention(a, g)
        if g == 0:
            a(f's_branch {att}')
            joinsnap = a.snapshot()
        else:
            assert a.snapshot() == joinsnap, (a.snapshot(), joinsnap)
    a.label(att)
    a.wait_lg()
    a(mfma32(RO, RV1, RP + 4, RO))
    fb = label + '_fb'
    fin = label + '_fin'
    a(f'v_mul_f32 v{vT}, 0, v{RO + 8}')
    for i in range(8):
        a(f'v_fma_f32 v{vT}, v{RO + i}, 0, v{vT}')
    a(f'v_cmp_u_f32 vcc, v{vT}, v{vT}')
    if force_fallback:
        a(f's_branch {fb}')
    else:
        a(f's_cbranch_vccnz {fb}')
    a.label(fin)
    a(f'v_rcp_f32 v{vT}, v{RO + 8}')
    for i in range(8):
        a(f'v_mul_f32 v{RO + i}, v{vT}, v{RO + i}')
    for i in range(4):
        a(f'v_cvt_pk_bf16_f32 v{RO + i}, v{RO + 2 * i}, v{RO + 2 * i + 1}')
    for i in range(4):
        a(f'v_min_u32 v{RO + i}, -2, v{RO + i}')
    a.vmem(f'buffer_store_dwordx4 v[{RO}:{RO + 3}], v{vL16}, {srd(S_WS)}, s{sOF} offen sc1', 'ost')
    st(a, 'oend')
    if OPT.get('xdrain'):
        a('s_waitcnt vmcnt(0)')
        st(a, 'oendd')
    if OPT.get('fs'):
        assert OPT['b2'] >= 18
        reduce_write4(a)
        st(a, 'ba')
    elif OPT.get('erw') == 2:
        assert OPT['b2'] >= 18
        g1l, jl = a.newlabel('rw_g1'), a.newlabel('rw_j')
        a(f's_cmp_eq_u32 s{sG}, 1')
        a(f's_cbranch_scc1 {g1l}')
        snap = a.snapshot()
        reduce_write2(a, 0)
        a('s_barrier')
        a(f's_branch {jl}')
        end0 = a.snapshot()
        a.label(g1l)
        a.restore(snap)
        a('s_barrier')
        reduce_write2(a, 1)
        assert a.snapshot() == end0
        a.label(jl)
        st(a, 'ba')
    else:
        a('s_barrier')
        st(a, 'ba')
        reduce_write(a)
    opos = OPT.get('opos', 0)
    if opos == 0:
        o_loads(a, True)
    a.wait_lg()
    a('s_barrier')
    st(a, 'bb')
    if opos == 1:
        o_loads(a, True)
    reduce_read_gate(a)
    st(a, 'gate')
    o_check(a)
    st(a, 'opoll')
    ob_write(a)
    if OPT.get('own'):
        bb_ = wo_rest(a)
        wo_own(a)
        a.wait_lg()
        a('s_barrier')
        st(a, 'bc')
        wo_rest2(a, bb_)
    else:
        a.wait_lg()
        a('s_barrier')
        st(a, 'bc')
        wo_gemm(a)
    st(a, 'wog')
    a.wait_lg()
    t = exchange(a, label)
    final(a, t)
    st(a, 'fin')
    a('s_waitcnt vmcnt(0)')
    stamp(a, 9, 1)
    if OPT.get('dbgst'):
        lbl = a.newlabel('nodbg')
        a(f's_cmp_lg_u32 s{sW}, {OPT["dbgst"] - 1}')
        a(f's_cbranch_scc1 {lbl}')
        a('s_mov_b64 exec, 1')
        a('v_not_b32 v2, s68')
        a(f'buffer_atomic_umax v2, off, {srd(S_DBG)}, 0 offset:20 sc1')
        for k in range(1, 10):
            a(f'v_mov_b32 v{2 + k}, s{68 + 2 * k}')
            a(f'buffer_atomic_umax v{2 + k}, off, {srd(S_DBG)}, 0 offset:{20 + 4 * k} sc1')
        a('s_waitcnt vmcnt(0)')
        a.label(lbl)
    else:
        stamp_flush(a, 0)
    a('s_endpgm')
    a.label(fb)
    fallback(a, fin)
    a.label(end)
    a('s_endpgm')
    return a
```

```python
from asmb import *

NAME = "recurrent_scan__softmax_full_mha__mixer_channel_mlp__prompt"

QF = 0
KV = 2 << 20
HF = 6 << 20
WF = 13 << 20
OF = 16 << 20
FL = 18 << 20
WS_BYTES = 20 << 20

S_X, S_WQ, S_W1, S_WS, S_W2, S_WO, S_B1, S_B2, S_OUT, S_DBG = 4, 8, 12, 16, 20, 24, 28, 32, 36, 40
sW, sTT, sG, sXCD, sSLOT = 44, 45, 46, 47, 48
KA = 68


def srd(n):
    return f's[{n}:{n + 3}]'


def mfma32(d, a_, b, c=None):
    cs = f'v[{d}:{d + 15}]' if c is None else (c if isinstance(c, str) else f'v[{c}:{c + 15}]')
    return f'v_mfma_f32_32x32x16_bf16 v[{d}:{d + 15}], v[{a_}:{a_ + 3}], v[{b}:{b + 3}], {cs}'


def mfma16(d, a_, b, c=None):
    cs = f'v[{d}:{d + 3}]' if c is None else (c if isinstance(c, str) else f'v[{c}:{c + 3}]')
    return f'v_mfma_f32_16x16x32_bf16 v[{d}:{d + 3}], v[{a_}:{a_ + 3}], v[{b}:{b + 3}], {cs}'


def emit(a, x):
    if callable(x):
        x()
    else:
        a(x)


def weave(a, mains, fillers, lead=0):
    fillers = list(fillers)
    n = len(mains)
    done = 0
    for _ in range(min(lead, len(fillers))):
        emit(a, fillers[done])
        done += 1
    rest = len(fillers) - done
    base = done
    for i, m in enumerate(mains):
        emit(a, m)
        upto = base + (rest * (i + 1)) // n
        while done < upto:
            emit(a, fillers[done])
            done += 1
    while done < len(fillers):
        emit(a, fillers[done])
        done += 1


def prologue(a, end_label, srds):
    a(f'''
s_load_dwordx16 s[{KA}:{KA + 15}], s[0:1], 0
s_load_dwordx4 s[{KA + 16}:{KA + 19}], s[0:1], 64
s_load_dwordx2 s[{KA + 20}:{KA + 21}], s[0:1], 80
s_cmp_ge_u32 s2, 256
s_cbranch_scc1 {end_label}
v_lshrrev_b32 v1, 6, v0
v_and_b32 v0, 63, v0
v_readfirstlane_b32 s{sW}, v1
s_and_b32 s{sXCD}, s2, 7
s_lshr_b32 s{sSLOT}, s2, 3
''')
    a(f's_and_b32 s{sTT}, s{sW}, 3')
    a(f's_lshr_b32 s{sG}, s{sW}, 2')


SRD_INFO = {
    'x': (S_X, 0, 2048 * 512 * 2),
    'wq': (S_WQ, 2, 512 * 1536 * 2),
    'wo': (S_WO, 4, 512 * 512 * 2),
    'w1': (S_W1, 8, 512 * 1792 * 2),
    'b1': (S_B1, 10, 1792 * 2),
    'w2': (S_W2, 12, 1792 * 512 * 2),
    'b2': (S_B2, 14, 512 * 2),
    'out': (S_OUT, 16, 2048 * 512 * 2),
    'dbg': (S_DBG, 18, 256),
    'ws': (S_WS, 20, WS_BYTES),
}


def build_srds(a, names):
    for n in names:
        r, o, b = SRD_INFO[n]
        a(f's_mov_b32 s{r + 2}, {hex(b)}')
        a(f's_mov_b32 s{r + 3}, 0x20000')
    a('s_waitcnt lgkmcnt(0)')
    for n in names:
        r, o, b = SRD_INFO[n]
        a(f's_mov_b32 s{r}, s{KA + o}')
        a(f's_mov_b32 s{r + 1}, s{KA + o + 1}')


def srd_consts(a, names):
    for n in names:
        r, o, b = SRD_INFO[n]
        a(f's_mov_b32 s{r + 2}, {hex(b)}')
        a(f's_mov_b32 s{r + 3}, 0x20000')


def srd_bases(a, names):
    for n in names:
        r, o, b = SRD_INFO[n]
        a(f's_mov_b32 s{r}, s{KA + o}')
        a(f's_mov_b32 s{r + 1}, s{KA + o + 1}')


def kernel_text(label, body, nvgpr=256):
    head = f'''.globl {label}
.p2align 8
.type {label},@function
{label}:
'''
    return head + body


def descriptor(label, nvgpr=256):
    acc = (nvgpr + 3) // 4 * 4
    return f'''.p2align 6
.amdhsa_kernel {label}
  .amdhsa_next_free_vgpr {nvgpr}
  .amdhsa_next_free_sgpr 102
  .amdhsa_accum_offset {acc}
  .amdhsa_group_segment_fixed_size 0
  .amdhsa_kernarg_size 88
  .amdhsa_user_sgpr_count 2
  .amdhsa_user_sgpr_kernarg_segment_ptr 1
  .amdhsa_system_sgpr_workgroup_id_x 1
.end_amdhsa_kernel
'''


HEADER_COMMENT = open('cdna_kernels/' + NAME + '.s.ref').read().split('; Override launch')[0]


TS_BASE = 19 << 20
STAMP = False
NSLOT = 10


def stamp(a, slot, cyc=None):
    if not STAMP:
        return
    if STAMP == 'cyc':
        a(f's_memtime s[{68 + 2 * slot}:{69 + 2 * slot}]')
        if cyc is not None:
            a(f's_memrealtime s[{88 + 2 * cyc}:{89 + 2 * cyc}]')
    else:
        a(f's_memrealtime s[{68 + 2 * slot}:{69 + 2 * slot}]')
        if cyc is not None:
            a(f's_memtime s[{88 + 2 * cyc}:{89 + 2 * cyc}]')
    a('s_waitcnt lgkmcnt(0)')
    a.lg = []


def stamp_flush(a, kidx):
    if not STAMP:
        return
    a('s_waitcnt vmcnt(0)')
    a(f's_lshl_b32 s92, s2, 3')
    a(f's_add_u32 s92, s92, s{sW}')
    a(f's_lshl_b32 s92, s92, 7')
    a(f's_add_u32 s92, s92, {TS_BASE + kidx * 256 * 8 * 128}')
    for k in range(NSLOT):
        a(f'v_mov_b32 v2, s{68 + 2 * k}')
        a(f'v_mov_b32 v3, 0')
        a(f'buffer_store_dword v2, v3, {srd(S_WS)}, s92 offen offset:{4 * k}')
    for k in range(2):
        a(f'v_mov_b32 v2, s{88 + 2 * k}')
        a(f'buffer_store_dword v2, v3, {srd(S_WS)}, s92 offen offset:{4 * (NSLOT + k)}')


class Rec:
    def __init__(self, a):
        self.a = a
        self.ops = []

    def __call__(self, text):
        for line in text.split('\n'):
            line = line.strip()
            if line and not line.startswith(';'):
                self.ops.append(line)
        return self

    def comment(self, s):
        pass

    def vmem(self, text, tag=None):
        self.ops.append(lambda: self.a.vmem(text, tag))

    def ds(self, text, tag=None):
        self.ops.append(lambda: self.a.ds(text, tag))

    def wait_lg(self, tag=None):
        self.ops.append(lambda: self.a.wait_lg(tag))

    def wait_vm(self, tag=None):
        self.ops.append(lambda: self.a.wait_vm(tag))


def record(a, fn):
    r = Rec(a)
    fn(r)
    return r.ops
```

```python
from common import *

XR = 0
WR = 81920
ST = 143360
CSP = ST + 4096
SCR = CSP + 3584
K1_LDS = SCR + 2048

sTB, sHP, sF0 = 49, 50, 51
sT0, sT1, sT2, sT3 = 52, 53, 54, 55
sMASK = 60
sMX, sMW, sM2 = 61, 62, 63
sPA = 98
sPB = 64
sT = 65
sQO, sKO, sHO = 66, 67, 56
sPF, sPS = 57, 58

vXD = 4
vWD, vW1D = 6, 7
aX = 8
aW = 12
vSX0, vSQ0, vSX1, vSQ1 = 16, 17, 18, 19
vU = 20
vCS0, vCS1 = 24, 28
vCSA, vCSB = 32, 36
vSEL = 40
vTMP = 44
AC_A = 48
AC_Q, AC_K = 64, 80
AC_B = 64
BUFA, BUFB = 96, 112
XF = 128
vL16 = 1
vM, vR = 2, 3
vRR, vMRR = 4, 5
vB1A, vB1B = 16, 17

C_Q = 0.25 * 1.4426950408889634
C1 = -2.302208198144325
C2 = C1 * 0.044715


EXP = set()
HPX = 0
SC = ''
HOOKS = {}
PREBAR = {}


def X(c, j):
    return XF + 16 * c + 4 * j


def fl(x):
    import struct
    return hex(struct.unpack('<I', struct.pack('<f', x))[0])


EV = False


def F0_IDS():
    if EV:
        return f'''s_mul_i32 s{sF0}, s{sHP}, 7
s_and_b32 s{sT1}, s{sHP}, 1
s_add_u32 s{sF0}, s{sF0}, s{sT1}
s_and_b32 s{sT1}, s{sT1}, s{sG}
s_mul_i32 s{sT0}, s{sT1}, 6
s_sub_u32 s{sF0}, s{sF0}, s{sT0}
s_mul_i32 s{sPA}, s{sT1}, 192
s_lshl_b32 s{sT1}, s{sT1}, 6
s_sub_u32 s{sPB}, 64, s{sT1}'''
    return f'''s_mul_i32 s{sT0}, s{sHP}, 7
s_and_b32 s{sT1}, s{sHP}, 1
s_add_u32 s{sT0}, s{sT0}, s{sT1}
s_lshr_b32 s{sF0}, s{sT0}, 1
s_and_b32 s{sT1}, s{sT1}, s{sG}
s_lshl_b32 s{sT1}, s{sT1}, 6
s_sub_u32 s{sPB}, 64, s{sT1}'''


def col_bytes():
    return f'''s_lshl_b32 s{sT0}, s{sG}, {2 if EV else 1}
s_add_u32 s{sT0}, s{sT0}, s{sF0}
s_lshl_b32 s{sT0}, s{sT0}, {5 if EV else 6}'''


def setup(a):
    a.comment('--- K1 ids and lane constants')
    a(f'''
s_and_b32 s{sT0}, s{sXCD}, 1
s_lshl_b32 s{sT0}, s{sT0}, 3
s_and_b32 s{sT1}, s{sSLOT}, 7
s_add_u32 s{sTB}, s{sT0}, s{sT1}
s_lshr_b32 s{sT0}, s{sXCD}, 1
s_lshl_b32 s{sT0}, s{sT0}, 2
s_lshr_b32 s{sT1}, s{sSLOT}, 3
s_add_u32 s{sHP}, s{sT0}, s{sT1}
s_xor_b32 s{sHP}, s{sHP}, {HPX}
{F0_IDS()}
s_lshl_b32 s{sT}, s{sTB}, 2
s_add_u32 s{sT}, s{sT}, s{sTT}
s_mov_b32 s{sMASK}, 0xffff0000
s_lshl_b32 s{sMX}, s{sW}, 11
s_lshl_b32 s{sMW}, s{sTT}, 10
s_add_u32 s{sMW}, s{sMW}, {WR}
s_lshl_b32 s{sM2}, s{sG}, 13
s_lshl_b32 s{sT0}, s{sTT}, 11
s_add_u32 s{sM2}, s{sM2}, s{sT0}
''')
    a(f'''
v_lshrrev_b32 v1, 3, v0
v_lshrrev_b32 v2, 4, v0
v_and_b32 v3, 7, v0
v_xor_b32 v2, v2, v3
s_lshl_b32 s{sT0}, s{sTB}, 7
s_lshl_b32 s{sT1}, s{sW}, 4
s_add_u32 s{sT0}, s{sT0}, s{sT1}
v_add_u32 v1, s{sT0}, v1
v_lshlrev_b32 v1, 10, v1
v_lshlrev_b32 v2, 4, v2
v_add_u32 v{vXD}, v1, v2
v_xor_b32 v2, 64, v2
v_add_u32 v1, 0x2000, v1
v_add_u32 v{vXD + 1}, v1, v2
''')
    a(f'''
v_lshrrev_b32 v1, 2, v0
v_and_b32 v2, 3, v0
v_lshlrev_b32 v2, 4, v2
s_lshl_b32 s{sT0}, s{sTT}, 4
v_add_u32 v3, s{sT0}, v1
v_mul_u32_u24 v3, 0xc00, v3
s_lshl_b32 s{sT0}, s{sHP}, 6
s_sub_u32 s{sT1}, 1, s{sG}
s_lshl_b32 s{sT1}, s{sT1}, 11
s_add_u32 s{sT0}, s{sT0}, s{sT1}
v_add3_u32 v{vWD}, v3, v2, s{sT0}
s_lshl_b32 s{sT0}, s{sTT}, 5
v_add_u32 v3, s{sT0}, v1
v_mul_u32_u24 v3, 0xe00, v3
{col_bytes()}
v_add3_u32 v{vW1D}, v3, v2, s{sT0}
''')


def setup2(a):
    a.comment('--- LDS read addresses')
    a(f'''
v_and_b32 v1, 31, v0
v_lshrrev_b32 v2, 5, v0
v_bfe_u32 v3, v0, 1, 3
v_xor_b32 v2, v2, v3
v_lshlrev_b32 v2, 4, v2
s_lshl_b32 s{sT0}, s{sTT}, 5
v_add_u32 v1, s{sT0}, v1
v_lshlrev_b32 v1, 7, v1
''')
    for j in range(4):
        a(f's_xor_b32 s{sT0}, s{sTT}, {j}')
        a(f's_lshl_b32 s{sT0}, s{sT0}, 5')
        a(f'v_xor_b32 v3, s{sT0}, v2')
        a(f'v_add_u32 v{aX + j}, v1, v3')
    a(f'''
v_lshrrev_b32 v1, 5, v0
v_lshlrev_b32 v1, 9, v1
v_bfe_u32 v2, v0, 2, 2
v_lshlrev_b32 v2, 6, v2
v_add_u32 v1, v1, v2
v_bfe_u32 v2, v0, 4, 1
v_lshlrev_b32 v2, 5, v2
v_add_u32 v1, v1, v2
v_and_b32 v2, 1, v0
v_lshlrev_b32 v2, 4, v2
v_add_u32 v1, v1, v2
v_and_b32 v2, 2, v0
v_lshlrev_b32 v2, 2, v2
v_add_u32 v1, v1, v2
''')
    for j in range(4):
        a(f's_xor_b32 s{sT0}, s{sTT}, {j}')
        a(f's_lshl_b32 s{sT0}, s{sT0}, 10')
        a(f's_add_u32 s{sT0}, s{sT0}, {WR}')
        a(f'v_add_u32 v{aW + j}, s{sT0}, v1')
    a(f'''
v_and_b32 v1, 15, v0
v_bfe_u32 v2, v0, 4, 1
v_cmp_eq_u32 vcc, v1, v2
v_mov_b32 v1, 0x3f803f80
v_cndmask_b32 v{vSEL}, 0, v1, vcc
v_cndmask_b32 v{vSEL + 1}, 0, v1, vcc
v_cndmask_b32 v{vSEL + 2}, 0, v1, vcc
v_cndmask_b32 v{vSEL + 3}, 0, v1, vcc
v_mov_b32 v{vSX0}, 0
v_mov_b32 v{vSQ0}, 0
v_mov_b32 v{vSX1}, 0
v_mov_b32 v{vSQ1}, 0
v_lshlrev_b32 v{vL16}, 4, v0
''')


def xslot(n):
    return (n % 5) * 16384


def dma_ops(a, n, g):
    ops = []
    tag = f'c{n}'
    if 'nodma' in EXP and n >= 5:
        return ops

    def one(srdn, voff, m0_s, m0_imm, soff_fn):
        def f():
            a(f's_add_u32 m0, s{m0_s}, {m0_imm}')
            so = soff_fn()
            a.vmem(f'buffer_load_dwordx4 v{voff}, {srd(srdn)}, {so} offen lds', tag)
        return f

    def const_soff(val):
        def f():
            a(f's_mov_b32 s{sT2}, {val}')
            return f's{sT2}'
        return f

    if n < 8:
        nx = 0 if 'samex' in EXP else n
        nw = 0 if 'samew' in EXP else n
        for q in range(2):
            ops.append(one(S_X, vXD + q, sMX, xslot(n) + q * 1024, const_soff(nx * 128)))
        wb = (n % 5) * 12288
        if g == 0:
            ops.append(one(S_WQ, vWD, sMW, wb + 2 * 4096, const_soff(nw * 196608)))
        else:
            ops.append(one(S_WQ, vWD, sMW, wb, const_soff(nw * 196608)))
            ops.append(one(S_WQ, vWD, sMW, wb + 4096, const_soff(nw * 196608 + 1024)))
    elif n < 16:
        ps, C = (n - 8) // 4, (n - 8) % 4
        for q in range(2):
            val = C * 458752 + q * 57344
            if ps == 0:
                sf = const_soff(val)
            else:
                def sf(val=val):
                    a(f's_add_u32 s{sT2}, s{sPB}, {val}')
                    return f's{sT2}'
            ops.append(one(S_W1, vW1D, sM2, xslot(n) + q * 1024, sf))
    return ops


def tr_pair(a, d, areg, off, tag):
    if 'notr' in EXP:
        return
    a.ds(f'ds_read_b64_tr_b16 v[{d}:{d + 1}], v{areg} offset:{off}', tag)
    a.ds(f'ds_read_b64_tr_b16 v[{d + 2}:{d + 3}], v{areg} offset:{off + 256}', tag)


def stat_ops(xreg, k):
    t = vU + 2 * (k % 2)
    return [f'v_and_b32 v{t}, s{sMASK}, v{xreg}',
            f'v_lshlrev_b32 v{t + 1}, 16, v{xreg}',
            f'v_fmac_f32 v{vSQ0}, v{t}, v{t}',
            f'v_fmac_f32 v{vSQ1}, v{t + 1}, v{t + 1}',
            f'v_add_f32 v{vSX0}, v{t}, v{vSX0}',
            f'v_add_f32 v{vSX1}, v{t + 1}, v{vSX1}']


def p1_frag(g, j, p):
    base = BUFA if j < 2 else BUFB
    return base + 8 * (j % 2) + 4 * p


def p1_reads(a, n, g, js, tag):
    xo = xslot(n) if n % 5 < 4 else 0
    for j in js:
        a.ds(f'ds_read_b128 v[{X(n, j)}:{X(n, j) + 3}], v{aX + j} offset:{xo}', tag)
        wb = (n % 5) * 12288
        panels = (0, 1) if g == 0 else (2,)
        for pi, p in enumerate(panels):
            tr_pair(a, p1_frag(g, j, pi), aW + j, wb + p * 4096, tag)


def p1_mfmas(n, g, js):
    out = []
    for j in js:
        first = (n == 0 and j == 0)
        if g == 0:
            out.append(mfma32(AC_Q, p1_frag(0, j, 0), X(n, j), '0' if first else None))
            out.append(mfma32(AC_K, p1_frag(0, j, 1), X(n, j), '0' if first else None))
            if j == 0 and 'nom16' not in EXP:
                out.append(mfma16(vCS0, p1_frag(0, 0, 0), vSEL, '0' if n == 0 else None))
                out.append(mfma16(vCS1, p1_frag(0, 0, 1), vSEL, '0' if n == 0 else None))
        else:
            out.append(mfma32(AC_Q, X(n, j), p1_frag(1, j, 0), '0' if first else None))
            if j == 0 and 'nom16' not in EXP:
                out.append(mfma16(vCS0, p1_frag(1, 0, 0), vSEL, '0' if n == 0 else None))
    return out


def p1_stats(n, g, js):
    ops = []
    k = 0
    if 'nostat' in EXP:
        return ops
    for j in js:
        for r in ((0, 1) if g == 0 else (2, 3)):
            ops += stat_ops(X(n, j) + r, k)
            k += 1
    return ops


def rebase(a, regs, n, delta=65536):
    if n % 5 == 4:
        for r in regs:
            a(f'v_add_u32 v{r}, {hex(delta)}, v{r}')
    if n % 5 == 0 and n > 0:
        for r in regs:
            a(f'v_subrev_u32 v{r}, {hex(delta)}, v{r}')


def p1_read_ops(a, n, g, j):
    xo = xslot(n) if n % 5 < 4 else 0
    tag = f'P{n}_{j}'
    ops = [lambda: a.ds(f'ds_read_b128 v[{X(n, j)}:{X(n, j) + 3}], v{aX + j} offset:{xo}', tag)]
    wb = (n % 5) * 12288
    panels = (0, 1) if g == 0 else (2,)
    for pi, p in enumerate(panels):
        d = p1_frag(g, j, pi)
        off = wb + p * 4096
        if 'notr' in EXP:
            continue
        ops.append(lambda d=d, off=off: a.ds(f'ds_read_b64_tr_b16 v[{d}:{d + 1}], v{aW + j} offset:{off}', tag))
        ops.append(lambda d=d, off=off: a.ds(f'ds_read_b64_tr_b16 v[{d + 2}:{d + 3}], v{aW + j} offset:{off + 256}', tag))
    return ops


def p1_stat_reg(n, g, j, k):
    if 'nostat' in EXP:
        return []
    r = (0, 1)[k] if g == 0 else (2, 3)[k]
    return stat_ops(X(n, j) + r, k)


def run_gaps(a, items):
    for it in items:
        if isinstance(it, (list, tuple)):
            for x in it:
                emit(a, x)
        else:
            emit(a, it)


def p1_b_phase(a, n, g, ra, dm):
    w = lambda j: (lambda: a.wait_lg(f'P{n}_{j}'))
    S = lambda j, k: p1_stat_reg(n, g, j, k)
    d = list(dm) + [[]] * 4
    if g == 0:
        q = lambda j: mfma32(AC_Q, p1_frag(0, j, 0), X(n, j))
        k_ = lambda j: mfma32(AC_K, p1_frag(0, j, 1), X(n, j))
        run_gaps(a, [w(2), q(2), ra[0][:3], S(2, 0),
                     k_(2), ra[0][3:], d[0], S(2, 1),
                     w(3), q(3), ra[1][:3], S(3, 0),
                     k_(3), ra[1][3:], S(3, 1)])
    else:
        v_ = lambda j: mfma32(AC_Q, X(n, j), p1_frag(1, j, 0))
        run_gaps(a, [w(2), v_(2), ra[0], S(2, 0), d[0], S(2, 1),
                     w(3), v_(3), ra[1], S(3, 0), d[1], S(3, 1)])


def p1_a_phase(a, n, g, rb, dm):
    w = lambda j: (lambda: a.wait_lg(f'P{n}_{j}'))
    S = lambda j, k: p1_stat_reg(n, g, j, k)
    d = list(dm) + [[]] * 4
    z = lambda first: '0' if first else None
    m16 = 'nom16' not in EXP
    if g == 0:
        q = lambda j: mfma32(AC_Q, p1_frag(0, j, 0), X(n, j), z(n == 0 and j == 0))
        k_ = lambda j: mfma32(AC_K, p1_frag(0, j, 1), X(n, j), z(n == 0 and j == 0))
        run_gaps(a, [w(0), q(0), rb[0][:3], S(0, 0),
                     k_(0), rb[0][3:], S(0, 1),
                     [mfma16(vCS0, p1_frag(0, 0, 0), vSEL, z(n == 0))] if m16 else [], d[0],
                     [mfma16(vCS1, p1_frag(0, 0, 1), vSEL, z(n == 0))] if m16 else [], rb[1][:3],
                     w(1), q(1), rb[1][3:], S(1, 0),
                     k_(1), d[1], S(1, 1)])
    else:
        v_ = lambda j: mfma32(AC_Q, X(n, j), p1_frag(1, j, 0), z(n == 0 and j == 0))
        run_gaps(a, [w(0), v_(0), rb[0], S(0, 0),
                     [mfma16(vCS0, p1_frag(1, 0, 0), vSEL, z(n == 0))] if m16 else [], d[0], S(0, 1),
                     w(1), v_(1), rb[1], S(1, 0), d[1], S(1, 1)])


def split_dma(dm, g, p1type):
    h = len(dm) // 2 if not (g == 0 and len(dm) == 3) else 1
    return dm[:h], dm[h:]


INIT = 5


def chunk_for_stage(n):
    return n + 3 if n + 3 >= INIT else None


def p1_stage(a, n, g):
    a.comment(f'--- P1 stage {n} g={g}')
    a.wait_vm(f'c{n}')
    if n in PREBAR:
        PREBAR[n](a, g)
    if 'nobar' not in EXP:
        a('s_barrier')
    if n in HOOKS:
        HOOKS[n](a, g)
    rebase(a, [aX + j for j in range(4)], n)
    c = chunk_for_stage(n)
    dm = dma_ops(a, c, g) if c is not None else []
    db, da = split_dma(dm, g, True)
    ra = [p1_read_ops(a, n, g, 0), p1_read_ops(a, n, g, 1)]
    if n > 0:
        p1_b_phase(a, n - 1, g, ra, db)
    else:
        run_gaps(a, ra)
        da = db + da
        da = [da[0], da[1:]] if len(da) > 2 else da
    rb = [p1_read_ops(a, n, g, 2), p1_read_ops(a, n, g, 3)]
    p1_a_phase(a, n, g, rb, da)


def write_cs_partials(a, accs_panels):
    a(f'''
v_and_b32 v{vTMP}, 15, v0
v_lshlrev_b32 v{vTMP}, 8, v{vTMP}
v_lshrrev_b32 v{vTMP + 1}, 4, v0
v_lshlrev_b32 v{vTMP + 1}, 6, v{vTMP + 1}
s_lshl_b32 s{sT0}, s{sTT}, 2
s_add_u32 s{sT0}, s{sT0}, {CSP}
v_add3_u32 v{vTMP}, v{vTMP}, v{vTMP + 1}, s{sT0}
s_mov_b32 s{sT0}, 0x00030003
s_mov_b32 s{sT1}, 0x00030003
s_mov_b64 exec, s[{sT0}:{sT1}]
''')
    for acc, off in accs_panels:
        for r in range(4):
            a.ds(f'ds_write_b32 v{vTMP}, v{acc + r} offset:{off + r * 16}', 'w')
    a('s_mov_b64 exec, -1')


def p1_epilogue(a, g):
    a.comment(f'--- P1 epilogue g={g}')
    p1_b_phase(a, 7, g, [[], []], [])
    a(f'''
v_add_f32 v{vSX0}, v{vSX0}, v{vSX1}
v_add_f32 v{vSQ0}, v{vSQ0}, v{vSQ1}
v_and_b32 v{vU}, 31, v0
v_lshlrev_b32 v{vU}, 5, v{vU}
s_lshl_b32 s{sT0}, s{sTT}, 10
s_add_u32 s{sT0}, s{sT0}, {ST}
v_add_u32 v{vU}, s{sT0}, v{vU}
v_lshrrev_b32 v{vU + 1}, 5, v0
v_lshlrev_b32 v{vU + 1}, 3, v{vU + 1}
v_add3_u32 v{vU + 1}, v{vU + 1}, v{vU}, {16 * g}
''')
    a.ds(f'ds_write_b64 v{vU + 1}, v[{vSX0}:{vSQ0}]', 'w')
    write_cs_partials(a, [(vCS0, 0), (vCS1, 512)] if g == 0 else [(vCS0, 1024)])
    a.wait_lg()
    a('s_barrier')
    prep_issue(a)
    a(f'''
v_and_b32 v{vTMP + 2}, 31, v0
v_and_b32 v{vTMP + 3}, 19, v{vTMP + 2}
v_bfe_u32 v{vCS0}, v0, 2, 1
v_lshlrev_b32 v{vCS0}, 3, v{vCS0}
v_bfe_u32 v{vCS0 + 1}, v0, 3, 1
v_lshlrev_b32 v{vCS0 + 1}, 2, v{vCS0 + 1}
v_add3_u32 v{vTMP + 3}, v{vTMP + 3}, v{vCS0}, v{vCS0 + 1}
v_lshlrev_b32 v{vTMP + 3}, 1, v{vTMP + 3}
s_lshl_b32 s{sT0}, s{sG}, 1
s_add_u32 s{sT0}, s{sT0}, s{sF0}
s_lshl_b32 s{sT0}, s{sT0}, 6
s_add_u32 s{sT1}, s{sT0}, s{sPB}
''')
    a.vmem(f'buffer_load_ushort v{vB1A}, v{vTMP + 3}, {srd(S_B1)}, s{sT0} offen', 'b1')
    a.vmem(f'buffer_load_ushort v{vB1B}, v{vTMP + 3}, {srd(S_B1)}, s{sT1} offen', 'b1')
    t = BUFA
    a.ds(f'ds_read_b128 v[{t}:{t + 3}], v{vU}', 's')
    a.ds(f'ds_read_b128 v[{t + 4}:{t + 7}], v{vU} offset:16', 's')
    a(f'''
v_and_b32 v{vU + 2}, 31, v0
v_lshlrev_b32 v{vU + 2}, 4, v{vU + 2}
''')
    if g == 0:
        a(f'''
v_lshrrev_b32 v{vU + 3}, 5, v0
v_lshlrev_b32 v{vU + 3}, 9, v{vU + 3}
v_add_u32 v{vU + 2}, v{vU + 2}, v{vU + 3}
v_add_u32 v{vU + 2}, {CSP}, v{vU + 2}
''')
        a.ds(f'ds_read_b128 v[{t + 8}:{t + 11}], v{vU + 2}', 'c')
    else:
        a(f'v_add_u32 v{vU + 2}, {CSP}, v{vU + 2}')
        a.ds(f'ds_read_b128 v[{t + 8}:{t + 11}], v{vU + 2} offset:1024', 'c')
    a.wait_lg('s')
    a(f'''
v_add_f32 v{t}, v{t}, v{t + 2}
v_add_f32 v{t + 1}, v{t + 1}, v{t + 3}
v_add_f32 v{t + 4}, v{t + 4}, v{t + 6}
v_add_f32 v{t + 5}, v{t + 5}, v{t + 7}
v_add_f32 v{t}, v{t}, v{t + 4}
v_add_f32 v{t + 1}, v{t + 1}, v{t + 5}
v_mul_f32 v{vM}, {fl(1 / 512)}, v{t}
v_mul_f32 v{t + 1}, {fl(1 / 512)}, v{t + 1}
v_fma_f32 v{t + 1}, -v{vM}, v{vM}, v{t + 1}
v_max_f32 v{t + 1}, 0, v{t + 1}
v_add_f32 v{t + 2}, {fl(1e-5)}, v{t + 1}
v_rsq_f32 v{vR}, v{t + 2}
''')
    a.wait_lg('c')
    a(f'''
v_add_f32 v{t + 8}, v{t + 8}, v{t + 9}
v_add_f32 v{t + 10}, v{t + 10}, v{t + 11}
v_mul_f32 v{t + 2}, v{vR}, v{vR}
v_mul_f32 v{t + 2}, v{t + 2}, v{t + 1}
v_add_f32 v{t + 2}, {fl(1e-5)}, v{t + 2}
v_rsq_f32 v{t + 2}, v{t + 2}
v_add_f32 v{t + 8}, v{t + 8}, v{t + 10}
v_mul_f32 v{vRR}, v{vR}, v{t + 2}
v_mul_f32 v{vMRR}, v{vM}, v{vRR}
''')
    a(f'''
s_lshl_b32 s{sT0}, s{sW}, 8
s_add_u32 s{sT0}, s{sT0}, {SCR}
v_lshlrev_b32 v{vU}, 2, v0
v_add_u32 v{vU}, s{sT0}, v{vU}
v_lshrrev_b32 v{vU + 1}, 5, v0
v_lshlrev_b32 v{vU + 1}, 4, v{vU + 1}
v_add_u32 v{vU + 1}, s{sT0}, v{vU + 1}
''')
    a(f'''
s_lshl_b32 s{sT0}, s{sHP}, 17
s_lshl_b32 s{sT1}, s{sT}, 10
s_add_u32 s{sQO}, s{sT0}, s{sT1}
s_lshl_b32 s{sT0}, s{sHP}, 18
s_lshl_b32 s{sT1}, s{sT}, 11
s_add_u32 s{sKO}, s{sT0}, s{sT1}
s_add_u32 s{sKO}, s{sKO}, {KV}
''')
    if g == 0:
        a.ds(f'ds_write_b32 v{vU}, v{t + 8}', 'w')
        for p in range(2):
            for qd in range(4):
                d = BUFA + 16 * p + 4 * qd
                a.ds(f'ds_read_b128 v[{d}:{d + 3}], v{vU + 1} offset:{p * 128 + qd * 32}', f'q{p}')
        a(f'v_mul_f32 v{vU + 2}, {fl(C_Q)}, v{vR}')
        for p, acc in ((0, AC_Q), (1, AC_K)):
            a.wait_lg(f'q{p}')
            sc = vU + 2 if p == 0 else vR
            for r in range(16):
                a(f'v_fma_f32 v{acc + r}, -v{vM}, v{BUFA + 16 * p + r}, v{acc + r}')
            for r in range(16):
                a(f'v_mul_f32 v{acc + r}, v{sc}, v{acc + r}')
            for r in range(8):
                a(f'v_cvt_pk_bf16_f32 v{acc + r}, v{acc + 2 * r}, v{acc + 2 * r + 1}')
            if p == 0:
                a.vmem(f'buffer_store_dwordx4 v[{acc}:{acc + 3}], v{vL16}, {srd(S_WS)}, s{sQO} offen{SC}', 'st')
                a(f's_add_u32 s{sT0}, s{sQO}, 65536')
                a.vmem(f'buffer_store_dwordx4 v[{acc + 4}:{acc + 7}], v{vL16}, {srd(S_WS)}, s{sT0} offen{SC}', 'st')
            else:
                a.vmem(f'buffer_store_dwordx4 v[{acc}:{acc + 3}], v{vL16}, {srd(S_WS)}, s{sKO} offen{SC}', 'st')
                a(f's_add_u32 s{sT0}, s{sKO}, 131072')
                a.vmem(f'buffer_store_dwordx4 v[{acc + 4}:{acc + 7}], v{vL16}, {srd(S_WS)}, s{sT0} offen{SC}', 'st')
    else:
        a(f'''
v_mul_f32 v{t + 9}, v{vM}, v{vR}
v_cmp_gt_u32 vcc, 32, v0
v_cndmask_b32 v{t + 9}, v{t + 9}, v{vR}, vcc
''')
        a.ds(f'ds_write_b32 v{vU}, v{t + 9}', 'w')
        a(f'v_mov_b32 v{vU + 2}, v{t + 8}')
        for qd in range(4):
            d = BUFA + 4 * qd
            a.ds(f'ds_read_b128 v[{d}:{d + 3}], v{vU + 1} offset:{qd * 32}', 'q0')
        for qd in range(4):
            d = BUFB + 4 * qd
            a.ds(f'ds_read_b128 v[{d}:{d + 3}], v{vU + 1} offset:{128 + qd * 32}', 'q0')
        a(f'''
v_bfe_u32 v{vU}, v0, 4, 1
v_lshlrev_b32 v{vU}, 17, v{vU}
v_and_b32 v{vU + 3}, 15, v0
v_lshlrev_b32 v{vU + 3}, 4, v{vU + 3}
v_add_u32 v{vU}, v{vU}, v{vU + 3}
v_lshrrev_b32 v{vU + 3}, 5, v0
v_lshlrev_b32 v{vU + 3}, 8, v{vU + 3}
v_add_u32 v{vU}, v{vU}, v{vU + 3}
''')
        a.wait_lg('q0')
        acc = AC_Q
        for r in range(16):
            a(f'v_mul_f32 v{BUFB + r}, v{vU + 2}, v{BUFB + r}')
        for r in range(16):
            a(f'v_fma_f32 v{acc + r}, v{acc + r}, v{BUFA + r}, -v{BUFB + r}')
        for r in range(8):
            a(f'v_cvt_pk_bf16_f32 v{acc + r}, v{acc + 2 * r}, v{acc + 2 * r + 1}')
        a.vmem(f'buffer_store_dwordx4 v[{acc}:{acc + 3}], v{vU}, {srd(S_WS)}, s{sKO} offen offset:1024{SC}', 'st')
        a.vmem(f'buffer_store_dwordx4 v[{acc + 4}:{acc + 7}], v{vU}, {srd(S_WS)}, s{sKO} offen offset:1536{SC}', 'st')
    a(f's_lshl_b32 s{sT0}, s{sG}, 13')
    a(f's_sub_u32 s{sT0}, s{sT0}, {WR}')
    for j in range(4):
        a(f'v_add_u32 v{aW + j}, s{sT0}, v{aW + j}')


def prep_issue(a):
    a.comment('prep DMA')
    lbl = a.newlabel('prep_wo')
    lbl2 = a.newlabel('prep_j')
    lbl3 = a.newlabel('prep_n2')
    a(f'''
v_lshrrev_b32 v{vTMP}, 2, v0
v_lshlrev_b32 v{vTMP}, 10, v{vTMP}
v_and_b32 v{vTMP + 1}, 3, v0
v_lshlrev_b32 v{vTMP + 1}, 4, v{vTMP + 1}
s_and_b32 s{sT0}, s2, 1
s_lshl_b32 s{sT0}, s{sT0}, 3
s_add_u32 s{sT0}, s{sT0}, s{sW}
s_lshl_b32 s{sT0}, s{sT0}, 6
v_add3_u32 v{vTMP}, v{vTMP}, v{vTMP + 1}, s{sT0}
s_lshr_b32 s{sPS}, s2, 1
s_lshl_b32 s{sT1}, s{sW}, 10
s_add_u32 m0, s{sT1}, {WR}
s_lshl_b32 s{sT2}, s{sPS}, 14
s_cmp_ge_u32 s2, 224
s_cbranch_scc1 {lbl}
''')
    snap = a.snapshot()
    a.vmem(f'buffer_load_dwordx4 v{vTMP}, {srd(S_W2)}, s{sT2} offen lds', 'prep')
    a(f's_branch {lbl2}')
    a.label(lbl)
    a(f's_sub_u32 s{sT2}, s{sT2}, {112 * 16384}')
    a(f'buffer_load_dwordx4 v{vTMP}, {srd(S_WO)}, s{sT2} offen lds')
    a.label(lbl2)
    a(f'''
s_cmp_ge_u32 s2, 32
s_cbranch_scc1 {lbl3}
s_add_u32 m0, s{sT1}, {WR + 8192}
s_add_u32 s{sT2}, s{sT2}, {16 * 16384}
''')
    a(f'buffer_load_dwordx4 v{vTMP}, {srd(S_WO)}, s{sT2} offen lds')
    a.label(lbl3)


def prep_finish(a, tag='st'):
    a.comment('prep: transpose + store')
    lbl3 = a.newlabel('prep_f2')
    t = 80
    a(f'''
v_lshrrev_b32 v{t}, 5, v0
v_lshlrev_b32 v{t}, 9, v{t}
v_bfe_u32 v{t + 1}, v0, 2, 2
v_lshlrev_b32 v{t + 1}, 6, v{t + 1}
v_add_u32 v{t}, v{t}, v{t + 1}
v_bfe_u32 v{t + 1}, v0, 4, 1
v_lshlrev_b32 v{t + 1}, 5, v{t + 1}
v_add_u32 v{t}, v{t}, v{t + 1}
v_and_b32 v{t + 1}, 3, v0
v_lshlrev_b32 v{t + 1}, 3, v{t + 1}
s_lshl_b32 s{sT0}, s{sW}, 10
s_add_u32 s{sT0}, s{sT0}, {WR}
v_add3_u32 v{t}, v{t}, v{t + 1}, s{sT0}
s_lshl_b32 s{sT0}, s2, 3
s_add_u32 s{sT0}, s{sT0}, s{sW}
s_lshl_b32 s{sT0}, s{sT0}, 10
s_add_u32 s{sT0}, s{sT0}, {WF}
''')
    tr_pair(a, t + 4, t, 0, 'pp')
    a.wait_lg('pp')
    a.vmem(f'buffer_store_dwordx4 v[{t + 4}:{t + 7}], v{vL16}, {srd(S_WS)}, s{sT0} offen{SC}', tag)
    a(f'''
s_cmp_ge_u32 s2, 32
s_cbranch_scc1 {lbl3}
''')
    a(f'ds_read_b64_tr_b16 v[{t + 8}:{t + 9}], v{t} offset:8192')
    a(f'ds_read_b64_tr_b16 v[{t + 10}:{t + 11}], v{t} offset:{8192 + 256}')
    a(f's_add_u32 s{sT0}, s{sT0}, {2048 * 1024}')
    a('s_waitcnt lgkmcnt(0)')
    a(f'buffer_store_dwordx4 v[{t + 8}:{t + 11}], v{vL16}, {srd(S_WS)}, s{sT0} offen{SC}')
    a.label(lbl3)


P2A, P2B = (0, 4, 1, 5), (2, 6, 3, 7)


def p2_frag(p):
    return BUFA + 4 * P2A.index(p) if p in P2A else BUFB + 4 * P2B.index(p)


def p2_read_ops(a, n, p):
    so = xslot(n) if n % 5 < 4 else 0
    off = so + (p // 4) * 4096
    d = p2_frag(p)
    tag = f'P{n}_{p}'
    if 'notr' in EXP:
        return []
    return [lambda: a.ds(f'ds_read_b64_tr_b16 v[{d}:{d + 1}], v{aW + p % 4} offset:{off}', tag),
            lambda: a.ds(f'ds_read_b64_tr_b16 v[{d + 2}:{d + 3}], v{aW + p % 4} offset:{off + 256}', tag)]


def p2_mfma(n, p):
    pas, C = (n - 8) // 4, (n - 8) % 4
    acc = AC_A if pas == 0 else AC_B
    first = (C == 0 and p == 0)
    return mfma32(acc, p2_frag(p), X(2 * C + p // 4, p % 4), '0' if first else None)


def p2_m16(n, p):
    pas, C = (n - 8) // 4, (n - 8) % 4
    cs = vCSA if pas == 0 else vCSB
    return mfma16(cs, p2_frag(p), vSEL, '0' if (C == 0 and p == 0) else None)


def p2_b_phase(a, n, ra, dm, fill=None):
    w = lambda p: (lambda: a.wait_lg(f'P{n}_{p}'))
    d = list(dm) + [[]] * 4
    f = fill or (lambda k: [])
    for i, p in enumerate(P2B):
        run_gaps(a, [w(p), p2_mfma(n, p), ra[i], d[0] if i == 1 else [], f(i)])


def p2_a_phase(a, n, rb, dm, fill=None):
    w = lambda p: (lambda: a.wait_lg(f'P{n}_{p}'))
    d = list(dm) + [[]] * 4
    f = fill or (lambda k: [])
    m16 = 'nom16' not in EXP
    for i, p in enumerate(P2A):
        run_gaps(a, [w(p), p2_mfma(n, p), rb[i], d[0] if i == 2 else [], f(4 + i)])
        if m16 and p in (0, 4):
            a(p2_m16(n, p))


def gelu_prep_ops(a, g, pas):
    pi = 3 + 2 * g + pas
    b1 = vB1A if pas == 0 else vB1B
    t = vCS0
    a(f'''
v_and_b32 v{vU + 2}, 31, v0
v_lshlrev_b32 v{vU + 2}, 4, v{vU + 2}
v_add_u32 v{vU + 2}, {CSP}, v{vU + 2}
''')
    a.ds(f'ds_read_b128 v[{t}:{t + 3}], v{vU + 2} offset:{pi * 512}', 'gc')
    a(f'''
s_lshl_b32 s{sT0}, s{sW}, 8
s_add_u32 s{sT0}, s{sT0}, {SCR}
v_lshlrev_b32 v{vU}, 2, v0
v_add_u32 v{vU}, s{sT0}, v{vU}
v_lshrrev_b32 v{vU + 1}, 5, v0
v_lshlrev_b32 v{vU + 1}, 4, v{vU + 1}
v_add_u32 v{vU + 1}, s{sT0}, v{vU + 1}
v_lshlrev_b32 v{t + 4}, 16, v{b1}
''')
    a.wait_lg('gc')
    a(f'''
v_add_f32 v{t}, v{t}, v{t + 1}
v_add_f32 v{t + 2}, v{t + 2}, v{t + 3}
v_cmp_gt_u32 vcc, 32, v0
v_add_f32 v{t}, v{t}, v{t + 2}
v_cndmask_b32 v{t}, v{t + 4}, v{t}, vcc
''')
    a.ds(f'ds_write_b32 v{vU}, v{t}', 'w')


def gelu_ops(a, acc, csb, b1b, tmp):
    ops = []
    for q in range(4):
        R = [acc + 4 * q + e for e in range(4)]
        cs = [csb + 4 * q + e for e in range(4)]
        b = [b1b + 4 * q + e for e in range(4)]
        u = [tmp + e for e in range(4)]
        w = [tmp + 4 + e for e in range(4)]
        for e in range(4):
            ops.append(f'v_fma_f32 v{b[e]}, -v{vMRR}, v{cs[e]}, v{b[e]}')
        for e in range(4):
            ops.append(f'v_fma_f32 v{R[e]}, v{vRR}, v{R[e]}, v{b[e]}')
        for e in range(4):
            ops.append(f'v_mul_f32 v{u[e]}, v{R[e]}, v{R[e]}')
        for e in range(4):
            ops.append(f'v_fma_f32 v{u[e]}, v{u[e]}, s{sT3}, v{vTMP + 2}')
        for e in range(4):
            ops.append(f'v_mul_f32 v{u[e]}, v{u[e]}, v{R[e]}')
        for e in range(4):
            ops.append(f'v_exp_f32 v{w[e]}, v{u[e]}')
        for e in range(4):
            ops.append(f'v_add_f32 v{w[e]}, 1.0, v{w[e]}')
        for e in range(4):
            ops.append(f'v_rcp_f32 v{w[e]}, v{w[e]}')
        for e in range(4):
            ops.append(f'v_mul_f32 v{R[e]}, v{R[e]}, v{w[e]}')
        ops.append(f'v_cvt_pk_bf16_f32 v{acc + 2 * q}, v{R[0]}, v{R[1]}')
        ops.append(f'v_cvt_pk_bf16_f32 v{acc + 2 * q + 1}, v{R[2]}, v{R[3]}')
    return ops


def gelu_simple(a, g, pas, extras=(), sttag='st'):
    acc = AC_A if pas == 0 else AC_B
    gelu_prep_ops(a, g, pas)
    csb, b1b = BUFA, BUFA + 16
    for qd in range(4):
        a.ds(f'ds_read_b128 v[{csb + 4 * qd}:{csb + 4 * qd + 3}], v{vU + 1} offset:{qd * 32}', 'gq')
        a.ds(f'ds_read_b128 v[{b1b + 4 * qd}:{b1b + 4 * qd + 3}], v{vU + 1} offset:{128 + qd * 32}', 'gq')
    a(f's_mov_b32 s{sT3}, {fl(C2)}')
    a(f'v_mov_b32 v{vTMP + 2}, {fl(C1)}')
    a(f'''
s_mul_i32 s{sHO}, s{sT}, 112
s_lshl_b32 s{sT0}, s{sG}, 1
s_add_u32 s{sT0}, s{sT0}, s{sF0}
s_add_u32 s{sT0}, s{sT0}, {pas}
s_lshl_b32 s{sT0}, s{sT0}, 1
s_add_u32 s{sHO}, s{sHO}, s{sT0}
s_lshl_b32 s{sHO}, s{sHO}, 10
s_add_u32 s{sHO}, s{sHO}, {HF}
''')
    a.wait_lg('gq')
    gops = gelu_ops(a, acc, csb, b1b, 80)
    extras = list(extras)
    ne = len(extras)
    done = 0
    for i, op in enumerate(gops):
        while done < ne and done * len(gops) <= i * ne:
            emit(a, extras[done])
            done += 1
        a(op)
    while done < ne:
        emit(a, extras[done])
        done += 1
    a.vmem(f'buffer_store_dwordx4 v[{acc}:{acc + 3}], v{vL16}, {srd(S_WS)}, s{sHO} offen{SC}', sttag)
    a.vmem(f'buffer_store_dwordx4 v[{acc + 4}:{acc + 7}], v{vL16}, {srd(S_WS)}, s{sHO} offen offset:1024{SC}', sttag)


def p2_stage(a, n, g):
    a.comment(f'--- P2 stage {n} g={g}')
    a.wait_vm(f'c{n}')
    if n == 12:
        a.wait_lg('w')
    if n in PREBAR:
        PREBAR[n](a, g)
    if 'nobar' not in EXP:
        a('s_barrier')
    if n in HOOKS:
        HOOKS[n](a, g)
    rebase(a, [aW + j for j in range(4)], n)
    c = chunk_for_stage(n)
    dm = dma_ops(a, c, g)
    db, da = dm[:1], dm[1:]
    ra = [p2_read_ops(a, n, p) for p in P2A]
    if n > 8:
        p2_b_phase(a, n - 1, ra, db)
    else:
        run_gaps(a, ra + [db])
    rb = [p2_read_ops(a, n, p) for p in P2B]
    p2_a_phase(a, n, rb, da)
    if n == 11:
        write_cs_partials(a, [(vCSA, (3 + 2 * g) * 512)])


STAMPS = {'p1_0': 1, 'p1_7': 2, 'e1': 3, 'p2_11': 4, 'p2_15': 5, 'tail': 6, 'gelu': 7}


def st(a, name):
    if name in STAMPS:
        stamp(a, STAMPS[name])


def gen_k1(label):
    a = Asm()
    end = label + '_end'
    prologue(a, end, None)
    build_srds(a, ['x', 'wq', 'w1', 'ws', 'w2', 'wo', 'b1'])
    stamp(a, 0, 0)
    setup(a)
    g1 = label + '_g1'
    a(f's_cmp_eq_u32 s{sG}, 1')
    a(f's_cbranch_scc1 {g1}')
    for g in (0, 1):
        if g == 1:
            a.label(g1)
            a.vm, a.lg = [], []
        for n in range(5):
            for d in dma_ops(a, n, g):
                d()
        setup2(a)
        for n in range(8):
            p1_stage(a, n, g)
            st(a, f'p1_{n}')
        p1_epilogue(a, g)
        st(a, 'e1')
        for n in range(8, 16):
            p2_stage(a, n, g)
            st(a, f'p2_{n}')
        p2_b_phase(a, 15, [[], [], [], []], [])
        write_cs_partials(a, [(vCSB, (3 + 2 * g + 1) * 512)])
        a.wait_all()
        a('s_barrier')
        st(a, 'tail')
        prep_finish(a)
        gelu_simple(a, g, 0)
        skip = a.newlabel('skipb')
        if g == 1:
            a(f's_cmp_eq_u32 s{sPB}, 0')
            a(f's_cbranch_scc1 {skip}')
        gelu_simple(a, g, 1)
        if g == 1:
            a.label(skip)
        st(a, 'gelu')
        a('s_waitcnt vmcnt(0)')
        stamp(a, 9, 1)
        stamp_flush(a, 0)
        a('s_endpgm')
    a.label(end)
    a('s_endpgm')
    return a
```

```python
from common import *
import k1
from k1 import (XR, WR, ST, CSP, SCR, X, fl, xslot, p1_frag, p1_read_ops, run_gaps, p2_frag, p2_mfma, p2_m16,
                P2A, P2B, C_Q, C1, C2, AC_A, AC_Q, AC_K, AC_B, BUFA, BUFB,
                sTB, sHP, sF0, sT0, sT1, sT2, sT3, sMASK, sMX, sMW, sM2, sPB, sT, sQO, sKO, sHO,
                vXD, vWD, vW1D, aX, aW, vU, vCS0, vCS1, vCSA, vCSB, vSEL, vTMP, vL16, vM, vR, vRR, vMRR,
                vB1A, vB1B)

SXB = ST + 2048
vSQ0, vSQ1 = 16, 17
vCSW, vSXW = 18, 19
vSXA = 28
aWH = 8
sC2 = 59
sCM = 96
vSCW, vSCR = 20, 21
vCSV = 22
vQS = 23
QT = 24
QT2 = 80

P2POS = {8: 49152, 9: 65536, 10: 0, 11: 16384, 12: 32768, 13: 98304, 14: 114688, 15: 49152}

HOOKS, PREBAR = {}, {}
SCHED = {}
OPT = {}


def split_even(ops, n):
    out = [[] for _ in range(n)]
    for i, o in enumerate(ops):
        out[(i * n) // max(len(ops), 1)].append(o)
    return out


sROT, sKX, sKW = 93, 57, 58


def rot_setup(a):
    m = OPT.get('rot', 0)
    if m == 1:
        a(f's_and_b32 s{sROT}, s{sTB}, 3')
    elif m == 2:
        a(f's_lshr_b32 s{sROT}, s{sSLOT}, 3')
        a(f's_add_u32 s{sROT}, s{sROT}, s{sTB}')
        a(f's_and_b32 s{sROT}, s{sROT}, 3')
    elif m == 3:
        a(f's_and_b32 s{sROT}, s{sTB}, 1')
        a(f's_lshl_b32 s{sROT}, s{sROT}, 1')
    elif m == 4:
        a(f's_lshr_b32 s{sROT}, s{sTB}, 1')
        a(f's_and_b32 s{sROT}, s{sROT}, 3')
    if m:
        a(f's_lshl_b32 s{sROT}, s{sROT}, 1')


def dma_ops(a, n, g):
    if n < 8 and not OPT.get('rot'):
        return k1.dma_ops(a, n, g)
    ops = []
    if n < 8:
        tag = f'c{n}'

        def xop(q):
            def f():
                if q == 0:
                    a(f's_add_u32 s{sKW}, s{sROT}, {n}')
                    a(f's_and_b32 s{sKW}, s{sKW}, 7')
                    a(f's_lshl_b32 s{sKX}, s{sKW}, 7')
                    a(f's_mul_i32 s{sKW}, s{sKW}, 196608')
                a(f's_add_u32 m0, s{sMX}, {xslot(n) + q * 1024}')
                a.vmem(f'buffer_load_dwordx4 v{vXD + q}, {srd(S_X)}, s{sKX} offen lds', tag)
            return f

        def wop(ldsoff, extra):
            def f():
                a(f's_add_u32 m0, s{sMW}, {ldsoff}')
                if extra:
                    a(f's_add_u32 s{sT2}, s{sKW}, {extra}')
                a.vmem(f'buffer_load_dwordx4 v{vWD}, {srd(S_WQ)}, s{sT2 if extra else sKW} offen lds', tag)
            return f
        wb = (n % 5) * 12288
        ops = [xop(0), xop(1)]
        if g == 0:
            ops.append(wop(wb + 2 * 4096, 0))
        else:
            ops.append(wop(wb, 0))
            ops.append(wop(wb + 4096, 1024))
        return ops
    ps, C = (n - 8) // 4, (n - 8) % 4
    for q in range(2):
        val = C * 458752 + q * 57344

        def f(q=q, val=val):
            a(f's_add_u32 m0, s{sM2}, {P2POS[n] + q * 1024}')
            if OPT.get('rot'):
                a(f's_lshr_b32 s{sT2}, s{sROT}, 1')
                a(f's_add_u32 s{sT2}, s{sT2}, {C}')
                a(f's_and_b32 s{sT2}, s{sT2}, 3')
                a(f's_mul_i32 s{sT2}, s{sT2}, 458752')
                if q:
                    a(f's_add_u32 s{sT2}, s{sT2}, {q * 57344}')
                if ps:
                    a(f's_add_u32 s{sT2}, s{sT2}, s{sPB}')
                elif k1.EV:
                    a(f's_add_u32 s{sT2}, s{sT2}, s{k1.sPA}')
            elif ps == 0:
                a(f's_mov_b32 s{sT2}, {val}')
            else:
                a(f's_add_u32 s{sT2}, s{sPB}, {val}')
            a.vmem(f'buffer_load_dwordx4 v{vW1D}, {srd(S_W1)}, s{sT2} offen lds', f'c{n}')
        ops.append(f)
    return ops


def setup2(a):
    k1.setup2(a)
    a(f'''
v_and_b32 v{vCSW}, 15, v0
v_lshlrev_b32 v{vSXW}, 6, v{vCSW}
v_lshlrev_b32 v{vCSW}, 8, v{vCSW}
v_lshrrev_b32 v2, 4, v0
v_lshlrev_b32 v3, 6, v2
s_lshl_b32 s{sT0}, s{sTT}, 2
s_add_u32 s{sT0}, s{sT0}, {CSP}
v_add3_u32 v{vCSW}, v{vCSW}, v3, s{sT0}
v_lshlrev_b32 v3, 4, v2
s_lshl_b32 s{sT0}, s{sTT}, 7
s_add_u32 s{sT0}, s{sT0}, {SXB}
v_add3_u32 v{vSXW}, v{vSXW}, v3, s{sT0}
s_mov_b32 s{sCM}, 0x00030003
s_mov_b32 s{sCM + 1}, 0x00030003
''')


def cs_write_ops(a, accs_panels, sx=False):
    ops = [f's_mov_b64 exec, s[{sCM}:{sCM + 1}]']
    for acc, off in accs_panels:
        for r in range(4):
            ops.append(lambda acc=acc, off=off, r=r:
                       a.ds(f'ds_write_b32 v{vCSW}, v{acc + r} offset:{off + r * 16}', 'w'))
    if sx:
        ops.append(lambda: a.ds(f'ds_write_b128 v{vSXW}, v[{vSXA}:{vSXA + 3}]', 'w'))
    ops.append('s_mov_b64 exec, -1')
    return ops


def stat_reg(n, g, j, k):
    x = X(n, j) + ((0, 1)[k] if g == 0 else (2, 3)[k])
    t = vU + 2 * k
    return [f'v_and_b32 v{t}, s{sMASK}, v{x}',
            f'v_lshlrev_b32 v{t + 1}, 16, v{x}',
            f'v_fmac_f32 v{vSQ0}, v{t}, v{t}',
            f'v_fmac_f32 v{vSQ1}, v{t + 1}, v{t + 1}']


def sx16(n, j):
    return mfma16(vSXA, X(n, j), vSEL, '0' if (n == 0 and j == 0) else None)


def gram(n, j):
    return mfma32(AC_K, X(n, j), X(n, j), '0' if (n == 0 and j == 0) else None)


def p1_b_phase(a, n, g, ra, dm):
    w = lambda j: (lambda: a.wait_lg(f'P{n}_{j}'))
    S = lambda j, k: stat_reg(n, g, j, k)
    d = list(dm) + [[]] * 4
    if OPT.get('gram'):
        if g == 0:
            q = lambda j: mfma32(AC_Q, p1_frag(0, j, 0), X(n, j))
            k_ = lambda j: mfma32(AC_K, p1_frag(0, j, 1), X(n, j))
            run_gaps(a, [w(2), q(2), ra[0][:3], k_(2), ra[0][3:], d[0],
                         w(3), q(3), ra[1][:3], k_(3), ra[1][3:], d[1]])
        else:
            v_ = lambda j: mfma32(AC_Q, X(n, j), p1_frag(1, j, 0))
            run_gaps(a, [w(2), v_(2), ra[0], gram(n, 2), d[0], sx16(n, 2),
                         w(3), v_(3), ra[1], gram(n, 3), d[1], sx16(n, 3)])
        return
    if g == 0:
        q = lambda j: mfma32(AC_Q, p1_frag(0, j, 0), X(n, j))
        k_ = lambda j: mfma32(AC_K, p1_frag(0, j, 1), X(n, j))
        run_gaps(a, [w(2), q(2), ra[0][:3], S(2, 0),
                     k_(2), ra[0][3:], d[0], S(2, 1),
                     w(3), q(3), ra[1][:3], S(3, 0),
                     k_(3), ra[1][3:], d[1], S(3, 1)])
    else:
        v_ = lambda j: mfma32(AC_Q, X(n, j), p1_frag(1, j, 0))
        run_gaps(a, [w(2), v_(2), ra[0], S(2, 0), sx16(n, 2), d[0], S(2, 1),
                     w(3), v_(3), ra[1], S(3, 0), sx16(n, 3), d[1], S(3, 1)])


def p1_a_phase(a, n, g, rb, dm):
    w = lambda j: (lambda: a.wait_lg(f'P{n}_{j}'))
    S = lambda j, k: stat_reg(n, g, j, k)
    d = list(dm) + [[]] * 4
    z = lambda first: '0' if first else None
    if OPT.get('gram'):
        if g == 0:
            q = lambda j: mfma32(AC_Q, p1_frag(0, j, 0), X(n, j), z(n == 0 and j == 0))
            k_ = lambda j: mfma32(AC_K, p1_frag(0, j, 1), X(n, j), z(n == 0 and j == 0))
            run_gaps(a, [w(0), q(0), rb[0][:3], k_(0), rb[0][3:],
                         mfma16(vCS0, p1_frag(0, 0, 0), vSEL, z(n == 0)), d[0],
                         mfma16(vCS1, p1_frag(0, 0, 1), vSEL, z(n == 0)), rb[1][:3],
                         w(1), q(1), rb[1][3:], k_(1), d[1]])
        else:
            v_ = lambda j: mfma32(AC_Q, X(n, j), p1_frag(1, j, 0), z(n == 0 and j == 0))
            run_gaps(a, [w(0), v_(0), rb[0], gram(n, 0),
                         mfma16(vCS0, p1_frag(1, 0, 0), vSEL, z(n == 0)), d[0], sx16(n, 0),
                         w(1), v_(1), rb[1], gram(n, 1), d[1], sx16(n, 1)])
        return
    if g == 0:
        q = lambda j: mfma32(AC_Q, p1_frag(0, j, 0), X(n, j), z(n == 0 and j == 0))
        k_ = lambda j: mfma32(AC_K, p1_frag(0, j, 1), X(n, j), z(n == 0 and j == 0))
        run_gaps(a, [w(0), q(0), rb[0][:3], S(0, 0),
                     k_(0), rb[0][3:], S(0, 1),
                     mfma16(vCS0, p1_frag(0, 0, 0), vSEL, z(n == 0)), d[0],
                     mfma16(vCS1, p1_frag(0, 0, 1), vSEL, z(n == 0)), rb[1][:3],
                     w(1), q(1), rb[1][3:], S(1, 0),
                     k_(1), d[1], S(1, 1)])
    else:
        v_ = lambda j: mfma32(AC_Q, X(n, j), p1_frag(1, j, 0), z(n == 0 and j == 0))
        run_gaps(a, [w(0), v_(0), rb[0], S(0, 0),
                     mfma16(vCS0, p1_frag(1, 0, 0), vSEL, z(n == 0)), d[0], S(0, 1), sx16(n, 0),
                     w(1), v_(1), rb[1], S(1, 0), sx16(n, 1), d[1], S(1, 1)])


def stage_head(a, n, g):
    a.wait_vm(f'c{n}')
    if n in PREBAR:
        PREBAR[n](a, g)
    a('s_barrier')
    if n in HOOKS:
        HOOKS[n](a, g)


def p1_stage(a, n, g):
    a.comment(f'--- P1 stage {n} g={g}')
    if OPT.get('dep', 3) == 4:
        a.wait_lg()
    stage_head(a, n, g)
    k1.rebase(a, [aX + j for j in range(4)], n)
    dm = [d for c in SCHED[n] for d in dma_ops(a, c, g)]
    db, da = k1.split_dma(dm, g, True)
    nb_ = OPT.get('db0' if g == 0 else 'db1')
    if nb_ is not None:
        db, da = dm[:nb_], dm[nb_:]
    two = lambda l: [l[:(len(l) + 1) // 2], l[(len(l) + 1) // 2:]]
    ra = [p1_read_ops(a, n, g, 0), p1_read_ops(a, n, g, 1)]
    if n > 0:
        p1_b_phase(a, n - 1, g, ra, two(db))
    else:
        run_gaps(a, ra)
        da = db + da
    da = two(da)
    rb = [p1_read_ops(a, n, g, 2), p1_read_ops(a, n, g, 3)]
    p1_a_phase(a, n, g, rb, da)


def e1a(a, g, dmas, prebar=None):
    a.comment(f'--- P1 epilogue g={g}')
    dmas = list(dmas)
    nxt = lambda: dmas.pop(0)() if dmas else None
    p1_b_phase(a, 7, g, [[], []], [])
    t = BUFA
    gr = OPT.get('gram')
    a(f'''
{'' if gr else f'v_add_f32 v{vSQ0}, v{vSQ0}, v{vSQ1}'}
v_and_b32 v{t}, 31, v0
v_lshlrev_b32 v{t + 1}, 4, v{t}
s_lshl_b32 s{sT0}, s{sTT}, 9
s_add_u32 s{sT0}, s{sT0}, {ST}
v_add_u32 v{t + 1}, s{sT0}, v{t + 1}
v_lshrrev_b32 v{t + 2}, 5, v0
v_lshlrev_b32 v{t + 2}, 2, v{t + 2}
v_add3_u32 v{t + 2}, v{t + 2}, v{t + 1}, {8 * g}
''')
    if not gr:
        a.ds(f'ds_write_b32 v{t + 2}, v{vSQ0}', 'w')
    run_gaps(a, [cs_write_ops(a, [(vCS0, 0), (vCS1, 512)] if g == 0 else [(vCS0, 1024)], sx=(g == 1))])
    if gr and g == 1:
        regs = [AC_K + r for r in range(16)]
        for m in (0xAAAAAAAA, 0xCCCCCCCC, 0xFF00FF00, 0xFFFF0000):
            a(f's_mov_b32 vcc_lo, {m:#x}')
            a(f's_mov_b32 vcc_hi, {m:#x}')
            nxt_regs = []
            for i in range(0, len(regs), 2):
                a(f'v_cndmask_b32 v{regs[i]}, v{regs[i]}, v{regs[i + 1]}, vcc')
                nxt_regs.append(regs[i])
            regs = nxt_regs
        a('s_mov_b32 exec_lo, 0x0f0f0f0f')
        a('s_mov_b32 exec_hi, 0xf0f0f0f0')
        a.ds(f'ds_write_b32 v{t + 1}, v{AC_K}', 'w')
        a('s_mov_b64 exec, -1')
    a(f'''
v_lshlrev_b32 v{t + 2}, 2, v{t}
s_lshl_b32 s{sT0}, s{sTT}, 7
s_add_u32 s{sT0}, s{sT0}, {SXB}
v_add_u32 v{t + 2}, s{sT0}, v{t + 2}
v_lshlrev_b32 v{t + 3}, 4, v{t}
v_add_u32 v{t + 3}, {CSP}, v{t + 3}
''')
    if g == 0:
        a(f'''
v_lshrrev_b32 v{t}, 5, v0
v_lshlrev_b32 v{t}, 9, v{t}
v_add_u32 v{t + 3}, v{t + 3}, v{t}
''')
    a.wait_lg()
    if prebar:
        prebar(a, g)
    a('s_barrier')
    if gr:
        a.ds(f'ds_read_b32 v{t + 4}, v{t + 1}', 's')
    else:
        a.ds(f'ds_read_b128 v[{t + 4}:{t + 7}], v{t + 1}', 's')
    a.ds(f'ds_read_b32 v{t + 12}, v{t + 2}', 's')
    a.ds(f'ds_read_b128 v[{t + 8}:{t + 11}], v{t + 3} offset:{0 if g == 0 else 1024}', 'c')
    if not OPT.get('prs'):
        prep_issue(a)
    a(f'''
v_and_b32 v{vTMP + 2}, 31, v0
v_and_b32 v{vTMP + 3}, 19, v{vTMP + 2}
v_bfe_u32 v{vCS0}, v0, 2, 1
v_lshlrev_b32 v{vCS0}, 3, v{vCS0}
v_bfe_u32 v{vCS0 + 1}, v0, 3, 1
v_lshlrev_b32 v{vCS0 + 1}, 2, v{vCS0 + 1}
v_add3_u32 v{vTMP + 3}, v{vTMP + 3}, v{vCS0}, v{vCS0 + 1}
v_lshlrev_b32 v{vTMP + 3}, 1, v{vTMP + 3}
{k1.col_bytes()}
s_add_u32 s{sT1}, s{sT0}, s{sPB}
{f's_add_u32 s{sT0}, s{sT0}, s{k1.sPA}' if k1.EV else ''}
''')
    a.vmem(f'buffer_load_ushort v{vB1A}, v{vTMP + 3}, {srd(S_B1)}, s{sT0} offen', 'b1')
    a.vmem(f'buffer_load_ushort v{vB1B}, v{vTMP + 3}, {srd(S_B1)}, s{sT1} offen', 'b1')
    a.wait_lg('s')
    a(f'''
{'' if gr else f'v_add_f32 v{t + 4}, v{t + 4}, v{t + 5}'}
{'' if gr else f'v_add_f32 v{t + 6}, v{t + 6}, v{t + 7}'}
v_mul_f32 v{vM}, {fl(1 / 512)}, v{t + 12}
{'' if gr else f'v_add_f32 v{t + 4}, v{t + 4}, v{t + 6}'}
v_mul_f32 v{t + 4}, {fl(1 / 512)}, v{t + 4}
v_fma_f32 v{t + 4}, -v{vM}, v{vM}, v{t + 4}
v_max_f32 v{t + 4}, 0, v{t + 4}
v_add_f32 v{t + 5}, {fl(1e-5)}, v{t + 4}
v_rsq_f32 v{vR}, v{t + 5}
''')
    nxt()
    a.wait_lg('c')
    a(f'''
v_add_f32 v{t + 8}, v{t + 8}, v{t + 9}
v_add_f32 v{t + 10}, v{t + 10}, v{t + 11}
v_mul_f32 v{t + 5}, v{vR}, v{vR}
v_mul_f32 v{t + 5}, v{t + 5}, v{t + 4}
v_add_f32 v{t + 5}, {fl(1e-5)}, v{t + 5}
v_rsq_f32 v{t + 5}, v{t + 5}
v_add_f32 v{t + 8}, v{t + 8}, v{t + 10}
s_lshl_b32 s{sT0}, s{sW}, 8
s_add_u32 s{sT0}, s{sT0}, {SCR}
v_lshlrev_b32 v{vSCW}, 2, v0
v_add_u32 v{vSCW}, s{sT0}, v{vSCW}
v_lshrrev_b32 v{vSCR}, 5, v0
v_lshlrev_b32 v{vSCR}, 4, v{vSCR}
v_add_u32 v{vSCR}, s{sT0}, v{vSCR}
v_mul_f32 v{vRR}, v{vR}, v{t + 5}
v_mul_f32 v{vMRR}, v{vM}, v{vRR}
''')
    if g == 0:
        a.ds(f'ds_write_b32 v{vSCW}, v{t + 8}', 'w')
        a(f'v_mul_f32 v{vQS}, {fl(C_Q)}, v{vR}')
    else:
        a(f'''
v_mul_f32 v{t + 9}, v{vM}, v{vR}
v_cmp_gt_u32 vcc, 32, v0
v_cndmask_b32 v{t + 9}, v{t + 9}, v{vR}, vcc
''')
        a.ds(f'ds_write_b32 v{vSCW}, v{t + 9}', 'w')
        a(f'''
v_mov_b32 v{vCSV}, v{t + 8}
v_bfe_u32 v{vQS}, v0, 4, 1
v_lshlrev_b32 v{vQS}, 17, v{vQS}
v_and_b32 v{t + 3}, 15, v0
v_lshlrev_b32 v{t + 3}, 4, v{t + 3}
v_add_u32 v{vQS}, v{vQS}, v{t + 3}
v_lshrrev_b32 v{t + 3}, 5, v0
v_lshlrev_b32 v{t + 3}, 8, v{t + 3}
v_add_u32 v{vQS}, v{vQS}, v{t + 3}
''')
    nxt()
    a(f'''
s_lshl_b32 s{sT0}, s{sHP}, 17
s_lshl_b32 s{sT1}, s{sT}, 10
s_add_u32 s{sQO}, s{sT0}, s{sT1}
s_lshl_b32 s{sT0}, s{sHP}, 18
s_lshl_b32 s{sT1}, s{sT}, 11
s_add_u32 s{sKO}, s{sT0}, s{sT1}
s_add_u32 s{sKO}, s{sKO}, {KV}
s_lshl_b32 s{sT0}, s{sG}, 13
s_sub_u32 s{sT0}, s{sT0}, {WR}
''')
    for j in range(4):
        a(f'v_add_u32 v{aW + j}, s{sT0}, v{aW + j}')
    for j in range(4):
        a(f'v_add_u32 v{aWH + j}, 0x10000, v{aW + j}')
    while dmas:
        nxt()


def e1m(a, g, dmas, prebar, e1b_first):
    a.comment(f'--- P1 epilogue + P2 stage 8, g={g}')
    dmas = list(dmas)
    p1_b_phase(a, 7, g, [[], []], [])
    t, u = BUFA, BUFB
    a(f'''
v_add_f32 v{vSQ0}, v{vSQ0}, v{vSQ1}
v_and_b32 v{t}, 31, v0
v_lshlrev_b32 v{t + 1}, 4, v{t}
s_lshl_b32 s{sT0}, s{sTT}, 9
s_add_u32 s{sT0}, s{sT0}, {ST}
v_add_u32 v{t + 1}, s{sT0}, v{t + 1}
v_lshrrev_b32 v{t + 2}, 5, v0
v_lshlrev_b32 v{t + 2}, 2, v{t + 2}
v_add3_u32 v{t + 2}, v{t + 2}, v{t + 1}, {8 * g}
''')
    a.ds(f'ds_write_b32 v{t + 2}, v{vSQ0}', 'w')
    run_gaps(a, [cs_write_ops(a, [(vCS0, 0), (vCS1, 512)] if g == 0 else [(vCS0, 1024)], sx=(g == 1))])
    a(f'''
v_lshlrev_b32 v{t + 2}, 2, v{t}
s_lshl_b32 s{sT0}, s{sTT}, 7
s_add_u32 s{sT0}, s{sT0}, {SXB}
v_add_u32 v{t + 2}, s{sT0}, v{t + 2}
v_lshlrev_b32 v{t + 3}, 4, v{t}
v_add_u32 v{t + 3}, {CSP}, v{t + 3}
''')
    if g == 0:
        a(f'''
v_lshrrev_b32 v{t}, 5, v0
v_lshlrev_b32 v{t}, 9, v{t}
v_add_u32 v{t + 3}, v{t + 3}, v{t}
''')
    a(f'''
s_lshl_b32 s{sT0}, s{sG}, 13
s_sub_u32 s{sT0}, s{sT0}, {WR}
''')
    for j in range(4):
        a(f'v_add_u32 v{aW + j}, s{sT0}, v{aW + j}')
    for j in range(4):
        a(f'v_add_u32 v{aWH + j}, 0x10000, v{aW + j}')
    a.wait_lg()
    if prebar:
        prebar(a, g)
    a.wait_vm('c8')
    a('s_barrier')
    a.ds(f'ds_read_b128 v[{u + 4}:{u + 7}], v{t + 1}', 's')
    a.ds(f'ds_read_b32 v{u + 12}, v{t + 2}', 's')
    a.ds(f'ds_read_b128 v[{u + 8}:{u + 11}], v{t + 3} offset:{0 if g == 0 else 1024}', 'c')
    run_gaps(a, [p2_read_ops(a, 8, p) for p in P2A])

    def b1_ops(r):
        r(f'''
v_and_b32 v{vTMP + 2}, 31, v0
v_and_b32 v{vTMP + 3}, 19, v{vTMP + 2}
v_bfe_u32 v{vCS0}, v0, 2, 1
v_lshlrev_b32 v{vCS0}, 3, v{vCS0}
v_bfe_u32 v{vCS0 + 1}, v0, 3, 1
v_lshlrev_b32 v{vCS0 + 1}, 2, v{vCS0 + 1}
v_add3_u32 v{vTMP + 3}, v{vTMP + 3}, v{vCS0}, v{vCS0 + 1}
v_lshlrev_b32 v{vTMP + 3}, 1, v{vTMP + 3}
{k1.col_bytes()}
s_add_u32 s{sT1}, s{sT0}, s{sPB}
{f's_add_u32 s{sT0}, s{sT0}, s{k1.sPA}' if k1.EV else ''}
''')
        r.vmem(f'buffer_load_ushort v{vB1A}, v{vTMP + 3}, {srd(S_B1)}, s{sT0} offen', 'b1')
        r.vmem(f'buffer_load_ushort v{vB1B}, v{vTMP + 3}, {srd(S_B1)}, s{sT1} offen', 'b1')

    def s1(r):
        r.wait_lg('s')
        r(f'''
v_add_f32 v{u + 4}, v{u + 4}, v{u + 5}
v_add_f32 v{u + 6}, v{u + 6}, v{u + 7}
v_mul_f32 v{vM}, {fl(1 / 512)}, v{u + 12}
v_add_f32 v{u + 4}, v{u + 4}, v{u + 6}
v_mul_f32 v{u + 4}, {fl(1 / 512)}, v{u + 4}
v_fma_f32 v{u + 4}, -v{vM}, v{vM}, v{u + 4}
v_max_f32 v{u + 4}, 0, v{u + 4}
v_add_f32 v{u + 5}, {fl(1e-5)}, v{u + 4}
v_rsq_f32 v{vR}, v{u + 5}
''')

    def s2(r):
        r.wait_lg('c')
        r(f'''
v_add_f32 v{u + 8}, v{u + 8}, v{u + 9}
v_add_f32 v{u + 10}, v{u + 10}, v{u + 11}
v_mul_f32 v{u + 5}, v{vR}, v{vR}
v_mul_f32 v{u + 5}, v{u + 5}, v{u + 4}
v_add_f32 v{u + 5}, {fl(1e-5)}, v{u + 5}
v_rsq_f32 v{u + 5}, v{u + 5}
v_add_f32 v{u + 8}, v{u + 8}, v{u + 10}
s_lshl_b32 s{sT0}, s{sW}, 8
s_add_u32 s{sT0}, s{sT0}, {SCR}
v_lshlrev_b32 v{vSCW}, 2, v0
v_add_u32 v{vSCW}, s{sT0}, v{vSCW}
v_lshrrev_b32 v{vSCR}, 5, v0
v_lshlrev_b32 v{vSCR}, 4, v{vSCR}
v_add_u32 v{vSCR}, s{sT0}, v{vSCR}
v_mul_f32 v{vRR}, v{vR}, v{u + 5}
v_mul_f32 v{vMRR}, v{vM}, v{vRR}
''')

    def s3(r):
        if g == 0:
            r.ds(f'ds_write_b32 v{vSCW}, v{u + 8}', 'w')
            r(f'v_mul_f32 v{vQS}, {fl(C_Q)}, v{vR}')
        else:
            r(f'''
v_mul_f32 v{u + 9}, v{vM}, v{vR}
v_cmp_gt_u32 vcc, 32, v0
v_cndmask_b32 v{u + 9}, v{u + 9}, v{vR}, vcc
''')
            r.ds(f'ds_write_b32 v{vSCW}, v{u + 9}', 'w')
            r(f'''
v_mov_b32 v{vCSV}, v{u + 8}
v_bfe_u32 v{vQS}, v0, 4, 1
v_lshlrev_b32 v{vQS}, 17, v{vQS}
v_and_b32 v{u + 3}, 15, v0
v_lshlrev_b32 v{u + 3}, 4, v{u + 3}
v_add_u32 v{vQS}, v{vQS}, v{u + 3}
v_lshrrev_b32 v{u + 3}, 5, v0
v_lshlrev_b32 v{u + 3}, 8, v{u + 3}
v_add_u32 v{vQS}, v{vQS}, v{u + 3}
''')

    def offs(r):
        r(f'''
s_lshl_b32 s{sT0}, s{sHP}, 17
s_lshl_b32 s{sT1}, s{sT}, 10
s_add_u32 s{sQO}, s{sT0}, s{sT1}
s_lshl_b32 s{sT0}, s{sHP}, 18
s_lshl_b32 s{sT1}, s{sT}, 11
s_add_u32 s{sKO}, s{sT0}, s{sT1}
s_add_u32 s{sKO}, s{sKO}, {KV}
''')
    w = lambda p: (lambda: a.wait_lg(f'P8_{p}'))
    mm = lambda p: [w(p), p2_mfma(8, p)] + ([p2_m16(8, p)] if p in (0, 4) else [])
    mode = OPT.get('e1m', 1)
    prep = [] if OPT.get('prs') else [lambda: prep_issue(a)]
    nd = len(dmas) // 2
    if mode == 1:
        run_gaps(a, [prep, record(a, b1_ops), record(a, s1), mm(P2A[0]), dmas[:nd][:1], record(a, s2), mm(P2A[1]),
                     record(a, s3), e1b_first[:2], record(a, offs), mm(P2A[2]), dmas[1:nd], mm(P2A[3])])
        rest = dmas[nd:]
    elif mode == 2:
        run_gaps(a, [record(a, b1_ops), record(a, s1), mm(P2A[0]), record(a, s2), mm(P2A[1]),
                     record(a, s3), e1b_first[:2], record(a, offs), mm(P2A[2]), prep, mm(P2A[3]), dmas[:nd]])
        rest = dmas[nd:]
    else:
        run_gaps(a, [record(a, offs), record(a, s1), mm(P2A[0]), record(a, s2), mm(P2A[1]),
                     record(a, s3), e1b_first[:2], mm(P2A[2]), record(a, b1_ops), mm(P2A[3]), prep, dmas[:nd]])
        rest = dmas[nd:]
    rb = [p2_read_ops(a, 8, p) for p in P2B]
    run_gaps(a, rb)
    rem = split_even(e1b_first[2:], len(rest) + 1)
    for i, p in enumerate(rem):
        run_gaps(a, [p])
        if i < len(rest):
            rest[i]()


def e1b_ops(a, g):
    SC = k1.SC
    ops = []
    if g == 0:
        quads = [(p, qd) for p in (0, 1) for qd in range(4)]
        rd = lambda i: (lambda: a.ds(f'ds_read_b128 v[{QT + 4 * (i % 2)}:{QT + 4 * (i % 2) + 3}], v{vSCR} '
                                     f'offset:{quads[i][0] * 128 + quads[i][1] * 32}', f'eq{i}'))
        ops += [rd(0), rd(1)]
        for i, (p, qd) in enumerate(quads):
            acc = AC_Q if p == 0 else AC_K
            sc = vQS if p == 0 else vR
            T = QT + 4 * (i % 2)
            R = [acc + 4 * qd + e for e in range(4)]
            ops.append(lambda i=i: a.wait_lg(f'eq{i}'))
            ops += [f'v_fma_f32 v{R[e]}, -v{vM}, v{T + e}, v{R[e]}' for e in range(4)]
            if i + 2 < 8:
                ops.append(rd(i + 2))
            ops += [f'v_mul_f32 v{R[e]}, v{sc}, v{R[e]}' for e in range(4)]
            ops.append(f'v_cvt_pk_bf16_f32 v{acc + 2 * qd}, v{R[0]}, v{R[1]}')
            ops.append(f'v_cvt_pk_bf16_f32 v{acc + 2 * qd + 1}, v{R[2]}, v{R[3]}')
            if qd in (1, 3):
                half = qd // 2
                so, delta = (sQO, 65536) if p == 0 else (sKO, 131072)

                def stf(acc=acc, half=half, so=so, delta=delta):
                    if half == 0:
                        s_ = f's{so}'
                    else:
                        a(f's_add_u32 s{sT2}, s{so}, {delta}')
                        s_ = f's{sT2}'
                    a.vmem(f'buffer_store_dwordx4 v[{acc + 4 * half}:{acc + 4 * half + 3}], v{vL16}, {srd(S_WS)}, '
                           f'{s_} offen{SC}', 'st')
                ops.append(stf)
    else:
        acc = AC_Q
        T = lambda i: (QT, QT2)[i % 2]

        def rd(i):
            def f():
                a.ds(f'ds_read_b128 v[{T(i)}:{T(i) + 3}], v{vSCR} offset:{i * 32}', f'eq{i}')
                a.ds(f'ds_read_b128 v[{T(i) + 4}:{T(i) + 7}], v{vSCR} offset:{128 + i * 32}', f'eq{i}')
            return f
        ops += [rd(0), rd(1)]
        for qd in range(4):
            R = [acc + 4 * qd + e for e in range(4)]
            t = T(qd)
            ops.append(lambda qd=qd: a.wait_lg(f'eq{qd}'))
            ops += [f'v_mul_f32 v{t + 4 + e}, v{vCSV}, v{t + 4 + e}' for e in range(4)]
            ops += [f'v_fma_f32 v{R[e]}, v{R[e]}, v{t + e}, -v{t + 4 + e}' for e in range(4)]
            if qd + 2 < 4:
                ops.append(rd(qd + 2))
            ops.append(f'v_cvt_pk_bf16_f32 v{acc + 2 * qd}, v{R[0]}, v{R[1]}')
            ops.append(f'v_cvt_pk_bf16_f32 v{acc + 2 * qd + 1}, v{R[2]}, v{R[3]}')
            if qd in (1, 3):
                half = qd // 2
                ops.append(lambda half=half: a.vmem(
                    f'buffer_store_dwordx4 v[{acc + 4 * half}:{acc + 4 * half + 3}], v{vQS}, {srd(S_WS)}, '
                    f's{sKO} offen offset:{1024 + 512 * half}{SC}', 'st'))
    return ops


def p2_read_ops(a, n, p):
    pos = P2POS[n] + (p // 4) * 4096
    base = aW if pos < 65536 else aWH
    off = pos % 65536
    d = p2_frag(p)
    tag = f'P{n}_{p}'
    return [lambda: a.ds(f'ds_read_b64_tr_b16 v[{d}:{d + 1}], v{base + p % 4} offset:{off}', tag),
            lambda: a.ds(f'ds_read_b64_tr_b16 v[{d + 2}:{d + 3}], v{base + p % 4} offset:{off + 256}', tag)]


def p2_b_phase(a, n, ra, fill):
    w = lambda p: (lambda: a.wait_lg(f'P{n}_{p}'))
    for i, p in enumerate(P2B):
        run_gaps(a, [w(p), p2_mfma(n, p), ra[i], fill[i]])


def p2_a_phase(a, n, rb, fill):
    w = lambda p: (lambda: a.wait_lg(f'P{n}_{p}'))
    for i, p in enumerate(P2A):
        run_gaps(a, [w(p), p2_mfma(n, p), rb[i], fill[i]])
        if p in (0, 4):
            a(p2_m16(n, p))


def p2_stage(a, n, g, fill):
    a.comment(f'--- P2 stage {n} g={g}')
    if n == 12:
        a.wait_lg('w')
    stage_head(a, n, g)
    ra = [p2_read_ops(a, n, p) for p in P2A]
    if n > 8:
        p2_b_phase(a, n - 1, ra, fill[:4])
    else:
        run_gaps(a, [[x for pair in zip(ra, fill[:4]) for y in pair for x in y]])
    rb = [p2_read_ops(a, n, p) for p in P2B]
    p2_a_phase(a, n, rb, fill[4:])


GT = 80


def gelu_prep(a, g, pas):
    pi = 3 + 2 * g + pas
    b1 = vB1A if pas == 0 else vB1B
    t = vCS0
    return [f'v_and_b32 v{t + 4}, 31, v0',
            f'v_lshlrev_b32 v{t + 4}, 4, v{t + 4}',
            f'v_add_u32 v{t + 4}, {CSP}, v{t + 4}',
            lambda: a.ds(f'ds_read_b128 v[{t}:{t + 3}], v{t + 4} offset:{pi * 512}', 'gc'),
            f'v_lshlrev_b32 v{t + 4}, 16, v{b1}',
            f'v_cmp_gt_u32 vcc, 32, v0',
            lambda: a.wait_lg('gc'),
            f'v_add_f32 v{t}, v{t}, v{t + 1}',
            f'v_add_f32 v{t + 2}, v{t + 2}, v{t + 3}',
            f'v_add_f32 v{t}, v{t}, v{t + 2}',
            f'v_cndmask_b32 v{t}, v{t + 4}, v{t}, vcc',
            lambda: a.ds(f'ds_write_b32 v{vSCW}, v{t}', 'w')]


def gelu_quad(a, acc, q, tag):
    cs, b, u, w = [[GT + 4 * k + e for e in range(4)] for k in range(4)]
    R = [acc + 4 * q + e for e in range(4)]
    rd = [lambda: a.ds(f'ds_read_b128 v[{cs[0]}:{cs[3]}], v{vSCR} offset:{q * 32}', tag),
          lambda: a.ds(f'ds_read_b128 v[{b[0]}:{b[3]}], v{vSCR} offset:{128 + q * 32}', tag)]
    ops = [lambda: a.wait_lg(tag)]
    ops += [f'v_fma_f32 v{b[e]}, -v{vMRR}, v{cs[e]}, v{b[e]}' for e in range(4)]
    ops += [f'v_fma_f32 v{R[e]}, v{vRR}, v{R[e]}, v{b[e]}' for e in range(4)]
    body = [f'v_mul_f32 v{u[e]}, v{R[e]}, v{R[e]}' for e in range(4)]
    body += [f'v_fma_f32 v{u[e]}, v{u[e]}, s{sC2}, v{vTMP + 2}' for e in range(4)]
    body += [f'v_mul_f32 v{u[e]}, v{u[e]}, v{R[e]}' for e in range(4)]
    body += [f'v_exp_f32 v{w[e]}, v{u[e]}' for e in range(4)]
    body += [f'v_add_f32 v{w[e]}, 1.0, v{w[e]}' for e in range(4)]
    body += [f'v_rcp_f32 v{w[e]}, v{w[e]}' for e in range(4)]
    body += [f'v_mul_f32 v{R[e]}, v{R[e]}, v{w[e]}' for e in range(4)]
    body.append(f'v_cvt_pk_bf16_f32 v{acc + 2 * q}, v{R[0]}, v{R[1]}')
    body.append(f'v_cvt_pk_bf16_f32 v{acc + 2 * q + 1}, v{R[2]}, v{R[3]}')
    return rd, ops, body


def gelu_consts():
    return [f's_mov_b32 s{sC2}, {fl(C2)}', f'v_mov_b32 v{vTMP + 2}, {fl(C1)}']


def gelu_tile_ops(a, acc, tagp, qs=(0, 1, 2, 3)):
    out = []
    nq = len(qs)
    rds = [gelu_quad(a, acc, q, f'{tagp}{q}') for q in qs]
    out += rds[0][0]
    per = []
    for q in range(nq):
        rd, head, body = rds[q]
        seq = list(head)
        if q + 1 < nq:
            seq += rds[q + 1][0]
        seq += body
        per.append(seq)
    return out, per


def h_store(a, g, pas, tag, halves=(1, 1)):
    acc = AC_A if pas == 0 else AC_B
    if k1.EV:
        a(f'''
s_mul_i32 s{sHO}, s{sT}, 112
s_lshl_b32 s{sT0}, s{sG}, 2
s_add_u32 s{sT0}, s{sT0}, s{sF0}
s_lshr_b32 s{sT1}, s{k1.sPA if pas == 0 else sPB}, 5
s_add_u32 s{sT0}, s{sT0}, s{sT1}
s_add_u32 s{sHO}, s{sHO}, s{sT0}
s_lshl_b32 s{sHO}, s{sHO}, 10
s_add_u32 s{sHO}, s{sHO}, {HF}
''')
        if halves[0]:
            a.vmem(f'buffer_store_dwordx4 v[{acc}:{acc + 3}], v{vL16}, {srd(S_WS)}, s{sHO} offen{k1.SC}', tag)
        if halves[1]:
            a.vmem(f'buffer_store_dwordx4 v[{acc + 4}:{acc + 7}], v{vL16}, {srd(S_WS)}, s{sHO} offen offset:1024{k1.SC}',
                   tag)
        return
    a(f'''
s_mul_i32 s{sHO}, s{sT}, 112
s_lshl_b32 s{sT0}, s{sG}, 1
s_add_u32 s{sT0}, s{sT0}, s{sF0}
s_add_u32 s{sT0}, s{sT0}, {pas}
s_lshl_b32 s{sT0}, s{sT0}, 1
s_add_u32 s{sHO}, s{sHO}, s{sT0}
s_lshl_b32 s{sHO}, s{sHO}, 10
s_add_u32 s{sHO}, s{sHO}, {HF}
''')
    a.vmem(f'buffer_store_dwordx4 v[{acc}:{acc + 3}], v{vL16}, {srd(S_WS)}, s{sHO} offen{k1.SC}', tag)
    a.vmem(f'buffer_store_dwordx4 v[{acc + 4}:{acc + 7}], v{vL16}, {srd(S_WS)}, s{sHO} offen offset:1024{k1.SC}', tag)


vPO2 = 47


def prep_issue(a):
    a.comment('prep DMA')
    lbl = a.newlabel('prep_wo')
    lbl2 = a.newlabel('prep_j')
    a(f'''
v_lshrrev_b32 v{vTMP}, 2, v0
v_lshlrev_b32 v{vTMP}, 10, v{vTMP}
v_and_b32 v{vTMP + 1}, 3, v0
v_lshlrev_b32 v{vTMP + 1}, 4, v{vTMP + 1}
s_and_b32 s{sT0}, s2, 1
s_lshl_b32 s{sT0}, s{sT0}, 3
s_add_u32 s{sT0}, s{sT0}, s{sW}
s_lshl_b32 s{sT0}, s{sT0}, 6
v_add3_u32 v{vTMP}, v{vTMP}, v{vTMP + 1}, s{sT0}
s_lshr_b32 s{k1.sPS}, s2, 1
s_lshl_b32 s{sT1}, s{sW}, 10
s_add_u32 m0, s{sT1}, {WR}
s_lshl_b32 s{sT2}, s{k1.sPS}, 14
s_cmp_ge_u32 s2, 224
s_cbranch_scc1 {lbl}
''')
    a.vmem(f'buffer_load_dwordx4 v{vTMP}, {srd(S_W2)}, s{sT2} offen lds', 'prep')
    a(f's_branch {lbl2}')
    a.label(lbl)
    a(f's_sub_u32 s{sT2}, s{sT2}, {112 * 16384}')
    a(f'buffer_load_dwordx4 v{vTMP}, {srd(S_WO)}, s{sT2} offen lds')
    a.label(lbl2)
    a(f'''
s_cmp_ge_u32 s2, 32
s_cselect_b32 s{k1.sPF}, 0x40000000, 0
s_lshr_b32 s{sT2}, s2, 1
s_add_u32 s{sT2}, s{sT2}, 16
s_lshl_b32 s{sT2}, s{sT2}, 14
s_add_u32 m0, s{sT1}, {WR + 8192}
v_add_u32 v{vTMP}, s{k1.sPF}, v{vTMP}
''')
    a.vmem(f'buffer_load_dwordx4 v{vTMP}, {srd(S_WO)}, s{sT2} offen lds', 'prep')


def prep_finish_ops(a, tag):
    t = 80
    SC = k1.SC

    def body(r):
        r(f'''
v_lshrrev_b32 v{t}, 5, v0
v_lshlrev_b32 v{t}, 9, v{t}
v_bfe_u32 v{t + 1}, v0, 2, 2
v_lshlrev_b32 v{t + 1}, 6, v{t + 1}
v_add_u32 v{t}, v{t}, v{t + 1}
v_bfe_u32 v{t + 1}, v0, 4, 1
v_lshlrev_b32 v{t + 1}, 5, v{t + 1}
v_add_u32 v{t}, v{t}, v{t + 1}
v_and_b32 v{t + 1}, 3, v0
v_lshlrev_b32 v{t + 1}, 3, v{t + 1}
s_lshl_b32 s{sT0}, s{sW}, 10
s_add_u32 s{sT0}, s{sT0}, {WR}
v_add3_u32 v{t}, v{t}, v{t + 1}, s{sT0}
v_add_u32 v{t + 2}, s{k1.sPF}, v{vL16}
''')
    addr = record(a, body)

    def rd(r):
        r.wait_vm('prep')
        r.ds(f'ds_read_b64_tr_b16 v[{t + 4}:{t + 5}], v{t}', 'pp')
        r.ds(f'ds_read_b64_tr_b16 v[{t + 6}:{t + 7}], v{t} offset:256', 'pp')
        r.ds(f'ds_read_b64_tr_b16 v[{t + 8}:{t + 9}], v{t} offset:8192', 'pp')
        r.ds(f'ds_read_b64_tr_b16 v[{t + 10}:{t + 11}], v{t} offset:{8192 + 256}', 'pp')
    reads = record(a, rd)

    def stf(r):
        r(f'''
s_lshl_b32 s{k1.sPS}, s2, 3
s_add_u32 s{k1.sPS}, s{k1.sPS}, s{sW}
s_lshl_b32 s{k1.sPS}, s{k1.sPS}, 10
s_add_u32 s{k1.sPS}, s{k1.sPS}, {WF}
''')
        r.wait_lg('pp')
        r.vmem(f'buffer_store_dwordx4 v[{t + 4}:{t + 7}], v{vL16}, {srd(S_WS)}, s{k1.sPS} offen{SC}', tag)
        r(f's_add_u32 s{k1.sPS}, s{k1.sPS}, {2048 * 1024}')
        r.vmem(f'buffer_store_dwordx4 v[{t + 8}:{t + 11}], v{t + 2}, {srd(S_WS)}, s{k1.sPS} offen{SC}', tag)
    stores = record(a, stf)
    return addr, reads, stores
```

```python
from common import *
import k1
from k1 import fl

KM_LDS = 163840
LCNT = 163824
RED = 0
OB = 131072
FA = FL
FB = FL + 4096
FH = FL + 8192
LOG2E = 1.4426950408889634
SPIN = 20000

sT0, sT1, sT2, sT3 = 52, 53, 54, 55
sH, sTQ, sSRC, sMD = 20, 21, 22, 23
sTILE, sCG, sOF, sOP = 24, 25, 26, 27
sHS, sWSRC, sWO, sSPIN = 8, 9, 10, 11
sVM = 94
sCT, sKH = sTT, sG

vL16 = 1
aK0, aK1, aV0, aV1 = 2, 3, 4, 5
vT = 6
RQ, RK, RV0, RV1, RP = 12, 16, 20, 24, 28
NEGM = 36
RS = (52, 68)
RO = 84
ACC = 100
RING = 164
vX, vB2, vXO = 228, 232, 236
vG, vS = 240, 248
OP = 52

OPT = dict(u0=28, D=11, fbsig=5, prio=None, b2=24, kvpre=8, nofb=False)


def spin(a, site, load, check_ok):
    ok = a.newlabel('ok')
    lp = a.newlabel('spin')
    check_ok(ok)
    a(f's_mov_b32 s{sSPIN}, {SPIN}')
    a.label(lp)
    a('s_sleep 1')
    load()
    a('s_waitcnt vmcnt(0)')
    check_ok(ok)
    a(f's_sub_u32 s{sSPIN}, s{sSPIN}, 1')
    a(f's_cmp_lg_u32 s{sSPIN}, 0')
    a(f's_cbranch_scc1 {lp}')
    a(f'v_mov_b32 v{vT}, {site}')
    a(f'buffer_store_dword v{vT}, off, {srd(S_DBG)}, 0 offset:{4 * site}')
    a.label(ok)


def one_lane_store(a, reg, srdn, soff, val=1):
    a('s_mov_b64 exec, 1')
    a(f'v_mov_b32 v{reg}, {val}')
    a(f'buffer_store_dword v{reg}, off, {srd(srdn)}, {soff} sc1')
    a('s_mov_b64 exec, -1')


def start_extra(a):
    lbl = a.newlabel('noinit')
    a(f'''
v_mov_b32 v20, 0
v_mov_b32 v21, 0
v_mov_b32 v22, 0
v_mov_b32 v23, 0
v_mov_b32 v24, {LCNT}
''')
    a.ds('ds_write_b32 v24, v20', 'w')
    a(f'''
s_or_b32 s{sT0}, s2, s{sW}
s_cmp_lg_u32 s{sT0}, 0
s_cbranch_scc1 {lbl}
v_lshrrev_b32 v1, 2, v0
v_lshlrev_b32 v1, 8, v1
v_and_b32 v2, 3, v0
v_lshlrev_b32 v2, 4, v2
v_add_u32 v1, v1, v2
s_mov_b32 s{sT0}, {FA}
s_mov_b32 s{sT1}, {FB}
s_mov_b32 s{sT2}, {FH}
buffer_store_dwordx4 v[20:23], v1, {srd(S_WS)}, s{sT0} offen sc1
buffer_store_dwordx4 v[20:23], v1, {srd(S_WS)}, s{sT1} offen sc1
buffer_store_dwordx4 v[20:23], v1, {srd(S_WS)}, s{sT2} offen sc1
''')
    a.label(lbl)


def prefetch(a):
    pf = OPT['pf']
    a(f'''
s_lshl_b32 s{sT0}, s2, 3
s_add_u32 s{sT0}, s{sT0}, s{sW}
v_lshlrev_b32 v48, 4, v0
''')
    if pf & 1:
        a(f's_mul_i32 s{sT1}, s{sT0}, 768')
        a.vmem(f'buffer_load_dwordx4 v[52:55], v48, {srd(S_WQ)}, s{sT1} offen', 'pf')
    if pf & 2:
        a(f's_mul_i32 s{sT1}, s{sT0}, 896')
        a.vmem(f'buffer_load_dwordx4 v[56:59], v48, {srd(S_W1)}, s{sT1} offen', 'pf')
    if pf & 4:
        a(f's_lshl_b32 s{sT1}, s{sT0}, 10')
        a.vmem(f'buffer_load_dwordx4 v[60:63], v48, {srd(S_X)}, s{sT1} offen', 'pf')
    if pf & 8:
        a(f's_mul_i32 s{sT1}, s{sT0}, 896')
        a.vmem(f'buffer_load_dwordx4 v[56:59], v48, {srd(S_W2)}, s{sT1} offen', 'pf')
        a(f's_lshl_b32 s{sT1}, s{sT0}, 8')
        a.vmem(f'buffer_load_dword v60, v48, {srd(S_WO)}, s{sT1} offen', 'pf')


def hook0(a, g):
    st(a, 'c0')
    if g != 0:
        return
    lbl = a.newlabel('noinit2')
    a(f'''
s_or_b32 s{sT0}, s2, s{sW}
s_cmp_lg_u32 s{sT0}, 0
s_cbranch_scc1 {lbl}
''')
    one_lane_store(a, 20, S_DBG, 0)
    a.label(lbl)


def hook8(a, g, poi=92, tag='st'):
    a(f'''
s_lshl_b32 s{sT0}, s{sXCD}, 2
s_lshr_b32 s{sCG}, s{sSLOT}, 3
s_add_u32 s{sH}, s{sT0}, s{sCG}
s_and_b32 s{sT1}, s{sSLOT}, 7
s_lshl_b32 s{sTQ}, s{sT1}, 3
s_add_u32 s{sTQ}, s{sTQ}, s{sW}
s_lshl_b32 s{sMD}, s{sW}, 10
s_lshl_b32 s{sSRC}, s{sH}, 17
s_add_u32 s{sSRC}, s{sSRC}, {KV}
s_add_u32 s{sSRC}, s{sSRC}, s{sMD}
s_lshl_b32 s{sOF}, s{sTQ}, 5
s_add_u32 s{sOF}, s{sOF}, s{sH}
s_lshl_b32 s{sOF}, s{sOF}, 10
s_add_u32 s{sOF}, s{sOF}, {OF}
s_lshl_b32 s{sT0}, s{sXCD}, 3
s_add_u32 s{sTILE}, s{sT0}, s{sT1}
s_lshl_b32 s{sOP}, s{sTILE}, 3
s_add_u32 s{sOP}, s{sOP}, s{sW}
s_lshl_b32 s{sOP}, s{sOP}, 12
s_add_u32 s{sOP}, s{sOP}, {OF}
{f's_mul_i32 s{sT0}, s{sCT}, 28' if OPT.get('fs') else f's_mul_i32 s{sT0}, s{sW}, 14'}
s_mul_i32 s{sHS}, s{sTILE}, 112
s_add_u32 s{sHS}, s{sHS}, s{sT0}
s_lshl_b32 s{sHS}, s{sHS}, 10
s_add_u32 s{sHS}, s{sHS}, {HF}
s_lshl_b32 s{sWSRC}, s{sT0}, 4
s_lshl_b32 s{sT1}, s{sCG}, 2
s_add_u32 s{sWSRC}, s{sWSRC}, s{sT1}
{f's_add_u32 s{sWSRC}, s{sWSRC}, s{sKH}' if OPT.get('fs') else ''}
{f's_add_u32 s{sWSRC}, s{sWSRC}, s{sKH}' if OPT.get('fs') else ''}
s_lshl_b32 s{sWSRC}, s{sWSRC}, 10
s_add_u32 s{sWSRC}, s{sWSRC}, {WF}
s_lshl_b32 s{sWO}, s{sKH}, 4
s_add_u32 s{sWO}, s{sWO}, 112
s_lshl_b32 s{sWO}, s{sWO}, 4
s_add_u32 s{sWO}, s{sWO}, s{sT1}
s_add_u32 s{sWO}, s{sWO}, s{sCT}
s_lshl_b32 s{sWO}, s{sWO}, 10
s_add_u32 s{sWO}, s{sWO}, {WF}
v_mov_b32 v{poi}, -1
v_mov_b32 v{poi + 1}, -1
v_mov_b32 v{poi + 2}, -1
v_mov_b32 v{poi + 3}, -1
''')
    a.vmem(f'buffer_store_dwordx4 v[{poi}:{poi + 3}], v{vL16}, {srd(S_WS)}, s{sOF} offen sc1', tag)


def ini_load(a):
    return f'buffer_load_dword v92, off, {srd(S_DBG)}, 0 sc1'


def hook9(a, g):
    a.vmem(ini_load(a), 'ini')


def prebar11(a, g):
    a.wait_vm('ini')

    def chk(ok):
        a('v_cmp_eq_u32 vcc, 1, v92')
        a(f's_cbranch_vccnz {ok}')
    spin(a, 1, lambda: a(ini_load(a)), chk)


def hook11(a, g):
    if g == 0:
        lbl = a.newlabel('nofa')
        a(f'''
s_cmp_lg_u32 s{sW}, 0
s_cbranch_scc1 {lbl}
s_lshl_b32 s{sT0}, s{k1.sHP}, 8
s_lshl_b32 s{sT1}, s{k1.sTB}, 2
s_add_u32 s{sT0}, s{sT0}, s{sT1}
s_add_u32 s{sT0}, s{sT0}, {FA}
''')
        one_lane_store(a, 92, S_WS, f's{sT0}')
        a.label(lbl)
    k1.prep_finish(a)


def hook14(a, g):
    if g == 0:
        lbl = a.newlabel('nofw')
        a(f'''
s_cmp_lg_u32 s{sW}, 0
s_cbranch_scc1 {lbl}
s_lshr_b32 s{sT0}, s2, 4
s_lshl_b32 s{sT0}, s{sT0}, 8
s_and_b32 s{sT1}, s2, 15
s_lshl_b32 s{sT1}, s{sT1}, 2
s_add_u32 s{sT0}, s{sT0}, s{sT1}
s_add_u32 s{sT0}, s{sT0}, {FB}
''')
        one_lane_store(a, 92, S_WS, f's{sT0}')
        a.label(lbl)


def fa_load():
    return f'buffer_load_dword v93, v94, {srd(S_WS)}, s{sSPIN - 0 if False else sT1} offen sc1'


def fa_addr(a):
    a(f'''
s_lshr_b32 s{sT1}, s{sH}, 1
s_lshl_b32 s{sT1}, s{sT1}, 8
s_add_u32 s{sT1}, s{sT1}, {FA}
''')


def hook15(a, g):
    a('v_and_b32 v94, 15, v0')
    a('v_lshlrev_b32 v94, 2, v94')
    fa_addr(a)
    a.vmem(fa_load(), 'fa')


def fa_check(a):
    def chk(ok):
        a('v_cmp_ne_u32 vcc, 1, v93')
        a(f's_cbranch_vccz {ok}')

    def ld():
        fa_addr(a)
        a(fa_load())
    spin(a, 2, ld, chk)


def kv_dma(a, i):
    def f():
        a(f's_add_u32 m0, s{sMD}, {i * 8192}')
        a(f's_add_u32 s{sT2}, s{sSRC}, {i * 8192}')
        a.vmem(f'buffer_load_dwordx4 v{vL16}, {srd(S_WS)}, s{sT2} offen sc1 lds', f'kv{i}')
    return f


def q_load(a):
    def f():
        a(f'''
s_lshl_b32 s{sT2}, s{sH}, 6
s_add_u32 s{sT2}, s{sT2}, s{sTQ}
s_lshl_b32 s{sT2}, s{sT2}, 10
''')
        a.vmem(f'buffer_load_dwordx4 v[{RQ}:{RQ + 3}], v{vL16}, {srd(S_WS)}, s{sT2} offen sc1', 'q')
    return f


def k_read(a, t):
    ar, off = (aK0, t * 2048) if t < 32 else (aK1, (t - 32) * 2048)
    a.ds(f'ds_read_b128 v[{RK}:{RK + 3}], v{ar} offset:{off}', f'K{t}')


def v_reads(a, items):
    a(f's_mov_b64 exec, s[{sVM}:{sVM + 1}]')
    for part, t in items:
        ar, off = (aV0, t * 2048) if t < 32 else (aV1, (t - 32) * 2048)
        r = RV0 if part == 0 else RV1
        a.ds(f'ds_read_b128 v[{r}:{r + 3}], v{ar} offset:{off + part * 512}', f'V{part}_{t}')
    a('s_mov_b64 exec, -1')


def run(a, items):
    for it in items:
        emit(a, it)


def attn_step(a, t, nt, ev, mf, pre):
    S, Sn = RS[t % 2], RS[(t + 1) % 2]
    ex = [f'v_exp_f32 v{S + i}, v{S + i}' for i in range(16)]
    cv = [f'v_cvt_pk_bf16_f32 v{RP + i}, v{S + 2 * i}, v{S + 2 * i + 1}' for i in range(8)]
    run(a, pre.get(t, []))
    if t + 1 < nt:
        a.wait_lg(f'K{t + 1}')
        a(mfma32(Sn, RK, RQ, NEGM))
        if t + 2 < nt:
            k_read(a, t + 2)
    run(a, ev.get(2 * t, []))
    run(a, (ex[0], ex[1], ex[2], ex[3]))
    run(a, mf.get(2 * t, []))
    run(a, (cv[0], ex[4], ex[5], cv[1]))
    if t > 0:
        a.wait_lg(f'V1_{t - 1}')
        a(mfma32(RO, RV1, RP + 4, RO))
    run(a, (ex[6], ex[7], cv[2], ex[8], ex[9], cv[3], ex[10], ex[11]))
    a.wait_lg(f'V0_{t}')
    a(mfma32(RO, RV0, RP, '0' if t == 0 else RO))
    items = [(1, t)]
    if t + 1 < nt:
        items.append((0, t + 1))
    v_reads(a, items)
    run(a, ev.get(2 * t + 1, []))
    run(a, (cv[4], ex[12], ex[13], cv[5]))
    run(a, mf.get(2 * t + 1, []))
    run(a, (ex[14], ex[15], cv[6], cv[7]))


def row_max(a, S, dst, tmp):
    a(f'v_max3_f32 v{dst}, v{S}, v{S + 1}, v{S + 2}')
    a(f'v_max3_f32 v{tmp}, v{S + 3}, v{S + 4}, v{S + 5}')
    a(f'v_max3_f32 v{dst}, v{dst}, v{S + 6}, v{S + 7}')
    a(f'v_max3_f32 v{tmp}, v{tmp}, v{S + 8}, v{S + 9}')
    a(f'v_max3_f32 v{dst}, v{dst}, v{S + 10}, v{S + 11}')
    a(f'v_max3_f32 v{tmp}, v{tmp}, v{S + 12}, v{S + 13}')
    a(f'v_max3_f32 v{dst}, v{dst}, v{S + 14}, v{S + 15}')
    a(f'v_max_f32 v{dst}, v{dst}, v{tmp}')
    a(f'v_mov_b32 v{tmp}, v{dst}')
    a(f'v_permlane32_swap_b32 v{dst}, v{tmp}')
    a(f'v_max_f32 v{dst}, v{dst}, v{tmp}')


def fallback(a, done_label):
    a.comment('--- fallback: online softmax with the running true maximum')
    loop = a.newlabel('fb_loop')
    S = RS[0]
    vm, vmn, val, va, vb = vT, vT + 1, vT + 2, vT + 3, vT + 4
    a(f'v_mov_b32 v{vm}, 0xff800000')
    for i in range(16):
        a(f'v_mov_b32 v{RO + i}, 0')
    a(f'v_mov_b32 v{va}, v{aK0}')
    a(f'v_mov_b32 v{vb}, v{aV0}')
    a(f's_mov_b32 s{sT0}, 64')
    a.label(loop)
    a(f'ds_read_b128 v[{RK}:{RK + 3}], v{va}')
    a(f's_mov_b64 exec, s[{sVM}:{sVM + 1}]')
    a(f'ds_read_b128 v[{RV0}:{RV0 + 3}], v{vb}')
    a(f'ds_read_b128 v[{RV1}:{RV1 + 3}], v{vb} offset:512')
    a('s_mov_b64 exec, -1')
    a('s_waitcnt lgkmcnt(0)')
    a(mfma32(S, RK, RQ, '0'))
    a(f'v_add_u32 v{va}, 0x800, v{va}')
    a(f'v_add_u32 v{vb}, 0x800, v{vb}')
    row_max(a, S, vmn, val)
    a(f'v_max_f32 v{vmn}, v{vmn}, v{vm}')
    a(f'v_sub_f32 v{val}, v{vm}, v{vmn}')
    a(f'v_exp_f32 v{val}, v{val}')
    a(f'v_mov_b32 v{vm}, v{vmn}')
    for i in range(16):
        a(f'v_sub_f32 v{S + i}, v{S + i}, v{vmn}')
    for i in range(16):
        a(f'v_exp_f32 v{S + i}, v{S + i}')
    for i in range(16):
        a(f'v_mul_f32 v{RO + i}, v{val}, v{RO + i}')
    for i in range(8):
        a(f'v_cvt_pk_bf16_f32 v{RP + i}, v{S + 2 * i}, v{S + 2 * i + 1}')
    a(mfma32(RO, RV0, RP, RO))
    a(mfma32(RO, RV1, RP + 4, RO))
    a(f's_sub_u32 s{sT0}, s{sT0}, 1')
    a(f's_cmp_lg_u32 s{sT0}, 0')
    a(f's_cbranch_scc1 {loop}')
    a(f's_branch {done_label}')


def slot(i):
    return RING + 4 * (i % 16)


def nper():
    return (3, 28) if OPT.get('fs') else (5, 14)


def stream_load(a, i):
    np_, ns = nper()
    nf = np_ * ns

    def f():
        if OPT.get('xnl') and i < nf:
            return
        if i < nf:
            s, j = divmod(i, np_)
            if j == 0:
                a(f's_add_u32 s{sT2}, s{sHS}, {s * 1024}')
                a.vmem(f'buffer_load_dwordx4 v[{slot(i)}:{slot(i) + 3}], v{vL16}, {srd(S_WS)}, s{sT2} offen sc1', f'f{i}')
            else:
                if j == 1:
                    a(f's_add_u32 s{sT3}, s{sWSRC}, {s * 16384}')
                a.vmem(f'buffer_load_dwordx4 v[{slot(i)}:{slot(i) + 3}], v{vL16}, {srd(S_WS)}, s{sT3} offen '
                       f'offset:{(j - 1) * 1024} sc1', f'f{i}')
        else:
            k = i - nf
            if OPT.get('own'):
                a(f's_lshl_b32 s{sT2}, s{sCT}, 2')
                a(f's_add_u32 s{sT2}, s{sT2}, {k}')
                a(f's_and_b32 s{sT2}, s{sT2}, 15')
                a(f's_lshl_b32 s{sT2}, s{sT2}, 14')
                a(f's_add_u32 s{sT2}, s{sT2}, s{sWO}')
            else:
                a(f's_add_u32 s{sT2}, s{sWO}, {k * 16384}')
            a.vmem(f'buffer_load_dwordx4 v[{slot(i)}:{slot(i) + 3}], v{vL16}, {srd(S_WS)}, s{sT2} offen sc1', 'wo')
    return f


def stream_mfma(a, s, j):
    def f():
        np_ = nper()[0]
        iw, ih = np_ * s + 1 + j, np_ * s
        if not OPT.get('xnw'):
            a.wait_vm(f'f{iw}')
        else:
            a.vm = [t for t in a.vm if t != f'f{iw}' and t != f'f{ih}']
        if OPT.get('xnm'):
            return
        a(mfma32(ACC + 16 * j, slot(iw), slot(ih), '0' if s == 0 else None))
    return f


def side_loads(a):
    a(f'''
s_lshl_b32 s{sT0}, s{sCG}, 8
s_lshl_b32 s{sT1}, s{sCT}, 6
s_add_u32 s{sT0}, s{sT0}, s{sT1}
s_lshl_b32 s{sT1}, s{sKH}, 5
s_add_u32 s{sT0}, s{sT0}, s{sT1}
v_lshrrev_b32 v{vT}, 5, v0
v_lshlrev_b32 v{vT}, 3, v{vT}
v_add_u32 v{vT}, s{sT0}, v{vT}
v_and_b32 v{vT + 1}, 31, v0
v_lshlrev_b32 v{vT + 1}, 10, v{vT + 1}
s_lshl_b32 s{sT1}, s{sTILE}, 15
v_add3_u32 v{vT + 1}, v{vT + 1}, v{vT}, s{sT1}
''')
    a.vmem(f'buffer_load_dwordx2 v[{vB2}:{vB2 + 1}], v{vT}, {srd(S_B2)}, 0 offen', 'side')
    a.vmem(f'buffer_load_dwordx2 v[{vB2 + 2}:{vB2 + 3}], v{vT}, {srd(S_B2)}, 0 offen offset:16', 'side')
    a.vmem(f'buffer_load_dwordx2 v[{vX}:{vX + 1}], v{vT + 1}, {srd(S_X)}, 0 offen', 'side')
    a.vmem(f'buffer_load_dwordx2 v[{vX + 2}:{vX + 3}], v{vT + 1}, {srd(S_X)}, 0 offen offset:16', 'side')
    a(f'''
v_lshrrev_b32 v{vT + 2}, 5, v0
v_lshlrev_b32 v{vT + 2}, 4, v{vT + 2}
v_and_b32 v{vXO}, 31, v0
v_lshlrev_b32 v{vXO}, 10, v{vXO}
s_add_u32 s{sT0}, s{sT0}, s{sT1}
v_add3_u32 v{vXO}, v{vXO}, v{vT + 2}, s{sT0}
''')
    if OPT.get('otouch'):
        a.vmem(f'buffer_load_dword v{vXO + 1}, v{vXO}, {srd(S_OUT)}, 0 offen', 'side')


def fb_signal_1(a):
    a.wait_vm('hb')
    a(f'''
v_mov_b32 v{vT}, {LCNT}
v_mov_b32 v{vT + 1}, 1
s_mov_b64 exec, 1
''')
    a.ds(f'ds_add_rtn_u32 v{vT + 1}, v{vT}, v{vT + 1}', 'cnt')
    a('s_mov_b64 exec, -1')


def fb_signal_2(a):
    lbl = a.newlabel('nofb')
    a.wait_lg('cnt')
    a(f'''
v_readfirstlane_b32 s{sT0}, v{vT + 1}
s_cmp_lg_u32 s{sT0}, 7
s_cbranch_scc1 {lbl}
s_lshl_b32 s{sT0}, s{k1.sTB}, 8
s_lshl_b32 s{sT1}, s{k1.sHP}, 2
s_add_u32 s{sT0}, s{sT0}, s{sT1}
s_add_u32 s{sT0}, s{sT0}, {FH}
''')
    one_lane_store(a, vT + 1, S_WS, f's{sT0}')
    a.label(lbl)


def fb_load(a):
    return [f'buffer_load_dwordx4 v[8:11], v{vT}, {srd(S_WS)}, s{sT1} offen sc1',
            f'buffer_load_dword v{vX}, v{vT + 1}, {srd(S_WS)}, s{sT0} offen sc1']


def fb_addr(a):
    a(f'''
s_mov_b32 s{sT1}, {FB}
s_lshr_b32 s{sT0}, s{sTILE}, 2
s_lshl_b32 s{sT0}, s{sT0}, 8
s_add_u32 s{sT0}, s{sT0}, {FH}
''')


def fb_poll(a):
    a(f'''
v_lshrrev_b32 v{vT}, 2, v0
v_lshlrev_b32 v{vT}, 8, v{vT}
v_and_b32 v{vT + 1}, 3, v0
v_lshlrev_b32 v{vT + 1}, 4, v{vT + 1}
v_add_u32 v{vT}, v{vT}, v{vT + 1}
v_and_b32 v{vT + 1}, 15, v0
v_lshlrev_b32 v{vT + 1}, 2, v{vT + 1}
''')
    fb_addr(a)
    for x in fb_load(a):
        a.vmem(x, 'fb')


def fb_check(a):
    a.wait_vm('fb')

    def chk(ok):
        a('v_and_b32 v8, v8, v9')
        a('v_and_b32 v10, v10, v11')
        a('v_and_b32 v8, v8, v10')
        a(f'v_and_b32 v8, v8, v{vX}')
        a('v_cmp_ne_u32 vcc, 1, v8')
        a(f's_cbranch_vccz {ok}')

    def ld():
        fb_addr(a)
        for x in fb_load(a):
            a(x)
    spin(a, 3, ld, chk)


def o_loads(a, tracked):
    for i in range(4):
        t = f'buffer_load_dwordx4 v[{OP + 4 * i}:{OP + 4 * i + 3}], v{vL16}, {srd(S_WS)}, s{sOP} offen offset:{1024 * i} sc1'
        if tracked:
            a.vmem(t, 'op')
        else:
            a(t)


def o_check(a):
    a.wait_vm('op')

    def chk(ok):
        for i in range(4):
            r = OP + 4 * i
            a(f'v_max3_u32 v{vT + i}, v{r}, v{r + 1}, v{r + 2}')
            a(f'v_max_u32 v{vT + i}, v{vT + i}, v{r + 3}')
        a(f'v_max3_u32 v{vT}, v{vT}, v{vT + 1}, v{vT + 2}')
        a(f'v_max_u32 v{vT}, v{vT}, v{vT + 3}')
        a(f'v_cmp_eq_u32 vcc, -1, v{vT}')
        a(f's_cbranch_vccz {ok}')
    spin(a, 4, lambda: o_loads(a, False), chk)


def reduce_write(a):
    a(f's_lshl_b32 s{sT0}, s{sW}, 14')
    a(f'v_add_u32 v{vT}, s{sT0}, v{vL16}')
    for k in range(16):
        a.ds(f'ds_write_b128 v{vT}, v[{ACC + 4 * k}:{ACC + 4 * k + 3}] offset:{k * 1024}', 'rw')


PART = [0, 16384, 131072, 147456, 32768, 49152, 65536, 81920]


def reduce_write2(a, g):
    if g == 0:
        a(f's_lshl_b32 s{sT0}, s{sW}, 14')
        a(f's_cmp_ge_u32 s{sW}, 2')
        a(f's_cselect_b32 s{sT1}, {131072 - 32768}, 0')
        a(f's_add_u32 s{sT0}, s{sT0}, s{sT1}')
    else:
        a(f's_lshl_b32 s{sT0}, s{sW}, 14')
        a(f's_sub_u32 s{sT0}, s{sT0}, {65536 - 32768}')
    a(f'v_add_u32 v{vT}, s{sT0}, v{vL16}')
    for k in range(16):
        a.ds(f'ds_write_b128 v{vT}, v[{ACC + 4 * k}:{ACC + 4 * k + 3}] offset:{k * 1024}', 'rw')


def part_base(w):
    return w * 8192 if w < 4 else 131072 + (w - 4) * 8192


def reduce_write4(a):
    a(f's_lshl_b32 s{sT0}, s{sCT}, 13')
    a(f's_lshl_b32 s{sT1}, s{sKH}, 17')
    a(f's_add_u32 s{sT0}, s{sT0}, s{sT1}')
    a(f'v_add_u32 v{vT}, s{sT0}, v{vL16}')
    for k in range(8):
        a.ds(f'ds_write_b128 v{vT}, v[{ACC + 4 * k}:{ACC + 4 * k + 3}] offset:{k * 1024}', 'rw')


def reduce_read_gate4(a):
    a(f'''
s_lshr_b32 s{sT0}, s{sCT}, 1
s_lshl_b32 s{sT0}, s{sT0}, 17
s_and_b32 s{sT1}, s{sCT}, 1
s_lshl_b32 s{sT1}, s{sT1}, 12
s_add_u32 s{sT0}, s{sT0}, s{sT1}
s_lshl_b32 s{sT1}, s{sKH}, 11
s_add_u32 s{sT0}, s{sT0}, s{sT1}
v_add_u32 v{vT}, s{sT0}, v{vL16}
''')
    t = ACC
    for q in range(4):
        for e in range(2):
            d = t + 8 * q + 4 * e
            a.ds(f'ds_read_b128 v[{d}:{d + 3}], v{vT} offset:{q * 8192 + e * 1024}', f'r{q}')
    gate_math(a, t, 4)


def gate_math(a, t, n):
    a.wait_vm('side')
    if OPT.get('opos') == 2:
        o_loads(a, True)
    for e in range(2):
        for h in range(2):
            a(f'v_lshlrev_b32 v{vG + 4 * e + 2 * h}, 16, v{vB2 + 2 * e + h}')
            a(f'v_and_b32 v{vG + 4 * e + 2 * h + 1}, 0xffff0000, v{vB2 + 2 * e + h}')
    for w in range(n):
        a.wait_lg(f'r{w}')
        for k in range(8):
            a(f'v_add_f32 v{vG + k}, v{vG + k}, v{t + 8 * w + k}')
    if OPT.get('opos') == 3:
        o_loads(a, True)
    for k in range(8):
        a(f'v_mul_f32 v{t + k}, {fl(-LOG2E)}, v{vG + k}')
    for k in range(8):
        a(f'v_exp_f32 v{t + k}, v{t + k}')
    for k in range(8):
        a(f'v_add_f32 v{t + k}, 1.0, v{t + k}')
    for k in range(8):
        a(f'v_rcp_f32 v{t + k}, v{t + k}')
    for k in range(8):
        a(f'v_mul_f32 v{vG + k}, v{vG + k}, v{t + k}')


def reduce_read_gate(a):
    if OPT.get('fs'):
        return reduce_read_gate4(a)
    early = OPT.get('erw') == 2
    a(f'''
s_lshl_b32 s{sT0}, s{sCT}, 12
s_lshl_b32 s{sT1}, s{sKH}, 11
s_add_u32 s{sT0}, s{sT0}, s{sT1}
v_add_u32 v{vT}, s{sT0}, v{vL16}
v_add_u32 v{vT + 1}, 0x10000, v{vT}
''')
    if early:
        a(f'v_add_u32 v{vT + 2}, 0x20000, v{vT}')
    t = ACC
    for w in range(8):
        for e in range(2):
            if early:
                p = PART[w]
                ar, off = vT + p // 65536, p % 65536 + e * 1024
            else:
                ar, off = (vT if w < 4 else vT + 1), (w % 4) * 16384 + e * 1024
            d = t + 8 * w + 4 * e
            a.ds(f'ds_read_b128 v[{d}:{d + 3}], v{ar} offset:{off}', f'r{w}')
    a.wait_vm('side')
    for e in range(2):
        for h in range(2):
            a(f'v_lshlrev_b32 v{vG + 4 * e + 2 * h}, 16, v{vB2 + 2 * e + h}')
            a(f'v_and_b32 v{vG + 4 * e + 2 * h + 1}, 0xffff0000, v{vB2 + 2 * e + h}')
    for w in range(8):
        a.wait_lg(f'r{w}')
        for k in range(8):
            a(f'v_add_f32 v{vG + k}, v{vG + k}, v{t + 8 * w + k}')
    for k in range(8):
        a(f'v_mul_f32 v{t + k}, {fl(-LOG2E)}, v{vG + k}')
    for k in range(8):
        a(f'v_exp_f32 v{t + k}, v{t + k}')
    for k in range(8):
        a(f'v_add_f32 v{t + k}, 1.0, v{t + k}')
    for k in range(8):
        a(f'v_rcp_f32 v{t + k}, v{t + k}')
    for k in range(8):
        a(f'v_mul_f32 v{vG + k}, v{vG + k}, v{t + k}')


def ob_base():
    if OPT.get('fs'):
        return 32768
    return 98304 if OPT.get('erw') == 2 else OB


def ob_write(a):
    a(f's_lshl_b32 s{sT0}, s{sW}, 12')
    a(f's_add_u32 s{sT0}, s{sT0}, {ob_base()}')
    a(f'v_add_u32 v{vT}, s{sT0}, v{vL16}')
    for i in range(4):
        a.ds(f'ds_write_b128 v{vT}, v[{OP + 4 * i}:{OP + 4 * i + 3}] offset:{i * 1024}', 'ow')


def wo_own(a):
    nf = nper()[0] * nper()[1]
    a.wait_vm('wo')
    for i in range(4):
        a(mfma32(RO, slot(nf + i), OP + 4 * i, '0' if i == 0 else None))


def wo_rest(a):
    nf = nper()[0] * nper()[1]
    bb = ACC
    for n in range(1, 4):
        a(f's_add_u32 s{sT0}, s{sCT}, {n}')
        a(f's_and_b32 s{sT0}, s{sT0}, 3')
        a(f's_lshl_b32 s{sT0}, s{sT0}, 12')
        a(f's_lshl_b32 s{sT1}, s{sKH}, 14')
        a(f's_add_u32 s{sT0}, s{sT0}, s{sT1}')
        a(f's_add_u32 s{sT0}, s{sT0}, {ob_base()}')
        a(f'v_add_u32 v{vT + n}, s{sT0}, v{vL16}')
    return bb


def wo_rest2(a, bb):
    nf = nper()[0] * nper()[1]
    for n in range(1, 4):
        for i in range(4):
            k = 4 * n + i
            a.ds(f'ds_read_b128 v[{bb + 4 * k}:{bb + 4 * k + 3}], v{vT + n} offset:{i * 1024}', f'o{k}')
    for k in range(4, 16):
        a.wait_lg(f'o{k}')
        a(mfma32(RO, slot(nf + k), bb + 4 * k, None))


def wo_gemm(a):
    a(f's_lshl_b32 s{sT0}, s{sKH}, 14')
    a(f's_add_u32 s{sT0}, s{sT0}, {ob_base()}')
    a(f'v_add_u32 v{vT}, s{sT0}, v{vL16}')
    bb = ACC
    for i in range(16):
        a.ds(f'ds_read_b128 v[{bb + 4 * i}:{bb + 4 * i + 3}], v{vT} offset:{i * 1024}', f'o{i}')
    a.wait_vm('wo')
    for i in range(16):
        a.wait_lg(f'o{i}')
        a(mfma32(RO, slot(nper()[0] * nper()[1] + i), bb + 4 * i, '0' if i == 0 else None))


def exchange(a, label):
    k1l = label + '_kh1'
    j = label + '_khj'
    a(f'''
s_lshl_b32 s{sT0}, s{sW}, 11
v_add_u32 v{vT}, s{sT0}, v{vL16}
s_xor_b32 s{sT0}, s{sW}, 4
s_lshl_b32 s{sT0}, s{sT0}, 11
v_add_u32 v{vT + 1}, s{sT0}, v{vL16}
s_cmp_eq_u32 s{sKH}, 1
s_cbranch_scc1 {k1l}
''')
    for kh in (0, 1):
        if kh == 1:
            a.label(k1l)
        send = RO + (8 if kh == 0 else 0)
        keep = RO + (0 if kh == 0 else 8)
        a(f'ds_write_b128 v{vT}, v[{send}:{send + 3}]')
        a(f'ds_write_b128 v{vT}, v[{send + 4}:{send + 7}] offset:1024')
        for k in range(8):
            a(f'v_mov_b32 v{vS + k}, v{keep + k}')
        if kh == 0:
            a(f's_branch {j}')
    a.label(j)
    a('s_waitcnt lgkmcnt(0)')
    a('s_barrier')
    t = ACC
    a(f'ds_read_b128 v[{t}:{t + 3}], v{vT + 1}')
    a(f'ds_read_b128 v[{t + 4}:{t + 7}], v{vT + 1} offset:1024')
    return t


def final(a, t):
    u = ACC + 32
    for k in range(4):
        a(f'v_lshlrev_b32 v{u + 2 * k}, 16, v{vX + k}')
        a(f'v_and_b32 v{u + 2 * k + 1}, 0xffff0000, v{vX + k}')
    a('s_waitcnt lgkmcnt(0)')
    for k in range(8):
        a(f'v_add_f32 v{vS + k}, v{vS + k}, v{t + k}')
    for k in range(8):
        a(f'v_fma_f32 v{vS + k}, v{vS + k}, v{vG + k}, v{u + k}')
    for k in range(4):
        a(f'v_cvt_pk_bf16_f32 v{vS + k}, v{vS + 2 * k}, v{vS + 2 * k + 1}')
    a(f'v_permlane32_swap_b32 v{vS}, v{vS + 2}')
    a(f'v_permlane32_swap_b32 v{vS + 1}, v{vS + 3}')
    a.vmem(f'buffer_store_dwordx4 v[{vS}:{vS + 3}], v{vXO}, {srd(S_OUT)}, 0 offen', 'st')


def prio_plan(g):
    p = OPT.get('pr', 0)
    if p == 0:
        return lambda t: None
    if g == 1:
        return lambda t: 1 if t == 0 else None
    pat = {1: [2, 2, 2, 0], 2: [2, 2, 0], 3: [2, 0], 4: [2, 2, 2, 2, 0], 5: [2, 2, 2, 2, 2, 0, 0], 6: [0],
           7: [2, 2, 2, 0, 0]}[p]
    return lambda t: pat[t % len(pat)] if (t == 0 or pat[t % len(pat)] != pat[(t - 1) % len(pat)]) else None


def attention(a, g):
    pre_n = OPT['kvpre']
    a(f'''
v_mov_b32 v{aK0}, v{vL16}
v_add_u32 v{aK1}, 0x10000, v{vL16}
v_and_b32 v{vT}, 15, v0
v_lshrrev_b32 v{vT + 1}, 5, v0
v_lshlrev_b32 v{vT + 1}, 4, v{vT + 1}
v_add_u32 v{vT}, v{vT}, v{vT + 1}
v_lshlrev_b32 v{vT}, 4, v{vT}
v_add_u32 v{aV0}, 0x400, v{vT}
v_add_u32 v{aV1}, 0x10400, v{vT}
s_mov_b32 s{sVM}, 0xffff
s_mov_b32 s{sVM + 1}, 0xffff
''')
    if OPT.get('ones2', 1):
        a(f'v_and_b32 v{vT}, 27, v0')
        a(f'v_cmp_eq_u32 vcc, 16, v{vT}')
        a(f'v_mov_b32 v{vT}, 0x3f803f80')
        for i in range(4):
            a(f'v_cndmask_b32 v{RV0 + i}, 0, v{vT}, vcc')
            a(f'v_cndmask_b32 v{RV1 + i}, 0, v{vT}, vcc')
    else:
        for i in range(4):
            a(f'v_mov_b32 v{RV0 + i}, 0x3f803f80')
            a(f'v_mov_b32 v{RV1 + i}, 0x3f803f80')
    b1 = OPT.get('b1', pre_n)
    if OPT.get('nob1'):
        a.wait_vm('q')
    else:
        a.wait_vm(['q'] + [f'kv{i}' for i in range(b1)])
        a('s_barrier')
    st(a, 'b1')
    ev, mf, pre = {}, {}, {}
    add = lambda d, k, x: d.setdefault(k, []).append(x)
    k_read(a, 0)
    v_reads(a, [(0, 0)])
    a.wait_lg('K0')
    a(mfma32(RS[0], RK, RQ, '0'))
    row_max(a, RS[0], vT, vT + 1)
    for i in range(16):
        a(f'v_sub_f32 v{NEGM + i}, 0, v{vT}')
    a(mfma32(RS[0], RK, RQ, NEGM))
    k_read(a, 1)
    for i in range(pre_n, 16):
        add(ev, 2 * (i - pre_n), kv_dma(a, i))
    if b1 < pre_n and OPT['b2'] > 4 * b1 - 2:
        tb = 4 * b1 - 2
        add(pre, tb, lambda: (a.wait_vm([f'kv{i}' for i in range(pre_n)]), a('s_barrier')))
    tb2 = OPT['b2']
    assert tb2 <= 4 * pre_n - 2 and tb2 >= 2 * (15 - pre_n) + 1
    add(pre, tb2, lambda: (a.wait_vm([f'kv{i}' for i in range(16)]), a('s_barrier')))
    fs = OPT['fbsig']
    add(pre, fs, lambda: fb_signal_1(a))
    add(pre, fs + 1, lambda: fb_signal_2(a))
    u0, D = OPT['u0'], OPT['D']
    add(ev, u0 - 5, lambda: fb_poll(a))
    add(pre, u0 // 2, lambda: fb_check(a))
    np_, ns = nper()
    nl = np_ * ns + 16
    num, den = OPT.get('rnum', 1), OPT.get('rden', 1)
    U = lambda i: u0 + (i * num) // den
    last_use = {}
    for s in range(ns):
        for j in range(np_ - 1):
            um = U(np_ * s + 1 + j) + D
            add(mf, um, stream_mfma(a, s, j))
            last_use[np_ * s + 1 + j] = um
            last_use[np_ * s] = um
    for i in range(nl):
        add(ev, U(i), stream_load(a, i))
        if i >= 16:
            assert U(i) > last_use[i - 16], (i, U(i), last_use[i - 16])
    assert max(last_use.values()) < 128
    us = min(U(nl + 1), 127)
    add(ev, us, lambda: side_loads(a))
    assert U(nl - 1) <= us
    pp = prio_plan(g)
    for t in range(64):
        if pp(t) is not None:
            pre.setdefault(t, []).insert(0, f's_setprio {pp(t)}')
    for t in range(64):
        attn_step(a, t, 64, ev, mf, pre)
        st(a, f'a{t}')
    if OPT.get('pr', 0):
        a('s_setprio 0')


vINI, vFAA, vFAD = 6, 22, 23
vPOI = 24


def nb_hook6(a, g):
    a.vmem(f'buffer_load_dword v{vINI}, off, {srd(S_DBG)}, 0 sc1', 'ini')


def nb_ini_check(a, g):
    a.wait_vm('ini')

    def chk(ok):
        a(f'v_cmp_eq_u32 vcc, 1, v{vINI}')
        a(f's_cbranch_vccnz {ok}')
    spin(a, 1, lambda: a(f'buffer_load_dword v{vINI}, off, {srd(S_DBG)}, 0 sc1'), chk)


def flag_ops(addr):
    return [x.strip() for x in addr.strip().split('\n')] + [
        f's_cmp_eq_u32 s{sW}, 0',
        's_cselect_b64 exec, 1, 0',
        f'v_mov_b32 v{vINI}, 1',
        f'buffer_store_dword v{vINI}, off, {srd(S_WS)}, s{sT0} sc1',
        's_mov_b64 exec, -1']


def fa_signal_ops():
    return [flag_ops(f'''
s_lshl_b32 s{sT0}, s{k1.sHP}, 8
s_lshl_b32 s{sT1}, s{k1.sTB}, 2
s_add_u32 s{sT0}, s{sT0}, s{sT1}
s_add_u32 s{sT0}, s{sT0}, {FA}
''')][0]


def fw_signal_ops():
    return flag_ops(f'''
s_lshr_b32 s{sT0}, s2, 4
s_lshl_b32 s{sT0}, s{sT0}, 8
s_and_b32 s{sT1}, s2, 15
s_lshl_b32 s{sT1}, s{sT1}, 2
s_add_u32 s{sT0}, s{sT0}, s{sT1}
s_add_u32 s{sT0}, s{sT0}, {FB}
''')


def nb_prebar_st(a, g):
    a.wait_vm('st')


def nb_prebar14(a, g):
    a.wait_vm(['pst', 'poi'])


def nb_fa_load():
    return f'buffer_load_dword v{vFAD}, v{vFAA}, {srd(S_WS)}, s{sT1} offen sc1'


def nb_hook15(a, g):
    a(f'v_and_b32 v{vFAA}, 15, v0')
    a(f'v_lshlrev_b32 v{vFAA}, 2, v{vFAA}')
    fa_addr(a)
    a.vmem(nb_fa_load(), 'fa')


def nb_fa_check(a):
    def chk(ok):
        a(f'v_cmp_ne_u32 vcc, 1, v{vFAD}')
        a(f's_cbranch_vccz {ok}')

    def ld():
        fa_addr(a)
        a(nb_fa_load())
    spin(a, 2, ld, chk)


def k1_new(a, g):
    import k1b
    k1b.OPT = OPT
    fas = OPT.get('fas', 12)
    k1b.HOOKS = {0: hook0, 6: nb_hook6}
    k1b.PREBAR = {fas: nb_prebar_st, 14: nb_prebar14}
    pre_n = OPT['kvpre']
    if not OPT.get('fast'):
        k1b.rot_setup(a)
    for d in k1b.dma_ops(a, 0, g):
        d()
    if OPT.get('fast'):
        srd_bases(a, ['ws', 'dbg', 'w1', 'w2', 'wo', 'b1', 'b2', 'out'])
        first_stamp(a)
        start_extra(a)
    st(a, 'iss0')
    k1b.setup2(a)
    st(a, 'su2')
    i1, dep, ramp = OPT.get('i1', 3), OPT.get('dep', 3), OPT.get('ramp', 1)
    for n in range(1, i1):
        for d in k1b.dma_ops(a, n, g):
            d()
    nxt = i1
    for n in range(8):
        k1b.SCHED[n] = []
        while nxt <= n + dep and (len(k1b.SCHED[n]) < ramp or nxt <= n + 1):
            k1b.SCHED[n].append(nxt)
            nxt += 1
    late = list(range(nxt, 15))
    st(a, 'iss')
    pfpos = OPT.get('pfpos', 2)
    for n in range(8):
        k1b.p1_stage(a, n, g)
        if OPT.get('pf') and pfpos == n + 2:
            prefetch(a)
        st(a, f'p1_{n}')
    ne1 = OPT.get('ne1', 2)
    e1m = OPT.get('e1m', 0)
    d_e1 = [d for c in late[:ne1] for d in k1b.dma_ops(a, c, g)]
    if not e1m:
        k1b.e1a(a, g, d_e1, nb_ini_check)
        st(a, 'e1')
    late = late[ne1:]
    fill = {n: [[] for _ in range(8)] for n in range(8, 17)}
    e1b = k1b.e1b_ops(a, g)
    n8 = OPT.get('n8', 2)
    d13 = [d for c in late[:n8] for d in k1b.dma_ops(a, c, g)]
    late = late[n8:]
    w8 = OPT.get('w8', 2)
    slots = [(8, i) for i in range(4) for _ in range(w8)] + [(8, i) for i in range(4, 8)] + [(9, i) for i in range(8)]
    if e1m:
        slots = [(8, 0)] * OPT.get('wm', 3) + [(9, i) for i in range(8)] + [(10, i) for i in range(OPT.get('n10', 4))]
    if g == 1:
        slots = slots[:len(slots) - OPT.get('e1short', 4)]
    parts = k1b.split_even(e1b, len(slots))
    for i in range(len(d13)):
        fill[8][i].append(d13[i])
    for k, c in enumerate(late):
        dd = k1b.dma_ops(a, c, g)
        sk = 9 + k * OPT.get('lstep', 1) + OPT.get('l0', 0)
        if OPT.get('lmap'):
            sk = 9 + int(str(OPT['lmap'])[1 + k])
        assert sk <= c - 1
        fill[sk][OPT.get('lg0', 1)].insert(0, dd[0])
        fill[sk][OPT.get('lg1', 5)].insert(0, dd[1])
    for (n, i), p in zip(slots, parts):
        fill[n][i] += p
    d15 = k1b.dma_ops(a, 15, g)
    s15 = OPT.get('d15s', 10)
    fill[s15][OPT.get('dg0', 1)].append(d15[0])
    fill[s15][OPT.get('dg1', 5)].append(d15[1])
    if OPT.get('prs'):
        fill[OPT['prs']][OPT.get('prg', 7)].append(lambda: k1b.prep_issue(a))
    ids = record(a, lambda r: hook8(r, g, vPOI, 'poi'))
    for i, p in enumerate(k1b.split_even(ids, 8)):
        fill[10][i] += p
    addr, reads, stores = k1b.prep_finish_ops(a, 'pst')
    for i, p in enumerate(k1b.split_even(addr, 3)):
        fill[11][i] += p
    fill[11][3] += reads
    fill[11][6] += stores
    if g == 0:
        fill[fas][0] = fa_signal_ops() + fill[fas][0]
        fill[14][0] = fw_signal_ops() + fill[14][0]
    ekv = OPT.get('ekv', 0)
    nek = OPT.get('nek', 6) if ekv else 0
    if not ekv:
        fill[15][0] = record(a, lambda r: nb_hook15(r, g)) + fill[15][0]
    else:
        pg, cg = {1: (0, 8), 2: (4, 12), 3: (2, 10), 4: (0, 10), 5: (0, 12), 6: (4, 14), 7: (-4, 4), 8: (-2, 6),
                  9: (-6, 2)}[ekv]
        at = lambda x: fill[14 + x // 8][x % 8]
        ekv_poll = record(a, lambda r: nb_hook15(r, g))
        ekv_at = (pg, cg)
    fill[11][7] += k1b.cs_write_ops(a, [(k1.vCSA, (3 + 2 * g) * 512)])
    prep = k1b.gelu_prep(a, g, 0) + k1b.gelu_consts()
    first, per = k1b.gelu_tile_ops(a, k1.AC_A, 'ga')
    pp = k1b.split_even(prep + first, 4)
    for i in range(4):
        fill[12][i] += pp[i]
    gl = [o for q in per for o in q]
    gs = OPT.get('gstart', 5)
    slots = [(12, i) for i in range(gs, 8)] + [(n, i) for n in (13, 14, 15) for i in range(8)] + \
            [(16, i) for i in range(OPT.get('gend', 2))]
    for (n, i), p in zip(slots, k1b.split_even(gl, len(slots))):
        fill[n][i] += p
    if ekv:
        pg, cg = ekv_at
        at(pg)[:0] = ekv_poll
        at(cg)[:0] = [lambda: (a.wait_vm('fa'), nb_fa_check(a))]
        assert nek <= 6
        for i in range(nek):
            at(min(cg + 1 + i * OPT.get('eks', 1), 19)).append(kv_dma(a, i))
        if OPT.get('ekq'):
            fill[16][3].append(q_load(a))
    for n in range(8, 16):
        if n == 8 and e1m:
            assert not d13 and not any(fill[8][1:])
            k1b.e1m(a, g, d_e1, nb_ini_check, fill[8][0])
        else:
            k1b.p2_stage(a, n, g, fill[n])
        st(a, f'p2_{n}')
    k1b.p2_b_phase(a, 15, [[], [], [], []], fill[16][:4])
    k1.run_gaps(a, [k1b.cs_write_ops(a, [(k1.vCSB, (3 + 2 * g + 1) * 512)])])
    a.wait_lg()
    if not ekv:
        a.wait_vm('fa')
    if OPT.get('nob1'):
        assert ekv and OPT['nob1'] <= nek and OPT['b1'] == OPT['nob1']
        a.wait_vm([f'kv{i}' for i in range(OPT['nob1'])])
    a('s_barrier')
    if not ekv:
        nb_fa_check(a)
    st(a, 'tail')
    extras = ([] if (ekv and OPT.get('ekq')) else [q_load(a)]) + [kv_dma(a, i) for i in range(nek, pre_n)]
    def gelu_b(qs, halves):
        prep = k1b.gelu_prep(a, g, 1)
        first, per = k1b.gelu_tile_ops(a, k1.AC_B, 'gb', qs)
        ex = list(extras)
        pop = lambda: ex.pop(0) if ex else (lambda: None)
        k1.run_gaps(a, [prep[:4], pop(), prep[4:6], pop(), prep[6:], first, pop()])
        gl = [o for q in per for o in q]
        nx = len(ex)
        span = (len(gl) * OPT.get('xspan', 60 if len(qs) == 4 else OPT.get('xsph', 90))) // 100
        done = 0
        for i, op in enumerate(gl):
            while done < nx and done * span <= i * nx:
                ex[done]()
                done += 1
            emit(a, op)
        while done < nx:
            ex[done]()
            done += 1
        k1b.h_store(a, g, 0, 'ha')
        k1b.h_store(a, g, 1, 'hb', halves)

    if g == 1 and k1.EV:
        up, jn = a.newlabel('upb'), a.newlabel('joinb')
        a(f's_cmp_eq_u32 s{k1.sPB}, 0')
        a(f's_cbranch_scc1 {up}')
        snap = a.snapshot()
        gelu_b((0, 1), (1, 0))
        a(f's_branch {jn}')
        endsnap = a.snapshot()
        a.label(up)
        a.restore(snap)
        gelu_b((2, 3), (0, 1))
        assert a.snapshot()[0] == endsnap[0]
        a.label(jn)
        a.restore(endsnap)
    else:
        if g == 1:
            skip = a.newlabel('skipb')
            a(f's_cmp_eq_u32 s{k1.sPB}, 0')
            a(f's_cbranch_scc1 {skip}')
            snap = a.snapshot()
        gelu_b((0, 1, 2, 3), (1, 1))
    if g == 1 and not k1.EV:
        jn = a.newlabel('joinb')
        a(f's_branch {jn}')
        endsnap = a.snapshot()
        a.label(skip)
        a.restore(snap)
        for x in extras:
            x()
        k1b.h_store(a, g, 0, 'ha')
        a.vmem(f'buffer_load_dword v10, v{vL16}, {srd(S_WS)}, s{sSRC} offen', 'hb')
        a.vmem(f'buffer_load_dword v11, v{vL16}, {srd(S_WS)}, s{sSRC} offen', 'hb')
        assert a.snapshot()[0] == endsnap[0], (a.snapshot(), endsnap)
        a.label(jn)
        a.restore(endsnap)
    a.wait_lg()
    st(a, 'gelu')

STAMPS = {}


def st(a, name):
    if name in STAMPS:
        stamp(a, STAMPS[name])


def first_stamp(a):
    if not OPT.get('st0'):
        stamp(a, 0, 0)
    else:
        a('s_mov_b32 s68, s98')
        a('s_mov_b32 s69, s99')
        a('s_mov_b32 s88, s100')
        a('s_mov_b32 s89, s101')


def gen_km(label, force_fallback=False):
    k1.SC = ' sc1'
    k1.EV = bool(OPT.get('ev'))
    k1.HOOKS = {0: hook0, 8: hook8, 9: hook9, 11: hook11, 14: hook14, 15: hook15}
    k1.PREBAR = {11: prebar11}
    a = Asm()
    end = label + '_end'
    att = label + '_att'
    if OPT.get('st0'):
        a('s_memrealtime s[98:99]')
        a('s_memtime s[100:101]')
    prologue(a, end, None)
    if OPT.get('fast'):
        import k1b
        k1b.OPT = OPT
        srd_consts(a, ['x', 'wq'])
        k1.setup(a)
        k1b.rot_setup(a)
        srd_consts(a, ['w1', 'ws', 'w2', 'wo', 'b1', 'b2', 'out', 'dbg'])
        a('s_waitcnt lgkmcnt(0)')
        srd_bases(a, ['x', 'wq'])
    else:
        build_srds(a, ['x', 'wq', 'w1', 'ws', 'w2', 'wo', 'b1', 'b2', 'out', 'dbg'])
        first_stamp(a)
        st(a, 'ka')
        start_extra(a)
        k1.setup(a)
        st(a, 'su1')
    g1 = label + '_g1'
    a(f's_cmp_eq_u32 s{sG}, 1')
    a(f's_cbranch_scc1 {g1}')
    snap0 = a.snapshot()
    joinsnap = None
    pre_n = OPT['kvpre']
    for g in (0, 1):
        if g == 1:
            a.label(g1)
            a.restore(snap0)
        if OPT.get('nb'):
            k1_new(a, g)
        else:
            i0, i1, pfpos = OPT.get('i0', 5), OPT.get('i1', 5), OPT.get('pfpos', 0)
            k1.INIT = i1
            for n in range(i0):
                for d in k1.dma_ops(a, n, g):
                    d()
            st(a, 'iss0')
            if OPT.get('pf') and pfpos == 0:
                prefetch(a)
            k1.setup2(a)
            st(a, 'su2')
            for n in range(i0, i1):
                for d in k1.dma_ops(a, n, g):
                    d()
            if OPT.get('pf') and pfpos == 1:
                prefetch(a)
            st(a, 'iss')
            for n in range(8):
                k1.p1_stage(a, n, g)
                if OPT.get('pf') and pfpos == n + 2:
                    prefetch(a)
                st(a, f'p1_{n}')
            k1.p1_epilogue(a, g)
            st(a, 'e1')
            if OPT.get('xdrain'):
                a('s_waitcnt vmcnt(0)')
                st(a, 'e1d')
            for n in range(8, 16):
                k1.p2_stage(a, n, g)
                st(a, f'p2_{n}')
            k1.p2_b_phase(a, 15, [[], [], [], []], [])
            k1.write_cs_partials(a, [(k1.vCSB, (3 + 2 * g + 1) * 512)])
            a.wait_all()
            a('s_barrier')
            fa_check(a)
            st(a, 'tail')
            k1.gelu_simple(a, g, 0, [q_load(a)] + [kv_dma(a, i) for i in range(pre_n)], 'ha')
            if g == 1:
                skip = a.newlabel('skipb')
                a(f's_cmp_eq_u32 s{k1.sPB}, 0')
                a(f's_cbranch_scc1 {skip}')
            k1.gelu_simple(a, g, 1, [], 'hb')
            if g == 1:
                jn = a.newlabel('joinb')
                a(f's_branch {jn}')
                a.label(skip)
                a(f'buffer_load_dword v10, v{vL16}, {srd(S_WS)}, s{sSRC} offen')
                a(f'buffer_load_dword v11, v{vL16}, {srd(S_WS)}, s{sSRC} offen')
                a.label(jn)
            a.wait_lg()
            st(a, 'gelu')
        if OPT.get('xdrain'):
            a('s_waitcnt vmcnt(0)')
            st(a, 'gelud')
        attention(a, g)
        if g == 0:
            a(f's_branch {att}')
            joinsnap = a.snapshot()
        else:
            assert a.snapshot() == joinsnap, (a.snapshot(), joinsnap)
    a.label(att)
    a.wait_lg()
    a(mfma32(RO, RV1, RP + 4, RO))
    fb = label + '_fb'
    fin = label + '_fin'
    a(f'v_mul_f32 v{vT}, 0, v{RO + 8}')
    for i in range(8):
        a(f'v_fma_f32 v{vT}, v{RO + i}, 0, v{vT}')
    a(f'v_cmp_u_f32 vcc, v{vT}, v{vT}')
    if force_fallback:
        a(f's_branch {fb}')
    else:
        a(f's_cbranch_vccnz {fb}')
    a.label(fin)
    a(f'v_rcp_f32 v{vT}, v{RO + 8}')
    for i in range(8):
        a(f'v_mul_f32 v{RO + i}, v{vT}, v{RO + i}')
    for i in range(4):
        a(f'v_cvt_pk_bf16_f32 v{RO + i}, v{RO + 2 * i}, v{RO + 2 * i + 1}')
    for i in range(4):
        a(f'v_min_u32 v{RO + i}, -2, v{RO + i}')
    a.vmem(f'buffer_store_dwordx4 v[{RO}:{RO + 3}], v{vL16}, {srd(S_WS)}, s{sOF} offen sc1', 'ost')
    st(a, 'oend')
    if OPT.get('xdrain'):
        a('s_waitcnt vmcnt(0)')
        st(a, 'oendd')
    if OPT.get('fs'):
        assert OPT['b2'] >= 18
        reduce_write4(a)
        st(a, 'ba')
    elif OPT.get('erw') == 2:
        assert OPT['b2'] >= 18
        g1l, jl = a.newlabel('rw_g1'), a.newlabel('rw_j')
        a(f's_cmp_eq_u32 s{sG}, 1')
        a(f's_cbranch_scc1 {g1l}')
        snap = a.snapshot()
        reduce_write2(a, 0)
        a('s_barrier')
        a(f's_branch {jl}')
        end0 = a.snapshot()
        a.label(g1l)
        a.restore(snap)
        a('s_barrier')
        reduce_write2(a, 1)
        assert a.snapshot() == end0
        a.label(jl)
        st(a, 'ba')
    else:
        a('s_barrier')
        st(a, 'ba')
        reduce_write(a)
    opos = OPT.get('opos', 0)
    if opos == 0:
        o_loads(a, True)
    a.wait_lg()
    a('s_barrier')
    st(a, 'bb')
    if opos == 1:
        o_loads(a, True)
    reduce_read_gate(a)
    st(a, 'gate')
    o_check(a)
    st(a, 'opoll')
    ob_write(a)
    if OPT.get('own'):
        bb_ = wo_rest(a)
        wo_own(a)
        a.wait_lg()
        a('s_barrier')
        st(a, 'bc')
        wo_rest2(a, bb_)
    else:
        a.wait_lg()
        a('s_barrier')
        st(a, 'bc')
        wo_gemm(a)
    st(a, 'wog')
    a.wait_lg()
    t = exchange(a, label)
    final(a, t)
    st(a, 'fin')
    a('s_waitcnt vmcnt(0)')
    stamp(a, 9, 1)
    if OPT.get('dbgst'):
        lbl = a.newlabel('nodbg')
        a(f's_cmp_lg_u32 s{sW}, {OPT["dbgst"] - 1}')
        a(f's_cbranch_scc1 {lbl}')
        a('s_mov_b64 exec, 1')
        a('v_not_b32 v2, s68')
        a(f'buffer_atomic_umax v2, off, {srd(S_DBG)}, 0 offset:20 sc1')
        for k in range(1, 10):
            a(f'v_mov_b32 v{2 + k}, s{68 + 2 * k}')
            a(f'buffer_atomic_umax v{2 + k}, off, {srd(S_DBG)}, 0 offset:{20 + 4 * k} sc1')
        a('s_waitcnt vmcnt(0)')
        a.label(lbl)
    else:
        stamp_flush(a, 0)
    a('s_endpgm')
    a.label(fb)
    fallback(a, fin)
    a.label(end)
    a('s_endpgm')
    return a
```

```python
from common import *
import k1
from k1 import fl

KM_LDS = 163840
LCNT = 163824
RED = 0
OB = 131072
FA = FL
FB = FL + 4096
FH = FL + 8192
LOG2E = 1.4426950408889634
SPIN = 20000

sT0, sT1, sT2, sT3 = 52, 53, 54, 55
sH, sTQ, sSRC, sMD = 20, 21, 22, 23
sTILE, sCG, sOF, sOP = 24, 25, 26, 27
sHS, sWSRC, sWO, sSPIN = 8, 9, 10, 11
sVM = 94
sCT, sKH = sTT, sG

vL16 = 1
aK0, aK1, aV0, aV1 = 2, 3, 4, 5
vT = 6
RQ, RK, RV0, RV1, RP = 12, 16, 20, 24, 28
NEGM = 36
RS = (52, 68)
RO = 84
ACC = 100
RING = 164
vX, vB2, vXO = 228, 232, 236
vG, vS = 240, 248
OP = 52

OPT = dict(u0=28, D=11, fbsig=5, prio=None, b2=24, kvpre=8, nofb=False)


def spin(a, site, load, check_ok):
    ok = a.newlabel('ok')
    lp = a.newlabel('spin')
    check_ok(ok)
    a(f's_mov_b32 s{sSPIN}, {SPIN}')
    a.label(lp)
    a('s_sleep 1')
    load()
    a('s_waitcnt vmcnt(0)')
    check_ok(ok)
    a(f's_sub_u32 s{sSPIN}, s{sSPIN}, 1')
    a(f's_cmp_lg_u32 s{sSPIN}, 0')
    a(f's_cbranch_scc1 {lp}')
    a(f'v_mov_b32 v{vT}, {site}')
    a(f'buffer_store_dword v{vT}, off, {srd(S_DBG)}, 0 offset:{4 * site}')
    a.label(ok)


def one_lane_store(a, reg, srdn, soff, val=1):
    a('s_mov_b64 exec, 1')
    a(f'v_mov_b32 v{reg}, {val}')
    a(f'buffer_store_dword v{reg}, off, {srd(srdn)}, {soff} sc1')
    a('s_mov_b64 exec, -1')


def start_extra(a):
    lbl = a.newlabel('noinit')
    a(f'''
v_mov_b32 v20, 0
v_mov_b32 v21, 0
v_mov_b32 v22, 0
v_mov_b32 v23, 0
v_mov_b32 v24, {LCNT}
''')
    a.ds('ds_write_b32 v24, v20', 'w')
    a(f'''
s_or_b32 s{sT0}, s2, s{sW}
s_cmp_lg_u32 s{sT0}, 0
s_cbranch_scc1 {lbl}
v_lshrrev_b32 v1, 2, v0
v_lshlrev_b32 v1, 8, v1
v_and_b32 v2, 3, v0
v_lshlrev_b32 v2, 4, v2
v_add_u32 v1, v1, v2
s_mov_b32 s{sT0}, {FA}
s_mov_b32 s{sT1}, {FB}
s_mov_b32 s{sT2}, {FH}
buffer_store_dwordx4 v[20:23], v1, {srd(S_WS)}, s{sT0} offen sc1
buffer_store_dwordx4 v[20:23], v1, {srd(S_WS)}, s{sT1} offen sc1
buffer_store_dwordx4 v[20:23], v1, {srd(S_WS)}, s{sT2} offen sc1
''')
    a.label(lbl)


def prefetch(a):
    pf = OPT['pf']
    a(f'''
s_lshl_b32 s{sT0}, s2, 3
s_add_u32 s{sT0}, s{sT0}, s{sW}
v_lshlrev_b32 v48, 4, v0
''')
    if pf & 1:
        a(f's_mul_i32 s{sT1}, s{sT0}, 768')
        a.vmem(f'buffer_load_dwordx4 v[52:55], v48, {srd(S_WQ)}, s{sT1} offen', 'pf')
    if pf & 2:
        a(f's_mul_i32 s{sT1}, s{sT0}, 896')
        a.vmem(f'buffer_load_dwordx4 v[56:59], v48, {srd(S_W1)}, s{sT1} offen', 'pf')
    if pf & 4:
        a(f's_lshl_b32 s{sT1}, s{sT0}, 10')
        a.vmem(f'buffer_load_dwordx4 v[60:63], v48, {srd(S_X)}, s{sT1} offen', 'pf')
    if pf & 8:
        a(f's_mul_i32 s{sT1}, s{sT0}, 896')
        a.vmem(f'buffer_load_dwordx4 v[56:59], v48, {srd(S_W2)}, s{sT1} offen', 'pf')
        a(f's_lshl_b32 s{sT1}, s{sT0}, 8')
        a.vmem(f'buffer_load_dword v60, v48, {srd(S_WO)}, s{sT1} offen', 'pf')


def hook0(a, g):
    st(a, 'c0')
    if g != 0:
        return
    lbl = a.newlabel('noinit2')
    a(f'''
s_or_b32 s{sT0}, s2, s{sW}
s_cmp_lg_u32 s{sT0}, 0
s_cbranch_scc1 {lbl}
''')
    one_lane_store(a, 20, S_DBG, 0)
    a.label(lbl)


def hook8(a, g, poi=92, tag='st'):
    a(f'''
s_lshl_b32 s{sT0}, s{sXCD}, 2
s_lshr_b32 s{sCG}, s{sSLOT}, 3
s_add_u32 s{sH}, s{sT0}, s{sCG}
s_and_b32 s{sT1}, s{sSLOT}, 7
s_lshl_b32 s{sTQ}, s{sT1}, 3
s_add_u32 s{sTQ}, s{sTQ}, s{sW}
s_lshl_b32 s{sMD}, s{sW}, 10
s_lshl_b32 s{sSRC}, s{sH}, 17
s_add_u32 s{sSRC}, s{sSRC}, {KV}
s_add_u32 s{sSRC}, s{sSRC}, s{sMD}
s_lshl_b32 s{sOF}, s{sTQ}, 5
s_add_u32 s{sOF}, s{sOF}, s{sH}
s_lshl_b32 s{sOF}, s{sOF}, 10
s_add_u32 s{sOF}, s{sOF}, {OF}
s_lshl_b32 s{sT0}, s{sXCD}, 3
s_add_u32 s{sTILE}, s{sT0}, s{sT1}
s_lshl_b32 s{sOP}, s{sTILE}, 3
s_add_u32 s{sOP}, s{sOP}, s{sW}
s_lshl_b32 s{sOP}, s{sOP}, 12
s_add_u32 s{sOP}, s{sOP}, {OF}
{f's_mul_i32 s{sT0}, s{sCT}, 28' if OPT.get('fs') else f's_mul_i32 s{sT0}, s{sW}, 14'}
s_mul_i32 s{sHS}, s{sTILE}, 112
s_add_u32 s{sHS}, s{sHS}, s{sT0}
s_lshl_b32 s{sHS}, s{sHS}, 10
s_add_u32 s{sHS}, s{sHS}, {HF}
s_lshl_b32 s{sWSRC}, s{sT0}, 4
s_lshl_b32 s{sT1}, s{sCG}, 2
s_add_u32 s{sWSRC}, s{sWSRC}, s{sT1}
{f's_add_u32 s{sWSRC}, s{sWSRC}, s{sKH}' if OPT.get('fs') else ''}
{f's_add_u32 s{sWSRC}, s{sWSRC}, s{sKH}' if OPT.get('fs') else ''}
s_lshl_b32 s{sWSRC}, s{sWSRC}, 10
s_add_u32 s{sWSRC}, s{sWSRC}, {WF}
s_lshl_b32 s{sWO}, s{sKH}, 4
s_add_u32 s{sWO}, s{sWO}, 112
s_lshl_b32 s{sWO}, s{sWO}, 4
s_add_u32 s{sWO}, s{sWO}, s{sT1}
s_add_u32 s{sWO}, s{sWO}, s{sCT}
s_lshl_b32 s{sWO}, s{sWO}, 10
s_add_u32 s{sWO}, s{sWO}, {WF}
v_mov_b32 v{poi}, -1
v_mov_b32 v{poi + 1}, -1
v_mov_b32 v{poi + 2}, -1
v_mov_b32 v{poi + 3}, -1
''')
    a.vmem(f'buffer_store_dwordx4 v[{poi}:{poi + 3}], v{vL16}, {srd(S_WS)}, s{sOF} offen sc1', tag)


def ini_load(a):
    return f'buffer_load_dword v92, off, {srd(S_DBG)}, 0 sc1'


def hook9(a, g):
    a.vmem(ini_load(a), 'ini')


def prebar11(a, g):
    a.wait_vm('ini')

    def chk(ok):
        a('v_cmp_eq_u32 vcc, 1, v92')
        a(f's_cbranch_vccnz {ok}')
    spin(a, 1, lambda: a(ini_load(a)), chk)


def hook11(a, g):
    if g == 0:
        lbl = a.newlabel('nofa')
        a(f'''
s_cmp_lg_u32 s{sW}, 0
s_cbranch_scc1 {lbl}
s_lshl_b32 s{sT0}, s{k1.sHP}, 8
s_lshl_b32 s{sT1}, s{k1.sTB}, 2
s_add_u32 s{sT0}, s{sT0}, s{sT1}
s_add_u32 s{sT0}, s{sT0}, {FA}
''')
        one_lane_store(a, 92, S_WS, f's{sT0}')
        a.label(lbl)
    k1.prep_finish(a)


def hook14(a, g):
    if g == 0:
        lbl = a.newlabel('nofw')
        a(f'''
s_cmp_lg_u32 s{sW}, 0
s_cbranch_scc1 {lbl}
s_lshr_b32 s{sT0}, s2, 4
s_lshl_b32 s{sT0}, s{sT0}, 8
s_and_b32 s{sT1}, s2, 15
s_lshl_b32 s{sT1}, s{sT1}, 2
s_add_u32 s{sT0}, s{sT0}, s{sT1}
s_add_u32 s{sT0}, s{sT0}, {FB}
''')
        one_lane_store(a, 92, S_WS, f's{sT0}')
        a.label(lbl)


def fa_load():
    return f'buffer_load_dword v93, v94, {srd(S_WS)}, s{sSPIN - 0 if False else sT1} offen sc1'


def fa_addr(a):
    a(f'''
s_lshr_b32 s{sT1}, s{sH}, 1
s_lshl_b32 s{sT1}, s{sT1}, 8
s_add_u32 s{sT1}, s{sT1}, {FA}
''')


def hook15(a, g):
    a('v_and_b32 v94, 15, v0')
    a('v_lshlrev_b32 v94, 2, v94')
    fa_addr(a)
    a.vmem(fa_load(), 'fa')


def fa_check(a):
    def chk(ok):
        a('v_cmp_ne_u32 vcc, 1, v93')
        a(f's_cbranch_vccz {ok}')

    def ld():
        fa_addr(a)
        a(fa_load())
    spin(a, 2, ld, chk)


def kv_dma(a, i):
    def f():
        a(f's_add_u32 m0, s{sMD}, {i * 8192}')
        a(f's_add_u32 s{sT2}, s{sSRC}, {i * 8192}')
        a.vmem(f'buffer_load_dwordx4 v{vL16}, {srd(S_WS)}, s{sT2} offen sc1 lds', f'kv{i}')
    return f


def q_load(a):
    def f():
        a(f'''
s_lshl_b32 s{sT2}, s{sH}, 6
s_add_u32 s{sT2}, s{sT2}, s{sTQ}
s_lshl_b32 s{sT2}, s{sT2}, 10
''')
        a.vmem(f'buffer_load_dwordx4 v[{RQ}:{RQ + 3}], v{vL16}, {srd(S_WS)}, s{sT2} offen sc1', 'q')
    return f


def k_read(a, t):
    ar, off = (aK0, t * 2048) if t < 32 else (aK1, (t - 32) * 2048)
    a.ds(f'ds_read_b128 v[{RK}:{RK + 3}], v{ar} offset:{off}', f'K{t}')


def v_reads(a, items):
    a(f's_mov_b64 exec, s[{sVM}:{sVM + 1}]')
    for part, t in items:
        ar, off = (aV0, t * 2048) if t < 32 else (aV1, (t - 32) * 2048)
        r = RV0 if part == 0 else RV1
        a.ds(f'ds_read_b128 v[{r}:{r + 3}], v{ar} offset:{off + part * 512}', f'V{part}_{t}')
    a('s_mov_b64 exec, -1')


def run(a, items):
    for it in items:
        emit(a, it)


def attn_step(a, t, nt, ev, mf, pre):
    S, Sn = RS[t % 2], RS[(t + 1) % 2]
    ex = [f'v_exp_f32 v{S + i}, v{S + i}' for i in range(16)]
    cv = [f'v_cvt_pk_bf16_f32 v{RP + i}, v{S + 2 * i}, v{S + 2 * i + 1}' for i in range(8)]
    run(a, pre.get(t, []))
    if t + 1 < nt:
        a.wait_lg(f'K{t + 1}')
        a(mfma32(Sn, RK, RQ, NEGM))
        if t + 2 < nt:
            k_read(a, t + 2)
    run(a, ev.get(2 * t, []))
    run(a, (ex[0], ex[1], ex[2], ex[3]))
    run(a, mf.get(2 * t, []))
    run(a, (cv[0], ex[4], ex[5], cv[1]))
    if t > 0:
        a.wait_lg(f'V1_{t - 1}')
        a(mfma32(RO, RV1, RP + 4, RO))
    run(a, (ex[6], ex[7], cv[2], ex[8], ex[9], cv[3], ex[10], ex[11]))
    a.wait_lg(f'V0_{t}')
    a(mfma32(RO, RV0, RP, '0' if t == 0 else RO))
    items = [(1, t)]
    if t + 1 < nt:
        items.append((0, t + 1))
    v_reads(a, items)
    run(a, ev.get(2 * t + 1, []))
    run(a, (cv[4], ex[12], ex[13], cv[5]))
    run(a, mf.get(2 * t + 1, []))
    run(a, (ex[14], ex[15], cv[6], cv[7]))


def row_max(a, S, dst, tmp):
    a(f'v_max3_f32 v{dst}, v{S}, v{S + 1}, v{S + 2}')
    a(f'v_max3_f32 v{tmp}, v{S + 3}, v{S + 4}, v{S + 5}')
    a(f'v_max3_f32 v{dst}, v{dst}, v{S + 6}, v{S + 7}')
    a(f'v_max3_f32 v{tmp}, v{tmp}, v{S + 8}, v{S + 9}')
    a(f'v_max3_f32 v{dst}, v{dst}, v{S + 10}, v{S + 11}')
    a(f'v_max3_f32 v{tmp}, v{tmp}, v{S + 12}, v{S + 13}')
    a(f'v_max3_f32 v{dst}, v{dst}, v{S + 14}, v{S + 15}')
    a(f'v_max_f32 v{dst}, v{dst}, v{tmp}')
    a(f'v_mov_b32 v{tmp}, v{dst}')
    a(f'v_permlane32_swap_b32 v{dst}, v{tmp}')
    a(f'v_max_f32 v{dst}, v{dst}, v{tmp}')


def fallback(a, done_label):
    a.comment('--- fallback: online softmax with the running true maximum')
    loop = a.newlabel('fb_loop')
    S = RS[0]
    vm, vmn, val, va, vb = vT, vT + 1, vT + 2, vT + 3, vT + 4
    a(f'v_mov_b32 v{vm}, 0xff800000')
    for i in range(16):
        a(f'v_mov_b32 v{RO + i}, 0')
    a(f'v_mov_b32 v{va}, v{aK0}')
    a(f'v_mov_b32 v{vb}, v{aV0}')
    a(f's_mov_b32 s{sT0}, 64')
    a.label(loop)
    a(f'ds_read_b128 v[{RK}:{RK + 3}], v{va}')
    a(f's_mov_b64 exec, s[{sVM}:{sVM + 1}]')
    a(f'ds_read_b128 v[{RV0}:{RV0 + 3}], v{vb}')
    a(f'ds_read_b128 v[{RV1}:{RV1 + 3}], v{vb} offset:512')
    a('s_mov_b64 exec, -1')
    a('s_waitcnt lgkmcnt(0)')
    a(mfma32(S, RK, RQ, '0'))
    a(f'v_add_u32 v{va}, 0x800, v{va}')
    a(f'v_add_u32 v{vb}, 0x800, v{vb}')
    row_max(a, S, vmn, val)
    a(f'v_max_f32 v{vmn}, v{vmn}, v{vm}')
    a(f'v_sub_f32 v{val}, v{vm}, v{vmn}')
    a(f'v_exp_f32 v{val}, v{val}')
    a(f'v_mov_b32 v{vm}, v{vmn}')
    for i in range(16):
        a(f'v_sub_f32 v{S + i}, v{S + i}, v{vmn}')
    for i in range(16):
        a(f'v_exp_f32 v{S + i}, v{S + i}')
    for i in range(16):
        a(f'v_mul_f32 v{RO + i}, v{val}, v{RO + i}')
    for i in range(8):
        a(f'v_cvt_pk_bf16_f32 v{RP + i}, v{S + 2 * i}, v{S + 2 * i + 1}')
    a(mfma32(RO, RV0, RP, RO))
    a(mfma32(RO, RV1, RP + 4, RO))
    a(f's_sub_u32 s{sT0}, s{sT0}, 1')
    a(f's_cmp_lg_u32 s{sT0}, 0')
    a(f's_cbranch_scc1 {loop}')
    a(f's_branch {done_label}')


def slot(i):
    return RING + 4 * (i % 16)


def nper():
    return (3, 28) if OPT.get('fs') else (5, 14)


def stream_load(a, i):
    np_, ns = nper()
    nf = np_ * ns

    def f():
        if OPT.get('xnl') and i < nf:
            return
        if i < nf:
            s, j = divmod(i, np_)
            if j == 0:
                a(f's_add_u32 s{sT2}, s{sHS}, {s * 1024}')
                a.vmem(f'buffer_load_dwordx4 v[{slot(i)}:{slot(i) + 3}], v{vL16}, {srd(S_WS)}, s{sT2} offen sc1', f'f{i}')
            else:
                if j == 1:
                    a(f's_add_u32 s{sT3}, s{sWSRC}, {s * 16384}')
                a.vmem(f'buffer_load_dwordx4 v[{slot(i)}:{slot(i) + 3}], v{vL16}, {srd(S_WS)}, s{sT3} offen '
                       f'offset:{(j - 1) * 1024} sc1', f'f{i}')
        else:
            k = i - nf
            if OPT.get('own'):
                a(f's_lshl_b32 s{sT2}, s{sCT}, 2')
                a(f's_add_u32 s{sT2}, s{sT2}, {k}')
                a(f's_and_b32 s{sT2}, s{sT2}, 15')
                a(f's_lshl_b32 s{sT2}, s{sT2}, 14')
                a(f's_add_u32 s{sT2}, s{sT2}, s{sWO}')
            else:
                a(f's_add_u32 s{sT2}, s{sWO}, {k * 16384}')
            a.vmem(f'buffer_load_dwordx4 v[{slot(i)}:{slot(i) + 3}], v{vL16}, {srd(S_WS)}, s{sT2} offen sc1', 'wo')
    return f


def stream_mfma(a, s, j):
    def f():
        np_ = nper()[0]
        iw, ih = np_ * s + 1 + j, np_ * s
        if not OPT.get('xnw'):
            a.wait_vm(f'f{iw}')
        else:
            a.vm = [t for t in a.vm if t != f'f{iw}' and t != f'f{ih}']
        if OPT.get('xnm'):
            return
        a(mfma32(ACC + 16 * j, slot(iw), slot(ih), '0' if s == 0 else None))
    return f


def side_loads(a):
    a(f'''
s_lshl_b32 s{sT0}, s{sCG}, 8
s_lshl_b32 s{sT1}, s{sCT}, 6
s_add_u32 s{sT0}, s{sT0}, s{sT1}
s_lshl_b32 s{sT1}, s{sKH}, 5
s_add_u32 s{sT0}, s{sT0}, s{sT1}
v_lshrrev_b32 v{vT}, 5, v0
v_lshlrev_b32 v{vT}, 3, v{vT}
v_add_u32 v{vT}, s{sT0}, v{vT}
v_and_b32 v{vT + 1}, 31, v0
v_lshlrev_b32 v{vT + 1}, 10, v{vT + 1}
s_lshl_b32 s{sT1}, s{sTILE}, 15
v_add3_u32 v{vT + 1}, v{vT + 1}, v{vT}, s{sT1}
''')
    a.vmem(f'buffer_load_dwordx2 v[{vB2}:{vB2 + 1}], v{vT}, {srd(S_B2)}, 0 offen', 'side')
    a.vmem(f'buffer_load_dwordx2 v[{vB2 + 2}:{vB2 + 3}], v{vT}, {srd(S_B2)}, 0 offen offset:16', 'side')
    a.vmem(f'buffer_load_dwordx2 v[{vX}:{vX + 1}], v{vT + 1}, {srd(S_X)}, 0 offen', 'side')
    a.vmem(f'buffer_load_dwordx2 v[{vX + 2}:{vX + 3}], v{vT + 1}, {srd(S_X)}, 0 offen offset:16', 'side')
    a(f'''
v_lshrrev_b32 v{vT + 2}, 5, v0
v_lshlrev_b32 v{vT + 2}, 4, v{vT + 2}
v_and_b32 v{vXO}, 31, v0
v_lshlrev_b32 v{vXO}, 10, v{vXO}
s_add_u32 s{sT0}, s{sT0}, s{sT1}
v_add3_u32 v{vXO}, v{vXO}, v{vT + 2}, s{sT0}
''')
    if OPT.get('otouch'):
        a.vmem(f'buffer_load_dword v{vXO + 1}, v{vXO}, {srd(S_OUT)}, 0 offen', 'side')


def fb_signal_1(a):
    a.wait_vm('hb')
    a(f'''
v_mov_b32 v{vT}, {LCNT}
v_mov_b32 v{vT + 1}, 1
s_mov_b64 exec, 1
''')
    a.ds(f'ds_add_rtn_u32 v{vT + 1}, v{vT}, v{vT + 1}', 'cnt')
    a('s_mov_b64 exec, -1')


def fb_signal_2(a):
    lbl = a.newlabel('nofb')
    a.wait_lg('cnt')
    a(f'''
v_readfirstlane_b32 s{sT0}, v{vT + 1}
s_cmp_lg_u32 s{sT0}, 7
s_cbranch_scc1 {lbl}
s_lshl_b32 s{sT0}, s{k1.sTB}, 8
s_lshl_b32 s{sT1}, s{k1.sHP}, 2
s_add_u32 s{sT0}, s{sT0}, s{sT1}
s_add_u32 s{sT0}, s{sT0}, {FH}
''')
    one_lane_store(a, vT + 1, S_WS, f's{sT0}')
    a.label(lbl)


def fb_load(a):
    return [f'buffer_load_dwordx4 v[8:11], v{vT}, {srd(S_WS)}, s{sT1} offen sc1',
            f'buffer_load_dword v{vX}, v{vT + 1}, {srd(S_WS)}, s{sT0} offen sc1']


def fb_addr(a):
    a(f'''
s_mov_b32 s{sT1}, {FB}
s_lshr_b32 s{sT0}, s{sTILE}, 2
s_lshl_b32 s{sT0}, s{sT0}, 8
s_add_u32 s{sT0}, s{sT0}, {FH}
''')


def fb_poll(a):
    a(f'''
v_lshrrev_b32 v{vT}, 2, v0
v_lshlrev_b32 v{vT}, 8, v{vT}
v_and_b32 v{vT + 1}, 3, v0
v_lshlrev_b32 v{vT + 1}, 4, v{vT + 1}
v_add_u32 v{vT}, v{vT}, v{vT + 1}
v_and_b32 v{vT + 1}, 15, v0
v_lshlrev_b32 v{vT + 1}, 2, v{vT + 1}
''')
    fb_addr(a)
    for x in fb_load(a):
        a.vmem(x, 'fb')


def fb_check(a):
    a.wait_vm('fb')

    def chk(ok):
        a('v_and_b32 v8, v8, v9')
        a('v_and_b32 v10, v10, v11')
        a('v_and_b32 v8, v8, v10')
        a(f'v_and_b32 v8, v8, v{vX}')
        a('v_cmp_ne_u32 vcc, 1, v8')
        a(f's_cbranch_vccz {ok}')

    def ld():
        fb_addr(a)
        for x in fb_load(a):
            a(x)
    spin(a, 3, ld, chk)


def o_loads(a, tracked):
    for i in range(4):
        t = f'buffer_load_dwordx4 v[{OP + 4 * i}:{OP + 4 * i + 3}], v{vL16}, {srd(S_WS)}, s{sOP} offen offset:{1024 * i} sc1'
        if tracked:
            a.vmem(t, 'op')
        else:
            a(t)


def o_check(a):
    a.wait_vm('op')

    def chk(ok):
        for i in range(4):
            r = OP + 4 * i
            a(f'v_max3_u32 v{vT + i}, v{r}, v{r + 1}, v{r + 2}')
            a(f'v_max_u32 v{vT + i}, v{vT + i}, v{r + 3}')
        a(f'v_max3_u32 v{vT}, v{vT}, v{vT + 1}, v{vT + 2}')
        a(f'v_max_u32 v{vT}, v{vT}, v{vT + 3}')
        a(f'v_cmp_eq_u32 vcc, -1, v{vT}')
        a(f's_cbranch_vccz {ok}')
    spin(a, 4, lambda: o_loads(a, False), chk)


def reduce_write(a):
    a(f's_lshl_b32 s{sT0}, s{sW}, 14')
    a(f'v_add_u32 v{vT}, s{sT0}, v{vL16}')
    for k in range(16):
        a.ds(f'ds_write_b128 v{vT}, v[{ACC + 4 * k}:{ACC + 4 * k + 3}] offset:{k * 1024}', 'rw')


PART = [0, 16384, 131072, 147456, 32768, 49152, 65536, 81920]


def reduce_write2(a, g):
    if g == 0:
        a(f's_lshl_b32 s{sT0}, s{sW}, 14')
        a(f's_cmp_ge_u32 s{sW}, 2')
        a(f's_cselect_b32 s{sT1}, {131072 - 32768}, 0')
        a(f's_add_u32 s{sT0}, s{sT0}, s{sT1}')
    else:
        a(f's_lshl_b32 s{sT0}, s{sW}, 14')
        a(f's_sub_u32 s{sT0}, s{sT0}, {65536 - 32768}')
    a(f'v_add_u32 v{vT}, s{sT0}, v{vL16}')
    for k in range(16):
        a.ds(f'ds_write_b128 v{vT}, v[{ACC + 4 * k}:{ACC + 4 * k + 3}] offset:{k * 1024}', 'rw')


def part_base(w):
    return w * 8192 if w < 4 else 131072 + (w - 4) * 8192


def reduce_write4(a):
    a(f's_lshl_b32 s{sT0}, s{sCT}, 13')
    a(f's_lshl_b32 s{sT1}, s{sKH}, 17')
    a(f's_add_u32 s{sT0}, s{sT0}, s{sT1}')
    a(f'v_add_u32 v{vT}, s{sT0}, v{vL16}')
    for k in range(8):
        a.ds(f'ds_write_b128 v{vT}, v[{ACC + 4 * k}:{ACC + 4 * k + 3}] offset:{k * 1024}', 'rw')


def reduce_read_gate4(a):
    a(f'''
s_lshr_b32 s{sT0}, s{sCT}, 1
s_lshl_b32 s{sT0}, s{sT0}, 17
s_and_b32 s{sT1}, s{sCT}, 1
s_lshl_b32 s{sT1}, s{sT1}, 12
s_add_u32 s{sT0}, s{sT0}, s{sT1}
s_lshl_b32 s{sT1}, s{sKH}, 11
s_add_u32 s{sT0}, s{sT0}, s{sT1}
v_add_u32 v{vT}, s{sT0}, v{vL16}
''')
    t = ACC
    for q in range(4):
        for e in range(2):
            d = t + 8 * q + 4 * e
            a.ds(f'ds_read_b128 v[{d}:{d + 3}], v{vT} offset:{q * 8192 + e * 1024}', f'r{q}')
    gate_math(a, t, 4)


def gate_math(a, t, n):
    a.wait_vm('side')
    if OPT.get('opos') == 2:
        o_loads(a, True)
    for e in range(2):
        for h in range(2):
            a(f'v_lshlrev_b32 v{vG + 4 * e + 2 * h}, 16, v{vB2 + 2 * e + h}')
            a(f'v_and_b32 v{vG + 4 * e + 2 * h + 1}, 0xffff0000, v{vB2 + 2 * e + h}')
    for w in range(n):
        a.wait_lg(f'r{w}')
        for k in range(8):
            a(f'v_add_f32 v{vG + k}, v{vG + k}, v{t + 8 * w + k}')
    if OPT.get('opos') == 3:
        o_loads(a, True)
    for k in range(8):
        a(f'v_mul_f32 v{t + k}, {fl(-LOG2E)}, v{vG + k}')
    for k in range(8):
        a(f'v_exp_f32 v{t + k}, v{t + k}')
    for k in range(8):
        a(f'v_add_f32 v{t + k}, 1.0, v{t + k}')
    for k in range(8):
        a(f'v_rcp_f32 v{t + k}, v{t + k}')
    for k in range(8):
        a(f'v_mul_f32 v{vG + k}, v{vG + k}, v{t + k}')


def reduce_read_gate(a):
    if OPT.get('fs'):
        return reduce_read_gate4(a)
    early = OPT.get('erw') == 2
    a(f'''
s_lshl_b32 s{sT0}, s{sCT}, 12
s_lshl_b32 s{sT1}, s{sKH}, 11
s_add_u32 s{sT0}, s{sT0}, s{sT1}
v_add_u32 v{vT}, s{sT0}, v{vL16}
v_add_u32 v{vT + 1}, 0x10000, v{vT}
''')
    if early:
        a(f'v_add_u32 v{vT + 2}, 0x20000, v{vT}')
    t = ACC
    for w in range(8):
        for e in range(2):
            if early:
                p = PART[w]
                ar, off = vT + p // 65536, p % 65536 + e * 1024
            else:
                ar, off = (vT if w < 4 else vT + 1), (w % 4) * 16384 + e * 1024
            d = t + 8 * w + 4 * e
            a.ds(f'ds_read_b128 v[{d}:{d + 3}], v{ar} offset:{off}', f'r{w}')
    a.wait_vm('side')
    for e in range(2):
        for h in range(2):
            a(f'v_lshlrev_b32 v{vG + 4 * e + 2 * h}, 16, v{vB2 + 2 * e + h}')
            a(f'v_and_b32 v{vG + 4 * e + 2 * h + 1}, 0xffff0000, v{vB2 + 2 * e + h}')
    for w in range(8):
        a.wait_lg(f'r{w}')
        for k in range(8):
            a(f'v_add_f32 v{vG + k}, v{vG + k}, v{t + 8 * w + k}')
    for k in range(8):
        a(f'v_mul_f32 v{t + k}, {fl(-LOG2E)}, v{vG + k}')
    for k in range(8):
        a(f'v_exp_f32 v{t + k}, v{t + k}')
    for k in range(8):
        a(f'v_add_f32 v{t + k}, 1.0, v{t + k}')
    for k in range(8):
        a(f'v_rcp_f32 v{t + k}, v{t + k}')
    for k in range(8):
        a(f'v_mul_f32 v{vG + k}, v{vG + k}, v{t + k}')


def ob_base():
    if OPT.get('fs'):
        return 32768
    return 98304 if OPT.get('erw') == 2 else OB


def ob_write(a):
    a(f's_lshl_b32 s{sT0}, s{sW}, 12')
    a(f's_add_u32 s{sT0}, s{sT0}, {ob_base()}')
    a(f'v_add_u32 v{vT}, s{sT0}, v{vL16}')
    for i in range(4):
        a.ds(f'ds_write_b128 v{vT}, v[{OP + 4 * i}:{OP + 4 * i + 3}] offset:{i * 1024}', 'ow')


def wo_own(a):
    nf = nper()[0] * nper()[1]
    a.wait_vm('wo')
    for i in range(4):
        a(mfma32(RO, slot(nf + i), OP + 4 * i, '0' if i == 0 else None))


def wo_rest(a):
    nf = nper()[0] * nper()[1]
    bb = ACC
    for n in range(1, 4):
        a(f's_add_u32 s{sT0}, s{sCT}, {n}')
        a(f's_and_b32 s{sT0}, s{sT0}, 3')
        a(f's_lshl_b32 s{sT0}, s{sT0}, 12')
        a(f's_lshl_b32 s{sT1}, s{sKH}, 14')
        a(f's_add_u32 s{sT0}, s{sT0}, s{sT1}')
        a(f's_add_u32 s{sT0}, s{sT0}, {ob_base()}')
        a(f'v_add_u32 v{vT + n}, s{sT0}, v{vL16}')
    return bb


def wo_rest2(a, bb):
    nf = nper()[0] * nper()[1]
    for n in range(1, 4):
        for i in range(4):
            k = 4 * n + i
            a.ds(f'ds_read_b128 v[{bb + 4 * k}:{bb + 4 * k + 3}], v{vT + n} offset:{i * 1024}', f'o{k}')
    for k in range(4, 16):
        a.wait_lg(f'o{k}')
        a(mfma32(RO, slot(nf + k), bb + 4 * k, None))


def wo_gemm(a):
    a(f's_lshl_b32 s{sT0}, s{sKH}, 14')
    a(f's_add_u32 s{sT0}, s{sT0}, {ob_base()}')
    a(f'v_add_u32 v{vT}, s{sT0}, v{vL16}')
    bb = ACC
    for i in range(16):
        a.ds(f'ds_read_b128 v[{bb + 4 * i}:{bb + 4 * i + 3}], v{vT} offset:{i * 1024}', f'o{i}')
    a.wait_vm('wo')
    for i in range(16):
        a.wait_lg(f'o{i}')
        a(mfma32(RO, slot(nper()[0] * nper()[1] + i), bb + 4 * i, '0' if i == 0 else None))


def exchange(a, label):
    k1l = label + '_kh1'
    j = label + '_khj'
    a(f'''
s_lshl_b32 s{sT0}, s{sW}, 11
v_add_u32 v{vT}, s{sT0}, v{vL16}
s_xor_b32 s{sT0}, s{sW}, 4
s_lshl_b32 s{sT0}, s{sT0}, 11
v_add_u32 v{vT + 1}, s{sT0}, v{vL16}
s_cmp_eq_u32 s{sKH}, 1
s_cbranch_scc1 {k1l}
''')
    for kh in (0, 1):
        if kh == 1:
            a.label(k1l)
        send = RO + (8 if kh == 0 else 0)
        keep = RO + (0 if kh == 0 else 8)
        a(f'ds_write_b128 v{vT}, v[{send}:{send + 3}]')
        a(f'ds_write_b128 v{vT}, v[{send + 4}:{send + 7}] offset:1024')
        for k in range(8):
            a(f'v_mov_b32 v{vS + k}, v{keep + k}')
        if kh == 0:
            a(f's_branch {j}')
    a.label(j)
    a('s_waitcnt lgkmcnt(0)')
    a('s_barrier')
    t = ACC
    a(f'ds_read_b128 v[{t}:{t + 3}], v{vT + 1}')
    a(f'ds_read_b128 v[{t + 4}:{t + 7}], v{vT + 1} offset:1024')
    return t


def final(a, t):
    u = ACC + 32
    for k in range(4):
        a(f'v_lshlrev_b32 v{u + 2 * k}, 16, v{vX + k}')
        a(f'v_and_b32 v{u + 2 * k + 1}, 0xffff0000, v{vX + k}')
    a('s_waitcnt lgkmcnt(0)')
    for k in range(8):
        a(f'v_add_f32 v{vS + k}, v{vS + k}, v{t + k}')
    for k in range(8):
        a(f'v_fma_f32 v{vS + k}, v{vS + k}, v{vG + k}, v{u + k}')
    for k in range(4):
        a(f'v_cvt_pk_bf16_f32 v{vS + k}, v{vS + 2 * k}, v{vS + 2 * k + 1}')
    a(f'v_permlane32_swap_b32 v{vS}, v{vS + 2}')
    a(f'v_permlane32_swap_b32 v{vS + 1}, v{vS + 3}')
    a.vmem(f'buffer_store_dwordx4 v[{vS}:{vS + 3}], v{vXO}, {srd(S_OUT)}, 0 offen', 'st')


def prio_plan(g):
    p = OPT.get('pr', 0)
    if p == 0:
        return lambda t: None
    if g == 1:
        return lambda t: 1 if t == 0 else None
    pat = {1: [2, 2, 2, 0], 2: [2, 2, 0], 3: [2, 0], 4: [2, 2, 2, 2, 0], 5: [2, 2, 2, 2, 2, 0, 0], 6: [0],
           7: [2, 2, 2, 0, 0]}[p]
    return lambda t: pat[t % len(pat)] if (t == 0 or pat[t % len(pat)] != pat[(t - 1) % len(pat)]) else None


def attention(a, g):
    pre_n = OPT['kvpre']
    a(f'''
v_mov_b32 v{aK0}, v{vL16}
v_add_u32 v{aK1}, 0x10000, v{vL16}
v_and_b32 v{vT}, 15, v0
v_lshrrev_b32 v{vT + 1}, 5, v0
v_lshlrev_b32 v{vT + 1}, 4, v{vT + 1}
v_add_u32 v{vT}, v{vT}, v{vT + 1}
v_lshlrev_b32 v{vT}, 4, v{vT}
v_add_u32 v{aV0}, 0x400, v{vT}
v_add_u32 v{aV1}, 0x10400, v{vT}
s_mov_b32 s{sVM}, 0xffff
s_mov_b32 s{sVM + 1}, 0xffff
''')
    if OPT.get('ones2', 1):
        a(f'v_and_b32 v{vT}, 27, v0')
        a(f'v_cmp_eq_u32 vcc, 16, v{vT}')
        a(f'v_mov_b32 v{vT}, 0x3f803f80')
        for i in range(4):
            a(f'v_cndmask_b32 v{RV0 + i}, 0, v{vT}, vcc')
            a(f'v_cndmask_b32 v{RV1 + i}, 0, v{vT}, vcc')
    else:
        for i in range(4):
            a(f'v_mov_b32 v{RV0 + i}, 0x3f803f80')
            a(f'v_mov_b32 v{RV1 + i}, 0x3f803f80')
    b1 = OPT.get('b1', pre_n)
    if OPT.get('nob1'):
        a.wait_vm('q')
    else:
        a.wait_vm(['q'] + [f'kv{i}' for i in range(b1)])
        a('s_barrier')
    st(a, 'b1')
    ev, mf, pre = {}, {}, {}
    add = lambda d, k, x: d.setdefault(k, []).append(x)
    k_read(a, 0)
    v_reads(a, [(0, 0)])
    a.wait_lg('K0')
    a(mfma32(RS[0], RK, RQ, '0'))
    row_max(a, RS[0], vT, vT + 1)
    for i in range(16):
        a(f'v_sub_f32 v{NEGM + i}, 0, v{vT}')
    a(mfma32(RS[0], RK, RQ, NEGM))
    k_read(a, 1)
    for i in range(pre_n, 16):
        add(ev, 2 * (i - pre_n), kv_dma(a, i))
    if b1 < pre_n and OPT['b2'] > 4 * b1 - 2:
        tb = 4 * b1 - 2
        add(pre, tb, lambda: (a.wait_vm([f'kv{i}' for i in range(pre_n)]), a('s_barrier')))
    tb2 = OPT['b2']
    assert tb2 <= 4 * pre_n - 2 and tb2 >= 2 * (15 - pre_n) + 1
    add(pre, tb2, lambda: (a.wait_vm([f'kv{i}' for i in range(16)]), a('s_barrier')))
    fs = OPT['fbsig']
    add(pre, fs, lambda: fb_signal_1(a))
    add(pre, fs + 1, lambda: fb_signal_2(a))
    u0, D = OPT['u0'], OPT['D']
    add(ev, u0 - 5, lambda: fb_poll(a))
    add(pre, u0 // 2, lambda: fb_check(a))
    np_, ns = nper()
    nl = np_ * ns + 16
    num, den = OPT.get('rnum', 1), OPT.get('rden', 1)
    U = lambda i: u0 + (i * num) // den
    last_use = {}
    for s in range(ns):
        for j in range(np_ - 1):
            um = U(np_ * s + 1 + j) + D
            add(mf, um, stream_mfma(a, s, j))
            last_use[np_ * s + 1 + j] = um
            last_use[np_ * s] = um
    for i in range(nl):
        add(ev, U(i), stream_load(a, i))
        if i >= 16:
            assert U(i) > last_use[i - 16], (i, U(i), last_use[i - 16])
    assert max(last_use.values()) < 128
    us = min(U(nl + 1), 127)
    add(ev, us, lambda: side_loads(a))
    assert U(nl - 1) <= us
    pp = prio_plan(g)
    for t in range(64):
        if pp(t) is not None:
            pre.setdefault(t, []).insert(0, f's_setprio {pp(t)}')
    for t in range(64):
        attn_step(a, t, 64, ev, mf, pre)
        st(a, f'a{t}')
    if OPT.get('pr', 0):
        a('s_setprio 0')


vINI, vFAA, vFAD = 6, 22, 23
vPOI = 24


def nb_hook6(a, g):
    a.vmem(f'buffer_load_dword v{vINI}, off, {srd(S_DBG)}, 0 sc1', 'ini')


def nb_ini_check(a, g):
    a.wait_vm('ini')

    def chk(ok):
        a(f'v_cmp_eq_u32 vcc, 1, v{vINI}')
        a(f's_cbranch_vccnz {ok}')
    spin(a, 1, lambda: a(f'buffer_load_dword v{vINI}, off, {srd(S_DBG)}, 0 sc1'), chk)


def flag_ops(addr):
    return [x.strip() for x in addr.strip().split('\n')] + [
        f's_cmp_eq_u32 s{sW}, 0',
        's_cselect_b64 exec, 1, 0',
        f'v_mov_b32 v{vINI}, 1',
        f'buffer_store_dword v{vINI}, off, {srd(S_WS)}, s{sT0} sc1',
        's_mov_b64 exec, -1']


def fa_signal_ops():
    return [flag_ops(f'''
s_lshl_b32 s{sT0}, s{k1.sHP}, 8
s_lshl_b32 s{sT1}, s{k1.sTB}, 2
s_add_u32 s{sT0}, s{sT0}, s{sT1}
s_add_u32 s{sT0}, s{sT0}, {FA}
''')][0]


def fw_signal_ops():
    return flag_ops(f'''
s_lshr_b32 s{sT0}, s2, 4
s_lshl_b32 s{sT0}, s{sT0}, 8
s_and_b32 s{sT1}, s2, 15
s_lshl_b32 s{sT1}, s{sT1}, 2
s_add_u32 s{sT0}, s{sT0}, s{sT1}
s_add_u32 s{sT0}, s{sT0}, {FB}
''')


def nb_prebar_st(a, g):
    a.wait_vm('st')


def nb_prebar14(a, g):
    a.wait_vm(['pst', 'poi'])


def nb_fa_load():
    return f'buffer_load_dword v{vFAD}, v{vFAA}, {srd(S_WS)}, s{sT1} offen sc1'


def nb_hook15(a, g):
    a(f'v_and_b32 v{vFAA}, 15, v0')
    a(f'v_lshlrev_b32 v{vFAA}, 2, v{vFAA}')
    fa_addr(a)
    a.vmem(nb_fa_load(), 'fa')


def nb_fa_check(a):
    def chk(ok):
        a(f'v_cmp_ne_u32 vcc, 1, v{vFAD}')
        a(f's_cbranch_vccz {ok}')

    def ld():
        fa_addr(a)
        a(nb_fa_load())
    spin(a, 2, ld, chk)


def k1_new(a, g):
    import k1b
    k1b.OPT = OPT
    fas = OPT.get('fas', 12)
    k1b.HOOKS = {0: hook0, 6: nb_hook6}
    k1b.PREBAR = {fas: nb_prebar_st, 14: nb_prebar14}
    pre_n = OPT['kvpre']
    if not OPT.get('fast'):
        k1b.rot_setup(a)
    for d in k1b.dma_ops(a, 0, g):
        d()
    if OPT.get('fast'):
        srd_bases(a, ['ws', 'dbg', 'w1', 'w2', 'wo', 'b1', 'b2', 'out'])
        first_stamp(a)
        start_extra(a)
    i0 = OPT.get('i0n', 1)
    for n in range(1, i0):
        for d in k1b.dma_ops(a, n, g):
            d()
    st(a, 'iss0')
    k1b.setup2(a)
    st(a, 'su2')
    i1, dep, ramp = OPT.get('i1', 3), OPT.get('dep', 3), OPT.get('ramp', 1)
    for n in range(i0, i1):
        for d in k1b.dma_ops(a, n, g):
            d()
    nxt = i1
    for n in range(8):
        k1b.SCHED[n] = []
        while nxt <= n + dep and (len(k1b.SCHED[n]) < ramp or nxt <= n + 1):
            k1b.SCHED[n].append(nxt)
            nxt += 1
    late = list(range(nxt, 15))
    st(a, 'iss')
    pfpos = OPT.get('pfpos', 2)
    for n in range(8):
        k1b.p1_stage(a, n, g)
        if OPT.get('pf') and pfpos == n + 2:
            prefetch(a)
        st(a, f'p1_{n}')
    ne1 = OPT.get('ne1', 2)
    e1m = OPT.get('e1m', 0)
    d_e1 = [d for c in late[:ne1] for d in k1b.dma_ops(a, c, g)]
    if not e1m:
        k1b.e1a(a, g, d_e1, nb_ini_check)
        st(a, 'e1')
    late = late[ne1:]
    fill = {n: [[] for _ in range(8)] for n in range(8, 17)}
    e1b = k1b.e1b_ops(a, g)
    n8 = OPT.get('n8', 2)
    d13 = [d for c in late[:n8] for d in k1b.dma_ops(a, c, g)]
    late = late[n8:]
    w8 = OPT.get('w8', 2)
    slots = [(8, i) for i in range(4) for _ in range(w8)] + [(8, i) for i in range(4, 8)] + [(9, i) for i in range(8)]
    if e1m:
        slots = [(8, 0)] * OPT.get('wm', 3) + [(9, i) for i in range(8)] + [(10, i) for i in range(OPT.get('n10', 4))]
    if g == 1:
        slots = slots[:len(slots) - OPT.get('e1short', 4)]
    parts = k1b.split_even(e1b, len(slots))
    for i in range(len(d13)):
        fill[8][i].append(d13[i])
    for k, c in enumerate(late):
        dd = k1b.dma_ops(a, c, g)
        sk = 9 + k * OPT.get('lstep', 1) + OPT.get('l0', 0)
        if OPT.get('lmap'):
            sk = 9 + int(str(OPT['lmap'])[1 + k])
        assert sk <= c - 1
        fill[sk][OPT.get('lg0', 1)].insert(0, dd[0])
        fill[sk][OPT.get('lg1', 5)].insert(0, dd[1])
    for (n, i), p in zip(slots, parts):
        fill[n][i] += p
    d15 = k1b.dma_ops(a, 15, g)
    s15 = OPT.get('d15s', 10)
    fill[s15][OPT.get('dg0', 1)].append(d15[0])
    fill[s15][OPT.get('dg1', 5)].append(d15[1])
    if OPT.get('prs'):
        fill[OPT['prs']][OPT.get('prg', 7)].append(lambda: k1b.prep_issue(a))
    ids = record(a, lambda r: hook8(r, g, vPOI, 'poi'))
    for i, p in enumerate(k1b.split_even(ids, 8)):
        fill[10][i] += p
    addr, reads, stores = k1b.prep_finish_ops(a, 'pst')
    for i, p in enumerate(k1b.split_even(addr, 3)):
        fill[11][i] += p
    fill[11][3] += reads
    fill[11][6] += stores
    if g == 0:
        fill[fas][0] = fa_signal_ops() + fill[fas][0]
        fill[14][0] = fw_signal_ops() + fill[14][0]
    ekv = OPT.get('ekv', 0)
    nek = OPT.get('nek', 6) if ekv else 0
    if not ekv:
        fill[15][0] = record(a, lambda r: nb_hook15(r, g)) + fill[15][0]
    else:
        pg, cg = {1: (0, 8), 2: (4, 12), 3: (2, 10), 4: (0, 10), 5: (0, 12), 6: (4, 14), 7: (-4, 4), 8: (-2, 6),
                  9: (-6, 2)}[ekv]
        at = lambda x: fill[14 + x // 8][x % 8]
        ekv_poll = record(a, lambda r: nb_hook15(r, g))
        ekv_at = (pg, cg)
    fill[11][7] += k1b.cs_write_ops(a, [(k1.vCSA, (3 + 2 * g) * 512)])
    prep = k1b.gelu_prep(a, g, 0) + k1b.gelu_consts()
    first, per = k1b.gelu_tile_ops(a, k1.AC_A, 'ga')
    pp = k1b.split_even(prep + first, 4)
    for i in range(4):
        fill[12][i] += pp[i]
    gl = [o for q in per for o in q]
    gs = OPT.get('gstart', 5)
    slots = [(12, i) for i in range(gs, 8)] + [(n, i) for n in (13, 14, 15) for i in range(8)] + \
            [(16, i) for i in range(OPT.get('gend', 2))]
    for (n, i), p in zip(slots, k1b.split_even(gl, len(slots))):
        fill[n][i] += p
    if ekv:
        pg, cg = ekv_at
        at(pg)[:0] = ekv_poll
        at(cg)[:0] = [lambda: (a.wait_vm('fa'), nb_fa_check(a))]
        assert nek <= 6
        for i in range(nek):
            at(min(cg + 1 + i * OPT.get('eks', 1), 19)).append(kv_dma(a, i))
        if OPT.get('ekq'):
            fill[16][3].append(q_load(a))
    for n in range(8, 16):
        if n == 8 and e1m:
            assert not d13 and not any(fill[8][1:])
            k1b.e1m(a, g, d_e1, nb_ini_check, fill[8][0])
        else:
            k1b.p2_stage(a, n, g, fill[n])
        st(a, f'p2_{n}')
    k1b.p2_b_phase(a, 15, [[], [], [], []], fill[16][:4])
    k1.run_gaps(a, [k1b.cs_write_ops(a, [(k1.vCSB, (3 + 2 * g + 1) * 512)])])
    a.wait_lg()
    if not ekv:
        a.wait_vm('fa')
    if OPT.get('nob1'):
        assert ekv and OPT['nob1'] <= nek and OPT['b1'] == OPT['nob1']
        a.wait_vm([f'kv{i}' for i in range(OPT['nob1'])])
    a('s_barrier')
    if not ekv:
        nb_fa_check(a)
    st(a, 'tail')
    extras = ([] if (ekv and OPT.get('ekq')) else [q_load(a)]) + [kv_dma(a, i) for i in range(nek, pre_n)]
    def gelu_b(qs, halves):
        prep = k1b.gelu_prep(a, g, 1)
        first, per = k1b.gelu_tile_ops(a, k1.AC_B, 'gb', qs)
        ex = list(extras)
        pop = lambda: ex.pop(0) if ex else (lambda: None)
        k1.run_gaps(a, [prep[:4], pop(), prep[4:6], pop(), prep[6:], first, pop()])
        gl = [o for q in per for o in q]
        nx = len(ex)
        span = (len(gl) * OPT.get('xspan', 60 if len(qs) == 4 else OPT.get('xsph', 90))) // 100
        done = 0
        for i, op in enumerate(gl):
            while done < nx and done * span <= i * nx:
                ex[done]()
                done += 1
            emit(a, op)
        while done < nx:
            ex[done]()
            done += 1
        k1b.h_store(a, g, 0, 'ha')
        k1b.h_store(a, g, 1, 'hb', halves)

    if g == 1 and k1.EV:
        up, jn = a.newlabel('upb'), a.newlabel('joinb')
        a(f's_cmp_eq_u32 s{k1.sPB}, 0')
        a(f's_cbranch_scc1 {up}')
        snap = a.snapshot()
        gelu_b((0, 1), (1, 0))
        a(f's_branch {jn}')
        endsnap = a.snapshot()
        a.label(up)
        a.restore(snap)
        gelu_b((2, 3), (0, 1))
        assert a.snapshot()[0] == endsnap[0]
        a.label(jn)
        a.restore(endsnap)
    else:
        if g == 1:
            skip = a.newlabel('skipb')
            a(f's_cmp_eq_u32 s{k1.sPB}, 0')
            a(f's_cbranch_scc1 {skip}')
            snap = a.snapshot()
        gelu_b((0, 1, 2, 3), (1, 1))
    if g == 1 and not k1.EV:
        jn = a.newlabel('joinb')
        a(f's_branch {jn}')
        endsnap = a.snapshot()
        a.label(skip)
        a.restore(snap)
        for x in extras:
            x()
        k1b.h_store(a, g, 0, 'ha')
        a.vmem(f'buffer_load_dword v10, v{vL16}, {srd(S_WS)}, s{sSRC} offen', 'hb')
        a.vmem(f'buffer_load_dword v11, v{vL16}, {srd(S_WS)}, s{sSRC} offen', 'hb')
        assert a.snapshot()[0] == endsnap[0], (a.snapshot(), endsnap)
        a.label(jn)
        a.restore(endsnap)
    a.wait_lg()
    st(a, 'gelu')

STAMPS = {}


def st(a, name):
    if name in STAMPS:
        stamp(a, STAMPS[name])


def first_stamp(a):
    if not OPT.get('st0'):
        stamp(a, 0, 0)
    else:
        a('s_mov_b32 s68, s98')
        a('s_mov_b32 s69, s99')
        a('s_mov_b32 s88, s100')
        a('s_mov_b32 s89, s101')


def gen_km(label, force_fallback=False):
    k1.SC = ' sc1'
    k1.EV = bool(OPT.get('ev'))
    k1.RODD = OPT.get('rot', 0) >= 5
    k1.HOOKS = {0: hook0, 8: hook8, 9: hook9, 11: hook11, 14: hook14, 15: hook15}
    k1.PREBAR = {11: prebar11}
    a = Asm()
    end = label + '_end'
    att = label + '_att'
    if OPT.get('st0'):
        a('s_memrealtime s[98:99]')
        a('s_memtime s[100:101]')
    prologue(a, end, None)
    if OPT.get('fast'):
        import k1b
        k1b.OPT = OPT
        srd_consts(a, ['x', 'wq'])
        k1.setup(a)
        k1b.rot_setup(a)
        srd_consts(a, ['w1', 'ws', 'w2', 'wo', 'b1', 'b2', 'out', 'dbg'])
        a('s_waitcnt lgkmcnt(0)')
        srd_bases(a, ['x', 'wq'])
    else:
        build_srds(a, ['x', 'wq', 'w1', 'ws', 'w2', 'wo', 'b1', 'b2', 'out', 'dbg'])
        first_stamp(a)
        st(a, 'ka')
        start_extra(a)
        k1.setup(a)
        st(a, 'su1')
    g1 = label + '_g1'
    a(f's_cmp_eq_u32 s{sG}, 1')
    a(f's_cbranch_scc1 {g1}')
    snap0 = a.snapshot()
    joinsnap = None
    pre_n = OPT['kvpre']
    for g in (0, 1):
        if g == 1:
            a.label(g1)
            a.restore(snap0)
        if OPT.get('nb'):
            k1_new(a, g)
        else:
            i0, i1, pfpos = OPT.get('i0', 5), OPT.get('i1', 5), OPT.get('pfpos', 0)
            k1.INIT = i1
            for n in range(i0):
                for d in k1.dma_ops(a, n, g):
                    d()
            st(a, 'iss0')
            if OPT.get('pf') and pfpos == 0:
                prefetch(a)
            k1.setup2(a)
            st(a, 'su2')
            for n in range(i0, i1):
                for d in k1.dma_ops(a, n, g):
                    d()
            if OPT.get('pf') and pfpos == 1:
                prefetch(a)
            st(a, 'iss')
            for n in range(8):
                k1.p1_stage(a, n, g)
                if OPT.get('pf') and pfpos == n + 2:
                    prefetch(a)
                st(a, f'p1_{n}')
            k1.p1_epilogue(a, g)
            st(a, 'e1')
            if OPT.get('xdrain'):
                a('s_waitcnt vmcnt(0)')
                st(a, 'e1d')
            for n in range(8, 16):
                k1.p2_stage(a, n, g)
                st(a, f'p2_{n}')
            k1.p2_b_phase(a, 15, [[], [], [], []], [])
            k1.write_cs_partials(a, [(k1.vCSB, (3 + 2 * g + 1) * 512)])
            a.wait_all()
            a('s_barrier')
            fa_check(a)
            st(a, 'tail')
            k1.gelu_simple(a, g, 0, [q_load(a)] + [kv_dma(a, i) for i in range(pre_n)], 'ha')
            if g == 1:
                skip = a.newlabel('skipb')
                a(f's_cmp_eq_u32 s{k1.sPB}, 0')
                a(f's_cbranch_scc1 {skip}')
            k1.gelu_simple(a, g, 1, [], 'hb')
            if g == 1:
                jn = a.newlabel('joinb')
                a(f's_branch {jn}')
                a.label(skip)
                a(f'buffer_load_dword v10, v{vL16}, {srd(S_WS)}, s{sSRC} offen')
                a(f'buffer_load_dword v11, v{vL16}, {srd(S_WS)}, s{sSRC} offen')
                a.label(jn)
            a.wait_lg()
            st(a, 'gelu')
        if OPT.get('xdrain'):
            a('s_waitcnt vmcnt(0)')
            st(a, 'gelud')
        attention(a, g)
        if g == 0:
            a(f's_branch {att}')
            joinsnap = a.snapshot()
        else:
            assert a.snapshot() == joinsnap, (a.snapshot(), joinsnap)
    a.label(att)
    a.wait_lg()
    a(mfma32(RO, RV1, RP + 4, RO))
    fb = label + '_fb'
    fin = label + '_fin'
    a(f'v_mul_f32 v{vT}, 0, v{RO + 8}')
    for i in range(8):
        a(f'v_fma_f32 v{vT}, v{RO + i}, 0, v{vT}')
    a(f'v_cmp_u_f32 vcc, v{vT}, v{vT}')
    if force_fallback:
        a(f's_branch {fb}')
    else:
        a(f's_cbranch_vccnz {fb}')
    a.label(fin)
    a(f'v_rcp_f32 v{vT}, v{RO + 8}')
    for i in range(8):
        a(f'v_mul_f32 v{RO + i}, v{vT}, v{RO + i}')
    for i in range(4):
        a(f'v_cvt_pk_bf16_f32 v{RO + i}, v{RO + 2 * i}, v{RO + 2 * i + 1}')
    for i in range(4):
        a(f'v_min_u32 v{RO + i}, -2, v{RO + i}')
    a.vmem(f'buffer_store_dwordx4 v[{RO}:{RO + 3}], v{vL16}, {srd(S_WS)}, s{sOF} offen sc1', 'ost')
    st(a, 'oend')
    if OPT.get('xdrain'):
        a('s_waitcnt vmcnt(0)')
        st(a, 'oendd')
    if OPT.get('fs'):
        assert OPT['b2'] >= 18
        reduce_write4(a)
        st(a, 'ba')
    elif OPT.get('erw') == 2:
        assert OPT['b2'] >= 18
        g1l, jl = a.newlabel('rw_g1'), a.newlabel('rw_j')
        a(f's_cmp_eq_u32 s{sG}, 1')
        a(f's_cbranch_scc1 {g1l}')
        snap = a.snapshot()
        reduce_write2(a, 0)
        a('s_barrier')
        a(f's_branch {jl}')
        end0 = a.snapshot()
        a.label(g1l)
        a.restore(snap)
        a('s_barrier')
        reduce_write2(a, 1)
        assert a.snapshot() == end0
        a.label(jl)
        st(a, 'ba')
    else:
        a('s_barrier')
        st(a, 'ba')
        reduce_write(a)
    opos = OPT.get('opos', 0)
    if opos == 0:
        o_loads(a, True)
    a.wait_lg()
    a('s_barrier')
    st(a, 'bb')
    if opos == 1:
        o_loads(a, True)
    reduce_read_gate(a)
    st(a, 'gate')
    o_check(a)
    st(a, 'opoll')
    ob_write(a)
    if OPT.get('own'):
        bb_ = wo_rest(a)
        wo_own(a)
        a.wait_lg()
        a('s_barrier')
        st(a, 'bc')
        wo_rest2(a, bb_)
    else:
        a.wait_lg()
        a('s_barrier')
        st(a, 'bc')
        wo_gemm(a)
    st(a, 'wog')
    a.wait_lg()
    t = exchange(a, label)
    final(a, t)
    st(a, 'fin')
    a('s_waitcnt vmcnt(0)')
    stamp(a, 9, 1)
    if OPT.get('dbgst'):
        lbl = a.newlabel('nodbg')
        a(f's_cmp_lg_u32 s{sW}, {OPT["dbgst"] - 1}')
        a(f's_cbranch_scc1 {lbl}')
        a('s_mov_b64 exec, 1')
        a('v_not_b32 v2, s68')
        a(f'buffer_atomic_umax v2, off, {srd(S_DBG)}, 0 offset:20 sc1')
        if 'dbghp' in OPT:
            a(f's_cmp_lg_u32 s{k1.sHP}, {OPT["dbghp"]}')
            a(f's_cbranch_scc1 {lbl}')
        for k in range(1, 10):
            a(f'v_mov_b32 v{2 + k}, s{68 + 2 * k}')
            a(f'buffer_atomic_umax v{2 + k}, off, {srd(S_DBG)}, 0 offset:{20 + 4 * k} sc1')
        a('s_waitcnt vmcnt(0)')
        a.label(lbl)
    else:
        stamp_flush(a, 0)
    a('s_endpgm')
    a.label(fb)
    fallback(a, fin)
    a.label(end)
    a('s_endpgm')
    return a
```

```python
from common import *

XR = 0
WR = 81920
ST = 143360
CSP = ST + 4096
SCR = CSP + 3584
K1_LDS = SCR + 2048

sTB, sHP, sF0 = 49, 50, 51
sT0, sT1, sT2, sT3 = 52, 53, 54, 55
sMASK = 60
sMX, sMW, sM2 = 61, 62, 63
sPA = 98
sPB = 64
sT = 65
sQO, sKO, sHO = 66, 67, 56
sPF, sPS = 57, 58

vXD = 4
vWD, vW1D = 6, 7
aX = 8
aW = 12
vSX0, vSQ0, vSX1, vSQ1 = 16, 17, 18, 19
vU = 20
vCS0, vCS1 = 24, 28
vCSA, vCSB = 32, 36
vSEL = 40
vTMP = 44
AC_A = 48
AC_Q, AC_K = 64, 80
AC_B = 64
BUFA, BUFB = 96, 112
XF = 128
vL16 = 1
vM, vR = 2, 3
vRR, vMRR = 4, 5
vB1A, vB1B = 16, 17

C_Q = 0.25 * 1.4426950408889634
C1 = -2.302208198144325
C2 = C1 * 0.044715


EXP = set()
HPX = 0
SC = ''
HOOKS = {}
PREBAR = {}


def X(c, j):
    return XF + 16 * c + 4 * j


def fl(x):
    import struct
    return hex(struct.unpack('<I', struct.pack('<f', x))[0])


EV = False


def F0_IDS():
    if EV:
        return f'''s_mul_i32 s{sF0}, s{sHP}, 7
s_and_b32 s{sT1}, s{sHP}, 1
s_add_u32 s{sF0}, s{sF0}, s{sT1}
s_and_b32 s{sT1}, s{sT1}, s{sG}
s_mul_i32 s{sT0}, s{sT1}, 6
s_sub_u32 s{sF0}, s{sF0}, s{sT0}
s_mul_i32 s{sPA}, s{sT1}, 192
s_lshl_b32 s{sT1}, s{sT1}, 6
s_sub_u32 s{sPB}, 64, s{sT1}'''
    return f'''s_mul_i32 s{sT0}, s{sHP}, 7
s_and_b32 s{sT1}, s{sHP}, 1
s_add_u32 s{sT0}, s{sT0}, s{sT1}
s_lshr_b32 s{sF0}, s{sT0}, 1
s_and_b32 s{sT1}, s{sT1}, s{sG}
s_lshl_b32 s{sT1}, s{sT1}, 6
s_sub_u32 s{sPB}, 64, s{sT1}'''


RODD = False


def W1ROW():
    if RODD:
        return f's_and_b32 s{sT0}, s{sTT}, 1\ns_lshl_b32 s{sT0}, s{sT0}, 5'
    return f's_lshl_b32 s{sT0}, s{sTT}, 5'


def col_bytes():
    return f'''s_lshl_b32 s{sT0}, s{sG}, {2 if EV else 1}
s_add_u32 s{sT0}, s{sT0}, s{sF0}
s_lshl_b32 s{sT0}, s{sT0}, {5 if EV else 6}'''


def setup(a):
    a.comment('--- K1 ids and lane constants')
    a(f'''
s_and_b32 s{sT0}, s{sXCD}, 1
s_lshl_b32 s{sT0}, s{sT0}, 3
s_and_b32 s{sT1}, s{sSLOT}, 7
s_add_u32 s{sTB}, s{sT0}, s{sT1}
s_lshr_b32 s{sT0}, s{sXCD}, 1
s_lshl_b32 s{sT0}, s{sT0}, 2
s_lshr_b32 s{sT1}, s{sSLOT}, 3
s_add_u32 s{sHP}, s{sT0}, s{sT1}
s_xor_b32 s{sHP}, s{sHP}, {HPX}
{F0_IDS()}
s_lshl_b32 s{sT}, s{sTB}, 2
s_add_u32 s{sT}, s{sT}, s{sTT}
s_mov_b32 s{sMASK}, 0xffff0000
s_lshl_b32 s{sMX}, s{sW}, 11
s_lshl_b32 s{sMW}, s{sTT}, 10
s_add_u32 s{sMW}, s{sMW}, {WR}
s_lshl_b32 s{sM2}, s{sG}, 13
s_lshl_b32 s{sT0}, s{sTT}, 11
s_add_u32 s{sM2}, s{sM2}, s{sT0}
''')
    a(f'''
v_lshrrev_b32 v1, 3, v0
v_lshrrev_b32 v2, 4, v0
v_and_b32 v3, 7, v0
v_xor_b32 v2, v2, v3
s_lshl_b32 s{sT0}, s{sTB}, 7
s_lshl_b32 s{sT1}, s{sW}, 4
s_add_u32 s{sT0}, s{sT0}, s{sT1}
v_add_u32 v1, s{sT0}, v1
v_lshlrev_b32 v1, 10, v1
v_lshlrev_b32 v2, 4, v2
v_add_u32 v{vXD}, v1, v2
v_xor_b32 v2, 64, v2
v_add_u32 v1, 0x2000, v1
v_add_u32 v{vXD + 1}, v1, v2
''')
    a(f'''
v_lshrrev_b32 v1, 2, v0
v_and_b32 v2, 3, v0
v_lshlrev_b32 v2, 4, v2
s_lshl_b32 s{sT0}, s{sTT}, 4
v_add_u32 v3, s{sT0}, v1
v_mul_u32_u24 v3, 0xc00, v3
s_lshl_b32 s{sT0}, s{sHP}, 6
s_sub_u32 s{sT1}, 1, s{sG}
s_lshl_b32 s{sT1}, s{sT1}, 11
s_add_u32 s{sT0}, s{sT0}, s{sT1}
v_add3_u32 v{vWD}, v3, v2, s{sT0}
{W1ROW()}
v_add_u32 v3, s{sT0}, v1
v_mul_u32_u24 v3, 0xe00, v3
{col_bytes()}
v_add3_u32 v{vW1D}, v3, v2, s{sT0}
''')


def setup2(a):
    a.comment('--- LDS read addresses')
    a(f'''
v_and_b32 v1, 31, v0
v_lshrrev_b32 v2, 5, v0
v_bfe_u32 v3, v0, 1, 3
v_xor_b32 v2, v2, v3
v_lshlrev_b32 v2, 4, v2
s_lshl_b32 s{sT0}, s{sTT}, 5
v_add_u32 v1, s{sT0}, v1
v_lshlrev_b32 v1, 7, v1
''')
    for j in range(4):
        a(f's_xor_b32 s{sT0}, s{sTT}, {j}')
        a(f's_lshl_b32 s{sT0}, s{sT0}, 5')
        a(f'v_xor_b32 v3, s{sT0}, v2')
        a(f'v_add_u32 v{aX + j}, v1, v3')
    a(f'''
v_lshrrev_b32 v1, 5, v0
v_lshlrev_b32 v1, 9, v1
v_bfe_u32 v2, v0, 2, 2
v_lshlrev_b32 v2, 6, v2
v_add_u32 v1, v1, v2
v_bfe_u32 v2, v0, 4, 1
v_lshlrev_b32 v2, 5, v2
v_add_u32 v1, v1, v2
v_and_b32 v2, 1, v0
v_lshlrev_b32 v2, 4, v2
v_add_u32 v1, v1, v2
v_and_b32 v2, 2, v0
v_lshlrev_b32 v2, 2, v2
v_add_u32 v1, v1, v2
''')
    for j in range(4):
        a(f's_xor_b32 s{sT0}, s{sTT}, {j}')
        a(f's_lshl_b32 s{sT0}, s{sT0}, 10')
        a(f's_add_u32 s{sT0}, s{sT0}, {WR}')
        a(f'v_add_u32 v{aW + j}, s{sT0}, v1')
    a(f'''
v_and_b32 v1, 15, v0
v_bfe_u32 v2, v0, 4, 1
v_cmp_eq_u32 vcc, v1, v2
v_mov_b32 v1, 0x3f803f80
v_cndmask_b32 v{vSEL}, 0, v1, vcc
v_cndmask_b32 v{vSEL + 1}, 0, v1, vcc
v_cndmask_b32 v{vSEL + 2}, 0, v1, vcc
v_cndmask_b32 v{vSEL + 3}, 0, v1, vcc
v_mov_b32 v{vSX0}, 0
v_mov_b32 v{vSQ0}, 0
v_mov_b32 v{vSX1}, 0
v_mov_b32 v{vSQ1}, 0
v_lshlrev_b32 v{vL16}, 4, v0
''')


def xslot(n):
    return (n % 5) * 16384


def dma_ops(a, n, g):
    ops = []
    tag = f'c{n}'
    if 'nodma' in EXP and n >= 5:
        return ops

    def one(srdn, voff, m0_s, m0_imm, soff_fn):
        def f():
            a(f's_add_u32 m0, s{m0_s}, {m0_imm}')
            so = soff_fn()
            a.vmem(f'buffer_load_dwordx4 v{voff}, {srd(srdn)}, {so} offen lds', tag)
        return f

    def const_soff(val):
        def f():
            a(f's_mov_b32 s{sT2}, {val}')
            return f's{sT2}'
        return f

    if n < 8:
        nx = 0 if 'samex' in EXP else n
        nw = 0 if 'samew' in EXP else n
        for q in range(2):
            ops.append(one(S_X, vXD + q, sMX, xslot(n) + q * 1024, const_soff(nx * 128)))
        wb = (n % 5) * 12288
        if g == 0:
            ops.append(one(S_WQ, vWD, sMW, wb + 2 * 4096, const_soff(nw * 196608)))
        else:
            ops.append(one(S_WQ, vWD, sMW, wb, const_soff(nw * 196608)))
            ops.append(one(S_WQ, vWD, sMW, wb + 4096, const_soff(nw * 196608 + 1024)))
    elif n < 16:
        ps, C = (n - 8) // 4, (n - 8) % 4
        for q in range(2):
            val = C * 458752 + q * 57344
            if ps == 0:
                sf = const_soff(val)
            else:
                def sf(val=val):
                    a(f's_add_u32 s{sT2}, s{sPB}, {val}')
                    return f's{sT2}'
            ops.append(one(S_W1, vW1D, sM2, xslot(n) + q * 1024, sf))
    return ops


def tr_pair(a, d, areg, off, tag):
    if 'notr' in EXP:
        return
    a.ds(f'ds_read_b64_tr_b16 v[{d}:{d + 1}], v{areg} offset:{off}', tag)
    a.ds(f'ds_read_b64_tr_b16 v[{d + 2}:{d + 3}], v{areg} offset:{off + 256}', tag)


def stat_ops(xreg, k):
    t = vU + 2 * (k % 2)
    return [f'v_and_b32 v{t}, s{sMASK}, v{xreg}',
            f'v_lshlrev_b32 v{t + 1}, 16, v{xreg}',
            f'v_fmac_f32 v{vSQ0}, v{t}, v{t}',
            f'v_fmac_f32 v{vSQ1}, v{t + 1}, v{t + 1}',
            f'v_add_f32 v{vSX0}, v{t}, v{vSX0}',
            f'v_add_f32 v{vSX1}, v{t + 1}, v{vSX1}']


def p1_frag(g, j, p):
    base = BUFA if j < 2 else BUFB
    return base + 8 * (j % 2) + 4 * p


def p1_reads(a, n, g, js, tag):
    xo = xslot(n) if n % 5 < 4 else 0
    for j in js:
        a.ds(f'ds_read_b128 v[{X(n, j)}:{X(n, j) + 3}], v{aX + j} offset:{xo}', tag)
        wb = (n % 5) * 12288
        panels = (0, 1) if g == 0 else (2,)
        for pi, p in enumerate(panels):
            tr_pair(a, p1_frag(g, j, pi), aW + j, wb + p * 4096, tag)


def p1_mfmas(n, g, js):
    out = []
    for j in js:
        first = (n == 0 and j == 0)
        if g == 0:
            out.append(mfma32(AC_Q, p1_frag(0, j, 0), X(n, j), '0' if first else None))
            out.append(mfma32(AC_K, p1_frag(0, j, 1), X(n, j), '0' if first else None))
            if j == 0 and 'nom16' not in EXP:
                out.append(mfma16(vCS0, p1_frag(0, 0, 0), vSEL, '0' if n == 0 else None))
                out.append(mfma16(vCS1, p1_frag(0, 0, 1), vSEL, '0' if n == 0 else None))
        else:
            out.append(mfma32(AC_Q, X(n, j), p1_frag(1, j, 0), '0' if first else None))
            if j == 0 and 'nom16' not in EXP:
                out.append(mfma16(vCS0, p1_frag(1, 0, 0), vSEL, '0' if n == 0 else None))
    return out


def p1_stats(n, g, js):
    ops = []
    k = 0
    if 'nostat' in EXP:
        return ops
    for j in js:
        for r in ((0, 1) if g == 0 else (2, 3)):
            ops += stat_ops(X(n, j) + r, k)
            k += 1
    return ops


def rebase(a, regs, n, delta=65536):
    if n % 5 == 4:
        for r in regs:
            a(f'v_add_u32 v{r}, {hex(delta)}, v{r}')
    if n % 5 == 0 and n > 0:
        for r in regs:
            a(f'v_subrev_u32 v{r}, {hex(delta)}, v{r}')


def p1_read_ops(a, n, g, j):
    xo = xslot(n) if n % 5 < 4 else 0
    tag = f'P{n}_{j}'
    ops = [lambda: a.ds(f'ds_read_b128 v[{X(n, j)}:{X(n, j) + 3}], v{aX + j} offset:{xo}', tag)]
    wb = (n % 5) * 12288
    panels = (0, 1) if g == 0 else (2,)
    for pi, p in enumerate(panels):
        d = p1_frag(g, j, pi)
        off = wb + p * 4096
        if 'notr' in EXP:
            continue
        ops.append(lambda d=d, off=off: a.ds(f'ds_read_b64_tr_b16 v[{d}:{d + 1}], v{aW + j} offset:{off}', tag))
        ops.append(lambda d=d, off=off: a.ds(f'ds_read_b64_tr_b16 v[{d + 2}:{d + 3}], v{aW + j} offset:{off + 256}', tag))
    return ops


def p1_stat_reg(n, g, j, k):
    if 'nostat' in EXP:
        return []
    r = (0, 1)[k] if g == 0 else (2, 3)[k]
    return stat_ops(X(n, j) + r, k)


def run_gaps(a, items):
    for it in items:
        if isinstance(it, (list, tuple)):
            for x in it:
                emit(a, x)
        else:
            emit(a, it)


def p1_b_phase(a, n, g, ra, dm):
    w = lambda j: (lambda: a.wait_lg(f'P{n}_{j}'))
    S = lambda j, k: p1_stat_reg(n, g, j, k)
    d = list(dm) + [[]] * 4
    if g == 0:
        q = lambda j: mfma32(AC_Q, p1_frag(0, j, 0), X(n, j))
        k_ = lambda j: mfma32(AC_K, p1_frag(0, j, 1), X(n, j))
        run_gaps(a, [w(2), q(2), ra[0][:3], S(2, 0),
                     k_(2), ra[0][3:], d[0], S(2, 1),
                     w(3), q(3), ra[1][:3], S(3, 0),
                     k_(3), ra[1][3:], S(3, 1)])
    else:
        v_ = lambda j: mfma32(AC_Q, X(n, j), p1_frag(1, j, 0))
        run_gaps(a, [w(2), v_(2), ra[0], S(2, 0), d[0], S(2, 1),
                     w(3), v_(3), ra[1], S(3, 0), d[1], S(3, 1)])


def p1_a_phase(a, n, g, rb, dm):
    w = lambda j: (lambda: a.wait_lg(f'P{n}_{j}'))
    S = lambda j, k: p1_stat_reg(n, g, j, k)
    d = list(dm) + [[]] * 4
    z = lambda first: '0' if first else None
    m16 = 'nom16' not in EXP
    if g == 0:
        q = lambda j: mfma32(AC_Q, p1_frag(0, j, 0), X(n, j), z(n == 0 and j == 0))
        k_ = lambda j: mfma32(AC_K, p1_frag(0, j, 1), X(n, j), z(n == 0 and j == 0))
        run_gaps(a, [w(0), q(0), rb[0][:3], S(0, 0),
                     k_(0), rb[0][3:], S(0, 1),
                     [mfma16(vCS0, p1_frag(0, 0, 0), vSEL, z(n == 0))] if m16 else [], d[0],
                     [mfma16(vCS1, p1_frag(0, 0, 1), vSEL, z(n == 0))] if m16 else [], rb[1][:3],
                     w(1), q(1), rb[1][3:], S(1, 0),
                     k_(1), d[1], S(1, 1)])
    else:
        v_ = lambda j: mfma32(AC_Q, X(n, j), p1_frag(1, j, 0), z(n == 0 and j == 0))
        run_gaps(a, [w(0), v_(0), rb[0], S(0, 0),
                     [mfma16(vCS0, p1_frag(1, 0, 0), vSEL, z(n == 0))] if m16 else [], d[0], S(0, 1),
                     w(1), v_(1), rb[1], S(1, 0), d[1], S(1, 1)])


def split_dma(dm, g, p1type):
    h = len(dm) // 2 if not (g == 0 and len(dm) == 3) else 1
    return dm[:h], dm[h:]


INIT = 5


def chunk_for_stage(n):
    return n + 3 if n + 3 >= INIT else None


def p1_stage(a, n, g):
    a.comment(f'--- P1 stage {n} g={g}')
    a.wait_vm(f'c{n}')
    if n in PREBAR:
        PREBAR[n](a, g)
    if 'nobar' not in EXP:
        a('s_barrier')
    if n in HOOKS:
        HOOKS[n](a, g)
    rebase(a, [aX + j for j in range(4)], n)
    c = chunk_for_stage(n)
    dm = dma_ops(a, c, g) if c is not None else []
    db, da = split_dma(dm, g, True)
    ra = [p1_read_ops(a, n, g, 0), p1_read_ops(a, n, g, 1)]
    if n > 0:
        p1_b_phase(a, n - 1, g, ra, db)
    else:
        run_gaps(a, ra)
        da = db + da
        da = [da[0], da[1:]] if len(da) > 2 else da
    rb = [p1_read_ops(a, n, g, 2), p1_read_ops(a, n, g, 3)]
    p1_a_phase(a, n, g, rb, da)


def write_cs_partials(a, accs_panels):
    a(f'''
v_and_b32 v{vTMP}, 15, v0
v_lshlrev_b32 v{vTMP}, 8, v{vTMP}
v_lshrrev_b32 v{vTMP + 1}, 4, v0
v_lshlrev_b32 v{vTMP + 1}, 6, v{vTMP + 1}
s_lshl_b32 s{sT0}, s{sTT}, 2
s_add_u32 s{sT0}, s{sT0}, {CSP}
v_add3_u32 v{vTMP}, v{vTMP}, v{vTMP + 1}, s{sT0}
s_mov_b32 s{sT0}, 0x00030003
s_mov_b32 s{sT1}, 0x00030003
s_mov_b64 exec, s[{sT0}:{sT1}]
''')
    for acc, off in accs_panels:
        for r in range(4):
            a.ds(f'ds_write_b32 v{vTMP}, v{acc + r} offset:{off + r * 16}', 'w')
    a('s_mov_b64 exec, -1')


def p1_epilogue(a, g):
    a.comment(f'--- P1 epilogue g={g}')
    p1_b_phase(a, 7, g, [[], []], [])
    a(f'''
v_add_f32 v{vSX0}, v{vSX0}, v{vSX1}
v_add_f32 v{vSQ0}, v{vSQ0}, v{vSQ1}
v_and_b32 v{vU}, 31, v0
v_lshlrev_b32 v{vU}, 5, v{vU}
s_lshl_b32 s{sT0}, s{sTT}, 10
s_add_u32 s{sT0}, s{sT0}, {ST}
v_add_u32 v{vU}, s{sT0}, v{vU}
v_lshrrev_b32 v{vU + 1}, 5, v0
v_lshlrev_b32 v{vU + 1}, 3, v{vU + 1}
v_add3_u32 v{vU + 1}, v{vU + 1}, v{vU}, {16 * g}
''')
    a.ds(f'ds_write_b64 v{vU + 1}, v[{vSX0}:{vSQ0}]', 'w')
    write_cs_partials(a, [(vCS0, 0), (vCS1, 512)] if g == 0 else [(vCS0, 1024)])
    a.wait_lg()
    a('s_barrier')
    prep_issue(a)
    a(f'''
v_and_b32 v{vTMP + 2}, 31, v0
v_and_b32 v{vTMP + 3}, 19, v{vTMP + 2}
v_bfe_u32 v{vCS0}, v0, 2, 1
v_lshlrev_b32 v{vCS0}, 3, v{vCS0}
v_bfe_u32 v{vCS0 + 1}, v0, 3, 1
v_lshlrev_b32 v{vCS0 + 1}, 2, v{vCS0 + 1}
v_add3_u32 v{vTMP + 3}, v{vTMP + 3}, v{vCS0}, v{vCS0 + 1}
v_lshlrev_b32 v{vTMP + 3}, 1, v{vTMP + 3}
s_lshl_b32 s{sT0}, s{sG}, 1
s_add_u32 s{sT0}, s{sT0}, s{sF0}
s_lshl_b32 s{sT0}, s{sT0}, 6
s_add_u32 s{sT1}, s{sT0}, s{sPB}
''')
    a.vmem(f'buffer_load_ushort v{vB1A}, v{vTMP + 3}, {srd(S_B1)}, s{sT0} offen', 'b1')
    a.vmem(f'buffer_load_ushort v{vB1B}, v{vTMP + 3}, {srd(S_B1)}, s{sT1} offen', 'b1')
    t = BUFA
    a.ds(f'ds_read_b128 v[{t}:{t + 3}], v{vU}', 's')
    a.ds(f'ds_read_b128 v[{t + 4}:{t + 7}], v{vU} offset:16', 's')
    a(f'''
v_and_b32 v{vU + 2}, 31, v0
v_lshlrev_b32 v{vU + 2}, 4, v{vU + 2}
''')
    if g == 0:
        a(f'''
v_lshrrev_b32 v{vU + 3}, 5, v0
v_lshlrev_b32 v{vU + 3}, 9, v{vU + 3}
v_add_u32 v{vU + 2}, v{vU + 2}, v{vU + 3}
v_add_u32 v{vU + 2}, {CSP}, v{vU + 2}
''')
        a.ds(f'ds_read_b128 v[{t + 8}:{t + 11}], v{vU + 2}', 'c')
    else:
        a(f'v_add_u32 v{vU + 2}, {CSP}, v{vU + 2}')
        a.ds(f'ds_read_b128 v[{t + 8}:{t + 11}], v{vU + 2} offset:1024', 'c')
    a.wait_lg('s')
    a(f'''
v_add_f32 v{t}, v{t}, v{t + 2}
v_add_f32 v{t + 1}, v{t + 1}, v{t + 3}
v_add_f32 v{t + 4}, v{t + 4}, v{t + 6}
v_add_f32 v{t + 5}, v{t + 5}, v{t + 7}
v_add_f32 v{t}, v{t}, v{t + 4}
v_add_f32 v{t + 1}, v{t + 1}, v{t + 5}
v_mul_f32 v{vM}, {fl(1 / 512)}, v{t}
v_mul_f32 v{t + 1}, {fl(1 / 512)}, v{t + 1}
v_fma_f32 v{t + 1}, -v{vM}, v{vM}, v{t + 1}
v_max_f32 v{t + 1}, 0, v{t + 1}
v_add_f32 v{t + 2}, {fl(1e-5)}, v{t + 1}
v_rsq_f32 v{vR}, v{t + 2}
''')
    a.wait_lg('c')
    a(f'''
v_add_f32 v{t + 8}, v{t + 8}, v{t + 9}
v_add_f32 v{t + 10}, v{t + 10}, v{t + 11}
v_mul_f32 v{t + 2}, v{vR}, v{vR}
v_mul_f32 v{t + 2}, v{t + 2}, v{t + 1}
v_add_f32 v{t + 2}, {fl(1e-5)}, v{t + 2}
v_rsq_f32 v{t + 2}, v{t + 2}
v_add_f32 v{t + 8}, v{t + 8}, v{t + 10}
v_mul_f32 v{vRR}, v{vR}, v{t + 2}
v_mul_f32 v{vMRR}, v{vM}, v{vRR}
''')
    a(f'''
s_lshl_b32 s{sT0}, s{sW}, 8
s_add_u32 s{sT0}, s{sT0}, {SCR}
v_lshlrev_b32 v{vU}, 2, v0
v_add_u32 v{vU}, s{sT0}, v{vU}
v_lshrrev_b32 v{vU + 1}, 5, v0
v_lshlrev_b32 v{vU + 1}, 4, v{vU + 1}
v_add_u32 v{vU + 1}, s{sT0}, v{vU + 1}
''')
    a(f'''
s_lshl_b32 s{sT0}, s{sHP}, 17
s_lshl_b32 s{sT1}, s{sT}, 10
s_add_u32 s{sQO}, s{sT0}, s{sT1}
s_lshl_b32 s{sT0}, s{sHP}, 18
s_lshl_b32 s{sT1}, s{sT}, 11
s_add_u32 s{sKO}, s{sT0}, s{sT1}
s_add_u32 s{sKO}, s{sKO}, {KV}
''')
    if g == 0:
        a.ds(f'ds_write_b32 v{vU}, v{t + 8}', 'w')
        for p in range(2):
            for qd in range(4):
                d = BUFA + 16 * p + 4 * qd
                a.ds(f'ds_read_b128 v[{d}:{d + 3}], v{vU + 1} offset:{p * 128 + qd * 32}', f'q{p}')
        a(f'v_mul_f32 v{vU + 2}, {fl(C_Q)}, v{vR}')
        for p, acc in ((0, AC_Q), (1, AC_K)):
            a.wait_lg(f'q{p}')
            sc = vU + 2 if p == 0 else vR
            for r in range(16):
                a(f'v_fma_f32 v{acc + r}, -v{vM}, v{BUFA + 16 * p + r}, v{acc + r}')
            for r in range(16):
                a(f'v_mul_f32 v{acc + r}, v{sc}, v{acc + r}')
            for r in range(8):
                a(f'v_cvt_pk_bf16_f32 v{acc + r}, v{acc + 2 * r}, v{acc + 2 * r + 1}')
            if p == 0:
                a.vmem(f'buffer_store_dwordx4 v[{acc}:{acc + 3}], v{vL16}, {srd(S_WS)}, s{sQO} offen{SC}', 'st')
                a(f's_add_u32 s{sT0}, s{sQO}, 65536')
                a.vmem(f'buffer_store_dwordx4 v[{acc + 4}:{acc + 7}], v{vL16}, {srd(S_WS)}, s{sT0} offen{SC}', 'st')
            else:
                a.vmem(f'buffer_store_dwordx4 v[{acc}:{acc + 3}], v{vL16}, {srd(S_WS)}, s{sKO} offen{SC}', 'st')
                a(f's_add_u32 s{sT0}, s{sKO}, 131072')
                a.vmem(f'buffer_store_dwordx4 v[{acc + 4}:{acc + 7}], v{vL16}, {srd(S_WS)}, s{sT0} offen{SC}', 'st')
    else:
        a(f'''
v_mul_f32 v{t + 9}, v{vM}, v{vR}
v_cmp_gt_u32 vcc, 32, v0
v_cndmask_b32 v{t + 9}, v{t + 9}, v{vR}, vcc
''')
        a.ds(f'ds_write_b32 v{vU}, v{t + 9}', 'w')
        a(f'v_mov_b32 v{vU + 2}, v{t + 8}')
        for qd in range(4):
            d = BUFA + 4 * qd
            a.ds(f'ds_read_b128 v[{d}:{d + 3}], v{vU + 1} offset:{qd * 32}', 'q0')
        for qd in range(4):
            d = BUFB + 4 * qd
            a.ds(f'ds_read_b128 v[{d}:{d + 3}], v{vU + 1} offset:{128 + qd * 32}', 'q0')
        a(f'''
v_bfe_u32 v{vU}, v0, 4, 1
v_lshlrev_b32 v{vU}, 17, v{vU}
v_and_b32 v{vU + 3}, 15, v0
v_lshlrev_b32 v{vU + 3}, 4, v{vU + 3}
v_add_u32 v{vU}, v{vU}, v{vU + 3}
v_lshrrev_b32 v{vU + 3}, 5, v0
v_lshlrev_b32 v{vU + 3}, 8, v{vU + 3}
v_add_u32 v{vU}, v{vU}, v{vU + 3}
''')
        a.wait_lg('q0')
        acc = AC_Q
        for r in range(16):
            a(f'v_mul_f32 v{BUFB + r}, v{vU + 2}, v{BUFB + r}')
        for r in range(16):
            a(f'v_fma_f32 v{acc + r}, v{acc + r}, v{BUFA + r}, -v{BUFB + r}')
        for r in range(8):
            a(f'v_cvt_pk_bf16_f32 v{acc + r}, v{acc + 2 * r}, v{acc + 2 * r + 1}')
        a.vmem(f'buffer_store_dwordx4 v[{acc}:{acc + 3}], v{vU}, {srd(S_WS)}, s{sKO} offen offset:1024{SC}', 'st')
        a.vmem(f'buffer_store_dwordx4 v[{acc + 4}:{acc + 7}], v{vU}, {srd(S_WS)}, s{sKO} offen offset:1536{SC}', 'st')
    a(f's_lshl_b32 s{sT0}, s{sG}, 13')
    a(f's_sub_u32 s{sT0}, s{sT0}, {WR}')
    for j in range(4):
        a(f'v_add_u32 v{aW + j}, s{sT0}, v{aW + j}')


def prep_issue(a):
    a.comment('prep DMA')
    lbl = a.newlabel('prep_wo')
    lbl2 = a.newlabel('prep_j')
    lbl3 = a.newlabel('prep_n2')
    a(f'''
v_lshrrev_b32 v{vTMP}, 2, v0
v_lshlrev_b32 v{vTMP}, 10, v{vTMP}
v_and_b32 v{vTMP + 1}, 3, v0
v_lshlrev_b32 v{vTMP + 1}, 4, v{vTMP + 1}
s_and_b32 s{sT0}, s2, 1
s_lshl_b32 s{sT0}, s{sT0}, 3
s_add_u32 s{sT0}, s{sT0}, s{sW}
s_lshl_b32 s{sT0}, s{sT0}, 6
v_add3_u32 v{vTMP}, v{vTMP}, v{vTMP + 1}, s{sT0}
s_lshr_b32 s{sPS}, s2, 1
s_lshl_b32 s{sT1}, s{sW}, 10
s_add_u32 m0, s{sT1}, {WR}
s_lshl_b32 s{sT2}, s{sPS}, 14
s_cmp_ge_u32 s2, 224
s_cbranch_scc1 {lbl}
''')
    snap = a.snapshot()
    a.vmem(f'buffer_load_dwordx4 v{vTMP}, {srd(S_W2)}, s{sT2} offen lds', 'prep')
    a(f's_branch {lbl2}')
    a.label(lbl)
    a(f's_sub_u32 s{sT2}, s{sT2}, {112 * 16384}')
    a(f'buffer_load_dwordx4 v{vTMP}, {srd(S_WO)}, s{sT2} offen lds')
    a.label(lbl2)
    a(f'''
s_cmp_ge_u32 s2, 32
s_cbranch_scc1 {lbl3}
s_add_u32 m0, s{sT1}, {WR + 8192}
s_add_u32 s{sT2}, s{sT2}, {16 * 16384}
''')
    a(f'buffer_load_dwordx4 v{vTMP}, {srd(S_WO)}, s{sT2} offen lds')
    a.label(lbl3)


def prep_finish(a, tag='st'):
    a.comment('prep: transpose + store')
    lbl3 = a.newlabel('prep_f2')
    t = 80
    a(f'''
v_lshrrev_b32 v{t}, 5, v0
v_lshlrev_b32 v{t}, 9, v{t}
v_bfe_u32 v{t + 1}, v0, 2, 2
v_lshlrev_b32 v{t + 1}, 6, v{t + 1}
v_add_u32 v{t}, v{t}, v{t + 1}
v_bfe_u32 v{t + 1}, v0, 4, 1
v_lshlrev_b32 v{t + 1}, 5, v{t + 1}
v_add_u32 v{t}, v{t}, v{t + 1}
v_and_b32 v{t + 1}, 3, v0
v_lshlrev_b32 v{t + 1}, 3, v{t + 1}
s_lshl_b32 s{sT0}, s{sW}, 10
s_add_u32 s{sT0}, s{sT0}, {WR}
v_add3_u32 v{t}, v{t}, v{t + 1}, s{sT0}
s_lshl_b32 s{sT0}, s2, 3
s_add_u32 s{sT0}, s{sT0}, s{sW}
s_lshl_b32 s{sT0}, s{sT0}, 10
s_add_u32 s{sT0}, s{sT0}, {WF}
''')
    tr_pair(a, t + 4, t, 0, 'pp')
    a.wait_lg('pp')
    a.vmem(f'buffer_store_dwordx4 v[{t + 4}:{t + 7}], v{vL16}, {srd(S_WS)}, s{sT0} offen{SC}', tag)
    a(f'''
s_cmp_ge_u32 s2, 32
s_cbranch_scc1 {lbl3}
''')
    a(f'ds_read_b64_tr_b16 v[{t + 8}:{t + 9}], v{t} offset:8192')
    a(f'ds_read_b64_tr_b16 v[{t + 10}:{t + 11}], v{t} offset:{8192 + 256}')
    a(f's_add_u32 s{sT0}, s{sT0}, {2048 * 1024}')
    a('s_waitcnt lgkmcnt(0)')
    a(f'buffer_store_dwordx4 v[{t + 8}:{t + 11}], v{vL16}, {srd(S_WS)}, s{sT0} offen{SC}')
    a.label(lbl3)


P2A, P2B = (0, 4, 1, 5), (2, 6, 3, 7)


def p2_frag(p):
    return BUFA + 4 * P2A.index(p) if p in P2A else BUFB + 4 * P2B.index(p)


def p2_read_ops(a, n, p):
    so = xslot(n) if n % 5 < 4 else 0
    off = so + (p // 4) * 4096
    d = p2_frag(p)
    tag = f'P{n}_{p}'
    if 'notr' in EXP:
        return []
    return [lambda: a.ds(f'ds_read_b64_tr_b16 v[{d}:{d + 1}], v{aW + p % 4} offset:{off}', tag),
            lambda: a.ds(f'ds_read_b64_tr_b16 v[{d + 2}:{d + 3}], v{aW + p % 4} offset:{off + 256}', tag)]


def p2_mfma(n, p):
    pas, C = (n - 8) // 4, (n - 8) % 4
    acc = AC_A if pas == 0 else AC_B
    first = (C == 0 and p == 0)
    return mfma32(acc, p2_frag(p), X(2 * C + p // 4, p % 4), '0' if first else None)


def p2_m16(n, p):
    pas, C = (n - 8) // 4, (n - 8) % 4
    cs = vCSA if pas == 0 else vCSB
    return mfma16(cs, p2_frag(p), vSEL, '0' if (C == 0 and p == 0) else None)


def p2_b_phase(a, n, ra, dm, fill=None):
    w = lambda p: (lambda: a.wait_lg(f'P{n}_{p}'))
    d = list(dm) + [[]] * 4
    f = fill or (lambda k: [])
    for i, p in enumerate(P2B):
        run_gaps(a, [w(p), p2_mfma(n, p), ra[i], d[0] if i == 1 else [], f(i)])


def p2_a_phase(a, n, rb, dm, fill=None):
    w = lambda p: (lambda: a.wait_lg(f'P{n}_{p}'))
    d = list(dm) + [[]] * 4
    f = fill or (lambda k: [])
    m16 = 'nom16' not in EXP
    for i, p in enumerate(P2A):
        run_gaps(a, [w(p), p2_mfma(n, p), rb[i], d[0] if i == 2 else [], f(4 + i)])
        if m16 and p in (0, 4):
            a(p2_m16(n, p))


def gelu_prep_ops(a, g, pas):
    pi = 3 + 2 * g + pas
    b1 = vB1A if pas == 0 else vB1B
    t = vCS0
    a(f'''
v_and_b32 v{vU + 2}, 31, v0
v_lshlrev_b32 v{vU + 2}, 4, v{vU + 2}
v_add_u32 v{vU + 2}, {CSP}, v{vU + 2}
''')
    a.ds(f'ds_read_b128 v[{t}:{t + 3}], v{vU + 2} offset:{pi * 512}', 'gc')
    a(f'''
s_lshl_b32 s{sT0}, s{sW}, 8
s_add_u32 s{sT0}, s{sT0}, {SCR}
v_lshlrev_b32 v{vU}, 2, v0
v_add_u32 v{vU}, s{sT0}, v{vU}
v_lshrrev_b32 v{vU + 1}, 5, v0
v_lshlrev_b32 v{vU + 1}, 4, v{vU + 1}
v_add_u32 v{vU + 1}, s{sT0}, v{vU + 1}
v_lshlrev_b32 v{t + 4}, 16, v{b1}
''')
    a.wait_lg('gc')
    a(f'''
v_add_f32 v{t}, v{t}, v{t + 1}
v_add_f32 v{t + 2}, v{t + 2}, v{t + 3}
v_cmp_gt_u32 vcc, 32, v0
v_add_f32 v{t}, v{t}, v{t + 2}
v_cndmask_b32 v{t}, v{t + 4}, v{t}, vcc
''')
    a.ds(f'ds_write_b32 v{vU}, v{t}', 'w')


def gelu_ops(a, acc, csb, b1b, tmp):
    ops = []
    for q in range(4):
        R = [acc + 4 * q + e for e in range(4)]
        cs = [csb + 4 * q + e for e in range(4)]
        b = [b1b + 4 * q + e for e in range(4)]
        u = [tmp + e for e in range(4)]
        w = [tmp + 4 + e for e in range(4)]
        for e in range(4):
            ops.append(f'v_fma_f32 v{b[e]}, -v{vMRR}, v{cs[e]}, v{b[e]}')
        for e in range(4):
            ops.append(f'v_fma_f32 v{R[e]}, v{vRR}, v{R[e]}, v{b[e]}')
        for e in range(4):
            ops.append(f'v_mul_f32 v{u[e]}, v{R[e]}, v{R[e]}')
        for e in range(4):
            ops.append(f'v_fma_f32 v{u[e]}, v{u[e]}, s{sT3}, v{vTMP + 2}')
        for e in range(4):
            ops.append(f'v_mul_f32 v{u[e]}, v{u[e]}, v{R[e]}')
        for e in range(4):
            ops.append(f'v_exp_f32 v{w[e]}, v{u[e]}')
        for e in range(4):
            ops.append(f'v_add_f32 v{w[e]}, 1.0, v{w[e]}')
        for e in range(4):
            ops.append(f'v_rcp_f32 v{w[e]}, v{w[e]}')
        for e in range(4):
            ops.append(f'v_mul_f32 v{R[e]}, v{R[e]}, v{w[e]}')
        ops.append(f'v_cvt_pk_bf16_f32 v{acc + 2 * q}, v{R[0]}, v{R[1]}')
        ops.append(f'v_cvt_pk_bf16_f32 v{acc + 2 * q + 1}, v{R[2]}, v{R[3]}')
    return ops


def gelu_simple(a, g, pas, extras=(), sttag='st'):
    acc = AC_A if pas == 0 else AC_B
    gelu_prep_ops(a, g, pas)
    csb, b1b = BUFA, BUFA + 16
    for qd in range(4):
        a.ds(f'ds_read_b128 v[{csb + 4 * qd}:{csb + 4 * qd + 3}], v{vU + 1} offset:{qd * 32}', 'gq')
        a.ds(f'ds_read_b128 v[{b1b + 4 * qd}:{b1b + 4 * qd + 3}], v{vU + 1} offset:{128 + qd * 32}', 'gq')
    a(f's_mov_b32 s{sT3}, {fl(C2)}')
    a(f'v_mov_b32 v{vTMP + 2}, {fl(C1)}')
    a(f'''
s_mul_i32 s{sHO}, s{sT}, 112
s_lshl_b32 s{sT0}, s{sG}, 1
s_add_u32 s{sT0}, s{sT0}, s{sF0}
s_add_u32 s{sT0}, s{sT0}, {pas}
s_lshl_b32 s{sT0}, s{sT0}, 1
s_add_u32 s{sHO}, s{sHO}, s{sT0}
s_lshl_b32 s{sHO}, s{sHO}, 10
s_add_u32 s{sHO}, s{sHO}, {HF}
''')
    a.wait_lg('gq')
    gops = gelu_ops(a, acc, csb, b1b, 80)
    extras = list(extras)
    ne = len(extras)
    done = 0
    for i, op in enumerate(gops):
        while done < ne and done * len(gops) <= i * ne:
            emit(a, extras[done])
            done += 1
        a(op)
    while done < ne:
        emit(a, extras[done])
        done += 1
    a.vmem(f'buffer_store_dwordx4 v[{acc}:{acc + 3}], v{vL16}, {srd(S_WS)}, s{sHO} offen{SC}', sttag)
    a.vmem(f'buffer_store_dwordx4 v[{acc + 4}:{acc + 7}], v{vL16}, {srd(S_WS)}, s{sHO} offen offset:1024{SC}', sttag)


def p2_stage(a, n, g):
    a.comment(f'--- P2 stage {n} g={g}')
    a.wait_vm(f'c{n}')
    if n == 12:
        a.wait_lg('w')
    if n in PREBAR:
        PREBAR[n](a, g)
    if 'nobar' not in EXP:
        a('s_barrier')
    if n in HOOKS:
        HOOKS[n](a, g)
    rebase(a, [aW + j for j in range(4)], n)
    c = chunk_for_stage(n)
    dm = dma_ops(a, c, g)
    db, da = dm[:1], dm[1:]
    ra = [p2_read_ops(a, n, p) for p in P2A]
    if n > 8:
        p2_b_phase(a, n - 1, ra, db)
    else:
        run_gaps(a, ra + [db])
    rb = [p2_read_ops(a, n, p) for p in P2B]
    p2_a_phase(a, n, rb, da)
    if n == 11:
        write_cs_partials(a, [(vCSA, (3 + 2 * g) * 512)])


STAMPS = {'p1_0': 1, 'p1_7': 2, 'e1': 3, 'p2_11': 4, 'p2_15': 5, 'tail': 6, 'gelu': 7}


def st(a, name):
    if name in STAMPS:
        stamp(a, STAMPS[name])


def gen_k1(label):
    a = Asm()
    end = label + '_end'
    prologue(a, end, None)
    build_srds(a, ['x', 'wq', 'w1', 'ws', 'w2', 'wo', 'b1'])
    stamp(a, 0, 0)
    setup(a)
    g1 = label + '_g1'
    a(f's_cmp_eq_u32 s{sG}, 1')
    a(f's_cbranch_scc1 {g1}')
    for g in (0, 1):
        if g == 1:
            a.label(g1)
            a.vm, a.lg = [], []
        for n in range(5):
            for d in dma_ops(a, n, g):
                d()
        setup2(a)
        for n in range(8):
            p1_stage(a, n, g)
            st(a, f'p1_{n}')
        p1_epilogue(a, g)
        st(a, 'e1')
        for n in range(8, 16):
            p2_stage(a, n, g)
            st(a, f'p2_{n}')
        p2_b_phase(a, 15, [[], [], [], []], [])
        write_cs_partials(a, [(vCSB, (3 + 2 * g + 1) * 512)])
        a.wait_all()
        a('s_barrier')
        st(a, 'tail')
        prep_finish(a)
        gelu_simple(a, g, 0)
        skip = a.newlabel('skipb')
        if g == 1:
            a(f's_cmp_eq_u32 s{sPB}, 0')
            a(f's_cbranch_scc1 {skip}')
        gelu_simple(a, g, 1)
        if g == 1:
            a.label(skip)
        st(a, 'gelu')
        a('s_waitcnt vmcnt(0)')
        stamp(a, 9, 1)
        stamp_flush(a, 0)
        a('s_endpgm')
    a.label(end)
    a('s_endpgm')
    return a
```

```python
from common import *
import k1
from k1 import (XR, WR, ST, CSP, SCR, X, fl, xslot, p1_frag, p1_read_ops, run_gaps, p2_frag, p2_mfma, p2_m16,
                P2A, P2B, C_Q, C1, C2, AC_A, AC_Q, AC_K, AC_B, BUFA, BUFB,
                sTB, sHP, sF0, sT0, sT1, sT2, sT3, sMASK, sMX, sMW, sM2, sPB, sT, sQO, sKO, sHO,
                vXD, vWD, vW1D, aX, aW, vU, vCS0, vCS1, vCSA, vCSB, vSEL, vTMP, vL16, vM, vR, vRR, vMRR,
                vB1A, vB1B)

SXB = ST + 2048
vSQ0, vSQ1 = 16, 17
vCSW, vSXW = 18, 19
vSXA = 28
aWH = 8
sC2 = 59
sCM = 96
vSCW, vSCR = 20, 21
vCSV = 22
vQS = 23
QT = 24
QT2 = 80

P2POS = {8: 49152, 9: 65536, 10: 0, 11: 16384, 12: 32768, 13: 98304, 14: 114688, 15: 49152}

HOOKS, PREBAR = {}, {}
SCHED = {}
OPT = {}


def split_even(ops, n):
    out = [[] for _ in range(n)]
    for i, o in enumerate(ops):
        out[(i * n) // max(len(ops), 1)].append(o)
    return out


sRW = 98
sROT, sKX, sKW = 93, 57, 58


def rot_setup(a):
    m = OPT.get('rot', 0)
    if m == 1:
        a(f's_and_b32 s{sROT}, s{sTB}, 3')
    elif m == 2:
        a(f's_lshr_b32 s{sROT}, s{sSLOT}, 3')
        a(f's_add_u32 s{sROT}, s{sROT}, s{sTB}')
        a(f's_and_b32 s{sROT}, s{sROT}, 3')
    elif m == 3:
        a(f's_and_b32 s{sROT}, s{sTB}, 1')
        a(f's_lshl_b32 s{sROT}, s{sROT}, 1')
    elif m == 4:
        a(f's_lshr_b32 s{sROT}, s{sTB}, 1')
        a(f's_and_b32 s{sROT}, s{sROT}, 3')
    elif m == 5:
        a(f's_lshr_b32 s{sROT}, s{sSLOT}, 3')
        a(f's_add_u32 s{sROT}, s{sROT}, s{sTB}')
        a(f's_and_b32 s{sROT}, s{sROT}, 7')
    elif m == 6:
        a(f's_and_b32 s{sROT}, s{sTB}, 7')
    elif m == 7:
        a(f's_mov_b32 s{sROT}, {OPT.get("rotc", 0)}')
    elif m == 8:
        a(f's_lshr_b32 s{sROT}, s{sSLOT}, 3')
        a(f's_lshl_b32 s{sROT}, s{sROT}, 1')
        a(f's_add_u32 s{sROT}, s{sROT}, s{sTB}')
        a(f's_and_b32 s{sROT}, s{sROT}, 7')
    elif m == 9:
        a(f's_add_u32 s{sROT}, s{sHP}, s{sTB}')
        a(f's_and_b32 s{sROT}, s{sROT}, 7')
    elif m == 10:
        a(f's_lshl_b32 s{sROT}, s{sTB}, 1')
        a(f's_add_u32 s{sROT}, s{sHP}, s{sROT}')
        a(f's_and_b32 s{sROT}, s{sROT}, 7')
    elif m == 11:
        a(f's_lshr_b32 s{sROT}, s{sSLOT}, 3')
        a(f's_add_u32 s{sROT}, s{sROT}, s{sTB}')
        a(f's_and_b32 s{sROT}, s{sROT}, 3')
        a(f's_lshl_b32 s{sROT}, s{sROT}, 1')
        a(f's_bfe_u32 s{sRW}, s{sTB}, 0x10002')
        a(f's_add_u32 s{sROT}, s{sROT}, s{sRW}')
    if m and m < 5:
        a(f's_lshl_b32 s{sROT}, s{sROT}, 1')
    if m >= 5:
        a(f's_lshr_b32 s{sRW}, s{sTT}, 1')
        a(f's_add_u32 s{sRW}, s{sRW}, s{sROT}')


def dma_ops(a, n, g):
    if n < 8 and not OPT.get('rot'):
        return k1.dma_ops(a, n, g)
    ops = []
    if n < 8:
        tag = f'c{n}'

        def xop(q):
            def f():
                if q == 0:
                    a(f's_add_u32 s{sKW}, s{sROT}, {n}')
                    a(f's_and_b32 s{sKW}, s{sKW}, 7')
                    a(f's_lshl_b32 s{sKX}, s{sKW}, 7')
                    a(f's_mul_i32 s{sKW}, s{sKW}, 196608')
                a(f's_add_u32 m0, s{sMX}, {xslot(n) + q * 1024}')
                a.vmem(f'buffer_load_dwordx4 v{vXD + q}, {srd(S_X)}, s{sKX} offen lds', tag)
            return f

        def wop(ldsoff, extra):
            def f():
                a(f's_add_u32 m0, s{sMW}, {ldsoff}')
                if extra:
                    a(f's_add_u32 s{sT2}, s{sKW}, {extra}')
                a.vmem(f'buffer_load_dwordx4 v{vWD}, {srd(S_WQ)}, s{sT2 if extra else sKW} offen lds', tag)
            return f
        wb = (n % 5) * 12288
        ops = [xop(0), xop(1)]
        if g == 0:
            ops.append(wop(wb + 2 * 4096, 0))
        else:
            ops.append(wop(wb, 0))
            ops.append(wop(wb + 4096, 1024))
        return ops
    ps, C = (n - 8) // 4, (n - 8) % 4
    for q in range(2):
        val = C * 458752 + q * 57344

        def f(q=q, val=val):
            a(f's_add_u32 m0, s{sM2}, {P2POS[n] + q * 1024}')
            if OPT.get('rot', 0) >= 5:
                a(f's_add_u32 s{sT2}, s{sRW}, {2 * C}')
                a(f's_and_b32 s{sT2}, s{sT2}, 7')
                a(f's_mul_i32 s{sT2}, s{sT2}, 229376')
                if q:
                    a(f's_add_u32 s{sT2}, s{sT2}, {q * 57344}')
                if ps:
                    a(f's_add_u32 s{sT2}, s{sT2}, s{sPB}')
            elif OPT.get('rot'):
                a(f's_lshr_b32 s{sT2}, s{sROT}, 1')
                a(f's_add_u32 s{sT2}, s{sT2}, {C}')
                a(f's_and_b32 s{sT2}, s{sT2}, 3')
                a(f's_mul_i32 s{sT2}, s{sT2}, 458752')
                if q:
                    a(f's_add_u32 s{sT2}, s{sT2}, {q * 57344}')
                if ps:
                    a(f's_add_u32 s{sT2}, s{sT2}, s{sPB}')
                elif k1.EV:
                    a(f's_add_u32 s{sT2}, s{sT2}, s{k1.sPA}')
            elif ps == 0:
                a(f's_mov_b32 s{sT2}, {val}')
            else:
                a(f's_add_u32 s{sT2}, s{sPB}, {val}')
            a.vmem(f'buffer_load_dwordx4 v{vW1D}, {srd(S_W1)}, s{sT2} offen lds', f'c{n}')
        ops.append(f)
    return ops


def setup2(a):
    k1.setup2(a)
    a(f'''
v_and_b32 v{vCSW}, 15, v0
v_lshlrev_b32 v{vSXW}, 6, v{vCSW}
v_lshlrev_b32 v{vCSW}, 8, v{vCSW}
v_lshrrev_b32 v2, 4, v0
v_lshlrev_b32 v3, 6, v2
s_lshl_b32 s{sT0}, s{sTT}, 2
s_add_u32 s{sT0}, s{sT0}, {CSP}
v_add3_u32 v{vCSW}, v{vCSW}, v3, s{sT0}
v_lshlrev_b32 v3, 4, v2
s_lshl_b32 s{sT0}, s{sTT}, 7
s_add_u32 s{sT0}, s{sT0}, {SXB}
v_add3_u32 v{vSXW}, v{vSXW}, v3, s{sT0}
s_mov_b32 s{sCM}, 0x00030003
s_mov_b32 s{sCM + 1}, 0x00030003
''')


def cs_write_ops(a, accs_panels, sx=False):
    ops = [f's_mov_b64 exec, s[{sCM}:{sCM + 1}]']
    for acc, off in accs_panels:
        for r in range(4):
            ops.append(lambda acc=acc, off=off, r=r:
                       a.ds(f'ds_write_b32 v{vCSW}, v{acc + r} offset:{off + r * 16}', 'w'))
    if sx:
        ops.append(lambda: a.ds(f'ds_write_b128 v{vSXW}, v[{vSXA}:{vSXA + 3}]', 'w'))
    ops.append('s_mov_b64 exec, -1')
    return ops


def stat_reg(n, g, j, k):
    x = X(n, j) + ((0, 1)[k] if g == 0 else (2, 3)[k])
    t = vU + 2 * k
    return [f'v_and_b32 v{t}, s{sMASK}, v{x}',
            f'v_lshlrev_b32 v{t + 1}, 16, v{x}',
            f'v_fmac_f32 v{vSQ0}, v{t}, v{t}',
            f'v_fmac_f32 v{vSQ1}, v{t + 1}, v{t + 1}']


def sx16(n, j):
    return mfma16(vSXA, X(n, j), vSEL, '0' if (n == 0 and j == 0) else None)


def gram(n, j):
    return mfma32(AC_K, X(n, j), X(n, j), '0' if (n == 0 and j == 0) else None)


def p1_b_phase(a, n, g, ra, dm):
    w = lambda j: (lambda: a.wait_lg(f'P{n}_{j}'))
    S = lambda j, k: stat_reg(n, g, j, k)
    d = list(dm) + [[]] * 4
    if OPT.get('gram'):
        if g == 0:
            q = lambda j: mfma32(AC_Q, p1_frag(0, j, 0), X(n, j))
            k_ = lambda j: mfma32(AC_K, p1_frag(0, j, 1), X(n, j))
            run_gaps(a, [w(2), q(2), ra[0][:3], k_(2), ra[0][3:], d[0],
                         w(3), q(3), ra[1][:3], k_(3), ra[1][3:], d[1]])
        else:
            v_ = lambda j: mfma32(AC_Q, X(n, j), p1_frag(1, j, 0))
            run_gaps(a, [w(2), v_(2), ra[0], gram(n, 2), d[0], sx16(n, 2),
                         w(3), v_(3), ra[1], gram(n, 3), d[1], sx16(n, 3)])
        return
    if g == 0:
        q = lambda j: mfma32(AC_Q, p1_frag(0, j, 0), X(n, j))
        k_ = lambda j: mfma32(AC_K, p1_frag(0, j, 1), X(n, j))
        run_gaps(a, [w(2), q(2), ra[0][:3], S(2, 0),
                     k_(2), ra[0][3:], d[0], S(2, 1),
                     w(3), q(3), ra[1][:3], S(3, 0),
                     k_(3), ra[1][3:], d[1], S(3, 1)])
    else:
        v_ = lambda j: mfma32(AC_Q, X(n, j), p1_frag(1, j, 0))
        run_gaps(a, [w(2), v_(2), ra[0], S(2, 0), sx16(n, 2), d[0], S(2, 1),
                     w(3), v_(3), ra[1], S(3, 0), sx16(n, 3), d[1], S(3, 1)])


def p1_a_phase(a, n, g, rb, dm):
    w = lambda j: (lambda: a.wait_lg(f'P{n}_{j}'))
    S = lambda j, k: stat_reg(n, g, j, k)
    d = list(dm) + [[]] * 4
    z = lambda first: '0' if first else None
    if OPT.get('gram'):
        if g == 0:
            q = lambda j: mfma32(AC_Q, p1_frag(0, j, 0), X(n, j), z(n == 0 and j == 0))
            k_ = lambda j: mfma32(AC_K, p1_frag(0, j, 1), X(n, j), z(n == 0 and j == 0))
            run_gaps(a, [w(0), q(0), rb[0][:3], k_(0), rb[0][3:],
                         mfma16(vCS0, p1_frag(0, 0, 0), vSEL, z(n == 0)), d[0],
                         mfma16(vCS1, p1_frag(0, 0, 1), vSEL, z(n == 0)), rb[1][:3],
                         w(1), q(1), rb[1][3:], k_(1), d[1]])
        else:
            v_ = lambda j: mfma32(AC_Q, X(n, j), p1_frag(1, j, 0), z(n == 0 and j == 0))
            run_gaps(a, [w(0), v_(0), rb[0], gram(n, 0),
                         mfma16(vCS0, p1_frag(1, 0, 0), vSEL, z(n == 0)), d[0], sx16(n, 0),
                         w(1), v_(1), rb[1], gram(n, 1), d[1], sx16(n, 1)])
        return
    if g == 0:
        q = lambda j: mfma32(AC_Q, p1_frag(0, j, 0), X(n, j), z(n == 0 and j == 0))
        k_ = lambda j: mfma32(AC_K, p1_frag(0, j, 1), X(n, j), z(n == 0 and j == 0))
        run_gaps(a, [w(0), q(0), rb[0][:3], S(0, 0),
                     k_(0), rb[0][3:], S(0, 1),
                     mfma16(vCS0, p1_frag(0, 0, 0), vSEL, z(n == 0)), d[0],
                     mfma16(vCS1, p1_frag(0, 0, 1), vSEL, z(n == 0)), rb[1][:3],
                     w(1), q(1), rb[1][3:], S(1, 0),
                     k_(1), d[1], S(1, 1)])
    else:
        v_ = lambda j: mfma32(AC_Q, X(n, j), p1_frag(1, j, 0), z(n == 0 and j == 0))
        run_gaps(a, [w(0), v_(0), rb[0], S(0, 0),
                     mfma16(vCS0, p1_frag(1, 0, 0), vSEL, z(n == 0)), d[0], S(0, 1), sx16(n, 0),
                     w(1), v_(1), rb[1], S(1, 0), sx16(n, 1), d[1], S(1, 1)])


def stage_head(a, n, g):
    a.wait_vm(f'c{n}')
    if n in PREBAR:
        PREBAR[n](a, g)
    a('s_barrier')
    if n in HOOKS:
        HOOKS[n](a, g)


def p1_stage(a, n, g):
    a.comment(f'--- P1 stage {n} g={g}')
    if OPT.get('dep', 3) == 4:
        a.wait_lg()
    stage_head(a, n, g)
    k1.rebase(a, [aX + j for j in range(4)], n)
    dm = [d for c in SCHED[n] for d in dma_ops(a, c, g)]
    db, da = k1.split_dma(dm, g, True)
    nb_ = OPT.get('db0' if g == 0 else 'db1')
    if nb_ is not None:
        db, da = dm[:nb_], dm[nb_:]
    two = lambda l: [l[:(len(l) + 1) // 2], l[(len(l) + 1) // 2:]]
    ra = [p1_read_ops(a, n, g, 0), p1_read_ops(a, n, g, 1)]
    if n > 0:
        p1_b_phase(a, n - 1, g, ra, two(db))
    else:
        run_gaps(a, ra)
        da = db + da
    da = two(da)
    rb = [p1_read_ops(a, n, g, 2), p1_read_ops(a, n, g, 3)]
    p1_a_phase(a, n, g, rb, da)


def e1a(a, g, dmas, prebar=None):
    a.comment(f'--- P1 epilogue g={g}')
    dmas = list(dmas)
    nxt = lambda: dmas.pop(0)() if dmas else None
    p1_b_phase(a, 7, g, [[], []], [])
    t = BUFA
    gr = OPT.get('gram')
    a(f'''
{'' if gr else f'v_add_f32 v{vSQ0}, v{vSQ0}, v{vSQ1}'}
v_and_b32 v{t}, 31, v0
v_lshlrev_b32 v{t + 1}, 4, v{t}
s_lshl_b32 s{sT0}, s{sTT}, 9
s_add_u32 s{sT0}, s{sT0}, {ST}
v_add_u32 v{t + 1}, s{sT0}, v{t + 1}
v_lshrrev_b32 v{t + 2}, 5, v0
v_lshlrev_b32 v{t + 2}, 2, v{t + 2}
v_add3_u32 v{t + 2}, v{t + 2}, v{t + 1}, {8 * g}
''')
    if not gr:
        a.ds(f'ds_write_b32 v{t + 2}, v{vSQ0}', 'w')
    run_gaps(a, [cs_write_ops(a, [(vCS0, 0), (vCS1, 512)] if g == 0 else [(vCS0, 1024)], sx=(g == 1))])
    if gr and g == 1:
        regs = [AC_K + r for r in range(16)]
        for m in (0xAAAAAAAA, 0xCCCCCCCC, 0xFF00FF00, 0xFFFF0000):
            a(f's_mov_b32 vcc_lo, {m:#x}')
            a(f's_mov_b32 vcc_hi, {m:#x}')
            nxt_regs = []
            for i in range(0, len(regs), 2):
                a(f'v_cndmask_b32 v{regs[i]}, v{regs[i]}, v{regs[i + 1]}, vcc')
                nxt_regs.append(regs[i])
            regs = nxt_regs
        a('s_mov_b32 exec_lo, 0x0f0f0f0f')
        a('s_mov_b32 exec_hi, 0xf0f0f0f0')
        a.ds(f'ds_write_b32 v{t + 1}, v{AC_K}', 'w')
        a('s_mov_b64 exec, -1')
    a(f'''
v_lshlrev_b32 v{t + 2}, 2, v{t}
s_lshl_b32 s{sT0}, s{sTT}, 7
s_add_u32 s{sT0}, s{sT0}, {SXB}
v_add_u32 v{t + 2}, s{sT0}, v{t + 2}
v_lshlrev_b32 v{t + 3}, 4, v{t}
v_add_u32 v{t + 3}, {CSP}, v{t + 3}
''')
    if g == 0:
        a(f'''
v_lshrrev_b32 v{t}, 5, v0
v_lshlrev_b32 v{t}, 9, v{t}
v_add_u32 v{t + 3}, v{t + 3}, v{t}
''')
    a.wait_lg()
    if prebar:
        prebar(a, g)
    a('s_barrier')
    if gr:
        a.ds(f'ds_read_b32 v{t + 4}, v{t + 1}', 's')
    else:
        a.ds(f'ds_read_b128 v[{t + 4}:{t + 7}], v{t + 1}', 's')
    a.ds(f'ds_read_b32 v{t + 12}, v{t + 2}', 's')
    a.ds(f'ds_read_b128 v[{t + 8}:{t + 11}], v{t + 3} offset:{0 if g == 0 else 1024}', 'c')
    if not OPT.get('prs'):
        prep_issue(a)
    a(f'''
v_and_b32 v{vTMP + 2}, 31, v0
v_and_b32 v{vTMP + 3}, 19, v{vTMP + 2}
v_bfe_u32 v{vCS0}, v0, 2, 1
v_lshlrev_b32 v{vCS0}, 3, v{vCS0}
v_bfe_u32 v{vCS0 + 1}, v0, 3, 1
v_lshlrev_b32 v{vCS0 + 1}, 2, v{vCS0 + 1}
v_add3_u32 v{vTMP + 3}, v{vTMP + 3}, v{vCS0}, v{vCS0 + 1}
v_lshlrev_b32 v{vTMP + 3}, 1, v{vTMP + 3}
{k1.col_bytes()}
s_add_u32 s{sT1}, s{sT0}, s{sPB}
{f's_add_u32 s{sT0}, s{sT0}, s{k1.sPA}' if k1.EV else ''}
''')
    a.vmem(f'buffer_load_ushort v{vB1A}, v{vTMP + 3}, {srd(S_B1)}, s{sT0} offen', 'b1')
    a.vmem(f'buffer_load_ushort v{vB1B}, v{vTMP + 3}, {srd(S_B1)}, s{sT1} offen', 'b1')
    a.wait_lg('s')
    a(f'''
{'' if gr else f'v_add_f32 v{t + 4}, v{t + 4}, v{t + 5}'}
{'' if gr else f'v_add_f32 v{t + 6}, v{t + 6}, v{t + 7}'}
v_mul_f32 v{vM}, {fl(1 / 512)}, v{t + 12}
{'' if gr else f'v_add_f32 v{t + 4}, v{t + 4}, v{t + 6}'}
v_mul_f32 v{t + 4}, {fl(1 / 512)}, v{t + 4}
v_fma_f32 v{t + 4}, -v{vM}, v{vM}, v{t + 4}
v_max_f32 v{t + 4}, 0, v{t + 4}
v_add_f32 v{t + 5}, {fl(1e-5)}, v{t + 4}
v_rsq_f32 v{vR}, v{t + 5}
''')
    nxt()
    a.wait_lg('c')
    a(f'''
v_add_f32 v{t + 8}, v{t + 8}, v{t + 9}
v_add_f32 v{t + 10}, v{t + 10}, v{t + 11}
v_mul_f32 v{t + 5}, v{vR}, v{vR}
v_mul_f32 v{t + 5}, v{t + 5}, v{t + 4}
v_add_f32 v{t + 5}, {fl(1e-5)}, v{t + 5}
v_rsq_f32 v{t + 5}, v{t + 5}
v_add_f32 v{t + 8}, v{t + 8}, v{t + 10}
s_lshl_b32 s{sT0}, s{sW}, 8
s_add_u32 s{sT0}, s{sT0}, {SCR}
v_lshlrev_b32 v{vSCW}, 2, v0
v_add_u32 v{vSCW}, s{sT0}, v{vSCW}
v_lshrrev_b32 v{vSCR}, 5, v0
v_lshlrev_b32 v{vSCR}, 4, v{vSCR}
v_add_u32 v{vSCR}, s{sT0}, v{vSCR}
v_mul_f32 v{vRR}, v{vR}, v{t + 5}
v_mul_f32 v{vMRR}, v{vM}, v{vRR}
''')
    if g == 0:
        a.ds(f'ds_write_b32 v{vSCW}, v{t + 8}', 'w')
        a(f'v_mul_f32 v{vQS}, {fl(C_Q)}, v{vR}')
    else:
        a(f'''
v_mul_f32 v{t + 9}, v{vM}, v{vR}
v_cmp_gt_u32 vcc, 32, v0
v_cndmask_b32 v{t + 9}, v{t + 9}, v{vR}, vcc
''')
        a.ds(f'ds_write_b32 v{vSCW}, v{t + 9}', 'w')
        a(f'''
v_mov_b32 v{vCSV}, v{t + 8}
v_bfe_u32 v{vQS}, v0, 4, 1
v_lshlrev_b32 v{vQS}, 17, v{vQS}
v_and_b32 v{t + 3}, 15, v0
v_lshlrev_b32 v{t + 3}, 4, v{t + 3}
v_add_u32 v{vQS}, v{vQS}, v{t + 3}
v_lshrrev_b32 v{t + 3}, 5, v0
v_lshlrev_b32 v{t + 3}, 8, v{t + 3}
v_add_u32 v{vQS}, v{vQS}, v{t + 3}
''')
    nxt()
    a(f'''
s_lshl_b32 s{sT0}, s{sHP}, 17
s_lshl_b32 s{sT1}, s{sT}, 10
s_add_u32 s{sQO}, s{sT0}, s{sT1}
s_lshl_b32 s{sT0}, s{sHP}, 18
s_lshl_b32 s{sT1}, s{sT}, 11
s_add_u32 s{sKO}, s{sT0}, s{sT1}
s_add_u32 s{sKO}, s{sKO}, {KV}
s_lshl_b32 s{sT0}, s{sG}, 13
s_sub_u32 s{sT0}, s{sT0}, {WR}
''')
    for j in range(4):
        a(f'v_add_u32 v{aW + j}, s{sT0}, v{aW + j}')
    for j in range(4):
        a(f'v_add_u32 v{aWH + j}, 0x10000, v{aW + j}')
    while dmas:
        nxt()


def e1m(a, g, dmas, prebar, e1b_first):
    a.comment(f'--- P1 epilogue + P2 stage 8, g={g}')
    dmas = list(dmas)
    p1_b_phase(a, 7, g, [[], []], [])
    t, u = BUFA, BUFB
    a(f'''
v_add_f32 v{vSQ0}, v{vSQ0}, v{vSQ1}
v_and_b32 v{t}, 31, v0
v_lshlrev_b32 v{t + 1}, 4, v{t}
s_lshl_b32 s{sT0}, s{sTT}, 9
s_add_u32 s{sT0}, s{sT0}, {ST}
v_add_u32 v{t + 1}, s{sT0}, v{t + 1}
v_lshrrev_b32 v{t + 2}, 5, v0
v_lshlrev_b32 v{t + 2}, 2, v{t + 2}
v_add3_u32 v{t + 2}, v{t + 2}, v{t + 1}, {8 * g}
''')
    a.ds(f'ds_write_b32 v{t + 2}, v{vSQ0}', 'w')
    run_gaps(a, [cs_write_ops(a, [(vCS0, 0), (vCS1, 512)] if g == 0 else [(vCS0, 1024)], sx=(g == 1))])
    a(f'''
v_lshlrev_b32 v{t + 2}, 2, v{t}
s_lshl_b32 s{sT0}, s{sTT}, 7
s_add_u32 s{sT0}, s{sT0}, {SXB}
v_add_u32 v{t + 2}, s{sT0}, v{t + 2}
v_lshlrev_b32 v{t + 3}, 4, v{t}
v_add_u32 v{t + 3}, {CSP}, v{t + 3}
''')
    if g == 0:
        a(f'''
v_lshrrev_b32 v{t}, 5, v0
v_lshlrev_b32 v{t}, 9, v{t}
v_add_u32 v{t + 3}, v{t + 3}, v{t}
''')
    a(f'''
s_lshl_b32 s{sT0}, s{sG}, 13
s_sub_u32 s{sT0}, s{sT0}, {WR}
''')
    for j in range(4):
        a(f'v_add_u32 v{aW + j}, s{sT0}, v{aW + j}')
    for j in range(4):
        a(f'v_add_u32 v{aWH + j}, 0x10000, v{aW + j}')
    a.wait_lg()
    if prebar:
        prebar(a, g)
    a.wait_vm('c8')
    a('s_barrier')
    a.ds(f'ds_read_b128 v[{u + 4}:{u + 7}], v{t + 1}', 's')
    a.ds(f'ds_read_b32 v{u + 12}, v{t + 2}', 's')
    a.ds(f'ds_read_b128 v[{u + 8}:{u + 11}], v{t + 3} offset:{0 if g == 0 else 1024}', 'c')
    run_gaps(a, [p2_read_ops(a, 8, p) for p in P2A])

    def b1_ops(r):
        r(f'''
v_and_b32 v{vTMP + 2}, 31, v0
v_and_b32 v{vTMP + 3}, 19, v{vTMP + 2}
v_bfe_u32 v{vCS0}, v0, 2, 1
v_lshlrev_b32 v{vCS0}, 3, v{vCS0}
v_bfe_u32 v{vCS0 + 1}, v0, 3, 1
v_lshlrev_b32 v{vCS0 + 1}, 2, v{vCS0 + 1}
v_add3_u32 v{vTMP + 3}, v{vTMP + 3}, v{vCS0}, v{vCS0 + 1}
v_lshlrev_b32 v{vTMP + 3}, 1, v{vTMP + 3}
{k1.col_bytes()}
s_add_u32 s{sT1}, s{sT0}, s{sPB}
{f's_add_u32 s{sT0}, s{sT0}, s{k1.sPA}' if k1.EV else ''}
''')
        r.vmem(f'buffer_load_ushort v{vB1A}, v{vTMP + 3}, {srd(S_B1)}, s{sT0} offen', 'b1')
        r.vmem(f'buffer_load_ushort v{vB1B}, v{vTMP + 3}, {srd(S_B1)}, s{sT1} offen', 'b1')

    def s1(r):
        r.wait_lg('s')
        r(f'''
v_add_f32 v{u + 4}, v{u + 4}, v{u + 5}
v_add_f32 v{u + 6}, v{u + 6}, v{u + 7}
v_mul_f32 v{vM}, {fl(1 / 512)}, v{u + 12}
v_add_f32 v{u + 4}, v{u + 4}, v{u + 6}
v_mul_f32 v{u + 4}, {fl(1 / 512)}, v{u + 4}
v_fma_f32 v{u + 4}, -v{vM}, v{vM}, v{u + 4}
v_max_f32 v{u + 4}, 0, v{u + 4}
v_add_f32 v{u + 5}, {fl(1e-5)}, v{u + 4}
v_rsq_f32 v{vR}, v{u + 5}
''')

    def s2(r):
        r.wait_lg('c')
        r(f'''
v_add_f32 v{u + 8}, v{u + 8}, v{u + 9}
v_add_f32 v{u + 10}, v{u + 10}, v{u + 11}
v_mul_f32 v{u + 5}, v{vR}, v{vR}
v_mul_f32 v{u + 5}, v{u + 5}, v{u + 4}
v_add_f32 v{u + 5}, {fl(1e-5)}, v{u + 5}
v_rsq_f32 v{u + 5}, v{u + 5}
v_add_f32 v{u + 8}, v{u + 8}, v{u + 10}
s_lshl_b32 s{sT0}, s{sW}, 8
s_add_u32 s{sT0}, s{sT0}, {SCR}
v_lshlrev_b32 v{vSCW}, 2, v0
v_add_u32 v{vSCW}, s{sT0}, v{vSCW}
v_lshrrev_b32 v{vSCR}, 5, v0
v_lshlrev_b32 v{vSCR}, 4, v{vSCR}
v_add_u32 v{vSCR}, s{sT0}, v{vSCR}
v_mul_f32 v{vRR}, v{vR}, v{u + 5}
v_mul_f32 v{vMRR}, v{vM}, v{vRR}
''')

    def s3(r):
        if g == 0:
            r.ds(f'ds_write_b32 v{vSCW}, v{u + 8}', 'w')
            r(f'v_mul_f32 v{vQS}, {fl(C_Q)}, v{vR}')
        else:
            r(f'''
v_mul_f32 v{u + 9}, v{vM}, v{vR}
v_cmp_gt_u32 vcc, 32, v0
v_cndmask_b32 v{u + 9}, v{u + 9}, v{vR}, vcc
''')
            r.ds(f'ds_write_b32 v{vSCW}, v{u + 9}', 'w')
            r(f'''
v_mov_b32 v{vCSV}, v{u + 8}
v_bfe_u32 v{vQS}, v0, 4, 1
v_lshlrev_b32 v{vQS}, 17, v{vQS}
v_and_b32 v{u + 3}, 15, v0
v_lshlrev_b32 v{u + 3}, 4, v{u + 3}
v_add_u32 v{vQS}, v{vQS}, v{u + 3}
v_lshrrev_b32 v{u + 3}, 5, v0
v_lshlrev_b32 v{u + 3}, 8, v{u + 3}
v_add_u32 v{vQS}, v{vQS}, v{u + 3}
''')

    def offs(r):
        r(f'''
s_lshl_b32 s{sT0}, s{sHP}, 17
s_lshl_b32 s{sT1}, s{sT}, 10
s_add_u32 s{sQO}, s{sT0}, s{sT1}
s_lshl_b32 s{sT0}, s{sHP}, 18
s_lshl_b32 s{sT1}, s{sT}, 11
s_add_u32 s{sKO}, s{sT0}, s{sT1}
s_add_u32 s{sKO}, s{sKO}, {KV}
''')
    w = lambda p: (lambda: a.wait_lg(f'P8_{p}'))
    mm = lambda p: [w(p), p2_mfma(8, p)] + ([p2_m16(8, p)] if p in (0, 4) else [])
    mode = OPT.get('e1m', 1)
    prep = [] if OPT.get('prs') else [lambda: prep_issue(a)]
    nd = len(dmas) // 2
    if mode == 1:
        run_gaps(a, [prep, record(a, b1_ops), record(a, s1), mm(P2A[0]), dmas[:nd][:1], record(a, s2), mm(P2A[1]),
                     record(a, s3), e1b_first[:2], record(a, offs), mm(P2A[2]), dmas[1:nd], mm(P2A[3])])
        rest = dmas[nd:]
    elif mode == 2:
        run_gaps(a, [record(a, b1_ops), record(a, s1), mm(P2A[0]), record(a, s2), mm(P2A[1]),
                     record(a, s3), e1b_first[:2], record(a, offs), mm(P2A[2]), prep, mm(P2A[3]), dmas[:nd]])
        rest = dmas[nd:]
    else:
        run_gaps(a, [record(a, offs), record(a, s1), mm(P2A[0]), record(a, s2), mm(P2A[1]),
                     record(a, s3), e1b_first[:2], mm(P2A[2]), record(a, b1_ops), mm(P2A[3]), prep, dmas[:nd]])
        rest = dmas[nd:]
    rb = [p2_read_ops(a, 8, p) for p in P2B]
    run_gaps(a, rb)
    rem = split_even(e1b_first[2:], len(rest) + 1)
    for i, p in enumerate(rem):
        run_gaps(a, [p])
        if i < len(rest):
            rest[i]()


def e1b_ops(a, g):
    SC = k1.SC
    ops = []
    if g == 0:
        quads = [(p, qd) for p in (0, 1) for qd in range(4)]
        rd = lambda i: (lambda: a.ds(f'ds_read_b128 v[{QT + 4 * (i % 2)}:{QT + 4 * (i % 2) + 3}], v{vSCR} '
                                     f'offset:{quads[i][0] * 128 + quads[i][1] * 32}', f'eq{i}'))
        ops += [rd(0), rd(1)]
        for i, (p, qd) in enumerate(quads):
            acc = AC_Q if p == 0 else AC_K
            sc = vQS if p == 0 else vR
            T = QT + 4 * (i % 2)
            R = [acc + 4 * qd + e for e in range(4)]
            ops.append(lambda i=i: a.wait_lg(f'eq{i}'))
            ops += [f'v_fma_f32 v{R[e]}, -v{vM}, v{T + e}, v{R[e]}' for e in range(4)]
            if i + 2 < 8:
                ops.append(rd(i + 2))
            ops += [f'v_mul_f32 v{R[e]}, v{sc}, v{R[e]}' for e in range(4)]
            ops.append(f'v_cvt_pk_bf16_f32 v{acc + 2 * qd}, v{R[0]}, v{R[1]}')
            ops.append(f'v_cvt_pk_bf16_f32 v{acc + 2 * qd + 1}, v{R[2]}, v{R[3]}')
            if qd in (1, 3):
                half = qd // 2
                so, delta = (sQO, 65536) if p == 0 else (sKO, 131072)

                def stf(acc=acc, half=half, so=so, delta=delta):
                    if half == 0:
                        s_ = f's{so}'
                    else:
                        a(f's_add_u32 s{sT2}, s{so}, {delta}')
                        s_ = f's{sT2}'
                    a.vmem(f'buffer_store_dwordx4 v[{acc + 4 * half}:{acc + 4 * half + 3}], v{vL16}, {srd(S_WS)}, '
                           f'{s_} offen{SC}', 'st')
                ops.append(stf)
    else:
        acc = AC_Q
        T = lambda i: (QT, QT2)[i % 2]

        def rd(i):
            def f():
                a.ds(f'ds_read_b128 v[{T(i)}:{T(i) + 3}], v{vSCR} offset:{i * 32}', f'eq{i}')
                a.ds(f'ds_read_b128 v[{T(i) + 4}:{T(i) + 7}], v{vSCR} offset:{128 + i * 32}', f'eq{i}')
            return f
        ops += [rd(0), rd(1)]
        for qd in range(4):
            R = [acc + 4 * qd + e for e in range(4)]
            t = T(qd)
            ops.append(lambda qd=qd: a.wait_lg(f'eq{qd}'))
            ops += [f'v_mul_f32 v{t + 4 + e}, v{vCSV}, v{t + 4 + e}' for e in range(4)]
            ops += [f'v_fma_f32 v{R[e]}, v{R[e]}, v{t + e}, -v{t + 4 + e}' for e in range(4)]
            if qd + 2 < 4:
                ops.append(rd(qd + 2))
            ops.append(f'v_cvt_pk_bf16_f32 v{acc + 2 * qd}, v{R[0]}, v{R[1]}')
            ops.append(f'v_cvt_pk_bf16_f32 v{acc + 2 * qd + 1}, v{R[2]}, v{R[3]}')
            if qd in (1, 3):
                half = qd // 2
                ops.append(lambda half=half: a.vmem(
                    f'buffer_store_dwordx4 v[{acc + 4 * half}:{acc + 4 * half + 3}], v{vQS}, {srd(S_WS)}, '
                    f's{sKO} offen offset:{1024 + 512 * half}{SC}', 'st'))
    return ops


def p2_read_ops(a, n, p):
    pos = P2POS[n] + (p // 4) * 4096
    base = aW if pos < 65536 else aWH
    off = pos % 65536
    d = p2_frag(p)
    tag = f'P{n}_{p}'
    return [lambda: a.ds(f'ds_read_b64_tr_b16 v[{d}:{d + 1}], v{base + p % 4} offset:{off}', tag),
            lambda: a.ds(f'ds_read_b64_tr_b16 v[{d + 2}:{d + 3}], v{base + p % 4} offset:{off + 256}', tag)]


def p2_b_phase(a, n, ra, fill):
    w = lambda p: (lambda: a.wait_lg(f'P{n}_{p}'))
    for i, p in enumerate(P2B):
        run_gaps(a, [w(p), p2_mfma(n, p), ra[i], fill[i]])


def p2_a_phase(a, n, rb, fill):
    w = lambda p: (lambda: a.wait_lg(f'P{n}_{p}'))
    for i, p in enumerate(P2A):
        run_gaps(a, [w(p), p2_mfma(n, p), rb[i], fill[i]])
        if p in (0, 4):
            a(p2_m16(n, p))


def p2_stage(a, n, g, fill):
    a.comment(f'--- P2 stage {n} g={g}')
    if n == 12:
        a.wait_lg('w')
    stage_head(a, n, g)
    ra = [p2_read_ops(a, n, p) for p in P2A]
    if n > 8:
        p2_b_phase(a, n - 1, ra, fill[:4])
    else:
        run_gaps(a, [[x for pair in zip(ra, fill[:4]) for y in pair for x in y]])
    rb = [p2_read_ops(a, n, p) for p in P2B]
    p2_a_phase(a, n, rb, fill[4:])


GT = 80


def gelu_prep(a, g, pas):
    pi = 3 + 2 * g + pas
    b1 = vB1A if pas == 0 else vB1B
    t = vCS0
    return [f'v_and_b32 v{t + 4}, 31, v0',
            f'v_lshlrev_b32 v{t + 4}, 4, v{t + 4}',
            f'v_add_u32 v{t + 4}, {CSP}, v{t + 4}',
            lambda: a.ds(f'ds_read_b128 v[{t}:{t + 3}], v{t + 4} offset:{pi * 512}', 'gc'),
            f'v_lshlrev_b32 v{t + 4}, 16, v{b1}',
            f'v_cmp_gt_u32 vcc, 32, v0',
            lambda: a.wait_lg('gc'),
            f'v_add_f32 v{t}, v{t}, v{t + 1}',
            f'v_add_f32 v{t + 2}, v{t + 2}, v{t + 3}',
            f'v_add_f32 v{t}, v{t}, v{t + 2}',
            f'v_cndmask_b32 v{t}, v{t + 4}, v{t}, vcc',
            lambda: a.ds(f'ds_write_b32 v{vSCW}, v{t}', 'w')]


def gelu_quad(a, acc, q, tag):
    cs, b, u, w = [[GT + 4 * k + e for e in range(4)] for k in range(4)]
    R = [acc + 4 * q + e for e in range(4)]
    rd = [lambda: a.ds(f'ds_read_b128 v[{cs[0]}:{cs[3]}], v{vSCR} offset:{q * 32}', tag),
          lambda: a.ds(f'ds_read_b128 v[{b[0]}:{b[3]}], v{vSCR} offset:{128 + q * 32}', tag)]
    ops = [lambda: a.wait_lg(tag)]
    ops += [f'v_fma_f32 v{b[e]}, -v{vMRR}, v{cs[e]}, v{b[e]}' for e in range(4)]
    ops += [f'v_fma_f32 v{R[e]}, v{vRR}, v{R[e]}, v{b[e]}' for e in range(4)]
    body = [f'v_mul_f32 v{u[e]}, v{R[e]}, v{R[e]}' for e in range(4)]
    body += [f'v_fma_f32 v{u[e]}, v{u[e]}, s{sC2}, v{vTMP + 2}' for e in range(4)]
    body += [f'v_mul_f32 v{u[e]}, v{u[e]}, v{R[e]}' for e in range(4)]
    body += [f'v_exp_f32 v{w[e]}, v{u[e]}' for e in range(4)]
    body += [f'v_add_f32 v{w[e]}, 1.0, v{w[e]}' for e in range(4)]
    body += [f'v_rcp_f32 v{w[e]}, v{w[e]}' for e in range(4)]
    body += [f'v_mul_f32 v{R[e]}, v{R[e]}, v{w[e]}' for e in range(4)]
    body.append(f'v_cvt_pk_bf16_f32 v{acc + 2 * q}, v{R[0]}, v{R[1]}')
    body.append(f'v_cvt_pk_bf16_f32 v{acc + 2 * q + 1}, v{R[2]}, v{R[3]}')
    return rd, ops, body


def gelu_consts():
    return [f's_mov_b32 s{sC2}, {fl(C2)}', f'v_mov_b32 v{vTMP + 2}, {fl(C1)}']


def gelu_tile_ops(a, acc, tagp, qs=(0, 1, 2, 3)):
    out = []
    nq = len(qs)
    rds = [gelu_quad(a, acc, q, f'{tagp}{q}') for q in qs]
    out += rds[0][0]
    per = []
    for q in range(nq):
        rd, head, body = rds[q]
        seq = list(head)
        if q + 1 < nq:
            seq += rds[q + 1][0]
        seq += body
        per.append(seq)
    return out, per


def h_store(a, g, pas, tag, halves=(1, 1)):
    acc = AC_A if pas == 0 else AC_B
    if k1.EV:
        a(f'''
s_mul_i32 s{sHO}, s{sT}, 112
s_lshl_b32 s{sT0}, s{sG}, 2
s_add_u32 s{sT0}, s{sT0}, s{sF0}
s_lshr_b32 s{sT1}, s{k1.sPA if pas == 0 else sPB}, 5
s_add_u32 s{sT0}, s{sT0}, s{sT1}
s_add_u32 s{sHO}, s{sHO}, s{sT0}
s_lshl_b32 s{sHO}, s{sHO}, 10
s_add_u32 s{sHO}, s{sHO}, {HF}
''')
        if halves[0]:
            a.vmem(f'buffer_store_dwordx4 v[{acc}:{acc + 3}], v{vL16}, {srd(S_WS)}, s{sHO} offen{k1.SC}', tag)
        if halves[1]:
            a.vmem(f'buffer_store_dwordx4 v[{acc + 4}:{acc + 7}], v{vL16}, {srd(S_WS)}, s{sHO} offen offset:1024{k1.SC}',
                   tag)
        return
    a(f'''
s_mul_i32 s{sHO}, s{sT}, 112
s_lshl_b32 s{sT0}, s{sG}, 1
s_add_u32 s{sT0}, s{sT0}, s{sF0}
s_add_u32 s{sT0}, s{sT0}, {pas}
s_lshl_b32 s{sT0}, s{sT0}, 1
s_add_u32 s{sHO}, s{sHO}, s{sT0}
s_lshl_b32 s{sHO}, s{sHO}, 10
s_add_u32 s{sHO}, s{sHO}, {HF}
''')
    a.vmem(f'buffer_store_dwordx4 v[{acc}:{acc + 3}], v{vL16}, {srd(S_WS)}, s{sHO} offen{k1.SC}', tag)
    a.vmem(f'buffer_store_dwordx4 v[{acc + 4}:{acc + 7}], v{vL16}, {srd(S_WS)}, s{sHO} offen offset:1024{k1.SC}', tag)


vPO2 = 47


def prep_issue(a):
    a.comment('prep DMA')
    lbl = a.newlabel('prep_wo')
    lbl2 = a.newlabel('prep_j')
    a(f'''
v_lshrrev_b32 v{vTMP}, 2, v0
v_lshlrev_b32 v{vTMP}, 10, v{vTMP}
v_and_b32 v{vTMP + 1}, 3, v0
v_lshlrev_b32 v{vTMP + 1}, 4, v{vTMP + 1}
s_and_b32 s{sT0}, s2, 1
s_lshl_b32 s{sT0}, s{sT0}, 3
s_add_u32 s{sT0}, s{sT0}, s{sW}
s_lshl_b32 s{sT0}, s{sT0}, 6
v_add3_u32 v{vTMP}, v{vTMP}, v{vTMP + 1}, s{sT0}
s_lshr_b32 s{k1.sPS}, s2, 1
s_lshl_b32 s{sT1}, s{sW}, 10
s_add_u32 m0, s{sT1}, {WR}
s_lshl_b32 s{sT2}, s{k1.sPS}, 14
s_cmp_ge_u32 s2, 224
s_cbranch_scc1 {lbl}
''')
    a.vmem(f'buffer_load_dwordx4 v{vTMP}, {srd(S_W2)}, s{sT2} offen lds', 'prep')
    a(f's_branch {lbl2}')
    a.label(lbl)
    a(f's_sub_u32 s{sT2}, s{sT2}, {112 * 16384}')
    a(f'buffer_load_dwordx4 v{vTMP}, {srd(S_WO)}, s{sT2} offen lds')
    a.label(lbl2)
    a(f'''
s_cmp_ge_u32 s2, 32
s_cselect_b32 s{k1.sPF}, 0x40000000, 0
s_lshr_b32 s{sT2}, s2, 1
s_add_u32 s{sT2}, s{sT2}, 16
s_lshl_b32 s{sT2}, s{sT2}, 14
s_add_u32 m0, s{sT1}, {WR + 8192}
v_add_u32 v{vTMP}, s{k1.sPF}, v{vTMP}
''')
    a.vmem(f'buffer_load_dwordx4 v{vTMP}, {srd(S_WO)}, s{sT2} offen lds', 'prep')


def prep_finish_ops(a, tag):
    t = 80
    SC = k1.SC

    def body(r):
        r(f'''
v_lshrrev_b32 v{t}, 5, v0
v_lshlrev_b32 v{t}, 9, v{t}
v_bfe_u32 v{t + 1}, v0, 2, 2
v_lshlrev_b32 v{t + 1}, 6, v{t + 1}
v_add_u32 v{t}, v{t}, v{t + 1}
v_bfe_u32 v{t + 1}, v0, 4, 1
v_lshlrev_b32 v{t + 1}, 5, v{t + 1}
v_add_u32 v{t}, v{t}, v{t + 1}
v_and_b32 v{t + 1}, 3, v0
v_lshlrev_b32 v{t + 1}, 3, v{t + 1}
s_lshl_b32 s{sT0}, s{sW}, 10
s_add_u32 s{sT0}, s{sT0}, {WR}
v_add3_u32 v{t}, v{t}, v{t + 1}, s{sT0}
v_add_u32 v{t + 2}, s{k1.sPF}, v{vL16}
''')
    addr = record(a, body)

    def rd(r):
        r.wait_vm('prep')
        r.ds(f'ds_read_b64_tr_b16 v[{t + 4}:{t + 5}], v{t}', 'pp')
        r.ds(f'ds_read_b64_tr_b16 v[{t + 6}:{t + 7}], v{t} offset:256', 'pp')
        r.ds(f'ds_read_b64_tr_b16 v[{t + 8}:{t + 9}], v{t} offset:8192', 'pp')
        r.ds(f'ds_read_b64_tr_b16 v[{t + 10}:{t + 11}], v{t} offset:{8192 + 256}', 'pp')
    reads = record(a, rd)

    def stf(r):
        r(f'''
s_lshl_b32 s{k1.sPS}, s2, 3
s_add_u32 s{k1.sPS}, s{k1.sPS}, s{sW}
s_lshl_b32 s{k1.sPS}, s{k1.sPS}, 10
s_add_u32 s{k1.sPS}, s{k1.sPS}, {WF}
''')
        r.wait_lg('pp')
        r.vmem(f'buffer_store_dwordx4 v[{t + 4}:{t + 7}], v{vL16}, {srd(S_WS)}, s{k1.sPS} offen{SC}', tag)
        r(f's_add_u32 s{k1.sPS}, s{k1.sPS}, {2048 * 1024}')
        r.vmem(f'buffer_store_dwordx4 v[{t + 8}:{t + 11}], v{t + 2}, {srd(S_WS)}, s{k1.sPS} offen{SC}', tag)
    stores = record(a, stf)
    return addr, reads, stores
```

```python
from common import *
import k1
from k1 import (XR, WR, ST, CSP, SCR, X, fl, xslot, p1_frag, p1_read_ops, run_gaps, p2_frag, p2_mfma, p2_m16,
                P2A, P2B, C_Q, C1, C2, AC_A, AC_Q, AC_K, AC_B, BUFA, BUFB,
                sTB, sHP, sF0, sT0, sT1, sT2, sT3, sMASK, sMX, sMW, sM2, sPB, sT, sQO, sKO, sHO,
                vXD, vWD, vW1D, aX, aW, vU, vCS0, vCS1, vCSA, vCSB, vSEL, vTMP, vL16, vM, vR, vRR, vMRR,
                vB1A, vB1B)

SXB = ST + 2048
vSQ0, vSQ1 = 16, 17
vCSW, vSXW = 18, 19
vSXA = 28
aWH = 8
sC2 = 59
sCM = 96
vSCW, vSCR = 20, 21
vCSV = 22
vQS = 23
QT = 24
QT2 = 80

P2POS = {8: 49152, 9: 65536, 10: 0, 11: 16384, 12: 32768, 13: 98304, 14: 114688, 15: 49152}

HOOKS, PREBAR = {}, {}
SCHED = {}
OPT = {}


def split_even(ops, n):
    out = [[] for _ in range(n)]
    for i, o in enumerate(ops):
        out[(i * n) // max(len(ops), 1)].append(o)
    return out


sRW = 98
sROT, sKX, sKW = 93, 57, 58


def rot_setup(a):
    m = OPT.get('rot', 0)
    if m == 1:
        a(f's_and_b32 s{sROT}, s{sTB}, 3')
    elif m == 2:
        a(f's_lshr_b32 s{sROT}, s{sSLOT}, 3')
        a(f's_add_u32 s{sROT}, s{sROT}, s{sTB}')
        a(f's_and_b32 s{sROT}, s{sROT}, 3')
    elif m == 3:
        a(f's_and_b32 s{sROT}, s{sTB}, 1')
        a(f's_lshl_b32 s{sROT}, s{sROT}, 1')
    elif m == 4:
        a(f's_lshr_b32 s{sROT}, s{sTB}, 1')
        a(f's_and_b32 s{sROT}, s{sROT}, 3')
    elif m == 5:
        a(f's_lshr_b32 s{sROT}, s{sSLOT}, 3')
        a(f's_add_u32 s{sROT}, s{sROT}, s{sTB}')
        a(f's_and_b32 s{sROT}, s{sROT}, 7')
    elif m == 6:
        a(f's_and_b32 s{sROT}, s{sTB}, 7')
    elif m == 7:
        a(f's_mov_b32 s{sROT}, {OPT.get("rotc", 0)}')
    elif m == 8:
        a(f's_lshr_b32 s{sROT}, s{sSLOT}, 3')
        a(f's_lshl_b32 s{sROT}, s{sROT}, 1')
        a(f's_add_u32 s{sROT}, s{sROT}, s{sTB}')
        a(f's_and_b32 s{sROT}, s{sROT}, 7')
    elif m == 9:
        a(f's_add_u32 s{sROT}, s{sHP}, s{sTB}')
        a(f's_and_b32 s{sROT}, s{sROT}, 7')
    elif m == 10:
        a(f's_lshl_b32 s{sROT}, s{sTB}, 1')
        a(f's_add_u32 s{sROT}, s{sHP}, s{sROT}')
        a(f's_and_b32 s{sROT}, s{sROT}, 7')
    elif m == 11:
        a(f's_lshr_b32 s{sROT}, s{sSLOT}, 3')
        a(f's_add_u32 s{sROT}, s{sROT}, s{sTB}')
        a(f's_and_b32 s{sROT}, s{sROT}, 3')
        a(f's_lshl_b32 s{sROT}, s{sROT}, 1')
        a(f's_bfe_u32 s{sRW}, s{sTB}, 0x10002')
        a(f's_add_u32 s{sROT}, s{sROT}, s{sRW}')
    elif m == 12:
        a(f's_mul_i32 s{sROT}, s{sHP}, 3')
        a(f's_add_u32 s{sROT}, s{sROT}, s{sTB}')
        a(f's_and_b32 s{sROT}, s{sROT}, 7')
    elif m == 13:
        a(f's_sub_u32 s{sROT}, s{sTB}, s{sHP}')
        a(f's_and_b32 s{sROT}, s{sROT}, 7')
    elif m == 14:
        a(f's_lshr_b32 s{sROT}, s{sHP}, 3')
        a(f's_lshl_b32 s{sROT}, s{sROT}, 2')
        a(f's_add_u32 s{sROT}, s{sROT}, s{sHP}')
        a(f's_add_u32 s{sROT}, s{sROT}, s{sTB}')
        a(f's_and_b32 s{sROT}, s{sROT}, 7')
    if m and m < 5:
        a(f's_lshl_b32 s{sROT}, s{sROT}, 1')
    if m >= 5:
        a(f's_lshr_b32 s{sRW}, s{sTT}, 1')
        a(f's_add_u32 s{sRW}, s{sRW}, s{sROT}')


def dma_ops(a, n, g):
    if n < 8 and not OPT.get('rot'):
        return k1.dma_ops(a, n, g)
    ops = []
    if n < 8:
        tag = f'c{n}'

        def xop(q):
            def f():
                if q == 0:
                    a(f's_add_u32 s{sKW}, s{sROT}, {n}')
                    a(f's_and_b32 s{sKW}, s{sKW}, 7')
                    a(f's_lshl_b32 s{sKX}, s{sKW}, 7')
                    a(f's_mul_i32 s{sKW}, s{sKW}, 196608')
                a(f's_add_u32 m0, s{sMX}, {xslot(n) + q * 1024}')
                a.vmem(f'buffer_load_dwordx4 v{vXD + q}, {srd(S_X)}, s{sKX} offen lds', tag)
            return f

        def wop(ldsoff, extra):
            def f():
                a(f's_add_u32 m0, s{sMW}, {ldsoff}')
                if extra:
                    a(f's_add_u32 s{sT2}, s{sKW}, {extra}')
                a.vmem(f'buffer_load_dwordx4 v{vWD}, {srd(S_WQ)}, s{sT2 if extra else sKW} offen lds', tag)
            return f
        wb = (n % 5) * 12288
        ops = [xop(0), xop(1)]
        if g == 0:
            ops.append(wop(wb + 2 * 4096, 0))
        else:
            ops.append(wop(wb, 0))
            ops.append(wop(wb + 4096, 1024))
        return ops
    ps, C = (n - 8) // 4, (n - 8) % 4
    for q in range(2):
        val = C * 458752 + q * 57344

        def f(q=q, val=val):
            a(f's_add_u32 m0, s{sM2}, {P2POS[n] + q * 1024}')
            if OPT.get('rot', 0) >= 5:
                a(f's_add_u32 s{sT2}, s{sRW}, {2 * C}')
                a(f's_and_b32 s{sT2}, s{sT2}, 7')
                a(f's_mul_i32 s{sT2}, s{sT2}, 229376')
                if q:
                    a(f's_add_u32 s{sT2}, s{sT2}, {q * 57344}')
                if ps:
                    a(f's_add_u32 s{sT2}, s{sT2}, s{sPB}')
            elif OPT.get('rot'):
                a(f's_lshr_b32 s{sT2}, s{sROT}, 1')
                a(f's_add_u32 s{sT2}, s{sT2}, {C}')
                a(f's_and_b32 s{sT2}, s{sT2}, 3')
                a(f's_mul_i32 s{sT2}, s{sT2}, 458752')
                if q:
                    a(f's_add_u32 s{sT2}, s{sT2}, {q * 57344}')
                if ps:
                    a(f's_add_u32 s{sT2}, s{sT2}, s{sPB}')
                elif k1.EV:
                    a(f's_add_u32 s{sT2}, s{sT2}, s{k1.sPA}')
            elif ps == 0:
                a(f's_mov_b32 s{sT2}, {val}')
            else:
                a(f's_add_u32 s{sT2}, s{sPB}, {val}')
            a.vmem(f'buffer_load_dwordx4 v{vW1D}, {srd(S_W1)}, s{sT2} offen lds', f'c{n}')
        ops.append(f)
    return ops


def setup2(a):
    k1.setup2(a)
    a(f'''
v_and_b32 v{vCSW}, 15, v0
v_lshlrev_b32 v{vSXW}, 6, v{vCSW}
v_lshlrev_b32 v{vCSW}, 8, v{vCSW}
v_lshrrev_b32 v2, 4, v0
v_lshlrev_b32 v3, 6, v2
s_lshl_b32 s{sT0}, s{sTT}, 2
s_add_u32 s{sT0}, s{sT0}, {CSP}
v_add3_u32 v{vCSW}, v{vCSW}, v3, s{sT0}
v_lshlrev_b32 v3, 4, v2
s_lshl_b32 s{sT0}, s{sTT}, 7
s_add_u32 s{sT0}, s{sT0}, {SXB}
v_add3_u32 v{vSXW}, v{vSXW}, v3, s{sT0}
s_mov_b32 s{sCM}, 0x00030003
s_mov_b32 s{sCM + 1}, 0x00030003
''')


def cs_write_ops(a, accs_panels, sx=False):
    ops = [f's_mov_b64 exec, s[{sCM}:{sCM + 1}]']
    for acc, off in accs_panels:
        for r in range(4):
            ops.append(lambda acc=acc, off=off, r=r:
                       a.ds(f'ds_write_b32 v{vCSW}, v{acc + r} offset:{off + r * 16}', 'w'))
    if sx:
        ops.append(lambda: a.ds(f'ds_write_b128 v{vSXW}, v[{vSXA}:{vSXA + 3}]', 'w'))
    ops.append('s_mov_b64 exec, -1')
    return ops


def stat_reg(n, g, j, k):
    x = X(n, j) + ((0, 1)[k] if g == 0 else (2, 3)[k])
    t = vU + 2 * k
    return [f'v_and_b32 v{t}, s{sMASK}, v{x}',
            f'v_lshlrev_b32 v{t + 1}, 16, v{x}',
            f'v_fmac_f32 v{vSQ0}, v{t}, v{t}',
            f'v_fmac_f32 v{vSQ1}, v{t + 1}, v{t + 1}']


def sx16(n, j):
    return mfma16(vSXA, X(n, j), vSEL, '0' if (n == 0 and j == 0) else None)


def gram(n, j):
    return mfma32(AC_K, X(n, j), X(n, j), '0' if (n == 0 and j == 0) else None)


def p1_b_phase(a, n, g, ra, dm):
    w = lambda j: (lambda: a.wait_lg(f'P{n}_{j}'))
    S = lambda j, k: stat_reg(n, g, j, k)
    d = list(dm) + [[]] * 4
    if OPT.get('gram'):
        if g == 0:
            q = lambda j: mfma32(AC_Q, p1_frag(0, j, 0), X(n, j))
            k_ = lambda j: mfma32(AC_K, p1_frag(0, j, 1), X(n, j))
            run_gaps(a, [w(2), q(2), ra[0][:3], k_(2), ra[0][3:], d[0],
                         w(3), q(3), ra[1][:3], k_(3), ra[1][3:], d[1]])
        else:
            v_ = lambda j: mfma32(AC_Q, X(n, j), p1_frag(1, j, 0))
            run_gaps(a, [w(2), v_(2), ra[0], gram(n, 2), d[0], sx16(n, 2),
                         w(3), v_(3), ra[1], gram(n, 3), d[1], sx16(n, 3)])
        return
    if g == 0:
        q = lambda j: mfma32(AC_Q, p1_frag(0, j, 0), X(n, j))
        k_ = lambda j: mfma32(AC_K, p1_frag(0, j, 1), X(n, j))
        run_gaps(a, [w(2), q(2), ra[0][:3], S(2, 0),
                     k_(2), ra[0][3:], d[0], S(2, 1),
                     w(3), q(3), ra[1][:3], S(3, 0),
                     k_(3), ra[1][3:], d[1], S(3, 1)])
    else:
        v_ = lambda j: mfma32(AC_Q, X(n, j), p1_frag(1, j, 0))
        run_gaps(a, [w(2), v_(2), ra[0], S(2, 0), sx16(n, 2), d[0], S(2, 1),
                     w(3), v_(3), ra[1], S(3, 0), sx16(n, 3), d[1], S(3, 1)])


def p1_a_phase(a, n, g, rb, dm):
    w = lambda j: (lambda: a.wait_lg(f'P{n}_{j}'))
    S = lambda j, k: stat_reg(n, g, j, k)
    d = list(dm) + [[]] * 4
    z = lambda first: '0' if first else None
    if OPT.get('gram'):
        if g == 0:
            q = lambda j: mfma32(AC_Q, p1_frag(0, j, 0), X(n, j), z(n == 0 and j == 0))
            k_ = lambda j: mfma32(AC_K, p1_frag(0, j, 1), X(n, j), z(n == 0 and j == 0))
            run_gaps(a, [w(0), q(0), rb[0][:3], k_(0), rb[0][3:],
                         mfma16(vCS0, p1_frag(0, 0, 0), vSEL, z(n == 0)), d[0],
                         mfma16(vCS1, p1_frag(0, 0, 1), vSEL, z(n == 0)), rb[1][:3],
                         w(1), q(1), rb[1][3:], k_(1), d[1]])
        else:
            v_ = lambda j: mfma32(AC_Q, X(n, j), p1_frag(1, j, 0), z(n == 0 and j == 0))
            run_gaps(a, [w(0), v_(0), rb[0], gram(n, 0),
                         mfma16(vCS0, p1_frag(1, 0, 0), vSEL, z(n == 0)), d[0], sx16(n, 0),
                         w(1), v_(1), rb[1], gram(n, 1), d[1], sx16(n, 1)])
        return
    if g == 0:
        q = lambda j: mfma32(AC_Q, p1_frag(0, j, 0), X(n, j), z(n == 0 and j == 0))
        k_ = lambda j: mfma32(AC_K, p1_frag(0, j, 1), X(n, j), z(n == 0 and j == 0))
        run_gaps(a, [w(0), q(0), rb[0][:3], S(0, 0),
                     k_(0), rb[0][3:], S(0, 1),
                     mfma16(vCS0, p1_frag(0, 0, 0), vSEL, z(n == 0)), d[0],
                     mfma16(vCS1, p1_frag(0, 0, 1), vSEL, z(n == 0)), rb[1][:3],
                     w(1), q(1), rb[1][3:], S(1, 0),
                     k_(1), d[1], S(1, 1)])
    else:
        v_ = lambda j: mfma32(AC_Q, X(n, j), p1_frag(1, j, 0), z(n == 0 and j == 0))
        run_gaps(a, [w(0), v_(0), rb[0], S(0, 0),
                     mfma16(vCS0, p1_frag(1, 0, 0), vSEL, z(n == 0)), d[0], S(0, 1), sx16(n, 0),
                     w(1), v_(1), rb[1], S(1, 0), sx16(n, 1), d[1], S(1, 1)])


def stage_head(a, n, g):
    a.wait_vm(f'c{n}')
    if n in PREBAR:
        PREBAR[n](a, g)
    a('s_barrier')
    if n in HOOKS:
        HOOKS[n](a, g)


def p1_stage(a, n, g):
    a.comment(f'--- P1 stage {n} g={g}')
    if OPT.get('dep', 3) == 4:
        a.wait_lg()
    stage_head(a, n, g)
    k1.rebase(a, [aX + j for j in range(4)], n)
    dm = [d for c in SCHED[n] for d in dma_ops(a, c, g)]
    db, da = k1.split_dma(dm, g, True)
    nb_ = OPT.get('db0' if g == 0 else 'db1')
    if nb_ is not None:
        db, da = dm[:nb_], dm[nb_:]
    two = lambda l: [l[:(len(l) + 1) // 2], l[(len(l) + 1) // 2:]]
    ra = [p1_read_ops(a, n, g, 0), p1_read_ops(a, n, g, 1)]
    if n > 0:
        p1_b_phase(a, n - 1, g, ra, two(db))
    else:
        run_gaps(a, ra)
        da = db + da
    da = two(da)
    rb = [p1_read_ops(a, n, g, 2), p1_read_ops(a, n, g, 3)]
    p1_a_phase(a, n, g, rb, da)


def e1a(a, g, dmas, prebar=None):
    a.comment(f'--- P1 epilogue g={g}')
    dmas = list(dmas)
    nxt = lambda: dmas.pop(0)() if dmas else None
    p1_b_phase(a, 7, g, [[], []], [])
    t = BUFA
    gr = OPT.get('gram')
    a(f'''
{'' if gr else f'v_add_f32 v{vSQ0}, v{vSQ0}, v{vSQ1}'}
v_and_b32 v{t}, 31, v0
v_lshlrev_b32 v{t + 1}, 4, v{t}
s_lshl_b32 s{sT0}, s{sTT}, 9
s_add_u32 s{sT0}, s{sT0}, {ST}
v_add_u32 v{t + 1}, s{sT0}, v{t + 1}
v_lshrrev_b32 v{t + 2}, 5, v0
v_lshlrev_b32 v{t + 2}, 2, v{t + 2}
v_add3_u32 v{t + 2}, v{t + 2}, v{t + 1}, {8 * g}
''')
    if not gr:
        a.ds(f'ds_write_b32 v{t + 2}, v{vSQ0}', 'w')
    run_gaps(a, [cs_write_ops(a, [(vCS0, 0), (vCS1, 512)] if g == 0 else [(vCS0, 1024)], sx=(g == 1))])
    if gr and g == 1:
        regs = [AC_K + r for r in range(16)]
        for m in (0xAAAAAAAA, 0xCCCCCCCC, 0xFF00FF00, 0xFFFF0000):
            a(f's_mov_b32 vcc_lo, {m:#x}')
            a(f's_mov_b32 vcc_hi, {m:#x}')
            nxt_regs = []
            for i in range(0, len(regs), 2):
                a(f'v_cndmask_b32 v{regs[i]}, v{regs[i]}, v{regs[i + 1]}, vcc')
                nxt_regs.append(regs[i])
            regs = nxt_regs
        a('s_mov_b32 exec_lo, 0x0f0f0f0f')
        a('s_mov_b32 exec_hi, 0xf0f0f0f0')
        a.ds(f'ds_write_b32 v{t + 1}, v{AC_K}', 'w')
        a('s_mov_b64 exec, -1')
    a(f'''
v_lshlrev_b32 v{t + 2}, 2, v{t}
s_lshl_b32 s{sT0}, s{sTT}, 7
s_add_u32 s{sT0}, s{sT0}, {SXB}
v_add_u32 v{t + 2}, s{sT0}, v{t + 2}
v_lshlrev_b32 v{t + 3}, 4, v{t}
v_add_u32 v{t + 3}, {CSP}, v{t + 3}
''')
    if g == 0:
        a(f'''
v_lshrrev_b32 v{t}, 5, v0
v_lshlrev_b32 v{t}, 9, v{t}
v_add_u32 v{t + 3}, v{t + 3}, v{t}
''')
    a.wait_lg()
    if prebar:
        prebar(a, g)
    a('s_barrier')
    if gr:
        a.ds(f'ds_read_b32 v{t + 4}, v{t + 1}', 's')
    else:
        a.ds(f'ds_read_b128 v[{t + 4}:{t + 7}], v{t + 1}', 's')
    a.ds(f'ds_read_b32 v{t + 12}, v{t + 2}', 's')
    a.ds(f'ds_read_b128 v[{t + 8}:{t + 11}], v{t + 3} offset:{0 if g == 0 else 1024}', 'c')
    if not OPT.get('prs'):
        prep_issue(a)
    a(f'''
v_and_b32 v{vTMP + 2}, 31, v0
v_and_b32 v{vTMP + 3}, 19, v{vTMP + 2}
v_bfe_u32 v{vCS0}, v0, 2, 1
v_lshlrev_b32 v{vCS0}, 3, v{vCS0}
v_bfe_u32 v{vCS0 + 1}, v0, 3, 1
v_lshlrev_b32 v{vCS0 + 1}, 2, v{vCS0 + 1}
v_add3_u32 v{vTMP + 3}, v{vTMP + 3}, v{vCS0}, v{vCS0 + 1}
v_lshlrev_b32 v{vTMP + 3}, 1, v{vTMP + 3}
{k1.col_bytes()}
s_add_u32 s{sT1}, s{sT0}, s{sPB}
{f's_add_u32 s{sT0}, s{sT0}, s{k1.sPA}' if k1.EV else ''}
''')
    a.vmem(f'buffer_load_ushort v{vB1A}, v{vTMP + 3}, {srd(S_B1)}, s{sT0} offen', 'b1')
    a.vmem(f'buffer_load_ushort v{vB1B}, v{vTMP + 3}, {srd(S_B1)}, s{sT1} offen', 'b1')
    a.wait_lg('s')
    a(f'''
{'' if gr else f'v_add_f32 v{t + 4}, v{t + 4}, v{t + 5}'}
{'' if gr else f'v_add_f32 v{t + 6}, v{t + 6}, v{t + 7}'}
v_mul_f32 v{vM}, {fl(1 / 512)}, v{t + 12}
{'' if gr else f'v_add_f32 v{t + 4}, v{t + 4}, v{t + 6}'}
v_mul_f32 v{t + 4}, {fl(1 / 512)}, v{t + 4}
v_fma_f32 v{t + 4}, -v{vM}, v{vM}, v{t + 4}
v_max_f32 v{t + 4}, 0, v{t + 4}
v_add_f32 v{t + 5}, {fl(1e-5)}, v{t + 4}
v_rsq_f32 v{vR}, v{t + 5}
''')
    nxt()
    a.wait_lg('c')
    a(f'''
v_add_f32 v{t + 8}, v{t + 8}, v{t + 9}
v_add_f32 v{t + 10}, v{t + 10}, v{t + 11}
v_mul_f32 v{t + 5}, v{vR}, v{vR}
v_mul_f32 v{t + 5}, v{t + 5}, v{t + 4}
v_add_f32 v{t + 5}, {fl(1e-5)}, v{t + 5}
v_rsq_f32 v{t + 5}, v{t + 5}
v_add_f32 v{t + 8}, v{t + 8}, v{t + 10}
s_lshl_b32 s{sT0}, s{sW}, 8
s_add_u32 s{sT0}, s{sT0}, {SCR}
v_lshlrev_b32 v{vSCW}, 2, v0
v_add_u32 v{vSCW}, s{sT0}, v{vSCW}
v_lshrrev_b32 v{vSCR}, 5, v0
v_lshlrev_b32 v{vSCR}, 4, v{vSCR}
v_add_u32 v{vSCR}, s{sT0}, v{vSCR}
v_mul_f32 v{vRR}, v{vR}, v{t + 5}
v_mul_f32 v{vMRR}, v{vM}, v{vRR}
''')
    if g == 0:
        a.ds(f'ds_write_b32 v{vSCW}, v{t + 8}', 'w')
        a(f'v_mul_f32 v{vQS}, {fl(C_Q)}, v{vR}')
    else:
        a(f'''
v_mul_f32 v{t + 9}, v{vM}, v{vR}
v_cmp_gt_u32 vcc, 32, v0
v_cndmask_b32 v{t + 9}, v{t + 9}, v{vR}, vcc
''')
        a.ds(f'ds_write_b32 v{vSCW}, v{t + 9}', 'w')
        a(f'''
v_mov_b32 v{vCSV}, v{t + 8}
v_bfe_u32 v{vQS}, v0, 4, 1
v_lshlrev_b32 v{vQS}, 17, v{vQS}
v_and_b32 v{t + 3}, 15, v0
v_lshlrev_b32 v{t + 3}, 4, v{t + 3}
v_add_u32 v{vQS}, v{vQS}, v{t + 3}
v_lshrrev_b32 v{t + 3}, 5, v0
v_lshlrev_b32 v{t + 3}, 8, v{t + 3}
v_add_u32 v{vQS}, v{vQS}, v{t + 3}
''')
    nxt()
    a(f'''
s_lshl_b32 s{sT0}, s{sHP}, 17
s_lshl_b32 s{sT1}, s{sT}, 10
s_add_u32 s{sQO}, s{sT0}, s{sT1}
s_lshl_b32 s{sT0}, s{sHP}, 18
s_lshl_b32 s{sT1}, s{sT}, 11
s_add_u32 s{sKO}, s{sT0}, s{sT1}
s_add_u32 s{sKO}, s{sKO}, {KV}
s_lshl_b32 s{sT0}, s{sG}, 13
s_sub_u32 s{sT0}, s{sT0}, {WR}
''')
    for j in range(4):
        a(f'v_add_u32 v{aW + j}, s{sT0}, v{aW + j}')
    for j in range(4):
        a(f'v_add_u32 v{aWH + j}, 0x10000, v{aW + j}')
    while dmas:
        nxt()


def e1m(a, g, dmas, prebar, e1b_first):
    a.comment(f'--- P1 epilogue + P2 stage 8, g={g}')
    dmas = list(dmas)
    p1_b_phase(a, 7, g, [[], []], [])
    t, u = BUFA, BUFB
    a(f'''
v_add_f32 v{vSQ0}, v{vSQ0}, v{vSQ1}
v_and_b32 v{t}, 31, v0
v_lshlrev_b32 v{t + 1}, 4, v{t}
s_lshl_b32 s{sT0}, s{sTT}, 9
s_add_u32 s{sT0}, s{sT0}, {ST}
v_add_u32 v{t + 1}, s{sT0}, v{t + 1}
v_lshrrev_b32 v{t + 2}, 5, v0
v_lshlrev_b32 v{t + 2}, 2, v{t + 2}
v_add3_u32 v{t + 2}, v{t + 2}, v{t + 1}, {8 * g}
''')
    a.ds(f'ds_write_b32 v{t + 2}, v{vSQ0}', 'w')
    run_gaps(a, [cs_write_ops(a, [(vCS0, 0), (vCS1, 512)] if g == 0 else [(vCS0, 1024)], sx=(g == 1))])
    a(f'''
v_lshlrev_b32 v{t + 2}, 2, v{t}
s_lshl_b32 s{sT0}, s{sTT}, 7
s_add_u32 s{sT0}, s{sT0}, {SXB}
v_add_u32 v{t + 2}, s{sT0}, v{t + 2}
v_lshlrev_b32 v{t + 3}, 4, v{t}
v_add_u32 v{t + 3}, {CSP}, v{t + 3}
''')
    if g == 0:
        a(f'''
v_lshrrev_b32 v{t}, 5, v0
v_lshlrev_b32 v{t}, 9, v{t}
v_add_u32 v{t + 3}, v{t + 3}, v{t}
''')
    a(f'''
s_lshl_b32 s{sT0}, s{sG}, 13
s_sub_u32 s{sT0}, s{sT0}, {WR}
''')
    for j in range(4):
        a(f'v_add_u32 v{aW + j}, s{sT0}, v{aW + j}')
    for j in range(4):
        a(f'v_add_u32 v{aWH + j}, 0x10000, v{aW + j}')
    a.wait_lg()
    if prebar:
        prebar(a, g)
    a.wait_vm('c8')
    a('s_barrier')
    a.ds(f'ds_read_b128 v[{u + 4}:{u + 7}], v{t + 1}', 's')
    a.ds(f'ds_read_b32 v{u + 12}, v{t + 2}', 's')
    a.ds(f'ds_read_b128 v[{u + 8}:{u + 11}], v{t + 3} offset:{0 if g == 0 else 1024}', 'c')
    run_gaps(a, [p2_read_ops(a, 8, p) for p in P2A])

    def b1_ops(r):
        r(f'''
v_and_b32 v{vTMP + 2}, 31, v0
v_and_b32 v{vTMP + 3}, 19, v{vTMP + 2}
v_bfe_u32 v{vCS0}, v0, 2, 1
v_lshlrev_b32 v{vCS0}, 3, v{vCS0}
v_bfe_u32 v{vCS0 + 1}, v0, 3, 1
v_lshlrev_b32 v{vCS0 + 1}, 2, v{vCS0 + 1}
v_add3_u32 v{vTMP + 3}, v{vTMP + 3}, v{vCS0}, v{vCS0 + 1}
v_lshlrev_b32 v{vTMP + 3}, 1, v{vTMP + 3}
{k1.col_bytes()}
s_add_u32 s{sT1}, s{sT0}, s{sPB}
{f's_add_u32 s{sT0}, s{sT0}, s{k1.sPA}' if k1.EV else ''}
''')
        r.vmem(f'buffer_load_ushort v{vB1A}, v{vTMP + 3}, {srd(S_B1)}, s{sT0} offen', 'b1')
        r.vmem(f'buffer_load_ushort v{vB1B}, v{vTMP + 3}, {srd(S_B1)}, s{sT1} offen', 'b1')

    def s1(r):
        r.wait_lg('s')
        r(f'''
v_add_f32 v{u + 4}, v{u + 4}, v{u + 5}
v_add_f32 v{u + 6}, v{u + 6}, v{u + 7}
v_mul_f32 v{vM}, {fl(1 / 512)}, v{u + 12}
v_add_f32 v{u + 4}, v{u + 4}, v{u + 6}
v_mul_f32 v{u + 4}, {fl(1 / 512)}, v{u + 4}
v_fma_f32 v{u + 4}, -v{vM}, v{vM}, v{u + 4}
v_max_f32 v{u + 4}, 0, v{u + 4}
v_add_f32 v{u + 5}, {fl(1e-5)}, v{u + 4}
v_rsq_f32 v{vR}, v{u + 5}
''')

    def s2(r):
        r.wait_lg('c')
        r(f'''
v_add_f32 v{u + 8}, v{u + 8}, v{u + 9}
v_add_f32 v{u + 10}, v{u + 10}, v{u + 11}
v_mul_f32 v{u + 5}, v{vR}, v{vR}
v_mul_f32 v{u + 5}, v{u + 5}, v{u + 4}
v_add_f32 v{u + 5}, {fl(1e-5)}, v{u + 5}
v_rsq_f32 v{u + 5}, v{u + 5}
v_add_f32 v{u + 8}, v{u + 8}, v{u + 10}
s_lshl_b32 s{sT0}, s{sW}, 8
s_add_u32 s{sT0}, s{sT0}, {SCR}
v_lshlrev_b32 v{vSCW}, 2, v0
v_add_u32 v{vSCW}, s{sT0}, v{vSCW}
v_lshrrev_b32 v{vSCR}, 5, v0
v_lshlrev_b32 v{vSCR}, 4, v{vSCR}
v_add_u32 v{vSCR}, s{sT0}, v{vSCR}
v_mul_f32 v{vRR}, v{vR}, v{u + 5}
v_mul_f32 v{vMRR}, v{vM}, v{vRR}
''')

    def s3(r):
        if g == 0:
            r.ds(f'ds_write_b32 v{vSCW}, v{u + 8}', 'w')
            r(f'v_mul_f32 v{vQS}, {fl(C_Q)}, v{vR}')
        else:
            r(f'''
v_mul_f32 v{u + 9}, v{vM}, v{vR}
v_cmp_gt_u32 vcc, 32, v0
v_cndmask_b32 v{u + 9}, v{u + 9}, v{vR}, vcc
''')
            r.ds(f'ds_write_b32 v{vSCW}, v{u + 9}', 'w')
            r(f'''
v_mov_b32 v{vCSV}, v{u + 8}
v_bfe_u32 v{vQS}, v0, 4, 1
v_lshlrev_b32 v{vQS}, 17, v{vQS}
v_and_b32 v{u + 3}, 15, v0
v_lshlrev_b32 v{u + 3}, 4, v{u + 3}
v_add_u32 v{vQS}, v{vQS}, v{u + 3}
v_lshrrev_b32 v{u + 3}, 5, v0
v_lshlrev_b32 v{u + 3}, 8, v{u + 3}
v_add_u32 v{vQS}, v{vQS}, v{u + 3}
''')

    def offs(r):
        r(f'''
s_lshl_b32 s{sT0}, s{sHP}, 17
s_lshl_b32 s{sT1}, s{sT}, 10
s_add_u32 s{sQO}, s{sT0}, s{sT1}
s_lshl_b32 s{sT0}, s{sHP}, 18
s_lshl_b32 s{sT1}, s{sT}, 11
s_add_u32 s{sKO}, s{sT0}, s{sT1}
s_add_u32 s{sKO}, s{sKO}, {KV}
''')
    w = lambda p: (lambda: a.wait_lg(f'P8_{p}'))
    mm = lambda p: [w(p), p2_mfma(8, p)] + ([p2_m16(8, p)] if p in (0, 4) else [])
    mode = OPT.get('e1m', 1)
    prep = [] if OPT.get('prs') else [lambda: prep_issue(a)]
    nd = len(dmas) // 2
    if mode == 1:
        run_gaps(a, [prep, record(a, b1_ops), record(a, s1), mm(P2A[0]), dmas[:nd][:1], record(a, s2), mm(P2A[1]),
                     record(a, s3), e1b_first[:2], record(a, offs), mm(P2A[2]), dmas[1:nd], mm(P2A[3])])
        rest = dmas[nd:]
    elif mode == 2:
        run_gaps(a, [record(a, b1_ops), record(a, s1), mm(P2A[0]), record(a, s2), mm(P2A[1]),
                     record(a, s3), e1b_first[:2], record(a, offs), mm(P2A[2]), prep, mm(P2A[3]), dmas[:nd]])
        rest = dmas[nd:]
    else:
        run_gaps(a, [record(a, offs), record(a, s1), mm(P2A[0]), record(a, s2), mm(P2A[1]),
                     record(a, s3), e1b_first[:2], mm(P2A[2]), record(a, b1_ops), mm(P2A[3]), prep, dmas[:nd]])
        rest = dmas[nd:]
    rb = [p2_read_ops(a, 8, p) for p in P2B]
    run_gaps(a, rb)
    rem = split_even(e1b_first[2:], len(rest) + 1)
    for i, p in enumerate(rem):
        run_gaps(a, [p])
        if i < len(rest):
            rest[i]()


def e1b_ops(a, g):
    SC = k1.SC
    ops = []
    if g == 0:
        quads = [(p, qd) for p in (0, 1) for qd in range(4)]
        rd = lambda i: (lambda: a.ds(f'ds_read_b128 v[{QT + 4 * (i % 2)}:{QT + 4 * (i % 2) + 3}], v{vSCR} '
                                     f'offset:{quads[i][0] * 128 + quads[i][1] * 32}', f'eq{i}'))
        ops += [rd(0), rd(1)]
        for i, (p, qd) in enumerate(quads):
            acc = AC_Q if p == 0 else AC_K
            sc = vQS if p == 0 else vR
            T = QT + 4 * (i % 2)
            R = [acc + 4 * qd + e for e in range(4)]
            ops.append(lambda i=i: a.wait_lg(f'eq{i}'))
            ops += [f'v_fma_f32 v{R[e]}, -v{vM}, v{T + e}, v{R[e]}' for e in range(4)]
            if i + 2 < 8:
                ops.append(rd(i + 2))
            ops += [f'v_mul_f32 v{R[e]}, v{sc}, v{R[e]}' for e in range(4)]
            ops.append(f'v_cvt_pk_bf16_f32 v{acc + 2 * qd}, v{R[0]}, v{R[1]}')
            ops.append(f'v_cvt_pk_bf16_f32 v{acc + 2 * qd + 1}, v{R[2]}, v{R[3]}')
            if qd in (1, 3):
                half = qd // 2
                so, delta = (sQO, 65536) if p == 0 else (sKO, 131072)

                def stf(acc=acc, half=half, so=so, delta=delta):
                    if half == 0:
                        s_ = f's{so}'
                    else:
                        a(f's_add_u32 s{sT2}, s{so}, {delta}')
                        s_ = f's{sT2}'
                    a.vmem(f'buffer_store_dwordx4 v[{acc + 4 * half}:{acc + 4 * half + 3}], v{vL16}, {srd(S_WS)}, '
                           f'{s_} offen{SC}', 'st')
                ops.append(stf)
    else:
        acc = AC_Q
        T = lambda i: (QT, QT2)[i % 2]

        def rd(i):
            def f():
                a.ds(f'ds_read_b128 v[{T(i)}:{T(i) + 3}], v{vSCR} offset:{i * 32}', f'eq{i}')
                a.ds(f'ds_read_b128 v[{T(i) + 4}:{T(i) + 7}], v{vSCR} offset:{128 + i * 32}', f'eq{i}')
            return f
        ops += [rd(0), rd(1)]
        for qd in range(4):
            R = [acc + 4 * qd + e for e in range(4)]
            t = T(qd)
            ops.append(lambda qd=qd: a.wait_lg(f'eq{qd}'))
            ops += [f'v_mul_f32 v{t + 4 + e}, v{vCSV}, v{t + 4 + e}' for e in range(4)]
            ops += [f'v_fma_f32 v{R[e]}, v{R[e]}, v{t + e}, -v{t + 4 + e}' for e in range(4)]
            if qd + 2 < 4:
                ops.append(rd(qd + 2))
            ops.append(f'v_cvt_pk_bf16_f32 v{acc + 2 * qd}, v{R[0]}, v{R[1]}')
            ops.append(f'v_cvt_pk_bf16_f32 v{acc + 2 * qd + 1}, v{R[2]}, v{R[3]}')
            if qd in (1, 3):
                half = qd // 2
                ops.append(lambda half=half: a.vmem(
                    f'buffer_store_dwordx4 v[{acc + 4 * half}:{acc + 4 * half + 3}], v{vQS}, {srd(S_WS)}, '
                    f's{sKO} offen offset:{1024 + 512 * half}{SC}', 'st'))
    return ops


def p2_read_ops(a, n, p):
    pos = P2POS[n] + (p // 4) * 4096
    base = aW if pos < 65536 else aWH
    off = pos % 65536
    d = p2_frag(p)
    tag = f'P{n}_{p}'
    return [lambda: a.ds(f'ds_read_b64_tr_b16 v[{d}:{d + 1}], v{base + p % 4} offset:{off}', tag),
            lambda: a.ds(f'ds_read_b64_tr_b16 v[{d + 2}:{d + 3}], v{base + p % 4} offset:{off + 256}', tag)]


def p2_b_phase(a, n, ra, fill):
    w = lambda p: (lambda: a.wait_lg(f'P{n}_{p}'))
    for i, p in enumerate(P2B):
        run_gaps(a, [w(p), p2_mfma(n, p), ra[i], fill[i]])


def p2_a_phase(a, n, rb, fill):
    w = lambda p: (lambda: a.wait_lg(f'P{n}_{p}'))
    for i, p in enumerate(P2A):
        run_gaps(a, [w(p), p2_mfma(n, p), rb[i], fill[i]])
        if p in (0, 4):
            a(p2_m16(n, p))


def p2_stage(a, n, g, fill):
    a.comment(f'--- P2 stage {n} g={g}')
    if n == 12:
        a.wait_lg('w')
    stage_head(a, n, g)
    ra = [p2_read_ops(a, n, p) for p in P2A]
    if n > 8:
        p2_b_phase(a, n - 1, ra, fill[:4])
    else:
        run_gaps(a, [[x for pair in zip(ra, fill[:4]) for y in pair for x in y]])
    rb = [p2_read_ops(a, n, p) for p in P2B]
    p2_a_phase(a, n, rb, fill[4:])


GT = 80


def gelu_prep(a, g, pas):
    pi = 3 + 2 * g + pas
    b1 = vB1A if pas == 0 else vB1B
    t = vCS0
    return [f'v_and_b32 v{t + 4}, 31, v0',
            f'v_lshlrev_b32 v{t + 4}, 4, v{t + 4}',
            f'v_add_u32 v{t + 4}, {CSP}, v{t + 4}',
            lambda: a.ds(f'ds_read_b128 v[{t}:{t + 3}], v{t + 4} offset:{pi * 512}', 'gc'),
            f'v_lshlrev_b32 v{t + 4}, 16, v{b1}',
            f'v_cmp_gt_u32 vcc, 32, v0',
            lambda: a.wait_lg('gc'),
            f'v_add_f32 v{t}, v{t}, v{t + 1}',
            f'v_add_f32 v{t + 2}, v{t + 2}, v{t + 3}',
            f'v_add_f32 v{t}, v{t}, v{t + 2}',
            f'v_cndmask_b32 v{t}, v{t + 4}, v{t}, vcc',
            lambda: a.ds(f'ds_write_b32 v{vSCW}, v{t}', 'w')]


def gelu_quad(a, acc, q, tag):
    cs, b, u, w = [[GT + 4 * k + e for e in range(4)] for k in range(4)]
    R = [acc + 4 * q + e for e in range(4)]
    rd = [lambda: a.ds(f'ds_read_b128 v[{cs[0]}:{cs[3]}], v{vSCR} offset:{q * 32}', tag),
          lambda: a.ds(f'ds_read_b128 v[{b[0]}:{b[3]}], v{vSCR} offset:{128 + q * 32}', tag)]
    ops = [lambda: a.wait_lg(tag)]
    ops += [f'v_fma_f32 v{b[e]}, -v{vMRR}, v{cs[e]}, v{b[e]}' for e in range(4)]
    ops += [f'v_fma_f32 v{R[e]}, v{vRR}, v{R[e]}, v{b[e]}' for e in range(4)]
    body = [f'v_mul_f32 v{u[e]}, v{R[e]}, v{R[e]}' for e in range(4)]
    body += [f'v_fma_f32 v{u[e]}, v{u[e]}, s{sC2}, v{vTMP + 2}' for e in range(4)]
    body += [f'v_mul_f32 v{u[e]}, v{u[e]}, v{R[e]}' for e in range(4)]
    body += [f'v_exp_f32 v{w[e]}, v{u[e]}' for e in range(4)]
    body += [f'v_add_f32 v{w[e]}, 1.0, v{w[e]}' for e in range(4)]
    body += [f'v_rcp_f32 v{w[e]}, v{w[e]}' for e in range(4)]
    body += [f'v_mul_f32 v{R[e]}, v{R[e]}, v{w[e]}' for e in range(4)]
    body.append(f'v_cvt_pk_bf16_f32 v{acc + 2 * q}, v{R[0]}, v{R[1]}')
    body.append(f'v_cvt_pk_bf16_f32 v{acc + 2 * q + 1}, v{R[2]}, v{R[3]}')
    return rd, ops, body


def gelu_consts():
    return [f's_mov_b32 s{sC2}, {fl(C2)}', f'v_mov_b32 v{vTMP + 2}, {fl(C1)}']


def gelu_tile_ops(a, acc, tagp, qs=(0, 1, 2, 3)):
    out = []
    nq = len(qs)
    rds = [gelu_quad(a, acc, q, f'{tagp}{q}') for q in qs]
    out += rds[0][0]
    per = []
    for q in range(nq):
        rd, head, body = rds[q]
        seq = list(head)
        if q + 1 < nq:
            seq += rds[q + 1][0]
        seq += body
        per.append(seq)
    return out, per


def h_store(a, g, pas, tag, halves=(1, 1)):
    acc = AC_A if pas == 0 else AC_B
    if k1.EV:
        a(f'''
s_mul_i32 s{sHO}, s{sT}, 112
s_lshl_b32 s{sT0}, s{sG}, 2
s_add_u32 s{sT0}, s{sT0}, s{sF0}
s_lshr_b32 s{sT1}, s{k1.sPA if pas == 0 else sPB}, 5
s_add_u32 s{sT0}, s{sT0}, s{sT1}
s_add_u32 s{sHO}, s{sHO}, s{sT0}
s_lshl_b32 s{sHO}, s{sHO}, 10
s_add_u32 s{sHO}, s{sHO}, {HF}
''')
        if halves[0]:
            a.vmem(f'buffer_store_dwordx4 v[{acc}:{acc + 3}], v{vL16}, {srd(S_WS)}, s{sHO} offen{k1.SC}', tag)
        if halves[1]:
            a.vmem(f'buffer_store_dwordx4 v[{acc + 4}:{acc + 7}], v{vL16}, {srd(S_WS)}, s{sHO} offen offset:1024{k1.SC}',
                   tag)
        return
    a(f'''
s_mul_i32 s{sHO}, s{sT}, 112
s_lshl_b32 s{sT0}, s{sG}, 1
s_add_u32 s{sT0}, s{sT0}, s{sF0}
s_add_u32 s{sT0}, s{sT0}, {pas}
s_lshl_b32 s{sT0}, s{sT0}, 1
s_add_u32 s{sHO}, s{sHO}, s{sT0}
s_lshl_b32 s{sHO}, s{sHO}, 10
s_add_u32 s{sHO}, s{sHO}, {HF}
''')
    a.vmem(f'buffer_store_dwordx4 v[{acc}:{acc + 3}], v{vL16}, {srd(S_WS)}, s{sHO} offen{k1.SC}', tag)
    a.vmem(f'buffer_store_dwordx4 v[{acc + 4}:{acc + 7}], v{vL16}, {srd(S_WS)}, s{sHO} offen offset:1024{k1.SC}', tag)


vPO2 = 47


def prep_issue(a):
    a.comment('prep DMA')
    lbl = a.newlabel('prep_wo')
    lbl2 = a.newlabel('prep_j')
    a(f'''
v_lshrrev_b32 v{vTMP}, 2, v0
v_lshlrev_b32 v{vTMP}, 10, v{vTMP}
v_and_b32 v{vTMP + 1}, 3, v0
v_lshlrev_b32 v{vTMP + 1}, 4, v{vTMP + 1}
s_and_b32 s{sT0}, s2, 1
s_lshl_b32 s{sT0}, s{sT0}, 3
s_add_u32 s{sT0}, s{sT0}, s{sW}
s_lshl_b32 s{sT0}, s{sT0}, 6
v_add3_u32 v{vTMP}, v{vTMP}, v{vTMP + 1}, s{sT0}
s_lshr_b32 s{k1.sPS}, s2, 1
s_lshl_b32 s{sT1}, s{sW}, 10
s_add_u32 m0, s{sT1}, {WR}
s_lshl_b32 s{sT2}, s{k1.sPS}, 14
s_cmp_ge_u32 s2, 224
s_cbranch_scc1 {lbl}
''')
    a.vmem(f'buffer_load_dwordx4 v{vTMP}, {srd(S_W2)}, s{sT2} offen lds', 'prep')
    a(f's_branch {lbl2}')
    a.label(lbl)
    a(f's_sub_u32 s{sT2}, s{sT2}, {112 * 16384}')
    a(f'buffer_load_dwordx4 v{vTMP}, {srd(S_WO)}, s{sT2} offen lds')
    a.label(lbl2)
    a(f'''
s_cmp_ge_u32 s2, 32
s_cselect_b32 s{k1.sPF}, 0x40000000, 0
s_lshr_b32 s{sT2}, s2, 1
s_add_u32 s{sT2}, s{sT2}, 16
s_lshl_b32 s{sT2}, s{sT2}, 14
s_add_u32 m0, s{sT1}, {WR + 8192}
v_add_u32 v{vTMP}, s{k1.sPF}, v{vTMP}
''')
    a.vmem(f'buffer_load_dwordx4 v{vTMP}, {srd(S_WO)}, s{sT2} offen lds', 'prep')


def prep_finish_ops(a, tag):
    t = 80
    SC = k1.SC

    def body(r):
        r(f'''
v_lshrrev_b32 v{t}, 5, v0
v_lshlrev_b32 v{t}, 9, v{t}
v_bfe_u32 v{t + 1}, v0, 2, 2
v_lshlrev_b32 v{t + 1}, 6, v{t + 1}
v_add_u32 v{t}, v{t}, v{t + 1}
v_bfe_u32 v{t + 1}, v0, 4, 1
v_lshlrev_b32 v{t + 1}, 5, v{t + 1}
v_add_u32 v{t}, v{t}, v{t + 1}
v_and_b32 v{t + 1}, 3, v0
v_lshlrev_b32 v{t + 1}, 3, v{t + 1}
s_lshl_b32 s{sT0}, s{sW}, 10
s_add_u32 s{sT0}, s{sT0}, {WR}
v_add3_u32 v{t}, v{t}, v{t + 1}, s{sT0}
v_add_u32 v{t + 2}, s{k1.sPF}, v{vL16}
''')
    addr = record(a, body)

    def rd(r):
        r.wait_vm('prep')
        r.ds(f'ds_read_b64_tr_b16 v[{t + 4}:{t + 5}], v{t}', 'pp')
        r.ds(f'ds_read_b64_tr_b16 v[{t + 6}:{t + 7}], v{t} offset:256', 'pp')
        r.ds(f'ds_read_b64_tr_b16 v[{t + 8}:{t + 9}], v{t} offset:8192', 'pp')
        r.ds(f'ds_read_b64_tr_b16 v[{t + 10}:{t + 11}], v{t} offset:{8192 + 256}', 'pp')
    reads = record(a, rd)

    def stf(r):
        r(f'''
s_lshl_b32 s{k1.sPS}, s2, 3
s_add_u32 s{k1.sPS}, s{k1.sPS}, s{sW}
s_lshl_b32 s{k1.sPS}, s{k1.sPS}, 10
s_add_u32 s{k1.sPS}, s{k1.sPS}, {WF}
''')
        r.wait_lg('pp')
        r.vmem(f'buffer_store_dwordx4 v[{t + 4}:{t + 7}], v{vL16}, {srd(S_WS)}, s{k1.sPS} offen{SC}', tag)
        r(f's_add_u32 s{k1.sPS}, s{k1.sPS}, {2048 * 1024}')
        r.vmem(f'buffer_store_dwordx4 v[{t + 8}:{t + 11}], v{t + 2}, {srd(S_WS)}, s{k1.sPS} offen{SC}', tag)
    stores = record(a, stf)
    return addr, reads, stores
```

```python
from common import *
import k1
from k1 import (XR, WR, ST, CSP, SCR, X, fl, xslot, p1_frag, p1_read_ops, run_gaps, p2_frag, p2_mfma, p2_m16,
                P2A, P2B, C_Q, C1, C2, AC_A, AC_Q, AC_K, AC_B, BUFA, BUFB,
                sTB, sHP, sF0, sT0, sT1, sT2, sT3, sMASK, sMX, sMW, sM2, sPB, sT, sQO, sKO, sHO,
                vXD, vWD, vW1D, aX, aW, vU, vCS0, vCS1, vCSA, vCSB, vSEL, vTMP, vL16, vM, vR, vRR, vMRR,
                vB1A, vB1B)

SXB = ST + 2048
vSQ0, vSQ1 = 16, 17
vCSW, vSXW = 18, 19
vSXA = 28
aWH = 8
sC2 = 59
sCM = 96
vSCW, vSCR = 20, 21
vCSV = 22
vQS = 23
QT = 24
QT2 = 80

P2POS = {8: 49152, 9: 65536, 10: 0, 11: 16384, 12: 32768, 13: 98304, 14: 114688, 15: 49152}

HOOKS, PREBAR = {}, {}
SCHED = {}
OPT = {}


def split_even(ops, n):
    out = [[] for _ in range(n)]
    for i, o in enumerate(ops):
        out[(i * n) // max(len(ops), 1)].append(o)
    return out


sRW = 98
sROT, sKX, sKW = 93, 57, 58


def rot_setup(a):
    m = OPT.get('rot', 0)
    if m == 1:
        a(f's_and_b32 s{sROT}, s{sTB}, 3')
    elif m == 2:
        a(f's_lshr_b32 s{sROT}, s{sSLOT}, 3')
        a(f's_add_u32 s{sROT}, s{sROT}, s{sTB}')
        a(f's_and_b32 s{sROT}, s{sROT}, 3')
    elif m == 3:
        a(f's_and_b32 s{sROT}, s{sTB}, 1')
        a(f's_lshl_b32 s{sROT}, s{sROT}, 1')
    elif m == 4:
        a(f's_lshr_b32 s{sROT}, s{sTB}, 1')
        a(f's_and_b32 s{sROT}, s{sROT}, 3')
    elif m == 5:
        a(f's_lshr_b32 s{sROT}, s{sSLOT}, 3')
        a(f's_add_u32 s{sROT}, s{sROT}, s{sTB}')
        a(f's_and_b32 s{sROT}, s{sROT}, 7')
    elif m == 6:
        a(f's_and_b32 s{sROT}, s{sTB}, 7')
    elif m == 7:
        a(f's_mov_b32 s{sROT}, {OPT.get("rotc", 0)}')
    elif m == 8:
        a(f's_lshr_b32 s{sROT}, s{sSLOT}, 3')
        a(f's_lshl_b32 s{sROT}, s{sROT}, 1')
        a(f's_add_u32 s{sROT}, s{sROT}, s{sTB}')
        a(f's_and_b32 s{sROT}, s{sROT}, 7')
    elif m == 9:
        a(f's_add_u32 s{sROT}, s{sHP}, s{sTB}')
        a(f's_and_b32 s{sROT}, s{sROT}, 7')
    elif m == 10:
        a(f's_lshl_b32 s{sROT}, s{sTB}, 1')
        a(f's_add_u32 s{sROT}, s{sHP}, s{sROT}')
        a(f's_and_b32 s{sROT}, s{sROT}, 7')
    elif m == 11:
        a(f's_lshr_b32 s{sROT}, s{sSLOT}, 3')
        a(f's_add_u32 s{sROT}, s{sROT}, s{sTB}')
        a(f's_and_b32 s{sROT}, s{sROT}, 3')
        a(f's_lshl_b32 s{sROT}, s{sROT}, 1')
        a(f's_bfe_u32 s{sRW}, s{sTB}, 0x10002')
        a(f's_add_u32 s{sROT}, s{sROT}, s{sRW}')
    elif m == 12:
        a(f's_mul_i32 s{sROT}, s{sHP}, 3')
        a(f's_add_u32 s{sROT}, s{sROT}, s{sTB}')
        a(f's_and_b32 s{sROT}, s{sROT}, 7')
    elif m == 13:
        a(f's_sub_u32 s{sROT}, s{sTB}, s{sHP}')
        a(f's_and_b32 s{sROT}, s{sROT}, 7')
    elif m == 14:
        a(f's_lshr_b32 s{sROT}, s{sHP}, 3')
        a(f's_lshl_b32 s{sROT}, s{sROT}, 2')
        a(f's_add_u32 s{sROT}, s{sROT}, s{sHP}')
        a(f's_add_u32 s{sROT}, s{sROT}, s{sTB}')
        a(f's_and_b32 s{sROT}, s{sROT}, 7')
    elif m == 15:
        a(f's_lshr_b32 s{sROT}, s{sTB}, 3')
        a(f's_lshl_b32 s{sROT}, s{sROT}, 2')
        a(f's_add_u32 s{sROT}, s{sROT}, s{sTB}')
        a(f's_lshr_b32 s{sRW}, s{sSLOT}, 3')
        a(f's_add_u32 s{sROT}, s{sROT}, s{sRW}')
        a(f's_and_b32 s{sROT}, s{sROT}, 7')
    elif m == 16:
        a(f's_lshr_b32 s{sROT}, s{sSLOT}, 3')
        a(f's_sub_u32 s{sROT}, s{sTB}, s{sROT}')
        a(f's_and_b32 s{sROT}, s{sROT}, 7')
    elif m == 17:
        a(f's_lshr_b32 s{sROT}, s{sSLOT}, 3')
        a(f's_mul_i32 s{sROT}, s{sROT}, 3')
        a(f's_add_u32 s{sROT}, s{sROT}, s{sTB}')
        a(f's_and_b32 s{sROT}, s{sROT}, 7')
    if m and m < 5:
        a(f's_lshl_b32 s{sROT}, s{sROT}, 1')
    if m >= 5:
        a(f's_lshr_b32 s{sRW}, s{sTT}, 1')
        a(f's_add_u32 s{sRW}, s{sRW}, s{sROT}')


def dma_ops(a, n, g):
    if n < 8 and not OPT.get('rot'):
        return k1.dma_ops(a, n, g)
    ops = []
    if n < 8:
        tag = f'c{n}'

        def xop(q):
            def f():
                if q == 0:
                    a(f's_add_u32 s{sKW}, s{sROT}, {n}')
                    a(f's_and_b32 s{sKW}, s{sKW}, 7')
                    a(f's_lshl_b32 s{sKX}, s{sKW}, 7')
                    a(f's_mul_i32 s{sKW}, s{sKW}, 196608')
                a(f's_add_u32 m0, s{sMX}, {xslot(n) + q * 1024}')
                a.vmem(f'buffer_load_dwordx4 v{vXD + q}, {srd(S_X)}, s{sKX} offen lds', tag)
            return f

        def wop(ldsoff, extra):
            def f():
                a(f's_add_u32 m0, s{sMW}, {ldsoff}')
                if extra:
                    a(f's_add_u32 s{sT2}, s{sKW}, {extra}')
                a.vmem(f'buffer_load_dwordx4 v{vWD}, {srd(S_WQ)}, s{sT2 if extra else sKW} offen lds', tag)
            return f
        wb = (n % 5) * 12288
        ops = [xop(0), xop(1)]
        if g == 0:
            ops.append(wop(wb + 2 * 4096, 0))
        else:
            ops.append(wop(wb, 0))
            ops.append(wop(wb + 4096, 1024))
        return ops
    ps, C = (n - 8) // 4, (n - 8) % 4
    for q in range(2):
        val = C * 458752 + q * 57344

        def f(q=q, val=val):
            a(f's_add_u32 m0, s{sM2}, {P2POS[n] + q * 1024}')
            if OPT.get('rot', 0) >= 5:
                a(f's_add_u32 s{sT2}, s{sRW}, {2 * C}')
                a(f's_and_b32 s{sT2}, s{sT2}, 7')
                a(f's_mul_i32 s{sT2}, s{sT2}, 229376')
                if q:
                    a(f's_add_u32 s{sT2}, s{sT2}, {q * 57344}')
                if ps:
                    a(f's_add_u32 s{sT2}, s{sT2}, s{sPB}')
            elif OPT.get('rot'):
                a(f's_lshr_b32 s{sT2}, s{sROT}, 1')
                a(f's_add_u32 s{sT2}, s{sT2}, {C}')
                a(f's_and_b32 s{sT2}, s{sT2}, 3')
                a(f's_mul_i32 s{sT2}, s{sT2}, 458752')
                if q:
                    a(f's_add_u32 s{sT2}, s{sT2}, {q * 57344}')
                if ps:
                    a(f's_add_u32 s{sT2}, s{sT2}, s{sPB}')
                elif k1.EV:
                    a(f's_add_u32 s{sT2}, s{sT2}, s{k1.sPA}')
            elif ps == 0:
                a(f's_mov_b32 s{sT2}, {val}')
            else:
                a(f's_add_u32 s{sT2}, s{sPB}, {val}')
            a.vmem(f'buffer_load_dwordx4 v{vW1D}, {srd(S_W1)}, s{sT2} offen lds', f'c{n}')
        ops.append(f)
    return ops


def setup2(a):
    k1.setup2(a)
    a(f'''
v_and_b32 v{vCSW}, 15, v0
v_lshlrev_b32 v{vSXW}, 6, v{vCSW}
v_lshlrev_b32 v{vCSW}, 8, v{vCSW}
v_lshrrev_b32 v2, 4, v0
v_lshlrev_b32 v3, 6, v2
s_lshl_b32 s{sT0}, s{sTT}, 2
s_add_u32 s{sT0}, s{sT0}, {CSP}
v_add3_u32 v{vCSW}, v{vCSW}, v3, s{sT0}
v_lshlrev_b32 v3, 4, v2
s_lshl_b32 s{sT0}, s{sTT}, 7
s_add_u32 s{sT0}, s{sT0}, {SXB}
v_add3_u32 v{vSXW}, v{vSXW}, v3, s{sT0}
s_mov_b32 s{sCM}, 0x00030003
s_mov_b32 s{sCM + 1}, 0x00030003
''')


def cs_write_ops(a, accs_panels, sx=False):
    ops = [f's_mov_b64 exec, s[{sCM}:{sCM + 1}]']
    for acc, off in accs_panels:
        for r in range(4):
            ops.append(lambda acc=acc, off=off, r=r:
                       a.ds(f'ds_write_b32 v{vCSW}, v{acc + r} offset:{off + r * 16}', 'w'))
    if sx:
        ops.append(lambda: a.ds(f'ds_write_b128 v{vSXW}, v[{vSXA}:{vSXA + 3}]', 'w'))
    ops.append('s_mov_b64 exec, -1')
    return ops


def stat_reg(n, g, j, k):
    x = X(n, j) + ((0, 1)[k] if g == 0 else (2, 3)[k])
    t = vU + 2 * k
    return [f'v_and_b32 v{t}, s{sMASK}, v{x}',
            f'v_lshlrev_b32 v{t + 1}, 16, v{x}',
            f'v_fmac_f32 v{vSQ0}, v{t}, v{t}',
            f'v_fmac_f32 v{vSQ1}, v{t + 1}, v{t + 1}']


def sx16(n, j):
    return mfma16(vSXA, X(n, j), vSEL, '0' if (n == 0 and j == 0) else None)


def gram(n, j):
    return mfma32(AC_K, X(n, j), X(n, j), '0' if (n == 0 and j == 0) else None)


def p1_b_phase(a, n, g, ra, dm):
    w = lambda j: (lambda: a.wait_lg(f'P{n}_{j}'))
    S = lambda j, k: stat_reg(n, g, j, k)
    d = list(dm) + [[]] * 4
    if OPT.get('gram'):
        if g == 0:
            q = lambda j: mfma32(AC_Q, p1_frag(0, j, 0), X(n, j))
            k_ = lambda j: mfma32(AC_K, p1_frag(0, j, 1), X(n, j))
            run_gaps(a, [w(2), q(2), ra[0][:3], k_(2), ra[0][3:], d[0],
                         w(3), q(3), ra[1][:3], k_(3), ra[1][3:], d[1]])
        else:
            v_ = lambda j: mfma32(AC_Q, X(n, j), p1_frag(1, j, 0))
            run_gaps(a, [w(2), v_(2), ra[0], gram(n, 2), d[0], sx16(n, 2),
                         w(3), v_(3), ra[1], gram(n, 3), d[1], sx16(n, 3)])
        return
    if g == 0:
        q = lambda j: mfma32(AC_Q, p1_frag(0, j, 0), X(n, j))
        k_ = lambda j: mfma32(AC_K, p1_frag(0, j, 1), X(n, j))
        run_gaps(a, [w(2), q(2), ra[0][:3], S(2, 0),
                     k_(2), ra[0][3:], d[0], S(2, 1),
                     w(3), q(3), ra[1][:3], S(3, 0),
                     k_(3), ra[1][3:], d[1], S(3, 1)])
    else:
        v_ = lambda j: mfma32(AC_Q, X(n, j), p1_frag(1, j, 0))
        run_gaps(a, [w(2), v_(2), ra[0], S(2, 0), sx16(n, 2), d[0], S(2, 1),
                     w(3), v_(3), ra[1], S(3, 0), sx16(n, 3), d[1], S(3, 1)])


def p1_a_phase(a, n, g, rb, dm):
    w = lambda j: (lambda: a.wait_lg(f'P{n}_{j}'))
    S = lambda j, k: stat_reg(n, g, j, k)
    d = list(dm) + [[]] * 4
    z = lambda first: '0' if first else None
    if OPT.get('gram'):
        if g == 0:
            q = lambda j: mfma32(AC_Q, p1_frag(0, j, 0), X(n, j), z(n == 0 and j == 0))
            k_ = lambda j: mfma32(AC_K, p1_frag(0, j, 1), X(n, j), z(n == 0 and j == 0))
            run_gaps(a, [w(0), q(0), rb[0][:3], k_(0), rb[0][3:],
                         mfma16(vCS0, p1_frag(0, 0, 0), vSEL, z(n == 0)), d[0],
                         mfma16(vCS1, p1_frag(0, 0, 1), vSEL, z(n == 0)), rb[1][:3],
                         w(1), q(1), rb[1][3:], k_(1), d[1]])
        else:
            v_ = lambda j: mfma32(AC_Q, X(n, j), p1_frag(1, j, 0), z(n == 0 and j == 0))
            run_gaps(a, [w(0), v_(0), rb[0], gram(n, 0),
                         mfma16(vCS0, p1_frag(1, 0, 0), vSEL, z(n == 0)), d[0], sx16(n, 0),
                         w(1), v_(1), rb[1], gram(n, 1), d[1], sx16(n, 1)])
        return
    if g == 0:
        q = lambda j: mfma32(AC_Q, p1_frag(0, j, 0), X(n, j), z(n == 0 and j == 0))
        k_ = lambda j: mfma32(AC_K, p1_frag(0, j, 1), X(n, j), z(n == 0 and j == 0))
        run_gaps(a, [w(0), q(0), rb[0][:3], S(0, 0),
                     k_(0), rb[0][3:], S(0, 1),
                     mfma16(vCS0, p1_frag(0, 0, 0), vSEL, z(n == 0)), d[0],
                     mfma16(vCS1, p1_frag(0, 0, 1), vSEL, z(n == 0)), rb[1][:3],
                     w(1), q(1), rb[1][3:], S(1, 0),
                     k_(1), d[1], S(1, 1)])
    else:
        v_ = lambda j: mfma32(AC_Q, X(n, j), p1_frag(1, j, 0), z(n == 0 and j == 0))
        run_gaps(a, [w(0), v_(0), rb[0], S(0, 0),
                     mfma16(vCS0, p1_frag(1, 0, 0), vSEL, z(n == 0)), d[0], S(0, 1), sx16(n, 0),
                     w(1), v_(1), rb[1], S(1, 0), sx16(n, 1), d[1], S(1, 1)])


def stage_head(a, n, g):
    a.wait_vm(f'c{n}')
    if n in PREBAR:
        PREBAR[n](a, g)
    a('s_barrier')
    if n in HOOKS:
        HOOKS[n](a, g)


def p1_stage(a, n, g):
    a.comment(f'--- P1 stage {n} g={g}')
    if OPT.get('dep', 3) == 4:
        a.wait_lg()
    stage_head(a, n, g)
    k1.rebase(a, [aX + j for j in range(4)], n)
    dm = [d for c in SCHED[n] for d in dma_ops(a, c, g)]
    db, da = k1.split_dma(dm, g, True)
    nb_ = OPT.get('db0' if g == 0 else 'db1')
    if nb_ is not None:
        db, da = dm[:nb_], dm[nb_:]
    two = lambda l: [l[:(len(l) + 1) // 2], l[(len(l) + 1) // 2:]]
    ra = [p1_read_ops(a, n, g, 0), p1_read_ops(a, n, g, 1)]
    if n > 0:
        p1_b_phase(a, n - 1, g, ra, two(db))
    else:
        run_gaps(a, ra)
        da = db + da
    da = two(da)
    rb = [p1_read_ops(a, n, g, 2), p1_read_ops(a, n, g, 3)]
    p1_a_phase(a, n, g, rb, da)


def e1a(a, g, dmas, prebar=None):
    a.comment(f'--- P1 epilogue g={g}')
    dmas = list(dmas)
    nxt = lambda: dmas.pop(0)() if dmas else None
    p1_b_phase(a, 7, g, [[], []], [])
    t = BUFA
    gr = OPT.get('gram')
    a(f'''
{'' if gr else f'v_add_f32 v{vSQ0}, v{vSQ0}, v{vSQ1}'}
v_and_b32 v{t}, 31, v0
v_lshlrev_b32 v{t + 1}, 4, v{t}
s_lshl_b32 s{sT0}, s{sTT}, 9
s_add_u32 s{sT0}, s{sT0}, {ST}
v_add_u32 v{t + 1}, s{sT0}, v{t + 1}
v_lshrrev_b32 v{t + 2}, 5, v0
v_lshlrev_b32 v{t + 2}, 2, v{t + 2}
v_add3_u32 v{t + 2}, v{t + 2}, v{t + 1}, {8 * g}
''')
    if not gr:
        a.ds(f'ds_write_b32 v{t + 2}, v{vSQ0}', 'w')
    run_gaps(a, [cs_write_ops(a, [(vCS0, 0), (vCS1, 512)] if g == 0 else [(vCS0, 1024)], sx=(g == 1))])
    if gr and g == 1:
        regs = [AC_K + r for r in range(16)]
        for m in (0xAAAAAAAA, 0xCCCCCCCC, 0xFF00FF00, 0xFFFF0000):
            a(f's_mov_b32 vcc_lo, {m:#x}')
            a(f's_mov_b32 vcc_hi, {m:#x}')
            nxt_regs = []
            for i in range(0, len(regs), 2):
                a(f'v_cndmask_b32 v{regs[i]}, v{regs[i]}, v{regs[i + 1]}, vcc')
                nxt_regs.append(regs[i])
            regs = nxt_regs
        a('s_mov_b32 exec_lo, 0x0f0f0f0f')
        a('s_mov_b32 exec_hi, 0xf0f0f0f0')
        a.ds(f'ds_write_b32 v{t + 1}, v{AC_K}', 'w')
        a('s_mov_b64 exec, -1')
    a(f'''
v_lshlrev_b32 v{t + 2}, 2, v{t}
s_lshl_b32 s{sT0}, s{sTT}, 7
s_add_u32 s{sT0}, s{sT0}, {SXB}
v_add_u32 v{t + 2}, s{sT0}, v{t + 2}
v_lshlrev_b32 v{t + 3}, 4, v{t}
v_add_u32 v{t + 3}, {CSP}, v{t + 3}
''')
    if g == 0:
        a(f'''
v_lshrrev_b32 v{t}, 5, v0
v_lshlrev_b32 v{t}, 9, v{t}
v_add_u32 v{t + 3}, v{t + 3}, v{t}
''')
    a.wait_lg()
    if prebar:
        prebar(a, g)
    a('s_barrier')
    if gr:
        a.ds(f'ds_read_b32 v{t + 4}, v{t + 1}', 's')
    else:
        a.ds(f'ds_read_b128 v[{t + 4}:{t + 7}], v{t + 1}', 's')
    a.ds(f'ds_read_b32 v{t + 12}, v{t + 2}', 's')
    a.ds(f'ds_read_b128 v[{t + 8}:{t + 11}], v{t + 3} offset:{0 if g == 0 else 1024}', 'c')
    if not OPT.get('prs'):
        prep_issue(a)
    a(f'''
v_and_b32 v{vTMP + 2}, 31, v0
v_and_b32 v{vTMP + 3}, 19, v{vTMP + 2}
v_bfe_u32 v{vCS0}, v0, 2, 1
v_lshlrev_b32 v{vCS0}, 3, v{vCS0}
v_bfe_u32 v{vCS0 + 1}, v0, 3, 1
v_lshlrev_b32 v{vCS0 + 1}, 2, v{vCS0 + 1}
v_add3_u32 v{vTMP + 3}, v{vTMP + 3}, v{vCS0}, v{vCS0 + 1}
v_lshlrev_b32 v{vTMP + 3}, 1, v{vTMP + 3}
{k1.col_bytes()}
s_add_u32 s{sT1}, s{sT0}, s{sPB}
{f's_add_u32 s{sT0}, s{sT0}, s{k1.sPA}' if k1.EV else ''}
''')
    a.vmem(f'buffer_load_ushort v{vB1A}, v{vTMP + 3}, {srd(S_B1)}, s{sT0} offen', 'b1')
    a.vmem(f'buffer_load_ushort v{vB1B}, v{vTMP + 3}, {srd(S_B1)}, s{sT1} offen', 'b1')
    a.wait_lg('s')
    a(f'''
{'' if gr else f'v_add_f32 v{t + 4}, v{t + 4}, v{t + 5}'}
{'' if gr else f'v_add_f32 v{t + 6}, v{t + 6}, v{t + 7}'}
v_mul_f32 v{vM}, {fl(1 / 512)}, v{t + 12}
{'' if gr else f'v_add_f32 v{t + 4}, v{t + 4}, v{t + 6}'}
v_mul_f32 v{t + 4}, {fl(1 / 512)}, v{t + 4}
v_fma_f32 v{t + 4}, -v{vM}, v{vM}, v{t + 4}
v_max_f32 v{t + 4}, 0, v{t + 4}
v_add_f32 v{t + 5}, {fl(1e-5)}, v{t + 4}
v_rsq_f32 v{vR}, v{t + 5}
''')
    nxt()
    a.wait_lg('c')
    a(f'''
v_add_f32 v{t + 8}, v{t + 8}, v{t + 9}
v_add_f32 v{t + 10}, v{t + 10}, v{t + 11}
v_mul_f32 v{t + 5}, v{vR}, v{vR}
v_mul_f32 v{t + 5}, v{t + 5}, v{t + 4}
v_add_f32 v{t + 5}, {fl(1e-5)}, v{t + 5}
v_rsq_f32 v{t + 5}, v{t + 5}
v_add_f32 v{t + 8}, v{t + 8}, v{t + 10}
s_lshl_b32 s{sT0}, s{sW}, 8
s_add_u32 s{sT0}, s{sT0}, {SCR}
v_lshlrev_b32 v{vSCW}, 2, v0
v_add_u32 v{vSCW}, s{sT0}, v{vSCW}
v_lshrrev_b32 v{vSCR}, 5, v0
v_lshlrev_b32 v{vSCR}, 4, v{vSCR}
v_add_u32 v{vSCR}, s{sT0}, v{vSCR}
v_mul_f32 v{vRR}, v{vR}, v{t + 5}
v_mul_f32 v{vMRR}, v{vM}, v{vRR}
''')
    if g == 0:
        a.ds(f'ds_write_b32 v{vSCW}, v{t + 8}', 'w')
        a(f'v_mul_f32 v{vQS}, {fl(C_Q)}, v{vR}')
    else:
        a(f'''
v_mul_f32 v{t + 9}, v{vM}, v{vR}
v_cmp_gt_u32 vcc, 32, v0
v_cndmask_b32 v{t + 9}, v{t + 9}, v{vR}, vcc
''')
        a.ds(f'ds_write_b32 v{vSCW}, v{t + 9}', 'w')
        a(f'''
v_mov_b32 v{vCSV}, v{t + 8}
v_bfe_u32 v{vQS}, v0, 4, 1
v_lshlrev_b32 v{vQS}, 17, v{vQS}
v_and_b32 v{t + 3}, 15, v0
v_lshlrev_b32 v{t + 3}, 4, v{t + 3}
v_add_u32 v{vQS}, v{vQS}, v{t + 3}
v_lshrrev_b32 v{t + 3}, 5, v0
v_lshlrev_b32 v{t + 3}, 8, v{t + 3}
v_add_u32 v{vQS}, v{vQS}, v{t + 3}
''')
    nxt()
    a(f'''
s_lshl_b32 s{sT0}, s{sHP}, 17
s_lshl_b32 s{sT1}, s{sT}, 10
s_add_u32 s{sQO}, s{sT0}, s{sT1}
s_lshl_b32 s{sT0}, s{sHP}, 18
s_lshl_b32 s{sT1}, s{sT}, 11
s_add_u32 s{sKO}, s{sT0}, s{sT1}
s_add_u32 s{sKO}, s{sKO}, {KV}
s_lshl_b32 s{sT0}, s{sG}, 13
s_sub_u32 s{sT0}, s{sT0}, {WR}
''')
    for j in range(4):
        a(f'v_add_u32 v{aW + j}, s{sT0}, v{aW + j}')
    for j in range(4):
        a(f'v_add_u32 v{aWH + j}, 0x10000, v{aW + j}')
    while dmas:
        nxt()


def e1m(a, g, dmas, prebar, e1b_first):
    a.comment(f'--- P1 epilogue + P2 stage 8, g={g}')
    dmas = list(dmas)
    p1_b_phase(a, 7, g, [[], []], [])
    t, u = BUFA, BUFB
    a(f'''
v_add_f32 v{vSQ0}, v{vSQ0}, v{vSQ1}
v_and_b32 v{t}, 31, v0
v_lshlrev_b32 v{t + 1}, 4, v{t}
s_lshl_b32 s{sT0}, s{sTT}, 9
s_add_u32 s{sT0}, s{sT0}, {ST}
v_add_u32 v{t + 1}, s{sT0}, v{t + 1}
v_lshrrev_b32 v{t + 2}, 5, v0
v_lshlrev_b32 v{t + 2}, 2, v{t + 2}
v_add3_u32 v{t + 2}, v{t + 2}, v{t + 1}, {8 * g}
''')
    a.ds(f'ds_write_b32 v{t + 2}, v{vSQ0}', 'w')
    run_gaps(a, [cs_write_ops(a, [(vCS0, 0), (vCS1, 512)] if g == 0 else [(vCS0, 1024)], sx=(g == 1))])
    a(f'''
v_lshlrev_b32 v{t + 2}, 2, v{t}
s_lshl_b32 s{sT0}, s{sTT}, 7
s_add_u32 s{sT0}, s{sT0}, {SXB}
v_add_u32 v{t + 2}, s{sT0}, v{t + 2}
v_lshlrev_b32 v{t + 3}, 4, v{t}
v_add_u32 v{t + 3}, {CSP}, v{t + 3}
''')
    if g == 0:
        a(f'''
v_lshrrev_b32 v{t}, 5, v0
v_lshlrev_b32 v{t}, 9, v{t}
v_add_u32 v{t + 3}, v{t + 3}, v{t}
''')
    a(f'''
s_lshl_b32 s{sT0}, s{sG}, 13
s_sub_u32 s{sT0}, s{sT0}, {WR}
''')
    for j in range(4):
        a(f'v_add_u32 v{aW + j}, s{sT0}, v{aW + j}')
    for j in range(4):
        a(f'v_add_u32 v{aWH + j}, 0x10000, v{aW + j}')
    a.wait_lg()
    if prebar:
        prebar(a, g)
    a.wait_vm('c8')
    a('s_barrier')
    a.ds(f'ds_read_b128 v[{u + 4}:{u + 7}], v{t + 1}', 's')
    a.ds(f'ds_read_b32 v{u + 12}, v{t + 2}', 's')
    a.ds(f'ds_read_b128 v[{u + 8}:{u + 11}], v{t + 3} offset:{0 if g == 0 else 1024}', 'c')
    run_gaps(a, [p2_read_ops(a, 8, p) for p in P2A])

    def b1_ops(r):
        r(f'''
v_and_b32 v{vTMP + 2}, 31, v0
v_and_b32 v{vTMP + 3}, 19, v{vTMP + 2}
v_bfe_u32 v{vCS0}, v0, 2, 1
v_lshlrev_b32 v{vCS0}, 3, v{vCS0}
v_bfe_u32 v{vCS0 + 1}, v0, 3, 1
v_lshlrev_b32 v{vCS0 + 1}, 2, v{vCS0 + 1}
v_add3_u32 v{vTMP + 3}, v{vTMP + 3}, v{vCS0}, v{vCS0 + 1}
v_lshlrev_b32 v{vTMP + 3}, 1, v{vTMP + 3}
{k1.col_bytes()}
s_add_u32 s{sT1}, s{sT0}, s{sPB}
{f's_add_u32 s{sT0}, s{sT0}, s{k1.sPA}' if k1.EV else ''}
''')
        r.vmem(f'buffer_load_ushort v{vB1A}, v{vTMP + 3}, {srd(S_B1)}, s{sT0} offen', 'b1')
        r.vmem(f'buffer_load_ushort v{vB1B}, v{vTMP + 3}, {srd(S_B1)}, s{sT1} offen', 'b1')

    def s1(r):
        r.wait_lg('s')
        r(f'''
v_add_f32 v{u + 4}, v{u + 4}, v{u + 5}
v_add_f32 v{u + 6}, v{u + 6}, v{u + 7}
v_mul_f32 v{vM}, {fl(1 / 512)}, v{u + 12}
v_add_f32 v{u + 4}, v{u + 4}, v{u + 6}
v_mul_f32 v{u + 4}, {fl(1 / 512)}, v{u + 4}
v_fma_f32 v{u + 4}, -v{vM}, v{vM}, v{u + 4}
v_max_f32 v{u + 4}, 0, v{u + 4}
v_add_f32 v{u + 5}, {fl(1e-5)}, v{u + 4}
v_rsq_f32 v{vR}, v{u + 5}
''')

    def s2(r):
        r.wait_lg('c')
        r(f'''
v_add_f32 v{u + 8}, v{u + 8}, v{u + 9}
v_add_f32 v{u + 10}, v{u + 10}, v{u + 11}
v_mul_f32 v{u + 5}, v{vR}, v{vR}
v_mul_f32 v{u + 5}, v{u + 5}, v{u + 4}
v_add_f32 v{u + 5}, {fl(1e-5)}, v{u + 5}
v_rsq_f32 v{u + 5}, v{u + 5}
v_add_f32 v{u + 8}, v{u + 8}, v{u + 10}
s_lshl_b32 s{sT0}, s{sW}, 8
s_add_u32 s{sT0}, s{sT0}, {SCR}
v_lshlrev_b32 v{vSCW}, 2, v0
v_add_u32 v{vSCW}, s{sT0}, v{vSCW}
v_lshrrev_b32 v{vSCR}, 5, v0
v_lshlrev_b32 v{vSCR}, 4, v{vSCR}
v_add_u32 v{vSCR}, s{sT0}, v{vSCR}
v_mul_f32 v{vRR}, v{vR}, v{u + 5}
v_mul_f32 v{vMRR}, v{vM}, v{vRR}
''')

    def s3(r):
        if g == 0:
            r.ds(f'ds_write_b32 v{vSCW}, v{u + 8}', 'w')
            r(f'v_mul_f32 v{vQS}, {fl(C_Q)}, v{vR}')
        else:
            r(f'''
v_mul_f32 v{u + 9}, v{vM}, v{vR}
v_cmp_gt_u32 vcc, 32, v0
v_cndmask_b32 v{u + 9}, v{u + 9}, v{vR}, vcc
''')
            r.ds(f'ds_write_b32 v{vSCW}, v{u + 9}', 'w')
            r(f'''
v_mov_b32 v{vCSV}, v{u + 8}
v_bfe_u32 v{vQS}, v0, 4, 1
v_lshlrev_b32 v{vQS}, 17, v{vQS}
v_and_b32 v{u + 3}, 15, v0
v_lshlrev_b32 v{u + 3}, 4, v{u + 3}
v_add_u32 v{vQS}, v{vQS}, v{u + 3}
v_lshrrev_b32 v{u + 3}, 5, v0
v_lshlrev_b32 v{u + 3}, 8, v{u + 3}
v_add_u32 v{vQS}, v{vQS}, v{u + 3}
''')

    def offs(r):
        r(f'''
s_lshl_b32 s{sT0}, s{sHP}, 17
s_lshl_b32 s{sT1}, s{sT}, 10
s_add_u32 s{sQO}, s{sT0}, s{sT1}
s_lshl_b32 s{sT0}, s{sHP}, 18
s_lshl_b32 s{sT1}, s{sT}, 11
s_add_u32 s{sKO}, s{sT0}, s{sT1}
s_add_u32 s{sKO}, s{sKO}, {KV}
''')
    w = lambda p: (lambda: a.wait_lg(f'P8_{p}'))
    mm = lambda p: [w(p), p2_mfma(8, p)] + ([p2_m16(8, p)] if p in (0, 4) else [])
    mode = OPT.get('e1m', 1)
    prep = [] if OPT.get('prs') else [lambda: prep_issue(a)]
    nd = len(dmas) // 2
    if mode == 1:
        run_gaps(a, [prep, record(a, b1_ops), record(a, s1), mm(P2A[0]), dmas[:nd][:1], record(a, s2), mm(P2A[1]),
                     record(a, s3), e1b_first[:2], record(a, offs), mm(P2A[2]), dmas[1:nd], mm(P2A[3])])
        rest = dmas[nd:]
    elif mode == 2:
        run_gaps(a, [record(a, b1_ops), record(a, s1), mm(P2A[0]), record(a, s2), mm(P2A[1]),
                     record(a, s3), e1b_first[:2], record(a, offs), mm(P2A[2]), prep, mm(P2A[3]), dmas[:nd]])
        rest = dmas[nd:]
    else:
        run_gaps(a, [record(a, offs), record(a, s1), mm(P2A[0]), record(a, s2), mm(P2A[1]),
                     record(a, s3), e1b_first[:2], mm(P2A[2]), record(a, b1_ops), mm(P2A[3]), prep, dmas[:nd]])
        rest = dmas[nd:]
    rb = [p2_read_ops(a, 8, p) for p in P2B]
    run_gaps(a, rb)
    rem = split_even(e1b_first[2:], len(rest) + 1)
    for i, p in enumerate(rem):
        run_gaps(a, [p])
        if i < len(rest):
            rest[i]()


def e1b_ops(a, g):
    SC = k1.SC
    ops = []
    if g == 0:
        quads = [(p, qd) for p in (0, 1) for qd in range(4)]
        rd = lambda i: (lambda: a.ds(f'ds_read_b128 v[{QT + 4 * (i % 2)}:{QT + 4 * (i % 2) + 3}], v{vSCR} '
                                     f'offset:{quads[i][0] * 128 + quads[i][1] * 32}', f'eq{i}'))
        ops += [rd(0), rd(1)]
        for i, (p, qd) in enumerate(quads):
            acc = AC_Q if p == 0 else AC_K
            sc = vQS if p == 0 else vR
            T = QT + 4 * (i % 2)
            R = [acc + 4 * qd + e for e in range(4)]
            ops.append(lambda i=i: a.wait_lg(f'eq{i}'))
            ops += [f'v_fma_f32 v{R[e]}, -v{vM}, v{T + e}, v{R[e]}' for e in range(4)]
            if i + 2 < 8:
                ops.append(rd(i + 2))
            ops += [f'v_mul_f32 v{R[e]}, v{sc}, v{R[e]}' for e in range(4)]
            ops.append(f'v_cvt_pk_bf16_f32 v{acc + 2 * qd}, v{R[0]}, v{R[1]}')
            ops.append(f'v_cvt_pk_bf16_f32 v{acc + 2 * qd + 1}, v{R[2]}, v{R[3]}')
            if qd in (1, 3):
                half = qd // 2
                so, delta = (sQO, 65536) if p == 0 else (sKO, 131072)

                def stf(acc=acc, half=half, so=so, delta=delta):
                    if half == 0:
                        s_ = f's{so}'
                    else:
                        a(f's_add_u32 s{sT2}, s{so}, {delta}')
                        s_ = f's{sT2}'
                    a.vmem(f'buffer_store_dwordx4 v[{acc + 4 * half}:{acc + 4 * half + 3}], v{vL16}, {srd(S_WS)}, '
                           f'{s_} offen{SC}', 'st')
                ops.append(stf)
    else:
        acc = AC_Q
        T = lambda i: (QT, QT2)[i % 2]

        def rd(i):
            def f():
                a.ds(f'ds_read_b128 v[{T(i)}:{T(i) + 3}], v{vSCR} offset:{i * 32}', f'eq{i}')
                a.ds(f'ds_read_b128 v[{T(i) + 4}:{T(i) + 7}], v{vSCR} offset:{128 + i * 32}', f'eq{i}')
            return f
        ops += [rd(0), rd(1)]
        for qd in range(4):
            R = [acc + 4 * qd + e for e in range(4)]
            t = T(qd)
            ops.append(lambda qd=qd: a.wait_lg(f'eq{qd}'))
            ops += [f'v_mul_f32 v{t + 4 + e}, v{vCSV}, v{t + 4 + e}' for e in range(4)]
            ops += [f'v_fma_f32 v{R[e]}, v{R[e]}, v{t + e}, -v{t + 4 + e}' for e in range(4)]
            if qd + 2 < 4:
                ops.append(rd(qd + 2))
            ops.append(f'v_cvt_pk_bf16_f32 v{acc + 2 * qd}, v{R[0]}, v{R[1]}')
            ops.append(f'v_cvt_pk_bf16_f32 v{acc + 2 * qd + 1}, v{R[2]}, v{R[3]}')
            if qd in (1, 3):
                half = qd // 2
                ops.append(lambda half=half: a.vmem(
                    f'buffer_store_dwordx4 v[{acc + 4 * half}:{acc + 4 * half + 3}], v{vQS}, {srd(S_WS)}, '
                    f's{sKO} offen offset:{1024 + 512 * half}{SC}', 'st'))
    return ops


def p2_read_ops(a, n, p):
    pos = P2POS[n] + (p // 4) * 4096
    base = aW if pos < 65536 else aWH
    off = pos % 65536
    d = p2_frag(p)
    tag = f'P{n}_{p}'
    return [lambda: a.ds(f'ds_read_b64_tr_b16 v[{d}:{d + 1}], v{base + p % 4} offset:{off}', tag),
            lambda: a.ds(f'ds_read_b64_tr_b16 v[{d + 2}:{d + 3}], v{base + p % 4} offset:{off + 256}', tag)]


def p2_b_phase(a, n, ra, fill):
    w = lambda p: (lambda: a.wait_lg(f'P{n}_{p}'))
    for i, p in enumerate(P2B):
        run_gaps(a, [w(p), p2_mfma(n, p), ra[i], fill[i]])


def p2_a_phase(a, n, rb, fill):
    w = lambda p: (lambda: a.wait_lg(f'P{n}_{p}'))
    for i, p in enumerate(P2A):
        run_gaps(a, [w(p), p2_mfma(n, p), rb[i], fill[i]])
        if p in (0, 4):
            a(p2_m16(n, p))


def p2_stage(a, n, g, fill):
    a.comment(f'--- P2 stage {n} g={g}')
    if n == 12:
        a.wait_lg('w')
    stage_head(a, n, g)
    ra = [p2_read_ops(a, n, p) for p in P2A]
    if n > 8:
        p2_b_phase(a, n - 1, ra, fill[:4])
    else:
        run_gaps(a, [[x for pair in zip(ra, fill[:4]) for y in pair for x in y]])
    rb = [p2_read_ops(a, n, p) for p in P2B]
    p2_a_phase(a, n, rb, fill[4:])


GT = 80


def gelu_prep(a, g, pas):
    pi = 3 + 2 * g + pas
    b1 = vB1A if pas == 0 else vB1B
    t = vCS0
    return [f'v_and_b32 v{t + 4}, 31, v0',
            f'v_lshlrev_b32 v{t + 4}, 4, v{t + 4}',
            f'v_add_u32 v{t + 4}, {CSP}, v{t + 4}',
            lambda: a.ds(f'ds_read_b128 v[{t}:{t + 3}], v{t + 4} offset:{pi * 512}', 'gc'),
            f'v_lshlrev_b32 v{t + 4}, 16, v{b1}',
            f'v_cmp_gt_u32 vcc, 32, v0',
            lambda: a.wait_lg('gc'),
            f'v_add_f32 v{t}, v{t}, v{t + 1}',
            f'v_add_f32 v{t + 2}, v{t + 2}, v{t + 3}',
            f'v_add_f32 v{t}, v{t}, v{t + 2}',
            f'v_cndmask_b32 v{t}, v{t + 4}, v{t}, vcc',
            lambda: a.ds(f'ds_write_b32 v{vSCW}, v{t}', 'w')]


def gelu_quad(a, acc, q, tag):
    cs, b, u, w = [[GT + 4 * k + e for e in range(4)] for k in range(4)]
    R = [acc + 4 * q + e for e in range(4)]
    rd = [lambda: a.ds(f'ds_read_b128 v[{cs[0]}:{cs[3]}], v{vSCR} offset:{q * 32}', tag),
          lambda: a.ds(f'ds_read_b128 v[{b[0]}:{b[3]}], v{vSCR} offset:{128 + q * 32}', tag)]
    ops = [lambda: a.wait_lg(tag)]
    ops += [f'v_fma_f32 v{b[e]}, -v{vMRR}, v{cs[e]}, v{b[e]}' for e in range(4)]
    ops += [f'v_fma_f32 v{R[e]}, v{vRR}, v{R[e]}, v{b[e]}' for e in range(4)]
    body = [f'v_mul_f32 v{u[e]}, v{R[e]}, v{R[e]}' for e in range(4)]
    body += [f'v_fma_f32 v{u[e]}, v{u[e]}, s{sC2}, v{vTMP + 2}' for e in range(4)]
    body += [f'v_mul_f32 v{u[e]}, v{u[e]}, v{R[e]}' for e in range(4)]
    body += [f'v_exp_f32 v{w[e]}, v{u[e]}' for e in range(4)]
    body += [f'v_add_f32 v{w[e]}, 1.0, v{w[e]}' for e in range(4)]
    body += [f'v_rcp_f32 v{w[e]}, v{w[e]}' for e in range(4)]
    body += [f'v_mul_f32 v{R[e]}, v{R[e]}, v{w[e]}' for e in range(4)]
    body.append(f'v_cvt_pk_bf16_f32 v{acc + 2 * q}, v{R[0]}, v{R[1]}')
    body.append(f'v_cvt_pk_bf16_f32 v{acc + 2 * q + 1}, v{R[2]}, v{R[3]}')
    return rd, ops, body


def gelu_consts():
    return [f's_mov_b32 s{sC2}, {fl(C2)}', f'v_mov_b32 v{vTMP + 2}, {fl(C1)}']


def gelu_tile_ops(a, acc, tagp, qs=(0, 1, 2, 3)):
    out = []
    nq = len(qs)
    rds = [gelu_quad(a, acc, q, f'{tagp}{q}') for q in qs]
    out += rds[0][0]
    per = []
    for q in range(nq):
        rd, head, body = rds[q]
        seq = list(head)
        if q + 1 < nq:
            seq += rds[q + 1][0]
        seq += body
        per.append(seq)
    return out, per


def h_store(a, g, pas, tag, halves=(1, 1)):
    acc = AC_A if pas == 0 else AC_B
    if k1.EV:
        a(f'''
s_mul_i32 s{sHO}, s{sT}, 112
s_lshl_b32 s{sT0}, s{sG}, 2
s_add_u32 s{sT0}, s{sT0}, s{sF0}
s_lshr_b32 s{sT1}, s{k1.sPA if pas == 0 else sPB}, 5
s_add_u32 s{sT0}, s{sT0}, s{sT1}
s_add_u32 s{sHO}, s{sHO}, s{sT0}
s_lshl_b32 s{sHO}, s{sHO}, 10
s_add_u32 s{sHO}, s{sHO}, {HF}
''')
        if halves[0]:
            a.vmem(f'buffer_store_dwordx4 v[{acc}:{acc + 3}], v{vL16}, {srd(S_WS)}, s{sHO} offen{k1.SC}', tag)
        if halves[1]:
            a.vmem(f'buffer_store_dwordx4 v[{acc + 4}:{acc + 7}], v{vL16}, {srd(S_WS)}, s{sHO} offen offset:1024{k1.SC}',
                   tag)
        return
    a(f'''
s_mul_i32 s{sHO}, s{sT}, 112
s_lshl_b32 s{sT0}, s{sG}, 1
s_add_u32 s{sT0}, s{sT0}, s{sF0}
s_add_u32 s{sT0}, s{sT0}, {pas}
s_lshl_b32 s{sT0}, s{sT0}, 1
s_add_u32 s{sHO}, s{sHO}, s{sT0}
s_lshl_b32 s{sHO}, s{sHO}, 10
s_add_u32 s{sHO}, s{sHO}, {HF}
''')
    a.vmem(f'buffer_store_dwordx4 v[{acc}:{acc + 3}], v{vL16}, {srd(S_WS)}, s{sHO} offen{k1.SC}', tag)
    a.vmem(f'buffer_store_dwordx4 v[{acc + 4}:{acc + 7}], v{vL16}, {srd(S_WS)}, s{sHO} offen offset:1024{k1.SC}', tag)


vPO2 = 47


def prep_issue(a):
    a.comment('prep DMA')
    lbl = a.newlabel('prep_wo')
    lbl2 = a.newlabel('prep_j')
    a(f'''
v_lshrrev_b32 v{vTMP}, 2, v0
v_lshlrev_b32 v{vTMP}, 10, v{vTMP}
v_and_b32 v{vTMP + 1}, 3, v0
v_lshlrev_b32 v{vTMP + 1}, 4, v{vTMP + 1}
s_and_b32 s{sT0}, s2, 1
s_lshl_b32 s{sT0}, s{sT0}, 3
s_add_u32 s{sT0}, s{sT0}, s{sW}
s_lshl_b32 s{sT0}, s{sT0}, 6
v_add3_u32 v{vTMP}, v{vTMP}, v{vTMP + 1}, s{sT0}
s_lshr_b32 s{k1.sPS}, s2, 1
s_lshl_b32 s{sT1}, s{sW}, 10
s_add_u32 m0, s{sT1}, {WR}
s_lshl_b32 s{sT2}, s{k1.sPS}, 14
s_cmp_ge_u32 s2, 224
s_cbranch_scc1 {lbl}
''')
    a.vmem(f'buffer_load_dwordx4 v{vTMP}, {srd(S_W2)}, s{sT2} offen lds', 'prep')
    a(f's_branch {lbl2}')
    a.label(lbl)
    a(f's_sub_u32 s{sT2}, s{sT2}, {112 * 16384}')
    a(f'buffer_load_dwordx4 v{vTMP}, {srd(S_WO)}, s{sT2} offen lds')
    a.label(lbl2)
    a(f'''
s_cmp_ge_u32 s2, 32
s_cselect_b32 s{k1.sPF}, 0x40000000, 0
s_lshr_b32 s{sT2}, s2, 1
s_add_u32 s{sT2}, s{sT2}, 16
s_lshl_b32 s{sT2}, s{sT2}, 14
s_add_u32 m0, s{sT1}, {WR + 8192}
v_add_u32 v{vTMP}, s{k1.sPF}, v{vTMP}
''')
    a.vmem(f'buffer_load_dwordx4 v{vTMP}, {srd(S_WO)}, s{sT2} offen lds', 'prep')


def prep_finish_ops(a, tag):
    t = 80
    SC = k1.SC

    def body(r):
        r(f'''
v_lshrrev_b32 v{t}, 5, v0
v_lshlrev_b32 v{t}, 9, v{t}
v_bfe_u32 v{t + 1}, v0, 2, 2
v_lshlrev_b32 v{t + 1}, 6, v{t + 1}
v_add_u32 v{t}, v{t}, v{t + 1}
v_bfe_u32 v{t + 1}, v0, 4, 1
v_lshlrev_b32 v{t + 1}, 5, v{t + 1}
v_add_u32 v{t}, v{t}, v{t + 1}
v_and_b32 v{t + 1}, 3, v0
v_lshlrev_b32 v{t + 1}, 3, v{t + 1}
s_lshl_b32 s{sT0}, s{sW}, 10
s_add_u32 s{sT0}, s{sT0}, {WR}
v_add3_u32 v{t}, v{t}, v{t + 1}, s{sT0}
v_add_u32 v{t + 2}, s{k1.sPF}, v{vL16}
''')
    addr = record(a, body)

    def rd(r):
        r.wait_vm('prep')
        r.ds(f'ds_read_b64_tr_b16 v[{t + 4}:{t + 5}], v{t}', 'pp')
        r.ds(f'ds_read_b64_tr_b16 v[{t + 6}:{t + 7}], v{t} offset:256', 'pp')
        r.ds(f'ds_read_b64_tr_b16 v[{t + 8}:{t + 9}], v{t} offset:8192', 'pp')
        r.ds(f'ds_read_b64_tr_b16 v[{t + 10}:{t + 11}], v{t} offset:{8192 + 256}', 'pp')
    reads = record(a, rd)

    def stf(r):
        r(f'''
s_lshl_b32 s{k1.sPS}, s2, 3
s_add_u32 s{k1.sPS}, s{k1.sPS}, s{sW}
s_lshl_b32 s{k1.sPS}, s{k1.sPS}, 10
s_add_u32 s{k1.sPS}, s{k1.sPS}, {WF}
''')
        r.wait_lg('pp')
        r.vmem(f'buffer_store_dwordx4 v[{t + 4}:{t + 7}], v{vL16}, {srd(S_WS)}, s{k1.sPS} offen{SC}', tag)
        r(f's_add_u32 s{k1.sPS}, s{k1.sPS}, {2048 * 1024}')
        r.vmem(f'buffer_store_dwordx4 v[{t + 8}:{t + 11}], v{t + 2}, {srd(S_WS)}, s{k1.sPS} offen{SC}', tag)
    stores = record(a, stf)
    return addr, reads, stores
```
